```python
import torch

def _softmax(x, axis=-1):
    return torch.softmax(x, dim=axis)
def _gelu(x):
    return torch.nn.functional.gelu(x, approximate="tanh")
def _silu(x):
    return torch.nn.functional.silu(x)
def _sigmoid(x):
    return torch.sigmoid(x)
def _layernorm(x, axis=-1, eps=1e-5):
    m = x.mean(dim=axis, keepdim=True)
    v = x.var(dim=axis, keepdim=True, unbiased=False)
    return (x - m) / torch.sqrt(v + eps)
def _scatter_add(tgt, idx, src, axis=0):
    return tgt.clone().index_add_(axis, idx, src)
def _segment_sum(src, seg, n):
    out = torch.zeros((n,) + src.shape[1:], dtype=src.dtype)
    return out.index_add_(0, seg, src)
def _pad(x, pw):
    flat = tuple(v for pair in reversed(pw) for v in pair)
    return torch.nn.functional.pad(x, flat)

kernel_name = 'parallel_sum__ssm_conv_s5__dense_activation_relu__prompt'

def setup_inputs():

    _w = (lambda a: (lambda t: t.to(torch.bfloat16) if t.is_floating_point() else t)(torch.as_tensor(a)))
    def _A_setup():
        B, S, D = 1, 2048, 512
        P = D
        Lambda_re = -0.5 * (lambda _x: torch.exp(torch.as_tensor(_x)))((lambda *s: torch.randn(*s, dtype=torch.bfloat16) * 0.8)(P))
        Lambda_im = (lambda *s: torch.randn(*s, dtype=torch.bfloat16) * 0.8)(P) * 1.0
        B_re = (lambda *s: torch.randn(*s, dtype=torch.bfloat16) * 0.8)(P, D) * (D ** -0.5)
        B_im = (lambda *s: torch.randn(*s, dtype=torch.bfloat16) * 0.8)(P, D) * (D ** -0.5)
        C_re = (lambda *s: torch.randn(*s, dtype=torch.bfloat16) * 0.8)(D, P) * (P ** -0.5)
        C_im = (lambda *s: torch.randn(*s, dtype=torch.bfloat16) * 0.8)(D, P) * (P ** -0.5)
        log_dt = (lambda *s: torch.randn(*s, dtype=torch.bfloat16) * 0.8)(P) * 0.3 - 2.0
        Dskip = (lambda *s: torch.randn(*s, dtype=torch.bfloat16) * 0.8)(D)
        return {
            "x": _w((lambda *s: torch.randn(*s, dtype=torch.bfloat16) * 0.05)(B, S, D)),
            "Lambda_re": _w(Lambda_re),
            "Lambda_im": _w(Lambda_im),
            "B_re": _w(B_re),
            "B_im": _w(B_im),
            "C_re": _w(C_re),
            "C_im": _w(C_im),
            "log_dt": _w(log_dt),
            "Dskip": _w(Dskip),
        }
    _A_in = _A_setup()

    def _B_setup():
        B, S, D, Dff = 1, 2048, 512, 1792
        return {
            "x": _w((lambda *s: torch.randn(*s, dtype=torch.bfloat16) * 0.05)(B, S, D)),
            "w1": _w((lambda *s: torch.randn(*s, dtype=torch.bfloat16) * 0.05)(D, Dff)),
            "w2": _w((lambda *s: torch.randn(*s, dtype=torch.bfloat16) * 0.05)(Dff, D)),
        }
    _B_in = _B_setup()

    return {
        "A_x": _A_in["x"],
        "A_Lambda_re": _A_in["Lambda_re"],
        "A_Lambda_im": _A_in["Lambda_im"],
        "A_B_re": _A_in["B_re"],
        "A_B_im": _A_in["B_im"],
        "A_C_re": _A_in["C_re"],
        "A_C_im": _A_in["C_im"],
        "A_log_dt": _A_in["log_dt"],
        "A_Dskip": _A_in["Dskip"],
        "B_x": _B_in["x"],
        "B_w1": _B_in["w1"],
        "B_w2": _B_in["w2"],
    }

def reference(A_x, A_Lambda_re, A_Lambda_im, A_B_re, A_B_im, A_C_re, A_C_im, A_log_dt, A_Dskip, B_x, B_w1, B_w2):
    def _A_ref(x, Lambda_re, Lambda_im, B_re, B_im, C_re, C_im, log_dt, Dskip):
        Bsz, L, H = x.shape
        Lam = Lambda_re + 1j * Lambda_im
        Bmat = B_re + 1j * B_im
        Cmat = C_re + 1j * C_im
        dt = torch.exp(log_dt)
        Lam_bar = torch.exp(dt * Lam)
        B_bar = ((Lam_bar - 1.0) / Lam)[:, None] * Bmat
        Bu = torch.einsum("bld,pd->blp", x + 0j, B_bar)
        h = torch.zeros_like(Bu[:, 0, :])
        hs = []
        for t in range(L):
            h = Lam_bar[None, :] * h + Bu[:, t, :]
            hs.append(h)
        hseq = torch.stack(hs, 1)
        y = 2.0 * torch.einsum("blp,dp->bld", hseq, Cmat).real + x * Dskip[None, None, :]
        return y

    def _B_ref(x, w1, w2):
        h = torch.einsum("bsd,df->bsf", x, w1)
        zero = torch.zeros_like(h)
        h = torch.maximum(h, zero)
        return torch.einsum("bsf,fd->bsd", h, w2)

    x = A_x
    xn = _layernorm(x, axis=-1)
    return x + _A_ref(xn, A_Lambda_re, A_Lambda_im, A_B_re, A_B_im, A_C_re, A_C_im, A_log_dt, A_Dskip) + _B_ref(xn, B_w1, B_w2)
```

```python
import sys
NAME = "parallel_sum__ssm_conv_s5__dense_activation_relu__prompt"
def srd(d, b, size):
    return [f"s_mov_b32 s{d}, s{b}", f"s_and_b32 s{d+1}, s{b+1}, 0xffff", f"s_mov_b32 s{d+2}, {size}", f"s_mov_b32 s{d+3}, 0x20000"]
KD = """
.section .rodata,"a"
.p2align 6
.amdhsa_kernel {name}
  .amdhsa_next_free_vgpr 64
  .amdhsa_next_free_sgpr 64
  .amdhsa_accum_offset 64
  .amdhsa_group_segment_fixed_size 0
  .amdhsa_kernarg_size 120
  .amdhsa_user_sgpr_count 2
  .amdhsa_user_sgpr_kernarg_segment_ptr 1
  .amdhsa_system_sgpr_workgroup_id_x 1
.end_amdhsa_kernel
.text
"""
def kern(name, L):
    return f".globl {name}\n.p2align 8\n.type {name},@function\n{name}:\n" + "\n".join(L) + f"\n{name}_end:\ns_endpgm\n" + KD.format(name=name)
def wsum(v, t):
    L = []
    for c in ("quad_perm:[1,0,3,2]", "quad_perm:[2,3,0,1]", "row_half_mirror", "row_mirror"):
        L += ["s_nop 1", f"v_add_f32_dpp v{v}, v{v}, v{v} {c} row_mask:0xf bank_mask:0xf"]
    L += [f"v_mov_b32 v{t}, v{v}", "s_nop 1", f"v_permlane16_swap_b32 v{t}, v{v}", "s_nop 1", f"v_add_f32 v{v}, v{v}, v{t}"]
    L += [f"v_mov_b32 v{t}, v{v}", "s_nop 1", f"v_permlane32_swap_b32 v{t}, v{v}", "s_nop 1", f"v_add_f32 v{v}, v{v}, v{t}"]
    return L
def rbf(v):
    return [f"v_cvt_pk_bf16_f32 v{v}, v{v}, v{v}", f"v_lshlrev_b32 v{v}, 16, v{v}"]
XN=0; XNR=4<<20; U=8<<20; HC=16<<20; WS=64<<20
def gen(algebraic=False, ffn_round=True, scale=None, noise=None):
    L = ["s_cmp_ge_u32 s2, 2048", "s_cbranch_scc1 k0_kernel_end", "s_load_dwordx2 s[4:5], s[0:1], 0", "s_load_dwordx2 s[6:7], s[0:1], 112", "s_waitcnt lgkmcnt(0)"]
    L += srd(8, 4, 2<<20) + srd(12, 6, WS)
    L += ["v_lshlrev_b32 v1, 4, v0", "s_lshl_b32 s3, s2, 10", "buffer_load_dwordx4 v[4:7], v1, s[8:11], s3 offen", "s_waitcnt vmcnt(0)"]
    for i in range(4):
        L += [f"v_lshlrev_b32 v{8+2*i}, 16, v{4+i}", f"v_and_b32 v{9+2*i}, 0xffff0000, v{4+i}"]
    L += ["v_mov_b32 v20, v8"] + [f"v_add_f32 v20, v20, v{8+i}" for i in range(1, 8)] + wsum(20, 21)
    L += ["v_mul_f32 v20, 0x3b000000, v20"]
    L += ["v_mov_b32 v22, 0"]
    for i in range(8): L += [f"v_sub_f32 v23, v{8+i}, v20", "v_fmac_f32 v22, v23, v23"]
    L += wsum(22, 21) + ["v_mul_f32 v22, 0x3b000000, v22"] + rbf(22) + ["v_add_f32 v22, 0x3727c5ac, v22"] + rbf(22) + ["v_sqrt_f32 v22, v22", "s_nop 0"] + rbf(22) + rbf(20)
    L += ["v_rcp_f32 v23, v22", "s_nop 0"]
    for i in range(8):
        L += [f"v_sub_f32 v{24+i}, v{8+i}, v20", f"v_mul_f32 v{32+i}, v{24+i}, v23"]
        L += rbf(24+i) + [f"v_mul_f32 v{24+i}, v{24+i}, v23"] + rbf(24+i)
    L += ["v_lshlrev_b32 v1, 5, v0", "s_lshl_b32 s3, s2, 11", f"s_add_u32 s16, s3, {XNR}"]
    a = 32 if algebraic else 24
    L += [f"buffer_store_dwordx4 v[{a}:{a+3}], v1, s[12:15], s3 offen", f"buffer_store_dwordx4 v[{a+4}:{a+7}], v1, s[12:15], s3 offen offset:16",
          "buffer_store_dwordx4 v[24:27], v1, s[12:15], s16 offen", "buffer_store_dwordx4 v[28:31], v1, s[12:15], s16 offen offset:16", "s_waitcnt vmcnt(0)"]
    k0 = kern("k0_kernel", L)
    L = ["s_cmp_ge_u32 s2, 22528", "s_cbranch_scc1 k1_kernel_end", "s_load_dwordx2 s[4:5], s[0:1], 80", "s_load_dwordx2 s[6:7], s[0:1], 112", "s_load_dwordx2 s[20:21], s[0:1], 24", "s_load_dwordx2 s[22:23], s[0:1], 32", "s_waitcnt lgkmcnt(0)"]
    L += ["s_lshr_b32 s24, s2, 11", "s_and_b32 s25, s2, 2047"]
    L += srd(12, 6, WS)
    L += ["s_cmp_lt_u32 s24, 7", "s_cbranch_scc1 k1_ffn", "s_cmp_lt_u32 s24, 9", "s_cselect_b32 s4, s20, s22", "s_cselect_b32 s5, s21, s23"]
    L += srd(8, 4, 512*1024) + ["s_sub_u32 s26, s24, 7", "s_and_b32 s26, s26, 1", "s_lshl_b32 s26, s26, 8", "v_add_u32 v1, s26, v0", "v_lshlrev_b32 v1, 10, v1", "s_mov_b32 s27, 2", "s_branch k1_go"]
    L += ["k1_ffn:"] + srd(8, 4, 512*1792*2) + ["s_lshl_b32 s26, s24, 8", "v_add_u32 v1, s26, v0", "v_lshlrev_b32 v1, 1, v1", "s_mov_b32 s27, 3584"]
    L += ["k1_go:", "v_mov_b32 v2, 0", "v_mov_b32 v3, 0", "s_lshl_b32 s28, s25, 11", "s_mov_b32 s29, 0", "s_mov_b32 s30, 512", "k1_loop:",
          "buffer_load_ushort v4, v1, s[8:11], s29 offen", "buffer_load_dword v5, v2, s[12:15], s28 offen", "s_waitcnt vmcnt(0)",
          "v_lshlrev_b32 v4, 16, v4", "v_fmac_f32 v3, v4, v5", "s_add_u32 s29, s29, s27", "s_add_u32 s28, s28, 4", "s_sub_u32 s30, s30, 1", "s_cmp_lg_u32 s30, 0", "s_cbranch_scc1 k1_loop"]
    L += ["s_cmp_lt_u32 s24, 7", "s_cbranch_scc1 k1_stffn",
          "s_sub_u32 s26, s24, 7", "s_lshl_b32 s26, s26, 10", "s_lshl_b32 s28, s25, 12", "s_add_u32 s28, s28, s26", f"s_add_u32 s28, s28, {U}", "v_lshlrev_b32 v1, 2, v0",
          "buffer_store_dword v3, v1, s[12:15], s28 offen", "s_waitcnt vmcnt(0)", "s_branch k1_kernel_end",
          "k1_stffn:", "v_max_f32 v3, 0, v3"] + rbf(3) + ["s_mul_i32 s28, s25, 11264", "s_lshl_b32 s26, s24, 10", "s_add_u32 s28, s28, s26", f"s_add_u32 s28, s28, {HC}", "v_lshlrev_b32 v1, 2, v0",
          "buffer_store_dword v3, v1, s[12:15], s28 offen", "s_waitcnt vmcnt(0)"]
    k1 = kern("k1_kernel", L)
    L = ["s_cmp_ge_u32 s2, 8", "s_cbranch_scc1 k2_kernel_end", "s_load_dwordx2 s[4:5], s[0:1], 8", "s_load_dwordx2 s[6:7], s[0:1], 112", "s_load_dwordx2 s[20:21], s[0:1], 16", "s_load_dwordx2 s[22:23], s[0:1], 56", "s_waitcnt lgkmcnt(0)"]
    L += srd(12, 6, WS) + ["s_lshl_b32 s3, s2, 6", "v_add_u32 v1, s3, v0", "v_lshlrev_b32 v2, 1, v1",
          "global_load_ushort v4, v2, s[4:5]", "global_load_ushort v5, v2, s[20:21]", "global_load_ushort v6, v2, s[22:23]", "s_waitcnt vmcnt(0)",
          "v_lshlrev_b32 v4, 16, v4", "v_lshlrev_b32 v5, 16, v5", "v_lshlrev_b32 v6, 16, v6",
          "v_mul_f32 v6, 0x3fb8aa3b, v6", "v_exp_f32 v6, v6", "s_nop 0"] + rbf(6)
    L += ["v_mul_f32 v7, v6, v4", "v_mul_f32 v8, v6, v5", "v_mul_f32 v7, 0x3fb8aa3b, v7", "v_exp_f32 v7, v7", "v_mul_f32 v8, 0x3e22f983, v8", "v_fract_f32 v8, v8",
          "v_cos_f32 v9, v8", "v_sin_f32 v10, v8", "s_nop 0", "v_mul_f32 v9, v9, v7", "v_mul_f32 v10, v10, v7",
          "v_add_f32 v11, -1.0, v9",
          "v_mul_f32 v12, v4, v4", "v_fmac_f32 v12, v5, v5", "v_rcp_f32 v12, v12", "s_nop 0",
          "v_mul_f32 v13, v11, v4", "v_fmac_f32 v13, v10, v5", "v_mul_f32 v13, v13, v12",
          "v_mul_f32 v14, v10, v4", "v_fma_f32 v14, -v11, v5, v14", "v_mul_f32 v14, v14, v12",
          "v_mov_b32 v16, 0", "v_mov_b32 v17, 0", "v_lshlrev_b32 v2, 2, v1", f"s_mov_b32 s28, {U}", f"s_mov_b32 s29, {HC+1792*4}", "s_mov_b32 s30, 2048", "k2_loop:",
          "buffer_load_dword v18, v2, s[12:15], s28 offen", "buffer_load_dword v19, v2, s[12:15], s28 offen offset:2048", "s_waitcnt vmcnt(0)",
          "v_mul_f32 v20, v13, v18", "v_fma_f32 v20, -v14, v19, v20", "v_mul_f32 v21, v13, v19", "v_fmac_f32 v21, v14, v18",
          "v_fmac_f32 v20, v9, v16", "v_fma_f32 v20, -v10, v17, v20", "v_fmac_f32 v21, v9, v17", "v_fmac_f32 v21, v10, v16",
          "v_mov_b32 v16, v20", "v_mov_b32 v17, v21", "v_mul_f32 v22, 2.0, v20", "v_mul_f32 v23, -2.0, v21"] + rbf(22) + rbf(23) + [
          "buffer_store_dword v22, v2, s[12:15], s29 offen", "buffer_store_dword v23, v2, s[12:15], s29 offen offset:2048",
          "s_add_u32 s28, s28, 4096", "s_add_u32 s29, s29, 11264", "s_sub_u32 s30, s30, 1", "s_cmp_lg_u32 s30, 0", "s_cbranch_scc1 k2_loop", "s_waitcnt vmcnt(0)"]
    k2 = kern("k2_kernel", L)
    L = ["s_cmp_ge_u32 s2, 4096", "s_cbranch_scc1 k3_kernel_end", "s_load_dwordx2 s[4:5], s[0:1], 88", "s_load_dwordx2 s[6:7], s[0:1], 112", "s_load_dwordx2 s[20:21], s[0:1], 40", "s_load_dwordx2 s[22:23], s[0:1], 48",
         "s_load_dwordx2 s[40:41], s[0:1], 0", "s_load_dwordx2 s[42:43], s[0:1], 64", "s_load_dwordx2 s[44:45], s[0:1], 96", "s_waitcnt lgkmcnt(0)"]
    L += srd(8, 4, 1792*1024) + srd(12, 6, WS) + srd(32, 20, 512*1024) + srd(36, 22, 512*1024)
    L += ["s_lshr_b32 s25, s2, 1", "s_and_b32 s24, s2, 1", "s_lshl_b32 s24, s24, 8", "v_add_u32 v1, s24, v0", "v_lshlrev_b32 v6, 1, v1", "v_lshlrev_b32 v7, 10, v1", "v_mov_b32 v2, 0", "v_mov_b32 v3, 0", "v_mov_b32 v8, 0",
          "s_mul_i32 s28, s25, 11264", f"s_add_u32 s28, s28, {HC}", "s_mov_b32 s29, 0", "s_mov_b32 s30, 1792", "k3_l1:",
          "buffer_load_ushort v4, v6, s[8:11], s29 offen", "buffer_load_dword v5, v2, s[12:15], s28 offen", "s_waitcnt vmcnt(0)",
          "v_lshlrev_b32 v4, 16, v4", "v_fmac_f32 v3, v4, v5", "s_add_u32 s29, s29, 1024", "s_add_u32 s28, s28, 4", "s_sub_u32 s30, s30, 1", "s_cmp_lg_u32 s30, 0", "s_cbranch_scc1 k3_l1",
          "s_mov_b32 s29, 0", "s_mov_b32 s30, 512", "k3_l2:",
          "buffer_load_ushort v4, v7, s[32:35], s29 offen", "buffer_load_dword v5, v2, s[12:15], s28 offen", "buffer_load_ushort v9, v7, s[36:39], s29 offen", "buffer_load_dword v10, v2, s[12:15], s28 offen offset:2048", "s_waitcnt vmcnt(0)",
          "v_lshlrev_b32 v4, 16, v4", "v_fmac_f32 v8, v4, v5", "v_lshlrev_b32 v9, 16, v9", "v_fmac_f32 v8, v9, v10", "s_add_u32 s29, s29, 2", "s_add_u32 s28, s28, 4", "s_sub_u32 s30, s30, 1", "s_cmp_lg_u32 s30, 0", "s_cbranch_scc1 k3_l2"]
    if ffn_round: L += rbf(3)
    L += ["s_lshl_b32 s28, s25, 10", "v_add_u32 v11, s28, v6", "global_load_ushort v12, v11, s[40:41]", "global_load_ushort v13, v6, s[42:43]",
          "v_lshlrev_b32 v14, 1, v11", f"s_mov_b32 s28, {XNR}", "buffer_load_dword v15, v14, s[12:15], s28 offen", "s_waitcnt vmcnt(0)",
          "v_lshlrev_b32 v12, 16, v12", "v_lshlrev_b32 v13, 16, v13", "v_mul_f32 v15, v15, v13"] + rbf(15) + ["v_add_f32 v8, v8, v15", "v_add_f32 v8, v12, v8", "v_add_f32 v8, v8, v3"]
    import struct
    def f2h(x): return hex(struct.unpack("<I", struct.pack("<f", x))[0])
    if scale is not None: L += [f"v_mul_f32 v8, {f2h(scale)}, v8"]
    if noise is not None:
        L += ["v_and_b32 v16, 1, v0", "v_lshlrev_b32 v16, 31, v16", f"v_xor_b32 v16, {f2h(noise)}, v16", "v_add_f32 v8, v8, v16"]
    L += ["global_store_dword v14, v8, s[44:45]", "s_waitcnt vmcnt(0)"]
    k3 = kern("k3_kernel", L)
    hdr = "; @launch kernel=k0_kernel grid=(2048,1,1) block=(64,1,1) lds=0\n; @launch kernel=k1_kernel grid=(22528,1,1) block=(256,1,1) lds=0\n; @launch kernel=k2_kernel grid=(8,1,1) block=(64,1,1) lds=0\n; @launch kernel=k3_kernel grid=(4096,1,1) block=(256,1,1) lds=0\n"
    return hdr + '.amdgcn_target "amdgcn-amd-amdhsa--gfx950"\n.text\n' + k0 + k1 + k2 + k3
if __name__ == "__main__":
    open("probe/n_exact.s", "w").write(gen())
    open("probe/n_alg.s", "w").write(gen(algebraic=True, ffn_round=False))
    open("probe/n_noise02.s", "w").write(gen(noise=0.02))
    open("probe/n_noise05.s", "w").write(gen(noise=0.05))
    open("probe/n_noise10.s", "w").write(gen(noise=0.10))
    open("probe/n_scale02.s", "w").write(gen(scale=1.02))
```

```python
import re

class I:
    __slots__ = ("t", "kind", "ref", "idx")
    def __init__(self, t, kind="o", ref=None):
        self.t = t; self.kind = kind; self.ref = ref; self.idx = None
    def __repr__(self): return f"I({self.t})"

def kind_of(t):
    m = t.split()[0]
    if m.startswith(("buffer_", "global_")): return "vm"
    if m.startswith("ds_"): return "ds"
    return "o"

class Seq(list):
    def e(self, *ts):
        last = None
        for t in ts:
            if isinstance(t, I): last = t
            elif isinstance(t, (list, tuple)):
                last = self.e(*t); continue
            else: last = I(t, kind_of(t))
            self.append(last)
        return last
    def wvm(self, *refs): self.append(I("", "wvm", refs))
    def wds(self, *refs): self.append(I("", "wds", refs))
    def wvm_all(self): self.append(I("s_waitcnt vmcnt(0)", "wvm0"))
    def wds_all(self): self.append(I("s_waitcnt lgkmcnt(0)", "wds0"))
    def label(self, n): self.append(I(n + ":", "label"))

def merge(main, fill, start=0, end=None):
    out = Seq()
    end = len(main) if end is None else end
    n = end - start
    pos = [start + ((k + 1) * n) // (len(fill) + 1) for k in range(len(fill))]
    k = 0
    for i, ins in enumerate(main):
        while k < len(fill) and pos[k] <= i:
            out.extend(fill[k]); k += 1
        out.append(ins)
    while k < len(fill):
        out.extend(fill[k]); k += 1
    return out

def resolve_waits(seq):
    out = []
    nvm = nds = 0; done_vm = done_ds = 0
    for ins in seq:
        if ins.kind == "vm": ins.idx = nvm; nvm += 1; out.append(ins.t)
        elif ins.kind == "ds": ins.idx = nds; nds += 1; out.append(ins.t)
        elif ins.kind == "wvm":
            assert all(r.idx is not None and r.kind == "vm" for r in ins.ref), ins.ref
            need = max(r.idx for r in ins.ref) + 1
            if need > done_vm:
                n = min(nvm - need, 63); done_vm = nvm - n
                out.append(f"s_waitcnt vmcnt({n})")
        elif ins.kind == "wds":
            assert all(r.idx is not None and r.kind == "ds" for r in ins.ref), ins.ref
            need = max(r.idx for r in ins.ref) + 1
            if need > done_ds:
                n = min(nds - need, 15); done_ds = nds - n
                out.append(f"s_waitcnt lgkmcnt({n})")
        elif ins.kind == "wvm0": done_vm = nvm; out.append(ins.t)
        elif ins.kind == "wds0": done_ds = nds; out.append(ins.t)
        else: out.append(ins.t)
    res = []
    for t in out:
        if res and t.startswith("s_waitcnt") and res[-1].startswith("s_waitcnt"):
            a = dict(re.findall(r"(\w+cnt)\((\d+)\)", res[-1])); b = dict(re.findall(r"(\w+cnt)\((\d+)\)", t))
            for k, v in b.items(): a[k] = str(min(int(v), int(a.get(k, 99))))
            res[-1] = "s_waitcnt " + " ".join(f"{k}({v})" for k, v in a.items())
        else: res.append(t)
    return res

_reg = re.compile(r"^-?\|?(?:abs\()?([vas])(?:(\d+)|\[(\d+):(\d+)\])\)?\|?$")
def regs(op):
    op = op.strip()
    if op == "vcc": return {("s", 106), ("s", 107)}
    if op == "vcc_lo": return {("s", 106)}
    if op == "vcc_hi": return {("s", 107)}
    if op == "exec": return {("s", 126), ("s", 127)}
    if op == "m0": return {("s", 124)}
    m = _reg.match(op)
    if not m: return set()
    if m.group(2) is not None: return {(m.group(1), int(m.group(2)))}
    return {(m.group(1), i) for i in range(int(m.group(3)), int(m.group(4)) + 1)}

TRANS = ("v_exp_f32", "v_log_f32", "v_rcp_f32", "v_rsq_f32", "v_sqrt_f32", "v_sin_f32", "v_cos_f32")
def parse(t):
    t = t.split(";")[0].strip()
    parts = t.split(None, 1)
    mn = parts[0]
    rest = parts[1] if len(parts) > 1 else ""
    ops = []
    depth = 0; cur = ""
    for ch in rest:
        if ch == "[": depth += 1
        if ch == "]": depth -= 1
        if ch == "," and depth == 0: ops.append(cur.strip()); cur = ""
        else: cur += ch
    if cur.strip(): ops.append(cur.strip())
    mods = ""
    if ops:
        sp = ops[-1].split(None, 1)
        ops[-1] = sp[0]; mods = sp[1] if len(sp) > 1 else ""
    R = [regs(o) for o in ops]
    d = dict(mn=mn, w=set(), r=set(), cls="s", mods=mods, srcC=set(), ab=set(), data=set())
    U = lambda xs: set().union(*xs) if xs else set()
    if mn.startswith("v_mfma"):
        d["cls"] = "mfma"; d["w"] = R[0]; d["ab"] = R[1] | R[2]; d["srcC"] = R[3]; d["r"] = d["ab"] | d["srcC"]
        d["passes"] = 8 if "32x32" in mn else (4 if "16x16" in mn else 2)
    elif mn.startswith("v_"):
        d["cls"] = "valu"
        if "permlane" in mn: d["w"] = R[0] | R[1]; d["r"] = R[0] | R[1]
        else:
            d["w"] = R[0]; d["r"] = U(R[1:])
            if mn.startswith(("v_fmac", "v_dot2c", "v_pk_fmac")) or "dpp" in mn or "row_" in mods or "quad_perm" in mods: d["r"] |= R[0]
            if mn.startswith("v_cndmask") and len(ops) == 3: d["r"] |= regs("vcc")
    elif mn.startswith("ds_"):
        d["cls"] = "ds"
        if "read" in mn or "permute" in mn or "swizzle" in mn: d["w"] = R[0]; d["r"] = U(R[1:])
        else: d["r"] = U(R)
    elif mn.startswith(("buffer_", "global_")):
        d["cls"] = "vm"
        lds = " lds" in (" " + mods) or "load_lds" in mn
        if "load" in mn and not lds: d["w"] = R[0]; d["r"] = U(R[1:])
        else:
            d["r"] = U(R)
            if lds: d["r"] |= regs("m0"); d["lds"] = True
            if "store" in mn and ("x4" in mn or "x3" in mn):
                d["data"] = R[0] if mn.startswith("buffer_") else R[1]
    else:
        if mn.startswith(("s_cmp", "s_cbranch", "s_branch", "s_waitcnt", "s_barrier", "s_nop", "s_sleep", "s_setprio", "s_endpgm")): d["r"] = U(R)
        else:
            d["w"] = R[0] if R else set(); d["r"] = U(R[1:])
            if "saveexec" in mn: d["w"] = d["w"] | regs("exec")
    return d

def need_states(p, c):
    n = 0
    pv = {x for x in p["w"] if x[0] in "va"}; ps = {x for x in p["w"] if x[0] == "s"}
    if p["cls"] == "valu":
        if c["cls"] == "mfma" and pv & c["r"]: n = max(n, 2)
        if c["cls"] == "valu":
            if p["mn"].startswith(TRANS) and pv & c["r"]: n = max(n, 1)
            if "permlane" in c["mn"] and pv & c["r"]: n = max(n, 2)
            if ("dpp" in c["mn"] or "row_" in c["mods"] or "quad_perm" in c["mods"]) and pv & c["r"]: n = max(n, 2)
            if c["mn"].startswith(("v_readlane", "v_readfirstlane")) and pv & c["r"]: n = max(n, 1)
            if ps & c["r"]: n = max(n, 4 if c["mn"].startswith(("v_readlane", "v_writelane")) else 2)
        if p["mn"].startswith("v_dot") and pv & (c["r"] | c["w"]):
            same = c["mn"] == p["mn"] and (pv & c["w"]) and c["mn"].startswith("v_dot2c")
            if not same: n = max(n, 3)
        if c["cls"] == "vm" and ps & c["r"]: n = max(n, 5)
    if p["cls"] == "mfma":
        k = {2: 0, 4: 1, 8: 2}[p["passes"]]
        if c["cls"] == "mfma":
            if pv & c["ab"]: n = max(n, (5, 8, 12)[k])
            if pv & c["srcC"]:
                if c["srcC"] == pv and c["passes"] == p["passes"]: n = max(n, (2, 0, 0)[k])
                else: n = max(n, (4, 6, 10)[k])
            elif pv & c["w"]: n = max(n, (4, 6, 10)[k])
        elif c["cls"] in ("valu", "vm", "ds"):
            if pv & (c["r"] | c["w"]): n = max(n, (5, 8, 12)[k])
            if c["cls"] == "valu" and p["srcC"] & c["w"]: n = max(n, (1, 3, 7)[k])
    if p["cls"] == "s" and ("s", 124) in p["w"] and c.get("lds"): n = max(n, 1)
    if p["cls"] == "vm" and p["data"] and (p["data"] & c["w"]): n = max(n, 2 if c["cls"] == "valu" else 1)
    return n

def pad_hazards(lines):
    out = []; hist = []
    for t in lines:
        s = t.strip()
        if not s or s.startswith((";", ".")): out.append(t); continue
        if s.endswith(":"):
            out.append(t); continue
        c = parse(s)
        dist = 0; need = 0
        for p, st in reversed(hist):
            req = need_states(p, c)
            if req > dist: need = max(need, req - dist)
            dist += st
            if dist >= 20: break
        while need > 0:
            k = min(need, 16)
            out.append(f"s_nop {k-1}"); hist.append((parse("s_nop 0"), k)); need -= k
        st = 1
        if c["mn"] == "s_nop": st = int(s.split()[1]) + 1
        hist.append((c, st)); hist = hist[-24:]
        out.append(t)
    return out

def finalize(seq):
    return pad_hazards(resolve_waits(seq))
```

```python
import sys, struct
from asmlib import *

NAME = "parallel_sum__ssm_conv_s5__dense_activation_relu__prompt"
def f2u(x): return struct.unpack("<I", struct.pack("<f", x))[0]
def fh(x): return hex(f2u(x))

WS_EPO  = 0
WS_FLAG = 16384
WS_AGG  = 65536
WS_XCH  = 1 << 20
WS_TS   = (7 << 20) + (1 << 19)
WS_H    = 8 << 20
HBLK = 88 * 2048
WS_SIZE = WS_H + 64 * HBLK
TAGK = 0x9E3779B9

sW, sWM, sWN, sC, sG, sGL, sU0, sROT, sXB, sT0, sT1 = 4, 5, 6, 7, 8, 9, 10, 11, 12, 13, 14
sT2 = 15
P_X, P_LRE, P_LIM, P_BRE, P_BIM, P_CRE, P_CIM, P_LDT = 16, 18, 20, 22, 24, 26, 28, 30
P_DSK, P_W1, P_W2, P_OUT, P_DBG, P_WS = 32, 36, 38, 40, 42, 44
R_X, R_BS, R_W1A, R_W1B, R_H, R_H2, R_W2, R_CRE, R_CIM, R_OUT, R_SY = 48, 52, 56, 60, 64, 68, 72, 76, 80, 84, 88
sKX, sKW, sLB, sONES, sTAG, sPOLL = 92, 93, 94, 95, 96, 97
sM = 46
sLE, sW2O, sCO, sHB, sFB = 98, 99, 3, 34, 35
def srd(r): return f"s[{r}:{r+3}]"

vL = 1
ACC_S, ACC_F1, ACC_F2 = 64, 96, 128
FR = 160
RA, RS, RF = 200, 204, 208
vX, vB, vW = 224, 228, 230
ST = 236
CS = 240
vW2, vC2, vTR, vCR, vTA = 244, 245, 247, 248, 250
def vr(a, n=4): return f"v[{a}:{a+n-1}]"

SLOT = 40960; WBLK = 10240
L_EARLY = 122880
L_MISC = 155648
L_R = L_MISC; L_M = L_MISC + 512; L_AGG = L_MISC + 1024

TSREG = [16, 18, 20, 22, 24, 26, 28, 30, 36, 38, 40, 42, 44]
class Cfg:
    ts = False
    dots = True
    rot_mode = 1
    stop_after = None
    xa_bits = 2
    phase2 = True
    ts_stages = ()

def mk_srd(q, r, p, size, off=0):
    if off:
        q.e(f"s_add_u32 s{r}, s{p}, {off}", f"s_addc_u32 s{r+1}, s{p+1}, 0", f"s_and_b32 s{r+1}, s{r+1}, 0xffff")
    else:
        q.e(f"s_mov_b32 s{r}, s{p}", f"s_and_b32 s{r+1}, s{p+1}, 0xffff")
    q.e(f"s_mov_b32 s{r+2}, {size}", f"s_mov_b32 s{r+3}, 0x20000")

class Gen:
    def __init__(self, cfg):
        self.c = cfg; self.nts = 0; self.w2_last = {}
    def stamp(self, q):
        if self.c.ts:
            r = TSREG[self.nts]
            q.e(f"s_memtime s[{r}:{r+1}]"); self.nts += 1

    def stage_dma(self, i):
        base = (i % 3) * SLOT
        G = []
        pre = [I(f"s_add_u32 s{sT0}, s{sROT}, {i}"), I(f"s_and_b32 s{sT0}, s{sT0}, 7"), I(f"s_lshl_b32 s{sKX}, s{sT0}, 7"), I(f"s_mul_i32 s{sKW}, s{sT0}, {64*3584}")]
        def ld(v, r, so, off): return I(f"buffer_load_dwordx4 v{v}, {srd(r)}, s{so} offen offset:{off} lds", "vm")
        def m0(o): return I(f"s_add_u32 m0, s{sLB}, {base + o}")
        G.append(pre + [m0(0), ld(vX, R_X, sKX, 0)])
        for j in range(1, 4): G.append([ld(vX + j, R_X, sKX, 1024 * j)])
        G.append([m0(4096), ld(vB, R_BS, sKX, 0)]); G.append([ld(vB + 1, R_BS, sKX, 1024)])
        G.append([m0(6144), ld(vW, R_W1A, sKW, 0)]); G.append([ld(vW + 1, R_W1A, sKW, 1024)])
        G.append([m0(8192), ld(vW, R_W1B, sKW, 0)]); G.append([ld(vW + 1, R_W1B, sKW, 1024)])
        return G, G[-1][-1]

    def frag_reads(self, n):
        i, p = divmod(n, 4); slot = i % 3
        hi = 12 if slot == 2 else 0; o = SLOT if slot == 1 else 0
        b = FR + 20 * (n & 1)
        S = I(f"ds_read_b128 {vr(b)}, v{RS+hi+p} offset:{o}", "ds")
        A0 = I(f"ds_read_b128 {vr(b+4)}, v{RA+hi+p} offset:{o}", "ds")
        A1 = I(f"ds_read_b128 {vr(b+8)}, v{RA+hi+p} offset:{o+WBLK}", "ds")
        F = [I(f"ds_read_b64_tr_b16 {vr(b+12+2*k, 2)}, v{RF+hi+p} offset:{o + (k>>1)*2048 + (k&1)*512}", "ds") for k in range(4)]
        return [S, A0, A1] + F

    def prologue(self, q):
        c = self.c
        q.e("s_cmp_ge_u32 s2, 256", "s_cbranch_scc1 L_end")
        q.e("s_load_dwordx16 s[16:31], s[0:1], 0", "s_load_dwordx2 s[32:33], s[0:1], 64", "s_load_dwordx4 s[36:39], s[0:1], 80",
            "s_load_dwordx4 s[40:43], s[0:1], 96", "s_load_dwordx2 s[44:45], s[0:1], 112")
        if c.ts: q.e("s_memtime s[100:101]")
        q.e(f"v_and_b32 v{vL}, 63, v0", "v_lshrrev_b32 v2, 6, v0", f"v_readfirstlane_b32 s{sW}, v2")
        xbb = 3 - c.xa_bits
        assert c.xa_bits == 2
        q.e(f"s_and_b32 s{sXB}, s2, 1", f"s_lshr_b32 s{sT0}, s2, 1", f"s_and_b32 s{sT0}, s{sT0}, 3",
            f"s_lshr_b32 s{sT1}, s2, 6",
            f"s_lshl_b32 s{sC}, s{sT0}, 2", f"s_add_u32 s{sC}, s{sC}, s{sT1}",
            f"s_lshr_b32 s{sGL}, s2, 3", f"s_and_b32 s{sGL}, s{sGL}, 7",
            f"s_lshl_b32 s{sG}, s{sXB}, 3", f"s_add_u32 s{sG}, s{sG}, s{sGL}")
        if c.rot_mode == 1: q.e(f"s_lshl_b32 s{sROT}, s{sT1}, 1", f"s_add_u32 s{sROT}, s{sROT}, s{sGL}")
        elif c.rot_mode == 0: q.e(f"s_mov_b32 s{sROT}, 0")
        elif c.rot_mode == 2:
            q.e(f"s_lshl_b32 s{sROT}, s{sT1}, 2", f"s_and_b32 s{sT2}, s{sGL}, 6", f"s_add_u32 s{sROT}, s{sROT}, s{sT2}")
        elif c.rot_mode == 3:
            q.e(f"s_lshl_b32 s{sROT}, s{sT1}, 1", f"s_and_b32 s{sT2}, s{sGL}, 6", f"s_add_u32 s{sROT}, s{sROT}, s{sT2}")
        q.e(f"s_lshl_b32 s{sT0}, s{sGL}, 1", f"s_add_u32 s{sT1}, s{sGL}, 6", f"s_min_u32 s{sU0}, s{sT0}, s{sT1}",
            f"s_lshr_b32 s{sWM}, s{sW}, 1", f"s_and_b32 s{sWN}, s{sW}, 1", f"s_mul_i32 s{sLB}, s{sW}, {WBLK}",
            f"s_mov_b32 s{sONES}, 0x3f803f80")
        q.e(f"v_lshrrev_b32 v2, 3, v{vL}", f"v_and_b32 v3, 7, v{vL}", f"v_lshrrev_b32 v4, 4, v{vL}")
        q.e("v_xor_b32 v5, v3, v4", "v_lshlrev_b32 v5, 4, v5", "v_xor_b32 v6, 64, v5")
        q.e(f"v_lshrrev_b32 v7, 5, v{vL}", "v_lshlrev_b32 v7, 4, v7", "v_and_b32 v8, 3, v2", "v_add_u32 v7, v7, v8",
            f"s_lshl_b32 s{sT0}, s{sC}, 7", f"s_lshl_b32 s{sT1}, s{sW}, 5", f"s_add_u32 s{sT0}, s{sT0}, s{sT1}",
            f"v_add_u32 v7, s{sT0}, v7", "v_lshlrev_b32 v7, 10, v7",
            f"v_add_u32 v{vX}, v7, v5", f"v_add_u32 v{vX+1}, v7, v6", f"v_add_u32 v{vX+1}, {3072}, v{vX+1}",
            f"v_add_u32 v{vX+2}, {6144}, v{vX}", f"v_add_u32 v{vX+3}, {6144}, v{vX+1}")
        q.e(f"s_lshl_b32 s{sT0}, s{sG}, 5", f"s_lshl_b32 s{sT1}, s{sWN}, 4", f"s_add_u32 s{sT0}, s{sT0}, s{sT1}",
            f"v_add_u32 v7, s{sT0}, v2", "v_lshlrev_b32 v7, 10, v7",
            f"v_add_u32 v{vB}, v7, v5", f"v_add_u32 v{vB+1}, v7, v6", f"v_add_u32 v{vB+1}, {7168}, v{vB+1}")
        q.e(f"s_lshl_b32 s{sT0}, s{sW}, 4", f"v_add_u32 v7, s{sT0}, v2", "v_mul_u32_u24 v7, 3584, v7",
            "v_and_b32 v8, 1, v4", "v_lshlrev_b32 v8, 2, v8", "v_xor_b32 v8, v8, v3", "v_lshlrev_b32 v8, 4, v8", "v_add_u32 v7, v7, v8",
            f"s_mul_i32 s{sT0}, s{sXB}, 14", f"s_add_u32 s{sT0}, s{sT0}, s{sU0}", f"s_lshl_b32 s{sT0}, s{sT0}, 7",
            f"v_add_u32 v{vW}, s{sT0}, v7", f"v_add_u32 v{vW+1}, {8*3584-1024}, v{vW}")
        q.wds_all()
        if c.ts: q.e("s_memrealtime s[0:1]")
        mk_srd(q, R_X, P_X, 2048*1024)
        q.e(f"s_cmp_eq_u32 s{sWM}, 0", f"s_cselect_b32 s{sT0}, s{P_BRE}, s{P_BIM}", f"s_cselect_b32 s{sT1}, s{P_BRE+1}, s{P_BIM+1}")
        mk_srd(q, R_BS, sT0, 512*1024)
        mk_srd(q, R_W1A, P_W1, 512*3584)
        mk_srd(q, R_W1B, P_W1, 512*3584 - 128, 128)
        q.e(f"s_cmp_lt_u32 s{sGL}, 6", f"s_cselect_b32 s{R_W1B+2}, s{R_W1B+2}, 0")
        last = []
        G, l = self.stage_dma(0); [q.e(*g) for g in G]; last.append(l)
        mk_srd(q, R_SY, P_WS, WS_H)
        mk_srd(q, R_H, P_WS, 64*HBLK, WS_H)
        q.e("s_getpc_b64 s[46:47]", "L_pc:", "s_sub_u32 s46, s46, L_pc-L_start", "s_subb_u32 s47, s47, 0")
        q.e(f"s_lshr_b32 s{sT0}, s2, 3", f"s_lshl_b32 s{sT0}, s{sT0}, 2", f"s_add_u32 s{sT0}, s{sT0}, s{sW}", f"s_lshl_b32 s{sT0}, s{sT0}, 8",
            f"v_lshlrev_b32 v9, 2, v{vL}", f"v_add_u32 v9, s{sT0}, v9", "v_min_u32 v9, L_end-L_start, v9")
        q.e("global_load_dword v10, v9, s[46:47]")
        q.e(f"v_and_b32 v11, 15, v{vL}", f"s_lshl_b32 s{sT0}, s{sG}, 5", f"s_lshl_b32 s{sT1}, s{sWN}, 4", f"s_add_u32 s{sT0}, s{sT0}, s{sT1}",
            f"v_add_u32 v11, s{sT0}, v11", "v_lshlrev_b32 v11, 1, v11")
        q.e(f"global_load_ushort v12, v11, s[{P_LRE}:{P_LRE+1}]", f"global_load_ushort v13, v11, s[{P_LIM}:{P_LIM+1}]")
        q.e(f"global_load_ushort v14, v11, s[{P_LDT}:{P_LDT+1}]")
        q.e("v_mov_b32 v15, 0")
        small = q.e(f"buffer_load_dword v16, v15, {srd(R_SY)}, 0 offen sc1")
        for i in (1,):
            G, l = self.stage_dma(i); [q.e(*g) for g in G]; last.append(l)
        mk_srd(q, R_H2, P_WS, 64*HBLK, WS_H)
        q.e(f"s_cmp_lt_u32 s{sGL}, 6", f"s_cselect_b32 s{R_H2+2}, s{R_H2+2}, 0")
        mk_srd(q, R_W2, P_W2, 1792*1024); mk_srd(q, R_CRE, P_CRE, 512*1024); mk_srd(q, R_CIM, P_CIM, 512*1024); mk_srd(q, R_OUT, P_OUT, 2048*2048)
        q.e(f"v_and_b32 v2, 31, v{vL}", f"v_lshrrev_b32 v3, 5, v{vL}",
            f"s_lshl_b32 s{sT0}, s{sWN}, 1", f"s_or_b32 s{sT0}, s{sT0}, s{sWM}")
        q.e("v_lshrrev_b32 v4, 1, v2", "v_and_b32 v4, 7, v4", "v_xor_b32 v4, v4, v3", f"s_lshl_b32 s{sT1}, s{sT0}, 1", f"v_xor_b32 v4, s{sT1}, v4",
            "v_lshlrev_b32 v4, 4, v4")
        q.e("v_lshlrev_b32 v5, 7, v2", f"s_mul_i32 s{sT1}, s{sWM}, {2*WBLK}", f"v_add_u32 v5, s{sT1}, v5")
        q.e("v_and_b32 v6, 15, v2", "v_lshlrev_b32 v6, 7, v6", "v_lshrrev_b32 v7, 4, v2", f"v_mul_u32_u24 v7, {2*WBLK}, v7", "v_add_u32 v6, v6, v7",
            f"s_mul_i32 s{sT1}, s{sWN}, {WBLK}", f"s_add_u32 s{sT1}, s{sT1}, 4096", f"v_add_u32 v6, s{sT1}, v6")
        for p in range(4):
            q.e(f"v_xor_b32 v7, {32*p}, v4", f"v_add_u32 v{RA+p}, v5, v7", f"v_add_u32 v{RS+p}, v6, v7")
        q.e(f"v_and_b32 v4, 15, v{vL}", "v_lshrrev_b32 v5, 2, v4", "v_lshlrev_b32 v6, 3, v3", "v_add_u32 v5, v5, v6", "v_lshlrev_b32 v5, 7, v5",
            "v_and_b32 v6, 3, v4", "v_lshlrev_b32 v6, 3, v6",
            f"v_and_b32 v7, 16, v{vL}", "v_lshlrev_b32 v7, 1, v7", "v_add_u32 v6, v6, v7",
            "v_and_b32 v7, 8, v4", "v_lshlrev_b32 v7, 3, v7", f"s_lshl_b32 s{sT1}, s{sWN}, 6", f"v_xor_b32 v7, s{sT1}, v7", "v_add_u32 v6, v6, v7",
            "v_add_u32 v5, v5, v6")
        for p in range(4):
            q.e(f"s_xor_b32 s{sT1}, s{sT0}, {p}", f"s_mul_i32 s{sT1}, s{sT1}, {WBLK}", f"s_add_u32 s{sT1}, s{sT1}, 6144", f"v_add_u32 v{RF+p}, s{sT1}, v5")
        for k in range(12): q.e(f"v_add_u32 v{RA+12+k}, {2*SLOT}, v{RA+k}")
        for k in range(8): q.e(f"v_mov_b32 v{ST+k}, 0")
        self.p2_consts(q)
        q.e(f"s_lshl_b32 s{sFB}, s{sC}, 1", f"s_add_u32 s{sFB}, s{sFB}, s{sXB}", f"s_lshl_b32 s{sFB}, s{sFB}, 8", f"s_add_u32 s{sFB}, s{sFB}, {WS_FLAG}")
        q.wvm(small)
        self.ssm_consts(q)
        return last

    def ssm_consts(self, q):
        q.e(f"v_readfirstlane_b32 s{sTAG}, v16", f"s_add_u32 s{sTAG}, s{sTAG}, {hex(TAGK)}")
        q.e("v_lshlrev_b32 v12, 16, v12", "v_lshlrev_b32 v13, 16, v13", "v_lshlrev_b32 v14, 16, v14",
            f"v_mul_f32 v14, {fh(1.4426950408889634)}, v14", "v_exp_f32 v14, v14", "v_cvt_pk_bf16_f32 v14, v14, v14", "v_lshlrev_b32 v14, 16, v14",
            "v_mul_f32 v17, v14, v12", "v_mul_f32 v18, v14, v13",
            f"v_mul_f32 v17, {fh(1.4426950408889634)}, v17", f"v_mul_f32 v18, {fh(0.15915494309189535)}, v18")
        q.e(f"v_lshrrev_b32 v2, 4, v{vL}", "v_and_b32 v3, 1, v2", "v_lshlrev_b32 v3, 1, v3", "v_lshrrev_b32 v4, 1, v2", "v_add_u32 v3, v3, v4",
            f"s_lshl_b32 s{sT0}, s{sWM}, 2", f"v_add_u32 v32, s{sT0}, v3",
            "v_lshlrev_b32 v3, 4, v32", "v_cvt_f32_u32 v3, v3", "v_sub_u32 v4, 3, v2", "v_lshlrev_b32 v4, 9, v4", "v_cvt_f32_u32 v4, v4")
        def cexp(d, n):
            q.e(f"v_mul_f32 v5, {n}, v17", f"v_mul_f32 v6, {n}, v18", "v_exp_f32 v5, v5", "v_fract_f32 v6, v6", f"v_cos_f32 v{d}, v6", f"v_sin_f32 v{d+1}, v6",
                f"v_mul_f32 v{d}, v{d}, v5", f"v_mul_f32 v{d+1}, v{d+1}, v5")
        cexp(20, "1.0"); cexp(22, fh(16.0)); cexp(24, fh(128.0)); cexp(26, "v3"); cexp(28, "v4")
        q.e("v_add_f32 v5, -1.0, v20", "v_mul_f32 v6, v12, v12", "v_fmac_f32 v6, v13, v13", "v_rcp_f32 v6, v6",
            "v_mul_f32 v30, v5, v12", "v_fmac_f32 v30, v21, v13", "v_mul_f32 v31, v21, v12", "v_fma_f32 v31, -v5, v13, v31",
            "v_add_f32 v6, v6, v6", "v_mul_f32 v30, v30, v6", "v_mul_f32 v31, v31, v6")

    def mainloop(self, q, last):
        c = self.c
        q.wvm(last[0]); q.e("s_barrier"); self.stamp(q)
        rd = self.frag_reads(0); q.e(*rd)
        G, l = self.stage_dma(2); pend = G; last.append(l)
        for n in range(32):
            i, p = divmod(n, 4)
            b = FR + 20 * (n & 1)
            nxt = None
            if p == 3 and i < 7:
                assert not pend or i >= 5
                q.wds(rd[-1]); q.wvm(last[i + 1]); q.e("s_barrier")
                if c.ts and i in c.ts_stages: self.stamp(q)
                if i + 3 < 8:
                    G, l = self.stage_dma(i + 3); pend += G; last.append(l)
                elif c.phase2:
                    if i == 5: pend += self.w2_dma(0) + self.w2_dma(1)[:4]
                    if i == 6: pend += self.w2_rest + self.w2_dma(2)
            if n < 31: nxt = self.frag_reads(n + 1)
            z = lambda a: ("0" if n == 0 else vr(a, 16))
            M = [(f"v_mfma_f32_32x32x16_bf16 {vr(ACC_S,16)}, {vr(b+4)}, {vr(b)}, {z(ACC_S)}", rd[1]),
                 (f"v_mfma_f32_32x32x16_bf16 {vr(ACC_S+16,16)}, {vr(b+8)}, {vr(b)}, {z(ACC_S+16)}", rd[2]),
                 (f"v_mfma_f32_32x32x16_bf16 {vr(ACC_F1,16)}, {vr(b+12)}, {vr(b+4)}, {z(ACC_F1)}", rd[4]),
                 (f"v_mfma_f32_32x32x16_bf16 {vr(ACC_F1+16,16)}, {vr(b+12)}, {vr(b+8)}, {z(ACC_F1+16)}", rd[4]),
                 (f"v_mfma_f32_32x32x16_bf16 {vr(ACC_F2,16)}, {vr(b+16)}, {vr(b+4)}, {z(ACC_F2)}", rd[6]),
                 (f"v_mfma_f32_32x32x16_bf16 {vr(ACC_F2+16,16)}, {vr(b+16)}, {vr(b+8)}, {z(ACC_F2+16)}", rd[6])]
            sched = [2, 1, 2, 2, 0, 0]
            slots = (0, 1, 3, 5) if n < 3 else (1, 3, 5)
            k = 0
            for j, (m, dep) in enumerate(M):
                q.wds(dep); q.e(m)
                if nxt:
                    q.e(*nxt[k:k + sched[j]]); k += sched[j]
                if pend and j in slots: q.e(*pend.pop(0))
            if c.dots:
                if p < 2:
                    for t in range(2):
                        for r in range(4):
                            q.e(f"v_dot2c_f32_bf16 v{ST+2*t}, s{sONES}, v{b+4+4*t+r}", f"v_dot2c_f32_bf16 v{ST+2*t+1}, v{b+4+4*t+r}, v{b+4+4*t+r}")
                if p in (0, 2):
                    for r in range(4):
                        for t, o in enumerate((0, 12, 16)):
                            q.e(f"v_dot2c_f32_bf16 v{CS+t}, s{sONES}, v{b+o+r}")
            rd = nxt
        assert not pend
        self.stamp(q)

    W2AREA = {0: "E", 1: 2, 2: 0, 3: 1, 4: "E", 5: 2}
    def w2_dma(self, pc):
        area = self.W2AREA[pc]
        G = []
        n = 4 if pc == 5 else 8
        ffn = pc in (0, 1, 2, 5)
        for k in range(n):
            g = []
            if k % 4 == 0:
                if area == "E": g.append(I(f"s_add_u32 m0, s{sLE}, {1024*k}"))
                else: g.append(I(f"s_add_u32 m0, s{sLB}, {area*SLOT + 1024*k}"))
            j = k % 4
            if ffn:
                row = {0: 0, 1: 64, 2: 128, 5: 192}[pc] + 8 * k
                g.append(I(f"s_add_u32 s{sKW}, s{sW2O}, {row*1024 - 1024*j}"))
                g.append(I(f"buffer_load_dwordx4 v{vW2}, {srd(R_W2)}, s{sKW} offen offset:{1024*j} lds", "vm"))
            else:
                g.append(I(f"s_add_u32 s{sKW}, s{sCO}, {8*k*1024 - 1024*j}"))
                g.append(I(f"buffer_load_dwordx4 v{vC2 + (k&1)}, {srd(R_CRE if pc == 3 else R_CIM)}, s{sKW} offen offset:{1024*j} lds", "vm"))
            G.append(g)
        self.w2_last[pc] = G[-1][-1]
        if pc == 1: self.w2_rest = G[4:]
        return G

    def w2_reads(self, pc):
        area = self.W2AREA[pc]
        L = []
        sb = sLE if area == "E" else sLB
        ao = 0 if area == "E" else area * SLOT
        L.append(I(f"s_add_u32 s{sT2}, s{sb}, {ao}"))
        if pc in (0, 1, 2, 5):
            L += [I(f"v_add_u32 v{vTA}, s{sT2}, v{vTR}"), I(f"v_xor_b32 v{vTA+1}, 64, v{vTA}")]
            j0 = {0: 0, 1: 4, 2: 8, 5: 12}[pc]
            for k in range(2 if pc == 5 else 4):
                for nu in range(2):
                    for e in range(2):
                        a = 8 * (j0 + k) + 4 * nu + 2 * e
                        L.append(I(f"ds_read_b64_tr_b16 a[{a}:{a+1}], v{vTA+nu} offset:{2048*k + 1024*e}", "ds"))
        else:
            L.append(I(f"v_add_u32 v{vTA}, s{sT2}, v{vCR}"))
            for k in range(1, 4): L.append(I(f"v_xor_b32 v{vTA+k}, {32*k}, v{vTA}"))
            j0 = 14 if pc == 3 else 18
            for k in range(4):
                for nu in range(2):
                    a = 8 * (j0 + k) + 4 * nu
                    L.append(I(f"ds_read_b128 a[{a}:{a+3}], v{vTA+k} offset:{4096*nu}", "ds"))
        return L

    def p2_consts(self, q):
        q.e(f"s_lshl_b32 s{sLE}, s{sW}, 13", f"s_add_u32 s{sLE}, s{sLE}, {L_EARLY}")
        q.e(f"s_mul_i32 s{sW2O}, s{sXB}, 896", f"s_mul_i32 s{sT1}, s{sW}, 224", f"s_add_u32 s{sW2O}, s{sW2O}, s{sT1}", f"s_lshl_b32 s{sW2O}, s{sW2O}, 10")
        q.e(f"s_lshl_b32 s{sCO}, s{sXB}, 2", f"s_add_u32 s{sCO}, s{sCO}, s{sW}", f"s_lshl_b32 s{sCO}, s{sCO}, 7",
            f"s_lshl_b32 s{sT1}, s{sGL}, 16", f"s_add_u32 s{sCO}, s{sCO}, s{sT1}")
        q.e(f"v_lshrrev_b32 v2, 3, v{vL}", f"v_and_b32 v3, 7, v{vL}", f"v_lshrrev_b32 v4, 4, v{vL}", "v_lshlrev_b32 v2, 10, v2",
            "v_xor_b32 v5, v3, v4", "v_lshlrev_b32 v5, 4, v5", f"v_add_u32 v{vC2}, v2, v5", f"v_xor_b32 v{vC2+1}, 64, v{vC2}",
            "v_and_b32 v5, 1, v4", "v_lshlrev_b32 v5, 2, v5", "v_xor_b32 v5, v5, v3", "v_lshlrev_b32 v5, 4, v5", "v_add_u32 v5, v5, v2",
            f"s_lshl_b32 s{sT1}, s{sGL}, 7", f"v_add_u32 v{vW2}, s{sT1}, v5")
        q.e(f"v_and_b32 v4, 15, v{vL}", f"v_lshrrev_b32 v3, 5, v{vL}", "v_lshrrev_b32 v5, 2, v4", "v_lshlrev_b32 v6, 2, v3", "v_add_u32 v5, v5, v6", "v_lshlrev_b32 v5, 7, v5",
            "v_and_b32 v6, 3, v4", "v_lshlrev_b32 v6, 3, v6", f"v_and_b32 v7, 16, v{vL}", "v_lshlrev_b32 v7, 1, v7", "v_add_u32 v6, v6, v7",
            "v_and_b32 v7, 8, v4", "v_lshlrev_b32 v7, 3, v7", "v_add_u32 v6, v6, v7", f"v_add_u32 v{vTR}, v5, v6")
        q.e(f"v_and_b32 v2, 31, v{vL}", "v_lshrrev_b32 v4, 1, v2", "v_and_b32 v4, 7, v4", "v_xor_b32 v4, v4, v3", "v_lshlrev_b32 v4, 4, v4",
            "v_lshlrev_b32 v2, 7, v2", f"v_add_u32 v{vCR}, v2, v4")

    def cmul_acc(self, q, d, a, b, c):
        q.e(f"v_fma_f32 v{d}, v{a}, v{b}, v{c}", f"v_fma_f32 v{d+1}, v{a}, v{b+1}, v{c+1}",
            f"v_fma_f32 v{d}, -v{a+1}, v{b+1}, v{d}", f"v_fma_f32 v{d+1}, v{a+1}, v{b}, v{d+1}")
    def cmul(self, q, d, a, b):
        q.e(f"v_mul_f32 v{d}, v{a}, v{b}", f"v_mul_f32 v{d+1}, v{a}, v{b+1}",
            f"v_fma_f32 v{d}, -v{a+1}, v{b+1}, v{d}", f"v_fma_f32 v{d+1}, v{a+1}, v{b}, v{d+1}")

    def poll(self, q, name, loads, checks, sleep=1):
        q.e(f"s_mov_b32 s{sPOLL}, 0x40000")
        q.label(f"L_{name}")
        for t in loads: q.e(t)
        q.wvm_all()
        for k, (r, ex) in enumerate(checks):
            if k == 0: q.e(f"v_cmp_ne_u32 s[{sM}:{sM+1}], {ex}, v{r}")
            else: q.e(f"v_cmp_ne_u32 vcc, {ex}, v{r}", f"s_or_b64 s[{sM}:{sM+1}], s[{sM}:{sM+1}], vcc")
        q.e(f"s_cmp_eq_u64 s[{sM}:{sM+1}], 0", f"s_cbranch_scc1 L_{name}_ok",
            f"s_sleep {sleep}", f"s_sub_u32 s{sPOLL}, s{sPOLL}, 1", f"s_cbranch_scc0 L_{name}")
        q.label(f"L_{name}_ok")

    def epilogue1(self, q):
        c = self.c
        HS = "sc1"
        RE, IM = ACC_S, ACC_S + 16
        q.e(f"v_lshlrev_b32 v33, 4, v{vL}", f"s_add_u32 s{sT0}, s{sLB}, {2*SLOT + 8192}", f"v_add_u32 v34, s{sT0}, v33")
        q.e(f"ds_write_b128 v34, {vr(ST)}", f"ds_write_b128 v34, {vr(CS)} offset:1024")
        q.e(f"s_xor_b32 s{sT0}, s{sW}, 1", f"s_mul_i32 s{sT0}, s{sT0}, {WBLK}", f"s_add_u32 s{sT0}, s{sT0}, {2*SLOT + 8192}", f"v_add_u32 v35, s{sT0}, v33",
            f"s_xor_b32 s{sT0}, s{sW}, 2", f"s_mul_i32 s{sT0}, s{sT0}, {WBLK}", f"s_add_u32 s{sT0}, s{sT0}, {2*SLOT + 8192 + 1024}", f"v_add_u32 v36, s{sT0}, v33")
        q.wds_all(); q.e("s_barrier")
        r1 = q.e(f"ds_read_b128 {vr(160)}, v35"); r2 = q.e(f"ds_read_b128 {vr(164)}, v36")
        if c.phase2:
            for g in self.w2_dma(3): q.e(*g)
        q.e(f"v_and_b32 v38, 4, v{vL}", "v_lshlrev_b32 v38, 2, v38", f"v_and_b32 v39, 24, v{vL}", "v_lshrrev_b32 v39, 1, v39", "v_add_u32 v38, v38, v39",
            f"v_and_b32 v39, 35, v{vL}", "v_add_u32 v37, v38, v39",
            f"s_lshl_b32 s{sT0}, s{sWM}, 8", f"s_add_u32 s{sT0}, s{sT0}, {L_R}", "v_lshlrev_b32 v38, 2, v37", f"v_add_u32 v38, s{sT0}, v38")
        q.wds(r1)
        for k in range(4): q.e(f"v_add_f32 v{ST+k}, v{ST+k}, v{160+k}")
        q.e(f"v_permlane32_swap_b32 v{ST}, v{ST+2}", f"v_permlane32_swap_b32 v{ST+1}, v{ST+3}",
            f"v_add_f32 v40, v{ST}, v{ST+2}", f"v_add_f32 v41, v{ST+1}, v{ST+3}",
            f"v_mul_f32 v40, {fh(1/512)}, v40", f"v_mul_f32 v41, {fh(1/512)}, v41", "v_fma_f32 v41, -v40, v40, v41", "v_max_f32 v41, 0, v41",
            "v_cvt_pk_bf16_f32 v41, v41, v41", "v_lshlrev_b32 v41, 16, v41", f"v_add_f32 v41, {fh(1e-5)}, v41",
            "v_cvt_pk_bf16_f32 v41, v41, v41", "v_lshlrev_b32 v41, 16, v41", "v_sqrt_f32 v41, v41",
            "v_cvt_pk_bf16_f32 v44, -v40, -v40",
            "v_cvt_pk_bf16_f32 v41, v41, v41", "v_lshlrev_b32 v41, 16, v41", "v_rcp_f32 v42, v41",
            "v_and_b32 v40, 0xffff0000, v44",
            "v_mov_b32 v46, v44", "v_mov_b32 v43, v42")
        q.e("ds_write2_b32 v38, v42, v40 offset0:0 offset1:128")
        q.e("v_permlane32_swap_b32 v44, v46", "v_permlane32_swap_b32 v42, v43", "v_mov_b32 v45, v44", "v_mov_b32 v47, v46")
        q.e("v_lshlrev_b32 v39, 6, v32", f"v_add_u32 v39, {L_R}, v39")
        rv = [q.e(f"ds_read_b128 {vr(168+4*k)}, v39 offset:{16*k}") for k in range(4)]
        q.wds(r2)
        q.e(f"s_mov_b32 s{sT0}, 0x07060302")
        for t in range(3):
            d = 48 + 2 * t
            q.e(f"v_add_f32 v{CS+t}, v{CS+t}, v{164+t}", f"v_and_b32 v54, 0xffff0000, v{CS+t}", f"v_sub_f32 v54, v{CS+t}, v54",
                f"v_perm_b32 v{d}, v54, v{CS+t}, s{sT0}", "v_and_b32 v55, 0xffff0000, v54", "v_sub_f32 v55, v54, v55", f"v_cvt_pk_bf16_f32 v{d+1}, v55, 0")
        MF = "v_mfma_f32_32x32x8_bf16"
        for t in range(2): q.e(f"{MF} {vr(ACC_S+16*t,16)}, {vr(44+2*t,2)}, {vr(48,2)}, {vr(ACC_S+16*t,16)}")
        for u, a in ((1, ACC_F1), (2, ACC_F2)):
            for t in range(2): q.e(f"{MF} {vr(a+16*t,16)}, {vr(48+2*u,2)}, {vr(44+2*t,2)}, {vr(a+16*t,16)}")
        for i in range(16): q.e(f"v_permlane16_swap_b32 v{RE+i}, v{IM+i}")
        q.wds(rv[-1])
        for j in range(8):
            q.e(f"v_pk_mul_f32 {vr(RE+2*j,2)}, {vr(RE+2*j,2)}, {vr(168+2*j,2)}", f"v_pk_mul_f32 {vr(IM+2*j,2)}, {vr(IM+2*j,2)}, {vr(168+2*j,2)}")
        q.e(f"v_mov_b32 v56, v{RE}", f"v_mov_b32 v57, v{IM}")
        cur = 56
        for i in range(1, 16):
            d = 58 if cur == 56 else 56
            q.e(f"v_fma_f32 v{d}, v20, v{cur}, v{RE+i}", f"v_fma_f32 v{d+1}, v20, v{cur+1}, v{IM+i}",
                f"v_fma_f32 v{d}, -v21, v{cur+1}, v{d}", f"v_fma_f32 v{d+1}, v21, v{cur}, v{d+1}")
            cur = d
        q.e(f"v_and_b32 v60, 15, v{vL}", f"s_lshl_b32 s{sT0}, s{sWN}, 4", f"v_add_u32 v60, s{sT0}, v60",
            "v_lshlrev_b32 v61, 6, v60", f"v_add_u32 v61, {L_AGG}, v61", "v_lshl_add_u32 v62, v32, 3, v61")
        q.e(f"ds_write_b64 v62, {vr(cur,2)}")
        q.wds_all(); q.e("s_barrier")
        ag = [q.e(f"ds_read_b128 {vr(168+4*k)}, v61 offset:{16*k}") for k in range(4)]
        q.e("v_mov_b32 v184, 0", "v_mov_b32 v185, 0")
        q.e("v_lshlrev_b32 v60, 4, v60", "v_cmp_eq_u32 vcc, 0, v32", "v_mov_b32 v63, 0x40000000", "v_cndmask_b32 v63, v63, v60, vcc",
            f"s_lshl_b32 s{sT0}, s{sG}, 4", f"s_add_u32 s{sT0}, s{sT0}, s{sC}", f"s_lshl_b32 s{sT0}, s{sT0}, 9", f"s_add_u32 s{sT0}, s{sT0}, {WS_AGG}",
            f"v_mov_b32 v190, s{sTAG}", f"v_mov_b32 v191, s{sTAG}")
        P = 168
        for j in range(1, 8):
            q.wds(ag[j // 2])
            q.e(f"v_cmp_eq_u32 vcc, {j}, v32", f"v_cndmask_b32 v184, v184, v{P}, vcc", f"v_cndmask_b32 v185, v185, v{P+1}, vcc")
            d = 188 if j == 7 else (186 if P != 186 else 56)
            self.cmul_acc(q, d, 22, P, 168 + 2 * j); P = d
        q.e(f"buffer_store_dwordx4 {vr(188)}, v63, {srd(R_SY)}, s{sT0} offen sc1")
        self.stamp(q)
        q.e(f"s_lshl_b32 s{sT0}, s{sC}, 1", f"s_add_u32 s{sT0}, s{sT0}, s{sXB}", f"s_lshl_b32 s{sT0}, s{sT0}, 1", f"s_add_u32 s{sT0}, s{sT0}, s{sWM}",
            f"s_mul_i32 s{sHB}, s{sT0}, {HBLK}",
            f"s_lshl_b32 s{sT0}, s{sU0}, 13", f"s_lshl_b32 s{sT1}, s{sWN}, 12", f"s_add_u32 s{sT0}, s{sT0}, s{sT1}", f"s_add_u32 s{sT0}, s{sT0}, s{sHB}",
            f"s_add_u32 s{sT1}, s{sT0}, 8192", "v_lshlrev_b32 v37, 4, v37")
        k = 0
        for u, a, rs, so in ((0, ACC_F1, R_H, sT0), (1, ACC_F2, R_H2, sT1)):
            for t in range(2):
                pk = 192 + 8 * (k & 1); k += 1
                for j in range(8):
                    r = a + 16 * t + 2 * j
                    q.e(f"v_pk_mul_f32 {vr(r,2)}, {vr(r,2)}, {vr(42,2)} op_sel:[0,{t}] op_sel_hi:[1,{t}]")
                for j in range(8):
                    r = a + 16 * t + 2 * j
                    q.e(f"v_cvt_pk_bf16_f32 v{pk+j}, v{r}, v{r+1}")
                for j in range(8): q.e(f"v_pk_max_i16 v{pk+j}, v{pk+j}, 0")
                for al in range(2):
                    st = q.e(f"buffer_store_dwordx4 {vr(pk+4*al)}, v37, {srd(rs)}, s{so} offen offset:{2048*al + 1024*t} {HS}")
        ffn_last = st
        for j in range(8):
            a, b = RE + 2 * j, IM + 2 * j
            q.e(f"v_pk_mul_f32 {vr(56,2)}, {vr(b,2)}, {vr(30,2)} op_sel:[0,1] op_sel_hi:[1,1]",
                f"v_pk_mul_f32 {vr(b,2)}, {vr(b,2)}, {vr(30,2)} op_sel:[0,0] op_sel_hi:[1,0]",
                f"v_pk_fma_f32 {vr(b,2)}, {vr(a,2)}, {vr(30,2)}, {vr(b,2)} op_sel:[0,1,0] op_sel_hi:[1,1,1]",
                f"v_pk_fma_f32 {vr(a,2)}, {vr(a,2)}, {vr(30,2)}, {vr(56,2)} op_sel:[0,0,0] op_sel_hi:[1,0,1] neg_lo:[0,0,1] neg_hi:[0,0,1]")
        if c.phase2:
            q.wvm(self.w2_last[0]); rr = self.w2_reads(0); q.e(*rr)
            q.wvm(self.w2_last[1]); rr = self.w2_reads(1); q.e(*rr)
            q.wvm(self.w2_last[2]); rr = self.w2_reads(2); q.e(*rr)
            q.wvm(self.w2_last[3]); rr = self.w2_reads(3); q.e(*rr)
            q.wds_all()
            for g in self.w2_dma(4) + self.w2_dma(5): q.e(*g)
            q.wvm(ffn_last)
            self.flag_store(q, 0)
        self.stamp(q)
        q.e(f"v_lshrrev_b32 v56, 4, v{vL}", "v_lshlrev_b32 v56, 2, v56", f"s_sub_u32 s{sT0}, s{sC}, 16", f"v_add_u32 v56, s{sT0}, v56",
            "v_mov_b32 v58, 0x40000000", f"v_mov_b32 v59, s{sTAG}")
        for t in range(4):
            q.e(f"v_add_u32 v57, {t}, v56", "v_cmp_le_i32 vcc, 0, v57", "v_lshl_add_u32 v57, v57, 9, v60",
                f"v_cndmask_b32 v{192+t}, v58, v57, vcc", f"v_cndmask_b32 v{196+t}, 0, v59, vcc")
        q.e(f"s_lshl_b32 s{sT0}, s{sG}, 13", f"s_add_u32 s{sT0}, s{sT0}, {WS_AGG}")
        self.poll(q, "lb", [f"buffer_load_dwordx4 {vr(168+4*t)}, v{192+t}, {srd(R_SY)}, s{sT0} offen sc1" for t in range(4)],
                  [(170 + 4 * t, f"v{196+t}") for t in range(4)])
        self.stamp(q)
        self.cmul_acc(q, 56, 24, 168, 172); self.cmul_acc(q, 58, 24, 56, 176); self.cmul_acc(q, 56, 24, 58, 180)
        self.cmul(q, 58, 28, 56)
        for sw in ("16", "32"):
            q.e("v_mov_b32 v56, v58", "v_mov_b32 v57, v59", f"v_permlane{sw}_swap_b32 v56, v58", f"v_permlane{sw}_swap_b32 v57, v59",
                "v_add_f32 v58, v56, v58", "v_add_f32 v59, v57, v59")
        self.cmul_acc(q, 56, 26, 58, 184)
        self.cmul(q, 58, 30, 56)
        pr, pi_ = 58, 59
        for i in range(16):
            q.e(f"v_fma_f32 v{RE+i}, v20, v{pr}, v{RE+i}", f"v_fma_f32 v{IM+i}, v20, v{pi_}, v{IM+i}",
                f"v_fma_f32 v{RE+i}, -v21, v{pi_}, v{RE+i}", f"v_fma_f32 v{IM+i}, v21, v{pr}, v{IM+i}")
            pr, pi_ = RE + i, IM + i
        for j in range(8):
            q.e(f"v_cvt_pk_bf16_f32 v{168+j}, v{RE+2*j}, v{RE+2*j+1}", f"v_cvt_pk_bf16_f32 v{176+j}, -v{IM+2*j}, -v{IM+2*j+1}")
        q.e(f"v_and_b32 v56, 15, v{vL}", "v_and_b32 v57, 2, v56", "v_lshlrev_b32 v57, 1, v57", "v_and_b32 v58, 4, v56", "v_lshrrev_b32 v58, 1, v58",
            "v_and_b32 v59, 1, v56", "v_or3_b32 v57, v57, v58, v59", "v_and_b32 v58, 3, v32", "v_lshlrev_b32 v58, 1, v58", "v_xor_b32 v57, v57, v58",
            "v_lshlrev_b32 v57, 4, v57", "v_lshl_add_u32 v57, v56, 7, v57", f"s_add_u32 s{sT0}, s{sLB}, 8192", f"v_add_u32 v57, s{sT0}, v57", "v_xor_b32 v58, 16, v57")
        q.e(f"ds_write_b128 v57, {vr(168)}", f"ds_write_b128 v58, {vr(172)}", f"ds_write_b128 v57, {vr(176)} offset:{SLOT}", f"ds_write_b128 v58, {vr(180)} offset:{SLOT}")
        q.e("v_lshrrev_b32 v59, 2, v56", f"v_lshrrev_b32 v61, 5, v{vL}", "v_lshl_add_u32 v61, v61, 3, v59", "v_lshlrev_b32 v61, 7, v61",
            "v_and_b32 v62, 2, v59", "v_lshlrev_b32 v62, 1, v62", "v_and_b32 v59, 1, v59", "v_or_b32 v62, v62, v59", "v_lshlrev_b32 v62, 4, v62",
            "v_and_b32 v59, 3, v56", "v_lshlrev_b32 v59, 3, v59", f"v_and_b32 v63, 16, v{vL}", "v_lshlrev_b32 v63, 1, v63", "v_add_u32 v59, v59, v63",
            "v_xor_b32 v59, v59, v62", "v_add_u32 v61, v61, v59", f"v_add_u32 v184, s{sT0}, v61",
            f"v_xor_b32 v185, {512|32}, v184", "v_xor_b32 v186, 64, v184", "v_xor_b32 v187, 64, v185")
        q.e(f"s_lshr_b32 s{sT0}, s{sGL}, 1", f"s_lshl_b32 s{sT0}, s{sT0}, 3", f"s_and_b32 s{sT1}, s{sGL}, 1", f"s_lshl_b32 s{sT1}, s{sT1}, 1", f"s_add_u32 s{sT0}, s{sT0}, s{sT1}",
            f"s_add_u32 s{sT0}, s{sT0}, s{sWN}", f"s_add_u32 s{sT0}, s{sT0}, 56", f"s_lshl_b32 s{sT0}, s{sT0}, 11", f"s_add_u32 s{sT0}, s{sT0}, s{sHB}",
            f"s_add_u32 s{sT1}, s{sT0}, 8192")
        trs = {}
        for part in range(2):
            for mu in range(2):
                for e in range(2):
                    d = 192 + 8 * part + 4 * mu + 2 * e
                    trs[part, mu] = q.e(f"ds_read_b64_tr_b16 {vr(d,2)}, v{184 + 2*mu + e} offset:{SLOT*part}")
        for part in range(2):
            for mu in range(2):
                q.wds(trs[part, mu])
                st = q.e(f"buffer_store_dwordx4 {vr(192+8*part+4*mu)}, v33, {srd(R_H)}, s{(sT0, sT1)[part]} offen offset:{1024*mu} {HS}")
        self.ssm_last = st
        self.stamp(q)

    def flag_store(self, q, kind):
        q.e(f"s_lshl_b32 s{sT2}, s{sGL}, 2", f"s_add_u32 s{sT2}, s{sT2}, s{sW}", f"s_lshl_b32 s{sT2}, s{sT2}, 2", f"s_add_u32 s{sT2}, s{sT2}, s{sFB}",
            f"v_mov_b32 v{vTA}, s{sTAG}", f"v_mov_b32 v{vTA+1}, 0", "s_mov_b64 exec, 1")
        q.e(f"buffer_store_dword v{vTA}, v{vTA+1}, {srd(R_SY)}, s{sT2} offen offset:{128*kind} sc1")
        q.e("s_mov_b64 exec, -1")

    def phase2(self, q):
        c = self.c
        BASE = 2
        q.e(f"v_lshrrev_b32 v20, 4, v{vL}", f"v_and_b32 v21, 15, v{vL}",
            f"s_lshl_b32 s{sT0}, s{sXB}, 6", f"s_lshl_b32 s{sT1}, s{sW}, 4", f"s_add_u32 s{sT0}, s{sT0}, s{sT1}", f"v_add_u32 v22, s{sT0}, v20",
            f"v_lshlrev_b32 v23, 2, v22", f"v_add_u32 v23, {L_R}, v23",
            f"s_lshl_b32 s{sT0}, s{sC}, 7", f"v_add_u32 v22, s{sT0}, v22",
            f"s_lshl_b32 s{sT0}, s{sGL}, 7", "v_lshlrev_b32 v24, 3, v21", f"v_add_u32 v24, s{sT0}, v24",
            "v_lshl_add_u32 v25, v22, 10, v24", "v_lshlrev_b32 v19, 1, v25")
        xl = []
        for ii in range(4):
            q.e(f"s_mov_b32 s{sT0}, {4096*ii}")
            xl.append(q.e(f"buffer_load_dwordx2 {vr(34+2*ii,2)}, v25, {srd(R_X)}, s{sT0} offen"))
        dl = q.e(f"global_load_dwordx2 {vr(42,2)}, v24, s[{P_DSK}:{P_DSK+1}]")
        mr = [q.e(f"ds_read2_b32 {vr(44+2*ii,2)}, v23 offset0:{4*ii} offset1:{128+4*ii}") for ii in range(4)]
        q.wvm(self.w2_last[4]); q.e(*self.w2_reads(4))
        q.wvm(self.w2_last[5]); q.e(*self.w2_reads(5))
        q.wvm(self.ssm_last)
        self.flag_store(q, 1)
        q.wvm(dl); q.wds(mr[-1])
        q.e("v_lshlrev_b32 v52, 16, v42", "v_and_b32 v53, 0xffff0000, v42", "v_lshlrev_b32 v54, 16, v43", "v_and_b32 v55, 0xffff0000, v43")
        for ii in range(4):
            b = BASE + 4 * ii; xr = 34 + 2 * ii; r, nm = 44 + 2 * ii, 45 + 2 * ii
            q.e(f"v_lshlrev_b32 v{b}, 16, v{xr}", f"v_and_b32 v{b+1}, 0xffff0000, v{xr}", f"v_lshlrev_b32 v{b+2}, 16, v{xr+1}", f"v_and_b32 v{b+3}, 0xffff0000, v{xr+1}")
            for e in range(4): q.e(f"v_add_f32 v{56+e}, v{b+e}, v{nm}")
            def rnd():
                q.e("v_cvt_pk_bf16_f32 v60, v56, v57", "v_cvt_pk_bf16_f32 v61, v58, v59",
                    "v_lshlrev_b32 v56, 16, v60", "v_and_b32 v57, 0xffff0000, v60", "v_lshlrev_b32 v58, 16, v61", "v_and_b32 v59, 0xffff0000, v61")
            rnd()
            for e in range(4): q.e(f"v_mul_f32 v{56+e}, v{56+e}, v{r}")
            rnd()
            for e in range(4): q.e(f"v_mul_f32 v{56+e}, v{56+e}, v{52+e}")
            rnd()
            for e in range(4): q.e(f"v_add_f32 v{b+e}, v{b+e}, v{56+e}")
        q.e(f"v_and_b32 v56, 31, v{vL}", f"v_lshrrev_b32 v57, 5, v{vL}", "v_and_b32 v58, 7, v56", "v_xor_b32 v58, v58, v57", "v_lshlrev_b32 v58, 4, v58",
            "v_lshl_add_u32 v58, v56, 8, v58", f"s_lshl_b32 s{sT0}, s{sW}, 14", f"v_add_u32 v26, s{sT0}, v58")
        for g4 in range(1, 4): q.e(f"v_xor_b32 v{26+g4}, {32*g4}, v26")
        q.e("v_xor_b32 v58, v21, v20", "v_lshlrev_b32 v58, 4, v58", "v_lshl_add_u32 v58, v20, 8, v58", f"s_lshl_b32 s{sT0}, s{sW}, 12", f"v_add_u32 v30, s{sT0}, v58",
            f"v_xor_b32 v31, {1024|64}, v30")
        q.e(f"s_lshl_b32 s{sT0}, s{sC}, 1", f"s_add_u32 s{sT0}, s{sT0}, s{sXB}", f"s_lshl_b32 s{sT0}, s{sT0}, 1", f"s_add_u32 s{sT0}, s{sT0}, s{sXB}",
            f"s_xor_b32 s{sT1}, s{sT0}, 1",
            f"s_mul_i32 s{sKX}, s{sT1}, {HBLK}", f"s_mul_i32 s{sHB}, s{sT0}, {HBLK}")
        q.e(f"s_mul_i32 s{sW2O}, s{sW}, {14*2048}", f"s_lshl_b32 s{sCO}, s{sW}, 14", f"s_add_u32 s{sCO}, s{sCO}, {56*2048}")
        q.e(f"v_lshlrev_b32 v32, 2, v{vL}", "v_and_b32 v32, 127, v32")
        q.wds_all(); q.e("s_barrier")
        self.stamp(q)
        self.poll(q, "ff", [f"buffer_load_dword v56, v32, {srd(R_SY)}, s{sFB} offen sc1"], [(56, f"s{sTAG}")])
        self.stamp(q)
        NR = 10
        steps = [(ps, j) for ps in range(2) for j in range(22)]
        lds_ = {}
        def issue(n):
            ps, j = steps[n]
            a = 176 + 8 * (n % NR)
            blk = (sKX, sHB)[ps]
            if j % 2 == 0:
                if j < 14: q.e(f"s_add_u32 s{sKW}, s{blk}, s{sW2O}", f"s_add_u32 s{sKW}, s{sKW}, {2048*j}")
                else: q.e(f"s_add_u32 s{sKW}, s{blk}, s{sCO}", f"s_add_u32 s{sKW}, s{sKW}, {2048*(j-14)}")
            o = 2048 * (j % 2)
            q.e(f"buffer_load_dwordx4 a[{a}:{a+3}], v33, {srd(R_H)}, s{sKW} offen offset:{o} sc1")
            lds_[n] = q.e(f"buffer_load_dwordx4 a[{a+4}:{a+7}], v33, {srd(R_H)}, s{sKW} offen offset:{o+1024} sc1")
        def red_write(ps):
            acc = 64 + 64 * ps
            for nu in range(2):
                for mu in range(2):
                    for g4 in range(4):
                        q.e(f"ds_write_b128 v{26+g4}, {vr(acc + 32*nu + 16*mu + 4*g4)} offset:{128*nu + 8192*mu}")
        def red_read(dst):
            R = []
            for ii in range(4):
                for src in range(4):
                    R.append(q.e(f"ds_read_b128 {vr(dst + 16*ii + 4*src)}, v{30 + (ii&1)} offset:{2048*(ii>>1) + 16384*src}"))
            return R
        nis = 0
        def fill(upto):
            nonlocal nis
            while nis < min(upto, 44):
                if nis == 14:
                    self.poll(q, "fs", [f"buffer_load_dword v56, v32, {srd(R_SY)}, s{sFB} offen offset:128 sc1"], [(56, f"s{sTAG}")])
                    self.stamp(q)
                issue(nis); nis += 1
        fill(NR)
        XV = 192
        for n, (ps, j) in enumerate(steps):
            acc = 64 + 64 * ps; a = 176 + 8 * (n % NR)
            q.wvm(lds_[n])
            for nu in range(2):
                for mu in range(2):
                    d = acc + 32 * nu + 16 * mu
                    q.e(f"v_mfma_f32_32x32x16_bf16 {vr(d,16)}, a[{8*j+4*nu}:{8*j+4*nu+3}], a[{a+4*mu}:{a+4*mu+3}], {'0' if j == 0 else vr(d,16)}")
            fill(n + NR + 1)
            if n == 21:
                self.stamp(q)
                red_write(0)
                q.wds_all(); q.e("s_barrier")
                R = red_read(64)
                for g4 in range(4): q.e(f"v_add_u32 v{26+g4}, 0x10000, v{26+g4}")
                for k in range(6): q.e(f"v_mov_b32 v{XV+4*k+3}, s{sTAG}")
                for ii in range(4):
                    q.wds(R[4 * ii + 3])
                    for e in range(4):
                        idx = 4 * ii + e; d = XV + (idx // 3) * 4 + idx % 3; s0 = 64 + 16 * ii + e
                        q.e(f"v_add_f32 v{s0}, v{s0}, v{s0+4}", f"v_add_f32 v{d}, v{s0+8}, v{s0+12}", f"v_add_f32 v{d}, v{d}, v{s0}")
                q.e("v_add_u32 v30, 0x10000, v30", "v_add_u32 v31, 0x10000, v31")
                q.e(f"s_lshl_b32 s{sT0}, s{sC}, 4", f"s_add_u32 s{sT0}, s{sT0}, s{sG}", f"s_xor_b32 s{sT1}, s{sT0}, 8",
                    f"s_lshl_b32 s{sT0}, s{sT0}, 2", f"s_add_u32 s{sT0}, s{sT0}, s{sW}", f"s_mul_i32 s{sT0}, s{sT0}, 6144", f"s_add_u32 s{sT0}, s{sT0}, {WS_XCH}",
                    f"s_lshl_b32 s{sT1}, s{sT1}, 2", f"s_add_u32 s{sT1}, s{sT1}, s{sW}", f"s_mul_i32 s{sT1}, s{sT1}, 6144", f"s_add_u32 s{sT1}, s{sT1}, {WS_XCH}",
                    f"s_add_u32 s{sT2}, s{sT0}, 4096")
                for k in range(6):
                    q.e(f"buffer_store_dwordx4 {vr(XV+4*k)}, v33, {srd(R_SY)}, s{sT0 if k < 4 else sT2} offen offset:{1024*(k%4)} sc1")
        self.stamp(q)
        red_write(1)
        q.e(f"s_add_u32 s{sT2}, s{sT1}, 4096")
        q.wds_all(); q.e("s_barrier")
        R = red_read(64)
        self.poll(q, "xc", [f"buffer_load_dwordx4 {vr(XV+4*k)}, v33, {srd(R_SY)}, s{sT1 if k < 4 else sT2} offen offset:{1024*(k%4)} sc1" for k in range(6)],
                  [(XV + 4 * k + 3, f"s{sTAG}") for k in range(6)])
        self.stamp(q)
        for ii in range(4):
            q.wds(R[4 * ii + 3])
            for e in range(4):
                idx = 4 * ii + e; xv = XV + (idx // 3) * 4 + idx % 3; s0 = 64 + 16 * ii + e
                q.e(f"v_add_f32 v{s0}, v{s0}, v{s0+4}", f"v_add_f32 v{s0+8}, v{s0+8}, v{s0+12}", f"v_add_f32 v{xv}, v{xv}, v{BASE+idx}",
                    f"v_add_f32 v{s0}, v{s0}, v{s0+8}", f"v_add_f32 v{s0}, v{s0}, v{xv}")
            q.e(f"s_mov_b32 s{sT0}, {8192*ii}")
            q.e(f"buffer_store_dwordx4 {vr(64+16*ii)}, v19, {srd(R_OUT)}, s{sT0} offen")
        q.e(f"s_lshl_b32 s{sT0}, s{sG}, 2", f"s_or_b32 s{sT0}, s{sT0}, s{sW}", f"s_lshl_b32 s{sT0}, s{sT0}, 4", f"s_or_b32 s{sT0}, s{sT0}, s{sC}",
            f"s_cmp_eq_u32 s{sT0}, 15", "s_cbranch_scc0 L_nobump",
            f"v_mov_b32 v56, s{sTAG}", "v_mov_b32 v57, 0", "s_mov_b64 exec, 1")
        q.e(f"buffer_store_dword v56, v57, {srd(R_SY)}, 0 offen sc1")
        q.e("s_mov_b64 exec, -1")
        q.label("L_nobump")

    def write_ts(self, q):
        if not self.c.ts: return
        q.wds_all(); q.wvm_all()
        q.e("s_memtime s[46:47]"); q.wds_all()
        q.e(f"s_lshl_b32 s{sT0}, s2, 2", f"s_add_u32 s{sT0}, s{sT0}, s{sW}", f"s_lshl_b32 s{sT0}, s{sT0}, 6", f"s_add_u32 s{sT0}, s{sT0}, {WS_TS}", "v_mov_b32 v2, 0")
        for k in range(self.nts + 2):
            if k == 0: q.e("v_mov_b32 v3, s0")
            elif k == self.nts + 1: q.e("s_sub_u32 s46, s46, s100", "v_mov_b32 v3, s46")
            else:
                r = TSREG[k - 1]; q.e(f"s_sub_u32 s{r}, s{r}, s100", f"v_mov_b32 v3, s{r}")
            q.e(f"buffer_store_dword v3, v2, {srd(R_SY)}, s{sT0} offen offset:{4*k}")
        q.wvm_all()

    def build(self):
        q = Seq()
        q.label("L_start")
        last = self.prologue(q)
        self.mainloop(q, last)
        self.epilogue1(q)
        if self.c.phase2: self.phase2(q)
        self.write_ts(q)
        q.label("L_end")
        q.e("s_endpgm")
        return finalize(q)

HDR = """; @launch grid=(256,1,1) block=(256,1,1) lds=163840
.amdgcn_target "amdgcn-amd-amdhsa--gfx950"
.text
.globl {n}_kernel
.p2align 8
.type {n}_kernel,@function
{n}_kernel:
"""
TAIL = """
.section .rodata,"a"
.p2align 6
.amdhsa_kernel {n}_kernel
  .amdhsa_next_free_vgpr 512
  .amdhsa_next_free_sgpr 102
  .amdhsa_accum_offset 256
  .amdhsa_group_segment_fixed_size 0
  .amdhsa_kernarg_size 120
  .amdhsa_user_sgpr_count 2
  .amdhsa_user_sgpr_kernarg_segment_ptr 1
  .amdhsa_system_sgpr_workgroup_id_x 1
.end_amdhsa_kernel
"""
def generate(cfg):
    g = Gen(cfg)
    body = g.build()
    return HDR.format(n=NAME) + "\n".join(("" if l.endswith(":") else "    ") + l for l in body) + TAIL.format(n=NAME), g

if __name__ == "__main__":
    cfg = Cfg()
    for a in sys.argv[2:]:
        k, v = a.split("="); setattr(cfg, k, eval(v))
    txt, g = generate(cfg)
    open(sys.argv[1], "w").write(txt)
```

```python
import sys, struct
from asmlib import *

NAME = "parallel_sum__ssm_conv_s5__dense_activation_relu__prompt"
def f2u(x): return struct.unpack("<I", struct.pack("<f", x))[0]
def fh(x): return hex(f2u(x))

WS_EPO  = 0
WS_FLAG = 16384
WS_STAT = 32768
WS_AGG  = 65536
WS_CS   = 262144
WS_XCH  = 1 << 20
WS_TS   = (7 << 20) + (1 << 19)
WS_H    = 8 << 20
HBLK = 88 * 2048
TAGK = 0x9E3779B9
OOB = 0x40000000

sCO, sW, sWM, sWN, sC, sG, sGL, sU0, sROT, sXB, sT0, sT1, sT2 = 3, 4, 5, 6, 7, 8, 9, 10, 11, 12, 13, 14, 15
P_X, P_LRE, P_LIM, P_BRE, P_BIM, P_CRE, P_CIM, P_LDT = 16, 18, 20, 22, 24, 26, 28, 30
P_DSK, P_W1, P_W2, P_OUT, P_DBG, P_WS = 32, 36, 38, 40, 42, 44
sHB, sFB = 34, 35
sM = 46
R_X, R_BS, R_W1A, R_W1B, R_H, R_H2, R_W2, R_CRE, R_CIM, R_OUT, R_SY = 48, 52, 56, 60, 64, 68, 72, 76, 80, 84, 88
sKX, sKW, sLB, sONES, sTAG, sPOLL, sLE, sW2O = 92, 93, 94, 95, 96, 97, 98, 99
sXCC, sLOC = 100, 101
TSREG = [16, 18, 20, 22, 24, 26, 28, 30, 36, 38, 40, 44]
def srd(r): return f"s[{r}:{r+3}]"

vL = 1
BASE = 2
ACC_S, ACC_F1, ACC_F2 = 64, 96, 128
FR = 160
RA, RS, RF = 200, 204, 208
vX, vB, vW = 224, 228, 230
CS = 232
vW2, vC2, vTR, vCR, vTA = 244, 245, 247, 248, 250
def vr(a, n=4): return f"v[{a}:{a+n-1}]"

SLOT = 40960; WBLK = 10240
L_EARLY = 122880
L_MISC = 155648
L_R = L_MISC; L_AGG = L_MISC + 1024; L_CS = L_MISC + 4096

class Cfg:
    ts = False
    force_remote = False
    akept = 6
    hld = 'sc1'
    hst = ''
    nring = 10
    ts_stages = ()

def mk_srd(q, r, p, size, off=0):
    if off:
        q.e(f"s_add_u32 s{r}, s{p}, {off}", f"s_addc_u32 s{r+1}, s{p+1}, 0", f"s_and_b32 s{r+1}, s{r+1}, 0xffff")
    else:
        q.e(f"s_mov_b32 s{r}, s{p}", f"s_and_b32 s{r+1}, s{p+1}, 0xffff")
    q.e(f"s_mov_b32 s{r+2}, {size}", f"s_mov_b32 s{r+3}, 0x20000")

def groups(seq):
    G = []; cur = []
    for ins in seq:
        cur.append(ins)
        if ins.kind not in ("wvm", "wds", "wvm0", "wds0"):
            G.append(cur); cur = []
    if cur: G.append(cur)
    return G

class Gen:
    def __init__(self, cfg):
        self.c = cfg; self.nts = 0; self.w2_last = {}; self.nl = 0
    def stamp(self, q):
        if self.c.ts:
            r = TSREG[self.nts]
            q.e(f"s_memtime s[{r}:{r+1}]"); self.nts += 1

    def stage_dma(self, i):
        base = (i % 3) * SLOT
        G = []
        pre = [I(f"s_add_u32 s{sKW}, s{sROT}, {i}"), I(f"s_and_b32 s{sKW}, s{sKW}, 7"), I(f"s_lshl_b32 s{sKX}, s{sKW}, 7"), I(f"s_mul_i32 s{sKW}, s{sKW}, {64*3584}")]
        def ld(v, r, so, off): return I(f"buffer_load_dwordx4 v{v}, {srd(r)}, s{so} offen offset:{off} lds", "vm")
        def m0(o): return I(f"s_add_u32 m0, s{sLB}, {base + o}")
        G.append([m0(0)] + pre + [ld(vX, R_X, sKX, 0)])
        for j in range(1, 4): G.append([ld(vX + j, R_X, sKX, 1024 * j)])
        G.append([m0(4096), ld(vB, R_BS, sKX, 0)]); G.append([ld(vB + 1, R_BS, sKX, 1024)])
        G.append([m0(6144), ld(vW, R_W1A, sKW, 0)]); G.append([ld(vW + 1, R_W1A, sKW, 1024)])
        G.append([m0(8192), ld(vW, R_W1B, sKW, 0)]); G.append([ld(vW + 1, R_W1B, sKW, 1024)])
        return G, G[-1][-1]

    def frag_reads(self, n):
        i, p = divmod(n, 4); slot = i % 3
        hi = 12 if slot == 2 else 0; o = SLOT if slot == 1 else 0
        b = FR + 20 * (n & 1)
        S = I(f"ds_read_b128 {vr(b)}, v{RS+hi+p} offset:{o}", "ds")
        A0 = I(f"ds_read_b128 {vr(b+4)}, v{RA+hi+p} offset:{o}", "ds")
        A1 = I(f"ds_read_b128 {vr(b+8)}, v{RA+hi+p} offset:{o+WBLK}", "ds")
        F = [I(f"ds_read_b64_tr_b16 {vr(b+12+2*k, 2)}, v{RF+hi+p} offset:{o + (k>>1)*2048 + (k&1)*512}", "ds") for k in range(4)]
        return [S, A0, A1] + F

    def prologue(self, q):
        c = self.c
        q.e("s_cmp_ge_u32 s2, 256", "s_cbranch_scc1 L_end")
        q.e("s_load_dwordx16 s[16:31], s[0:1], 0", "s_load_dwordx4 s[36:39], s[0:1], 80", "s_load_dwordx2 s[44:45], s[0:1], 112",
            "s_load_dwordx2 s[32:33], s[0:1], 64", "s_load_dwordx2 s[40:41], s[0:1], 96")
        if c.ts: q.e("s_memtime s[42:43]")
        q.e(f"v_and_b32 v{vL}, 63, v0", "v_lshrrev_b32 v2, 6, v0", f"v_readfirstlane_b32 s{sW}, v2")
        q.e(f"s_and_b32 s{sXB}, s2, 1", f"s_lshr_b32 s{sT0}, s2, 1", f"s_and_b32 s{sT0}, s{sT0}, 3",
            f"s_lshr_b32 s{sT1}, s2, 6",
            f"s_lshl_b32 s{sC}, s{sT0}, 2", f"s_add_u32 s{sC}, s{sC}, s{sT1}",
            f"s_lshr_b32 s{sGL}, s2, 3", f"s_and_b32 s{sGL}, s{sGL}, 7",
            f"s_lshl_b32 s{sG}, s{sXB}, 3", f"s_add_u32 s{sG}, s{sG}, s{sGL}")
        q.e(f"s_lshl_b32 s{sROT}, s{sT1}, 1", f"s_add_u32 s{sROT}, s{sROT}, s{sGL}")
        q.e(f"s_lshl_b32 s{sT0}, s{sGL}, 1", f"s_add_u32 s{sT1}, s{sGL}, 6", f"s_min_u32 s{sU0}, s{sT0}, s{sT1}",
            f"s_lshr_b32 s{sWM}, s{sW}, 1", f"s_and_b32 s{sWN}, s{sW}, 1", f"s_mul_i32 s{sLB}, s{sW}, {WBLK}",
            f"s_mov_b32 s{sONES}, 0x3f803f80", f"s_getreg_b32 s{sXCC}, hwreg(HW_REG_XCC_ID, 0, 4)")
        q.e(f"v_lshlrev_b32 v33, 4, v{vL}")
        q.e(f"v_lshrrev_b32 v2, 3, v{vL}", f"v_and_b32 v3, 7, v{vL}", f"v_lshrrev_b32 v4, 4, v{vL}")
        q.e("v_xor_b32 v5, v3, v4", "v_lshlrev_b32 v5, 4, v5", "v_xor_b32 v6, 64, v5")
        q.e(f"v_lshrrev_b32 v7, 5, v{vL}", "v_lshlrev_b32 v7, 4, v7", "v_and_b32 v8, 3, v2", "v_add_u32 v7, v7, v8",
            f"s_lshl_b32 s{sT0}, s{sC}, 7", f"s_lshl_b32 s{sT1}, s{sW}, 5", f"s_add_u32 s{sT0}, s{sT0}, s{sT1}",
            f"v_add_u32 v7, s{sT0}, v7", "v_lshlrev_b32 v7, 10, v7",
            f"v_add_u32 v{vX}, v7, v5", f"v_add_u32 v{vX+1}, v7, v6", f"v_add_u32 v{vX+1}, {3072}, v{vX+1}",
            f"v_add_u32 v{vX+2}, {6144}, v{vX}", f"v_add_u32 v{vX+3}, {6144}, v{vX+1}")
        q.e(f"s_lshl_b32 s{sT0}, s{sG}, 5", f"s_lshl_b32 s{sT1}, s{sWN}, 4", f"s_add_u32 s{sT0}, s{sT0}, s{sT1}",
            f"v_add_u32 v7, s{sT0}, v2", "v_lshlrev_b32 v7, 10, v7",
            f"v_add_u32 v{vB}, v7, v5", f"v_add_u32 v{vB+1}, v7, v6", f"v_add_u32 v{vB+1}, {7168}, v{vB+1}")
        q.e(f"v_and_b32 v11, 15, v{vL}", f"v_add_u32 v11, s{sT0}, v11", "v_lshlrev_b32 v11, 1, v11")
        q.e(f"s_lshl_b32 s{sT0}, s{sW}, 4", f"v_add_u32 v7, s{sT0}, v2", "v_mul_u32_u24 v7, 3584, v7",
            "v_and_b32 v8, 1, v4", "v_lshlrev_b32 v8, 2, v8", "v_xor_b32 v8, v8, v3", "v_lshlrev_b32 v8, 4, v8", "v_add_u32 v7, v7, v8",
            f"s_mul_i32 s{sT0}, s{sXB}, 14", f"s_add_u32 s{sT0}, s{sT0}, s{sU0}", f"s_lshl_b32 s{sT0}, s{sT0}, 7",
            f"v_add_u32 v{vW}, s{sT0}, v7", f"v_add_u32 v{vW+1}, {8*3584-1024}, v{vW}")
        q.e(f"s_lshl_b32 s{sT2}, s{sWM}, 6", f"s_lshl_b32 s{sT0}, s{sG}, 2", f"s_add_u32 s{sT2}, s{sT2}, s{sT0}", f"s_lshl_b32 s{sT0}, s{sWN}, 1",
            f"s_add_u32 s{sT2}, s{sT2}, s{sT0}", f"s_lshl_b32 s{sT0}, s{sC}, 7", f"s_add_u32 s{sT2}, s{sT2}, s{sT0}", f"s_lshl_b32 s{sHB}, s{sT2}, 10",
            "v_mov_b32 v15, 0")
        q.wds_all()
        if c.ts: q.e("s_memrealtime s[0:1]")
        mk_srd(q, R_X, P_X, 2048*1024)
        q.e(f"buffer_load_dwordx4 {vr(40)}, v33, {srd(R_X)}, s{sHB} offen", f"buffer_load_dwordx4 {vr(44)}, v33, {srd(R_X)}, s{sHB} offen offset:1024")
        small0 = q.e(f"global_load_dword v16, v15, s[{P_WS}:{P_WS+1}] sc1")
        q.e(f"global_load_ushort v12, v11, s[{P_LRE}:{P_LRE+1}]", f"global_load_ushort v13, v11, s[{P_LIM}:{P_LIM+1}]")
        small = q.e(f"global_load_ushort v14, v11, s[{P_LDT}:{P_LDT+1}]")
        q.e(f"s_cmp_eq_u32 s{sWM}, 0", f"s_cselect_b32 s{sT0}, s{P_BRE}, s{P_BIM}", f"s_cselect_b32 s{sT1}, s{P_BRE+1}, s{P_BIM+1}")
        mk_srd(q, R_BS, sT0, 512*1024)
        mk_srd(q, R_W1A, P_W1, 512*3584)
        mk_srd(q, R_W1B, P_W1, 512*3584 - 128, 128)
        q.e(f"s_cmp_lt_u32 s{sGL}, 6", f"s_cselect_b32 s{R_W1B+2}, s{R_W1B+2}, 0")
        q.e("s_getpc_b64 s[46:47]", "L_pc:", "s_sub_u32 s46, s46, L_pc-L_start", "s_subb_u32 s47, s47, 0")
        q.e(f"s_lshr_b32 s{sT0}, s2, 3", f"s_lshl_b32 s{sT0}, s{sT0}, 2", f"s_add_u32 s{sT0}, s{sT0}, s{sW}", f"s_lshl_b32 s{sT0}, s{sT0}, 8",
            f"v_lshlrev_b32 v9, 2, v{vL}", f"v_add_u32 v9, s{sT0}, v9", "v_min_u32 v9, L_end-L_start, v9")
        q.e("global_load_dword v10, v9, s[46:47]")
        last = []
        G, l = self.stage_dma(0); [q.e(*g) for g in G]; last.append(l)
        mk_srd(q, R_SY, P_WS, WS_H)
        mk_srd(q, R_H, P_WS, 64*HBLK, WS_H)
        mk_srd(q, R_H2, P_WS, 64*HBLK, WS_H)
        q.e(f"s_cmp_lt_u32 s{sGL}, 6", f"s_cselect_b32 s{R_H2+2}, s{R_H2+2}, 0")
        mk_srd(q, R_W2, P_W2, 1792*1024); mk_srd(q, R_CRE, P_CRE, 512*1024); mk_srd(q, R_CIM, P_CIM, 512*1024); mk_srd(q, R_OUT, P_OUT, 2048*2048)
        q.e(f"v_and_b32 v2, 31, v{vL}", f"v_lshrrev_b32 v3, 5, v{vL}")
        q.e("v_lshrrev_b32 v4, 1, v2", "v_and_b32 v4, 7, v4", "v_xor_b32 v4, v4, v3", "v_lshlrev_b32 v4, 4, v4",
            "v_lshlrev_b32 v5, 7, v2", f"v_add_u32 v{vCR}, v5, v4",
            f"s_lshl_b32 s{sT1}, s{sWM}, 5", f"v_xor_b32 v4, s{sT1}, v4")
        q.e(f"s_mul_i32 s{sT1}, s{sWM}, {2*WBLK}", f"v_add_u32 v5, s{sT1}, v5")
        q.e("v_and_b32 v6, 15, v2", "v_lshlrev_b32 v6, 7, v6", "v_lshrrev_b32 v7, 4, v2", f"v_mul_u32_u24 v7, {2*WBLK}, v7", "v_add_u32 v6, v6, v7",
            f"s_mul_i32 s{sT1}, s{sWN}, {WBLK}", f"s_add_u32 s{sT1}, s{sT1}, 4096", f"v_add_u32 v6, s{sT1}, v6")
        for p in range(4):
            q.e(f"v_xor_b32 v7, {32*p}, v4", f"v_add_u32 v{RA+p}, v5, v7", f"v_add_u32 v{RS+p}, v6, v7")
        q.e(f"v_and_b32 v4, 15, v{vL}", "v_lshrrev_b32 v5, 2, v4", "v_lshlrev_b32 v5, 7, v5",
            "v_and_b32 v6, 3, v4", "v_lshlrev_b32 v6, 3, v6",
            f"v_and_b32 v7, 16, v{vL}", "v_lshlrev_b32 v7, 1, v7", "v_add_u32 v6, v6, v7",
            "v_and_b32 v7, 8, v4", "v_lshlrev_b32 v7, 3, v7", "v_add3_u32 v5, v5, v6, v7",
            f"v_lshl_add_u32 v{vTR}, v3, 9, v5",
            "v_lshl_add_u32 v5, v3, 10, v5", f"s_lshl_b32 s{sT1}, s{sWN}, 6", f"v_xor_b32 v5, s{sT1}, v5")
        for p in range(4):
            q.e(f"s_xor_b32 s{sT1}, s{sWM}, {p}", f"s_mul_i32 s{sT1}, s{sT1}, {WBLK}", f"s_add_u32 s{sT1}, s{sT1}, 6144", f"v_add_u32 v{RF+p}, s{sT1}, v5")
        for k in range(12): q.e(f"v_add_u32 v{RA+12+k}, {2*SLOT}, v{RA+k}")
        for k in range(3): q.e(f"v_mov_b32 v{CS+k}, 0")
        for k in range(4): q.e(f"v_mov_b32 v{48+k}, 0")
        q.wvm(small0)
        q.e(f"v_readfirstlane_b32 s{sTAG}, v16", f"s_add_u32 s{sTAG}, s{sTAG}, {hex(TAGK)}")
        for r in range(4):
            q.e(f"v_dot2c_f32_bf16 v48, s{sONES}, v{40+r}", f"v_dot2c_f32_bf16 v49, s{sONES}, v{44+r}",
                f"v_dot2c_f32_bf16 v50, v{40+r}, v{40+r}", f"v_dot2c_f32_bf16 v51, v{44+r}, v{44+r}")
        q.e("v_permlane32_swap_b32 v48, v49", "v_permlane32_swap_b32 v50, v51", "v_add_f32 v48, v48, v49", "v_add_f32 v50, v50, v51",
            "v_permlane16_swap_b32 v48, v50", "v_add_f32 v48, v48, v50")
        for k in (8, 4, 2, 1): q.e(f"v_add_f32_dpp v48, v48, v48 row_ror:{k} row_mask:0xf bank_mask:0xf")
        q.e("v_mov_b32 v49, v48", "v_permlane16_swap_b32 v48, v49",
            f"v_mul_f32 v48, {fh(1/512)}, v48", f"v_mul_f32 v49, {fh(1/512)}, v49", "v_fma_f32 v49, -v48, v48, v49", "v_max_f32 v49, 0, v49",
            "v_cvt_pk_bf16_f32 v49, v49, v49", "v_lshlrev_b32 v49, 16, v49", f"v_add_f32 v49, {fh(1e-5)}, v49",
            "v_cvt_pk_bf16_f32 v49, v49, v49", "v_lshlrev_b32 v49, 16, v49", "v_sqrt_f32 v49, v49",
            "v_cvt_pk_bf16_f32 v41, -v48, -v48", f"v_mov_b32 v42, s{sTAG}",
            "v_cvt_pk_bf16_f32 v49, v49, v49", "v_lshlrev_b32 v49, 16, v49", "v_rcp_f32 v40, v49", f"v_mov_b32 v43, s{sXCC}",
            "v_lshlrev_b32 v44, 4, v3", f"v_mov_b32 v45, {OOB}", "v_cmp_eq_u32 vcc, 0, v2", "v_cndmask_b32 v44, v45, v44, vcc",
            f"s_lshl_b32 s{sT2}, s{sT2}, 4", f"s_add_u32 s{sT2}, s{sT2}, {WS_STAT}")
        q.e(f"buffer_store_dwordx4 {vr(40)}, v44, {srd(R_SY)}, s{sT2} offen sc1")
        side = Seq()
        self.p2_consts(side)
        side.wvm(small)
        self.ssm_consts(side)
        G, l = self.stage_dma(1); last.append(l)
        q.extend(merge(side, G))
        return last

    def ssm_consts(self, q):
        q.e("v_lshlrev_b32 v12, 16, v12", "v_lshlrev_b32 v13, 16, v13", "v_lshlrev_b32 v14, 16, v14",
            f"v_mul_f32 v14, {fh(1.4426950408889634)}, v14", "v_exp_f32 v14, v14", "v_cvt_pk_bf16_f32 v14, v14, v14", "v_lshlrev_b32 v14, 16, v14",
            "v_mul_f32 v17, v14, v12", "v_mul_f32 v16, v14, v13",
            f"v_mul_f32 v17, {fh(1.4426950408889634)}, v17", f"v_mul_f32 v16, {fh(0.15915494309189535)}, v16")
        q.e(f"v_lshrrev_b32 v2, 4, v{vL}", "v_and_b32 v3, 1, v2", "v_lshlrev_b32 v3, 1, v3", "v_lshrrev_b32 v4, 1, v2", "v_add_u32 v3, v3, v4",
            f"s_lshl_b32 s{sT0}, s{sWM}, 2", f"v_add_u32 v32, s{sT0}, v3",
            "v_lshlrev_b32 v3, 4, v32", "v_cvt_f32_u32 v3, v3", "v_sub_u32 v4, 3, v2", "v_lshlrev_b32 v4, 9, v4", "v_cvt_f32_u32 v4, v4")
        def cexp(d, n):
            q.e(f"v_mul_f32 v5, {n}, v17", f"v_mul_f32 v6, {n}, v16", "v_exp_f32 v5, v5", "v_fract_f32 v6, v6", f"v_cos_f32 v{d}, v6", f"v_sin_f32 v{d+1}, v6",
                f"v_mul_f32 v{d}, v{d}, v5", f"v_mul_f32 v{d+1}, v{d+1}, v5")
        cexp(20, "1.0"); cexp(22, fh(16.0)); cexp(24, fh(128.0)); cexp(26, "v3"); cexp(28, "v4")
        q.e("v_add_f32 v5, -1.0, v20", "v_mul_f32 v6, v12, v12", "v_fmac_f32 v6, v13, v13", "v_rcp_f32 v6, v6",
            "v_mul_f32 v30, v5, v12", "v_fmac_f32 v30, v21, v13", "v_mul_f32 v31, v21, v12", "v_fma_f32 v31, -v5, v13, v31",
            "v_add_f32 v6, v6, v6", "v_mul_f32 v30, v30, v6", "v_mul_f32 v31, v31, v6")

    def p2_consts(self, q):
        q.e(f"s_lshl_b32 s{sLE}, s{sW}, 13", f"s_add_u32 s{sLE}, s{sLE}, {L_EARLY}")
        q.e(f"s_mul_i32 s{sW2O}, s{sXB}, 896", f"s_mul_i32 s{sT1}, s{sW}, 224", f"s_add_u32 s{sW2O}, s{sW2O}, s{sT1}", f"s_lshl_b32 s{sW2O}, s{sW2O}, 10")
        q.e(f"s_lshl_b32 s{sCO}, s{sXB}, 2", f"s_add_u32 s{sCO}, s{sCO}, s{sW}", f"s_lshl_b32 s{sCO}, s{sCO}, 7",
            f"s_lshl_b32 s{sT1}, s{sGL}, 16", f"s_add_u32 s{sCO}, s{sCO}, s{sT1}")
        q.e(f"v_lshrrev_b32 v2, 3, v{vL}", f"v_and_b32 v3, 7, v{vL}", f"v_lshrrev_b32 v4, 4, v{vL}", "v_lshlrev_b32 v2, 10, v2",
            "v_xor_b32 v5, v3, v4", "v_lshlrev_b32 v5, 4, v5", f"v_add_u32 v{vC2}, v2, v5", f"v_xor_b32 v{vC2+1}, 64, v{vC2}",
            "v_and_b32 v5, 1, v4", "v_lshlrev_b32 v5, 2, v5", "v_xor_b32 v5, v5, v3", "v_lshlrev_b32 v5, 4, v5", "v_add_u32 v5, v5, v2",
            f"s_lshl_b32 s{sT1}, s{sGL}, 7", f"v_add_u32 v{vW2}, s{sT1}, v5")
        q.e(f"s_lshl_b32 s{sFB}, s{sC}, 1", f"s_add_u32 s{sFB}, s{sFB}, s{sXB}",
            f"s_lshl_b32 s{sHB}, s{sFB}, 1", f"s_add_u32 s{sHB}, s{sHB}, s{sWM}", f"s_mul_i32 s{sHB}, s{sHB}, {HBLK}",
            f"s_lshl_b32 s{sFB}, s{sFB}, 8", f"s_add_u32 s{sFB}, s{sFB}, {WS_FLAG}")
        q.e(f"v_and_b32 v38, 4, v{vL}", "v_lshlrev_b32 v38, 2, v38", f"v_and_b32 v39, 24, v{vL}", "v_lshrrev_b32 v39, 1, v39",
            f"v_and_b32 v37, 35, v{vL}", "v_add3_u32 v37, v37, v38, v39", "v_lshlrev_b32 v37, 4, v37")
        q.e(f"v_and_b32 v5, 15, v{vL}",
            f"s_lshl_b32 s{sT0}, s{sXB}, 6", f"s_lshl_b32 s{sT1}, s{sW}, 4", f"s_add_u32 s{sT0}, s{sT0}, s{sT1}", f"v_add_u32 v6, s{sT0}, v4",
            f"v_lshlrev_b32 v34, 2, v6", f"v_add_u32 v34, {L_R}, v34",
            f"s_lshl_b32 s{sT0}, s{sC}, 7", f"v_add_u32 v6, s{sT0}, v6",
            f"s_lshl_b32 s{sT0}, s{sGL}, 7", "v_lshlrev_b32 v35, 3, v5", f"v_add_u32 v35, s{sT0}, v35",
            "v_lshl_add_u32 v18, v6, 10, v35", "v_lshlrev_b32 v19, 1, v18")

    def check(self, name, loads, checks, extra=None):
        q = Seq()
        def chk():
            for k, (r, ex) in enumerate(checks):
                if k == 0: q.e(f"v_cmp_ne_u32 s[{sM}:{sM+1}], {ex}, v{r}")
                else: q.e(f"v_cmp_ne_u32 vcc, {ex}, v{r}", f"s_or_b64 s[{sM}:{sM+1}], s[{sM}:{sM+1}], vcc")
            q.e(f"s_cmp_eq_u64 s[{sM}:{sM+1}], 0", f"s_cbranch_scc1 L_{name}_ok")
        q.wvm(loads[-1])
        q.e(f"s_mov_b32 s{sPOLL}, 0x40000")
        q.label(f"L_{name}")
        chk()
        q.e("s_sleep 1")
        for l in loads: q.append(I(l.t, "o"))
        q.e("s_waitcnt vmcnt(0)", f"s_sub_u32 s{sPOLL}, s{sPOLL}, 1", f"s_cbranch_scc0 L_{name}")
        q.label(f"L_{name}_ok")
        return list(q)

    def dual(self, stores):
        self.nl += 1; n = self.nl
        g = [I(f"s_cmp_lg_u32 s{sLOC}, 0"), I(f"s_cbranch_scc1 L_dp{n}")]
        g += [I(t + " sc1", "o") for t in stores]
        g += [I(f"s_branch L_de{n}"), I(f"L_dp{n}:", "label")]
        real = [I(t + " " + self.c.hst, "vm") for t in stores]
        g += real + [I(f"L_de{n}:", "label")]
        return g, real[-1]

    def mainloop(self, q, last):
        c = self.c
        q.wvm(last[0]); q.e("s_barrier"); self.stamp(q)
        rd = self.frag_reads(0); q.e(*rd)
        G, l = self.stage_dma(2); pend = G; last.append(l)
        side = {}
        def add(n0, n1, G):
            for k, g in enumerate(G): side.setdefault(n0 + (k * (n1 - n0 + 1)) // len(G), []).append(g)
        s = Seq()
        s.e(f"s_xor_b32 s{sT0}, s{sW}, 2", f"s_lshl_b32 s{sT0}, s{sT0}, 10", f"s_add_u32 s{sT0}, s{sT0}, {L_CS}", f"v_add_u32 v40, s{sT0}, v33")
        r = s.e(f"ds_read_b128 {vr(44)}, v40")
        s.e(f"v_mov_b32 v{CS+3}, s{sTAG}", f"v_mov_b32 v41, {OOB}", f"v_cmp_gt_u32 vcc, 32, v{vL}", "v_cndmask_b32 v41, v41, v33, vcc",
            f"s_lshl_b32 s{sT0}, s{sC}, 4", f"s_add_u32 s{sT0}, s{sT0}, s{sG}", f"s_lshl_b32 s{sT0}, s{sT0}, 1", f"s_add_u32 s{sT0}, s{sT0}, s{sWN}",
            f"s_lshl_b32 s{sT0}, s{sT0}, 9", f"s_add_u32 s{sT0}, s{sT0}, {WS_CS}", f"s_mul_i32 s{sT1}, s{sWM}, {OOB}", f"v_add_u32 v41, s{sT1}, v41")
        s.wds(r)
        for t in range(3): s.e(f"v_add_f32 v{CS+t}, v{CS+t}, v{44+t}")
        for t in range(3): s.e(f"v_mov_b32 v{44+t}, v{CS+t}")
        for t in range(3): s.e(f"v_permlane32_swap_b32 v{CS+t}, v{44+t}")
        for t in range(3): s.e(f"v_add_f32 v{CS+t}, v{CS+t}, v{44+t}")
        s.e(f"buffer_store_dwordx4 {vr(CS)}, v41, {srd(R_SY)}, s{sT0} offen sc1")
        add(7, 9, groups(s))
        s = Seq()
        s.e(f"s_lshl_b32 s{sT0}, s{sC}, 1", f"s_add_u32 s{sT0}, s{sT0}, s{sWM}", f"s_lshl_b32 s{sT0}, s{sT0}, 10", f"s_add_u32 s{sT0}, s{sT0}, {WS_STAT}",
            f"s_and_b32 s{sT1}, s{sC}, 12", f"s_lshl_b32 s{sT1}, s{sT1}, 4", f"s_add_u32 s{sT1}, s{sT1}, s{sG}", f"s_lshl_b32 s{sT1}, s{sT1}, 1", f"s_add_u32 s{sT1}, s{sT1}, s{sWN}",
            f"s_lshl_b32 s{sT1}, s{sT1}, 9", f"s_add_u32 s{sT1}, s{sT1}, {WS_CS}", f"s_add_u32 s{sT2}, s{sT1}, 32768",
            f"v_and_b32 v52, 31, v{vL}", f"v_lshrrev_b32 v53, 5, v{vL}", "v_lshlrev_b32 v53, 14, v53", "v_lshl_add_u32 v52, v52, 4, v53")
        gl_ = [s.e(f"buffer_load_dwordx4 {vr(40)}, v37, {srd(R_SY)}, s{sT0} offen sc1"),
               s.e(f"buffer_load_dwordx4 {vr(44)}, v52, {srd(R_SY)}, s{sT1} offen sc1"),
               s.e(f"buffer_load_dwordx4 {vr(48)}, v52, {srd(R_SY)}, s{sT2} offen sc1")]
        add(17, 19, groups(s))
        G = [self.check("ga", gl_, [(42, f"s{sTAG}"), (47, f"s{sTAG}"), (51, f"s{sTAG}")])]
        s = Seq()
        s.e(f"v_cmp_ne_u32 vcc, s{sXCC}, v43", f"s_cmp_eq_u32 s{sXB}, 0", f"s_cselect_b32 s{sT0}, vcc_lo, vcc_hi", f"s_cmp_eq_u32 s{sT0}, 0",
            f"s_cselect_b32 s{sLOC}, {0 if c.force_remote else 1}, 0")
        g0 = list(s); s = Seq()
        s.e("v_lshrrev_b32 v52, 2, v37", f"s_lshl_b32 s{sT0}, s{sWM}, 8", f"s_add_u32 s{sT0}, s{sT0}, {L_R}", f"v_add_u32 v52, s{sT0}, v52",
            "v_and_b32 v53, 0xffff0000, v41")
        s.e("ds_write2_b32 v52, v40, v53 offset0:0 offset1:128")
        s.e("v_mov_b32 v56, v41", "v_mov_b32 v58, v41", "v_mov_b32 v42, v40", "v_mov_b32 v43, v40",
            "v_permlane32_swap_b32 v56, v58", "v_permlane32_swap_b32 v42, v43", "v_mov_b32 v57, v56", "v_mov_b32 v59, v58",
            f"s_mov_b32 s{sT0}, 0x07060302")
        for t in range(3):
            d = 236 + 2 * t
            s.e(f"v_add_f32 v{44+t}, v{44+t}, v{48+t}", f"v_and_b32 v54, 0xffff0000, v{44+t}", f"v_sub_f32 v54, v{44+t}, v54",
                f"v_perm_b32 v{d}, v54, v{44+t}, s{sT0}", "v_and_b32 v55, 0xffff0000, v54", "v_sub_f32 v55, v54, v55", f"v_cvt_pk_bf16_f32 v{d+1}, v55, 0")
        add(24, 27, G + [g0] + groups(s))
        s = Seq()
        self.xl = []
        for ii in range(4):
            s.e(f"s_mov_b32 s{sPOLL}, {4096*ii}")
            self.xl.append(s.e(f"buffer_load_dwordx2 {vr(2+4*ii,2)}, v18, {srd(R_X)}, s{sPOLL} offen"))
        self.xl.append(s.e(f"global_load_dwordx2 {vr(38,2)}, v35, s[{P_DSK}:{P_DSK+1}]"))
        gg = groups(s); gg = [gg[2*k] + gg[2*k+1] for k in range(4)] + [gg[8]]
        add(20, 23, gg)
        MF = "v_mfma_f32_32x32x8_bf16"
        for n in range(32):
            i, p = divmod(n, 4)
            b = FR + 20 * (n & 1)
            nxt = None
            if p == 3 and i < 7:
                assert not pend or i >= 5
                q.wds_all(); q.wvm(last[i + 1]); q.e("s_barrier")
                if c.ts and i in c.ts_stages: self.stamp(q)
                if i + 3 < 8:
                    G, l = self.stage_dma(i + 3); pend += G; last.append(l)
                elif i == 5: pend += self.w2_dma(0) + self.w2_dma(1)[:4]
                elif i == 6: pend += self.w2_rest + self.w2_dma(2)
            if n < 31: nxt = self.frag_reads(n + 1)
            z = lambda a: ("0" if n == 0 else vr(a, 16))
            M = [(f"v_mfma_f32_32x32x16_bf16 {vr(ACC_S,16)}, {vr(b+4)}, {vr(b)}, {z(ACC_S)}", rd[1]),
                 (f"v_mfma_f32_32x32x16_bf16 {vr(ACC_S+16,16)}, {vr(b+8)}, {vr(b)}, {z(ACC_S+16)}", rd[2]),
                 (f"v_mfma_f32_32x32x16_bf16 {vr(ACC_F1,16)}, {vr(b+12)}, {vr(b+4)}, {z(ACC_F1)}", rd[4]),
                 (f"v_mfma_f32_32x32x16_bf16 {vr(ACC_F1+16,16)}, {vr(b+12)}, {vr(b+8)}, {z(ACC_F1+16)}", rd[4]),
                 (f"v_mfma_f32_32x32x16_bf16 {vr(ACC_F2,16)}, {vr(b+16)}, {vr(b+4)}, {z(ACC_F2)}", rd[6]),
                 (f"v_mfma_f32_32x32x16_bf16 {vr(ACC_F2+16,16)}, {vr(b+16)}, {vr(b+8)}, {z(ACC_F2+16)}", rd[6])]
            sched = [2, 1, 2, 2, 0, 0]
            slots = (0, 1, 3, 5) if n < 3 else (1, 3, 5)
            sg = side.get(n, [])
            k = 0
            for j, (m, dep) in enumerate(M):
                q.wds(dep); q.e(m)
                if nxt:
                    q.e(*nxt[k:k + sched[j]]); k += sched[j]
                if pend and j in slots: q.e(*pend.pop(0))
                for g in sg[(j * len(sg)) // 6:((j + 1) * len(sg)) // 6]: q.e(*g)
            if n < 8 and p in (0, 2):
                for r in range(4):
                    for t, o in enumerate((0, 12, 16)):
                        q.e(f"v_dot2c_f32_bf16 v{CS+t}, s{sONES}, v{b+o+r}")
            if n == 6:
                q.e(f"s_lshl_b32 s{sT0}, s{sW}, 10", f"s_add_u32 s{sT0}, s{sT0}, {L_CS}", f"v_add_u32 v40, s{sT0}, v33", f"ds_write_b128 v40, {vr(CS)}")
            if n == 28:
                for t in range(2): q.e(f"{MF} {vr(ACC_S+16*t,16)}, {vr(56+2*t,2)}, {vr(236,2)}, {vr(ACC_S+16*t,16)}")
                for u, a in ((1, ACC_F1), (2, ACC_F2)):
                    for t in range(2): q.e(f"{MF} {vr(a+16*t,16)}, {vr(236+2*u,2)}, {vr(56+2*t,2)}, {vr(a+16*t,16)}")
                q.e("v_lshlrev_b32 v60, 6, v32", f"v_add_u32 v60, {L_R}, v60")
            if n == 29:
                self.rv = [q.e(f"ds_read_b128 {vr(44+4*k)}, v60 offset:{16*k}") for k in range(4)]
            rd = nxt
        assert not pend
        self.stamp(q)

    W2AREA = {0: "E", 1: 2, 2: 0, 3: 1, 4: "E", 5: 2}
    def w2_dma(self, pc):
        area = self.W2AREA[pc]
        G = []
        n = 4 if pc == 5 else 8
        ffn = pc in (0, 1, 2, 5)
        for k in range(n):
            g = []
            if k % 4 == 0:
                if area == "E": g.append(I(f"s_add_u32 m0, s{sLE}, {1024*k}"))
                else: g.append(I(f"s_add_u32 m0, s{sLB}, {area*SLOT + 1024*k}"))
            j = k % 4
            if ffn:
                row = {0: 0, 1: 64, 2: 128, 5: 192}[pc] + 8 * k
                g.append(I(f"s_add_u32 s{sKW}, s{sW2O}, {row*1024 - 1024*j}"))
                g.append(I(f"buffer_load_dwordx4 v{vW2}, {srd(R_W2)}, s{sKW} offen offset:{1024*j} lds", "vm"))
            else:
                g.append(I(f"s_add_u32 s{sKW}, s{sCO}, {8*k*1024 - 1024*j}"))
                g.append(I(f"buffer_load_dwordx4 v{vC2 + (k&1)}, {srd(R_CRE if pc == 3 else R_CIM)}, s{sKW} offen offset:{1024*j} lds", "vm"))
            G.append(g)
        self.w2_last[pc] = G[-1][-1]
        if pc == 1: self.w2_rest = G[4:]
        return G

    def w2_reads(self, pc):
        area = self.W2AREA[pc]
        L = Seq()
        sb = sLE if area == "E" else sLB
        ao = 0 if area == "E" else area * SLOT
        L.e(f"s_add_u32 s{sKX}, s{sb}, {ao}")
        if pc in (0, 1, 2, 5):
            L.e(f"v_add_u32 v{vTA}, s{sKX}, v{vTR}", f"v_xor_b32 v{vTA+1}, 64, v{vTA}")
            L.wvm(self.w2_last[pc])
            j0 = {0: 0, 1: 4, 2: 8, 5: 12}[pc]
            for k in range(2 if pc == 5 else 4):
                for nu in range(2):
                    for e in range(2):
                        a = 8 * (j0 + k) + 4 * nu + 2 * e
                        L.e(f"ds_read_b64_tr_b16 a[{a}:{a+1}], v{vTA+nu} offset:{2048*k + 1024*e}")
        else:
            L.e(f"v_add_u32 v{vTA}, s{sKX}, v{vCR}")
            for k in range(1, 4): L.e(f"v_xor_b32 v{vTA+k}, {32*k}, v{vTA}")
            L.wvm(self.w2_last[pc])
            j0 = 14 if pc == 3 else 18
            for k in range(4):
                for nu in range(2):
                    a = 8 * (j0 + k) + 4 * nu
                    L.e(f"ds_read_b128 a[{a}:{a+3}], v{vTA+k} offset:{4096*nu}")
        return L

    def cmul_acc(self, q, d, a, b, c):
        q.e(f"v_fma_f32 v{d}, v{a}, v{b}, v{c}", f"v_fma_f32 v{d+1}, v{a}, v{b+1}, v{c+1}",
            f"v_fma_f32 v{d}, -v{a+1}, v{b+1}, v{d}", f"v_fma_f32 v{d+1}, v{a+1}, v{b}, v{d+1}")
    def cmul(self, q, d, a, b):
        q.e(f"v_mul_f32 v{d}, v{a}, v{b}", f"v_mul_f32 v{d+1}, v{a}, v{b+1}",
            f"v_fma_f32 v{d}, -v{a+1}, v{b+1}, v{d}", f"v_fma_f32 v{d+1}, v{a+1}, v{b}, v{d+1}")

    def flag_store(self, kind, after):
        q = Seq()
        q.e(f"s_lshl_b32 s{sT2}, s{sGL}, 2", f"s_add_u32 s{sT2}, s{sT2}, s{sW}", f"s_lshl_b32 s{sT2}, s{sT2}, 2", f"s_add_u32 s{sT2}, s{sT2}, s{sFB}",
            f"v_mov_b32 v254, s{sTAG}", f"v_mov_b32 v255, 0")
        q.wvm(after)
        q.e("s_mov_b64 exec, 1")
        g, _ = self.dual([f"buffer_store_dword v254, v255, {srd(R_SY)}, s{sT2} offen offset:{128*kind}"])
        q.extend(g)
        q.e("s_mov_b64 exec, -1")
        return list(q)

    def transition(self, q):
        c = self.c
        RE, IM = ACC_S, ACC_S + 16
        for i in range(16): q.e(f"v_permlane16_swap_b32 v{RE+i}, v{IM+i}")
        q.wds(self.rv[-1])
        for j in range(8):
            q.e(f"v_pk_mul_f32 {vr(RE+2*j,2)}, {vr(RE+2*j,2)}, {vr(44+2*j,2)}", f"v_pk_mul_f32 {vr(IM+2*j,2)}, {vr(IM+2*j,2)}, {vr(44+2*j,2)}")
        cr, ci = RE, IM
        for i in range(1, 16):
            d = 56 + 2 * (i & 1)
            q.e(f"v_fma_f32 v{d}, v20, v{cr}, v{RE+i}", f"v_fma_f32 v{d+1}, v20, v{ci}, v{IM+i}",
                f"v_fma_f32 v{d}, -v21, v{ci}, v{d}", f"v_fma_f32 v{d+1}, v21, v{cr}, v{d+1}")
            cr, ci = d, d + 1
            if i == 4:
                q.e(f"v_and_b32 v60, 15, v{vL}", f"s_lshl_b32 s{sT0}, s{sWN}, 4", f"v_add_u32 v60, s{sT0}, v60",
                    "v_lshlrev_b32 v61, 6, v60", f"v_add_u32 v61, {L_AGG}, v61", "v_lshl_add_u32 v62, v32, 3, v61")
        q.e(f"ds_write_b64 v62, {vr(cr,2)}")
        q.e("v_mov_b32 v40, 0", "v_mov_b32 v41, 0")
        q.e("v_lshlrev_b32 v60, 4, v60", "v_cmp_eq_u32 vcc, 0, v32", f"v_mov_b32 v63, {OOB}", "v_cndmask_b32 v63, v63, v60, vcc",
            f"s_lshl_b32 s{sT0}, s{sG}, 4", f"s_add_u32 s{sT0}, s{sT0}, s{sC}", f"s_lshl_b32 s{sT0}, s{sT0}, 9", f"s_add_u32 s{sT0}, s{sT0}, {WS_AGG}",
            f"v_mov_b32 v190, s{sTAG}", f"v_mov_b32 v191, s{sTAG}")
        q.wds_all(); q.e("s_barrier")
        ag = [q.e(f"ds_read_b128 {vr(168+4*k)}, v61 offset:{16*k}") for k in range(4)]
        mr = [q.e(f"ds_read2_b32 {vr(44+2*ii,2)}, v34 offset0:{4*ii} offset1:{128+4*ii}") for ii in range(4)]
        P = 168
        for j in range(1, 8):
            q.wds(ag[j // 2])
            q.e(f"v_cmp_eq_u32 vcc, {j}, v32")
            d = 188 if j == 7 else (186 if P != 186 else 56)
            self.cmul_acc(q, d, 22, P, 168 + 2 * j)
            q.e(f"v_cndmask_b32 v40, v40, v{P}, vcc", f"v_cndmask_b32 v41, v41, v{P+1}, vcc")
            P = d
        q.e(f"buffer_store_dwordx4 {vr(188)}, v63, {srd(R_SY)}, s{sT0} offen sc1")
        self.stamp(q)
        q.e(f"s_lshl_b32 s{sT0}, s{sU0}, 13", f"s_lshl_b32 s{sT1}, s{sWN}, 12", f"s_add_u32 s{sT0}, s{sT0}, s{sT1}", f"s_add_u32 s{sT0}, s{sT0}, s{sHB}",
            f"s_add_u32 s{sT1}, s{sT0}, 8192")
        k = 0
        w0 = groups(self.w2_reads(0)) + groups(self.w2_reads(1))
        for u, a, rs, so in ((0, ACC_F1, R_H, sT0), (1, ACC_F2, R_H2, sT1)):
            for t in range(2):
                pk = 192 + 8 * k; k += 1
                f = Seq()
                for j in range(8):
                    r = a + 16 * t + 2 * j
                    f.e(f"v_pk_mul_f32 {vr(r,2)}, {vr(r,2)}, {vr(42,2)} op_sel:[0,{t}] op_sel_hi:[1,{t}]")
                for j in range(8):
                    r = a + 16 * t + 2 * j
                    f.e(f"v_cvt_pk_bf16_f32 v{pk+j}, v{r}, v{r+1}")
                for j in range(8): f.e(f"v_pk_max_i16 v{pk+j}, v{pk+j}, 0")
                q.extend(f)
                g, ffn_last = self.dual([f"buffer_store_dwordx4 {vr(pk+4*al)}, v37, {srd(rs)}, s{so} offen offset:{2048*al + 1024*t}" for al in range(2)])
                q.extend(g)
        for g in w0: q.e(*g)
        f = Seq()
        for j in range(8):
            a, b = RE + 2 * j, IM + 2 * j
            f.e(f"v_pk_mul_f32 {vr(56,2)}, {vr(b,2)}, {vr(30,2)} op_sel:[0,1] op_sel_hi:[1,1]",
                f"v_pk_mul_f32 {vr(b,2)}, {vr(b,2)}, {vr(30,2)} op_sel:[0,0] op_sel_hi:[1,0]",
                f"v_pk_fma_f32 {vr(b,2)}, {vr(a,2)}, {vr(30,2)}, {vr(b,2)} op_sel:[0,1,0] op_sel_hi:[1,1,1]",
                f"v_pk_fma_f32 {vr(a,2)}, {vr(a,2)}, {vr(30,2)}, {vr(56,2)} op_sel:[0,0,0] op_sel_hi:[1,0,1] neg_lo:[0,0,1] neg_hi:[0,0,1]")
        q.extend(f)
        q.wds_all()
        q.extend(self.flag_store(0, ffn_last))
        self.stamp(q)
        q.e(f"v_lshlrev_b32 v36, 2, v{vL}", "v_and_b32 v36, 127, v36")
        dm = self.w2_dma(5) + self.w2_dma(3) + self.w2_dma(4)
        f = Seq()
        f.extend(self.w2_reads(2))
        f.wvm(self.xl[-1])
        f.e("v_lshlrev_b32 v52, 16, v38", "v_and_b32 v53, 0xffff0000, v38", "v_lshlrev_b32 v54, 16, v39", "v_and_b32 v55, 0xffff0000, v39")
        for ii in range(4):
            b = BASE + 4 * ii; r, nm = 44 + 2 * ii, 45 + 2 * ii
            f.e(f"v_lshlrev_b32 v{b+2}, 16, v{b+1}", f"v_and_b32 v{b+3}, 0xffff0000, v{b+1}", f"v_and_b32 v{b+1}, 0xffff0000, v{b}", f"v_lshlrev_b32 v{b}, 16, v{b}")
            for e in range(2): f.e(f"v_pk_add_f32 {vr(56+2*e,2)}, {vr(b+2*e,2)}, {vr(r,2)} op_sel:[0,1] op_sel_hi:[1,1]")
            def rnd():
                f.e("v_cvt_pk_bf16_f32 v61, v56, v57", "v_cvt_pk_bf16_f32 v62, v58, v59",
                    "v_lshlrev_b32 v56, 16, v61", "v_and_b32 v57, 0xffff0000, v61", "v_lshlrev_b32 v58, 16, v62", "v_and_b32 v59, 0xffff0000, v62")
            rnd()
            for e in range(2): f.e(f"v_pk_mul_f32 {vr(56+2*e,2)}, {vr(56+2*e,2)}, {vr(r,2)} op_sel:[0,0] op_sel_hi:[1,0]")
            rnd()
            for e in range(2): f.e(f"v_pk_mul_f32 {vr(56+2*e,2)}, {vr(56+2*e,2)}, {vr(52+2*e,2)}")
            rnd()
            for e in range(2): f.e(f"v_pk_add_f32 {vr(b+2*e,2)}, {vr(b+2*e,2)}, {vr(56+2*e,2)}")
        q.extend(merge(f, dm))
        fl = q.e(f"buffer_load_dword v56, v36, {srd(R_SY)}, s{sFB} offen sc1")
        q.extend(self.w2_reads(5))
        q.extend(self.check("ff", [fl], [(56, f"s{sTAG}")]))
        self.stamp(q)

    def ssm_part2(self):
        RE, IM = ACC_S, ACC_S + 16
        a = Seq()
        a.e(f"v_lshrrev_b32 v56, 4, v{vL}", "v_lshlrev_b32 v56, 2, v56", f"s_sub_u32 s{sT0}, s{sC}, 16", f"v_add_u32 v56, s{sT0}, v56",
            f"v_mov_b32 v58, {OOB}", f"v_mov_b32 v59, s{sTAG}")
        A = groups(a)
        for t in range(4):
            A.append([I(f"v_add_u32 v57, {t}, v56"), I("v_cmp_le_i32 vcc, 0, v57"), I("v_lshl_add_u32 v57, v57, 9, v60"),
                      I(f"v_cndmask_b32 v{44+t}, v58, v57, vcc"), I(f"v_cndmask_b32 v{48+t}, 0, v59, vcc")])
        a = Seq()
        a.e(f"s_lshl_b32 s{sT0}, s{sG}, 13", f"s_add_u32 s{sT0}, s{sT0}, {WS_AGG}")
        lb = [a.e(f"buffer_load_dwordx4 {vr(224+4*t)}, v{44+t}, {srd(R_SY)}, s{sT0} offen sc1") for t in range(4)]
        A += groups(a)
        B = [self.check("lb", lb, [(226 + 4 * t, f"v{48+t}") for t in range(4)])]
        q = Seq()
        self.stamp(q)
        self.cmul_acc(q, 56, 24, 224, 228); self.cmul_acc(q, 58, 24, 56, 232); self.cmul_acc(q, 56, 24, 58, 236)
        self.cmul(q, 58, 28, 56)
        for sw in ("16", "32"):
            q.e("v_mov_b32 v56, v58", "v_mov_b32 v57, v59", f"v_permlane{sw}_swap_b32 v56, v58", f"v_permlane{sw}_swap_b32 v57, v59",
                "v_add_f32 v58, v56, v58", "v_add_f32 v59, v57, v59")
        self.cmul_acc(q, 56, 26, 58, 40)
        self.cmul(q, 58, 30, 56)
        pr, pi_ = 58, 59
        for i in range(16):
            q.e(f"v_fma_f32 v{RE+i}, v20, v{pr}, v{RE+i}", f"v_fma_f32 v{IM+i}, v20, v{pi_}, v{IM+i}",
                f"v_fma_f32 v{RE+i}, -v21, v{pi_}, v{RE+i}", f"v_fma_f32 v{IM+i}, v21, v{pr}, v{IM+i}")
            pr, pi_ = RE + i, IM + i
        for j in range(8):
            q.e(f"v_cvt_pk_bf16_f32 v{224+j}, v{RE+2*j}, v{RE+2*j+1}", f"v_cvt_pk_bf16_f32 v{232+j}, -v{IM+2*j}, -v{IM+2*j+1}")
        q.e(f"v_and_b32 v56, 15, v{vL}", "v_and_b32 v57, 2, v56", "v_lshlrev_b32 v57, 1, v57", "v_and_b32 v58, 4, v56", "v_lshrrev_b32 v58, 1, v58",
            "v_and_b32 v59, 1, v56", "v_or3_b32 v57, v57, v58, v59", "v_and_b32 v58, 3, v32", "v_lshlrev_b32 v58, 1, v58", "v_xor_b32 v57, v57, v58",
            "v_lshlrev_b32 v57, 4, v57", "v_lshl_add_u32 v57, v56, 7, v57", f"s_add_u32 s{sT0}, s{sLB}, 8192", f"v_add_u32 v57, s{sT0}, v57", "v_xor_b32 v58, 16, v57")
        q.e(f"ds_write_b128 v57, {vr(224)}", f"ds_write_b128 v58, {vr(228)}", f"ds_write_b128 v57, {vr(232)} offset:{SLOT}", f"ds_write_b128 v58, {vr(236)} offset:{SLOT}")
        q.e("v_lshrrev_b32 v59, 2, v56", f"v_lshrrev_b32 v61, 5, v{vL}", "v_lshl_add_u32 v61, v61, 3, v59", "v_lshlrev_b32 v61, 7, v61",
            "v_and_b32 v62, 2, v59", "v_lshlrev_b32 v62, 1, v62", "v_and_b32 v59, 1, v59", "v_or_b32 v62, v62, v59", "v_lshlrev_b32 v62, 4, v62",
            "v_and_b32 v59, 3, v56", "v_lshlrev_b32 v59, 3, v59", f"v_and_b32 v63, 16, v{vL}", "v_lshlrev_b32 v63, 1, v63", "v_add_u32 v59, v59, v63",
            "v_xor_b32 v59, v59, v62", "v_add_u32 v61, v61, v59", f"v_add_u32 v44, s{sT0}, v61",
            f"v_xor_b32 v45, {512|32}, v44", "v_xor_b32 v46, 64, v44", "v_xor_b32 v47, 64, v45")
        q.e(f"s_lshr_b32 s{sT0}, s{sGL}, 1", f"s_lshl_b32 s{sT0}, s{sT0}, 3", f"s_and_b32 s{sT1}, s{sGL}, 1", f"s_lshl_b32 s{sT1}, s{sT1}, 1", f"s_add_u32 s{sT0}, s{sT0}, s{sT1}",
            f"s_add_u32 s{sT0}, s{sT0}, s{sWN}", f"s_add_u32 s{sT0}, s{sT0}, 56", f"s_lshl_b32 s{sT0}, s{sT0}, 11", f"s_add_u32 s{sT0}, s{sT0}, s{sHB}",
            f"s_add_u32 s{sT1}, s{sT0}, 8192")
        for part in range(2):
            for mu in range(2):
                for e in range(2):
                    d = 64 + 8 * part + 4 * mu + 2 * e
                    tr = q.e(f"ds_read_b64_tr_b16 {vr(d,2)}, v{44 + 2*mu + e} offset:{SLOT*part}")
        B += groups(q)
        g, last = self.dual([f"buffer_store_dwordx4 {vr(64+8*part+4*mu)}, v33, {srd(R_H)}, s{(sT0, sT1)[part]} offen offset:{1024*mu}" for part in range(2) for mu in range(2)])
        w = Seq(); w.wds(tr)
        B.append(list(w) + g)
        return A, B, last

    def phase2(self, q):
        c = self.c
        NR = c.nring; ak = c.akept
        ACC = (96, 160)
        sB0, sB1 = sROT, sU0
        q.e(f"s_lshl_b32 s{sT0}, s{sC}, 1", f"s_add_u32 s{sT0}, s{sT0}, s{sXB}", f"s_lshl_b32 s{sT0}, s{sT0}, 1", f"s_add_u32 s{sT0}, s{sT0}, s{sXB}",
            f"s_xor_b32 s{sT1}, s{sT0}, 1", f"s_mul_i32 s{sB0}, s{sT1}, {HBLK}", f"s_mul_i32 s{sB1}, s{sT0}, {HBLK}",
            f"s_mul_i32 s{sW2O}, s{sW}, {14*2048}", f"s_lshl_b32 s{sCO}, s{sW}, 14", f"s_add_u32 s{sCO}, s{sCO}, {56*2048}")
        steps = [(0, j) for j in range(14)] + [(1, j) for j in range(ak)] + [(0, j) for j in range(14, 22)] + [(1, j) for j in range(ak, 22)]
        first_ssm = 14 + ak; sent_done = first_ssm + 7
        ld = {}
        def issue(n):
            g = Seq()
            ps, j = steps[n]
            a = 176 + 8 * (n % NR)
            blk = (sB0, sB1)[ps]
            if j % 2 == 0:
                if j < 14: g.e(f"s_add_u32 s{sKW}, s{blk}, s{sW2O}", f"s_add_u32 s{sKW}, s{sKW}, {2048*j}")
                else: g.e(f"s_add_u32 s{sKW}, s{blk}, s{sCO}", f"s_add_u32 s{sKW}, s{sKW}, {2048*(j-14)}")
            o = 2048 * (j % 2)
            g.e(f"buffer_load_dwordx4 a[{a}:{a+3}], v33, {srd(R_H)}, s{sKW} offen offset:{o} {c.hld}")
            ld[n] = g.e(f"buffer_load_dwordx4 a[{a+4}:{a+7}], v33, {srd(R_H)}, s{sKW} offen offset:{o+1024} {c.hld}")
            return g
        assert ak % 2 == 0
        side = {}
        def add(n0, n1, G):
            for k, g in enumerate(G): side.setdefault(n0 + (k * (n1 - n0 + 1)) // len(G), []).append(g)
        A, B, ssm_last = self.ssm_part2()
        for n in range(NR): q.extend(issue(n))
        for g in A: q.e(*g)
        q.extend(self.w2_reads(3)); q.extend(self.w2_reads(4))
        gate = first_ssm - NR
        add(0, gate - 3, B)
        add(gate - 2, gate - 2, [self.flag_store(1, ssm_last)])
        fs = I(f"buffer_load_dword v56, v36, {srd(R_SY)}, s{sFB} offen offset:128 sc1", "vm")
        add(gate - 1, gate - 1, [[fs]])
        st = Seq(); self.stamp(st)
        gate_check = self.check("fs", [fs], [(56, f"s{sTAG}")]) + list(st)
        s = Seq()
        s.e(f"v_and_b32 v56, 31, v{vL}", f"v_lshrrev_b32 v57, 5, v{vL}", "v_and_b32 v58, 7, v56", "v_xor_b32 v58, v58, v57", "v_lshlrev_b32 v58, 4, v58",
            "v_lshl_add_u32 v58, v56, 8, v58", f"s_lshl_b32 s{sT0}, s{sW}, 14", f"v_add_u32 v26, s{sT0}, v58")
        for g4 in range(1, 4): s.e(f"v_xor_b32 v{26+g4}, {32*g4}, v26")
        s.e(f"v_lshrrev_b32 v20, 4, v{vL}", f"v_and_b32 v21, 15, v{vL}",
            "v_xor_b32 v58, v21, v20", "v_lshlrev_b32 v58, 4, v58", "v_lshl_add_u32 v58, v20, 8, v58", f"s_lshl_b32 s{sT0}, s{sW}, 12", f"v_add_u32 v30, s{sT0}, v58",
            f"v_xor_b32 v31, {1024|64}, v30")
        XV = 64
        for k in range(6): s.e(f"v_mov_b32 v{XV+4*k+3}, s{sTAG}")
        s.e(f"s_lshl_b32 s{sT0}, s{sC}, 4", f"s_add_u32 s{sT0}, s{sT0}, s{sG}", f"s_xor_b32 s{sT1}, s{sT0}, 8",
            f"s_lshl_b32 s{sT0}, s{sT0}, 2", f"s_add_u32 s{sT0}, s{sT0}, s{sW}", f"s_mul_i32 s{sT0}, s{sT0}, 6144", f"s_add_u32 s{sT0}, s{sT0}, {WS_XCH}",
            f"s_lshl_b32 s{sT1}, s{sT1}, 2", f"s_add_u32 s{sT1}, s{sT1}, s{sW}", f"s_mul_i32 s{sT1}, s{sT1}, 6144", f"s_add_u32 s{sT1}, s{sT1}, {WS_XCH}",
            f"s_add_u32 s{sT2}, s{sT0}, 4096", f"s_add_u32 s{sKX}, s{sT1}, 4096")
        s.wds_all(); s.e("s_barrier")
        add(gate + 1, gate + 4, groups(s))
        def red_write(s, ps):
            for nu in range(2):
                for mu in range(2):
                    for g4 in range(4):
                        s.e(f"ds_write_b128 v{26+g4}, {vr(ACC[ps] + 32*nu + 16*mu + 4*g4)} offset:{128*nu + 8192*mu}")
        def red_read(s, dst):
            return [s.e(f"ds_read_b128 {vr(dst + 16*ii + 4*src)}, v{30 + (ii&1)} offset:{2048*(ii>>1) + 16384*src}") for ii in range(4) for src in range(4)]
        s = Seq()
        red_write(s, 0)
        s.wds_all(); s.e("s_barrier")
        R = red_read(s, 96)
        for g4 in range(4): s.e(f"v_add_u32 v{26+g4}, 0x10000, v{26+g4}")
        for ii in range(4):
            s.wds(R[4 * ii + 3])
            for e in range(4):
                idx = 4 * ii + e; d = XV + (idx // 3) * 4 + idx % 3; s0 = 96 + 16 * ii + e
                s.e(f"v_add_f32 v{s0}, v{s0}, v{s0+4}", f"v_add_f32 v{d}, v{s0+8}, v{s0+12}", f"v_add_f32 v{d}, v{d}, v{s0}")
        s.e("v_add_u32 v30, 0x10000, v30", "v_add_u32 v31, 0x10000, v31")
        for k in range(6):
            s.e(f"buffer_store_dwordx4 {vr(XV+4*k)}, v33, {srd(R_SY)}, s{sT0 if k < 4 else sT2} offen offset:{1024*(k%4)} sc1")
        self.stamp(s)
        add(sent_done + 1, sent_done + 6, groups(s))
        q.wds_all()
        for n, (ps, j) in enumerate(steps):
            a = 176 + 8 * (n % NR)
            q.wvm(ld[n])
            sg = side.get(n, [])
            k = 0
            for nu in range(2):
                for mu in range(2):
                    d = ACC[ps] + 32 * nu + 16 * mu
                    q.e(f"v_mfma_f32_32x32x16_bf16 {vr(d,16)}, a[{8*j+4*nu}:{8*j+4*nu+3}], a[{a+4*mu}:{a+4*mu+3}], {'0' if j == 0 else vr(d,16)}")
                    for g in sg[(k * len(sg)) // 4:((k + 1) * len(sg)) // 4]: q.e(*g)
                    k += 1
            if n == gate: q.e(*gate_check)
            if n + NR < 44: q.extend(issue(n + NR))
        self.stamp(q)
        XR = 224
        xl = [q.e(f"buffer_load_dwordx4 {vr(XR+4*k)}, v33, {srd(R_SY)}, s{sT1 if k < 4 else sKX} offen offset:{1024*(k%4)} sc1") for k in range(6)]
        red_write(q, 1)
        q.wds_all(); q.e("s_barrier")
        R = red_read(q, 96)
        q.extend(self.check("xc", xl, [(XR + 4 * k + 3, f"s{sTAG}") for k in range(6)]))
        self.stamp(q)
        for ii in range(4):
            for e in range(4):
                idx = 4 * ii + e; xv = XR + (idx // 3) * 4 + idx % 3
                q.e(f"v_add_f32 v{BASE+idx}, v{xv}, v{BASE+idx}")
        for ii in range(4):
            q.wds(R[4 * ii + 3])
            s0 = 96 + 16 * ii
            for e in range(2):
                q.e(f"v_pk_add_f32 {vr(s0+2*e,2)}, {vr(s0+2*e,2)}, {vr(s0+4+2*e,2)}", f"v_pk_add_f32 {vr(s0+8+2*e,2)}, {vr(s0+8+2*e,2)}, {vr(s0+12+2*e,2)}")
            for e in range(2):
                q.e(f"v_pk_add_f32 {vr(s0+2*e,2)}, {vr(s0+2*e,2)}, {vr(BASE+4*ii+2*e,2)}")
            for e in range(2):
                q.e(f"v_pk_add_f32 {vr(s0+2*e,2)}, {vr(s0+2*e,2)}, {vr(s0+8+2*e,2)}")
            q.e(f"s_mov_b32 s{sT0}, {8192*ii}")
            q.e(f"buffer_store_dwordx4 {vr(s0)}, v19, {srd(R_OUT)}, s{sT0} offen")
        q.e(f"s_lshl_b32 s{sT0}, s{sG}, 2", f"s_or_b32 s{sT0}, s{sT0}, s{sW}", f"s_lshl_b32 s{sT0}, s{sT0}, 4", f"s_or_b32 s{sT0}, s{sT0}, s{sC}",
            f"s_cmp_eq_u32 s{sT0}, 15", "s_cbranch_scc0 L_nobump",
            f"v_mov_b32 v56, s{sTAG}", "v_mov_b32 v57, 0", "s_mov_b64 exec, 1")
        q.e(f"buffer_store_dword v56, v57, {srd(R_SY)}, 0 offen sc1")
        q.e("s_mov_b64 exec, -1")
        q.label("L_nobump")

    def write_ts(self, q):
        if not self.c.ts: return
        q.wds_all(); q.wvm_all()
        q.e("s_memtime s[46:47]", "s_memrealtime s[92:93]"); q.wds_all()
        q.e(f"s_lshl_b32 s{sT0}, s2, 2", f"s_add_u32 s{sT0}, s{sT0}, s{sW}", f"s_lshl_b32 s{sT0}, s{sT0}, 6", f"s_add_u32 s{sT0}, s{sT0}, {WS_TS}", "v_mov_b32 v2, 0")
        for k in range(self.nts + 2):
            if k == 0: q.e("v_mov_b32 v3, s0")
            elif k == self.nts + 1: q.e("s_sub_u32 s46, s46, s42", "v_mov_b32 v3, s46")
            else:
                r = TSREG[k - 1]; q.e(f"s_sub_u32 s{r}, s{r}, s42", f"v_mov_b32 v3, s{r}")
            q.e(f"buffer_store_dword v3, v2, {srd(R_SY)}, s{sT0} offen offset:{4*k}")
        q.e(f"s_lshl_b32 s{sT1}, s{sXCC}, 4", f"s_or_b32 s{sT1}, s{sT1}, s{sLOC}", f"v_mov_b32 v3, s{sT1}", f"buffer_store_dword v3, v2, {srd(R_SY)}, s{sT0} offen offset:56")
        q.e("v_mov_b32 v3, s92", f"buffer_store_dword v3, v2, {srd(R_SY)}, s{sT0} offen offset:60")
        q.wvm_all()

    def build(self):
        q = Seq()
        q.label("L_start")
        last = self.prologue(q)
        self.mainloop(q, last)
        self.transition(q)
        self.phase2(q)
        self.write_ts(q)
        q.label("L_end")
        q.e("s_endpgm")
        return finalize(q)

HDR = """; @launch grid=(256,1,1) block=(256,1,1) lds=163840
.amdgcn_target "amdgcn-amd-amdhsa--gfx950"
.text
.globl {n}_kernel
.p2align 8
.type {n}_kernel,@function
{n}_kernel:
"""
TAIL = """
.section .rodata,"a"
.p2align 6
.amdhsa_kernel {n}_kernel
  .amdhsa_next_free_vgpr 512
  .amdhsa_next_free_sgpr 102
  .amdhsa_accum_offset 256
  .amdhsa_group_segment_fixed_size 0
  .amdhsa_kernarg_size 120
  .amdhsa_user_sgpr_count 2
  .amdhsa_user_sgpr_kernarg_segment_ptr 1
  .amdhsa_system_sgpr_workgroup_id_x 1
.end_amdhsa_kernel
"""
def generate(cfg):
    g = Gen(cfg)
    body = g.build()
    return HDR.format(n=NAME) + "\n".join(("" if l.endswith(":") else "    ") + l for l in body) + TAIL.format(n=NAME), g

if __name__ == "__main__":
    cfg = Cfg()
    for a in sys.argv[2:]:
        k, v = a.split("="); setattr(cfg, k, eval(v))
    txt, g = generate(cfg)
    open(sys.argv[1], "w").write(txt)
```

```python
import sys, struct
from asmlib import *

NAME = "parallel_sum__ssm_conv_s5__dense_activation_relu__prompt"
def f2u(x): return struct.unpack("<I", struct.pack("<f", x))[0]
def fh(x): return hex(f2u(x))

WS_EPO  = 0
WS_FLAG = 16384
WS_STAT = 32768
WS_AGG  = 65536
WS_CS   = 262144
WS_XCH  = 1 << 20
WS_TS   = (7 << 20) + (1 << 19)
WS_H    = 8 << 20
HBLK = 88 * 2048
TAGK = 0x9E3779B9
OOB = 0x40000000

sCO, sW, sWM, sWN, sC, sG, sGL, sU0, sROT, sXB, sT0, sT1, sT2 = 3, 4, 5, 6, 7, 8, 9, 10, 11, 12, 13, 14, 15
P_X, P_LRE, P_LIM, P_BRE, P_BIM, P_CRE, P_CIM, P_LDT = 16, 18, 20, 22, 24, 26, 28, 30
P_DSK, P_W1, P_W2, P_OUT, P_DBG, P_WS = 32, 36, 38, 40, 42, 44
sHB, sFB = 34, 35
sM = 46
R_X, R_BS, R_W1A, R_W1B, R_H, R_H2, R_W2, R_CRE, R_CIM, R_OUT, R_SY = 48, 52, 56, 60, 64, 68, 72, 76, 80, 84, 88
sKX, sKW, sLB, sONES, sTAG, sPOLL, sLE, sW2O = 92, 93, 94, 95, 96, 97, 98, 99
sXCC, sLOC = 100, 101
TSREG = [16, 18, 20, 22, 24, 26, 28, 30, 36, 38, 40, 44]
sDBG = 32
def srd(r): return f"s[{r}:{r+3}]"

vL = 1
BASE = 2
ACC_S, ACC_F1, ACC_F2 = 64, 96, 128
FR = 160
RA, RS, RF = 200, 204, 208
vX, vB, vW = 224, 228, 230
CS = 232
vW2, vC2, vTR, vCR, vTA = 244, 245, 247, 248, 250
def vr(a, n=4): return f"v[{a}:{a+n-1}]"

SLOT = 40960; WBLK = 10240
L_EARLY = 122880
L_MISC = 155648
L_R = L_MISC; L_AGG = L_MISC + 1024; L_CS = L_MISC + 4096

class Cfg:
    ts = False
    force_remote = False
    akept = 6
    dbg = False
    hld = 'sc1'
    hst = ''
    nring = 10
    ts_stages = ()

def mk_srd(q, r, p, size, off=0):
    if off:
        q.e(f"s_add_u32 s{r}, s{p}, {off}", f"s_addc_u32 s{r+1}, s{p+1}, 0", f"s_and_b32 s{r+1}, s{r+1}, 0xffff")
    else:
        q.e(f"s_mov_b32 s{r}, s{p}", f"s_and_b32 s{r+1}, s{p+1}, 0xffff")
    q.e(f"s_mov_b32 s{r+2}, {size}", f"s_mov_b32 s{r+3}, 0x20000")

def groups(seq):
    G = []; cur = []
    for ins in seq:
        cur.append(ins)
        if ins.kind not in ("wvm", "wds", "wvm0", "wds0"):
            G.append(cur); cur = []
    if cur: G.append(cur)
    return G

class Gen:
    def __init__(self, cfg):
        self.c = cfg; self.nts = 0; self.w2_last = {}; self.nl = 0
    def stamp(self, q):
        if self.c.ts:
            r = TSREG[self.nts]
            q.e(f"s_memtime s[{r}:{r+1}]"); self.nts += 1

    def stage_dma(self, i):
        base = (i % 3) * SLOT
        G = []
        pre = [I(f"s_add_u32 s{sKW}, s{sROT}, {i}"), I(f"s_and_b32 s{sKW}, s{sKW}, 7"), I(f"s_lshl_b32 s{sKX}, s{sKW}, 7"), I(f"s_mul_i32 s{sKW}, s{sKW}, {64*3584}")]
        def ld(v, r, so, off): return I(f"buffer_load_dwordx4 v{v}, {srd(r)}, s{so} offen offset:{off} lds", "vm")
        def m0(o): return I(f"s_add_u32 m0, s{sLB}, {base + o}")
        G.append([m0(0)] + pre + [ld(vX, R_X, sKX, 0)])
        for j in range(1, 4): G.append([ld(vX + j, R_X, sKX, 1024 * j)])
        G.append([m0(4096), ld(vB, R_BS, sKX, 0)]); G.append([ld(vB + 1, R_BS, sKX, 1024)])
        G.append([m0(6144), ld(vW, R_W1A, sKW, 0)]); G.append([ld(vW + 1, R_W1A, sKW, 1024)])
        G.append([m0(8192), ld(vW, R_W1B, sKW, 0)]); G.append([ld(vW + 1, R_W1B, sKW, 1024)])
        return G, G[-1][-1]

    def frag_reads(self, n):
        i, p = divmod(n, 4); slot = i % 3
        hi = 12 if slot == 2 else 0; o = SLOT if slot == 1 else 0
        b = FR + 20 * (n & 1)
        S = I(f"ds_read_b128 {vr(b)}, v{RS+hi+p} offset:{o}", "ds")
        A0 = I(f"ds_read_b128 {vr(b+4)}, v{RA+hi+p} offset:{o}", "ds")
        A1 = I(f"ds_read_b128 {vr(b+8)}, v{RA+hi+p} offset:{o+WBLK}", "ds")
        F = [I(f"ds_read_b64_tr_b16 {vr(b+12+2*k, 2)}, v{RF+hi+p} offset:{o + (k>>1)*2048 + (k&1)*512}", "ds") for k in range(4)]
        return [S, A0, A1] + F

    def prologue(self, q):
        c = self.c
        q.e("s_cmp_ge_u32 s2, 256", "s_cbranch_scc1 L_end")
        q.e("s_load_dwordx16 s[16:31], s[0:1], 0", "s_load_dwordx4 s[36:39], s[0:1], 80", "s_load_dwordx2 s[44:45], s[0:1], 112",
            "s_load_dwordx2 s[32:33], s[0:1], 64", "s_load_dwordx2 s[40:41], s[0:1], 96")
        if c.ts: q.e("s_memtime s[42:43]", "s_memrealtime s[46:47]")
        q.e(f"v_and_b32 v{vL}, 63, v0", "v_lshrrev_b32 v2, 6, v0", f"v_readfirstlane_b32 s{sW}, v2")
        q.e(f"s_and_b32 s{sXB}, s2, 1", f"s_lshr_b32 s{sT0}, s2, 1", f"s_and_b32 s{sT0}, s{sT0}, 3",
            f"s_lshr_b32 s{sT1}, s2, 6",
            f"s_lshl_b32 s{sC}, s{sT0}, 2", f"s_add_u32 s{sC}, s{sC}, s{sT1}",
            f"s_lshr_b32 s{sGL}, s2, 3", f"s_and_b32 s{sGL}, s{sGL}, 7",
            f"s_lshl_b32 s{sG}, s{sXB}, 3", f"s_add_u32 s{sG}, s{sG}, s{sGL}")
        q.e(f"s_lshl_b32 s{sROT}, s{sT1}, 1", f"s_add_u32 s{sROT}, s{sROT}, s{sGL}")
        q.e(f"s_lshl_b32 s{sT0}, s{sGL}, 1", f"s_add_u32 s{sT1}, s{sGL}, 6", f"s_min_u32 s{sU0}, s{sT0}, s{sT1}",
            f"s_lshr_b32 s{sWM}, s{sW}, 1", f"s_and_b32 s{sWN}, s{sW}, 1", f"s_mul_i32 s{sLB}, s{sW}, {WBLK}",
            f"s_mov_b32 s{sONES}, 0x3f803f80", f"s_getreg_b32 s{sXCC}, hwreg(HW_REG_XCC_ID, 0, 4)")
        q.e(f"v_lshlrev_b32 v33, 4, v{vL}")
        q.e(f"v_lshrrev_b32 v2, 3, v{vL}", f"v_and_b32 v3, 7, v{vL}", f"v_lshrrev_b32 v4, 4, v{vL}")
        q.e("v_xor_b32 v5, v3, v4", "v_lshlrev_b32 v5, 4, v5", "v_xor_b32 v6, 64, v5")
        q.e(f"v_lshrrev_b32 v7, 5, v{vL}", "v_lshlrev_b32 v7, 4, v7", "v_and_b32 v8, 3, v2", "v_add_u32 v7, v7, v8",
            f"s_lshl_b32 s{sT0}, s{sC}, 7", f"s_lshl_b32 s{sT1}, s{sW}, 5", f"s_add_u32 s{sT0}, s{sT0}, s{sT1}",
            f"v_add_u32 v7, s{sT0}, v7", "v_lshlrev_b32 v7, 10, v7",
            f"v_add_u32 v{vX}, v7, v5", f"v_add_u32 v{vX+1}, v7, v6", f"v_add_u32 v{vX+1}, {3072}, v{vX+1}",
            f"v_add_u32 v{vX+2}, {6144}, v{vX}", f"v_add_u32 v{vX+3}, {6144}, v{vX+1}")
        q.e(f"s_lshl_b32 s{sT0}, s{sG}, 5", f"s_lshl_b32 s{sT1}, s{sWN}, 4", f"s_add_u32 s{sT0}, s{sT0}, s{sT1}",
            f"v_add_u32 v7, s{sT0}, v2", "v_lshlrev_b32 v7, 10, v7",
            f"v_add_u32 v{vB}, v7, v5", f"v_add_u32 v{vB+1}, v7, v6", f"v_add_u32 v{vB+1}, {7168}, v{vB+1}")
        q.e(f"v_and_b32 v11, 15, v{vL}", f"v_add_u32 v11, s{sT0}, v11", "v_lshlrev_b32 v11, 1, v11")
        q.e(f"s_lshl_b32 s{sT0}, s{sW}, 4", f"v_add_u32 v7, s{sT0}, v2", "v_mul_u32_u24 v7, 3584, v7",
            "v_and_b32 v8, 1, v4", "v_lshlrev_b32 v8, 2, v8", "v_xor_b32 v8, v8, v3", "v_lshlrev_b32 v8, 4, v8", "v_add_u32 v7, v7, v8",
            f"s_mul_i32 s{sT0}, s{sXB}, 14", f"s_add_u32 s{sT0}, s{sT0}, s{sU0}", f"s_lshl_b32 s{sT0}, s{sT0}, 7",
            f"v_add_u32 v{vW}, s{sT0}, v7", f"v_add_u32 v{vW+1}, {8*3584-1024}, v{vW}")
        q.e(f"s_lshl_b32 s{sT2}, s{sWM}, 6", f"s_lshl_b32 s{sT0}, s{sG}, 2", f"s_add_u32 s{sT2}, s{sT2}, s{sT0}", f"s_lshl_b32 s{sT0}, s{sWN}, 1",
            f"s_add_u32 s{sT2}, s{sT2}, s{sT0}", f"s_lshl_b32 s{sT0}, s{sC}, 7", f"s_add_u32 s{sT2}, s{sT2}, s{sT0}", f"s_lshl_b32 s{sHB}, s{sT2}, 10",
            "v_mov_b32 v15, 0")
        q.wds_all()
        if c.ts: q.e("v_mov_b32 v249, s46")
        mk_srd(q, R_X, P_X, 2048*1024)
        q.e(f"buffer_load_dwordx4 {vr(40)}, v33, {srd(R_X)}, s{sHB} offen", f"buffer_load_dwordx4 {vr(44)}, v33, {srd(R_X)}, s{sHB} offen offset:1024")
        small0 = q.e(f"global_load_dword v16, v15, s[{P_WS}:{P_WS+1}] sc1")
        q.e(f"global_load_ushort v12, v11, s[{P_LRE}:{P_LRE+1}]", f"global_load_ushort v13, v11, s[{P_LIM}:{P_LIM+1}]")
        small = q.e(f"global_load_ushort v14, v11, s[{P_LDT}:{P_LDT+1}]")
        q.e(f"s_cmp_eq_u32 s{sWM}, 0", f"s_cselect_b32 s{sT0}, s{P_BRE}, s{P_BIM}", f"s_cselect_b32 s{sT1}, s{P_BRE+1}, s{P_BIM+1}")
        mk_srd(q, R_BS, sT0, 512*1024)
        mk_srd(q, R_W1A, P_W1, 512*3584)
        mk_srd(q, R_W1B, P_W1, 512*3584 - 128, 128)
        q.e(f"s_cmp_lt_u32 s{sGL}, 6", f"s_cselect_b32 s{R_W1B+2}, s{R_W1B+2}, 0")
        q.e("s_getpc_b64 s[46:47]", "L_pc:", "s_sub_u32 s46, s46, L_pc-L_start", "s_subb_u32 s47, s47, 0")
        q.e(f"s_lshr_b32 s{sT0}, s2, 3", f"s_lshl_b32 s{sT0}, s{sT0}, 2", f"s_add_u32 s{sT0}, s{sT0}, s{sW}", f"s_lshl_b32 s{sT0}, s{sT0}, 8",
            f"v_lshlrev_b32 v9, 2, v{vL}", f"v_add_u32 v9, s{sT0}, v9", "v_min_u32 v9, L_end-L_start, v9")
        q.e("global_load_dword v10, v9, s[46:47]")
        last = []
        G, l = self.stage_dma(0); [q.e(*g) for g in G]; last.append(l)
        mk_srd(q, R_SY, P_WS, WS_H)
        mk_srd(q, R_H, P_WS, 64*HBLK, WS_H)
        mk_srd(q, R_H2, P_WS, 64*HBLK, WS_H)
        q.e(f"s_cmp_lt_u32 s{sGL}, 6", f"s_cselect_b32 s{R_H2+2}, s{R_H2+2}, 0")
        mk_srd(q, R_W2, P_W2, 1792*1024); mk_srd(q, R_CRE, P_CRE, 512*1024); mk_srd(q, R_CIM, P_CIM, 512*1024); mk_srd(q, R_OUT, P_OUT, 2048*2048)
        q.e(f"v_and_b32 v2, 31, v{vL}", f"v_lshrrev_b32 v3, 5, v{vL}")
        q.e("v_lshrrev_b32 v4, 1, v2", "v_and_b32 v4, 7, v4", "v_xor_b32 v4, v4, v3", "v_lshlrev_b32 v4, 4, v4",
            "v_lshlrev_b32 v5, 7, v2", f"v_add_u32 v{vCR}, v5, v4",
            f"s_lshl_b32 s{sT1}, s{sWM}, 5", f"v_xor_b32 v4, s{sT1}, v4")
        q.e(f"s_mul_i32 s{sT1}, s{sWM}, {2*WBLK}", f"v_add_u32 v5, s{sT1}, v5")
        q.e("v_and_b32 v6, 15, v2", "v_lshlrev_b32 v6, 7, v6", "v_lshrrev_b32 v7, 4, v2", f"v_mul_u32_u24 v7, {2*WBLK}, v7", "v_add_u32 v6, v6, v7",
            f"s_mul_i32 s{sT1}, s{sWN}, {WBLK}", f"s_add_u32 s{sT1}, s{sT1}, 4096", f"v_add_u32 v6, s{sT1}, v6")
        for p in range(4):
            q.e(f"v_xor_b32 v7, {32*p}, v4", f"v_add_u32 v{RA+p}, v5, v7", f"v_add_u32 v{RS+p}, v6, v7")
        q.e(f"v_and_b32 v4, 15, v{vL}", "v_lshrrev_b32 v5, 2, v4", "v_lshlrev_b32 v5, 7, v5",
            "v_and_b32 v6, 3, v4", "v_lshlrev_b32 v6, 3, v6",
            f"v_and_b32 v7, 16, v{vL}", "v_lshlrev_b32 v7, 1, v7", "v_add_u32 v6, v6, v7",
            "v_and_b32 v7, 8, v4", "v_lshlrev_b32 v7, 3, v7", "v_add3_u32 v5, v5, v6, v7",
            f"v_lshl_add_u32 v{vTR}, v3, 9, v5",
            "v_lshl_add_u32 v5, v3, 10, v5", f"s_lshl_b32 s{sT1}, s{sWN}, 6", f"v_xor_b32 v5, s{sT1}, v5")
        for p in range(4):
            q.e(f"s_xor_b32 s{sT1}, s{sWM}, {p}", f"s_mul_i32 s{sT1}, s{sT1}, {WBLK}", f"s_add_u32 s{sT1}, s{sT1}, 6144", f"v_add_u32 v{RF+p}, s{sT1}, v5")
        for k in range(12): q.e(f"v_add_u32 v{RA+12+k}, {2*SLOT}, v{RA+k}")
        for k in range(3): q.e(f"v_mov_b32 v{CS+k}, 0")
        for k in range(4): q.e(f"v_mov_b32 v{48+k}, 0")
        q.wvm(small0)
        q.e(f"v_readfirstlane_b32 s{sTAG}, v16", f"s_add_u32 s{sTAG}, s{sTAG}, {hex(TAGK)}")
        for r in range(4):
            q.e(f"v_dot2c_f32_bf16 v48, s{sONES}, v{40+r}", f"v_dot2c_f32_bf16 v49, s{sONES}, v{44+r}",
                f"v_dot2c_f32_bf16 v50, v{40+r}, v{40+r}", f"v_dot2c_f32_bf16 v51, v{44+r}, v{44+r}")
        q.e("v_permlane32_swap_b32 v48, v49", "v_permlane32_swap_b32 v50, v51", "v_add_f32 v48, v48, v49", "v_add_f32 v50, v50, v51",
            "v_permlane16_swap_b32 v48, v50", "v_add_f32 v48, v48, v50")
        for k in (8, 4, 2, 1): q.e(f"v_add_f32_dpp v48, v48, v48 row_ror:{k} row_mask:0xf bank_mask:0xf")
        q.e("v_mov_b32 v49, v48", "v_permlane16_swap_b32 v48, v49",
            f"v_mul_f32 v48, {fh(1/512)}, v48", f"v_mul_f32 v49, {fh(1/512)}, v49", "v_fma_f32 v49, -v48, v48, v49", "v_max_f32 v49, 0, v49",
            "v_cvt_pk_bf16_f32 v49, v49, v49", "v_lshlrev_b32 v49, 16, v49", f"v_add_f32 v49, {fh(1e-5)}, v49",
            "v_cvt_pk_bf16_f32 v49, v49, v49", "v_lshlrev_b32 v49, 16, v49", "v_sqrt_f32 v49, v49",
            "v_cvt_pk_bf16_f32 v41, -v48, -v48", f"v_mov_b32 v42, s{sTAG}",
            "v_cvt_pk_bf16_f32 v49, v49, v49", "v_lshlrev_b32 v49, 16, v49", "v_rcp_f32 v40, v49", f"v_mov_b32 v43, s{sXCC}",
            "v_lshlrev_b32 v44, 4, v3", f"v_mov_b32 v45, {OOB}", "v_cmp_eq_u32 vcc, 0, v2", "v_cndmask_b32 v44, v45, v44, vcc",
            f"s_lshl_b32 s{sT2}, s{sT2}, 4", f"s_add_u32 s{sT2}, s{sT2}, {WS_STAT}")
        q.e(f"buffer_store_dwordx4 {vr(40)}, v44, {srd(R_SY)}, s{sT2} offen sc1")
        side = Seq()
        self.p2_consts(side)
        side.wvm(small)
        self.ssm_consts(side)
        G, l = self.stage_dma(1); last.append(l)
        q.extend(merge(side, G))
        return last

    def ssm_consts(self, q):
        q.e("v_lshlrev_b32 v12, 16, v12", "v_lshlrev_b32 v13, 16, v13", "v_lshlrev_b32 v14, 16, v14",
            f"v_mul_f32 v14, {fh(1.4426950408889634)}, v14", "v_exp_f32 v14, v14", "v_cvt_pk_bf16_f32 v14, v14, v14", "v_lshlrev_b32 v14, 16, v14",
            "v_mul_f32 v17, v14, v12", "v_mul_f32 v16, v14, v13",
            f"v_mul_f32 v17, {fh(1.4426950408889634)}, v17", f"v_mul_f32 v16, {fh(0.15915494309189535)}, v16")
        q.e(f"v_lshrrev_b32 v2, 4, v{vL}", "v_and_b32 v3, 1, v2", "v_lshlrev_b32 v3, 1, v3", "v_lshrrev_b32 v4, 1, v2", "v_add_u32 v3, v3, v4",
            f"s_lshl_b32 s{sT0}, s{sWM}, 2", f"v_add_u32 v32, s{sT0}, v3",
            "v_lshlrev_b32 v3, 4, v32", "v_cvt_f32_u32 v3, v3", "v_sub_u32 v4, 3, v2", "v_lshlrev_b32 v4, 9, v4", "v_cvt_f32_u32 v4, v4")
        def cexp(d, n):
            q.e(f"v_mul_f32 v5, {n}, v17", f"v_mul_f32 v6, {n}, v16", "v_exp_f32 v5, v5", "v_fract_f32 v6, v6", f"v_cos_f32 v{d}, v6", f"v_sin_f32 v{d+1}, v6",
                f"v_mul_f32 v{d}, v{d}, v5", f"v_mul_f32 v{d+1}, v{d+1}, v5")
        cexp(20, "1.0"); cexp(22, fh(16.0)); cexp(24, fh(128.0)); cexp(26, "v3"); cexp(28, "v4")
        q.e("v_add_f32 v5, -1.0, v20", "v_mul_f32 v6, v12, v12", "v_fmac_f32 v6, v13, v13", "v_rcp_f32 v6, v6",
            "v_mul_f32 v30, v5, v12", "v_fmac_f32 v30, v21, v13", "v_mul_f32 v31, v21, v12", "v_fma_f32 v31, -v5, v13, v31",
            "v_add_f32 v6, v6, v6", "v_mul_f32 v30, v30, v6", "v_mul_f32 v31, v31, v6")

    def p2_consts(self, q):
        q.e(f"s_lshl_b32 s{sLE}, s{sW}, 13", f"s_add_u32 s{sLE}, s{sLE}, {L_EARLY}")
        q.e(f"s_mul_i32 s{sW2O}, s{sXB}, 896", f"s_mul_i32 s{sT1}, s{sW}, 224", f"s_add_u32 s{sW2O}, s{sW2O}, s{sT1}", f"s_lshl_b32 s{sW2O}, s{sW2O}, 10")
        q.e(f"s_lshl_b32 s{sCO}, s{sXB}, 2", f"s_add_u32 s{sCO}, s{sCO}, s{sW}", f"s_lshl_b32 s{sCO}, s{sCO}, 7",
            f"s_lshl_b32 s{sT1}, s{sGL}, 16", f"s_add_u32 s{sCO}, s{sCO}, s{sT1}")
        q.e(f"v_lshrrev_b32 v2, 3, v{vL}", f"v_and_b32 v3, 7, v{vL}", f"v_lshrrev_b32 v4, 4, v{vL}", "v_lshlrev_b32 v2, 10, v2",
            "v_xor_b32 v5, v3, v4", "v_lshlrev_b32 v5, 4, v5", f"v_add_u32 v{vC2}, v2, v5", f"v_xor_b32 v{vC2+1}, 64, v{vC2}",
            "v_and_b32 v5, 1, v4", "v_lshlrev_b32 v5, 2, v5", "v_xor_b32 v5, v5, v3", "v_lshlrev_b32 v5, 4, v5", "v_add_u32 v5, v5, v2",
            f"s_lshl_b32 s{sT1}, s{sGL}, 7", f"v_add_u32 v{vW2}, s{sT1}, v5")
        q.e(f"s_lshl_b32 s{sFB}, s{sC}, 1", f"s_add_u32 s{sFB}, s{sFB}, s{sXB}",
            f"s_lshl_b32 s{sHB}, s{sFB}, 1", f"s_add_u32 s{sHB}, s{sHB}, s{sWM}", f"s_mul_i32 s{sHB}, s{sHB}, {HBLK}",
            f"s_lshl_b32 s{sFB}, s{sFB}, 8", f"s_add_u32 s{sFB}, s{sFB}, {WS_FLAG}")
        q.e(f"v_and_b32 v38, 4, v{vL}", "v_lshlrev_b32 v38, 2, v38", f"v_and_b32 v39, 24, v{vL}", "v_lshrrev_b32 v39, 1, v39",
            f"v_and_b32 v37, 35, v{vL}", "v_add3_u32 v37, v37, v38, v39", "v_lshlrev_b32 v37, 4, v37")
        q.e(f"v_and_b32 v5, 15, v{vL}",
            f"s_lshl_b32 s{sT0}, s{sXB}, 6", f"s_lshl_b32 s{sT1}, s{sW}, 4", f"s_add_u32 s{sT0}, s{sT0}, s{sT1}", f"v_add_u32 v6, s{sT0}, v4",
            f"v_lshlrev_b32 v34, 2, v6", f"v_add_u32 v34, {L_R}, v34",
            f"s_lshl_b32 s{sT0}, s{sC}, 7", f"v_add_u32 v6, s{sT0}, v6",
            f"s_lshl_b32 s{sT0}, s{sGL}, 7", "v_lshlrev_b32 v35, 3, v5", f"v_add_u32 v35, s{sT0}, v35",
            "v_lshl_add_u32 v18, v6, 10, v35", "v_lshlrev_b32 v19, 1, v18")

    def check(self, name, loads, checks, extra=None):
        q = Seq()
        def chk():
            for k, (r, ex) in enumerate(checks):
                if k == 0: q.e(f"v_cmp_ne_u32 s[{sM}:{sM+1}], {ex}, v{r}")
                else: q.e(f"v_cmp_ne_u32 vcc, {ex}, v{r}", f"s_or_b64 s[{sM}:{sM+1}], s[{sM}:{sM+1}], vcc")
            q.e(f"s_cmp_eq_u64 s[{sM}:{sM+1}], 0", f"s_cbranch_scc1 L_{name}_ok")
        q.wvm(loads[-1])
        q.e(f"s_mov_b32 s{sPOLL}, 0x40000")
        q.label(f"L_{name}")
        chk()
        q.e("s_sleep 1")
        for l in loads: q.append(I(l.t, "o"))
        q.e("s_waitcnt vmcnt(0)", f"s_sub_u32 s{sPOLL}, s{sPOLL}, 1", f"s_cbranch_scc0 L_{name}")
        q.label(f"L_{name}_ok")
        return list(q)

    def dual(self, stores):
        self.nl += 1; n = self.nl
        g = [I(f"s_cmp_lg_u32 s{sLOC}, 0"), I(f"s_cbranch_scc1 L_dp{n}")]
        g += [I(t + " sc1", "o") for t in stores]
        g += [I(f"s_branch L_de{n}"), I(f"L_dp{n}:", "label")]
        real = [I(t + " " + self.c.hst, "vm") for t in stores]
        g += real + [I(f"L_de{n}:", "label")]
        return g, real[-1]

    def mainloop(self, q, last):
        c = self.c
        q.wvm(last[0]); q.e("s_barrier"); self.stamp(q)
        rd = self.frag_reads(0); q.e(*rd)
        G, l = self.stage_dma(2); pend = G; last.append(l)
        side = {}
        def add(n0, n1, G):
            for k, g in enumerate(G): side.setdefault(n0 + (k * (n1 - n0 + 1)) // len(G), []).append(g)
        s = Seq()
        s.e(f"s_xor_b32 s{sT0}, s{sW}, 2", f"s_lshl_b32 s{sT0}, s{sT0}, 10", f"s_add_u32 s{sT0}, s{sT0}, {L_CS}", f"v_add_u32 v40, s{sT0}, v33")
        r = s.e(f"ds_read_b128 {vr(44)}, v40")
        s.e(f"v_mov_b32 v{CS+3}, s{sTAG}", f"v_mov_b32 v41, {OOB}", f"v_cmp_gt_u32 vcc, 32, v{vL}", "v_cndmask_b32 v41, v41, v33, vcc",
            f"s_lshl_b32 s{sT0}, s{sC}, 4", f"s_add_u32 s{sT0}, s{sT0}, s{sG}", f"s_lshl_b32 s{sT0}, s{sT0}, 1", f"s_add_u32 s{sT0}, s{sT0}, s{sWN}",
            f"s_lshl_b32 s{sT0}, s{sT0}, 9", f"s_add_u32 s{sT0}, s{sT0}, {WS_CS}", f"s_mul_i32 s{sT1}, s{sWM}, {OOB}", f"v_add_u32 v41, s{sT1}, v41")
        s.wds(r)
        for t in range(3): s.e(f"v_add_f32 v{CS+t}, v{CS+t}, v{44+t}")
        for t in range(3): s.e(f"v_mov_b32 v{44+t}, v{CS+t}")
        for t in range(3): s.e(f"v_permlane32_swap_b32 v{CS+t}, v{44+t}")
        for t in range(3): s.e(f"v_add_f32 v{CS+t}, v{CS+t}, v{44+t}")
        s.e(f"buffer_store_dwordx4 {vr(CS)}, v41, {srd(R_SY)}, s{sT0} offen sc1")
        add(7, 9, groups(s))
        s = Seq()
        s.e(f"s_lshl_b32 s{sT0}, s{sC}, 1", f"s_add_u32 s{sT0}, s{sT0}, s{sWM}", f"s_lshl_b32 s{sT0}, s{sT0}, 10", f"s_add_u32 s{sT0}, s{sT0}, {WS_STAT}",
            f"s_and_b32 s{sT1}, s{sC}, 12", f"s_lshl_b32 s{sT1}, s{sT1}, 4", f"s_add_u32 s{sT1}, s{sT1}, s{sG}", f"s_lshl_b32 s{sT1}, s{sT1}, 1", f"s_add_u32 s{sT1}, s{sT1}, s{sWN}",
            f"s_lshl_b32 s{sT1}, s{sT1}, 9", f"s_add_u32 s{sT1}, s{sT1}, {WS_CS}", f"s_add_u32 s{sT2}, s{sT1}, 32768",
            f"v_and_b32 v52, 31, v{vL}", f"v_lshrrev_b32 v53, 5, v{vL}", "v_lshlrev_b32 v53, 14, v53", "v_lshl_add_u32 v52, v52, 4, v53")
        gl_ = [s.e(f"buffer_load_dwordx4 {vr(40)}, v37, {srd(R_SY)}, s{sT0} offen sc1"),
               s.e(f"buffer_load_dwordx4 {vr(44)}, v52, {srd(R_SY)}, s{sT1} offen sc1"),
               s.e(f"buffer_load_dwordx4 {vr(48)}, v52, {srd(R_SY)}, s{sT2} offen sc1")]
        add(17, 19, groups(s))
        G = [self.check("ga", gl_, [(42, f"s{sTAG}"), (47, f"s{sTAG}"), (51, f"s{sTAG}")])]
        s = Seq()
        s.e(f"v_cmp_ne_u32 vcc, s{sXCC}, v43", f"s_cmp_eq_u32 s{sXB}, 0", f"s_cselect_b32 s{sT0}, vcc_lo, vcc_hi", f"s_cmp_eq_u32 s{sT0}, 0",
            f"s_cselect_b32 s{sLOC}, {0 if c.force_remote else 1}, 0")
        g0 = list(s); s = Seq()
        s.e("v_lshrrev_b32 v52, 2, v37", f"s_lshl_b32 s{sT0}, s{sWM}, 8", f"s_add_u32 s{sT0}, s{sT0}, {L_R}", f"v_add_u32 v52, s{sT0}, v52",
            "v_and_b32 v53, 0xffff0000, v41")
        s.e("ds_write2_b32 v52, v40, v53 offset0:0 offset1:128")
        s.e("v_mov_b32 v56, v41", "v_mov_b32 v58, v41", "v_mov_b32 v42, v40", "v_mov_b32 v43, v40",
            "v_permlane32_swap_b32 v56, v58", "v_permlane32_swap_b32 v42, v43", "v_mov_b32 v57, v56", "v_mov_b32 v59, v58",
            f"s_mov_b32 s{sT0}, 0x07060302")
        for t in range(3):
            d = 236 + 2 * t
            s.e(f"v_add_f32 v{44+t}, v{44+t}, v{48+t}", f"v_and_b32 v54, 0xffff0000, v{44+t}", f"v_sub_f32 v54, v{44+t}, v54",
                f"v_perm_b32 v{d}, v54, v{44+t}, s{sT0}", "v_and_b32 v55, 0xffff0000, v54", "v_sub_f32 v55, v54, v55", f"v_cvt_pk_bf16_f32 v{d+1}, v55, 0")
        add(24, 27, G + [g0] + groups(s))
        s = Seq()
        self.xl = []
        for ii in range(4):
            s.e(f"s_mov_b32 s{sPOLL}, {4096*ii}")
            self.xl.append(s.e(f"buffer_load_dwordx2 {vr(2+4*ii,2)}, v18, {srd(R_X)}, s{sPOLL} offen"))
        self.xl.append(s.e(f"global_load_dwordx2 {vr(38,2)}, v35, s[{P_DSK}:{P_DSK+1}]"))
        gg = groups(s); gg = [gg[2*k] + gg[2*k+1] for k in range(4)] + [gg[8]]
        add(20, 23, gg)
        MF = "v_mfma_f32_32x32x8_bf16"
        for n in range(32):
            i, p = divmod(n, 4)
            b = FR + 20 * (n & 1)
            nxt = None
            if p == 3 and i < 7:
                assert not pend or i >= 5
                q.wds_all(); q.wvm(last[i + 1]); q.e("s_barrier")
                if c.ts and i in c.ts_stages: self.stamp(q)
                if i + 3 < 8:
                    G, l = self.stage_dma(i + 3); pend += G; last.append(l)
                elif i == 5: pend += self.w2_dma(0) + self.w2_dma(1)[:4]
                elif i == 6: pend += self.w2_rest + self.w2_dma(2)
            if n < 31: nxt = self.frag_reads(n + 1)
            z = lambda a: ("0" if n == 0 else vr(a, 16))
            M = [(f"v_mfma_f32_32x32x16_bf16 {vr(ACC_S,16)}, {vr(b+4)}, {vr(b)}, {z(ACC_S)}", rd[1]),
                 (f"v_mfma_f32_32x32x16_bf16 {vr(ACC_S+16,16)}, {vr(b+8)}, {vr(b)}, {z(ACC_S+16)}", rd[2]),
                 (f"v_mfma_f32_32x32x16_bf16 {vr(ACC_F1,16)}, {vr(b+12)}, {vr(b+4)}, {z(ACC_F1)}", rd[4]),
                 (f"v_mfma_f32_32x32x16_bf16 {vr(ACC_F1+16,16)}, {vr(b+12)}, {vr(b+8)}, {z(ACC_F1+16)}", rd[4]),
                 (f"v_mfma_f32_32x32x16_bf16 {vr(ACC_F2,16)}, {vr(b+16)}, {vr(b+4)}, {z(ACC_F2)}", rd[6]),
                 (f"v_mfma_f32_32x32x16_bf16 {vr(ACC_F2+16,16)}, {vr(b+16)}, {vr(b+8)}, {z(ACC_F2+16)}", rd[6])]
            sched = [2, 1, 2, 2, 0, 0]
            slots = (0, 1, 3, 5) if n < 3 else (1, 3, 5)
            sg = side.get(n, [])
            k = 0
            for j, (m, dep) in enumerate(M):
                q.wds(dep); q.e(m)
                if nxt:
                    q.e(*nxt[k:k + sched[j]]); k += sched[j]
                if pend and j in slots: q.e(*pend.pop(0))
                for g in sg[(j * len(sg)) // 6:((j + 1) * len(sg)) // 6]: q.e(*g)
            if n < 8 and p in (0, 2):
                for r in range(4):
                    for t, o in enumerate((0, 12, 16)):
                        q.e(f"v_dot2c_f32_bf16 v{CS+t}, s{sONES}, v{b+o+r}")
            if n == 6:
                q.e(f"s_lshl_b32 s{sT0}, s{sW}, 10", f"s_add_u32 s{sT0}, s{sT0}, {L_CS}", f"v_add_u32 v40, s{sT0}, v33", f"ds_write_b128 v40, {vr(CS)}")
            if n == 28:
                for t in range(2): q.e(f"{MF} {vr(ACC_S+16*t,16)}, {vr(56+2*t,2)}, {vr(236,2)}, {vr(ACC_S+16*t,16)}")
                for u, a in ((1, ACC_F1), (2, ACC_F2)):
                    for t in range(2): q.e(f"{MF} {vr(a+16*t,16)}, {vr(236+2*u,2)}, {vr(56+2*t,2)}, {vr(a+16*t,16)}")
                q.e("v_lshlrev_b32 v60, 6, v32", f"v_add_u32 v60, {L_R}, v60")
            if n == 29:
                self.rv = [q.e(f"ds_read_b128 {vr(44+4*k)}, v60 offset:{16*k}") for k in range(4)]
            rd = nxt
        assert not pend
        self.stamp(q)

    W2AREA = {0: "E", 1: 2, 2: 0, 3: 1, 4: "E", 5: 2}
    def w2_dma(self, pc):
        area = self.W2AREA[pc]
        G = []
        n = 4 if pc == 5 else 8
        ffn = pc in (0, 1, 2, 5)
        for k in range(n):
            g = []
            if k % 4 == 0:
                if area == "E": g.append(I(f"s_add_u32 m0, s{sLE}, {1024*k}"))
                else: g.append(I(f"s_add_u32 m0, s{sLB}, {area*SLOT + 1024*k}"))
            j = k % 4
            if ffn:
                row = {0: 0, 1: 64, 2: 128, 5: 192}[pc] + 8 * k
                g.append(I(f"s_add_u32 s{sKW}, s{sW2O}, {row*1024 - 1024*j}"))
                g.append(I(f"buffer_load_dwordx4 v{vW2}, {srd(R_W2)}, s{sKW} offen offset:{1024*j} lds", "vm"))
            else:
                g.append(I(f"s_add_u32 s{sKW}, s{sCO}, {8*k*1024 - 1024*j}"))
                g.append(I(f"buffer_load_dwordx4 v{vC2 + (k&1)}, {srd(R_CRE if pc == 3 else R_CIM)}, s{sKW} offen offset:{1024*j} lds", "vm"))
            G.append(g)
        self.w2_last[pc] = G[-1][-1]
        if pc == 1: self.w2_rest = G[4:]
        return G

    def w2_reads(self, pc):
        area = self.W2AREA[pc]
        L = Seq()
        sb = sLE if area == "E" else sLB
        ao = 0 if area == "E" else area * SLOT
        L.e(f"s_add_u32 s{sKX}, s{sb}, {ao}")
        if pc in (0, 1, 2, 5):
            L.e(f"v_add_u32 v{vTA}, s{sKX}, v{vTR}", f"v_xor_b32 v{vTA+1}, 64, v{vTA}")
            L.wvm(self.w2_last[pc])
            j0 = {0: 0, 1: 4, 2: 8, 5: 12}[pc]
            for k in range(2 if pc == 5 else 4):
                for nu in range(2):
                    for e in range(2):
                        a = 8 * (j0 + k) + 4 * nu + 2 * e
                        L.e(f"ds_read_b64_tr_b16 a[{a}:{a+1}], v{vTA+nu} offset:{2048*k + 1024*e}")
        else:
            L.e(f"v_add_u32 v{vTA}, s{sKX}, v{vCR}")
            for k in range(1, 4): L.e(f"v_xor_b32 v{vTA+k}, {32*k}, v{vTA}")
            L.wvm(self.w2_last[pc])
            j0 = 14 if pc == 3 else 18
            for k in range(4):
                for nu in range(2):
                    a = 8 * (j0 + k) + 4 * nu
                    L.e(f"ds_read_b128 a[{a}:{a+3}], v{vTA+k} offset:{4096*nu}")
        return L

    def cmul_acc(self, q, d, a, b, c):
        q.e(f"v_fma_f32 v{d}, v{a}, v{b}, v{c}", f"v_fma_f32 v{d+1}, v{a}, v{b+1}, v{c+1}",
            f"v_fma_f32 v{d}, -v{a+1}, v{b+1}, v{d}", f"v_fma_f32 v{d+1}, v{a+1}, v{b}, v{d+1}")
    def cmul(self, q, d, a, b):
        q.e(f"v_mul_f32 v{d}, v{a}, v{b}", f"v_mul_f32 v{d+1}, v{a}, v{b+1}",
            f"v_fma_f32 v{d}, -v{a+1}, v{b+1}, v{d}", f"v_fma_f32 v{d+1}, v{a+1}, v{b}, v{d+1}")

    def flag_store(self, kind, after):
        q = Seq()
        q.e(f"s_lshl_b32 s{sT2}, s{sGL}, 2", f"s_add_u32 s{sT2}, s{sT2}, s{sW}", f"s_lshl_b32 s{sT2}, s{sT2}, 2", f"s_add_u32 s{sT2}, s{sT2}, s{sFB}",
            f"v_mov_b32 v254, s{sTAG}", f"v_mov_b32 v255, 0")
        q.wvm(after)
        q.e("s_mov_b64 exec, 1")
        g, _ = self.dual([f"buffer_store_dword v254, v255, {srd(R_SY)}, s{sT2} offen offset:{128*kind}"])
        q.extend(g)
        q.e("s_mov_b64 exec, -1")
        return list(q)

    def transition(self, q):
        c = self.c
        RE, IM = ACC_S, ACC_S + 16
        for i in range(16): q.e(f"v_permlane16_swap_b32 v{RE+i}, v{IM+i}")
        q.wds(self.rv[-1])
        for j in range(8):
            q.e(f"v_pk_mul_f32 {vr(RE+2*j,2)}, {vr(RE+2*j,2)}, {vr(44+2*j,2)}", f"v_pk_mul_f32 {vr(IM+2*j,2)}, {vr(IM+2*j,2)}, {vr(44+2*j,2)}")
        cr, ci = RE, IM
        for i in range(1, 16):
            d = 56 + 2 * (i & 1)
            q.e(f"v_fma_f32 v{d}, v20, v{cr}, v{RE+i}", f"v_fma_f32 v{d+1}, v20, v{ci}, v{IM+i}",
                f"v_fma_f32 v{d}, -v21, v{ci}, v{d}", f"v_fma_f32 v{d+1}, v21, v{cr}, v{d+1}")
            cr, ci = d, d + 1
            if i == 4:
                q.e(f"v_and_b32 v60, 15, v{vL}", f"s_lshl_b32 s{sT0}, s{sWN}, 4", f"v_add_u32 v60, s{sT0}, v60",
                    "v_lshlrev_b32 v61, 6, v60", f"v_add_u32 v61, {L_AGG}, v61", "v_lshl_add_u32 v62, v32, 3, v61")
        q.e(f"ds_write_b64 v62, {vr(cr,2)}")
        q.e("v_mov_b32 v40, 0", "v_mov_b32 v41, 0")
        q.e("v_lshlrev_b32 v60, 4, v60", "v_cmp_eq_u32 vcc, 0, v32", f"v_mov_b32 v63, {OOB}", "v_cndmask_b32 v63, v63, v60, vcc",
            f"s_lshl_b32 s{sT0}, s{sG}, 4", f"s_add_u32 s{sT0}, s{sT0}, s{sC}", f"s_lshl_b32 s{sT0}, s{sT0}, 9", f"s_add_u32 s{sT0}, s{sT0}, {WS_AGG}",
            f"v_mov_b32 v190, s{sTAG}", f"v_mov_b32 v191, s{sTAG}")
        q.wds_all(); q.e("s_barrier")
        ag = [q.e(f"ds_read_b128 {vr(168+4*k)}, v61 offset:{16*k}") for k in range(4)]
        mr = [q.e(f"ds_read2_b32 {vr(44+2*ii,2)}, v34 offset0:{4*ii} offset1:{128+4*ii}") for ii in range(4)]
        P = 168
        for j in range(1, 8):
            q.wds(ag[j // 2])
            q.e(f"v_cmp_eq_u32 vcc, {j}, v32")
            d = 188 if j == 7 else (186 if P != 186 else 56)
            self.cmul_acc(q, d, 22, P, 168 + 2 * j)
            q.e(f"v_cndmask_b32 v40, v40, v{P}, vcc", f"v_cndmask_b32 v41, v41, v{P+1}, vcc")
            P = d
        q.e(f"buffer_store_dwordx4 {vr(188)}, v63, {srd(R_SY)}, s{sT0} offen sc1")
        self.stamp(q)
        q.e(f"s_lshl_b32 s{sT0}, s{sU0}, 13", f"s_lshl_b32 s{sT1}, s{sWN}, 12", f"s_add_u32 s{sT0}, s{sT0}, s{sT1}", f"s_add_u32 s{sT0}, s{sT0}, s{sHB}",
            f"s_add_u32 s{sT1}, s{sT0}, 8192")
        k = 0
        w0 = groups(self.w2_reads(0)) + groups(self.w2_reads(1))
        for u, a, rs, so in ((0, ACC_F1, R_H, sT0), (1, ACC_F2, R_H2, sT1)):
            for t in range(2):
                pk = 192 + 8 * k; k += 1
                f = Seq()
                for j in range(8):
                    r = a + 16 * t + 2 * j
                    f.e(f"v_pk_mul_f32 {vr(r,2)}, {vr(r,2)}, {vr(42,2)} op_sel:[0,{t}] op_sel_hi:[1,{t}]")
                for j in range(8):
                    r = a + 16 * t + 2 * j
                    f.e(f"v_cvt_pk_bf16_f32 v{pk+j}, v{r}, v{r+1}")
                for j in range(8): f.e(f"v_pk_max_i16 v{pk+j}, v{pk+j}, 0")
                q.extend(f)
                g, ffn_last = self.dual([f"buffer_store_dwordx4 {vr(pk+4*al)}, v37, {srd(rs)}, s{so} offen offset:{2048*al + 1024*t}" for al in range(2)])
                q.extend(g)
        for g in w0: q.e(*g)
        f = Seq()
        for j in range(8):
            a, b = RE + 2 * j, IM + 2 * j
            f.e(f"v_pk_mul_f32 {vr(56,2)}, {vr(b,2)}, {vr(30,2)} op_sel:[0,1] op_sel_hi:[1,1]",
                f"v_pk_mul_f32 {vr(b,2)}, {vr(b,2)}, {vr(30,2)} op_sel:[0,0] op_sel_hi:[1,0]",
                f"v_pk_fma_f32 {vr(b,2)}, {vr(a,2)}, {vr(30,2)}, {vr(b,2)} op_sel:[0,1,0] op_sel_hi:[1,1,1]",
                f"v_pk_fma_f32 {vr(a,2)}, {vr(a,2)}, {vr(30,2)}, {vr(56,2)} op_sel:[0,0,0] op_sel_hi:[1,0,1] neg_lo:[0,0,1] neg_hi:[0,0,1]")
        q.extend(f)
        q.wds_all()
        q.extend(self.flag_store(0, ffn_last))
        self.stamp(q)
        q.e(f"v_lshlrev_b32 v36, 2, v{vL}", "v_and_b32 v36, 127, v36")
        dm = self.w2_dma(5) + self.w2_dma(3) + self.w2_dma(4)
        f = Seq()
        f.extend(self.w2_reads(2))
        f.wvm(self.xl[-1])
        f.e("v_lshlrev_b32 v52, 16, v38", "v_and_b32 v53, 0xffff0000, v38", "v_lshlrev_b32 v54, 16, v39", "v_and_b32 v55, 0xffff0000, v39")
        for ii in range(4):
            b = BASE + 4 * ii; r, nm = 44 + 2 * ii, 45 + 2 * ii
            f.e(f"v_lshlrev_b32 v{b+2}, 16, v{b+1}", f"v_and_b32 v{b+3}, 0xffff0000, v{b+1}", f"v_and_b32 v{b+1}, 0xffff0000, v{b}", f"v_lshlrev_b32 v{b}, 16, v{b}")
            for e in range(2): f.e(f"v_pk_add_f32 {vr(56+2*e,2)}, {vr(b+2*e,2)}, {vr(r,2)} op_sel:[0,1] op_sel_hi:[1,1]")
            def rnd():
                f.e("v_cvt_pk_bf16_f32 v61, v56, v57", "v_cvt_pk_bf16_f32 v62, v58, v59",
                    "v_lshlrev_b32 v56, 16, v61", "v_and_b32 v57, 0xffff0000, v61", "v_lshlrev_b32 v58, 16, v62", "v_and_b32 v59, 0xffff0000, v62")
            rnd()
            for e in range(2): f.e(f"v_pk_mul_f32 {vr(56+2*e,2)}, {vr(56+2*e,2)}, {vr(r,2)} op_sel:[0,0] op_sel_hi:[1,0]")
            rnd()
            for e in range(2): f.e(f"v_pk_mul_f32 {vr(56+2*e,2)}, {vr(56+2*e,2)}, {vr(52+2*e,2)}")
            rnd()
            for e in range(2): f.e(f"v_pk_add_f32 {vr(b+2*e,2)}, {vr(b+2*e,2)}, {vr(56+2*e,2)}")
        q.extend(merge(f, dm))
        fl = q.e(f"buffer_load_dword v56, v36, {srd(R_SY)}, s{sFB} offen sc1")
        q.extend(self.w2_reads(5))
        q.extend(self.check("ff", [fl], [(56, f"s{sTAG}")]))
        self.stamp(q)

    def ssm_part2(self):
        RE, IM = ACC_S, ACC_S + 16
        a = Seq()
        a.e(f"v_lshrrev_b32 v56, 4, v{vL}", "v_lshlrev_b32 v56, 2, v56", f"s_sub_u32 s{sT0}, s{sC}, 16", f"v_add_u32 v56, s{sT0}, v56",
            f"v_mov_b32 v58, {OOB}", f"v_mov_b32 v59, s{sTAG}")
        A = groups(a)
        for t in range(4):
            A.append([I(f"v_add_u32 v57, {t}, v56"), I("v_cmp_le_i32 vcc, 0, v57"), I("v_lshl_add_u32 v57, v57, 9, v60"),
                      I(f"v_cndmask_b32 v{44+t}, v58, v57, vcc"), I(f"v_cndmask_b32 v{48+t}, 0, v59, vcc")])
        a = Seq()
        a.e(f"s_lshl_b32 s{sT0}, s{sG}, 13", f"s_add_u32 s{sT0}, s{sT0}, {WS_AGG}")
        lb = [a.e(f"buffer_load_dwordx4 {vr(224+4*t)}, v{44+t}, {srd(R_SY)}, s{sT0} offen sc1") for t in range(4)]
        A += groups(a)
        B = [self.check("lb", lb, [(226 + 4 * t, f"v{48+t}") for t in range(4)])]
        q = Seq()
        self.stamp(q)
        self.cmul_acc(q, 56, 24, 224, 228); self.cmul_acc(q, 58, 24, 56, 232); self.cmul_acc(q, 56, 24, 58, 236)
        self.cmul(q, 58, 28, 56)
        for sw in ("16", "32"):
            q.e("v_mov_b32 v56, v58", "v_mov_b32 v57, v59", f"v_permlane{sw}_swap_b32 v56, v58", f"v_permlane{sw}_swap_b32 v57, v59",
                "v_add_f32 v58, v56, v58", "v_add_f32 v59, v57, v59")
        self.cmul_acc(q, 56, 26, 58, 40)
        self.cmul(q, 58, 30, 56)
        pr, pi_ = 58, 59
        for i in range(16):
            q.e(f"v_fma_f32 v{RE+i}, v20, v{pr}, v{RE+i}", f"v_fma_f32 v{IM+i}, v20, v{pi_}, v{IM+i}",
                f"v_fma_f32 v{RE+i}, -v21, v{pi_}, v{RE+i}", f"v_fma_f32 v{IM+i}, v21, v{pr}, v{IM+i}")
            pr, pi_ = RE + i, IM + i
        for j in range(8):
            q.e(f"v_cvt_pk_bf16_f32 v{224+j}, v{RE+2*j}, v{RE+2*j+1}", f"v_cvt_pk_bf16_f32 v{232+j}, -v{IM+2*j}, -v{IM+2*j+1}")
        q.e(f"v_and_b32 v56, 15, v{vL}", "v_and_b32 v57, 2, v56", "v_lshlrev_b32 v57, 1, v57", "v_and_b32 v58, 4, v56", "v_lshrrev_b32 v58, 1, v58",
            "v_and_b32 v59, 1, v56", "v_or3_b32 v57, v57, v58, v59", "v_and_b32 v58, 3, v32", "v_lshlrev_b32 v58, 1, v58", "v_xor_b32 v57, v57, v58",
            "v_lshlrev_b32 v57, 4, v57", "v_lshl_add_u32 v57, v56, 7, v57", f"s_add_u32 s{sT0}, s{sLB}, 8192", f"v_add_u32 v57, s{sT0}, v57", "v_xor_b32 v58, 16, v57")
        q.e(f"ds_write_b128 v57, {vr(224)}", f"ds_write_b128 v58, {vr(228)}", f"ds_write_b128 v57, {vr(232)} offset:{SLOT}", f"ds_write_b128 v58, {vr(236)} offset:{SLOT}")
        q.e("v_lshrrev_b32 v59, 2, v56", f"v_lshrrev_b32 v61, 5, v{vL}", "v_lshl_add_u32 v61, v61, 3, v59", "v_lshlrev_b32 v61, 7, v61",
            "v_and_b32 v62, 2, v59", "v_lshlrev_b32 v62, 1, v62", "v_and_b32 v59, 1, v59", "v_or_b32 v62, v62, v59", "v_lshlrev_b32 v62, 4, v62",
            "v_and_b32 v59, 3, v56", "v_lshlrev_b32 v59, 3, v59", f"v_and_b32 v63, 16, v{vL}", "v_lshlrev_b32 v63, 1, v63", "v_add_u32 v59, v59, v63",
            "v_xor_b32 v59, v59, v62", "v_add_u32 v61, v61, v59", f"v_add_u32 v44, s{sT0}, v61",
            f"v_xor_b32 v45, {512|32}, v44", "v_xor_b32 v46, 64, v44", "v_xor_b32 v47, 64, v45")
        q.e(f"s_lshr_b32 s{sT0}, s{sGL}, 1", f"s_lshl_b32 s{sT0}, s{sT0}, 3", f"s_and_b32 s{sT1}, s{sGL}, 1", f"s_lshl_b32 s{sT1}, s{sT1}, 1", f"s_add_u32 s{sT0}, s{sT0}, s{sT1}",
            f"s_add_u32 s{sT0}, s{sT0}, s{sWN}", f"s_add_u32 s{sT0}, s{sT0}, 56", f"s_lshl_b32 s{sT0}, s{sT0}, 11", f"s_add_u32 s{sT0}, s{sT0}, s{sHB}",
            f"s_add_u32 s{sT1}, s{sT0}, 8192")
        for part in range(2):
            for mu in range(2):
                for e in range(2):
                    d = 64 + 8 * part + 4 * mu + 2 * e
                    tr = q.e(f"ds_read_b64_tr_b16 {vr(d,2)}, v{44 + 2*mu + e} offset:{SLOT*part}")
        B += groups(q)
        g, last = self.dual([f"buffer_store_dwordx4 {vr(64+8*part+4*mu)}, v33, {srd(R_H)}, s{(sT0, sT1)[part]} offen offset:{1024*mu}" for part in range(2) for mu in range(2)])
        w = Seq(); w.wds(tr)
        B.append(list(w) + g)
        return A, B, last

    def phase2(self, q):
        c = self.c
        NR = c.nring; ak = c.akept
        ACC = (96, 160)
        sB0, sB1 = sROT, sU0
        q.e(f"s_lshl_b32 s{sT0}, s{sC}, 1", f"s_add_u32 s{sT0}, s{sT0}, s{sXB}", f"s_lshl_b32 s{sT0}, s{sT0}, 1", f"s_add_u32 s{sT0}, s{sT0}, s{sXB}",
            f"s_xor_b32 s{sT1}, s{sT0}, 1", f"s_mul_i32 s{sB0}, s{sT1}, {HBLK}", f"s_mul_i32 s{sB1}, s{sT0}, {HBLK}",
            f"s_mul_i32 s{sW2O}, s{sW}, {14*2048}", f"s_lshl_b32 s{sCO}, s{sW}, 14", f"s_add_u32 s{sCO}, s{sCO}, {56*2048}")
        steps = [(0, j) for j in range(14)] + [(1, j) for j in range(ak)] + [(0, j) for j in range(14, 22)] + [(1, j) for j in range(ak, 22)]
        first_ssm = 14 + ak; sent_done = first_ssm + 7
        ld = {}
        def issue(n):
            g = Seq()
            ps, j = steps[n]
            a = 176 + 8 * (n % NR)
            blk = (sB0, sB1)[ps]
            if j % 2 == 0:
                if j < 14: g.e(f"s_add_u32 s{sKW}, s{blk}, s{sW2O}", f"s_add_u32 s{sKW}, s{sKW}, {2048*j}")
                else: g.e(f"s_add_u32 s{sKW}, s{blk}, s{sCO}", f"s_add_u32 s{sKW}, s{sKW}, {2048*(j-14)}")
            o = 2048 * (j % 2)
            g.e(f"buffer_load_dwordx4 a[{a}:{a+3}], v33, {srd(R_H)}, s{sKW} offen offset:{o} {c.hld}")
            ld[n] = g.e(f"buffer_load_dwordx4 a[{a+4}:{a+7}], v33, {srd(R_H)}, s{sKW} offen offset:{o+1024} {c.hld}")
            return g
        assert ak % 2 == 0
        side = {}
        def add(n0, n1, G):
            for k, g in enumerate(G): side.setdefault(n0 + (k * (n1 - n0 + 1)) // len(G), []).append(g)
        A, B, ssm_last = self.ssm_part2()
        for n in range(NR): q.extend(issue(n))
        for g in A: q.e(*g)
        q.extend(self.w2_reads(3)); q.extend(self.w2_reads(4))
        gate = first_ssm - NR
        add(0, gate - 3, B)
        add(gate - 2, gate - 2, [self.flag_store(1, ssm_last)])
        fs = I(f"buffer_load_dword v56, v36, {srd(R_SY)}, s{sFB} offen offset:128 sc1", "vm")
        add(gate - 1, gate - 1, [[fs]])
        st = Seq(); self.stamp(st)
        gate_check = self.check("fs", [fs], [(56, f"s{sTAG}")]) + list(st)
        s = Seq()
        s.e(f"v_and_b32 v56, 31, v{vL}", f"v_lshrrev_b32 v57, 5, v{vL}", "v_and_b32 v58, 7, v56", "v_xor_b32 v58, v58, v57", "v_lshlrev_b32 v58, 4, v58",
            "v_lshl_add_u32 v58, v56, 8, v58", f"s_lshl_b32 s{sT0}, s{sW}, 14", f"v_add_u32 v26, s{sT0}, v58")
        for g4 in range(1, 4): s.e(f"v_xor_b32 v{26+g4}, {32*g4}, v26")
        s.e(f"v_lshrrev_b32 v20, 4, v{vL}", f"v_and_b32 v21, 15, v{vL}",
            "v_xor_b32 v58, v21, v20", "v_lshlrev_b32 v58, 4, v58", "v_lshl_add_u32 v58, v20, 8, v58", f"s_lshl_b32 s{sT0}, s{sW}, 12", f"v_add_u32 v30, s{sT0}, v58",
            f"v_xor_b32 v31, {1024|64}, v30")
        XV = 64
        for k in range(6): s.e(f"v_mov_b32 v{XV+4*k+3}, s{sTAG}")
        s.e(f"s_lshl_b32 s{sT0}, s{sC}, 4", f"s_add_u32 s{sT0}, s{sT0}, s{sG}", f"s_xor_b32 s{sT1}, s{sT0}, 8",
            f"s_lshl_b32 s{sT0}, s{sT0}, 2", f"s_add_u32 s{sT0}, s{sT0}, s{sW}", f"s_mul_i32 s{sT0}, s{sT0}, 6144", f"s_add_u32 s{sT0}, s{sT0}, {WS_XCH}",
            f"s_lshl_b32 s{sT1}, s{sT1}, 2", f"s_add_u32 s{sT1}, s{sT1}, s{sW}", f"s_mul_i32 s{sT1}, s{sT1}, 6144", f"s_add_u32 s{sT1}, s{sT1}, {WS_XCH}",
            f"s_add_u32 s{sT2}, s{sT0}, 4096", f"s_add_u32 s{sKX}, s{sT1}, 4096")
        s.wds_all(); s.e("s_barrier")
        add(gate + 1, gate + 4, groups(s))
        def red_write(s, ps):
            for nu in range(2):
                for mu in range(2):
                    for g4 in range(4):
                        s.e(f"ds_write_b128 v{26+g4}, {vr(ACC[ps] + 32*nu + 16*mu + 4*g4)} offset:{128*nu + 8192*mu}")
        def red_read(s, dst):
            return [s.e(f"ds_read_b128 {vr(dst + 16*ii + 4*src)}, v{30 + (ii&1)} offset:{2048*(ii>>1) + 16384*src}") for ii in range(4) for src in range(4)]
        s = Seq()
        red_write(s, 0)
        s.wds_all(); s.e("s_barrier")
        R = red_read(s, 96)
        for g4 in range(4): s.e(f"v_add_u32 v{26+g4}, 0x10000, v{26+g4}")
        for ii in range(4):
            s.wds(R[4 * ii + 3])
            for e in range(4):
                idx = 4 * ii + e; d = XV + (idx // 3) * 4 + idx % 3; s0 = 96 + 16 * ii + e
                s.e(f"v_add_f32 v{s0}, v{s0}, v{s0+4}", f"v_add_f32 v{d}, v{s0+8}, v{s0+12}", f"v_add_f32 v{d}, v{d}, v{s0}")
        s.e("v_add_u32 v30, 0x10000, v30", "v_add_u32 v31, 0x10000, v31")
        for k in range(6):
            s.e(f"buffer_store_dwordx4 {vr(XV+4*k)}, v33, {srd(R_SY)}, s{sT0 if k < 4 else sT2} offen offset:{1024*(k%4)} sc1")
        self.stamp(s)
        add(sent_done + 1, sent_done + 6, groups(s))
        q.wds_all()
        for n, (ps, j) in enumerate(steps):
            a = 176 + 8 * (n % NR)
            q.wvm(ld[n])
            sg = side.get(n, [])
            k = 0
            for nu in range(2):
                for mu in range(2):
                    d = ACC[ps] + 32 * nu + 16 * mu
                    q.e(f"v_mfma_f32_32x32x16_bf16 {vr(d,16)}, a[{8*j+4*nu}:{8*j+4*nu+3}], a[{a+4*mu}:{a+4*mu+3}], {'0' if j == 0 else vr(d,16)}")
                    for g in sg[(k * len(sg)) // 4:((k + 1) * len(sg)) // 4]: q.e(*g)
                    k += 1
            if n == gate: q.e(*gate_check)
            if n + NR < 44: q.extend(issue(n + NR))
        self.stamp(q)
        XR = 224
        xl = [q.e(f"buffer_load_dwordx4 {vr(XR+4*k)}, v33, {srd(R_SY)}, s{sT1 if k < 4 else sKX} offen offset:{1024*(k%4)} sc1") for k in range(6)]
        red_write(q, 1)
        q.wds_all(); q.e("s_barrier")
        R = red_read(q, 96)
        q.extend(self.check("xc", xl, [(XR + 4 * k + 3, f"s{sTAG}") for k in range(6)]))
        self.stamp(q)
        for ii in range(4):
            for e in range(4):
                idx = 4 * ii + e; xv = XR + (idx // 3) * 4 + idx % 3
                q.e(f"v_add_f32 v{BASE+idx}, v{xv}, v{BASE+idx}")
        for ii in range(4):
            q.wds(R[4 * ii + 3])
            s0 = 96 + 16 * ii
            for e in range(2):
                q.e(f"v_pk_add_f32 {vr(s0+2*e,2)}, {vr(s0+2*e,2)}, {vr(s0+4+2*e,2)}", f"v_pk_add_f32 {vr(s0+8+2*e,2)}, {vr(s0+8+2*e,2)}, {vr(s0+12+2*e,2)}")
            for e in range(2):
                q.e(f"v_pk_add_f32 {vr(s0+2*e,2)}, {vr(s0+2*e,2)}, {vr(BASE+4*ii+2*e,2)}")
            for e in range(2):
                q.e(f"v_pk_add_f32 {vr(s0+2*e,2)}, {vr(s0+2*e,2)}, {vr(s0+8+2*e,2)}")
            q.e(f"s_mov_b32 s{sT0}, {8192*ii}")
            q.e(f"buffer_store_dwordx4 {vr(s0)}, v19, {srd(R_OUT)}, s{sT0} offen")
        q.e(f"s_lshl_b32 s{sT0}, s{sG}, 2", f"s_or_b32 s{sT0}, s{sT0}, s{sW}", f"s_lshl_b32 s{sT0}, s{sT0}, 4", f"s_or_b32 s{sT0}, s{sT0}, s{sC}",
            f"s_cmp_eq_u32 s{sT0}, 15", "s_cbranch_scc0 L_nobump",
            f"v_mov_b32 v56, s{sTAG}", "v_mov_b32 v57, 0", "s_mov_b64 exec, 1")
        q.e(f"buffer_store_dword v56, v57, {srd(R_SY)}, 0 offen sc1")
        q.e("s_mov_b64 exec, -1")
        q.label("L_nobump")

    def write_ts(self, q):
        if not self.c.ts: return
        q.wds_all(); q.wvm_all()
        q.e("s_memtime s[46:47]", "s_memrealtime s[92:93]", f"s_load_dwordx2 s[{sDBG}:{sDBG+1}], s[0:1], 104"); q.wds_all()
        q.e(f"s_lshl_b32 s{sT0}, s2, 2", f"s_add_u32 s{sT0}, s{sT0}, s{sW}", f"s_lshl_b32 s{sT0}, s{sT0}, 6", f"s_add_u32 s{sT0}, s{sT0}, {WS_TS}", "v_mov_b32 v2, 0")
        q.e("s_mov_b64 exec, 1")
        def put(k):
            q.e(f"buffer_store_dword v3, v2, {srd(R_SY)}, s{sT0} offen offset:{4*k}")
            if self.c.dbg:
                if k == 0: q.e("v_not_b32 v3, v3")
                q.e(f"global_atomic_umax v2, v3, s[{sDBG}:{sDBG+1}] offset:{4*k}")
        for k in range(self.nts + 2):
            if k == 0: q.e("v_mov_b32 v3, v249")
            elif k == self.nts + 1: q.e("s_sub_u32 s46, s46, s42", "v_mov_b32 v3, s46")
            else:
                r = TSREG[k - 1]; q.e(f"s_sub_u32 s{r}, s{r}, s42", f"v_mov_b32 v3, s{r}")
            put(k)
        q.e(f"s_lshl_b32 s{sT1}, s{sXCC}, 4", f"s_or_b32 s{sT1}, s{sT1}, s{sLOC}", f"v_mov_b32 v3, s{sT1}")
        if self.c.dbg: q.e("v_mov_b32 v3, v249")
        put(14)
        q.e("v_mov_b32 v3, s92"); put(15)
        q.wvm_all()

    def build(self):
        q = Seq()
        q.label("L_start")
        last = self.prologue(q)
        self.mainloop(q, last)
        self.transition(q)
        self.phase2(q)
        self.write_ts(q)
        q.label("L_end")
        q.e("s_endpgm")
        return finalize(q)

HDR = """; @launch grid=(256,1,1) block=(256,1,1) lds=163840
.amdgcn_target "amdgcn-amd-amdhsa--gfx950"
.text
.globl {n}_kernel
.p2align 8
.type {n}_kernel,@function
{n}_kernel:
"""
TAIL = """
.section .rodata,"a"
.p2align 6
.amdhsa_kernel {n}_kernel
  .amdhsa_next_free_vgpr 512
  .amdhsa_next_free_sgpr 102
  .amdhsa_accum_offset 256
  .amdhsa_group_segment_fixed_size 0
  .amdhsa_kernarg_size 120
  .amdhsa_user_sgpr_count 2
  .amdhsa_user_sgpr_kernarg_segment_ptr 1
  .amdhsa_system_sgpr_workgroup_id_x 1
.end_amdhsa_kernel
"""
def generate(cfg):
    g = Gen(cfg)
    body = g.build()
    return HDR.format(n=NAME) + "\n".join(("" if l.endswith(":") else "    ") + l for l in body) + TAIL.format(n=NAME), g

if __name__ == "__main__":
    cfg = Cfg()
    for a in sys.argv[2:]:
        k, v = a.split("="); setattr(cfg, k, eval(v))
    txt, g = generate(cfg)
    open(sys.argv[1], "w").write(txt)
```

```python
import sys, struct
from asmlib import *

NAME = "parallel_sum__ssm_conv_s5__dense_activation_relu__prompt"
def f2u(x): return struct.unpack("<I", struct.pack("<f", x))[0]
def fh(x): return hex(f2u(x))

WS_FLAG = 16384
WS_STAT = 32768
WS_AGG  = 65536
WS_CS   = 262144
WS_XCH  = 1 << 20
WS_TS   = (7 << 20) + (1 << 19)
WS_H    = 8 << 20
HBLK = 88 * 2048
WS_END = WS_H + 64 * HBLK
TAGK = 0x9E3779B9
OOB = 0x40000000

sCO, sW, sWM, sWN, sC, sG, sGL, sU0, sROT, sXB, sT0, sT1, sT2 = 3, 4, 5, 6, 7, 8, 9, 10, 11, 12, 13, 14, 15
P_X, P_LRE, P_LIM, P_BRE, P_BIM, P_CRE, P_CIM, P_LDT = 16, 18, 20, 22, 24, 26, 28, 30
P_DSK, P_W1, P_W2, P_OUT, P_WS = 32, 36, 38, 40, 44
sU1, sK4 = 34, 35
sM = 46
R_X, R_BS, R_W1A, R_W1B, R_W2, R_CRE, R_CIM, R_OUT, R_SY = 48, 52, 56, 60, 72, 76, 80, 84, 88
sB0, sB1, sHF, sHS = 64, 65, 66, 67
sKX, sKW, sLB, sONES, sTAG, sPOLL, sLE, sW2O = 92, 93, 94, 95, 96, 97, 98, 99
sXCC, sLOC = 100, 101
TSREG = [16, 18, 20, 22, 24, 26, 28, 30, 36, 38, 40, 44, 68]
sDBG = 32
def srd(r): return f"s[{r}:{r+3}]"

vL = 1
BASE = 2
ACC_S, ACC_F1, ACC_F2 = 64, 96, 128
FR = 160
RA, RS, RF = 176, 180, 184
vX, vB, vW = 200, 204, 206
vSTS, vCSS, vGS, vGC, vAGS, vHF1, vHF2, vAGW = 208, 209, 210, 211, 215, 216, 217, 218
CS = 220
vW2, vC2, vTR, vCR, vTA, vLBK, vHS, vFL, vXS, vXR, vRW, vRR, vTW, vTD = 224, 228, 232, 233, 234, 238, 242, 243, 244, 245, 246, 250, 252, 254
def vr(a, n=4): return f"v[{a}:{a+n-1}]"
def ar(a, n=4): return f"a[{a}:{a+n-1}]"

SLOT = 32768; WBLK = 8192
L_SP = 98304; SPW = 14336
L_MISC = 155648
L_R = L_MISC; L_AGG = L_MISC + 1024; L_CS = L_MISC + 4096

class Cfg:
    ts = False
    dbg = False
    force_remote = False
    akept = 8
    nring = 10
    ts_stages = ()
    w2pf = True
    cap1 = 5
    cap2 = 6.5
    cap3 = 5
    ssm2_inline = True
    gather_at = 80
    stat_at = 2
    kbar = 13
    d1 = 2
    prof = None
    ts_fine = ()
    fs_lead = 4
    send_at = 0
    wev = 1
    ntail = 4
    lead = 6
    bar_lag = 14
    xl_at = 164
    w2early = True
    agg_lead = 2
    w2_resume = 26
    left_pre = 6
    fl_at = 20
    ff_at = 60
    fill_mix = 8
    sflag_at = 24
    ts_max = 13
    drop = ()
    dma_every = 2
    ts_min = 0
    p2stamps = ()
    nomfma2 = False
    check_at = 104
    hld = "sc1"

def mk_srd(q, r, p, size):
    q.e(f"s_mov_b32 s{r}, s{p}", f"s_and_b32 s{r+1}, s{p+1}, 0xffff", f"s_mov_b32 s{r+2}, {size}", f"s_mov_b32 s{r+3}, 0x20000")

WAITK = ("wvm", "wds", "wvm0", "wds0")
def groups(seq):
    G = []; cur = []
    for ins in seq:
        cur.append(ins)
        if ins.kind not in WAITK:
            G.append(cur); cur = []
    if cur: G.append(cur)
    return G
def cost(g):
    c = 0
    for i in g:
        if i.kind == "label": continue
        if i.kind in WAITK: c += 0.5
        elif i.t.startswith(TRANS): c += 2
        elif i.t.startswith("ds_write_b128"): c += 3
        else: c += 1
    return c

class Stream:
    def __init__(self, items, start=0, dl=None, every=1, wev=1):
        self.it = list(items); self.nb = start; self.dl = dl; self.every = every; self.wev = wev
    def ready(self, gap):
        while self.it and isinstance(self.it[0], tuple):
            self.nb = max(self.nb, self.it.pop(0)[1])
        return bool(self.it) and gap >= self.nb
    def pop(self, gap):
        g = self.it.pop(0)
        if self.every > 1 and any(i.kind == "vm" for i in g): self.nb = gap + self.every
        if any(i.t.startswith("ds_write_b128") for i in g): self.nb = gap + self.wev
        return g

def fill_gap(q, gap, used, cap, streams):
    for s in streams:
        if s.dl is not None and gap >= s.dl:
            while s.it:
                g = s.it.pop(0)
                if not isinstance(g, tuple): q.e(*g); used += cost(g)
    for s in streams:
        while s.ready(gap) and (used + cost(s.it[0]) <= cap or (used <= cap - 2 and cost(s.it[0]) > 3)):
            g = s.pop(gap); q.e(*g); used += cost(g)
def flush(q, streams):
    for s in streams:
        for g in s.it:
            if not isinstance(g, tuple): q.e(*g)
        s.it = []

class Gen:
    def __init__(self, cfg):
        self.c = cfg; self.nts = 0; self.w2_last = {}; self.w2_rd = {}; self.nl = 0; self.ool = Seq()
    def stamp(self, q):
        self.nreq = getattr(self, "nreq", 0) + 1
        if self.c.ts and self.nts < self.c.ts_max and self.nreq > self.c.ts_min:
            r = TSREG[self.nts]
            q.e(f"s_memtime s[{r}:{r+1}]"); self.nts += 1

    def stage_dma(self, i):
        base = (i % 3) * SLOT
        def ld(v, r, so, off): return I(f"buffer_load_dwordx4 v{v}, {srd(r)}, s{so} offen offset:{off} lds", "vm")
        def m0(o): return I(f"s_add_u32 m0, s{sLB}, {base + o}")
        def st(k): return [I(f"s_add_u32 s{sKW}, s{sROT}, {k}"), I(f"s_and_b32 s{sKW}, s{sKW}, 7")]
        mul = lambda: I(f"s_mul_i32 s{sKW}, s{sKW}, {64*3584}")
        G = []
        if i < 8:
            G.append([m0(0)] + st(i) + [I(f"s_lshl_b32 s{sKX}, s{sKW}, 7"), ld(vX, R_X, sKX, 0)])
            for j in range(1, 4): G.append([ld(vX + j, R_X, sKX, 1024 * j)])
            G.append([m0(4096), mul(), ld(vB, R_BS, sKX, 0)]); G.append([ld(vB + 1, R_BS, sKX, 1024)])
            G.append([m0(6144), ld(vW, R_W1A, sKW, 0)]); G.append([ld(vW + 1, R_W1A, sKW, 1024)])
        else:
            for t in range(4):
                G.append([m0(2048 * t)] + st(4 * (i - 8) + t) + [mul(), ld(vW, R_W1B, sKW, 0)])
                G.append([ld(vW + 1, R_W1B, sKW, 1024)])
        return G, G[-1][-1]

    def fb(self, n):
        return ACC_F2 + 8 * (n & 3) if n < 32 else FR - 4 + 4 * (n & 3)
    def frag_reads(self, n):
        b = self.fb(n)
        if n < 32:
            i, p = divmod(n, 4); slot = i % 3
            hi = 12 if slot == 2 else 0; o = SLOT if slot == 1 else 0
            S = I(f"ds_read_b128 {vr(b)}, v{RS+hi+p} offset:{o}", "ds")
            A0 = I(f"ds_read_b128 {ar(8*n)}, v{RA+hi+p} offset:{o}", "ds")
            A1 = I(f"ds_read_b128 {ar(8*n+4)}, v{RA+hi+p} offset:{o+WBLK}", "ds")
            F = [I(f"ds_read_b64_tr_b16 {vr(b+4+2*k, 2)}, v{RF+hi+p} offset:{o + 6144 + k*512}", "ds") for k in range(2)]
            return [S, A0, A1] + F
        if n >= 64: return []
        i, p = divmod(n - 32, 4)
        hi = 12 if i < 4 else 0
        return [I(f"ds_read_b64_tr_b16 {vr(b+4+2*k, 2)}, v{RF+hi+p} offset:{2048*(i&3) + k*512}", "ds") for k in range(2)]

    def prologue(self, q):
        c = self.c
        q.e("s_cmp_ge_u32 s2, 256", "s_cbranch_scc1 L_end")
        q.e("s_load_dwordx16 s[16:31], s[0:1], 0", "s_load_dwordx4 s[36:39], s[0:1], 80", "s_load_dwordx2 s[44:45], s[0:1], 112",
            "s_load_dwordx2 s[32:33], s[0:1], 64", "s_load_dwordx2 s[40:41], s[0:1], 96")
        q.e("s_getpc_b64 s[64:65]", "L_pc:", "s_and_b32 s3, s2, 0xf8", "s_lshl_b32 s3, s3, 7", "v_lshlrev_b32 v9, 2, v0", "v_add_u32 v9, s3, v9",
            "v_min_u32 v9, L_end-L_pc, v9")
        q.e("global_load_dword v10, v9, s[64:65]")
        if c.ts: q.e("s_memtime s[42:43]", "s_memrealtime s[46:47]")
        q.e(f"v_and_b32 v{vL}, 63, v0", "v_lshrrev_b32 v2, 6, v0", f"v_readfirstlane_b32 s{sW}, v2")
        q.e(f"s_and_b32 s{sXB}, s2, 1", f"s_and_b32 s{sROT}, s2, 6", f"s_lshr_b32 s{sT2}, s2, 6",
            f"s_lshl_b32 s{sC}, s{sROT}, 1", f"s_add_u32 s{sC}, s{sC}, s{sT2}", f"s_bfe_u32 s{sGL}, s2, 0x30003",
            f"s_lshl_b32 s{sG}, s{sXB}, 3", f"s_add_u32 s{sG}, s{sG}, s{sGL}")
        q.e(f"s_and_b32 s{sT2}, s{sT2}, 1", f"s_lshl_b32 s{sT0}, s{sGL}, 1", f"s_add_u32 s{sT0}, s{sT0}, s{sT2}", f"s_add_u32 s{sT1}, s{sGL}, 6",
            f"s_cmp_lt_u32 s{sGL}, 6", f"s_cselect_b32 s{sU0}, s{sT0}, s{sT1}", f"s_cselect_b32 s{R_W1B+2}, {512*3584}, 0", f"s_xor_b32 s{sU1}, s{sU0}, 1",
            f"s_lshr_b32 s{sWM}, s{sW}, 1", f"s_and_b32 s{sWN}, s{sW}, 1", f"s_lshl_b32 s{sLB}, s{sW}, 13")
        q.e(f"v_lshrrev_b32 v2, 3, v{vL}", f"v_and_b32 v3, 7, v{vL}", f"v_lshrrev_b32 v4, 4, v{vL}")
        q.e("v_xor_b32 v5, v3, v4", "v_lshlrev_b32 v5, 4, v5")
        q.e(f"v_lshrrev_b32 v7, 5, v{vL}", "v_and_b32 v8, 3, v2", "v_lshl_add_u32 v7, v7, 4, v8",
            f"s_lshl_b32 s{sT0}, s{sC}, 7", f"s_lshl_b32 s{sT1}, s{sW}, 5", f"s_add_u32 s{sT0}, s{sT0}, s{sT1}",
            f"v_add_u32 v7, s{sT0}, v7", f"v_lshl_add_u32 v{vX}, v7, 10, v5",
            f"v_xor_b32 v{vX+1}, 64, v{vX}", f"v_add_u32 v{vX+1}, {3072}, v{vX+1}",
            f"v_add_u32 v{vX+2}, {6144}, v{vX}", f"v_add_u32 v{vX+3}, {6144}, v{vX+1}")
        q.e(f"s_lshl_b32 s{sK4}, s{sG}, 5", f"s_lshl_b32 s{sT1}, s{sWN}, 4", f"s_add_u32 s{sK4}, s{sK4}, s{sT1}",
            f"v_add_u32 v7, s{sK4}, v2", f"v_lshl_add_u32 v{vB}, v7, 10, v5",
            f"v_xor_b32 v{vB+1}, 64, v{vB}", f"v_add_u32 v{vB+1}, {7168}, v{vB+1}")
        q.e(f"s_lshl_b32 s{sT0}, s{sW}, 4", f"v_add_u32 v7, s{sT0}, v2", "v_mul_u32_u24 v7, 3584, v7",
            "v_and_b32 v8, 1, v4", "v_lshlrev_b32 v8, 2, v8", "v_xor_b32 v8, v8, v3", f"v_lshl_add_u32 v{vW}, v8, 4, v7",
            f"v_add_u32 v{vW+1}, {8*3584-1024}, v{vW}",
            f"s_mul_i32 s{sT0}, s{sXB}, 14", f"s_add_u32 s{sT1}, s{sT0}, s{sU1}", f"s_add_u32 s{sT0}, s{sT0}, s{sU0}",
            f"s_lshl_b32 s{sT0}, s{sT0}, 7", f"s_lshl_b32 s{sT1}, s{sT1}, 7",
            f"s_sub_u32 s{R_W1A+2}, {512*3584}, s{sT0}", f"s_max_u32 s{R_W1B+2}, s{R_W1B+2}, s{sT1}", f"s_sub_u32 s{R_W1B+2}, s{R_W1B+2}, s{sT1}")
        for r, size in ((R_X, 2048*1024), (R_BS, 512*1024)): q.e(f"s_mov_b32 s{r+2}, {size}")
        for r in (R_X, R_BS, R_W1A, R_W1B): q.e(f"s_mov_b32 s{r+3}, 0x20000")
        G0, l0 = self.stage_dma(0)
        q.e(*G0[0][:-1])
        q.wds_all()
        if c.ts: q.e("v_mov_b32 v255, s46")
        q.e(f"s_mov_b32 s{R_X}, s{P_X}", f"s_and_b32 s{R_X+1}, s{P_X+1}, 0xffff")
        q.e(G0[0][-1]); [q.e(*g) for g in G0[1:4]]
        q.e(f"s_cmp_eq_u32 s{sWM}, 0", f"s_cselect_b32 s{R_BS}, s{P_BRE}, s{P_BIM}", f"s_cselect_b32 s{R_BS+1}, s{P_BRE+1}, s{P_BIM+1}", f"s_and_b32 s{R_BS+1}, s{R_BS+1}, 0xffff")
        [q.e(*g) for g in G0[4:6]]
        q.e(f"s_and_b32 s{P_W1+1}, s{P_W1+1}, 0xffff", f"s_add_u32 s{R_W1A}, s{P_W1}, s{sT0}", f"s_addc_u32 s{R_W1A+1}, s{P_W1+1}, 0")
        [q.e(*g) for g in G0[6:8]]
        q.e(f"s_add_u32 s{R_W1B}, s{P_W1}, s{sT1}", f"s_addc_u32 s{R_W1B+1}, s{P_W1+1}, 0")
        last = [l0]
        q.e(f"v_lshlrev_b32 v33, 4, v{vL}", f"v_and_b32 v6, 15, v{vL}", f"v_add_u32 v11, s{sK4}, v6", "v_lshlrev_b32 v11, 1, v11", "v_mov_b32 v15, 0")
        q.e(f"s_lshl_b32 s{sT2}, s{sWM}, 6", f"s_lshl_b32 s{sT0}, s{sG}, 2", f"s_add_u32 s{sT2}, s{sT2}, s{sT0}", f"s_lshl_b32 s{sT0}, s{sWN}, 1",
            f"s_add_u32 s{sT2}, s{sT2}, s{sT0}", f"s_lshl_b32 s{sT0}, s{sC}, 7", f"s_add_u32 s{sT2}, s{sT2}, s{sT0}", f"s_lshl_b32 s{sPOLL}, s{sT2}, 10")
        q.e(f"buffer_load_dwordx4 {vr(40)}, v33, {srd(R_X)}, s{sPOLL} offen", f"buffer_load_dwordx4 {vr(44)}, v33, {srd(R_X)}, s{sPOLL} offen offset:1024")
        self.small0 = q.e(f"global_load_dword v16, v15, s[{P_WS}:{P_WS+1}] sc1")
        q.e(f"global_load_ushort v12, v11, s[{P_LRE}:{P_LRE+1}]", f"global_load_ushort v13, v11, s[{P_LIM}:{P_LIM+1}]")
        self.small = q.e(f"global_load_ushort v14, v11, s[{P_LDT}:{P_LDT+1}]")
        q.e(f"s_lshl_b32 s{sT1}, s{sGL}, 7", f"v_lshl_add_u32 v35, v6, 3, s{sT1}")
        self.dsk = q.e(f"global_load_dwordx2 {vr(38,2)}, v35, s[{P_DSK}:{P_DSK+1}]")
        if c.w2pf:
            q.e(f"s_mul_i32 s{sT0}, s2, 56", f"s_mul_i32 s{sT1}, s{sWN}, 28", f"s_add_u32 s{sT0}, s{sT0}, s{sT1}", f"s_lshl_b32 s{sT1}, s2, 4",
                f"s_cmp_eq_u32 s{sWN}, 0", f"s_cselect_b32 s46, s{P_CRE}, s{P_CIM}", f"s_cselect_b32 s47, s{P_CRE+1}, s{P_CIM+1}",
                f"s_cmp_eq_u32 s{sWM}, 0", f"s_cselect_b32 s{sT0}, s{sT0}, s{sT1}", f"s_cselect_b32 s{sT1}, 27, 15",
                f"s_cselect_b32 s46, s{P_W2}, s46", f"s_cselect_b32 s47, s{P_W2+1}, s47",
                f"v_min_u32 v7, s{sT1}, v{vL}", f"v_add_lshl_u32 v7, v7, s{sT0}, 7")
            q.e("global_load_dword v10, v7, s[46:47]")
        f = Seq()
        f.e(f"v_lshl_add_u32 v{vC2}, v2, 10, v5", f"v_xor_b32 v{vC2+1}, 64, v{vC2}", f"v_add_u32 v{vC2+1}, 7168, v{vC2+1}",
            f"v_add_u32 v{vC2+2}, 14336, v{vC2}", f"v_add_u32 v{vC2+3}, 14336, v{vC2+1}",
            "v_lshlrev_b32 v7, 10, v2", f"v_lshl_add_u32 v{vW2}, v8, 4, v7")
        for j in range(1, 4): f.e(f"v_add_u32 v{vW2+j}, {7168*j}, v{vW2}")
        f.e(f"v_and_b32 v2, 31, v{vL}", f"v_lshrrev_b32 v3, 5, v{vL}")
        f.e("v_bfe_u32 v7, v2, 1, 3", "v_xor_b32 v7, v7, v3", "v_lshlrev_b32 v7, 4, v7",
            f"v_lshl_add_u32 v{vCR}, v2, 7, v7",
            f"s_lshl_b32 s{sT1}, s{sWM}, 5", f"v_xor_b32 v7, s{sT1}, v7", f"v_xor_b32 v5, s{sT1}, v{vCR}",
            f"s_lshl_b32 s{sT1}, s{sWM}, 14", f"v_add_u32 v{RA}, s{sT1}, v5")
        f.e("v_lshl_add_u32 v7, v6, 7, v7", "v_and_b32 v8, 16, v2", "v_lshl_add_u32 v7, v8, 10, v7",
            f"s_lshl_b32 s{sT1}, s{sWN}, 13", f"s_add_u32 s{sT1}, s{sT1}, 4096", f"v_add_u32 v{RS}, s{sT1}, v7")
        for p in range(1, 4): f.e(f"v_xor_b32 v{RA+p}, {32*p}, v{RA}", f"v_xor_b32 v{RS+p}, {32*p}, v{RS}")
        f.e("v_lshrrev_b32 v9, 2, v6", "v_lshlrev_b32 v5, 7, v9", "v_and_b32 v7, 3, v6", "v_lshlrev_b32 v7, 3, v7", "v_lshl_add_u32 v17, v8, 1, v7",
            "v_and_b32 v7, 8, v6", "v_lshl_add_u32 v5, v7, 3, v5", "v_add_u32 v5, v5, v17",
            f"v_lshl_add_u32 v{vTR}, v3, 9, v5",
            "v_lshl_add_u32 v5, v3, 10, v5", f"s_lshl_b32 s{sT1}, s{sWN}, 6", f"s_lshl_b32 s{sT0}, s{sWM}, 13", f"s_or_b32 s{sT1}, s{sT1}, s{sT0}",
            f"v_xor_b32 v{RF}, s{sT1}, v5")
        for p in range(1, 4): f.e(f"v_xor_b32 v{RF+p}, {WBLK*p}, v{RF}")
        f.e(f"s_mov_b32 s{sONES}, 0x3f803f80", f"v_mov_b32 v{CS}, 0", f"v_mov_b32 v{CS+1}, 0")
        for k in range(4): f.e(f"v_mov_b32 v{48+k}, 0")
        q.extend(f)
        f = Seq()
        for k in range(12): f.e(f"v_add_u32 v{RA+12+k}, {2*SLOT}, v{RA+k}")
        mk_srd(f, R_SY, P_WS, WS_END); mk_srd(f, R_W2, P_W2, 1792*1024); mk_srd(f, R_CRE, P_CRE, 512*1024)
        mk_srd(f, R_CIM, P_CIM, 512*1024); mk_srd(f, R_OUT, P_OUT, 2048*2048)
        f.e(f"s_getreg_b32 s{sXCC}, hwreg(HW_REG_XCC_ID, 0, 4)")
        self.addr_consts(f)
        G, l = self.stage_dma(1); last.append(l)
        q.extend(merge(f, G))
        return last

    def addr_consts(self, f):
        f.e(f"v_mov_b32 v63, {OOB}")
        f.e("v_and_b32 v5, 1, v4", "v_lshl_add_u32 v5, v5, 1, v3", f"s_lshl_b32 s{sT0}, s{sWM}, 2", f"v_add_u32 v32, s{sT0}, v5")
        f.e(f"s_lshl_b32 s{sT2}, s{sT2}, 4", f"s_add_u32 s{sT2}, s{sT2}, {WS_STAT}", f"v_lshl_add_u32 v7, v3, 4, s{sT2}",
            "v_cmp_eq_u32 vcc, 0, v2", f"v_cndmask_b32 v{vSTS}, v63, v7, vcc")
        f.e(f"v_and_b32 v7, 4, v{vL}", f"v_and_b32 v8, 35, v{vL}", "v_lshl_add_u32 v7, v7, 2, v8", f"v_and_b32 v8, 24, v{vL}", "v_lshrrev_b32 v8, 1, v8",
            "v_add_lshl_u32 v37, v7, v8, 4")
        f.e(f"s_lshl_b32 s{sT0}, s{sC}, 1", f"s_add_u32 s{sT1}, s{sT0}, s{sWM}", f"s_lshl_b32 s{sT1}, s{sT1}, 10", f"s_add_u32 s{sT1}, s{sT1}, {WS_STAT}",
            f"v_add_u32 v{vGS}, s{sT1}, v37")
        f.e(f"s_add_u32 s{sT0}, s{sT0}, s{sXB}", f"s_lshl_b32 s{sT1}, s{sT0}, 8", f"s_add_u32 s{sT1}, s{sT1}, {WS_FLAG}",
            f"v_lshl_add_u32 v36, v2, 2, s{sT1}",
            f"s_lshl_b32 s{sT2}, s{sGL}, 2", f"s_add_u32 s{sT2}, s{sT2}, s{sW}", f"s_lshl_b32 s{sT2}, s{sT2}, 2", f"s_add_u32 s{sT1}, s{sT1}, s{sT2}",
            f"v_mov_b32 v7, s{sT1}", f"v_cmp_eq_u32 vcc, 0, v{vL}", f"v_cndmask_b32 v{vFL}, v63, v7, vcc")
        f.e(f"s_lshl_b32 s{sT0}, s{sT0}, 1", f"s_add_u32 s{sT1}, s{sT0}, s{sWM}", f"s_mul_i32 s{sT1}, s{sT1}, {HBLK}", f"s_add_u32 s{sT1}, s{sT1}, {WS_H}",
            f"s_add_u32 s{sT0}, s{sT0}, s{sXB}", f"s_mul_i32 s{sB1}, s{sT0}, {HBLK}", f"s_xor_b32 s{sT0}, s{sT0}, 1", f"s_mul_i32 s{sB0}, s{sT0}, {HBLK}",
            f"s_mul_i32 s{sHF}, s{sW}, {14*2048}", f"s_add_u32 s{sHF}, s{sHF}, {WS_H}", f"s_lshl_b32 s{sHS}, s{sW}, 14", f"s_add_u32 s{sHS}, s{sHS}, {WS_H + 56*2048}")
        f.e(f"s_lshl_b32 s{sT0}, s{sWN}, 12", f"s_add_u32 s{sT0}, s{sT0}, s{sT1}", f"s_lshl_b32 s{sT2}, s{sU0}, 13", f"s_add_u32 s{sT2}, s{sT2}, s{sT0}",
            f"v_add_u32 v{vHF1}, s{sT2}, v37", f"s_lshl_b32 s{sT2}, s{sU1}, 13", f"s_add_u32 s{sT2}, s{sT2}, s{sT0}",
            f"s_min_u32 s{sT0}, s{R_W1B+2}, 1", f"s_sub_u32 s{sT0}, 1, s{sT0}", f"s_lshl_b32 s{sT0}, s{sT0}, 30", f"s_add_u32 s{sT2}, s{sT2}, s{sT0}",
            f"v_add_u32 v{vHF2}, s{sT2}, v37")
        f.e(f"s_lshr_b32 s{sT0}, s{sGL}, 1", f"s_lshl_b32 s{sT0}, s{sT0}, 3", f"s_and_b32 s{sT2}, s{sGL}, 1", f"s_lshl_b32 s{sT2}, s{sT2}, 1", f"s_add_u32 s{sT0}, s{sT0}, s{sT2}",
            f"s_add_u32 s{sT0}, s{sT0}, s{sWN}", f"s_add_u32 s{sT0}, s{sT0}, 56", f"s_lshl_b32 s{sT0}, s{sT0}, 11", f"s_add_u32 s{sT0}, s{sT0}, s{sT1}",
            f"v_add_u32 v{vHS}, s{sT0}, v33")
        f.e(f"s_lshl_b32 s{sT0}, s{sG}, 1", f"s_add_u32 s{sT0}, s{sT0}, s{sWN}", f"s_lshl_b32 s{sT0}, s{sT0}, 9", f"s_add_u32 s{sT0}, s{sT0}, {WS_CS}",
            f"s_lshl_b32 s{sT1}, s{sC}, 14", f"s_add_u32 s{sT1}, s{sT1}, s{sT0}", f"v_lshl_add_u32 v7, v{vL}, 3, s{sT1}",
            f"v_xor_b32 v{vGC}, 0x4000, v7", f"s_lshl_b32 s{sT2}, s{sWM}, 30", f"v_add_u32 v{vCSS}, s{sT2}, v7",
            f"s_lshl_b32 s{sT0}, s{sW}, 9", f"s_add_u32 s{sT0}, s{sT0}, {L_CS}", f"v_lshl_add_u32 v{vGC+1}, v{vL}, 3, s{sT0}", f"v_xor_b32 v{vGC+2}, 1024, v{vGC+1}")
        f.e(f"s_lshl_b32 s{sT0}, s{sWN}, 4", f"v_add_u32 v8, s{sT0}, v6",
            f"v_lshlrev_b32 v7, 6, v8", f"v_add_u32 v{vAGW+1}, {L_AGG}, v7", f"v_lshl_add_u32 v{vAGW}, v32, 3, v{vAGW+1}",
            f"s_lshl_b32 s{sT0}, s{sG}, 13", f"s_add_u32 s{sT0}, s{sT0}, {WS_AGG}", f"v_lshl_add_u32 v8, v8, 4, s{sT0}",
            f"s_lshl_b32 s{sT1}, s{sC}, 9", f"v_add_u32 v7, s{sT1}, v8", "v_cmp_eq_u32 vcc, 0, v32", f"v_cndmask_b32 v{vAGS}, v63, v7, vcc",
            f"s_sub_u32 s{sT0}, s{sC}, 16", f"v_lshl_add_u32 v5, v4, 2, s{sT0}")
        for t in range(4):
            f.e(f"v_add_u32 v7, {t}, v5", "v_cmp_le_i32 vcc, 0, v7", "v_lshl_add_u32 v7, v7, 9, v8", f"v_cndmask_b32 v{vLBK+t}, v63, v7, vcc")
        f.e(f"s_mul_i32 s{sLE}, s{sW}, {SPW}", f"s_add_u32 s{sLE}, s{sLE}, {L_SP}")
        f.e(f"s_mul_i32 s{sW2O}, s{sXB}, 896", f"s_mul_i32 s{sT1}, s{sW}, 224", f"s_add_u32 s{sW2O}, s{sW2O}, s{sT1}", f"s_lshl_b32 s{sW2O}, s{sW2O}, 10",
            f"s_lshl_b32 s{sT1}, s{sGL}, 7", f"s_add_u32 s{sW2O}, s{sW2O}, s{sT1}")
        f.e(f"s_lshl_b32 s{sCO}, s{sXB}, 2", f"s_add_u32 s{sCO}, s{sCO}, s{sW}", f"s_lshl_b32 s{sCO}, s{sCO}, 7",
            f"s_lshl_b32 s{sT0}, s{sGL}, 16", f"s_add_u32 s{sCO}, s{sCO}, s{sT0}")
        f.e(f"s_lshl_b32 s{sT0}, s{sXB}, 6", f"s_lshl_b32 s{sT1}, s{sW}, 4", f"s_add_u32 s{sT0}, s{sT0}, s{sT1}", f"v_add_u32 v7, s{sT0}, v4",
            "v_lshlrev_b32 v34, 2, v7", f"v_add_u32 v34, {L_R}, v34",
            f"s_lshl_b32 s{sT0}, s{sC}, 7", f"v_add_u32 v7, s{sT0}, v7", "v_lshl_add_u32 v18, v7, 10, v35", "v_lshlrev_b32 v19, 1, v18")
        f.e(f"s_lshl_b32 s{sT0}, s{sC}, 4", f"s_add_u32 s{sT0}, s{sT0}, s{sG}", f"s_lshl_b32 s{sT0}, s{sT0}, 2", f"s_add_u32 s{sT0}, s{sT0}, s{sW}",
            f"s_xor_b32 s{sT1}, s{sT0}, 32", f"s_lshl_b32 s{sT0}, s{sT0}, 12", f"s_lshl_b32 s{sT1}, s{sT1}, 12",
            f"v_add_u32 v7, {WS_XCH}, v33", f"v_add_u32 v{vXS}, s{sT0}, v7", f"v_add_u32 v{vXR}, s{sT1}, v7")
        f.e("v_and_b32 v7, 7, v2", "v_xor_b32 v7, v7, v3", "v_lshlrev_b32 v7, 4, v7", "v_lshl_add_u32 v7, v2, 8, v7",
            f"s_lshl_b32 s{sT0}, s{sW}, 14", f"v_add_u32 v{vRW}, s{sT0}, v7")
        for g4 in range(1, 4): f.e(f"v_xor_b32 v{vRW+g4}, {32*g4}, v{vRW}")
        f.e("v_xor_b32 v7, v6, v4", "v_lshlrev_b32 v7, 4, v7", "v_lshl_add_u32 v7, v4, 8, v7", f"s_lshl_b32 s{sT0}, s{sW}, 12", f"v_add_u32 v{vRR}, s{sT0}, v7",
            f"v_xor_b32 v{vRR+1}, {1024|64}, v{vRR}")
        f.e("v_and_b32 v7, 2, v6", "v_and_b32 v8, 1, v6", "v_lshl_add_u32 v7, v7, 1, v8", "v_and_b32 v8, 4, v6", "v_lshrrev_b32 v8, 1, v8", "v_or_b32 v7, v7, v8",
            "v_and_b32 v8, 3, v32", "v_lshlrev_b32 v8, 1, v8", "v_xor_b32 v7, v7, v8", "v_lshlrev_b32 v7, 4, v7", "v_lshl_add_u32 v7, v6, 7, v7",
            f"s_add_u32 s{sT0}, s{sLE}, 8192", f"v_add_u32 v{vTW}, s{sT0}, v7", f"v_xor_b32 v{vTW+1}, 16, v{vTW}")
        f.e("v_and_b32 v7, 2, v9", "v_and_b32 v8, 1, v9", "v_lshl_add_u32 v7, v7, 1, v8", "v_lshlrev_b32 v7, 4, v7", "v_xor_b32 v7, v7, v17",
            "v_lshl_add_u32 v8, v3, 3, v9", "v_lshl_add_u32 v7, v8, 7, v7", f"v_add_u32 v{vTD}, s{sT0}, v7")

    def ssm_consts(self, q):
        q.wvm(self.small)
        q.e("v_lshlrev_b32 v14, 16, v14", "v_lshlrev_b32 v12, 16, v12", f"v_mul_f32 v14, {fh(1.4426950408889634)}, v14", "v_lshlrev_b32 v13, 16, v13",
            "v_exp_f32 v14, v14", "v_lshlrev_b32 v3, 4, v32", "v_cvt_pk_bf16_f32 v14, v14, v14", "v_lshlrev_b32 v14, 16, v14",
            "v_mul_f32 v17, v14, v12", "v_mul_f32 v16, v14, v13",
            f"v_mul_f32 v17, {fh(1.4426950408889634)}, v17", f"v_mul_f32 v16, {fh(0.15915494309189535)}, v16",
            "v_cvt_f32_u32 v3, v3", "v_sub_u32 v4, 3, v4", "v_lshlrev_b32 v4, 9, v4", "v_cvt_f32_u32 v4, v4")
        def cexp(d, n):
            q.e(f"v_mul_f32 v6, {n}, v16", f"v_mul_f32 v5, {n}, v17", "v_fract_f32 v6, v6", "v_exp_f32 v5, v5", f"v_cos_f32 v{d}, v6", f"v_sin_f32 v{d+1}, v6",
                f"v_mul_f32 v{d}, v{d}, v5", f"v_mul_f32 v{d+1}, v{d+1}, v5")
        cexp(20, "1.0"); cexp(22, fh(16.0)); cexp(24, fh(128.0)); cexp(26, "v3"); cexp(28, "v4")
        q.e("v_mul_f32 v6, v12, v12", "v_fmac_f32 v6, v13, v13", "v_rcp_f32 v6, v6", "v_add_f32 v5, -1.0, v20",
            "v_mul_f32 v30, v5, v12", "v_fmac_f32 v30, v21, v13", "v_mul_f32 v31, v21, v12", "v_fma_f32 v31, -v5, v13, v31",
            "v_add_f32 v6, v6, v6", "v_mul_f32 v30, v30, v6", "v_mul_f32 v31, v31, v6")

    def check(self, name, loads, checks, pre=()):
        def chk(q):
            q.e(*pre)
            for k, (r, ex) in enumerate(checks):
                if k == 0 and len(checks) > 1: q.e(f"v_cmp_ne_u32 s[{sM}:{sM+1}], {ex}, v{r}")
                elif k == len(checks) - 1:
                    q.e(f"v_cmp_ne_u32 vcc, {ex}, v{r}")
                    if k: q.e(f"s_or_b64 s[{sM}:{sM+1}], s[{sM}:{sM+1}], vcc")
                    else: q.e("s_cmp_lg_u64 vcc, 0")
                else: q.e(f"v_cmp_ne_u32 vcc, {ex}, v{r}", f"s_or_b64 s[{sM}:{sM+1}], s[{sM}:{sM+1}], vcc")
        q = Seq()
        q.wvm(loads[-1])
        chk(q)
        q.e(f"s_cbranch_scc1 L_{name}_slow")
        q.label(f"L_{name}_ok")
        o = self.ool
        o.label(f"L_{name}_slow")
        o.e(f"s_mov_b32 s{sPOLL}, 0x40000")
        o.label(f"L_{name}_loop")
        o.e("s_sleep 1")
        for l in loads: o.append(I(l.t, "o"))
        o.e("s_waitcnt vmcnt(0)", f"s_sub_u32 s{sPOLL}, s{sPOLL}, 1", f"s_cbranch_scc1 L_{name}_ok")
        chk(o)
        o.e(f"s_cbranch_scc1 L_{name}_loop", f"s_branch L_{name}_ok")
        return list(q)

    def dual(self, stores):
        self.nl += 1; n = self.nl
        real = [I(t, "vm") for t in stores]
        g = [I(f"s_cmp_eq_u32 s{sLOC}, 0"), I(f"s_cbranch_scc1 L_dr{n}")] + real + [I(f"L_de{n}:", "label")]
        o = self.ool
        o.label(f"L_dr{n}")
        for t in stores: o.append(I(t + " sc1", "o"))
        o.e(f"s_branch L_de{n}")
        return g, real[-1]

    def cmul_acc(self, q, d, a, b, c):
        q.e(f"v_fma_f32 v{d}, v{a}, v{b}, v{c}", f"v_fma_f32 v{d+1}, v{a}, v{b+1}, v{c+1}",
            f"v_fma_f32 v{d}, -v{a+1}, v{b+1}, v{d}", f"v_fma_f32 v{d+1}, v{a+1}, v{b}, v{d+1}")
    def cmul(self, q, d, a, b):
        q.e(f"v_mul_f32 v{d}, v{a}, v{b}", f"v_mul_f32 v{d+1}, v{a}, v{b+1}",
            f"v_fma_f32 v{d}, -v{a+1}, v{b+1}, v{d}", f"v_fma_f32 v{d+1}, v{a+1}, v{b}, v{d+1}")

    def w2_area(self, pc):
        return {0: (sLE, 0), 5: (sLE, 8192), 1: (sLB, SLOT), 2: (sLB, 2*SLOT), 3: (sLE, 0), 4: (sLB, SLOT)}[pc]
    def w2_dma(self, pc, run=4):
        sb, ao = self.w2_area(pc)
        G = []
        for k in range(4 if pc == 5 else 8):
            g = []; j = k % run
            if pc in (0, 1, 2, 5):
                row = {0: 0, 1: 64, 2: 128, 5: 192}[pc] + 8 * k
                if j == 0: g += [I(f"s_add_u32 m0, s{sb}, {ao + 1024*k}"), I(f"s_add_u32 s{sKW}, s{sW2O}, {row*1024}")]
                g.append(I(f"buffer_load_dwordx4 v{vW2+j}, {srd(R_W2)}, s{sKW} offen offset:{1024*j} lds", "vm"))
            else:
                if j == 0: g += [I(f"s_add_u32 m0, s{sb}, {ao + 1024*k}"), I(f"s_add_u32 s{sKW}, s{sCO}, {8*k*1024}")]
                g.append(I(f"buffer_load_dwordx4 v{vC2+j}, {srd(R_CRE if pc == 3 else R_CIM)}, s{sKW} offen offset:{1024*j} lds", "vm"))
            G.append(g)
        self.w2_last[pc] = G[-1][-1]
        return G
    def w2_reads(self, pc):
        sb, ao = self.w2_area(pc)
        L = Seq()
        if pc in (0, 1, 2, 5):
            L.e(f"v_add_u32 v{vTA}, s{sb}, v{vTR}")
            if ao >= 2 * SLOT: L.e(f"v_add_u32 v{vTA}, {ao}, v{vTA}"); ao = 0
            L.e(f"v_xor_b32 v{vTA+1}, 64, v{vTA}")
            L.wvm(self.w2_last[pc])
            j0 = {0: 0, 1: 4, 2: 8, 5: 12}[pc]
            for k in range(2 if pc == 5 else 4):
                for nu in range(2):
                    for e in range(2):
                        a = 8 * (j0 + k) + 4 * nu + 2 * e
                        r = L.e(f"ds_read_b64_tr_b16 {ar(a,2)}, v{vTA+nu} offset:{ao + 2048*k + 1024*e}")
        else:
            L.e(f"v_add_u32 v{vTA}, s{sb}, v{vCR}")
            for k in range(1, 4): L.e(f"v_xor_b32 v{vTA+k}, {32*k}, v{vTA}")
            L.wvm(self.w2_last[pc])
            j0 = 14 if pc == 3 else 18
            for k in range(4):
                for nu in range(2):
                    r = L.e(f"ds_read_b128 {ar(8*(j0+k)+4*nu)}, v{vTA+k} offset:{ao + 4096*nu}")
        self.w2_rd[pc] = r
        return groups(L)
    def after_reads(self, pc, G):
        w = Seq(); w.wds(self.w2_rd[pc])
        return [list(w) + G[0]] + G[1:]

    def ffn_epi(self, a, voff, packed):
        G = []
        for t in range(2):
            f = Seq(); b = a + 16 * t
            if packed:
                for j in range(8): f.e(f"v_pk_mul_f32 {vr(b+2*j,2)}, {vr(b+2*j,2)}, {vr(42,2)} op_sel:[0,{t}] op_sel_hi:[1,{t}]")
                for j in range(8): f.e(f"v_cvt_pk_bf16_f32 v{b+j}, v{b+2*j}, v{b+2*j+1}")
                for j in range(8): f.e(f"v_pk_max_i16 v{b+j}, v{b+j}, 0")
            else:
                for j in range(16): f.e(f"v_max_f32 v{b+j}, 0, v{b+j}")
                for j in range(16): f.e(f"v_mul_f32 v{b+j}, v{b+j}, v{42+t}")
                for j in range(8): f.e(f"v_cvt_pk_bf16_f32 v{b+j}, v{b+2*j}, v{b+2*j+1}")
            G += groups(f)
            g, last = self.dual([f"buffer_store_dwordx4 {vr(b+4*al)}, v{voff}, {srd(R_SY)}, 0 offen offset:{2048*al + 1024*t}" for al in range(2)])
            G.append(g)
        return G, last

    def split3(self, s, src, d):
        s.e(f"v_and_b32 v{vTA}, 0xffff0000, v{src}", f"v_sub_f32 v{vTA}, v{src}, v{vTA}",
            f"v_perm_b32 v{d}, v{vTA}, v{src}, s{sONES}", f"v_and_b32 v{vTA+1}, 0xffff0000, v{vTA}", f"v_sub_f32 v{vTA+1}, v{vTA}, v{vTA+1}",
            f"v_cvt_pk_bf16_f32 v{d+1}, v{vTA+1}, 0")

    def phase1(self, q, last):
        c = self.c
        RE, IM = ACC_S, ACC_S + 16
        MF8 = "v_mfma_f32_32x32x8_bf16"; MF = "v_mfma_f32_32x32x16_bf16"
        MFR = 200
        q.wvm(last[0]); q.e("s_barrier"); self.stamp(q)
        D = c.d1; D2 = 3
        RD = {}
        for n in range(D): RD[n] = self.frag_reads(n); q.e(*RD[n])
        G, l = self.stage_dma(2); last.append(l)
        dma = Stream(G, every=1)
        s = Seq()
        s.e(f"v_readfirstlane_b32 s{sTAG}, v16", "v_permlane32_swap_b32 v48, v49", "v_permlane32_swap_b32 v50, v51", f"s_add_u32 s{sTAG}, s{sTAG}, {hex(TAGK)}",
            "v_add_f32 v48, v48, v49", "v_add_f32 v50, v50, v51", f"v_mov_b32 v54, s{sTAG}", f"v_mov_b32 v55, s{sXCC}",
            "v_permlane16_swap_b32 v48, v50", "v_add_f32 v48, v48, v50")
        for k in (8, 4, 2, 1): s.e(f"v_add_f32_dpp v48, v48, v48 row_ror:{k} row_mask:0xf bank_mask:0xf")
        s.e("v_mov_b32 v49, v48", f"v_mov_b32 v{CS+2}, s{sTAG}", "v_permlane16_swap_b32 v48, v49",
            f"v_mul_f32 v48, {fh(1/512)}, v48", f"v_mul_f32 v49, {fh(1/512)}, v49", "v_fma_f32 v49, -v48, v48, v49", "v_max_f32 v49, 0, v49",
            "v_cvt_pk_bf16_f32 v49, v49, v49", "v_lshlrev_b32 v49, 16, v49", f"v_add_f32 v49, {fh(1e-5)}, v49",
            "v_cvt_pk_bf16_f32 v49, v49, v49", "v_lshlrev_b32 v49, 16, v49", "v_sqrt_f32 v49, v49",
            "v_cvt_pk_bf16_f32 v53, -v48, -v48",
            "v_cvt_pk_bf16_f32 v49, v49, v49", "v_lshlrev_b32 v49, 16, v49", "v_rcp_f32 v52, v49")
        s.e(f"buffer_store_dwordx4 {vr(52)}, v{vSTS}, {srd(R_SY)}, 0 offen sc1")
        self.ssm_consts(s)
        A = groups(s)
        A.append(("nb", c.gather_at))
        gl_ = [I(f"buffer_load_dwordx4 {vr(40)}, v{vGS}, {srd(R_SY)}, 0 offen sc1", "vm")]
        A.append(gl_)
        A.append(("nb", c.check_at))
        A.append(self.check("ga", gl_, [(42, f"s{sTAG}")]))
        A.append([I(f"v_cmp_ne_u32 vcc, s{sXCC}, v43"), I(f"s_cmp_eq_u32 s{sXB}, 0"), I(f"s_cselect_b32 s{sT0}, vcc_lo, vcc_hi"), I(f"s_cmp_eq_u32 s{sT0}, 0"),
                  I(f"s_cselect_b32 s{sLOC}, {0 if c.force_remote else 1}, 0")])
        s = Seq()
        s.e("v_lshrrev_b32 v60, 2, v37", f"s_lshl_b32 s{sT0}, s{sWM}, 8", f"s_add_u32 s{sT0}, s{sT0}, {L_R}", f"v_add_u32 v60, s{sT0}, v60",
            "v_and_b32 v61, 0xffff0000, v41")
        A += groups(s); s = Seq()
        A.append([I("ds_write2_b32 v60, v40, v61 offset0:0 offset1:128", "ds"), I(f"ds_write_b64 v{vGC+1}, {vr(CS,2)}", "ds")])
        assert 104 <= c.check_at <= 110
        s.e(f"v_mov_b32 v{MFR}, v41", f"v_mov_b32 v{MFR+2}, v41", "v_mov_b32 v42, v40", "v_mov_b32 v43, v40", "v_lshlrev_b32 v60, 6, v32",
            f"v_permlane32_swap_b32 v{MFR}, v{MFR+2}", "v_permlane32_swap_b32 v42, v43", f"v_mov_b32 v{MFR+1}, v{MFR}", f"v_mov_b32 v{MFR+3}, v{MFR+2}",
            f"v_add_u32 v60, {L_R}, v60")
        rv = [s.e(f"ds_read_b128 {vr(44+4*k)}, v60 offset:{16*k}") for k in range(4)]
        A += groups(s)
        assert c.check_at >= 92
        sA = Stream(A, start=4 * (c.stat_at + 1), dl=119)
        early = (self.w2_dma(0, 2) + self.w2_dma(5, 2)) if c.w2early else []
        for n in range(32):
            p = n & 3
            b = self.fb(n); rd = RD[n]
            if (n + D) % 4 == 0:
                i = (n + D) // 4 - 1
                flush(q, [dma])
                if i in c.ts_fine: self.stamp(q)
                q.wds_all()
                if i in c.ts_fine: self.stamp(q)
                q.wvm(last[i + 1])
                if i in c.ts_fine: self.stamp(q)
                q.e("s_barrier")
                if c.ts and i in c.ts_stages: self.stamp(q)
                if i + 3 < 10:
                    G, l = self.stage_dma(i + 3); last.append(l)
                    if i >= 1 and early: G = G + early[:2]; early = early[2:]
                    dma = Stream(G, every=c.dma_every)
                if i == 7: csr = q.e(f"ds_read_b64 {vr(62,2)}, v{vGC+2}")
            nxt = RD[n + D] = self.frag_reads(n + D)
            if n == 31:
                for e in range(32 + D, 32 + D2):
                    RD[e] = self.frag_reads(e); nxt = nxt + RD[e]
            z = lambda a: ("0" if n == 0 else vr(a, 16))
            M = [(f"{MF} {vr(RE,16)}, {ar(8*n)}, {vr(b)}, {z(RE)}", rd[1]),
                 (f"{MF} {vr(IM,16)}, {ar(8*n+4)}, {vr(b)}, {z(IM)}", rd[2]),
                 (f"{MF} {vr(ACC_F1,16)}, {vr(b+4)}, {ar(8*n)}, {z(ACC_F1)}", rd[4]),
                 (f"{MF} {vr(ACC_F1+16,16)}, {vr(b+4)}, {ar(8*n+4)}, {z(ACC_F1+16)}", rd[4])]
            sched = [2, 2, 1, 1] if D == 1 else [2, 1, 1, 2]
            k = 0
            for j, (m, dep) in enumerate(M):
                q.wds(rd[4] if D > 1 else dep); q.e(m)
                mine = nxt[k:k + sched[j]]; k += sched[j]
                q.e(*mine)
                fill_gap(q, 4 * n + j, len(mine) + (0.5 if D == 1 else 0), c.cap1, [dma, sA])
                if n == 31 and j == 1:
                    q.e(f"s_mov_b32 s{sONES}, 0x07060302"); q.wds(csr)
                    q.e(f"v_add_f32 v{CS}, v{CS}, v62", f"v_add_f32 v{CS+1}, v{CS+1}, v63")
                if n == 31 and j == 2: self.split3(q, CS, 204)
                if n == 31 and j == 3: self.split3(q, CS + 1, 206)
            if n == c.stat_at:
                q.wvm(self.small0)
                for r in range(4):
                    q.e(f"v_dot2c_f32_bf16 v48, s{sONES}, v{40+r}", f"v_dot2c_f32_bf16 v49, s{sONES}, v{44+r}",
                        f"v_dot2c_f32_bf16 v50, v{40+r}, v{40+r}", f"v_dot2c_f32_bf16 v51, v{44+r}, v{44+r}")
            dn = [n - 1, n + 1] if p == 1 else []
            if n == 29: dn = [28, 29, 30]
            if n == 30: dn = [31]
            if p == 1 and dma.it: q.e(*dma.it.pop(0))
            for e in dn:
                q.wds(RD[e][4]); be = self.fb(e)
                for r in range(4):
                    q.e(f"v_dot2c_f32_bf16 v{CS}, s{sONES}, v{be+r}", f"v_dot2c_f32_bf16 v{CS+1}, s{sONES}, v{be+4+r}")
        assert not sA.it
        for t in range(2): q.e(f"{MF8} {vr(RE+16*t,16)}, {vr(MFR+2*t,2)}, {vr(204,2)}, {vr(RE+16*t,16)}")
        q.e(f"v_mov_b32 v{CS}, v{CS+2}")
        q.e(f"buffer_store_dwordx2 {vr(CS,2)}, v{vCSS}, {srd(R_SY)}, 0 offen sc1")
        for t in range(2): q.e(f"{MF8} {vr(ACC_F1+16*t,16)}, {vr(206,2)}, {vr(MFR+2*t,2)}, {vr(ACC_F1+16*t,16)}")
        self.stamp(q)
        s = Seq()
        for i in range(16): s.e(f"v_permlane16_swap_b32 v{RE+i}, v{IM+i}")
        s.wds(rv[-1])
        cr, ci = RE, IM
        for i in range(16):
            s.e(f"v_mul_f32 v{RE+i}, v{RE+i}, v{44+i}", f"v_mul_f32 v{IM+i}, v{IM+i}, v{44+i}")
            if i:
                d = 60 if i & 1 else 62
                s.e(f"v_fma_f32 v{d}, v20, v{cr}, v{RE+i}", f"v_fma_f32 v{d+1}, v20, v{ci}, v{IM+i}",
                    f"v_fma_f32 v{d}, -v21, v{ci}, v{d}", f"v_fma_f32 v{d+1}, v21, v{cr}, v{d+1}")
                cr, ci = d, d + 1
        s.e(f"ds_write_b64 v{vAGW}, {vr(cr,2)}")
        KB = c.kbar
        sS1 = Stream(groups(s), dl=2 * (KB - c.agg_lead) - 1)
        s = Seq()
        ag = [s.e(f"ds_read_b128 {vr(44+4*k)}, v{vAGW+1} offset:{16*k}") for k in range(4)]
        s.e(f"v_mov_b32 v62, s{sTAG}")
        for j in range(1, 8):
            s.wds(ag[j // 2])
            self.cmul_acc(s, 60 if j == 7 else 44 + 2 * j, 22, 44 + 2 * (j - 1), 44 + 2 * j)
        s.e(f"buffer_store_dwordx3 {vr(60,3)}, v{vAGS}, {srd(R_SY)}, 0 offen sc1")
        cl_ = s.e(f"buffer_load_dwordx2 {vr(CS,2)}, v{vGC}, {srd(R_SY)}, 0 offen sc1")
        self.stamp(s)
        sS2 = Stream(groups(s), start=2 * KB)
        P = [[I("v_mov_b32 v40, 0"), I("v_mov_b32 v41, 0")]]
        for j in range(1, 8):
            P.append([I(f"v_cmp_eq_u32 vcc, {j}, v32"), I(f"v_cndmask_b32 v40, v40, v{44+2*(j-1)}, vcc"), I(f"v_cndmask_b32 v41, v41, v{45+2*(j-1)}, vcc")])
        sS2.it += P
        sF1 = Stream([])
        w0 = c.w2_resume
        d1 = self.w2_dma(1)
        sR0 = Stream(self.w2_reads(0), start=10, dl=w0 + 14)
        sR1 = Stream(self.w2_reads(1), start=w0 + 15, dl=w0 + 30)
        sR5 = Stream(self.w2_reads(5), start=w0 + 31)
        W = d1 + [("nb", w0)] + self.w2_dma(2) + [("nb", w0 + 16)] + self.after_reads(0, self.w2_dma(3)) + [("nb", w0 + 32)] + self.after_reads(1, self.w2_dma(4))
        sW2 = Stream(W, every=2)
        K9 = 16 - D2
        for n in range(32, 64):
            k = n - 32
            b = self.fb(n)
            if k == KB and KB != K9:
                flush(q, [sS1]); q.wds_all(); q.e("s_barrier")
            if k == K9:
                if KB == K9: flush(q, [sS1])
                q.wds_all(); q.wvm(last[9]); q.e("s_barrier")
            nxt = RD[n + D2] = self.frag_reads(n + D2)
            for t in range(2):
                d = ACC_F2 + 16 * t
                q.wds(RD[n][-1])
                q.e(f"{MF} {vr(d,16)}, {vr(b+4)}, {ar(8*k+4*t)}, {'0' if k == 0 else vr(d,16)}")
                q.e(*nxt[t:t+1])
                fill_gap(q, 2 * k + t, 1.25, c.cap2, [sW2, sS1, sS2, sR0, sR1, sR5])
                if k == 30 and t == 0:
                    flush(q, [sS2]); q.extend(self.check("c2", [cl_], [(CS, f"s{sTAG}")]))
                if k == 30 and t == 1:
                    flush(q, [sR5]); self.split3(q, CS + 1, 222)
        for t in range(2): q.e(f"{MF8} {vr(ACC_F2+16*t,16)}, {vr(222,2)}, {vr(MFR+2*t,2)}, {vr(ACC_F2+16*t,16)}")
        self.stamp(q)
        flush(q, [sF1])
        self.w2_left = [g for g in sW2.it if not isinstance(g, tuple)]

    def flag_store(self, kind, after):
        q = Seq()
        q.e(f"v_mov_b32 v{vTA+3}, s{sTAG}")
        q.wvm(after)
        g, _ = self.dual([f"buffer_store_dword v{vTA+3}, v{vFL}, {srd(R_SY)}, 0 offen offset:{128*kind}"])
        q.extend(g)
        return list(q)

    def ssm_part2(self, packed):
        RE, IM = ACC_S, ACC_S + 16
        a = Seq()
        lb = [a.e(f"buffer_load_dwordx3 {vr(44+4*t,3)}, v{vLBK+t}, {srd(R_SY)}, 0 offen sc1") for t in range(4)]
        A = groups(a)
        A.append([I(f"v_mov_b32 v60, s{sTAG}"), I(f"s_mov_b32 s{sT0}, {OOB}")])
        for t in range(4): A.append([I(f"v_cmp_gt_u32 vcc, s{sT0}, v{vLBK+t}"), I(f"v_cndmask_b32 v{47+4*t}, 0, v60, vcc")])
        B = [self.check("lb", lb, [(46 + 4 * t, f"v{47+4*t}") for t in range(4)])]
        q = Seq()
        self.stamp(q)
        self.cmul_acc(q, 60, 24, 44, 48); self.cmul_acc(q, 62, 24, 60, 52); self.cmul_acc(q, 60, 24, 62, 56)
        self.cmul(q, 62, 28, 60)
        for sw in ("16", "32"):
            q.e("v_mov_b32 v60, v62", "v_mov_b32 v61, v63", f"v_permlane{sw}_swap_b32 v60, v62", f"v_permlane{sw}_swap_b32 v61, v63",
                "v_add_f32 v62, v60, v62", "v_add_f32 v63, v61, v63")
        self.cmul_acc(q, 60, 26, 62, 40)
        self.cmul(q, 62, 30, 60)
        pr, pi_ = 62, 63
        for i in range(16):
            q.e(f"v_fma_f32 v{RE+i}, v20, v{pr}, v{RE+i}", f"v_fma_f32 v{IM+i}, v20, v{pi_}, v{IM+i}",
                f"v_fma_f32 v{RE+i}, -v21, v{pi_}, v{RE+i}", f"v_fma_f32 v{IM+i}, v21, v{pr}, v{IM+i}")
            pr, pi_ = RE + i, IM + i
            if i & 1:
                j = i >> 1
                q.e(f"v_cvt_pk_bf16_f32 v{44+j}, v{RE+2*j}, v{RE+2*j+1}", f"v_cvt_pk_bf16_f32 v{52+j}, -v{IM+2*j}, -v{IM+2*j+1}")
            if i == 7: q.e(f"ds_write_b128 v{vTW}, {vr(44)}", f"ds_write_b128 v{vTW}, {vr(52)} offset:2048")
        q.e(f"ds_write_b128 v{vTW+1}, {vr(48)}", f"ds_write_b128 v{vTW+1}, {vr(56)} offset:2048")
        q.e(f"v_xor_b32 v61, {512|32}, v{vTD}", f"v_xor_b32 v62, 64, v{vTD}", "v_xor_b32 v63, 64, v61", f"s_movk_i32 s{sT1}, 8192")
        ad = {(0, 0): vTD, (0, 1): 61, (1, 0): 62, (1, 1): 63}
        for part in range(2):
            for mu in range(2):
                for e in range(2):
                    tr = q.e(f"ds_read_b64_tr_b16 {vr(64 + 8*part + 4*mu + 2*e,2)}, v{ad[mu, e]} offset:{2048*part}")
        B += groups(q)
        g, last = self.dual([f"buffer_store_dwordx4 {vr(64+8*part+4*mu)}, v{vHS}, {srd(R_SY)}, {('0', f's{sT1}')[part]} offen offset:{1024*mu}" for part in range(2) for mu in range(2)])
        w = Seq(); w.wds(tr)
        B.append(list(w) + g)
        return A, B, last

    def base_stream(self):
        f = Seq()
        mr = [f.e(f"ds_read2_b32 {vr(224+2*ii,2)}, v34 offset0:{4*ii} offset1:{128+4*ii}") for ii in range(4)]
        T = 88; D = 20
        f.wvm(self.xl[-1])
        f.e(f"v_lshlrev_b32 v{D}, 16, v38", f"v_and_b32 v{D+1}, 0xffff0000, v38", f"v_lshlrev_b32 v{D+2}, 16, v39", f"v_and_b32 v{D+3}, 0xffff0000, v39")
        f.wds(mr[-1])
        for ii in range(4):
            b = BASE + 4 * ii; r = 224 + 2 * ii
            f.e(f"v_lshlrev_b32 v{b+2}, 16, v{b+1}", f"v_and_b32 v{b+3}, 0xffff0000, v{b+1}", f"v_and_b32 v{b+1}, 0xffff0000, v{b}", f"v_lshlrev_b32 v{b}, 16, v{b}")
            for e in range(4): f.e(f"v_add_f32 v{T+e}, v{b+e}, v{r+1}")
            def rnd():
                f.e(f"v_cvt_pk_bf16_f32 v{T+4}, v{T}, v{T+1}", f"v_cvt_pk_bf16_f32 v{T+5}, v{T+2}, v{T+3}",
                    f"v_lshlrev_b32 v{T}, 16, v{T+4}", f"v_and_b32 v{T+1}, 0xffff0000, v{T+4}", f"v_lshlrev_b32 v{T+2}, 16, v{T+5}", f"v_and_b32 v{T+3}, 0xffff0000, v{T+5}")
            rnd()
            for e in range(4): f.e(f"v_mul_f32 v{T+e}, v{T+e}, v{r}")
            rnd()
            for e in range(4): f.e(f"v_mul_f32 v{T+e}, v{T+e}, v{D+e}")
            rnd()
            for e in range(4): f.e(f"v_add_f32 v{b+e}, v{b+e}, v{T+e}")
        return groups(f)

    def transition(self, q):
        c = self.c
        RE, IM = ACC_S, ACC_S + 16
        F1, _ = self.ffn_epi(ACC_F1, vHF1, True)
        F2, ffn_last = self.ffn_epi(ACC_F2, vHF2, True)
        for g in F1 + F2: q.e(*g)
        A, B, ssm_last = self.ssm_part2(True)
        for g in A: q.e(*g)
        f = Seq()
        for j in range(8):
            a, b = RE + 2 * j, IM + 2 * j
            f.e(f"v_pk_mul_f32 {vr(168,2)}, {vr(b,2)}, {vr(30,2)} op_sel:[0,1] op_sel_hi:[1,1]",
                f"v_pk_mul_f32 {vr(b,2)}, {vr(b,2)}, {vr(30,2)} op_sel:[0,0] op_sel_hi:[1,0]",
                f"v_pk_fma_f32 {vr(b,2)}, {vr(a,2)}, {vr(30,2)}, {vr(b,2)} op_sel:[0,1,0] op_sel_hi:[1,1,1]",
                f"v_pk_fma_f32 {vr(a,2)}, {vr(a,2)}, {vr(30,2)}, {vr(168,2)} op_sel:[0,0,0] op_sel_hi:[1,0,1] neg_lo:[0,0,1] neg_hi:[0,0,1]")
        assert c.w2early
        left = self.w2_left
        k = c.left_pre
        q.extend(merge(f, left[:k]))
        q.extend(self.flag_store(0, ffn_last))
        self.stamp(q)
        for g in left[k:] + self.w2_reads(2): q.e(*g)
        fl = I(f"buffer_load_dword v180, v36, {srd(R_SY)}, 0 offen sc1", "vm")
        w = Seq(); w.wds(self.w2_rd[5])
        B[1] = list(w) + B[1]
        for g in B[:c.fl_at]: q.e(*g)
        q.e(fl)
        for g in B[c.fl_at:c.ff_at]: q.e(*g)
        self.Brest = B[c.ff_at:]
        self.ssm_last = ssm_last
        q.extend(self.check("ff", [fl], [(180, f"s{sTAG}")]))
        self.stamp(q)

    def phase2(self, q):
        c = self.c
        NR = c.nring; ak = c.akept; NT = c.ntail; LEAD = c.lead
        assert ak % 2 == 0 and NR >= LEAD + NT - 1 and NR <= 10
        ACC = (96, 160)
        steps = [(0, j) for j in range(14)] + [(1, j) for j in range(ak)] + [(0, j) for j in range(14, 22)] + [(1, j) for j in range(ak, 22)]
        first_ssm = 14 + ak; sent_done = first_ssm + 7
        ld = {}
        def issue(n):
            ps, j = steps[n]
            a = 176 + 8 * (n % NR)
            blk = (sB0, sB1)[ps]
            g = []
            if j % 2 == 0:
                if n and steps[n-1] == (ps, j - 1) and j != 14: g.append(I(f"s_add_u32 s{sKW}, s{sKW}, 4096"))
                elif j < 14: g += [I(f"s_add_u32 s{sKW}, s{blk}, s{sHF}"), I(f"s_add_u32 s{sKW}, s{sKW}, {2048*j}")]
                else: g.append(I(f"s_add_u32 s{sKW}, s{blk}, s{sHS}"))
            o = 2048 * (j % 2)
            ld[n, 0] = I(f"buffer_load_dwordx4 {ar(a)}, v33, {srd(R_SY)}, s{sKW} offen offset:{o} {c.hld}", "vm")
            ld[n, 1] = I(f"buffer_load_dwordx4 {ar(a+4)}, v33, {srd(R_SY)}, s{sKW} offen offset:{o+1024} {c.hld}", "vm")
            return [g + [ld[n, 0]], [ld[n, 1]]]
        order = []
        n = 0
        while n < 44:
            if n in (sent_done + 1 - NT, 44 - NT):
                for k in range(4): order += [(m, k) for m in range(n, n + NT)]
                n += NT
            else:
                order += [(n, k) for k in range(4)]; n += 1
        pos = {e: i for i, e in enumerate(order)}
        gate = first_ssm - LEAD
        B = self.Brest
        for n in range(LEAD):
            for g in issue(n):
                q.e(*g)
                for g2 in B[:c.fill_mix]: q.e(*g2)
                B = B[c.fill_mix:]
        fs = I(f"buffer_load_dword v{vLBK}, v36, {srd(R_SY)}, 0 offen offset:128 sc1", "vm")
        st = Seq(); self.stamp(st)
        L = []
        for n in range(LEAD, 44):
            nb = 4 * (n - LEAD)
            if n >= NR: nb = max(nb, max(pos[n - NR, k] for k in range(4)))
            L.append(("nb", nb))
            if n == first_ssm: L.append(self.check("fs", [fs], [(vLBK, f"s{sTAG}")]) + list(st))
            L += issue(n)
        sL = Stream(L, every=2)
        self.xl = []
        P = B + self.w2_reads(3) + self.w2_reads(4) + [("nb", c.sflag_at)] + [self.flag_store(1, self.ssm_last)]
        for ii in range(4):
            self.xl.append(I(f"buffer_load_dwordx2 {vr(2+4*ii,2)}, v18, {srd(R_X)}, s{sPOLL} offen", "vm"))
            P.append([I(f"s_movk_i32 s{sPOLL}, {4096*ii}"), self.xl[-1]])
        P += [("nb", 4 * max(gate - c.fs_lead, 0) + 1), [fs]]
        sP = Stream(P, dl=4 * gate - 1, every=2)
        sB = Stream(self.base_stream(), start=4 * gate + 4)
        XV = 64; TB = 80
        s = Seq()
        s.e(f"v_mov_b32 v{TB}, s{sTAG}")
        for k in range(1, 4): s.e(f"v_lshrrev_b32 v{TB+k}, {8*k}, v{TB}")
        s.e(f"s_movk_i32 s{sT2}, 0xff")
        s.wds_all(); s.e("s_barrier")
        R0 = [("nb", 4 * gate + 2)] + groups(s)
        def tile(k): return (k & 1, k >> 1)
        def red_write(ps, lastn):
            out = []
            for k in range(4):
                nu, mu = tile(k)
                out.append(("nb", pos[lastn, k] + 2))
                for g4 in range(4):
                    out.append([I(f"ds_write_b128 v{vRW+g4}, {vr(ACC[ps] + 32*nu + 16*mu + 4*g4)} offset:{128*nu + 8192*mu}", "ds")])
            return out
        def red_read(s, dst):
            return [s.e(f"ds_read_b128 {vr(dst + 16*ii + 4*src)}, v{vRR + (ii&1)} offset:{2048*(ii>>1) + 16384*src}") for ii in range(4) for src in range(4)]
        s = Seq()
        s.wds_all(); s.e("s_barrier")
        R = red_read(s, 96)
        for g4 in range(4): s.e(f"v_add_u32 v{vRW+g4}, 0x10000, v{vRW+g4}")
        Ga = groups(s); s = Seq()
        for ii in range(4):
            s.wds(R[4 * ii + 3])
            for e in range(4):
                d = XV + 4 * ii + e; s0 = 96 + 16 * ii + e
                s.e(f"v_add_f32 v{s0}, v{s0}, v{s0+4}", f"v_add_f32 v{d}, v{s0+8}, v{s0+12}", f"v_add_f32 v{d}, v{d}, v{s0}",
                    f"v_bfi_b32 v{d}, s{sT2}, v{TB+e}, v{d}")
        s.e(f"v_add_u32 v{vRR}, 0x10000, v{vRR}", f"v_add_u32 v{vRR+1}, 0x10000, v{vRR+1}")
        Gb = groups(s)
        s = Seq()
        for k in range(4):
            s.e(f"buffer_store_dwordx4 {vr(XV+4*k)}, v{vXS}, {srd(R_SY)}, 0 offen offset:{1024*k} sc1")
        self.stamp(s)
        e0 = 4 * (sent_done + 1)
        XR = 40
        xl = [I(f"buffer_load_dwordx4 {vr(XR+4*k)}, v{vXR}, {srd(R_SY)}, 0 offen offset:{1024*k} sc1", "vm") for k in range(4)]
        sR = Stream(R0 + red_write(0, sent_done) + [("nb", e0 + c.bar_lag)] + Ga + [("nb", e0 + c.bar_lag + 8)] + Gb + [("nb", 4 * c.send_at)] + [list(s)]
                    + red_write(1, 43), wev=c.wev)
        sX = Stream([[x] for x in xl], start=c.xl_at, every=2)
        q.wds(self.w2_rd[2])
        for gi, (n, k) in enumerate(order):
            ps, j = steps[n]; nu, mu = tile(k)
            a = 176 + 8 * (n % NR); d = ACC[ps] + 32 * nu + 16 * mu
            while ld[n, mu].idx is None and not any(ld[n, mu] is x for x in q):
                g = sL.it.pop(0)
                if not isinstance(g, tuple): q.e(*g)
            q.wvm(ld[n, mu])
            if n == first_ssm: q.wds(self.w2_rd[4])
            if k == 0 and n in c.p2stamps: self.stamp(q)
            q.e(f"v_mfma_f32_32x32x16_bf16 {vr(d,16)}, {ar(8*j+4*nu)}, {ar(a+4*mu)}, {'0' if j == 0 else vr(d,16)}")
            fill_gap(q, gi, 0.5, c.cap3, [sL, sP, sR, sX, sB])
        self.stamp(q)
        flush(q, [sR, sX, sB])
        q.wds_all(); q.e("s_barrier")
        R = red_read(q, 96)
        pre = [f"s_mov_b32 s{sT0}, 0x0c0c0400", f"s_mov_b32 s{sT1}, 0x05040100"]
        for k in range(4):
            r = XR + 4 * k
            pre += [f"v_perm_b32 v60, v{r+1}, v{r}, s{sT0}", f"v_perm_b32 v61, v{r+3}, v{r+2}, s{sT0}", f"v_perm_b32 v{56+k}, v61, v60, s{sT1}"]
        q.extend(self.check("xc", xl, [(56 + k, f"s{sTAG}") for k in range(4)], pre))
        self.stamp(q)
        for idx in range(8):
            q.e(f"v_pk_add_f32 {vr(BASE+2*idx,2)}, {vr(XR+2*idx,2)}, {vr(BASE+2*idx,2)}")
        for ii in range(4):
            q.wds(R[4 * ii + 3])
            s0 = 96 + 16 * ii
            for e in range(2):
                q.e(f"v_pk_add_f32 {vr(s0+2*e,2)}, {vr(s0+2*e,2)}, {vr(s0+4+2*e,2)}", f"v_pk_add_f32 {vr(s0+8+2*e,2)}, {vr(s0+8+2*e,2)}, {vr(s0+12+2*e,2)}")
            for e in range(2): q.e(f"v_pk_add_f32 {vr(s0+2*e,2)}, {vr(s0+2*e,2)}, {vr(BASE+4*ii+2*e,2)}")
            for e in range(2): q.e(f"v_pk_add_f32 {vr(s0+2*e,2)}, {vr(s0+2*e,2)}, {vr(s0+8+2*e,2)}")
            q.e(f"s_movk_i32 s{sT0}, {8192*ii}")
            q.e(f"buffer_store_dwordx4 {vr(s0)}, v19, {srd(R_OUT)}, s{sT0} offen")
        q.e(f"s_lshl_b32 s{sT0}, s{sG}, 2", f"s_or_b32 s{sT0}, s{sT0}, s{sW}", f"s_lshl_b32 s{sT0}, s{sT0}, 4", f"s_or_b32 s{sT0}, s{sT0}, s{sC}",
            f"s_cmp_eq_u32 s{sT0}, 15", "s_cbranch_scc0 L_nobump",
            f"v_mov_b32 v56, s{sTAG}", "v_mov_b32 v57, 0", "s_mov_b64 exec, 1")
        q.e(f"buffer_store_dword v56, v57, {srd(R_SY)}, 0 offen sc1")
        q.e("s_mov_b64 exec, -1")
        q.label("L_nobump")

    def write_ts(self, q):
        if not self.c.ts: return
        q.wds_all(); q.wvm_all()
        q.e("s_memtime s[46:47]", "s_memrealtime s[92:93]"); q.wds_all()
        q.e(f"s_lshl_b32 s{sT0}, s2, 2", f"s_add_u32 s{sT0}, s{sT0}, s{sW}", f"s_lshl_b32 s{sT0}, s{sT0}, 6", f"s_add_u32 s{sT0}, s{sT0}, {WS_TS}", "v_mov_b32 v2, 0")
        q.e("s_mov_b64 exec, 1")
        def put(k): q.e(f"buffer_store_dword v3, v2, {srd(R_SY)}, s{sT0} offen offset:{4*k}")
        assert self.nts + 1 <= 14
        for k in range(self.nts + 2):
            if k == 0: q.e("v_mov_b32 v3, v255")
            elif k == self.nts + 1: q.e("s_sub_u32 s46, s46, s42", "v_mov_b32 v3, s46")
            else:
                r = TSREG[k - 1]; q.e(f"s_sub_u32 s{r}, s{r}, s42", f"v_mov_b32 v3, s{r}")
            put(k)
        if self.nts + 1 < 14:
            q.e(f"s_lshl_b32 s{sT1}, s{sXCC}, 4", f"s_or_b32 s{sT1}, s{sT1}, s{sLOC}", f"v_mov_b32 v3, s{sT1}"); put(14)
        q.e("v_mov_b32 v3, s92"); put(15)
        q.wvm_all()

    def add_prof(self, q):
        lo, step = self.c.prof
        out = Seq(); unsafe = False; started = False; acc = 0; n = 0; idx = 0; nm = 0
        NP = len(TSREG)
        self.prof_pts = []
        for ins in q:
            t = ins.t
            if started and not unsafe and n < 64 and idx >= lo and acc >= step and ins.kind not in WAITK and not t.startswith(("s_cbranch", "s_branch", "s_cselect", "s_addc")) and ins.kind != "label":
                r = TSREG[n % NP]
                if n >= NP: out.e(f"v_writelane_b32 v0, s{r}, {n - NP}")
                out.e(f"s_memtime s[{r}:{r+1}]"); self.prof_pts.append((idx, nm, t[:50])); n += 1; acc = 0
            out.append(ins)
            if t == "s_barrier": started = True
            if started and ins.kind != "label":
                idx += 1; acc += 1
                if t.startswith("v_mfma"): nm += 1
            if t.startswith("s_cbranch"): unsafe = started
            if ins.kind == "label" and (t.endswith("_ok:") or t.startswith(("L_de", "L_nobump"))): unsafe = False
        out.wds_all()
        for k in range(max(0, n - NP), n): out.e(f"v_writelane_b32 v0, s{TSREG[k % NP]}, {k}")
        out.e(f"s_lshl_b32 s{sT0}, s2, 2", f"s_add_u32 s{sT0}, s{sT0}, s{sW}", f"s_lshl_b32 s{sT0}, s{sT0}, 8", f"s_add_u32 s{sT0}, s{sT0}, {WS_TS + 65536}",
              "v_subrev_u32 v0, s42, v0", f"v_lshlrev_b32 v2, 2, v{vL}")
        out.e(f"buffer_store_dword v0, v2, {srd(R_SY)}, s{sT0} offen")
        return out

    def build(self):
        q = Seq()
        q.label("L_start")
        last = self.prologue(q)
        self.phase1(q, last)
        self.transition(q)
        self.phase2(q)
        if self.c.prof: q = self.add_prof(q)
        self.write_ts(q)
        q.label("L_end")
        q.e("s_endpgm")
        q.extend(self.ool)
        return finalize(q)

HDR = """; @launch grid=(256,1,1) block=(256,1,1) lds=163840
.amdgcn_target "amdgcn-amd-amdhsa--gfx950"
.text
.globl {n}_kernel
.p2align 8
.type {n}_kernel,@function
{n}_kernel:
"""
TAIL = """
.section .rodata,"a"
.p2align 6
.amdhsa_kernel {n}_kernel
  .amdhsa_next_free_vgpr 512
  .amdhsa_next_free_sgpr 102
  .amdhsa_accum_offset 256
  .amdhsa_group_segment_fixed_size 0
  .amdhsa_kernarg_size 120
  .amdhsa_user_sgpr_count 2
  .amdhsa_user_sgpr_kernarg_segment_ptr 1
  .amdhsa_system_sgpr_workgroup_id_x 1
.end_amdhsa_kernel
"""
def generate(cfg):
    g = Gen(cfg)
    body = g.build()
    return HDR.format(n=NAME) + "\n".join(("" if l.endswith(":") else "    ") + l for l in body) + TAIL.format(n=NAME), g

if __name__ == "__main__":
    cfg = Cfg()
    for a in sys.argv[2:]:
        k, v = a.split("="); setattr(cfg, k, eval(v))
    txt, g = generate(cfg)
    open(sys.argv[1], "w").write(txt)
```

```python
import sys, struct
from asmlib import *

NAME = "parallel_sum__ssm_conv_s5__dense_activation_relu__prompt"
def f2u(x): return struct.unpack("<I", struct.pack("<f", x))[0]
def fh(x): return hex(f2u(x))

WS_FLAG = 524288
WS_STAT = 786432
WS_AGG  = 65536
WS_CS   = 262144
WS_XCH  = 1 << 20
WS_TS   = (7 << 20) + (1 << 19)
WS_H    = 8 << 20
HBLK = 88 * 2048
WS_END = WS_H + 64 * HBLK
TAGK = 0x9E3779B9
OOB = 0x40000000

sCO, sW, sWM, sWN, sC, sG, sGL, sU0, sROT, sXB, sT0, sT1, sT2 = 3, 4, 5, 6, 7, 8, 9, 10, 11, 12, 13, 14, 15
P_X, P_LRE, P_LIM, P_BRE, P_BIM, P_CRE, P_CIM, P_LDT = 16, 18, 20, 22, 24, 26, 28, 30
P_DSK, P_W1, P_W2, P_OUT, P_WS = 32, 36, 38, 40, 44
sU1, sK4 = 34, 35
sM = 46
R_X, R_BS, R_W1A, R_W1B, R_W2, R_CRE, R_CIM, R_OUT, R_SY = 48, 52, 56, 60, 72, 76, 80, 84, 88
sB0, sB1, sHF, sHS = 64, 65, 66, 67
sKX, sKW, sLB, sONES, sTAG, sPOLL, sLE, sW2O = 92, 93, 94, 95, 96, 97, 98, 99
sXCC, sLOC = 100, 101
TSREG = [16, 18, 20, 22, 24, 26, 28, 30, 36, 38, 40, 44, 68]
sDBG = 32
def srd(r): return f"s[{r}:{r+3}]"

vL = 1
BASE = 2
ACC_S, ACC_F1, ACC_F2 = 64, 96, 128
FR = 160
RA, RS, RF = 176, 180, 184
vX, vB, vW = 200, 204, 206
vSTS, vCSS, vGS, vGC, vAGS, vHF1, vHF2, vAGW = 208, 209, 210, 211, 215, 216, 217, 218
CS = 220
vW2, vC2, vTR, vCR, vTA, vLBK, vHS, vFL, vXS, vXR, vRW, vRR, vTW, vTD = 224, 228, 232, 233, 234, 238, 242, 243, 244, 245, 246, 250, 252, 254
def vr(a, n=4): return f"v[{a}:{a+n-1}]"
def ar(a, n=4): return f"a[{a}:{a+n-1}]"

SLOT = 32768; WBLK = 8192
L_SP = 98304; SPW = 14336
L_MISC = 155648
L_R = L_MISC; L_AGG = L_MISC + 1024; L_CS = L_MISC + 4096

class Cfg:
    ts = False
    dbg = False
    force_remote = False
    akept = 8
    nring = 10
    ts_stages = ()
    w2pf = 2
    pf_from = 1
    pf_n = 4
    pf_step = 4
    tlbwarm = False
    early_from = 1
    early_n = 2
    f1_early = False
    pretouch = True
    poll_sleep = 1
    touch = {}
    touch_h = 'nt'
    cap1 = 5
    cap2 = 6.5
    cap3 = 5
    ssm2_inline = True
    gather_at = 80
    stat_at = 2
    kbar = 13
    d1 = 2
    prof = None
    ts_fine = ()
    fs_lead = 4
    send_at = 0
    wev = 1
    ntail = 4
    lead = 6
    bar_lag = 14
    xl_at = 164
    w2early = True
    agg_lead = 2
    w2_resume = 26
    left_pre = 6
    fl_at = 20
    ff_at = 60
    fill_mix = 8
    sflag_at = 24
    ts_max = 13
    drop = ()
    dma_every = 2
    ts_min = 0
    p2stamps = ()
    nomfma2 = False
    check_at = 104
    hld = "sc1"

def mk_srd(q, r, p, size):
    q.e(f"s_mov_b32 s{r}, s{p}", f"s_and_b32 s{r+1}, s{p+1}, 0xffff", f"s_mov_b32 s{r+2}, {size}", f"s_mov_b32 s{r+3}, 0x20000")

WAITK = ("wvm", "wds", "wvm0", "wds0")
def groups(seq):
    G = []; cur = []
    for ins in seq:
        cur.append(ins)
        if ins.kind not in WAITK:
            G.append(cur); cur = []
    if cur: G.append(cur)
    return G
def cost(g):
    c = 0
    for i in g:
        if i.kind == "label": continue
        if i.kind in WAITK: c += 0.5
        elif i.t.startswith(TRANS): c += 2
        elif i.t.startswith("ds_write_b128"): c += 3
        else: c += 1
    return c

class Stream:
    def __init__(self, items, start=0, dl=None, every=1, wev=1):
        self.it = list(items); self.nb = start; self.dl = dl; self.every = every; self.wev = wev
    def ready(self, gap):
        while self.it and isinstance(self.it[0], tuple):
            self.nb = max(self.nb, self.it.pop(0)[1])
        return bool(self.it) and gap >= self.nb
    def pop(self, gap):
        g = self.it.pop(0)
        if self.every > 1 and any(i.kind == "vm" for i in g): self.nb = gap + self.every
        if any(i.t.startswith("ds_write_b128") for i in g): self.nb = gap + self.wev
        return g

def fill_gap(q, gap, used, cap, streams):
    for s in streams:
        if s.dl is not None and gap >= s.dl:
            while s.it:
                g = s.it.pop(0)
                if not isinstance(g, tuple): q.e(*g); used += cost(g)
    for s in streams:
        while s.ready(gap) and (used + cost(s.it[0]) <= cap or (used <= cap - 2 and cost(s.it[0]) > 3)):
            g = s.pop(gap); q.e(*g); used += cost(g)
def flush(q, streams):
    for s in streams:
        for g in s.it:
            if not isinstance(g, tuple): q.e(*g)
        s.it = []

class Gen:
    def __init__(self, cfg):
        self.c = cfg; self.nts = 0; self.w2_last = {}; self.w2_rd = {}; self.nl = 0; self.ool = Seq()
    def stamp(self, q):
        self.nreq = getattr(self, "nreq", 0) + 1
        if self.c.ts and self.nts < self.c.ts_max and self.nreq > self.c.ts_min:
            r = TSREG[self.nts]
            q.e(f"s_memtime s[{r}:{r+1}]"); self.nts += 1

    def stage_dma(self, i):
        base = (i % 3) * SLOT
        def ld(v, r, so, off): return I(f"buffer_load_dwordx4 v{v}, {srd(r)}, s{so} offen offset:{off} lds", "vm")
        def m0(o): return I(f"s_add_u32 m0, s{sLB}, {base + o}")
        def st(k): return [I(f"s_add_u32 s{sKW}, s{sROT}, {k}"), I(f"s_and_b32 s{sKW}, s{sKW}, 7")]
        mul = lambda: I(f"s_mul_i32 s{sKW}, s{sKW}, {64*3584}")
        G = []
        if i < 8:
            G.append([m0(0)] + st(i) + [I(f"s_lshl_b32 s{sKX}, s{sKW}, 7"), ld(vX, R_X, sKX, 0)])
            for j in range(1, 4): G.append([ld(vX + j, R_X, sKX, 1024 * j)])
            G.append([m0(4096), mul(), ld(vB, R_BS, sKX, 0)]); G.append([ld(vB + 1, R_BS, sKX, 1024)])
            G.append([m0(6144), ld(vW, R_W1A, sKW, 0)]); G.append([ld(vW + 1, R_W1A, sKW, 1024)])
        else:
            for t in range(4):
                G.append([m0(2048 * t)] + st(4 * (i - 8) + t) + [mul(), ld(vW, R_W1B, sKW, 0)])
                G.append([ld(vW + 1, R_W1B, sKW, 1024)])
        return G, G[-1][-1]

    def fb(self, n):
        return ACC_F2 + 8 * (n & 3) if n < 32 else FR - 4 + 4 * (n & 3)
    def frag_reads(self, n):
        b = self.fb(n)
        if n < 32:
            i, p = divmod(n, 4); slot = i % 3
            hi = 12 if slot == 2 else 0; o = SLOT if slot == 1 else 0
            S = I(f"ds_read_b128 {vr(b)}, v{RS+hi+p} offset:{o}", "ds")
            A0 = I(f"ds_read_b128 {ar(8*n)}, v{RA+hi+p} offset:{o}", "ds")
            A1 = I(f"ds_read_b128 {ar(8*n+4)}, v{RA+hi+p} offset:{o+WBLK}", "ds")
            F = [I(f"ds_read_b64_tr_b16 {vr(b+4+2*k, 2)}, v{RF+hi+p} offset:{o + 6144 + k*512}", "ds") for k in range(2)]
            return [S, A0, A1] + F
        if n >= 64: return []
        i, p = divmod(n - 32, 4)
        hi = 12 if i < 4 else 0
        return [I(f"ds_read_b64_tr_b16 {vr(b+4+2*k, 2)}, v{RF+hi+p} offset:{2048*(i&3) + k*512}", "ds") for k in range(2)]

    def prologue(self, q):
        c = self.c
        q.e("s_cmp_ge_u32 s2, 256", "s_cbranch_scc1 L_end")
        q.e("s_load_dwordx16 s[16:31], s[0:1], 0", "s_load_dwordx4 s[36:39], s[0:1], 80", "s_load_dwordx2 s[44:45], s[0:1], 112",
            "s_load_dwordx2 s[32:33], s[0:1], 64", "s_load_dwordx2 s[40:41], s[0:1], 96")
        q.e("s_getpc_b64 s[64:65]", "L_pc:", "s_and_b32 s3, s2, 0xf8", "s_lshl_b32 s3, s3, 7", "v_lshlrev_b32 v9, 2, v0", "v_add_u32 v9, s3, v9",
            "v_min_u32 v9, L_end-L_pc, v9")
        q.e("global_load_dword v10, v9, s[64:65]")
        if c.ts: q.e("s_memtime s[42:43]", "s_memrealtime s[46:47]")
        q.e(f"v_and_b32 v{vL}, 63, v0", "v_lshrrev_b32 v2, 6, v0", f"v_readfirstlane_b32 s{sW}, v2")
        q.e(f"s_and_b32 s{sXB}, s2, 1", f"s_and_b32 s{sROT}, s2, 6", f"s_lshr_b32 s{sT2}, s2, 6",
            f"s_lshl_b32 s{sC}, s{sROT}, 1", f"s_add_u32 s{sC}, s{sC}, s{sT2}", f"s_bfe_u32 s{sGL}, s2, 0x30003",
            f"s_lshl_b32 s{sG}, s{sXB}, 3", f"s_add_u32 s{sG}, s{sG}, s{sGL}")
        q.e(f"s_and_b32 s{sT2}, s{sT2}, 1", f"s_lshl_b32 s{sT0}, s{sGL}, 1", f"s_add_u32 s{sT0}, s{sT0}, s{sT2}", f"s_add_u32 s{sT1}, s{sGL}, 6",
            f"s_cmp_lt_u32 s{sGL}, 6", f"s_cselect_b32 s{sU0}, s{sT0}, s{sT1}", f"s_cselect_b32 s{R_W1B+2}, {512*3584}, 0", f"s_xor_b32 s{sU1}, s{sU0}, 1",
            f"s_lshr_b32 s{sWM}, s{sW}, 1", f"s_and_b32 s{sWN}, s{sW}, 1", f"s_lshl_b32 s{sLB}, s{sW}, 13")
        q.e(f"v_lshrrev_b32 v2, 3, v{vL}", f"v_and_b32 v3, 7, v{vL}", f"v_lshrrev_b32 v4, 4, v{vL}")
        q.e("v_xor_b32 v5, v3, v4", "v_lshlrev_b32 v5, 4, v5")
        q.e(f"v_lshrrev_b32 v7, 5, v{vL}", "v_and_b32 v8, 3, v2", "v_lshl_add_u32 v7, v7, 4, v8",
            f"s_lshl_b32 s{sT0}, s{sC}, 7", f"s_lshl_b32 s{sT1}, s{sW}, 5", f"s_add_u32 s{sT0}, s{sT0}, s{sT1}",
            f"v_add_u32 v7, s{sT0}, v7", f"v_lshl_add_u32 v{vX}, v7, 10, v5",
            f"v_xor_b32 v{vX+1}, 64, v{vX}", f"v_add_u32 v{vX+1}, {3072}, v{vX+1}",
            f"v_add_u32 v{vX+2}, {6144}, v{vX}", f"v_add_u32 v{vX+3}, {6144}, v{vX+1}")
        q.e(f"s_lshl_b32 s{sK4}, s{sG}, 5", f"s_lshl_b32 s{sT1}, s{sWN}, 4", f"s_add_u32 s{sK4}, s{sK4}, s{sT1}",
            f"v_add_u32 v7, s{sK4}, v2", f"v_lshl_add_u32 v{vB}, v7, 10, v5",
            f"v_xor_b32 v{vB+1}, 64, v{vB}", f"v_add_u32 v{vB+1}, {7168}, v{vB+1}")
        q.e(f"s_lshl_b32 s{sT0}, s{sW}, 4", f"v_add_u32 v7, s{sT0}, v2", "v_mul_u32_u24 v7, 3584, v7",
            "v_and_b32 v8, 1, v4", "v_lshlrev_b32 v8, 2, v8", "v_xor_b32 v8, v8, v3", f"v_lshl_add_u32 v{vW}, v8, 4, v7",
            f"v_add_u32 v{vW+1}, {8*3584-1024}, v{vW}",
            f"s_mul_i32 s{sT0}, s{sXB}, 14", f"s_add_u32 s{sT1}, s{sT0}, s{sU1}", f"s_add_u32 s{sT0}, s{sT0}, s{sU0}",
            f"s_lshl_b32 s{sT0}, s{sT0}, 7", f"s_lshl_b32 s{sT1}, s{sT1}, 7",
            f"s_sub_u32 s{R_W1A+2}, {512*3584}, s{sT0}", f"s_max_u32 s{R_W1B+2}, s{R_W1B+2}, s{sT1}", f"s_sub_u32 s{R_W1B+2}, s{R_W1B+2}, s{sT1}")
        for r, size in ((R_X, 2048*1024), (R_BS, 512*1024)): q.e(f"s_mov_b32 s{r+2}, {size}")
        for r in (R_X, R_BS, R_W1A, R_W1B): q.e(f"s_mov_b32 s{r+3}, 0x20000")
        G0, l0 = self.stage_dma(0)
        q.e(*G0[0][:-1])
        q.wds_all()
        if c.ts: q.e("v_mov_b32 v255, s46")
        q.e(f"s_mov_b32 s{R_X}, s{P_X}", f"s_and_b32 s{R_X+1}, s{P_X+1}, 0xffff")
        q.e(G0[0][-1]); [q.e(*g) for g in G0[1:4]]
        q.e(f"s_cmp_eq_u32 s{sWM}, 0", f"s_cselect_b32 s{R_BS}, s{P_BRE}, s{P_BIM}", f"s_cselect_b32 s{R_BS+1}, s{P_BRE+1}, s{P_BIM+1}", f"s_and_b32 s{R_BS+1}, s{R_BS+1}, 0xffff")
        [q.e(*g) for g in G0[4:6]]
        q.e(f"s_and_b32 s{P_W1+1}, s{P_W1+1}, 0xffff", f"s_add_u32 s{R_W1A}, s{P_W1}, s{sT0}", f"s_addc_u32 s{R_W1A+1}, s{P_W1+1}, 0")
        [q.e(*g) for g in G0[6:8]]
        q.e(f"s_add_u32 s{R_W1B}, s{P_W1}, s{sT1}", f"s_addc_u32 s{R_W1B+1}, s{P_W1+1}, 0")
        last = [l0]
        q.e(f"v_lshlrev_b32 v33, 4, v{vL}", f"v_and_b32 v6, 15, v{vL}", f"v_add_u32 v11, s{sK4}, v6", "v_lshlrev_b32 v11, 1, v11", "v_mov_b32 v15, 0")
        q.e(f"s_lshl_b32 s{sT2}, s{sWM}, 6", f"s_lshl_b32 s{sT0}, s{sG}, 2", f"s_add_u32 s{sT2}, s{sT2}, s{sT0}", f"s_lshl_b32 s{sT0}, s{sWN}, 1",
            f"s_add_u32 s{sT2}, s{sT2}, s{sT0}", f"s_lshl_b32 s{sT0}, s{sC}, 7", f"s_add_u32 s{sT2}, s{sT2}, s{sT0}", f"s_lshl_b32 s{sPOLL}, s{sT2}, 10")
        q.e(f"buffer_load_dwordx4 {vr(40)}, v33, {srd(R_X)}, s{sPOLL} offen", f"buffer_load_dwordx4 {vr(44)}, v33, {srd(R_X)}, s{sPOLL} offen offset:1024")
        self.small0 = q.e(f"global_load_dword v16, v15, s[{P_WS}:{P_WS+1}] sc1")
        q.e(f"global_load_ushort v12, v11, s[{P_LRE}:{P_LRE+1}]", f"global_load_ushort v13, v11, s[{P_LIM}:{P_LIM+1}]")
        self.small = q.e(f"global_load_ushort v14, v11, s[{P_LDT}:{P_LDT+1}]")
        q.e(f"s_lshl_b32 s{sT1}, s{sGL}, 7", f"v_lshl_add_u32 v35, v6, 3, s{sT1}")
        self.dsk = q.e(f"global_load_dwordx2 {vr(38,2)}, v35, s[{P_DSK}:{P_DSK+1}]")
        if c.tlbwarm:
            for p in (P_W2, P_CRE, P_CIM, P_OUT): q.e(f"global_load_dword v10, v15, s[{p}:{p+1}]")
            q.e(f"v_min_u32 v7, 9, v{vL}", "v_lshlrev_b32 v7, 21, v7", f"global_load_dword v10, v7, s[{P_WS}:{P_WS+1}] offset:2048")
            q.e("v_mov_b32 v7, 0x200000", f"global_load_dword v10, v7, s[{P_OUT}:{P_OUT+1}]")
        if c.w2pf:
            q.e(f"s_mul_i32 s{sT0}, s2, 56", f"s_mul_i32 s{sT1}, s{sWN}, 28", f"s_add_u32 s{sT0}, s{sT0}, s{sT1}", f"s_lshl_b32 s{sT1}, s2, 4", f"s_min_u32 s{sT1}, s{sT1}, {4096-28}",
                f"s_cmp_eq_u32 s{sWN}, 0", f"s_cselect_b32 s46, s{P_CRE}, s{P_CIM}", f"s_cselect_b32 s47, s{P_CRE+1}, s{P_CIM+1}",
                f"s_cmp_eq_u32 s{sWM}, 0", f"s_cselect_b32 s{sT0}, s{sT0}, s{sT1}", f"s_cselect_b32 s{sT1}, 27, 15",
                f"s_cselect_b32 s46, s{P_W2}, s46", f"s_cselect_b32 s47, s{P_W2+1}, s47",
                f"v_min_u32 v7, {f's{sT1}' if c.w2pf != 4 else c.pf_n - 1}, v{vL}", f"v_add_lshl_u32 v214, v7, s{sT0}, 7", "s_mov_b64 s[70:71], s[46:47]")
            if c.w2pf == 1: q.e("global_load_dword v10, v214, s[70:71]")
        f = Seq()
        f.e(f"v_lshl_add_u32 v{vC2}, v2, 10, v5", f"v_xor_b32 v{vC2+1}, 64, v{vC2}", f"v_add_u32 v{vC2+1}, 7168, v{vC2+1}",
            f"v_add_u32 v{vC2+2}, 14336, v{vC2}", f"v_add_u32 v{vC2+3}, 14336, v{vC2+1}",
            "v_lshlrev_b32 v7, 10, v2", f"v_lshl_add_u32 v{vW2}, v8, 4, v7")
        for j in range(1, 4): f.e(f"v_add_u32 v{vW2+j}, {7168*j}, v{vW2}")
        f.e(f"v_and_b32 v2, 31, v{vL}", f"v_lshrrev_b32 v3, 5, v{vL}")
        f.e("v_bfe_u32 v7, v2, 1, 3", "v_xor_b32 v7, v7, v3", "v_lshlrev_b32 v7, 4, v7",
            f"v_lshl_add_u32 v{vCR}, v2, 7, v7",
            f"s_lshl_b32 s{sT1}, s{sWM}, 5", f"v_xor_b32 v7, s{sT1}, v7", f"v_xor_b32 v5, s{sT1}, v{vCR}",
            f"s_lshl_b32 s{sT1}, s{sWM}, 14", f"v_add_u32 v{RA}, s{sT1}, v5")
        f.e("v_lshl_add_u32 v7, v6, 7, v7", "v_and_b32 v8, 16, v2", "v_lshl_add_u32 v7, v8, 10, v7",
            f"s_lshl_b32 s{sT1}, s{sWN}, 13", f"s_add_u32 s{sT1}, s{sT1}, 4096", f"v_add_u32 v{RS}, s{sT1}, v7")
        for p in range(1, 4): f.e(f"v_xor_b32 v{RA+p}, {32*p}, v{RA}", f"v_xor_b32 v{RS+p}, {32*p}, v{RS}")
        f.e("v_lshrrev_b32 v9, 2, v6", "v_lshlrev_b32 v5, 7, v9", "v_and_b32 v7, 3, v6", "v_lshlrev_b32 v7, 3, v7", "v_lshl_add_u32 v17, v8, 1, v7",
            "v_and_b32 v7, 8, v6", "v_lshl_add_u32 v5, v7, 3, v5", "v_add_u32 v5, v5, v17",
            f"v_lshl_add_u32 v{vTR}, v3, 9, v5",
            "v_lshl_add_u32 v5, v3, 10, v5", f"s_lshl_b32 s{sT1}, s{sWN}, 6", f"s_lshl_b32 s{sT0}, s{sWM}, 13", f"s_or_b32 s{sT1}, s{sT1}, s{sT0}",
            f"v_xor_b32 v{RF}, s{sT1}, v5")
        for p in range(1, 4): f.e(f"v_xor_b32 v{RF+p}, {WBLK*p}, v{RF}")
        f.e(f"s_mov_b32 s{sONES}, 0x3f803f80", f"v_mov_b32 v{CS}, 0", f"v_mov_b32 v{CS+1}, 0")
        for k in range(4): f.e(f"v_mov_b32 v{48+k}, 0")
        q.extend(f)
        f = Seq()
        for k in range(12): f.e(f"v_add_u32 v{RA+12+k}, {2*SLOT}, v{RA+k}")
        mk_srd(f, R_SY, P_WS, WS_END); mk_srd(f, R_W2, P_W2, 1792*1024); mk_srd(f, R_CRE, P_CRE, 512*1024)
        mk_srd(f, R_CIM, P_CIM, 512*1024); mk_srd(f, R_OUT, P_OUT, 2048*2048)
        f.e(f"s_getreg_b32 s{sXCC}, hwreg(HW_REG_XCC_ID, 0, 4)")
        self.addr_consts(f)
        G, l = self.stage_dma(1); last.append(l)
        q.extend(merge(f, G))
        return last

    def addr_consts(self, f):
        f.e(f"v_mov_b32 v63, {OOB}")
        f.e("v_and_b32 v5, 1, v4", "v_lshl_add_u32 v5, v5, 1, v3", f"s_lshl_b32 s{sT0}, s{sWM}, 2", f"v_add_u32 v32, s{sT0}, v5")
        f.e(f"s_lshl_b32 s{sT2}, s{sT2}, 6", f"s_add_u32 s{sT2}, s{sT2}, {WS_STAT}", f"v_lshl_add_u32 v7, v3, 6, s{sT2}", "v_lshl_add_u32 v7, v2, 4, v7",
            "v_cmp_gt_u32 vcc, 4, v2", f"v_cndmask_b32 v{vSTS}, v63, v7, vcc")
        f.e(f"v_and_b32 v7, 4, v{vL}", f"v_and_b32 v8, 35, v{vL}", "v_lshl_add_u32 v7, v7, 2, v8", f"v_and_b32 v8, 24, v{vL}", "v_lshrrev_b32 v8, 1, v8",
            "v_add_lshl_u32 v37, v7, v8, 4")
        f.e(f"s_lshl_b32 s{sT0}, s{sC}, 1", f"s_add_u32 s{sT1}, s{sT0}, s{sWM}", f"s_lshl_b32 s{sT1}, s{sT1}, 12", f"s_add_u32 s{sT1}, s{sT1}, {WS_STAT}",
            f"v_lshl_add_u32 v{vGS}, v37, 2, s{sT1}")
        f.e(f"s_add_u32 s{sT0}, s{sT0}, s{sXB}", f"s_lshl_b32 s{sT1}, s{sT0}, 13", f"s_add_u32 s{sT1}, s{sT1}, {WS_FLAG}",
            f"v_lshl_add_u32 v7, v2, 8, s{sT1}", "v_lshl_add_u32 v36, v3, 30, v7",
            f"s_lshl_b32 s{sT2}, s{sGL}, 2", f"s_add_u32 s{sT2}, s{sT2}, s{sW}", f"s_lshl_b32 s{sT2}, s{sT2}, 8", f"s_add_u32 s{sT1}, s{sT1}, s{sT2}",
            f"v_lshl_add_u32 v7, v2, 2, s{sT1}", f"v_lshl_add_u32 v{vFL}, v3, 30, v7")
        f.e(f"s_lshl_b32 s{sT0}, s{sT0}, 1", f"s_add_u32 s{sT1}, s{sT0}, s{sWM}", f"s_mul_i32 s{sT1}, s{sT1}, {HBLK}", f"s_add_u32 s{sT1}, s{sT1}, {WS_H}",
            f"s_add_u32 s{sT0}, s{sT0}, s{sXB}", f"s_mul_i32 s{sB1}, s{sT0}, {HBLK}", f"s_xor_b32 s{sT0}, s{sT0}, 1", f"s_mul_i32 s{sB0}, s{sT0}, {HBLK}",
            f"s_mul_i32 s{sHF}, s{sW}, {14*2048}", f"s_add_u32 s{sHF}, s{sHF}, {WS_H}", f"s_lshl_b32 s{sHS}, s{sW}, 14", f"s_add_u32 s{sHS}, s{sHS}, {WS_H + 56*2048}")
        f.e(f"s_lshl_b32 s{sT0}, s{sWN}, 12", f"s_add_u32 s{sT0}, s{sT0}, s{sT1}", f"s_lshl_b32 s{sT2}, s{sU0}, 13", f"s_add_u32 s{sT2}, s{sT2}, s{sT0}",
            f"v_add_u32 v{vHF1}, s{sT2}, v33", f"s_lshl_b32 s{sT2}, s{sU1}, 13", f"s_add_u32 s{sT2}, s{sT2}, s{sT0}",
            f"s_min_u32 s{sT0}, s{R_W1B+2}, 1", f"s_sub_u32 s{sT0}, 1, s{sT0}", f"s_lshl_b32 s{sT0}, s{sT0}, 30", f"s_add_u32 s{sT2}, s{sT2}, s{sT0}",
            f"v_add_u32 v{vHF2}, s{sT2}, v33")
        f.e(f"s_lshr_b32 s{sT0}, s{sGL}, 1", f"s_lshl_b32 s{sT0}, s{sT0}, 3", f"s_and_b32 s{sT2}, s{sGL}, 1", f"s_lshl_b32 s{sT2}, s{sT2}, 1", f"s_add_u32 s{sT0}, s{sT0}, s{sT2}",
            f"s_add_u32 s{sT0}, s{sT0}, s{sWN}", f"s_add_u32 s{sT0}, s{sT0}, 56", f"s_lshl_b32 s{sT0}, s{sT0}, 11", f"s_add_u32 s{sT0}, s{sT0}, s{sT1}",
            f"v_add_u32 v{vHS}, s{sT0}, v33")
        f.e(f"s_lshl_b32 s{sT0}, s{sG}, 1", f"s_add_u32 s{sT0}, s{sT0}, s{sWN}", f"s_lshl_b32 s{sT0}, s{sT0}, 9", f"s_add_u32 s{sT0}, s{sT0}, {WS_CS}",
            f"s_lshl_b32 s{sT1}, s{sC}, 14", f"s_add_u32 s{sT1}, s{sT1}, s{sT0}", f"v_lshl_add_u32 v7, v{vL}, 3, s{sT1}",
            f"v_xor_b32 v{vGC}, 0x4000, v7", f"s_lshl_b32 s{sT2}, s{sWM}, 30", f"v_add_u32 v{vCSS}, s{sT2}, v7",
            f"s_lshl_b32 s{sT0}, s{sW}, 9", f"s_add_u32 s{sT0}, s{sT0}, {L_CS}", f"v_lshl_add_u32 v{vGC+1}, v{vL}, 3, s{sT0}", f"v_xor_b32 v{vGC+2}, 1024, v{vGC+1}")
        f.e(f"s_lshl_b32 s{sT0}, s{sWN}, 4", f"v_add_u32 v8, s{sT0}, v6",
            f"v_lshlrev_b32 v7, 6, v8", f"v_add_u32 v{vAGW+1}, {L_AGG}, v7", f"v_lshl_add_u32 v{vAGW}, v32, 3, v{vAGW+1}",
            f"s_lshl_b32 s{sT0}, s{sG}, 13", f"s_add_u32 s{sT0}, s{sT0}, {WS_AGG}", f"v_lshl_add_u32 v8, v8, 4, s{sT0}",
            f"s_lshl_b32 s{sT1}, s{sC}, 9", f"v_add_u32 v7, s{sT1}, v8", "v_cmp_eq_u32 vcc, 0, v32", f"v_cndmask_b32 v{vAGS}, v63, v7, vcc",
            f"s_sub_u32 s{sT0}, s{sC}, 16", f"v_lshl_add_u32 v5, v4, 2, s{sT0}")
        for t in range(4):
            f.e(f"v_add_u32 v7, {t}, v5", "v_cmp_le_i32 vcc, 0, v7", "v_lshl_add_u32 v7, v7, 9, v8", f"v_cndmask_b32 v{vLBK+t}, v63, v7, vcc")
        f.e(f"s_mul_i32 s{sLE}, s{sW}, {SPW}", f"s_add_u32 s{sLE}, s{sLE}, {L_SP}")
        f.e(f"s_mul_i32 s{sW2O}, s{sXB}, 896", f"s_mul_i32 s{sT1}, s{sW}, 224", f"s_add_u32 s{sW2O}, s{sW2O}, s{sT1}", f"s_lshl_b32 s{sW2O}, s{sW2O}, 10",
            f"s_lshl_b32 s{sT1}, s{sGL}, 7", f"s_add_u32 s{sW2O}, s{sW2O}, s{sT1}")
        f.e(f"s_lshl_b32 s{sCO}, s{sXB}, 2", f"s_add_u32 s{sCO}, s{sCO}, s{sW}", f"s_lshl_b32 s{sCO}, s{sCO}, 7",
            f"s_lshl_b32 s{sT0}, s{sGL}, 16", f"s_add_u32 s{sCO}, s{sCO}, s{sT0}")
        f.e(f"s_lshl_b32 s{sT0}, s{sXB}, 6", f"s_lshl_b32 s{sT1}, s{sW}, 4", f"s_add_u32 s{sT0}, s{sT0}, s{sT1}", f"v_add_u32 v7, s{sT0}, v4",
            "v_lshlrev_b32 v34, 2, v7", f"v_add_u32 v34, {L_R}, v34",
            f"s_lshl_b32 s{sT0}, s{sC}, 7", f"v_add_u32 v7, s{sT0}, v7", "v_lshl_add_u32 v18, v7, 10, v35", "v_lshlrev_b32 v19, 1, v18")
        f.e(f"s_lshl_b32 s{sT0}, s{sC}, 4", f"s_add_u32 s{sT0}, s{sT0}, s{sG}", f"s_lshl_b32 s{sT0}, s{sT0}, 2", f"s_add_u32 s{sT0}, s{sT0}, s{sW}",
            f"s_xor_b32 s{sT1}, s{sT0}, 32", f"s_lshl_b32 s{sT0}, s{sT0}, 12", f"s_lshl_b32 s{sT1}, s{sT1}, 12",
            f"v_add_u32 v7, {WS_XCH}, v33", f"v_add_u32 v{vXS}, s{sT0}, v7", f"v_add_u32 v{vXR}, s{sT1}, v7")
        f.e("v_and_b32 v7, 7, v2", "v_xor_b32 v7, v7, v3", "v_lshlrev_b32 v7, 4, v7", "v_and_b32 v8, 0x1f0, v37", "v_lshl_add_u32 v7, v8, 4, v7",
            f"s_lshl_b32 s{sT0}, s{sW}, 14", f"v_add_u32 v{vRW}, s{sT0}, v7")
        for g4 in range(1, 4): f.e(f"v_xor_b32 v{vRW+g4}, {32*g4}, v{vRW}")
        f.e("v_xor_b32 v7, v6, v4", "v_lshlrev_b32 v7, 4, v7", "v_lshl_add_u32 v7, v4, 8, v7", f"s_lshl_b32 s{sT0}, s{sW}, 12", f"s_lshl_b32 s{sT1}, s{sWN}, 6",
            f"s_or_b32 s{sT0}, s{sT0}, s{sT1}", f"v_xor_b32 v{vRR}, s{sT0}, v7")
        f.e("v_and_b32 v7, 2, v6", "v_and_b32 v8, 1, v6", "v_lshl_add_u32 v7, v7, 1, v8", "v_and_b32 v8, 4, v6", "v_lshrrev_b32 v8, 1, v8", "v_or_b32 v7, v7, v8",
            "v_and_b32 v8, 3, v32", "v_lshlrev_b32 v8, 1, v8", "v_xor_b32 v7, v7, v8", "v_lshlrev_b32 v7, 4, v7", "v_lshl_add_u32 v7, v6, 7, v7",
            f"s_add_u32 s{sT0}, s{sLE}, 8192", f"v_add_u32 v{vTW}, s{sT0}, v7", f"v_xor_b32 v{vTW+1}, 16, v{vTW}")
        f.e("v_and_b32 v17, 1, v6", "v_and_b32 v8, 16, v2", "v_lshl_add_u32 v17, v17, 5, v8", "v_and_b32 v8, 2, v6", "v_lshl_add_u32 v17, v8, 2, v17")
        f.e("v_and_b32 v7, 2, v9", "v_and_b32 v8, 1, v9", "v_lshl_add_u32 v7, v7, 1, v8", "v_lshlrev_b32 v7, 4, v7", "v_xor_b32 v7, v7, v17",
            "v_lshl_add_u32 v8, v3, 3, v9", "v_lshl_add_u32 v7, v8, 7, v7", f"v_add_u32 v{vTD}, s{sT0}, v7")

    def ssm_consts(self, q):
        q.wvm(self.small)
        q.e("v_lshlrev_b32 v14, 16, v14", "v_lshlrev_b32 v12, 16, v12", f"v_mul_f32 v14, {fh(1.4426950408889634)}, v14", "v_lshlrev_b32 v13, 16, v13",
            "v_exp_f32 v14, v14", "v_lshlrev_b32 v3, 4, v32", "v_cvt_pk_bf16_f32 v14, v14, v14", "v_lshlrev_b32 v14, 16, v14",
            "v_mul_f32 v17, v14, v12", "v_mul_f32 v16, v14, v13",
            f"v_mul_f32 v17, {fh(1.4426950408889634)}, v17", f"v_mul_f32 v16, {fh(0.15915494309189535)}, v16",
            "v_cvt_f32_u32 v3, v3", "v_sub_u32 v4, 3, v4", "v_lshlrev_b32 v4, 9, v4", "v_cvt_f32_u32 v4, v4")
        def cexp(d, n):
            q.e(f"v_mul_f32 v6, {n}, v16", f"v_mul_f32 v5, {n}, v17", "v_fract_f32 v6, v6", "v_exp_f32 v5, v5", f"v_cos_f32 v{d}, v6", f"v_sin_f32 v{d+1}, v6",
                f"v_mul_f32 v{d}, v{d}, v5", f"v_mul_f32 v{d+1}, v{d+1}, v5")
        cexp(20, "1.0"); cexp(22, fh(16.0)); cexp(24, fh(128.0)); cexp(26, "v3"); cexp(28, "v4")
        q.e("v_mul_f32 v6, v12, v12", "v_fmac_f32 v6, v13, v13", "v_rcp_f32 v6, v6", "v_add_f32 v5, -1.0, v20",
            "v_mul_f32 v30, v5, v12", "v_fmac_f32 v30, v21, v13", "v_mul_f32 v31, v21, v12", "v_fma_f32 v31, -v5, v13, v31",
            "v_add_f32 v6, v6, v6", "v_mul_f32 v30, v30, v6", "v_mul_f32 v31, v31, v6")

    def check(self, name, loads, checks, pre=()):
        def chk(q):
            q.e(*pre)
            for k, (r, ex) in enumerate(checks):
                if k == 0 and len(checks) > 1: q.e(f"v_cmp_ne_u32 s[{sM}:{sM+1}], {ex}, v{r}")
                elif k == len(checks) - 1:
                    q.e(f"v_cmp_ne_u32 vcc, {ex}, v{r}")
                    if k: q.e(f"s_or_b64 s[{sM}:{sM+1}], s[{sM}:{sM+1}], vcc")
                    else: q.e("s_cmp_lg_u32 vcc_lo, 0" if name in ("ff", "fs") else "s_cmp_lg_u64 vcc, 0")
                else: q.e(f"v_cmp_ne_u32 vcc, {ex}, v{r}", f"s_or_b64 s[{sM}:{sM+1}], s[{sM}:{sM+1}], vcc")
        q = Seq()
        q.wvm(loads[-1])
        chk(q)
        q.e(f"s_cbranch_scc1 L_{name}_slow")
        q.label(f"L_{name}_ok")
        o = self.ool
        o.label(f"L_{name}_slow")
        o.e(f"s_mov_b32 s{sPOLL}, 0x40000")
        o.label(f"L_{name}_loop")
        o.e(f"s_sleep {self.c.poll_sleep}")
        for l in loads: o.append(I(l.t, "o"))
        o.e("s_waitcnt vmcnt(0)", f"s_sub_u32 s{sPOLL}, s{sPOLL}, 1", f"s_cbranch_scc1 L_{name}_ok")
        chk(o)
        o.e(f"s_cbranch_scc1 L_{name}_loop", f"s_branch L_{name}_ok")
        return list(q)

    def dual(self, stores):
        self.nl += 1; n = self.nl
        real = [I(t, "vm") for t in stores]
        g = [I(f"s_cmp_eq_u32 s{sLOC}, 0"), I(f"s_cbranch_scc1 L_dr{n}")] + real + [I(f"L_de{n}:", "label")]
        o = self.ool
        o.label(f"L_dr{n}")
        for t in stores: o.append(I(t + " sc1", "o"))
        o.e(f"s_branch L_de{n}")
        return g, real[-1]

    def cmul_acc(self, q, d, a, b, c):
        q.e(f"v_fma_f32 v{d}, v{a}, v{b}, v{c}", f"v_fma_f32 v{d+1}, v{a}, v{b+1}, v{c+1}",
            f"v_fma_f32 v{d}, -v{a+1}, v{b+1}, v{d}", f"v_fma_f32 v{d+1}, v{a+1}, v{b}, v{d+1}")
    def cmul(self, q, d, a, b):
        q.e(f"v_mul_f32 v{d}, v{a}, v{b}", f"v_mul_f32 v{d+1}, v{a}, v{b+1}",
            f"v_fma_f32 v{d}, -v{a+1}, v{b+1}, v{d}", f"v_fma_f32 v{d+1}, v{a+1}, v{b}, v{d+1}")

    def w2_area(self, pc):
        return {0: (sLE, 0), 5: (sLE, 8192), 1: (sLB, SLOT), 2: (sLB, 2*SLOT), 3: (sLE, 0), 4: (sLB, SLOT)}[pc]
    def w2_dma(self, pc, run=4):
        sb, ao = self.w2_area(pc)
        G = []
        for k in range(4 if pc == 5 else 8):
            g = []; j = k % run
            if pc in (0, 1, 2, 5):
                row = {0: 0, 1: 64, 2: 128, 5: 192}[pc] + 8 * k
                if j == 0: g += [I(f"s_add_u32 m0, s{sb}, {ao + 1024*k}"), I(f"s_add_u32 s{sKW}, s{sW2O}, {row*1024}")]
                g.append(I(f"buffer_load_dwordx4 v{vW2+j}, {srd(R_W2)}, s{sKW} offen offset:{1024*j} lds", "vm"))
            else:
                if j == 0: g += [I(f"s_add_u32 m0, s{sb}, {ao + 1024*k}"), I(f"s_add_u32 s{sKW}, s{sCO}, {8*k*1024}")]
                g.append(I(f"buffer_load_dwordx4 v{vC2+j}, {srd(R_CRE if pc == 3 else R_CIM)}, s{sKW} offen offset:{1024*j} lds", "vm"))
            G.append(g)
        self.w2_last[pc] = G[-1][-1]
        return G
    def w2_reads(self, pc):
        sb, ao = self.w2_area(pc)
        L = Seq()
        if pc in (0, 1, 2, 5):
            L.e(f"v_add_u32 v{vTA}, s{sb}, v{vTR}")
            if ao >= 2 * SLOT: L.e(f"v_add_u32 v{vTA}, {ao}, v{vTA}"); ao = 0
            L.e(f"v_xor_b32 v{vTA+1}, 64, v{vTA}")
            L.wvm(self.w2_last[pc])
            j0 = {0: 0, 1: 4, 2: 8, 5: 12}[pc]
            for k in range(2 if pc == 5 else 4):
                for nu in range(2):
                    for e in range(2):
                        a = 8 * (j0 + k) + 4 * nu + 2 * e
                        r = L.e(f"ds_read_b64_tr_b16 {ar(a,2)}, v{vTA+nu} offset:{ao + 2048*k + 1024*e}")
        else:
            L.e(f"v_add_u32 v{vTA}, s{sb}, v{vCR}")
            for k in range(1, 4): L.e(f"v_xor_b32 v{vTA+k}, {32*k}, v{vTA}")
            L.wvm(self.w2_last[pc])
            j0 = 14 if pc == 3 else 18
            for k in range(4):
                for nu in range(2):
                    r = L.e(f"ds_read_b128 {ar(8*(j0+k)+4*nu)}, v{vTA+k} offset:{ao + 4096*nu}")
        self.w2_rd[pc] = r
        return groups(L)
    def after_reads(self, pc, G):
        w = Seq(); w.wds(self.w2_rd[pc])
        return [list(w) + G[0]] + G[1:]

    def ffn_epi(self, a, voff, packed):
        G = []
        for t in range(2):
            f = Seq(); b = a + 16 * t
            if packed:
                for j in range(8): f.e(f"v_pk_mul_f32 {vr(b+2*j,2)}, {vr(b+2*j,2)}, {vr(42,2)} op_sel:[0,{t}] op_sel_hi:[1,{t}]")
                for j in range(8): f.e(f"v_cvt_pk_bf16_f32 v{b+j}, v{b+2*j}, v{b+2*j+1}")
                for j in range(8): f.e(f"v_pk_max_i16 v{b+j}, v{b+j}, 0")
            else:
                for j in range(16): f.e(f"v_max_f32 v{b+j}, 0, v{b+j}")
                for j in range(16): f.e(f"v_mul_f32 v{b+j}, v{b+j}, v{42+t}")
                for j in range(8): f.e(f"v_cvt_pk_bf16_f32 v{b+j}, v{b+2*j}, v{b+2*j+1}")
            G += groups(f)
            g, last = self.dual([f"buffer_store_dwordx4 {vr(b+4*al)}, v{voff}, {srd(R_SY)}, 0 offen offset:{2048*al + 1024*t}" for al in range(2)])
            G.append(g)
        return G, last

    def touch(self, kind):
        t = vTA + 2
        g = [I(f"v_and_b32 v{t}, 31, v{vL}"), I(f"v_lshlrev_b32 v{t}, 7, v{t}")]
        if kind == "F":
            g += [I(f"v_cmp_gt_u32 vcc, 32, v{vL}"), I(f"v_sub_u32 v{t}, v{t}, v33"), I(f"v_cndmask_b32 v{t+1}, v{vHF2}, v{vHF1}, vcc"), I(f"v_add_u32 v{t}, v{t}, v{t+1}")]
            fl = self.c.touch_h
        elif kind == "S":
            g += [I(f"v_and_b32 v{t+1}, 16, v{vL}"), I(f"v_mul_u32_u24 v{t+1}, {(8192-2048)//16}, v{t+1}"), I(f"v_sub_u32 v{t}, v{t}, v33"),
                  I(f"v_add3_u32 v{t}, v{t}, v{t+1}, v{vHS}")]
            fl = self.c.touch_h
        else:
            g += [I(f"v_sub_u32 v{t}, v{t}, v33"), I(f"v_add_u32 v{t}, v{t}, v{vXS}")]
            fl = ""
        g.append(I(f"buffer_load_dword v10, v{t}, {srd(R_SY)}, 0 offen {fl}", "vm"))
        return g

    def pretouch(self):
        return [I(f"buffer_load_dword v10, v{vFL}, {srd(R_SY)}, 0 offen", "vm"), I(f"buffer_load_dword v10, v{vFL}, {srd(R_SY)}, 0 offen offset:128", "vm"),
                I(f"buffer_load_dword v10, v{vAGS}, {srd(R_SY)}, 0 offen", "vm"), I(f"buffer_load_dword v10, v{vCSS}, {srd(R_SY)}, 0 offen", "vm")]

    def split3(self, s, src, d):
        s.e(f"v_and_b32 v{vTA}, 0xffff0000, v{src}", f"v_sub_f32 v{vTA}, v{src}, v{vTA}",
            f"v_perm_b32 v{d}, v{vTA}, v{src}, s{sONES}", f"v_and_b32 v{vTA+1}, 0xffff0000, v{vTA}", f"v_sub_f32 v{vTA+1}, v{vTA}, v{vTA+1}",
            f"v_cvt_pk_bf16_f32 v{d+1}, v{vTA+1}, 0")

    def phase1(self, q, last):
        c = self.c
        RE, IM = ACC_S, ACC_S + 16
        MF8 = "v_mfma_f32_32x32x8_bf16"; MF = "v_mfma_f32_32x32x16_bf16"
        MFR = 200
        q.wvm(last[0]); q.e("s_barrier"); self.stamp(q)
        D = c.d1; D2 = 3
        RD = {}
        for n in range(D): RD[n] = self.frag_reads(n); q.e(*RD[n])
        G, l = self.stage_dma(2); last.append(l)
        dma = Stream(G, every=1)
        s = Seq()
        s.e(f"v_readfirstlane_b32 s{sTAG}, v16", "v_permlane32_swap_b32 v48, v49", "v_permlane32_swap_b32 v50, v51", f"s_add_u32 s{sTAG}, s{sTAG}, {hex(TAGK)}",
            "v_add_f32 v48, v48, v49", "v_add_f32 v50, v50, v51", f"v_mov_b32 v54, s{sTAG}", f"v_mov_b32 v55, s{sXCC}",
            "v_permlane16_swap_b32 v48, v50", "v_add_f32 v48, v48, v50")
        for k in (8, 4, 2, 1): s.e(f"v_add_f32_dpp v48, v48, v48 row_ror:{k} row_mask:0xf bank_mask:0xf")
        s.e("v_mov_b32 v49, v48", f"v_mov_b32 v{CS+2}, s{sTAG}", "v_permlane16_swap_b32 v48, v49",
            f"v_mul_f32 v48, {fh(1/512)}, v48", f"v_mul_f32 v49, {fh(1/512)}, v49", "v_fma_f32 v49, -v48, v48, v49", "v_max_f32 v49, 0, v49",
            "v_cvt_pk_bf16_f32 v49, v49, v49", "v_lshlrev_b32 v49, 16, v49", f"v_add_f32 v49, {fh(1e-5)}, v49",
            "v_cvt_pk_bf16_f32 v49, v49, v49", "v_lshlrev_b32 v49, 16, v49", "v_sqrt_f32 v49, v49",
            "v_cvt_pk_bf16_f32 v53, -v48, -v48",
            "v_cvt_pk_bf16_f32 v49, v49, v49", "v_lshlrev_b32 v49, 16, v49", "v_rcp_f32 v52, v49")
        A = groups(s)
        g = [I(f"buffer_store_dwordx4 {vr(52)}, v{vSTS}, {srd(R_SY)}, 0 offen sc1", "vm")]
        if c.pretouch == 1: g += self.pretouch()
        A.append(g)
        s = Seq()
        self.ssm_consts(s)
        A += groups(s)
        A.append(("nb", c.gather_at))
        gl_ = [I(f"buffer_load_dwordx4 {vr(40)}, v{vGS}, {srd(R_SY)}, 0 offen sc1", "vm")]
        A.append(gl_)
        A.append(("nb", c.check_at))
        A.append(self.check("ga", gl_, [(42, f"s{sTAG}")]))
        A.append([I(f"v_cmp_ne_u32 vcc, s{sXCC}, v43"), I(f"s_cmp_eq_u32 s{sXB}, 0"), I(f"s_cselect_b32 s{sT0}, vcc_lo, vcc_hi"), I(f"s_cmp_eq_u32 s{sT0}, 0"),
                  I(f"s_cselect_b32 s{sLOC}, {0 if c.force_remote else 1}, 0")])
        s = Seq()
        s.e("v_lshrrev_b32 v60, 2, v37", f"s_lshl_b32 s{sT0}, s{sWM}, 8", f"s_add_u32 s{sT0}, s{sT0}, {L_R}", f"v_add_u32 v60, s{sT0}, v60",
            "v_and_b32 v61, 0xffff0000, v41")
        A += groups(s); s = Seq()
        A.append([I("ds_write2_b32 v60, v40, v61 offset0:0 offset1:128", "ds"), I(f"ds_write_b64 v{vGC+1}, {vr(CS,2)}", "ds")])
        assert 104 <= c.check_at <= 110
        s.e(f"v_mov_b32 v{MFR}, v41", f"v_mov_b32 v{MFR+2}, v41", "v_mov_b32 v42, v40", "v_mov_b32 v43, v40", "v_lshlrev_b32 v60, 6, v32",
            f"v_permlane32_swap_b32 v{MFR}, v{MFR+2}", "v_permlane32_swap_b32 v42, v43", f"v_mov_b32 v{MFR+1}, v{MFR}", f"v_mov_b32 v{MFR+3}, v{MFR+2}",
            f"v_add_u32 v60, {L_R}, v60")
        rv = [s.e(f"ds_read_b128 {vr(44+4*k)}, v60 offset:{16*k}") for k in range(4)]
        A += groups(s)
        assert c.check_at >= 92
        sA = Stream(A, start=4 * (c.stat_at + 1), dl=119)
        early = (self.w2_dma(0, 2) + self.w2_dma(5, 2)) if c.w2early else []
        for n in range(32):
            p = n & 3
            b = self.fb(n); rd = RD[n]
            if (n + D) % 4 == 0:
                i = (n + D) // 4 - 1
                flush(q, [dma])
                if i in c.ts_fine: self.stamp(q)
                q.wds_all()
                if i in c.ts_fine: self.stamp(q)
                q.wvm(last[i + 1])
                if i in c.ts_fine: self.stamp(q)
                q.e("s_barrier")
                if c.ts and i in c.ts_stages: self.stamp(q)
                if i + 3 < 10:
                    G, l = self.stage_dma(i + 3); last.append(l)
                    if i >= c.early_from and early:
                        ne = c.early_n; G = G + early[:ne]; early = early[ne:]
                    dma = Stream(G, every=c.dma_every)
                if i == 7: csr = q.e(f"ds_read_b64 {vr(62,2)}, v{vGC+2}")
                if c.w2pf == 2 and c.pf_from <= i < c.pf_from + 4:
                    self.nl += 1
                    q.e(f"s_cmp_eq_u32 s{sW}, {i - c.pf_from}", f"s_cbranch_scc1 L_pf{self.nl}"); q.label(f"L_de{self.nl}")
                    self.ool.label(f"L_pf{self.nl}"); self.ool.append(I("global_load_dword v10, v214, s[70:71]", "o")); self.ool.e(f"s_branch L_de{self.nl}")
            for kind, at in c.touch.items():
                if at == n: q.e(*self.touch(kind))
            if c.w2pf == 4 and n >= c.pf_from and (n - c.pf_from) % c.pf_step == 0 and (n - c.pf_from) // c.pf_step * c.pf_n < 28:
                q.e(f"global_load_dword v10, v214, s[70:71] offset:{(n - c.pf_from) // c.pf_step * c.pf_n * 128}")
                if c.pretouch == 2 and n == c.pf_from: q.e(*self.pretouch())
            if c.w2pf == 3 and n == c.pf_from:
                q.e("global_load_dword v10, v214, s[70:71]")
                if c.pretouch == 2: q.e(*self.pretouch())
            nxt = RD[n + D] = self.frag_reads(n + D)
            if n == 31:
                for e in range(32 + D, 32 + D2):
                    RD[e] = self.frag_reads(e); nxt = nxt + RD[e]
            z = lambda a: ("0" if n == 0 else vr(a, 16))
            M = [(f"{MF} {vr(RE,16)}, {ar(8*n)}, {vr(b)}, {z(RE)}", rd[1]),
                 (f"{MF} {vr(IM,16)}, {ar(8*n+4)}, {vr(b)}, {z(IM)}", rd[2]),
                 (f"{MF} {vr(ACC_F1,16)}, {vr(b+4)}, {ar(8*n)}, {z(ACC_F1)}", rd[4]),
                 (f"{MF} {vr(ACC_F1+16,16)}, {vr(b+4)}, {ar(8*n+4)}, {z(ACC_F1+16)}", rd[4])]
            sched = [2, 2, 1, 1] if D == 1 else [2, 1, 1, 2]
            k = 0
            for j, (m, dep) in enumerate(M):
                q.wds(rd[4] if D > 1 else dep); q.e(m)
                mine = nxt[k:k + sched[j]]; k += sched[j]
                q.e(*mine)
                fill_gap(q, 4 * n + j, len(mine) + (0.5 if D == 1 else 0), c.cap1, [dma, sA])
                if n == 31 and j == 1:
                    q.e(f"s_mov_b32 s{sONES}, 0x07060302"); q.wds(csr)
                    q.e(f"v_add_f32 v{CS}, v{CS}, v62", f"v_add_f32 v{CS+1}, v{CS+1}, v63")
                if n == 31 and j == 2: self.split3(q, CS, 204)
                if n == 31 and j == 3: self.split3(q, CS + 1, 206)
            if n == c.stat_at:
                q.wvm(self.small0)
                for r in range(4):
                    q.e(f"v_dot2c_f32_bf16 v48, s{sONES}, v{40+r}", f"v_dot2c_f32_bf16 v49, s{sONES}, v{44+r}",
                        f"v_dot2c_f32_bf16 v50, v{40+r}, v{40+r}", f"v_dot2c_f32_bf16 v51, v{44+r}, v{44+r}")
            dn = [n - 1, n + 1] if p == 1 else []
            if n == 29: dn = [28, 29, 30]
            if n == 30: dn = [31]
            if p == 1 and dma.it: q.e(*dma.it.pop(0))
            for e in dn:
                q.wds(RD[e][4]); be = self.fb(e)
                for r in range(4):
                    q.e(f"v_dot2c_f32_bf16 v{CS}, s{sONES}, v{be+r}", f"v_dot2c_f32_bf16 v{CS+1}, s{sONES}, v{be+4+r}")
        assert not sA.it
        for t in range(2): q.e(f"{MF8} {vr(RE+16*t,16)}, {vr(MFR+2*t,2)}, {vr(204,2)}, {vr(RE+16*t,16)}")
        q.e(f"v_mov_b32 v{CS}, v{CS+2}")
        q.e(f"buffer_store_dwordx2 {vr(CS,2)}, v{vCSS}, {srd(R_SY)}, 0 offen sc1")
        for t in range(2): q.e(f"{MF8} {vr(ACC_F1+16*t,16)}, {vr(206,2)}, {vr(MFR+2*t,2)}, {vr(ACC_F1+16*t,16)}")
        self.stamp(q)
        s = Seq()
        for i in range(16): s.e(f"v_permlane16_swap_b32 v{RE+i}, v{IM+i}")
        s.wds(rv[-1])
        cr, ci = RE, IM
        for i in range(16):
            s.e(f"v_mul_f32 v{RE+i}, v{RE+i}, v{44+i}", f"v_mul_f32 v{IM+i}, v{IM+i}, v{44+i}")
            if i:
                d = 60 if i & 1 else 62
                s.e(f"v_fma_f32 v{d}, v20, v{cr}, v{RE+i}", f"v_fma_f32 v{d+1}, v20, v{ci}, v{IM+i}",
                    f"v_fma_f32 v{d}, -v21, v{ci}, v{d}", f"v_fma_f32 v{d+1}, v21, v{cr}, v{d+1}")
                cr, ci = d, d + 1
        s.e(f"ds_write_b64 v{vAGW}, {vr(cr,2)}")
        KB = c.kbar
        sS1 = Stream(groups(s), dl=2 * (KB - c.agg_lead) - 1)
        s = Seq()
        ag = [s.e(f"ds_read_b128 {vr(44+4*k)}, v{vAGW+1} offset:{16*k}") for k in range(4)]
        s.e(f"v_mov_b32 v62, s{sTAG}")
        for j in range(1, 8):
            s.wds(ag[j // 2])
            self.cmul_acc(s, 60 if j == 7 else 44 + 2 * j, 22, 44 + 2 * (j - 1), 44 + 2 * j)
        s.e(f"buffer_store_dwordx4 {vr(60)}, v{vAGS}, {srd(R_SY)}, 0 offen sc1")
        cl_ = s.e(f"buffer_load_dwordx2 {vr(CS,2)}, v{vGC}, {srd(R_SY)}, 0 offen sc1")
        self.stamp(s)
        sS2 = Stream(groups(s), start=2 * KB)
        P = [[I("v_mov_b32 v40, 0"), I("v_mov_b32 v41, 0")]]
        for j in range(1, 8):
            P.append([I(f"v_cmp_eq_u32 vcc, {j}, v32"), I(f"v_cndmask_b32 v40, v40, v{44+2*(j-1)}, vcc"), I(f"v_cndmask_b32 v41, v41, v{45+2*(j-1)}, vcc")])
        sS2.it += P
        sF1 = Stream([])
        w0 = c.w2_resume
        d1 = early + self.w2_dma(1)
        w0 = max(w0, 2 * len(d1))
        sR0 = Stream(self.w2_reads(0), start=max(10, 2 * len(early) + 8), dl=w0 + 14)
        sR1 = Stream(self.w2_reads(1), start=w0 + 15, dl=w0 + 30)
        sR5 = Stream(self.w2_reads(5), start=w0 + 31)
        W = d1 + [("nb", w0)] + self.w2_dma(2) + [("nb", w0 + 16)] + self.after_reads(0, self.w2_dma(3)) + [("nb", w0 + 32)] + self.after_reads(1, self.w2_dma(4))
        sW2 = Stream(W, every=2)
        K9 = 16 - D2
        if c.f1_early:
            F1, _ = self.ffn_epi(ACC_F1, vHF1, False)
            sS2.it += F1
        for n in range(32, 64):
            k = n - 32
            b = self.fb(n)
            if k == KB and KB != K9:
                flush(q, [sS1]); q.wds_all(); q.e("s_barrier")
            if k == K9:
                if KB == K9: flush(q, [sS1])
                q.wds_all(); q.wvm(last[9]); q.e("s_barrier")
            for kind, at in c.touch.items():
                if at == n: q.e(*self.touch(kind))
            nxt = RD[n + D2] = self.frag_reads(n + D2)
            for t in range(2):
                d = ACC_F2 + 16 * t
                q.wds(RD[n][-1])
                q.e(f"{MF} {vr(d,16)}, {vr(b+4)}, {ar(8*k+4*t)}, {'0' if k == 0 else vr(d,16)}")
                q.e(*nxt[t:t+1])
                fill_gap(q, 2 * k + t, 1.25, c.cap2, [sW2, sS1, sS2, sR0, sR1, sR5])
                if k == 30 and t == 0:
                    flush(q, [sS2]); q.extend(self.check("c2", [cl_], [(CS, f"s{sTAG}")]))
                if k == 30 and t == 1:
                    flush(q, [sR0, sR1, sR5]); self.split3(q, CS + 1, 222)
        for t in range(2): q.e(f"{MF8} {vr(ACC_F2+16*t,16)}, {vr(222,2)}, {vr(MFR+2*t,2)}, {vr(ACC_F2+16*t,16)}")
        self.stamp(q)
        flush(q, [sF1])
        self.w2_left = [g for g in sW2.it if not isinstance(g, tuple)]

    def flag_store(self, kind, after):
        q = Seq()
        q.e(f"v_mov_b32 v{vTA+3}, s{sTAG}")
        q.wvm(after)
        g, _ = self.dual([f"buffer_store_dword v{vTA+3}, v{vFL}, {srd(R_SY)}, 0 offen offset:{128*kind}"])
        q.extend(g)
        return list(q)

    def ssm_part2(self, packed):
        RE, IM = ACC_S, ACC_S + 16
        a = Seq()
        lb = [a.e(f"buffer_load_dwordx3 {vr(44+4*t,3)}, v{vLBK+t}, {srd(R_SY)}, 0 offen sc1") for t in range(4)]
        A = groups(a)
        A.append([I(f"v_mov_b32 v60, s{sTAG}"), I(f"s_mov_b32 s{sT0}, {OOB}")])
        for t in range(4): A.append([I(f"v_cmp_gt_u32 vcc, s{sT0}, v{vLBK+t}"), I(f"v_cndmask_b32 v{47+4*t}, 0, v60, vcc")])
        B = [self.check("lb", lb, [(46 + 4 * t, f"v{47+4*t}") for t in range(4)])]
        q = Seq()
        self.stamp(q)
        self.cmul_acc(q, 60, 24, 44, 48); self.cmul_acc(q, 62, 24, 60, 52); self.cmul_acc(q, 60, 24, 62, 56)
        self.cmul(q, 62, 28, 60)
        for sw in ("16", "32"):
            q.e("v_mov_b32 v60, v62", "v_mov_b32 v61, v63", f"v_permlane{sw}_swap_b32 v60, v62", f"v_permlane{sw}_swap_b32 v61, v63",
                "v_add_f32 v62, v60, v62", "v_add_f32 v63, v61, v63")
        self.cmul_acc(q, 60, 26, 62, 40)
        self.cmul(q, 62, 30, 60)
        pr, pi_ = 62, 63
        for i in range(16):
            q.e(f"v_fma_f32 v{RE+i}, v20, v{pr}, v{RE+i}", f"v_fma_f32 v{IM+i}, v20, v{pi_}, v{IM+i}",
                f"v_fma_f32 v{RE+i}, -v21, v{pi_}, v{RE+i}", f"v_fma_f32 v{IM+i}, v21, v{pr}, v{IM+i}")
            pr, pi_ = RE + i, IM + i
            if i & 1:
                j = i >> 1
                q.e(f"v_cvt_pk_bf16_f32 v{44+j}, v{RE+2*j}, v{RE+2*j+1}", f"v_cvt_pk_bf16_f32 v{52+j}, -v{IM+2*j}, -v{IM+2*j+1}")
            if i == 7: q.e(f"ds_write_b128 v{vTW}, {vr(44)}", f"ds_write_b128 v{vTW}, {vr(52)} offset:2048")
        q.e(f"ds_write_b128 v{vTW+1}, {vr(48)}", f"ds_write_b128 v{vTW+1}, {vr(56)} offset:2048")
        q.e(f"v_xor_b32 v61, {512|32}, v{vTD}", f"v_xor_b32 v62, 64, v{vTD}", "v_xor_b32 v63, 64, v61", f"s_movk_i32 s{sT1}, 8192")
        ad = {(0, 0): vTD, (0, 1): 61, (1, 0): 62, (1, 1): 63}
        for part in range(2):
            for mu in range(2):
                for e in range(2):
                    tr = q.e(f"ds_read_b64_tr_b16 {vr(64 + 8*part + 4*mu + 2*e,2)}, v{ad[mu, e]} offset:{2048*part}")
        B += groups(q)
        g, last = self.dual([f"buffer_store_dwordx4 {vr(64+8*part+4*mu)}, v{vHS}, {srd(R_SY)}, {('0', f's{sT1}')[part]} offen offset:{1024*mu}" for part in range(2) for mu in range(2)])
        w = Seq(); w.wds(tr)
        B.append(list(w) + g)
        return A, B, last

    def base_stream(self):
        f = Seq()
        mr = [f.e(f"ds_read2_b32 {vr(224+2*ii,2)}, v34 offset0:{4*ii} offset1:{128+4*ii}") for ii in range(4)]
        T = 88; D = 20
        f.wvm(self.xl[-1])
        f.e(f"v_lshlrev_b32 v{D}, 16, v38", f"v_and_b32 v{D+1}, 0xffff0000, v38", f"v_lshlrev_b32 v{D+2}, 16, v39", f"v_and_b32 v{D+3}, 0xffff0000, v39")
        f.wds(mr[-1])
        for ii in range(4):
            b = BASE + 4 * ii; r = 224 + 2 * ii
            f.e(f"v_lshlrev_b32 v{b+2}, 16, v{b+1}", f"v_and_b32 v{b+3}, 0xffff0000, v{b+1}", f"v_and_b32 v{b+1}, 0xffff0000, v{b}", f"v_lshlrev_b32 v{b}, 16, v{b}")
            for e in range(4): f.e(f"v_add_f32 v{T+e}, v{b+e}, v{r+1}")
            def rnd():
                f.e(f"v_cvt_pk_bf16_f32 v{T+4}, v{T}, v{T+1}", f"v_cvt_pk_bf16_f32 v{T+5}, v{T+2}, v{T+3}",
                    f"v_lshlrev_b32 v{T}, 16, v{T+4}", f"v_and_b32 v{T+1}, 0xffff0000, v{T+4}", f"v_lshlrev_b32 v{T+2}, 16, v{T+5}", f"v_and_b32 v{T+3}, 0xffff0000, v{T+5}")
            rnd()
            for e in range(4): f.e(f"v_mul_f32 v{T+e}, v{T+e}, v{r}")
            rnd()
            for e in range(4): f.e(f"v_mul_f32 v{T+e}, v{T+e}, v{D+e}")
            rnd()
            for e in range(4): f.e(f"v_add_f32 v{b+e}, v{b+e}, v{T+e}")
        return groups(f)

    def transition(self, q):
        c = self.c
        RE, IM = ACC_S, ACC_S + 16
        F1 = [] if c.f1_early else self.ffn_epi(ACC_F1, vHF1, True)[0]
        F2, ffn_last = self.ffn_epi(ACC_F2, vHF2, True)
        for g in F1 + F2: q.e(*g)
        A, B, ssm_last = self.ssm_part2(True)
        for g in A: q.e(*g)
        f = Seq()
        for j in range(8):
            a, b = RE + 2 * j, IM + 2 * j
            f.e(f"v_pk_mul_f32 {vr(168,2)}, {vr(b,2)}, {vr(30,2)} op_sel:[0,1] op_sel_hi:[1,1]",
                f"v_pk_mul_f32 {vr(b,2)}, {vr(b,2)}, {vr(30,2)} op_sel:[0,0] op_sel_hi:[1,0]",
                f"v_pk_fma_f32 {vr(b,2)}, {vr(a,2)}, {vr(30,2)}, {vr(b,2)} op_sel:[0,1,0] op_sel_hi:[1,1,1]",
                f"v_pk_fma_f32 {vr(a,2)}, {vr(a,2)}, {vr(30,2)}, {vr(168,2)} op_sel:[0,0,0] op_sel_hi:[1,0,1] neg_lo:[0,0,1] neg_hi:[0,0,1]")
        assert c.w2early
        left = self.w2_left
        k = c.left_pre
        q.extend(merge(f, left[:k]))
        q.extend(self.flag_store(0, ffn_last))
        self.stamp(q)
        for g in left[k:] + self.w2_reads(2): q.e(*g)
        fl = I(f"buffer_load_dword v180, v36, {srd(R_SY)}, 0 offen sc1", "vm")
        w = Seq(); w.wds(self.w2_rd[5])
        B[1] = list(w) + B[1]
        for g in B[:c.fl_at]: q.e(*g)
        q.e(fl)
        for g in B[c.fl_at:c.ff_at]: q.e(*g)
        self.Brest = B[c.ff_at:]
        self.ssm_last = ssm_last
        q.extend(self.check("ff", [fl], [(180, f"s{sTAG}")]))
        self.stamp(q)

    def phase2(self, q):
        c = self.c
        NR = c.nring; ak = c.akept; NT = c.ntail; LEAD = c.lead
        assert ak % 2 == 0 and NR >= LEAD + NT - 1 and NR <= 10
        ACC = (96, 160)
        steps = [(0, j) for j in range(14)] + [(1, j) for j in range(ak)] + [(0, j) for j in range(14, 22)] + [(1, j) for j in range(ak, 22)]
        first_ssm = 14 + ak; sent_done = first_ssm + 7
        ld = {}
        def issue(n):
            ps, j = steps[n]
            a = 176 + 8 * (n % NR)
            blk = (sB0, sB1)[ps]
            g = []
            if j % 2 == 0:
                if n and steps[n-1] == (ps, j - 1) and j != 14: g.append(I(f"s_add_u32 s{sKW}, s{sKW}, 4096"))
                elif j < 14: g += [I(f"s_add_u32 s{sKW}, s{blk}, s{sHF}"), I(f"s_add_u32 s{sKW}, s{sKW}, {2048*j}")]
                else: g.append(I(f"s_add_u32 s{sKW}, s{blk}, s{sHS}"))
            o = 2048 * (j % 2)
            ld[n, 0] = I(f"buffer_load_dwordx4 {ar(a)}, v33, {srd(R_SY)}, s{sKW} offen offset:{o} {c.hld}", "vm")
            ld[n, 1] = I(f"buffer_load_dwordx4 {ar(a+4)}, v33, {srd(R_SY)}, s{sKW} offen offset:{o+1024} {c.hld}", "vm")
            return [g + [ld[n, 0]], [ld[n, 1]]]
        order = []
        n = 0
        while n < 44:
            if n in (sent_done + 1 - NT, 44 - NT):
                for k in range(4): order += [(m, k) for m in range(n, n + NT)]
                n += NT
            else:
                order += [(n, k) for k in range(4)]; n += 1
        pos = {e: i for i, e in enumerate(order)}
        gate = first_ssm - LEAD
        B = self.Brest
        for n in range(LEAD):
            for g in issue(n):
                q.e(*g)
                for g2 in B[:c.fill_mix]: q.e(*g2)
                B = B[c.fill_mix:]
        fs = I(f"buffer_load_dword v{vLBK}, v36, {srd(R_SY)}, 0 offen offset:128 sc1", "vm")
        st = Seq(); self.stamp(st)
        L = []
        for n in range(LEAD, 44):
            nb = 4 * (n - LEAD)
            if n >= NR: nb = max(nb, max(pos[n - NR, k] for k in range(4)))
            L.append(("nb", nb))
            if n == first_ssm: L.append(self.check("fs", [fs], [(vLBK, f"s{sTAG}")]) + list(st))
            L += issue(n)
        sL = Stream(L, every=2)
        self.xl = []
        P = B + self.w2_reads(3) + self.w2_reads(4) + [("nb", c.sflag_at)] + [self.flag_store(1, self.ssm_last)]
        for ii in range(4):
            self.xl.append(I(f"buffer_load_dwordx2 {vr(2+4*ii,2)}, v18, {srd(R_X)}, s{sPOLL} offen", "vm"))
            P.append([I(f"s_movk_i32 s{sPOLL}, {4096*ii}"), self.xl[-1]])
        P += [("nb", 4 * max(gate - c.fs_lead, 0) + 1), [fs]]
        sP = Stream(P, dl=4 * gate - 1, every=2)
        sB = Stream(self.base_stream(), start=4 * gate + 4)
        XV = 64; TB = 80
        s = Seq()
        s.e(f"v_mov_b32 v{TB}, s{sTAG}")
        for k in range(1, 4): s.e(f"v_lshrrev_b32 v{TB+k}, {8*k}, v{TB}")
        s.e(f"s_movk_i32 s{sT2}, 0xff")
        s.wds_all(); s.e("s_barrier")
        R0 = [("nb", 4 * gate + 2)] + groups(s)
        def tile(k): return (k & 1, k >> 1)
        def red_write(ps, lastn):
            out = []
            for k in range(4):
                nu, mu = tile(k)
                out.append(("nb", pos[lastn, k] + 2))
                for g4 in range(4):
                    out.append([I(f"ds_write_b128 v{vRW+g4}, {vr(ACC[ps] + 32*nu + 16*mu + 4*g4)} offset:{128*nu + 8192*mu}", "ds")])
            return out
        def red_read(s, dst):
            return [s.e(f"ds_read_b128 {vr(dst + 16*ii + 4*src)}, v{vRR} offset:{1024*ii + 16384*src}") for ii in range(4) for src in range(4)]
        s = Seq()
        s.wds_all(); s.e("s_barrier")
        R = red_read(s, 96)
        for g4 in range(4): s.e(f"v_add_u32 v{vRW+g4}, 0x10000, v{vRW+g4}")
        Ga = groups(s); s = Seq()
        for ii in range(4):
            s.wds(R[4 * ii + 3])
            for e in range(4):
                d = XV + 4 * ii + e; s0 = 96 + 16 * ii + e
                s.e(f"v_add_f32 v{s0}, v{s0}, v{s0+4}", f"v_add_f32 v{d}, v{s0+8}, v{s0+12}", f"v_add_f32 v{d}, v{d}, v{s0}",
                    f"v_bfi_b32 v{d}, s{sT2}, v{TB+e}, v{d}")
        s.e(f"v_add_u32 v{vRR}, 0x10000, v{vRR}")
        Gb = groups(s)
        s = Seq()
        for k in range(4):
            s.e(f"buffer_store_dwordx4 {vr(XV+4*k)}, v{vXS}, {srd(R_SY)}, 0 offen offset:{1024*k} sc1")
        self.stamp(s)
        e0 = 4 * (sent_done + 1)
        XR = 40
        xl = [I(f"buffer_load_dwordx4 {vr(XR+4*k)}, v{vXR}, {srd(R_SY)}, 0 offen offset:{1024*k} sc1", "vm") for k in range(4)]
        sR = Stream(R0 + red_write(0, sent_done) + [("nb", e0 + c.bar_lag)] + Ga + [("nb", e0 + c.bar_lag + 8)] + Gb + [("nb", 4 * c.send_at)] + [list(s)]
                    + red_write(1, 43), wev=c.wev)
        sX = Stream([[x] for x in xl], start=c.xl_at, every=2)
        q.wds(self.w2_rd[2])
        for gi, (n, k) in enumerate(order):
            ps, j = steps[n]; nu, mu = tile(k)
            a = 176 + 8 * (n % NR); d = ACC[ps] + 32 * nu + 16 * mu
            while ld[n, mu].idx is None and not any(ld[n, mu] is x for x in q):
                g = sL.it.pop(0)
                if not isinstance(g, tuple): q.e(*g)
            q.wvm(ld[n, mu])
            if n == first_ssm: q.wds(self.w2_rd[4])
            if k == 0 and n in c.p2stamps: self.stamp(q)
            q.e(f"v_mfma_f32_32x32x16_bf16 {vr(d,16)}, {ar(8*j+4*nu)}, {ar(a+4*mu)}, {'0' if j == 0 else vr(d,16)}")
            fill_gap(q, gi, 0.5, c.cap3, [sL, sP, sR, sX, sB])
        self.stamp(q)
        flush(q, [sR, sX, sB])
        q.wds_all(); q.e("s_barrier")
        R = red_read(q, 96)
        pre = [f"s_mov_b32 s{sT0}, 0x0c0c0400", f"s_mov_b32 s{sT1}, 0x05040100"]
        for k in range(4):
            r = XR + 4 * k
            pre += [f"v_perm_b32 v60, v{r+1}, v{r}, s{sT0}", f"v_perm_b32 v61, v{r+3}, v{r+2}, s{sT0}", f"v_perm_b32 v{56+k}, v61, v60, s{sT1}"]
        q.extend(self.check("xc", xl, [(56 + k, f"s{sTAG}") for k in range(4)], pre))
        self.stamp(q)
        for idx in range(8):
            q.e(f"v_pk_add_f32 {vr(BASE+2*idx,2)}, {vr(XR+2*idx,2)}, {vr(BASE+2*idx,2)}")
        for ii in range(4):
            q.wds(R[4 * ii + 3])
            s0 = 96 + 16 * ii
            for e in range(2):
                q.e(f"v_pk_add_f32 {vr(s0+2*e,2)}, {vr(s0+2*e,2)}, {vr(s0+4+2*e,2)}", f"v_pk_add_f32 {vr(s0+8+2*e,2)}, {vr(s0+8+2*e,2)}, {vr(s0+12+2*e,2)}")
            for e in range(2): q.e(f"v_pk_add_f32 {vr(s0+2*e,2)}, {vr(s0+2*e,2)}, {vr(BASE+4*ii+2*e,2)}")
            for e in range(2): q.e(f"v_pk_add_f32 {vr(s0+2*e,2)}, {vr(s0+2*e,2)}, {vr(s0+8+2*e,2)}")
            q.e(f"s_movk_i32 s{sT0}, {8192*ii}")
            q.e(f"buffer_store_dwordx4 {vr(s0)}, v19, {srd(R_OUT)}, s{sT0} offen")
        q.e(f"s_lshl_b32 s{sT0}, s{sG}, 2", f"s_or_b32 s{sT0}, s{sT0}, s{sW}", f"s_lshl_b32 s{sT0}, s{sT0}, 4", f"s_or_b32 s{sT0}, s{sT0}, s{sC}",
            f"s_cmp_eq_u32 s{sT0}, 15", "s_cbranch_scc0 L_nobump",
            f"v_mov_b32 v56, s{sTAG}", "v_mov_b32 v57, 0", "s_mov_b64 exec, 1")
        q.e(f"buffer_store_dword v56, v57, {srd(R_SY)}, 0 offen sc1")
        q.e("s_mov_b64 exec, -1")
        q.label("L_nobump")

    def write_ts(self, q):
        if not self.c.ts: return
        q.wds_all(); q.wvm_all()
        q.e("s_memtime s[46:47]", "s_memrealtime s[92:93]"); q.wds_all()
        q.e(f"s_lshl_b32 s{sT0}, s2, 2", f"s_add_u32 s{sT0}, s{sT0}, s{sW}", f"s_lshl_b32 s{sT0}, s{sT0}, 6", f"s_add_u32 s{sT0}, s{sT0}, {WS_TS}", "v_mov_b32 v2, 0")
        q.e("s_mov_b64 exec, 1")
        def put(k): q.e(f"buffer_store_dword v3, v2, {srd(R_SY)}, s{sT0} offen offset:{4*k}")
        assert self.nts + 1 <= 14
        for k in range(self.nts + 2):
            if k == 0: q.e("v_mov_b32 v3, v255")
            elif k == self.nts + 1: q.e("s_sub_u32 s46, s46, s42", "v_mov_b32 v3, s46")
            else:
                r = TSREG[k - 1]; q.e(f"s_sub_u32 s{r}, s{r}, s42", f"v_mov_b32 v3, s{r}")
            put(k)
        if self.nts + 1 < 14:
            q.e(f"s_lshl_b32 s{sT1}, s{sXCC}, 4", f"s_or_b32 s{sT1}, s{sT1}, s{sLOC}", f"v_mov_b32 v3, s{sT1}"); put(14)
        q.e("v_mov_b32 v3, s92"); put(15)
        q.wvm_all()

    def add_prof(self, q):
        lo, step = self.c.prof
        out = Seq(); unsafe = False; started = False; acc = 0; n = 0; idx = 0; nm = 0
        NP = len(TSREG)
        self.prof_pts = []
        for ins in q:
            t = ins.t
            if started and not unsafe and n < 64 and idx >= lo and acc >= step and ins.kind not in WAITK and not t.startswith(("s_cbranch", "s_branch", "s_cselect", "s_addc")) and ins.kind != "label":
                r = TSREG[n % NP]
                if n >= NP: out.e(f"v_writelane_b32 v0, s{r}, {n - NP}")
                out.e(f"s_memtime s[{r}:{r+1}]"); self.prof_pts.append((idx, nm, t[:50])); n += 1; acc = 0
            out.append(ins)
            if t == "s_barrier": started = True
            if started and ins.kind != "label":
                idx += 1; acc += 1
                if t.startswith("v_mfma"): nm += 1
            if t.startswith("s_cbranch"): unsafe = started
            if ins.kind == "label" and (t.endswith("_ok:") or t.startswith(("L_de", "L_nobump"))): unsafe = False
        out.wds_all()
        for k in range(max(0, n - NP), n): out.e(f"v_writelane_b32 v0, s{TSREG[k % NP]}, {k}")
        out.e(f"s_lshl_b32 s{sT0}, s2, 2", f"s_add_u32 s{sT0}, s{sT0}, s{sW}", f"s_lshl_b32 s{sT0}, s{sT0}, 8", f"s_add_u32 s{sT0}, s{sT0}, {WS_TS + 65536}",
              "v_subrev_u32 v0, s42, v0", f"v_lshlrev_b32 v2, 2, v{vL}")
        out.e(f"buffer_store_dword v0, v2, {srd(R_SY)}, s{sT0} offen")
        return out

    def build(self):
        q = Seq()
        q.label("L_start")
        last = self.prologue(q)
        self.phase1(q, last)
        self.transition(q)
        self.phase2(q)
        if self.c.prof: q = self.add_prof(q)
        self.write_ts(q)
        q.label("L_end")
        q.e("s_endpgm")
        q.extend(self.ool)
        return finalize(q)

HDR = """; @launch grid=(256,1,1) block=(256,1,1) lds=163840
.amdgcn_target "amdgcn-amd-amdhsa--gfx950"
.text
.globl {n}_kernel
.p2align 8
.type {n}_kernel,@function
{n}_kernel:
"""
TAIL = """
.section .rodata,"a"
.p2align 6
.amdhsa_kernel {n}_kernel
  .amdhsa_next_free_vgpr 512
  .amdhsa_next_free_sgpr 102
  .amdhsa_accum_offset 256
  .amdhsa_group_segment_fixed_size 0
  .amdhsa_kernarg_size 120
  .amdhsa_user_sgpr_count 2
  .amdhsa_user_sgpr_kernarg_segment_ptr 1
  .amdhsa_system_sgpr_workgroup_id_x 1
.end_amdhsa_kernel
"""
def generate(cfg):
    g = Gen(cfg)
    body = g.build()
    return HDR.format(n=NAME) + "\n".join(("" if l.endswith(":") else "    ") + l for l in body) + TAIL.format(n=NAME), g

if __name__ == "__main__":
    cfg = Cfg()
    for a in sys.argv[2:]:
        k, v = a.split("=", 1); setattr(cfg, k, eval(v))
    txt, g = generate(cfg)
    open(sys.argv[1], "w").write(txt)
```

```python
import sys, struct
from asmlib import *

NAME = "parallel_sum__ssm_conv_s5__dense_activation_relu__prompt"
def f2u(x): return struct.unpack("<I", struct.pack("<f", x))[0]
def fh(x): return hex(f2u(x))

WS_CS   = 262144
WS_FLAG = 524288
WS_STAT = 786432
WS_AGG  = 1 << 20
WS_XCH  = 2 << 20
WS_TS   = (7 << 20) + (1 << 19)
WS_H    = 8 << 20
HBLK = 88 * 2048
WS_END = WS_H + 64 * HBLK
TAGK = 0x9E3779B9
OOB = 0x40000000

sCO, sW, sWM, sWN, sC, sG, sGL, sU0, sORD, sXB, sT0, sT1, sT2 = 3, 4, 5, 6, 7, 8, 9, 10, 11, 12, 13, 14, 15
P_X, P_LRE, P_LIM, P_BRE, P_BIM, P_CRE, P_CIM, P_LDT = 16, 18, 20, 22, 24, 26, 28, 30
P_DSK, P_W1, P_W2, P_OUT, P_WS = 32, 36, 38, 40, 44
sU1, sK4 = 34, 35
sM = 46
R_X, R_BS, R_W1A, R_W1B, R_W2, R_CRE, R_CIM, R_OUT, R_SY = 48, 52, 56, 60, 72, 76, 80, 84, 88
R_AG = R_BS
sB0, sB1, sHS, sNV = 64, 65, 66, 67
sUO = 32
UO = {0: 32, 1: 33, 2: 100, 5: 101}
sKX, sKW, sLB, sONES, sTAG, sPOLL, sLE, sW2O = 92, 93, 94, 95, 96, 97, 98, 99
TSREG = [16, 18, 20, 22, 24, 26, 28, 30, 36, 38, 40, 68]
def srd(r): return f"s[{r}:{r+3}]"

vL = 1
BASE = 2
ACC_S, ACC_F1, ACC_F2 = 64, 96, 128
FR = 160
RA, RS, RF = 176, 180, 184
vX, vB, vW = 200, 204, 206
vSTS, vCSS, vGS, vGC, vPF, vAGS, vHF1, vHF2, vGR = 208, 209, 210, 211, 214, 215, 216, 217, 218
CS = 220
vW2, vC2, vTR, vCR, vTA, vLBK, vFP, vHS, vFL, vXS, vXR, vRW, vRR, vTW, vTD = 224, 228, 232, 233, 234, 238, 239, 242, 243, 244, 245, 246, 250, 252, 254
def vr(a, n=4): return f"v[{a}:{a+n-1}]"
def ar(a, n=4): return f"a[{a}:{a+n-1}]"

SLOT = 32768; WBLK = 8192
L_SP = 98304; SPW = 14336
L_CS = 155648

class Cfg:
    ts = False; ts_stages = (); ts_max = 12; ts_min = 0; prof = None; p2stamps = ()
    order = "xa"
    pf_from = 22; pf_n = 28; pf_step = 12
    early_from = 9; early_n = 2
    cap1 = 5.5; cap2 = 5.5; cap3 = 5
    stat_at = 2; gather_at = 86; check_at = 108
    w2_first = 8; w2_at2 = 28; w2_n2 = 8; w2_at3 = 44; lb_at = 58; left_pre = 4; g9_pre = 4; r0_at = 30; b_at = 64; b_tail = 100
    akept = 8; nring = 10; lead = 6; ntail = 4
    lead0 = 4; flagB_at = 15; fs_lead = 8; gate_lead = 4; wc_every = 2; burst = 5
    bar_lag = 14; send_at = 0; xl_at = 164; wev = 1
    poll_sleep = 1
    ost = ''

def mk_srd(q, r, p, size):
    q.e(f"s_mov_b32 s{r}, s{p}", f"s_and_b32 s{r+1}, s{p+1}, 0xffff", f"s_mov_b32 s{r+2}, {size}", f"s_mov_b32 s{r+3}, 0x20000")

WAITK = ("wvm", "wds", "wvm0", "wds0")
def groups(seq):
    G = []; cur = []
    for ins in seq:
        cur.append(ins)
        if ins.kind not in WAITK and not ins.t.startswith(("v_cmp", "s_cmp")):
            G.append(cur); cur = []
    if cur: G.append(cur)
    return G
def cost(g):
    c = 0
    for i in g:
        if i.kind == "label": continue
        if i.kind in WAITK: c += 0.5
        elif i.t.startswith(TRANS): c += 2
        elif i.t.startswith("ds_write_b128"): c += 3
        else: c += 1
    return c

class Stream:
    def __init__(self, items, start=0, dl=None, every=1, wev=1):
        self.it = list(items); self.nb = start; self.dl = dl; self.every = every; self.wev = wev
    def ready(self, gap):
        while self.it and isinstance(self.it[0], tuple):
            self.nb = max(self.nb, self.it.pop(0)[1])
        return bool(self.it) and gap >= self.nb
    def pop(self, gap):
        g = self.it.pop(0)
        if self.every > 1 and any(i.kind == "vm" for i in g): self.nb = gap + self.every
        if any(i.t.startswith("ds_write_b128") for i in g): self.nb = gap + self.wev
        return g
    def rest(self):
        r = [g for g in self.it if not isinstance(g, tuple)]; self.it = []; return r

def fill_gap(q, gap, used, cap, streams):
    for s in streams:
        if s.dl is not None and gap >= s.dl:
            for g in s.rest(): q.e(*g); used += cost(g)
    for s in streams:
        while s.ready(gap) and (used + cost(s.it[0]) <= cap or (used <= cap - 2 and cost(s.it[0]) > 3)):
            g = s.pop(gap); q.e(*g); used += cost(g)
def flush(q, streams):
    for s in streams:
        for g in s.rest(): q.e(*g)

def pack_order(o): return sum(v << (4 * k) for k, v in enumerate(o))
def hyb(xa):
    first = [0, (1 + 2 * xa), (2 + 2 * xa) & 7 or 1]
    rest = [v for v in [(3 + 2 * xa + k) & 7 for k in range(8)] if v not in first]
    return first + rest
ORDERS = {"xa": [[(i + 2 * xa) & 7 for i in range(8)] for xa in range(4)],
          "none": [list(range(8))] * 4,
          "two": [[(i + 4 * (xa & 1)) & 7 for i in range(8)] for xa in range(4)],
          "hyb": [hyb(xa) for xa in range(4)]}

class Gen:
    def __init__(self, cfg):
        self.c = cfg; self.nts = 0; self.nreq = 0; self.w2_last = {}; self.w2_rd = {}; self.ool = Seq()
    def stamp(self, q):
        self.nreq += 1
        if self.c.ts and self.nts < self.c.ts_max and self.nreq > self.c.ts_min:
            r = TSREG[self.nts]
            q.e(f"s_memtime s[{r}:{r+1}]"); self.nts += 1

    def stage_dma(self, i):
        base = (i % 3) * SLOT
        def ld(v, r, so, off): return I(f"buffer_load_dwordx4 v{v}, {srd(r)}, s{so} offen offset:{off} lds", "vm")
        def m0(o): return I(f"s_add_u32 m0, s{sLB}, {base + o}")
        def st(k): return I(f"s_bfe_u32 s{sKW}, s{sORD}, {(3 << 16) | (4 * k)}")
        mul = lambda: I(f"s_mul_i32 s{sKW}, s{sKW}, {64*3584}")
        G = []
        if i < 8:
            G.append([m0(0), st(i), I(f"s_lshl_b32 s{sKX}, s{sKW}, 7"), ld(vX, R_X, sKX, 0)])
            for j in range(1, 4): G.append([ld(vX + j, R_X, sKX, 1024 * j)])
            G.append([m0(4096), mul(), ld(vB, R_BS, sKX, 0)]); G.append([ld(vB + 1, R_BS, sKX, 1024)])
            G.append([m0(6144), ld(vW, R_W1A, sKW, 0)]); G.append([ld(vW + 1, R_W1A, sKW, 1024)])
        else:
            for t in range(4):
                G.append([m0(2048 * t), st(4 * (i - 8) + t), mul(), ld(vW, R_W1B, sKW, 0)])
                G.append([ld(vW + 1, R_W1B, sKW, 1024)])
        return G, G[-1][-1]

    def fb(self, n): return ACC_F2 + 8 * (n & 3) if n < 32 else FR - 4 + 4 * (n & 3)
    def frag_reads(self, n):
        b = self.fb(n)
        if n < 32:
            i, p = divmod(n, 4); slot = i % 3
            hi = 12 if slot == 2 else 0; o = SLOT if slot == 1 else 0
            S = I(f"ds_read_b128 {vr(b)}, v{RS+hi+p} offset:{o}", "ds")
            A0 = I(f"ds_read_b128 {ar(8*n)}, v{RA+hi+p} offset:{o}", "ds")
            A1 = I(f"ds_read_b128 {ar(8*n+4)}, v{RA+hi+p} offset:{o+WBLK}", "ds")
            F = [I(f"ds_read_b64_tr_b16 {vr(b+4+2*k, 2)}, v{RF+hi+p} offset:{o + 6144 + k*512}", "ds") for k in range(2)]
            return [S, A0, A1] + F
        if n >= 64: return []
        i, p = divmod(n - 32, 4)
        hi = 12 if i < 4 else 0
        return [I(f"ds_read_b64_tr_b16 {vr(b+4+2*k, 2)}, v{RF+hi+p} offset:{2048*(i&3) + k*512}", "ds") for k in range(2)]

    def prologue(self, q):
        c = self.c
        q.e("s_cmp_ge_u32 s2, 256", "s_cbranch_scc1 L_end")
        q.e("s_load_dwordx16 s[16:31], s[0:1], 0", "s_load_dwordx4 s[36:39], s[0:1], 80", "s_load_dwordx2 s[44:45], s[0:1], 112",
            "s_load_dwordx2 s[32:33], s[0:1], 64", "s_load_dwordx2 s[40:41], s[0:1], 96")
        q.e("s_getpc_b64 s[64:65]", "L_pc:", "s_and_b32 s3, s2, 0xf8", "s_lshl_b32 s3, s3, 7", "v_lshlrev_b32 v9, 2, v0", "v_add_u32 v9, s3, v9",
            "v_min_u32 v9, L_end-L_pc, v9")
        q.e("global_load_dword v10, v9, s[64:65]")
        if c.ts: q.e("s_memtime s[42:43]", "s_memrealtime s[46:47]")
        q.e(f"v_and_b32 v{vL}, 63, v0", "v_lshrrev_b32 v2, 6, v0", f"v_readfirstlane_b32 s{sW}, v2")
        O = [pack_order(o) for o in ORDERS[c.order]]
        q.e("s_bitcmp1_b32 s2, 1", f"s_mov_b32 s{sT0}, {O[0]:#x}", f"s_cmov_b32 s{sT0}, {O[1]:#x}", f"s_mov_b32 s{sORD}, {O[2]:#x}", f"s_cmov_b32 s{sORD}, {O[3]:#x}",
            "s_bitcmp0_b32 s2, 2", f"s_cmov_b32 s{sORD}, s{sT0}")
        q.e(f"s_and_b32 s{sXB}, s2, 1", f"s_and_b32 s{sT0}, s2, 6", f"s_lshr_b32 s{sT2}, s2, 6",
            f"s_lshl1_add_u32 s{sC}, s{sT0}, s{sT2}", f"s_bfe_u32 s{sGL}, s2, 0x30003", f"s_lshl3_add_u32 s{sG}, s{sXB}, s{sGL}")
        q.e(f"s_and_b32 s{sT2}, s{sT2}, 1", f"s_lshl1_add_u32 s{sT0}, s{sGL}, s{sT2}", f"s_add_u32 s{sT1}, s{sGL}, 6",
            f"s_cmp_lt_u32 s{sGL}, 6", f"s_cselect_b32 s{sU0}, s{sT0}, s{sT1}", f"s_cselect_b32 s{R_W1B+2}, {512*3584}, 0", f"s_xor_b32 s{sU1}, s{sU0}, 1",
            f"s_lshr_b32 s{sWM}, s{sW}, 1", f"s_and_b32 s{sWN}, s{sW}, 1", f"s_lshl_b32 s{sLB}, s{sW}, 13")
        q.e(f"v_lshrrev_b32 v2, 3, v{vL}", f"v_and_b32 v3, 7, v{vL}", f"v_lshrrev_b32 v4, 4, v{vL}")
        q.e("v_xor_b32 v5, v3, v4", "v_lshlrev_b32 v5, 4, v5")
        q.e(f"v_lshrrev_b32 v7, 5, v{vL}", "v_and_b32 v8, 3, v2", "v_lshl_add_u32 v7, v7, 4, v8",
            f"s_lshl2_add_u32 s{sT0}, s{sC}, s{sW}", f"s_lshl_b32 s{sT0}, s{sT0}, 5",
            f"v_add_u32 v7, s{sT0}, v7", f"v_lshl_add_u32 v{vX}, v7, 10, v5",
            f"v_xor_b32 v{vX+1}, 64, v{vX}", f"v_add_u32 v{vX+1}, {3072}, v{vX+1}",
            f"v_add_u32 v{vX+2}, {6144}, v{vX}", f"v_add_u32 v{vX+3}, {6144}, v{vX+1}")
        q.e(f"s_lshl1_add_u32 s{sK4}, s{sG}, s{sWN}", f"s_lshl_b32 s{sK4}, s{sK4}, 4",
            f"v_add_u32 v7, s{sK4}, v2", f"v_lshl_add_u32 v{vB}, v7, 10, v5",
            f"v_xor_b32 v{vB+1}, 64, v{vB}", f"v_add_u32 v{vB+1}, {7168}, v{vB+1}")
        q.e(f"s_lshl_b32 s{sT0}, s{sW}, 4", f"v_add_u32 v7, s{sT0}, v2", "v_mul_u32_u24 v7, 3584, v7",
            "v_and_b32 v8, 1, v4", "v_lshlrev_b32 v8, 2, v8", "v_xor_b32 v8, v8, v3", f"v_lshl_add_u32 v{vW}, v8, 4, v7",
            f"v_add_u32 v{vW+1}, {8*3584-1024}, v{vW}",
            f"s_mul_i32 s{sT0}, s{sXB}, 14", f"s_add_u32 s{sT1}, s{sT0}, s{sU1}", f"s_add_u32 s{sT0}, s{sT0}, s{sU0}",
            f"s_lshl_b32 s{sT0}, s{sT0}, 7", f"s_lshl_b32 s{sT1}, s{sT1}, 7",
            f"s_sub_u32 s{R_W1A+2}, {512*3584}, s{sT0}", f"s_max_u32 s{R_W1B+2}, s{R_W1B+2}, s{sT1}", f"s_sub_u32 s{R_W1B+2}, s{R_W1B+2}, s{sT1}")
        for r, size in ((R_X, 2048*1024), (R_BS, 512*1024)): q.e(f"s_mov_b32 s{r+2}, {size}")
        for r in (R_X, R_BS, R_W1A, R_W1B): q.e(f"s_mov_b32 s{r+3}, 0x20000")
        q.e(f"v_lshl_add_u32 v{vC2}, v2, 10, v5", "v_lshlrev_b32 v7, 10, v2", f"v_lshl_add_u32 v{vW2}, v8, 4, v7")
        q.e(f"v_lshlrev_b32 v33, 4, v{vL}", f"v_and_b32 v6, 15, v{vL}", f"v_add_lshl_u32 v11, v6, s{sK4}, 1", "v_mov_b32 v15, 0")
        q.e(f"s_lshl1_add_u32 s{sT2}, s{sC}, s{sWM}", f"s_lshl4_add_u32 s{sT2}, s{sT2}, s{sG}", f"s_lshl1_add_u32 s{sT2}, s{sT2}, s{sWN}",
            f"s_lshl_b32 s{sPOLL}, s{sT2}, 11")
        G0, l0 = self.stage_dma(0)
        q.e(*G0[0][:-1])
        q.wds_all()
        if c.ts: q.e("v_mov_b32 v255, s46")
        q.e(f"s_mov_b32 s{R_X}, s{P_X}", f"s_and_b32 s{R_X+1}, s{P_X+1}, 0xffff")
        q.e(G0[0][-1]); [q.e(*g) for g in G0[1:4]]
        q.e(f"s_cmp_eq_u32 s{sWM}, 0", f"s_cselect_b32 s{R_BS}, s{P_BRE}, s{P_BIM}", f"s_cselect_b32 s{R_BS+1}, s{P_BRE+1}, s{P_BIM+1}", f"s_and_b32 s{R_BS+1}, s{R_BS+1}, 0xffff")
        [q.e(*g) for g in G0[4:6]]
        q.e(f"s_and_b32 s{P_W1+1}, s{P_W1+1}, 0xffff", f"s_add_u32 s{R_W1A}, s{P_W1}, s{sT0}", f"s_addc_u32 s{R_W1A+1}, s{P_W1+1}, 0")
        [q.e(*g) for g in G0[6:8]]
        q.e(f"s_add_u32 s{R_W1B}, s{P_W1}, s{sT1}", f"s_addc_u32 s{R_W1B+1}, s{P_W1+1}, 0")
        last = [l0]
        q.e(f"buffer_load_dwordx4 {vr(40)}, v33, {srd(R_X)}, s{sPOLL} offen", f"buffer_load_dwordx4 {vr(44)}, v33, {srd(R_X)}, s{sPOLL} offen offset:1024")
        self.small0 = q.e(f"global_load_dword v16, v15, s[{P_WS}:{P_WS+1}] sc1")
        q.e(f"global_load_ushort v12, v11, s[{P_LRE}:{P_LRE+1}]", f"global_load_ushort v13, v11, s[{P_LIM}:{P_LIM+1}]")
        self.small = q.e(f"global_load_ushort v14, v11, s[{P_LDT}:{P_LDT+1}]")
        q.e(f"s_lshl_b32 s{sT1}, s{sGL}, 7", f"v_lshl_add_u32 v35, v6, 3, s{sT1}")
        self.dsk = q.e(f"global_load_dwordx2 {vr(38,2)}, v35, s[{P_DSK}:{P_DSK+1}]")
        f = Seq()
        f.e(f"v_and_b32 v2, 31, v{vL}", f"v_lshrrev_b32 v3, 5, v{vL}")
        f.e("v_bfe_u32 v7, v2, 1, 3", "v_xor_b32 v7, v7, v3", "v_lshlrev_b32 v7, 4, v7",
            f"v_lshl_add_u32 v{vCR}, v2, 7, v7",
            f"s_lshl_b32 s{sT1}, s{sWM}, 5", f"v_xor_b32 v7, s{sT1}, v7", f"v_xor_b32 v5, s{sT1}, v{vCR}",
            f"s_lshl_b32 s{sT1}, s{sWM}, 14", f"v_add_u32 v{RA}, s{sT1}, v5")
        f.e("v_lshl_add_u32 v7, v6, 7, v7", "v_and_b32 v8, 16, v2", "v_lshl_add_u32 v7, v8, 10, v7",
            f"s_lshl_b32 s{sT1}, s{sWN}, 13", f"s_add_u32 s{sT1}, s{sT1}, 4096", f"v_add_u32 v{RS}, s{sT1}, v7")
        for p in range(1, 4): f.e(f"v_xor_b32 v{RA+p}, {32*p}, v{RA}", f"v_xor_b32 v{RS+p}, {32*p}, v{RS}")
        f.e("v_lshrrev_b32 v9, 2, v6", "v_lshlrev_b32 v5, 7, v9", "v_and_b32 v7, 3, v6", "v_lshl_add_u32 v5, v7, 3, v5", "v_lshl_add_u32 v5, v8, 1, v5",
            "v_and_b32 v7, 8, v6", "v_lshl_add_u32 v5, v7, 3, v5",
            f"v_lshl_add_u32 v{vTR}, v3, 9, v5",
            "v_lshl_add_u32 v5, v3, 10, v5", f"s_lshl_b32 s{sT1}, s{sWN}, 6", f"s_lshl_b32 s{sT0}, s{sWM}, 13", f"s_or_b32 s{sT1}, s{sT1}, s{sT0}",
            f"v_xor_b32 v{RF}, s{sT1}, v5")
        for p in range(1, 4): f.e(f"v_xor_b32 v{RF+p}, {WBLK*p}, v{RF}")
        f.e(f"s_mov_b32 s{sONES}, 0x3f803f80", f"v_mov_b32 v{CS}, 0", f"v_mov_b32 v{CS+1}, 0")
        for k in range(4): f.e(f"v_mov_b32 v{48+k}, 0")
        for k in range(12): f.e(f"v_add_u32 v{RA+12+k}, {2*SLOT}, v{RA+k}")
        mk_srd(f, R_SY, P_WS, WS_END); mk_srd(f, R_W2, P_W2, 1792*1024); mk_srd(f, R_CRE, P_CRE, 512*1024)
        mk_srd(f, R_CIM, P_CIM, 512*1024); mk_srd(f, R_OUT, P_OUT, 2048*2048)
        q.extend(f)
        q.e(f"s_mul_i32 s{sT0}, s2, 56", f"s_mul_i32 s{sT1}, s{sWN}, 28", f"s_add_u32 s{sT0}, s{sT0}, s{sT1}", f"s_lshl_b32 s{sT1}, s2, 4", f"s_min_u32 s{sT1}, s{sT1}, {4096-28}",
            f"s_cmp_eq_u32 s{sWN}, 0", f"s_cselect_b32 s70, s{P_CRE}, s{P_CIM}", f"s_cselect_b32 s71, s{P_CRE+1}, s{P_CIM+1}",
            f"s_cmp_eq_u32 s{sWM}, 0", f"s_cselect_b32 s{sT0}, s{sT0}, s{sT1}",
            f"s_cselect_b32 s70, s{P_W2}, s70", f"s_cselect_b32 s71, s{P_W2+1}, s71",
            f"v_min_u32 v7, {c.pf_n - 1}, v{vL}", f"v_add_lshl_u32 v{vPF}, v7, s{sT0}, 7")
        f = Seq(); self.consts_early(f)
        G, l = self.stage_dma(1); last.append(l)
        q.extend(merge(f, G))
        return last

    def consts_early(self, f):
        f.e("v_and_b32 v5, 1, v4", "v_lshl_add_u32 v32, v5, 1, v3")
        f.e(f"s_lshl_b32 s{sT2}, s{sT2}, 5", f"s_add_u32 s{sT2}, s{sT2}, {WS_STAT}", f"v_lshl_add_u32 v7, v3, 4, s{sT2}", f"v_lshl_add_u32 v{vSTS}, v2, 25, v7")
        f.e(f"s_lshl1_add_u32 s{sT0}, s{sC}, s{sXB}", f"s_lshl_b32 s{sT1}, s{sT0}, 13", f"s_add_u32 s{sT1}, s{sT1}, {WS_FLAG}",
            f"s_lshl_b32 s{sT2}, s{sW}, 3", f"s_mul_i32 s{sT0}, s{sWM}, 3", f"s_add_u32 s{sT0}, s{sT0}, s{sWN}", f"s_lshl_b32 s{sT0}, s{sT0}, 2", f"s_sub_u32 s{sT0}, s{sT0}, 8",
            f"v_mov_b32 v7, s{sT2}", f"v_mov_b32 v8, s{sT0}", f"v_cmp_gt_u32 vcc, 8, v{vL}", "v_cndmask_b32 v7, v8, v7, vcc",
            f"v_add_u32 v7, v7, v{vL}", f"v_lshl_add_u32 v7, v7, 8, s{sT1}", "v_lshl_add_u32 v36, v4, 28, v7",
            f"s_lshl2_add_u32 s{sT2}, s{sGL}, s{sW}", f"s_lshl_b32 s{sT2}, s{sT2}, 8", f"s_add_u32 s{sT1}, s{sT1}, s{sT2}",
            f"v_lshl_add_u32 v7, v2, 2, s{sT1}", f"v_lshl_add_u32 v{vFL}, v3, 30, v7", f"v_lshl_add_u32 v{vFP}, v3, 7, v7")
        f.e(f"s_lshl4_add_u32 s{sT0}, s{sC}, s{sG}", f"s_lshl1_add_u32 s{sT0}, s{sT0}, s{sWN}", f"s_lshl_b32 s{sT0}, s{sT0}, 9", f"s_add_u32 s{sT0}, s{sT0}, {WS_CS}",
            f"v_lshl_add_u32 v7, v{vL}, 3, s{sT0}", f"v_xor_b32 v{vGC}, 0x4000, v7", f"s_lshl_b32 s{sT2}, s{sWM}, 30", f"v_add_u32 v{vCSS}, s{sT2}, v7")
        f.e(f"s_lshl_b32 s{sT0}, s{sWN}, 8", f"v_lshl_add_u32 v8, v6, 4, s{sT0}",
            f"s_lshl1_add_u32 s{sNV}, s{sC}, s{sWM}", f"s_sub_u32 s{sT0}, 31, s{sNV}", f"s_lshl_b32 s{sT0}, s{sT0}, 9",
            f"s_lshl_b32 s{sT1}, s{sG}, 14", f"s_add_u32 s{sT1}, s{sT1}, {WS_AGG}", f"s_add_u32 s{sT1}, s{sT1}, s{sT0}",
            f"v_add_u32 v7, s{sT1}, v8", f"v_lshl_add_u32 v{vAGS}, v4, 28, v7",
            f"s_add_u32 s{sT0}, s{sT0}, 512", "v_sub_u32 v7, 3, v4", "v_lshl_add_u32 v7, v7, 12, v8", f"v_add_u32 v{vLBK}, s{sT0}, v7",
            f"s_lshl_b32 s{sNV}, s{sNV}, 4")

    def consts_late(self, f):
        f.e(f"v_and_b32 v7, 4, v{vL}", f"v_and_b32 v8, 35, v{vL}", "v_lshl_add_u32 v7, v7, 2, v8", f"v_and_b32 v8, 24, v{vL}", "v_lshrrev_b32 v8, 1, v8",
            "v_add_u32 v37, v7, v8")
        f.e(f"s_lshl1_add_u32 s{sT1}, s{sC}, s{sWM}", f"s_lshl_b32 s{sT1}, s{sT1}, 10", f"s_add_u32 s{sT1}, s{sT1}, {WS_STAT}",
            f"v_lshl_add_u32 v{vGS}, v37, 4, s{sT1}", "v_lshl_add_u32 v7, v32, 4, v6", f"v_lshl_add_u32 v{vGR}, v7, 4, s{sT1}")
        f.e(f"s_lshl_b32 s{sT0}, s{sW}, 9", f"s_add_u32 s{sT0}, s{sT0}, {L_CS}", f"v_lshl_add_u32 v{vGC+1}, v{vL}, 3, s{sT0}", f"v_xor_b32 v{vGC+2}, 1024, v{vGC+1}")
        f.e(f"s_lshl1_add_u32 s{sT0}, s{sC}, s{sXB}", f"s_lshl1_add_u32 s{sT1}, s{sT0}, s{sWM}", f"s_mul_i32 s{sT1}, s{sT1}, {HBLK}", f"s_add_u32 s{sT1}, s{sT1}, {WS_H}",
            f"s_lshl1_add_u32 s{sT0}, s{sT0}, s{sXB}", f"s_mul_i32 s{sB1}, s{sT0}, {HBLK}", f"s_xor_b32 s{sT0}, s{sT0}, 1", f"s_mul_i32 s{sB0}, s{sT0}, {HBLK}",
            f"s_add_u32 s{sB0}, s{sB0}, {WS_H}", f"s_add_u32 s{sB1}, s{sB1}, {WS_H}",
            f"s_lshl_b32 s{sHS}, s{sW}, 14", f"s_add_u32 s{sHS}, s{sHS}, {56*2048}")
        f.e(f"s_lshl_b32 s{sT0}, s{sWN}, 12", f"s_add_u32 s{sT0}, s{sT0}, s{sT1}", f"s_lshl_b32 s{sT2}, s{sU0}, 13", f"s_add_u32 s{sT2}, s{sT2}, s{sT0}",
            f"v_add_u32 v{vHF1}, s{sT2}, v33", f"s_lshl_b32 s{sT2}, s{sU1}, 13", f"s_add_u32 s{sT2}, s{sT2}, s{sT0}",
            f"s_min_u32 s{sT0}, s{R_W1B+2}, 1", f"s_sub_u32 s{sT0}, 1, s{sT0}", f"s_lshl_b32 s{sT0}, s{sT0}, 30", f"s_add_u32 s{sT2}, s{sT2}, s{sT0}",
            f"v_add_u32 v{vHF2}, s{sT2}, v33")
        f.e(f"s_lshr_b32 s{sT0}, s{sGL}, 1", f"s_and_b32 s{sT2}, s{sGL}, 1", f"s_lshl2_add_u32 s{sT0}, s{sT0}, s{sT2}", f"s_lshl1_add_u32 s{sT0}, s{sT0}, s{sWN}",
            f"s_add_u32 s{sT0}, s{sT0}, 56", f"s_lshl_b32 s{sT0}, s{sT0}, 11", f"s_add_u32 s{sT0}, s{sT0}, s{sT1}", f"v_add_u32 v{vHS}, s{sT0}, v33")
        f.e(f"s_and_b32 s{sT2}, s{sC}, 1", f"s_lshl2_add_u32 s{sT0}, s{sW}, s{sT2}", f"s_add_u32 s{sT1}, s{sT0}, 2",
            f"s_min_u32 s{sT0}, s{sT0}, 12", f"s_min_u32 s{sT1}, s{sT1}, 13", f"s_lshl_b32 s{UO[0]}, s{sT0}, 13", f"s_lshl_b32 s{UO[1]}, s{sT1}, 13",
            f"s_xor_b32 s{sT2}, s{sT2}, 1", f"s_mul_i32 s{sT0}, s{sWM}, 6", f"s_add_u32 s{sT0}, s{sT0}, s{sT2}",
            f"s_lshl2_add_u32 s{sT1}, s{sWN}, s{sT0}", f"s_lshl_b32 s{UO[2]}, s{sT1}, 13",
            f"s_add_u32 s{sT0}, s{sT0}, 2", f"s_lshl1_add_u32 s{sT0}, s{sT0}, s{sWN}", f"s_lshl_b32 s{UO[5]}, s{sT0}, 12")
        f.e(f"s_mul_i32 s{sLE}, s{sW}, {SPW}", f"s_add_u32 s{sLE}, s{sLE}, {L_SP}",
            f"s_mul_i32 s{sW2O}, s{sXB}, {896*1024}", f"s_lshl_b32 s{sT1}, s{sGL}, 7", f"s_add_u32 s{sW2O}, s{sW2O}, s{sT1}",
            f"s_lshl2_add_u32 s{sCO}, s{sXB}, s{sW}", f"s_lshl_b32 s{sCO}, s{sCO}, 7", f"s_lshl_b32 s{sT0}, s{sGL}, 16", f"s_add_u32 s{sCO}, s{sCO}, s{sT0}")
        f.e(f"v_xor_b32 v{vC2+1}, 64, v{vC2}", f"v_add_u32 v{vC2+1}, 7168, v{vC2+1}", f"v_add_u32 v{vC2+2}, 14336, v{vC2}", f"v_add_u32 v{vC2+3}, 14336, v{vC2+1}")
        for j in range(1, 4): f.e(f"v_add_u32 v{vW2+j}, {7168*j}, v{vW2}")
        f.e(f"s_lshl1_add_u32 s{sT0}, s{sC}, s{sXB}", f"s_lshl2_add_u32 s{sT0}, s{sT0}, s{sW}", f"s_lshl_b32 s{sT0}, s{sT0}, 4", f"v_add_u32 v7, s{sT0}, v4",
            "v_lshlrev_b32 v34, 4, v7", f"v_add_u32 v34, {WS_STAT}, v34", "v_lshl_add_u32 v18, v7, 10, v35", "v_lshlrev_b32 v19, 1, v18")
        f.e(f"s_lshl4_add_u32 s{sT0}, s{sC}, s{sG}", f"s_lshl2_add_u32 s{sT0}, s{sT0}, s{sW}", f"s_lshl_b32 s{sT0}, s{sT0}, 12", f"s_add_u32 s{sT0}, s{sT0}, {WS_XCH}",
            f"v_add_u32 v{vXS}, s{sT0}, v33", f"v_xor_b32 v{vXR}, 0x20000, v{vXS}")
        f.e("v_and_b32 v7, 7, v2", "v_xor_b32 v7, v7, v3", "v_lshlrev_b32 v7, 4, v7", "v_and_b32 v8, 31, v37", "v_lshl_add_u32 v7, v8, 8, v7",
            f"s_lshl_b32 s{sT0}, s{sW}, 14", f"v_add_u32 v{vRW}, s{sT0}, v7")
        for g4 in range(1, 4): f.e(f"v_xor_b32 v{vRW+g4}, {32*g4}, v{vRW}")
        f.e("v_xor_b32 v7, v6, v4", "v_lshlrev_b32 v7, 4, v7", "v_lshl_add_u32 v7, v4, 8, v7", f"s_lshl_b32 s{sT0}, s{sW}, 12", f"s_lshl_b32 s{sT1}, s{sWN}, 6",
            f"s_or_b32 s{sT0}, s{sT0}, s{sT1}", f"v_xor_b32 v{vRR}, s{sT0}, v7")
        f.e("v_and_b32 v7, 2, v6", "v_and_b32 v8, 1, v6", "v_lshl_add_u32 v7, v7, 1, v8", "v_and_b32 v8, 4, v6", "v_lshrrev_b32 v8, 1, v8", "v_or_b32 v7, v7, v8",
            "v_lshlrev_b32 v8, 1, v32", "v_xor_b32 v7, v7, v8", "v_lshlrev_b32 v7, 4, v7", "v_lshl_add_u32 v7, v6, 7, v7",
            f"s_add_u32 s{sT0}, s{sLE}, 8192", f"v_add_u32 v{vTW}, s{sT0}, v7", f"v_xor_b32 v{vTW+1}, 16, v{vTW}")
        f.e("v_and_b32 v5, 1, v6", "v_and_b32 v8, 16, v2", "v_lshl_add_u32 v5, v5, 5, v8", "v_and_b32 v8, 2, v6", "v_lshl_add_u32 v5, v8, 2, v5")
        f.e("v_and_b32 v7, 2, v9", "v_and_b32 v8, 1, v9", "v_lshl_add_u32 v7, v7, 1, v8", "v_lshlrev_b32 v7, 4, v7", "v_xor_b32 v7, v7, v5",
            "v_lshl_add_u32 v8, v3, 3, v9", "v_lshl_add_u32 v7, v8, 7, v7", f"v_add_u32 v{vTD}, s{sT0}, v7")

    def ssm_consts(self, q):
        q.wvm(self.small)
        q.e("v_lshlrev_b32 v14, 16, v14", "v_lshlrev_b32 v12, 16, v12", f"v_mul_f32 v14, {fh(1.4426950408889634)}, v14", "v_lshlrev_b32 v13, 16, v13",
            "v_exp_f32 v14, v14", "v_lshlrev_b32 v3, 4, v32", "v_cvt_pk_bf16_f32 v14, v14, v14", "v_lshlrev_b32 v14, 16, v14",
            "v_mul_f32 v17, v14, v12", "v_mul_f32 v16, v14, v13",
            f"v_mul_f32 v17, {fh(1.4426950408889634)}, v17", f"v_mul_f32 v16, {fh(0.15915494309189535)}, v16",
            "v_cvt_f32_u32 v3, v3", "v_sub_u32 v4, 3, v4", "v_lshlrev_b32 v4, 9, v4", "v_cvt_f32_u32 v4, v4")
        def cexp(d, n):
            q.e(f"v_mul_f32 v6, {n}, v16", f"v_mul_f32 v5, {n}, v17", "v_fract_f32 v6, v6", "v_exp_f32 v5, v5", f"v_cos_f32 v{d}, v6", f"v_sin_f32 v{d+1}, v6",
                f"v_mul_f32 v{d}, v{d}, v5", f"v_mul_f32 v{d+1}, v{d+1}, v5")
        cexp(20, "1.0"); cexp(22, fh(16.0)); cexp(24, fh(64.0)); cexp(26, "v3"); cexp(28, "v4")
        q.e("v_mul_f32 v6, v12, v12", "v_fmac_f32 v6, v13, v13", "v_rcp_f32 v6, v6", "v_add_f32 v5, -1.0, v20",
            "v_mul_f32 v30, v5, v12", "v_fmac_f32 v30, v21, v13", "v_mul_f32 v31, v21, v12", "v_fma_f32 v31, -v5, v13, v31",
            "v_add_f32 v6, v6, v6", "v_mul_f32 v30, v30, v6", "v_mul_f32 v31, v31, v6")

    def check(self, name, loads, test):
        q = Seq()
        q.wvm(loads[-1])
        q.e(*test)
        q.e(f"s_cbranch_scc1 L_{name}_slow")
        q.label(f"L_{name}_ok")
        o = self.ool
        o.label(f"L_{name}_slow")
        o.e(f"s_mov_b32 s{sPOLL}, 0x40000")
        o.label(f"L_{name}_loop")
        o.e(f"s_sleep {self.c.poll_sleep}")
        for l in loads: o.append(I(l.t, "o"))
        o.e("s_waitcnt vmcnt(0)", f"s_sub_u32 s{sPOLL}, s{sPOLL}, 1", f"s_cbranch_scc1 L_{name}_ok")
        o.e(*test)
        o.e(f"s_cbranch_scc1 L_{name}_loop", f"s_branch L_{name}_ok")
        return list(q)
    def tags(self, regs, lo=False):
        if len(regs) == 1: return [f"v_cmp_ne_u32 vcc, s{sTAG}, v{regs[0]}", f"s_and_b32 s{sM}, vcc_lo, {lo}" if lo else "s_cmp_lg_u64 vcc, 0"]
        t = [f"v_cmp_ne_u32 s[{sM}:{sM+1}], s{sTAG}, v{regs[0]}"]
        for r in regs[1:]: t += [f"v_cmp_ne_u32 vcc, s{sTAG}, v{r}", f"s_or_b64 s[{sM}:{sM+1}], s[{sM}:{sM+1}], vcc"]
        return t

    def cmul_acc(self, q, d, a, b, c, c2=None):
        c2 = c + 1 if c2 is None else c2
        q.e(f"v_fma_f32 v{d}, v{a}, v{b}, v{c}", f"v_fma_f32 v{d+1}, v{a}, v{b+1}, v{c2}",
            f"v_fma_f32 v{d}, -v{a+1}, v{b+1}, v{d}", f"v_fma_f32 v{d+1}, v{a+1}, v{b}, v{d+1}")
    def cmul(self, q, d, a, b):
        q.e(f"v_mul_f32 v{d}, v{a}, v{b}", f"v_mul_f32 v{d+1}, v{a}, v{b+1}",
            f"v_fma_f32 v{d}, -v{a+1}, v{b+1}, v{d}", f"v_fma_f32 v{d+1}, v{a+1}, v{b}, v{d+1}")

    def w2_area(self, pc):
        return {0: (sLE, 0), 5: (sLE, 8192), 1: (sLB, SLOT), 2: (sLB, 2*SLOT), 3: (sLE, 0), 4: (sLB, SLOT)}[pc]
    def w2_dma(self, pc, run=4):
        sb, ao = self.w2_area(pc)
        G = []
        for k in range(4 if pc == 5 else 8):
            g = []; j = k % run
            if pc in UO:
                if j == 0:
                    g += [I(f"s_add_u32 m0, s{sb}, {ao + 1024*k}"), I(f"s_lshl3_add_u32 s{sKX}, s{UO[pc]}, s{sW2O}")]
                    if k: g.append(I(f"s_add_u32 s{sKX}, s{sKX}, {8*k*1024}"))
                g.append(I(f"buffer_load_dwordx4 v{vW2+j}, {srd(R_W2)}, s{sKX} offen offset:{1024*j} lds", "vm"))
            else:
                if j == 0: g += [I(f"s_add_u32 m0, s{sb}, {ao + 1024*k}"), I(f"s_add_u32 s{sKX}, s{sCO}, {8*k*1024}")]
                g.append(I(f"buffer_load_dwordx4 v{vC2+j}, {srd(R_CRE if pc == 3 else R_CIM)}, s{sKX} offen offset:{1024*j} lds", "vm"))
            G.append(g)
        self.w2_last[pc] = G[-1][-1]
        return G
    def w2_reads(self, pc):
        sb, ao = self.w2_area(pc)
        L = Seq()
        if pc in UO:
            L.e(f"v_add_u32 v{vTA}, s{sb}, v{vTR}")
            if ao >= 2 * SLOT: L.e(f"v_add_u32 v{vTA}, {ao}, v{vTA}"); ao = 0
            L.e(f"v_xor_b32 v{vTA+1}, 64, v{vTA}")
            L.wvm(self.w2_last[pc])
            j0 = {0: 0, 1: 4, 2: 8, 5: 12}[pc]
            for k in range(2 if pc == 5 else 4):
                for nu in range(2):
                    for e in range(2):
                        a = 8 * (j0 + k) + 4 * nu + 2 * e
                        r = L.e(f"ds_read_b64_tr_b16 {ar(a,2)}, v{vTA+nu} offset:{ao + 2048*k + 1024*e}")
        else:
            L.e(f"v_add_u32 v{vTA}, s{sb}, v{vCR}")
            for k in range(1, 4): L.e(f"v_xor_b32 v{vTA+k}, {32*k}, v{vTA}")
            L.wvm(self.w2_last[pc])
            j0 = 14 if pc == 3 else 18
            for k in range(4):
                for nu in range(2):
                    r = L.e(f"ds_read_b128 {ar(8*(j0+k)+4*nu)}, v{vTA+k} offset:{ao + 4096*nu}")
        self.w2_rd[pc] = r
        return groups(L)
    def after_reads(self, pc, G):
        w = Seq(); w.wds(self.w2_rd[pc])
        return [list(w) + G[0]] + G[1:]

    def ffn_epi(self, a, voff):
        f = Seq()
        for t in range(2):
            b = a + 16 * t
            for j in range(8): f.e(f"v_pk_mul_f32 {vr(b+2*j,2)}, {vr(b+2*j,2)}, {vr(42,2)} op_sel:[0,{t}] op_sel_hi:[1,{t}]")
            for j in range(8): f.e(f"v_cvt_pk_bf16_f32 v{b+j}, v{b+2*j}, v{b+2*j+1}")
            for j in range(8): f.e(f"v_pk_max_i16 v{b+j}, v{b+j}, 0")
        st = [I(f"buffer_store_dwordx4 {vr(a+16*t+4*al)}, v{voff}, {srd(R_SY)}, 0 offen offset:{2048*al + 1024*t} sc1", "vm") for t in range(2) for al in range(2)]
        return f, st

    def split3(self, s, src, d):
        s.e(f"v_and_b32 v240, 0xffff0000, v{src}", f"v_sub_f32 v240, v{src}, v240",
            f"v_perm_b32 v{d}, v240, v{src}, s{sONES}", "v_and_b32 v241, 0xffff0000, v240", "v_sub_f32 v241, v240, v241",
            f"v_cvt_pk_bf16_f32 v{d+1}, v241, 0")

    def flag_store(self, kind, after):
        q = Seq(); q.wvm(after)
        q.e(f"buffer_store_dword v251, v{vFL}, {srd(R_SY)}, 0 offen offset:{128*kind} sc1")
        return list(q)

    def phase1(self, q, last):
        c = self.c
        RE, IM = ACC_S, ACC_S + 16
        MF8 = "v_mfma_f32_32x32x8_bf16"; MF = "v_mfma_f32_32x32x16_bf16"
        MFR = 200
        q.wvm(last[0]); q.e("s_barrier"); self.stamp(q)
        D = 2; D2 = 3
        RD = {}
        for n in range(D): RD[n] = self.frag_reads(n); q.e(*RD[n])
        G, l = self.stage_dma(2); last.append(l)
        dma = Stream(G, every=1)
        s = Seq()
        s.e(f"v_readfirstlane_b32 s{sTAG}, v16", "v_permlane32_swap_b32 v48, v49", "v_permlane32_swap_b32 v50, v51", f"s_add_u32 s{sTAG}, s{sTAG}, {hex(TAGK)}",
            "v_add_f32 v48, v48, v49", "v_add_f32 v50, v50, v51", f"s_or_b32 s{sTAG}, s{sTAG}, 1", f"v_mov_b32 v54, s{sTAG}",
            "v_permlane16_swap_b32 v48, v50", "v_add_f32 v48, v48, v50", f"v_mov_b32 v251, s{sTAG}")
        for k in (8, 4, 2, 1): s.e(f"v_add_f32_dpp v48, v48, v48 row_ror:{k} row_mask:0xf bank_mask:0xf")
        s.e("v_mov_b32 v49, v48", "v_permlane16_swap_b32 v48, v49",
            f"v_mul_f32 v48, {fh(1/512)}, v48", f"v_mul_f32 v49, {fh(1/512)}, v49", "v_fma_f32 v49, -v48, v48, v49", "v_max_f32 v49, 0, v49",
            "v_cvt_pk_bf16_f32 v49, v49, v49", "v_lshlrev_b32 v49, 16, v49", f"v_add_f32 v49, {fh(1e-5)}, v49",
            "v_cvt_pk_bf16_f32 v49, v49, v49", "v_lshlrev_b32 v49, 16, v49", "v_sqrt_f32 v49, v49",
            "v_cvt_pk_bf16_f32 v53, -v48, -v48",
            "v_cvt_pk_bf16_f32 v49, v49, v49", "v_lshlrev_b32 v49, 16, v49", "v_rcp_f32 v52, v49")
        s.e(f"buffer_store_dwordx4 {vr(52)}, v{vSTS}, {srd(R_SY)}, 0 offen sc1")
        sA = Stream(groups(s), start=4 * (c.stat_at + 1), dl=40)
        s = Seq(); self.consts_late(s); self.ssm_consts(s)
        sC_ = Stream(groups(s), dl=c.gather_at - 1)
        gl_ = [I(f"buffer_load_dwordx3 {vr(40,3)}, v{vGS}, {srd(R_SY)}, 0 offen sc1", "vm"), I(f"buffer_load_dwordx3 {vr(44,3)}, v{vGR}, {srd(R_SY)}, 0 offen sc1", "vm")]
        A = [gl_, ("nb", c.check_at), self.check("ga", gl_, self.tags([42, 46]))]
        s = Seq()
        s.e(f"v_mov_b32 v{MFR}, v41", f"v_mov_b32 v{MFR+2}, v41", "v_mov_b32 v42, v40", "v_mov_b32 v43, v40",
            f"s_lshl_b32 s{sT0}, s{sG}, 14", f"s_add_u32 s{sT0}, s{sT0}, {WS_AGG}",
            f"v_permlane32_swap_b32 v{MFR}, v{MFR+2}", "v_permlane32_swap_b32 v42, v43", f"v_mov_b32 v{MFR+1}, v{MFR}", f"v_mov_b32 v{MFR+3}, v{MFR+2}")
        A += groups(s)
        A.append([I(f"s_add_u32 s{R_AG}, s{R_SY}, s{sT0}"), I(f"s_addc_u32 s{R_AG+1}, s{R_SY+1}, 0"), I(f"s_movk_i32 s{R_AG+2}, 16384")])
        assert c.check_at >= 92
        sG_ = Stream(A, start=c.gather_at, dl=127)
        early = self.w2_dma(0, 2) + self.w2_dma(5, 2)
        for n in range(32):
            p = n & 3
            b = self.fb(n); rd = RD[n]
            if (n + D) % 4 == 0:
                i = (n + D) // 4 - 1
                flush(q, [dma])
                q.wds_all()
                if i < 7: q.wvm(last[i + 1])
                q.e("s_barrier")
                if i in c.ts_stages: self.stamp(q)
                if i < 6:
                    G, l = self.stage_dma(i + 3); last.append(l)
                    if c.early_from <= i < 6:
                        assert not sC_.it
                        G = G + early[:c.early_n]; early = early[c.early_n:]
                    dma = Stream(G, every=2)
                if i == 7: csr = q.e(f"ds_read_b64 {vr(62,2)}, v{vGC+2}")
            if n >= c.pf_from and (n - c.pf_from) % c.pf_step == 0 and (n - c.pf_from) // c.pf_step * c.pf_n < 28:
                q.e(f"global_load_dword v10, v{vPF}, s[70:71] offset:{(n - c.pf_from) // c.pf_step * c.pf_n * 128}")
                if n == c.pf_from:
                    for v in (vFP, vAGS, vCSS): q.e(f"buffer_load_dword v10, v{v}, {srd(R_SY)}, 0 offen")
            nxt = []
            if n + D < 32: nxt = RD[n + D] = self.frag_reads(n + D)
            z = lambda a: ("0" if n == 0 else vr(a, 16))
            M = [f"{MF} {vr(ACC_F1,16)}, {vr(b+4)}, {ar(8*n)}, {z(ACC_F1)}", f"{MF} {vr(ACC_F1+16,16)}, {vr(b+4)}, {ar(8*n+4)}, {z(ACC_F1+16)}",
                 f"{MF} {vr(RE,16)}, {ar(8*n)}, {vr(b)}, {z(RE)}", f"{MF} {vr(IM,16)}, {ar(8*n+4)}, {vr(b)}, {z(IM)}"]
            sched = [2, 1, 1, 2]
            k = 0
            for j, m in enumerate(M):
                q.wds(rd[4]); q.e(m)
                mine = nxt[k:k + sched[j]]; k += sched[j]
                q.e(*mine)
                fill_gap(q, 4 * n + j, len(mine), c.cap1, [dma, sA, sG_, sC_])
                if n == 30 and j == 2:
                    q.e(f"s_mov_b32 s{sONES}, 0x07060302"); q.wds(csr)
                    q.e(f"v_add_f32 v{CS+1}, v{CS+1}, v63", f"v_add_f32 v{CS}, v{CS}, v62")
                if n == 30 and j == 3: self.split3(q, CS + 1, 222)
                if n == 31 and j == 0: self.split3(q, CS, 204)
                if n == 31 and j == 1:
                    flush(q, [sG_])
                    for t in range(2): q.e(f"{MF8} {vr(ACC_F1+16*t,16)}, {vr(222,2)}, {vr(MFR+2*t,2)}, {vr(ACC_F1+16*t,16)}")
            if n == c.stat_at:
                q.wvm(self.small0)
                for r in range(4):
                    q.e(f"v_dot2c_f32_bf16 v48, s{sONES}, v{40+r}", f"v_dot2c_f32_bf16 v49, s{sONES}, v{44+r}",
                        f"v_dot2c_f32_bf16 v50, v{40+r}, v{40+r}", f"v_dot2c_f32_bf16 v51, v{44+r}, v{44+r}")
            if p == 1:
                if dma.it: q.e(*dma.it.pop(0))
                for e in (n - 1, n + 1):
                    q.wds(RD[e][4]); be = self.fb(e)
                    for r in range(4):
                        q.e(f"v_dot2c_f32_bf16 v{CS}, s{sONES}, v{be+r}", f"v_dot2c_f32_bf16 v{CS+1}, s{sONES}, v{be+4+r}")
            if n == 29: q.e(f"ds_write_b64 v{vGC+1}, {vr(CS,2)}")
        for t in range(2): q.e(f"{MF8} {vr(RE+16*t,16)}, {vr(MFR+2*t,2)}, {vr(204,2)}, {vr(RE+16*t,16)}")
        self.stamp(q)
        G9, l = self.stage_dma(9); last.append(l)
        f, st = self.ffn_epi(ACC_F1, vHF1)
        q.e(f"v_mov_b32 v{CS}, s{sTAG}")
        q.extend(merge(f, G9[:c.g9_pre]))
        st = [I(f"buffer_store_dwordx2 {vr(CS,2)}, v{vCSS}, {srd(R_SY)}, 0 offen sc1", "vm")] + st
        s = Seq()
        for i in range(16): s.e(f"v_permlane16_swap_b32 v{RE+i}, v{IM+i}")
        cr, ci = RE, IM
        def scale(i): s.e(f"v_mul_f32_dpp v{RE+i}, v44, v{RE+i} row_newbcast:{i} row_mask:0xf bank_mask:0xf", f"v_mul_f32_dpp v{IM+i}, v44, v{IM+i} row_newbcast:{i} row_mask:0xf bank_mask:0xf")
        scale(0); scale(1)
        for i in range(1, 16):
            d = 48 if i & 1 else 46
            s.e(f"v_fma_f32 v{d}, v20, v{cr}, v{RE+i}", f"v_fma_f32 v{d+1}, v20, v{ci}, v{IM+i}")
            if i < 15: scale(i + 1)
            s.e(f"v_fma_f32 v{d}, -v21, v{ci}, v{d}", f"v_fma_f32 v{d+1}, v21, v{cr}, v{d+1}")
            cr, ci = d, d + 1
        q.extend(merge(s, [[x] for x in st] + G9[c.g9_pre:]))
        s = Seq()
        s.e("v_mov_b32 v50, v48", "v_mov_b32 v51, v49", f"v_mov_b32 v62, s{sTAG}", "v_mov_b32 v40, 0",
            "v_permlane32_swap_b32 v48, v50", "v_permlane32_swap_b32 v49, v51",
            "v_mov_b32 v52, v48", "v_mov_b32 v54, v50", "v_mov_b32 v53, v49", "v_mov_b32 v55, v51",
            "v_permlane16_swap_b32 v48, v52", "v_permlane16_swap_b32 v50, v54", "v_permlane16_swap_b32 v49, v53", "v_permlane16_swap_b32 v51, v55", "v_mov_b32 v41, 0")
        self.cmul_acc(s, 50, 22, 48, 50); self.cmul_acc(s, 52, 22, 50, 52); self.cmul_acc(s, 60, 22, 52, 54)
        s.e(f"buffer_store_dwordx4 {vr(60)}, v{vAGS}, {srd(R_SY)}, 0 offen sc1")
        q.extend(s)
        self.stamp(q)
        q.wvm(last[8]); q.e("s_barrier")
        for e in range(32, 32 + D2):
            RD[e] = self.frag_reads(e); q.e(*RD[e])
        cl_ = I(f"buffer_load_dwordx2 {vr(CS,2)}, v{vGC}, {srd(R_SY)}, 0 offen sc1", "vm")
        S1 = []
        for j in range(1, 4):
            S1.append([I(f"v_cmp_eq_u32 vcc, {j}, v32"), I(f"v_cndmask_b32 v40, v40, v{46+2*j}, vcc"), I(f"v_cndmask_b32 v41, v41, v{47+2*j}, vcc")])
        s = Seq()
        for i in range(16):
            s.e(f"v_mul_f32 v46, v31, v{IM+i}", f"v_mul_f32 v{IM+i}, v30, v{IM+i}", f"v_fmac_f32 v{IM+i}, v31, v{RE+i}", f"v_fma_f32 v{RE+i}, v30, v{RE+i}, -v46")
        sS1 = Stream(S1 + groups(s))
        self.fa = I(f"buffer_load_dword v{vFP}, v36, {srd(R_SY)}, 0 offen sc1", "vm")
        W = early + self.w2_dma(1) + self.w2_dma(2)
        W = W[:c.w2_first] + [("nb", c.w2_at2), self.flag_store(0, st[-1]) + [cl_]] + W[c.w2_first:c.w2_first + c.w2_n2] + [("nb", c.w2_at3)] + W[c.w2_first + c.w2_n2:]
        sW2 = Stream(W, every=2)
        for g in S1[:3]: q.e(*g)
        sS1.it = sS1.it[3:]
        sR0 = Stream(self.w2_reads(0), start=c.r0_at)
        self.lb = [I(f"buffer_load_dwordx3 {vr(96+4*t,3)}, v{vLBK}, {srd(R_AG)}, 0 offen offset:{512*t} sc1", "vm") for t in range(8)]
        sLB_ = Stream([[x] for x in self.lb], start=c.lb_at)
        r5 = self.w2_reads(5)
        _, B, self.ssm_last = self.ssm_part2()
        sR0.it += r5
        if c.b_at < 64: sR0.dl = c.b_at - 1; sS1.dl = c.b_at - 1
        sB2 = Stream(B[:-1], start=c.b_at); self.hst = B[-1]
        K9 = 16 - D2
        for n in range(32, 64):
            k = n - 32
            b = self.fb(n)
            if k == K9:
                q.wds_all(); q.wvm(last[9]); q.e("s_barrier")
            nxt = RD[n + D2] = self.frag_reads(n + D2)
            for t in range(2):
                d = ACC_F2 + 16 * t
                q.wds(RD[n][-1])
                q.e(f"{MF} {vr(d,16)}, {vr(b+4)}, {ar(8*k+4*t)}, {'0' if k == 0 else vr(d,16)}")
                q.e(*nxt[t:t+1])
                fill_gap(q, 2 * k + t, 1.25, c.cap2, [sLB_, sW2, sS1, sR0, sB2])
                if k == 30 and t == 0: q.extend(self.check("c2", [cl_], self.tags([CS])))
                if k == 30 and t == 1: self.split3(q, CS + 1, 222)
        for t in range(2): q.e(f"{MF8} {vr(ACC_F2+16*t,16)}, {vr(222,2)}, {vr(MFR+2*t,2)}, {vr(ACC_F2+16*t,16)}")
        self.stamp(q)
        self.left = (sW2.rest(), sS1.rest(), sR0.rest(), sLB_.rest(), sB2.rest())

    def ssm_part2(self):
        RE, IM = ACC_S, ACC_S + 16
        LB = 96
        lb = self.lb
        test = []
        for t in range(8):
            test += [f"v_cmp_eq_u32 vcc, s{sTAG}, v{LB+4*t+2}", f"s_bcnt1_i32_b64 s{sT0 if t == 0 else sT1}, vcc"]
            if t: test.append(f"s_add_u32 s{sT0}, s{sT0}, s{sT1}")
        test.append(f"s_cmp_lg_u32 s{sT0}, s{sNV}")
        B = [self.check("lb", lb, test)]
        q = Seq()
        self.stamp(q)
        for t in range(6, -1, -1): self.cmul_acc(q, LB + 4 * t, 24, LB + 4 * (t + 1), LB + 4 * t)
        self.cmul(q, 62, 28, LB)
        for sw in ("16", "32"):
            q.e("v_mov_b32 v60, v62", "v_mov_b32 v61, v63", f"v_permlane{sw}_swap_b32 v60, v62", f"v_permlane{sw}_swap_b32 v61, v63",
                "v_add_f32 v62, v60, v62", "v_add_f32 v63, v61, v63")
        self.cmul_acc(q, 60, 26, 62, 40)
        self.cmul(q, 62, 30, 60)
        self.nB1 = len(groups(q)) + 1
        pr, pi_ = 62, 63
        for i in range(16):
            q.e(f"v_fma_f32 v{RE+i}, v20, v{pr}, v{RE+i}", f"v_fma_f32 v{IM+i}, v20, v{pi_}, v{IM+i}",
                f"v_fma_f32 v{RE+i}, -v21, v{pi_}, v{RE+i}", f"v_fma_f32 v{IM+i}, v21, v{pr}, v{IM+i}")
            pr, pi_ = RE + i, IM + i
            if i & 1:
                j = i >> 1
                q.e(f"v_cvt_pk_bf16_f32 v{44+j}, v{RE+2*j}, v{RE+2*j+1}", f"v_cvt_pk_bf16_f32 v{52+j}, -v{IM+2*j}, -v{IM+2*j+1}")
            if i == 7:
                q.wds(self.w2_rd[5])
                q.e(f"ds_write_b128 v{vTW}, {vr(44)}", f"ds_write_b128 v{vTW}, {vr(52)} offset:2048")
        q.e(f"ds_write_b128 v{vTW+1}, {vr(48)}", f"ds_write_b128 v{vTW+1}, {vr(56)} offset:2048")
        q.e(f"v_xor_b32 v61, {512|32}, v{vTD}", f"v_xor_b32 v62, 64, v{vTD}", "v_xor_b32 v63, 64, v61", f"s_movk_i32 s{sT1}, 8192")
        ad = {(0, 0): vTD, (0, 1): 61, (1, 0): 62, (1, 1): 63}
        for part in range(2):
            for mu in range(2):
                for e in range(2):
                    tr = q.e(f"ds_read_b64_tr_b16 {vr(64 + 8*part + 4*mu + 2*e,2)}, v{ad[mu, e]} offset:{2048*part}")
        B += groups(q)
        st = [I(f"buffer_store_dwordx4 {vr(64+8*part+4*mu)}, v{vHS}, {srd(R_SY)}, {('0', f's{sT1}')[part]} offen offset:{1024*mu} sc1", "vm") for part in range(2) for mu in range(2)]
        w = Seq(); w.wds(tr)
        B.append(list(w) + st)
        return lb, B, st[-1]

    def base_stream(self):
        f = Seq()
        T = 88; D = 20
        f.wvm(self.xl[-1])
        f.e(f"v_lshlrev_b32 v{D}, 16, v38", f"v_and_b32 v{D+1}, 0xffff0000, v38", f"v_lshlrev_b32 v{D+2}, 16, v39", f"v_and_b32 v{D+3}, 0xffff0000, v39")
        for ii in range(4):
            b = BASE + 4 * ii; r = 24 + 2 * ii
            f.e(f"v_lshlrev_b32 v{b+2}, 16, v{b+1}", f"v_and_b32 v{b+3}, 0xffff0000, v{b+1}", f"v_and_b32 v{b+1}, 0xffff0000, v{b}", f"v_lshlrev_b32 v{b}, 16, v{b}",
                f"v_lshlrev_b32 v{r+1}, 16, v{r+1}")
            for e in range(4): f.e(f"v_add_f32 v{T+e}, v{b+e}, v{r+1}")
            def rnd():
                f.e(f"v_cvt_pk_bf16_f32 v{T+4}, v{T}, v{T+1}", f"v_cvt_pk_bf16_f32 v{T+5}, v{T+2}, v{T+3}",
                    f"v_lshlrev_b32 v{T}, 16, v{T+4}", f"v_and_b32 v{T+1}, 0xffff0000, v{T+4}", f"v_lshlrev_b32 v{T+2}, 16, v{T+5}", f"v_and_b32 v{T+3}, 0xffff0000, v{T+5}")
            rnd()
            for e in range(4): f.e(f"v_mul_f32 v{T+e}, v{T+e}, v{r}")
            rnd()
            for e in range(4): f.e(f"v_mul_f32 v{T+e}, v{T+e}, v{D+e}")
            rnd()
            for e in range(4): f.e(f"v_add_f32 v{b+e}, v{b+e}, v{T+e}")
        return groups(f)

    def phase2(self, q):
        c = self.c
        NR = c.nring; ak = c.akept; NT = c.ntail; LEAD = c.lead
        assert ak % 2 == 0 and ak <= 8 and NR >= LEAD + NT - 1 and NR <= 10
        wl, sl, rl, ll, B = self.left
        ssm_last = self.ssm_last
        for g in sl + rl: q.e(*g)
        f, st2 = self.ffn_epi(ACC_F2, vHF2)
        q.extend(merge(f, [[self.fa]] + ll + wl[:c.left_pre]))
        wl = wl[c.left_pre:]
        q.e(*st2)
        self.stamp(q)
        k = max(len(B) - c.b_tail, 0)
        for g in B[:k]: q.e(*g)
        B = B[k:] + [self.hst]
        q.extend(self.check("fa", [self.fa], self.tags([vFP], 0xff)))
        self.stamp(q)
        ACC = (96, 160)
        steps = [(0, j) for j in range(8)] + [(1, j) for j in range(ak)] + [(0, j) for j in range(8, 22)] + [(1, j) for j in range(ak, 22)]
        firstB = 8 + ak; sent_done = firstB + 13
        ld = {}
        def issue(n):
            ps, j = steps[n]
            a = 176 + 8 * (n % NR)
            blk = (sB0, sB1)[ps]
            g = []
            if j % 2 == 0:
                if j < 14:
                    pc = (0, 1, 2, 5)[j // 4]
                    if j % 4 == 2 and steps[n-1] == (ps, j - 1): g.append(I(f"s_add_u32 s{sKW}, s{sKW}, 4096"))
                    else:
                        g.append(I(f"s_add_u32 s{sKW}, s{blk}, s{UO[pc]}"))
                        if j % 4: g.append(I(f"s_add_u32 s{sKW}, s{sKW}, 4096"))
                elif j == 14: g.append(I(f"s_add_u32 s{sKW}, s{blk}, s{sHS}"))
                else: g.append(I(f"s_add_u32 s{sKW}, s{sKW}, 4096"))
            o = 2048 * (j % 2)
            ld[n, 0] = I(f"buffer_load_dwordx4 {ar(a)}, v33, {srd(R_SY)}, s{sKW} offen offset:{o} sc1", "vm")
            ld[n, 1] = I(f"buffer_load_dwordx4 {ar(a+4)}, v33, {srd(R_SY)}, s{sKW} offen offset:{o+1024} sc1", "vm")
            return [g + [ld[n, 0]], [ld[n, 1]]]
        order = []
        n = 0
        while n < 44:
            if n in (sent_done + 1 - NT, 44 - NT):
                for k in range(4): order += [(m, k) for m in range(n, n + NT)]
                n += NT
            else:
                order += [(n, k) for k in range(4)]; n += 1
        pos = {e: i for i, e in enumerate(order)}
        L0 = c.lead0
        f = Seq()
        for g in B[:-1]: f.e(*g)
        q.extend(merge(f, [g for n in range(L0) for g in issue(n)]))
        q.e(*B[-1])
        fs = I(f"buffer_load_dword v{vFP}, v36, {srd(R_SY)}, 0 offen offset:128 sc1", "vm")
        st = Seq(); self.stamp(st)
        gate = 4 * firstB - c.gate_lead
        L = []
        for n in range(L0, 44):
            nb = max(4 * (n - LEAD), 0)
            if n >= NR: nb = max(nb, max(pos[n - NR, k] for k in range(4)))
            if n >= firstB: nb = max(nb, gate)
            if firstB < n < firstB + c.burst:
                assert nb <= gate
                L[-1] += [x for g in issue(n) for x in g]; continue
            L.append(("nb", nb))
            if n == firstB: L.append(self.check("fs", [fs], self.tags([vFP], 0xffff)) + list(st) + [x for g in issue(n) for x in g])
            else: L += issue(n)
        sL = Stream(L, every=2)
        P = [("nb", c.flagB_at)] + [self.flag_store(1, ssm_last)] + [("nb", gate - c.fs_lead), [fs]]
        sP = Stream(P, dl=gate - 1)
        self.xl = []
        n1 = sum(1 for g in wl if any(x is self.w2_last[1] for x in g))
        assert n1 == 0, "piece 1 must be issued before phase 2"
        r1 = self.w2_reads(1)
        for g in r1: q.e(*g)
        Wc = [("nb", c.flagB_at + 1)] + wl + self.after_reads(0, self.w2_dma(3)) + self.after_reads(1, self.w2_dma(4)) + self.w2_reads(2)
        for ii in range(4):
            self.xl.append(I(f"buffer_load_dwordx2 {vr(2+4*ii,2)}, v18, {srd(R_X)}, s{sKX} offen", "vm"))
            Wc.append([I(f"s_movk_i32 s{sKX}, {4096*ii}"), self.xl[-1]])
        Wc += self.w2_reads(3) + self.w2_reads(4)
        for ii in range(4):
            self.xl.append(I(f"buffer_load_dwordx2 {vr(24+2*ii,2)}, v34, {srd(R_SY)}, 0 offen offset:{64*ii} sc1", "vm")); Wc.append([self.xl[-1]])
        d_c = gate - 2
        sWc = Stream(Wc, start=1, dl=d_c, every=c.wc_every)
        sB = Stream(self.base_stream(), start=d_c + 4)
        XV = 64; TB = 80
        s = Seq()
        s.e(f"v_mov_b32 v{TB}, s{sTAG}")
        for k in range(1, 4): s.e(f"v_lshrrev_b32 v{TB+k}, {8*k}, v{TB}")
        s.e(f"s_movk_i32 s{sT2}, 0xff")
        s.wds_all(); s.e("s_barrier")
        R0 = [("nb", gate + 24)] + groups(s)
        def tile(k): return (k & 1, k >> 1)
        def red_write(ps, lastn):
            out = []
            for k in range(4):
                nu, mu = tile(k)
                out.append(("nb", pos[lastn, k] + 2))
                for g4 in range(4):
                    out.append([I(f"ds_write_b128 v{vRW+g4}, {vr(ACC[ps] + 32*nu + 16*mu + 4*g4)} offset:{128*nu + 8192*mu}", "ds")])
            return out
        def red_read(s, dst):
            return [s.e(f"ds_read_b128 {vr(dst + 16*ii + 4*src)}, v{vRR} offset:{1024*ii + 16384*src}") for ii in range(4) for src in range(4)]
        s = Seq()
        s.wds_all(); s.e("s_barrier")
        R = red_read(s, 96)
        for g4 in range(4): s.e(f"v_add_u32 v{vRW+g4}, 0x10000, v{vRW+g4}")
        Ga = groups(s); s = Seq()
        for ii in range(4):
            s.wds(R[4 * ii + 3])
            for e in range(4):
                d = XV + 4 * ii + e; s0 = 96 + 16 * ii + e
                s.e(f"v_add_f32 v{s0}, v{s0}, v{s0+4}", f"v_add_f32 v{d}, v{s0+8}, v{s0+12}", f"v_add_f32 v{d}, v{d}, v{s0}",
                    f"v_bfi_b32 v{d}, s{sT2}, v{TB+e}, v{d}")
        s.e(f"v_add_u32 v{vRR}, 0x10000, v{vRR}")
        Gb = groups(s)
        s = Seq()
        for k in range(4): s.e(f"buffer_store_dwordx4 {vr(XV+4*k)}, v{vXS}, {srd(R_SY)}, 0 offen offset:{1024*k} sc1")
        self.stamp(s)
        e0 = 4 * (sent_done + 1)
        XR = 40
        xl = [I(f"buffer_load_dwordx4 {vr(XR+4*k)}, v{vXR}, {srd(R_SY)}, 0 offen offset:{1024*k} sc1", "vm") for k in range(4)]
        sR = Stream(R0 + red_write(0, sent_done) + [("nb", e0 + c.bar_lag)] + Ga + [("nb", e0 + c.bar_lag + 8)] + Gb + [("nb", 4 * c.send_at)] + [list(s)]
                    + red_write(1, 43), wev=c.wev)
        sX = Stream([[x] for x in xl], start=c.xl_at, every=2)
        q.wds(self.w2_rd[1])
        emitted = set(id(x) for x in q)
        for gi, (n, k) in enumerate(order):
            ps, j = steps[n]; nu, mu = tile(k)
            a = 176 + 8 * (n % NR); d = ACC[ps] + 32 * nu + 16 * mu
            while not any(ld[n, mu] is x for x in q[-400:]):
                g = sL.it.pop(0)
                if not isinstance(g, tuple): q.e(*g)
            q.wvm(ld[n, mu])
            if n == firstB: q.wds(self.w2_rd[2])
            if n == firstB + 6: q.wds(self.w2_rd[4])
            if k == 0 and n in c.p2stamps: self.stamp(q)
            q.e(f"v_mfma_f32_32x32x16_bf16 {vr(d,16)}, {ar(8*j+4*nu)}, {ar(a+4*mu)}, {'0' if j == 0 else vr(d,16)}")
            fill_gap(q, gi, 0.5, c.cap3, [sP, sWc, sL, sR, sX, sB])
        self.stamp(q)
        flush(q, [sR, sX, sB])
        q.wds_all(); q.e("s_barrier")
        R = red_read(q, 96)
        pre = [f"s_mov_b32 s{sT0}, 0x0c0c0400", f"s_mov_b32 s{sT1}, 0x05040100"]
        for k in range(4):
            r = XR + 4 * k
            pre += [f"v_perm_b32 v60, v{r+1}, v{r}, s{sT0}", f"v_perm_b32 v61, v{r+3}, v{r+2}, s{sT0}", f"v_perm_b32 v{56+k}, v61, v60, s{sT1}"]
        for ii in range(4):
            q.wds(R[4 * ii + 3])
            s0 = 96 + 16 * ii
            for e in range(2):
                q.e(f"v_pk_add_f32 {vr(s0+2*e,2)}, {vr(s0+2*e,2)}, {vr(s0+4+2*e,2)}", f"v_pk_add_f32 {vr(s0+8+2*e,2)}, {vr(s0+8+2*e,2)}, {vr(s0+12+2*e,2)}")
            for e in range(2): q.e(f"v_pk_add_f32 {vr(s0+2*e,2)}, {vr(s0+2*e,2)}, {vr(BASE+4*ii+2*e,2)}")
            for e in range(2): q.e(f"v_pk_add_f32 {vr(s0+2*e,2)}, {vr(s0+2*e,2)}, {vr(s0+8+2*e,2)}")
        q.extend(self.check("xc", xl, pre + self.tags([56 + k for k in range(4)])))
        self.stamp(q)
        for ii in range(4):
            s0 = 96 + 16 * ii
            for e in range(2): q.e(f"v_pk_add_f32 {vr(s0+2*e,2)}, {vr(s0+2*e,2)}, {vr(XR+4*ii+2*e,2)}")
            q.e(f"s_movk_i32 s{sT0}, {8192*ii}")
            q.e(f"buffer_store_dwordx4 {vr(s0)}, v19, {srd(R_OUT)}, s{sT0} offen {c.ost}")
        q.e(f"s_lshl_b32 s{sT0}, s{sG}, 2", f"s_or_b32 s{sT0}, s{sT0}, s{sW}", f"s_lshl_b32 s{sT0}, s{sT0}, 4", f"s_or_b32 s{sT0}, s{sT0}, s{sC}",
            f"s_cmp_eq_u32 s{sT0}, 15", "s_cbranch_scc0 L_nobump", "v_mov_b32 v57, 0", "s_mov_b64 exec, 1")
        q.e(f"buffer_store_dword v251, v57, {srd(R_SY)}, 0 offen sc1")
        q.e("s_mov_b64 exec, -1")
        q.label("L_nobump")

    def write_ts(self, q):
        if not self.c.ts: return
        q.wds_all(); q.wvm_all()
        q.e("s_memtime s[46:47]", "s_memrealtime s[92:93]"); q.wds_all()
        q.e(f"s_lshl_b32 s{sT0}, s2, 2", f"s_add_u32 s{sT0}, s{sT0}, s{sW}", f"s_lshl_b32 s{sT0}, s{sT0}, 6", f"s_add_u32 s{sT0}, s{sT0}, {WS_TS}", "v_mov_b32 v2, 0")
        q.e("s_mov_b64 exec, 1")
        def put(k): q.e(f"buffer_store_dword v3, v2, {srd(R_SY)}, s{sT0} offen offset:{4*k}")
        for k in range(self.nts + 2):
            if k == 0: q.e("v_mov_b32 v3, v255")
            elif k == self.nts + 1: q.e("s_sub_u32 s46, s46, s42", "v_mov_b32 v3, s46")
            else:
                r = TSREG[k - 1]; q.e(f"s_sub_u32 s{r}, s{r}, s42", f"v_mov_b32 v3, s{r}")
            put(k)
        q.e("v_mov_b32 v3, s92"); put(15)
        q.wvm_all()

    def add_prof(self, q):
        lo, step = self.c.prof
        out = Seq(); unsafe = False; started = False; acc = 0; n = 0; idx = 0; nm = 0
        NP = len(TSREG)
        self.prof_pts = []
        for ins in q:
            t = ins.t
            if started and not unsafe and n < 64 and idx >= lo and acc >= step and ins.kind not in WAITK and not t.startswith(("s_cbranch", "s_branch", "s_cselect", "s_addc")) and ins.kind != "label":
                r = TSREG[n % NP]
                if n >= NP: out.e(f"v_writelane_b32 v0, s{r}, {n - NP}")
                out.e(f"s_memtime s[{r}:{r+1}]"); self.prof_pts.append((idx, nm, t[:50])); n += 1; acc = 0
            out.append(ins)
            if t == "s_barrier": started = True
            if started and ins.kind != "label":
                idx += 1; acc += 1
                if t.startswith("v_mfma"): nm += 1
            if t.startswith("s_cbranch"): unsafe = started
            if ins.kind == "label" and (t.endswith("_ok:") or t.startswith("L_nobump")): unsafe = False
        out.wds_all()
        for k in range(max(0, n - NP), n): out.e(f"v_writelane_b32 v0, s{TSREG[k % NP]}, {k}")
        out.e(f"s_lshl_b32 s{sT0}, s2, 2", f"s_add_u32 s{sT0}, s{sT0}, s{sW}", f"s_lshl_b32 s{sT0}, s{sT0}, 8", f"s_add_u32 s{sT0}, s{sT0}, {WS_TS + 65536}",
              "v_subrev_u32 v0, s42, v0", f"v_lshlrev_b32 v2, 2, v{vL}")
        out.e(f"buffer_store_dword v0, v2, {srd(R_SY)}, s{sT0} offen")
        return out

    def build(self):
        q = Seq()
        q.label("L_start")
        last = self.prologue(q)
        self.phase1(q, last)
        self.phase2(q)
        if self.c.prof: q = self.add_prof(q)
        self.write_ts(q)
        q.label("L_end")
        q.e("s_endpgm")
        q.extend(self.ool)
        return finalize(q)

HDR = """; @launch grid=(256,1,1) block=(256,1,1) lds=163840
.amdgcn_target "amdgcn-amd-amdhsa--gfx950"
.text
.globl {n}_kernel
.p2align 8
.type {n}_kernel,@function
{n}_kernel:
"""
TAIL = """
.section .rodata,"a"
.p2align 6
.amdhsa_kernel {n}_kernel
  .amdhsa_next_free_vgpr 512
  .amdhsa_next_free_sgpr 102
  .amdhsa_accum_offset 256
  .amdhsa_group_segment_fixed_size 0
  .amdhsa_kernarg_size 120
  .amdhsa_user_sgpr_count 2
  .amdhsa_user_sgpr_kernarg_segment_ptr 1
  .amdhsa_system_sgpr_workgroup_id_x 1
.end_amdhsa_kernel
"""
def generate(cfg):
    g = Gen(cfg)
    body = g.build()
    return HDR.format(n=NAME) + "\n".join(("" if l.endswith(":") else "    ") + l for l in body) + TAIL.format(n=NAME), g

if __name__ == "__main__":
    cfg = Cfg()
    for a in sys.argv[2:]:
        k, v = a.split("=", 1); assert hasattr(cfg, k), k; setattr(cfg, k, eval(v))
    txt, g = generate(cfg)
    open(sys.argv[1], "w").write(txt)
```

```python
import sys, struct
from asmlib import *

NAME = "parallel_sum__ssm_conv_s5__dense_activation_relu__prompt"
def f2u(x): return struct.unpack("<I", struct.pack("<f", x))[0]
def fh(x): return hex(f2u(x))

WS_CS   = 262144
WS_FLAG = 524288
WS_STAT = 786432
WS_AGG  = 1 << 20
WS_XCH  = 2 << 20
WS_TS   = (7 << 20) + (1 << 19)
WS_H    = 8 << 20
HBLK = 88 * 2048
WS_END = WS_H + 64 * HBLK
TAGK = 0x9E3779B9
OOB = 0x40000000

sCO, sW, sWM, sWN, sC, sG, sGL, sU0, sORD, sXB, sT0, sT1, sT2 = 3, 4, 5, 6, 7, 8, 9, 10, 11, 12, 13, 14, 15
P_X, P_LRE, P_LIM, P_BRE, P_BIM, P_CRE, P_CIM, P_LDT = 16, 18, 20, 22, 24, 26, 28, 30
P_DSK, P_W1, P_W2, P_OUT, P_WS = 32, 36, 38, 40, 44
sU1, sK4 = 34, 35
sM = 46
R_X, R_BS, R_W1A, R_W1B, R_W2, R_CRE, R_CIM, R_OUT, R_SY = 48, 52, 56, 60, 72, 76, 80, 84, 88
R_AG = R_BS
sB0, sB1, sHS, sNV = 64, 65, 66, 67
sUO = 32
UO = {0: 32, 1: 33, 2: 100, 5: 101}
sKX, sKW, sLB, sONES, sTAG, sPOLL, sLE, sW2O = 92, 93, 94, 95, 96, 97, 98, 99
TSREG = [16, 18, 20, 22, 24, 26, 28, 30, 36, 38, 40, 68]
def srd(r): return f"s[{r}:{r+3}]"

vL = 1
BASE = 2
ACC_S, ACC_F1, ACC_F2 = 64, 96, 128
FR = 160
RA, RS, RF = 176, 180, 184
vX, vB, vW = 200, 204, 206
vSTS, vCSS, vGS, vGC, vPF, vAGS, vHF1, vHF2, vGR = 208, 209, 210, 211, 214, 215, 216, 217, 218
CS = 220
vW2, vC2, vTR, vCR, vTA, vLBK, vFP, vHS, vFL, vXS, vXR, vRW, vRR, vTW, vTD = 224, 228, 232, 233, 234, 238, 239, 242, 243, 244, 245, 246, 250, 252, 254
def vr(a, n=4): return f"v[{a}:{a+n-1}]"
def ar(a, n=4): return f"a[{a}:{a+n-1}]"

SLOT = 32768; WBLK = 8192
L_SP = 98304; SPW = 14336
L_CS = 155648

class Cfg:
    ts = False; ts_stages = (); ts_max = 12; ts_min = 0; prof = None; p2stamps = ()
    order = "xa"
    pf_from = 22; pf_n = 28; pf_step = 12
    early_from = 9; early_n = 2
    cap1 = 5.5; cap2 = 5.5; cap3 = 5
    stat_at = 2; gather_at = 86; check_at = 108
    w2_first = 8; w2_at2 = 28; w2_n2 = 8; w2_at3 = 44; lb_at = 58; left_pre = 4; g9_pre = 4; r0_at = 30; b_at = 64; b_tail = 100
    akept = 8; nring = 10; lead = 6; ntail = 4
    lead0 = 4; flagB_at = 15; fs_lead = 8; gate_lead = 4; wc_every = 2; burst = 5
    bar_lag = 14; send_at = 0; xl_at = 164; wev = 1
    poll_sleep = 1
    spin_to = 0
    ost = ''

def mk_srd(q, r, p, size):
    q.e(f"s_mov_b32 s{r}, s{p}", f"s_and_b32 s{r+1}, s{p+1}, 0xffff", f"s_mov_b32 s{r+2}, {size}", f"s_mov_b32 s{r+3}, 0x20000")

WAITK = ("wvm", "wds", "wvm0", "wds0")
def groups(seq):
    G = []; cur = []
    for ins in seq:
        cur.append(ins)
        if ins.kind not in WAITK and not ins.t.startswith(("v_cmp", "s_cmp")):
            G.append(cur); cur = []
    if cur: G.append(cur)
    return G
def cost(g):
    c = 0
    for i in g:
        if i.kind == "label": continue
        if i.kind in WAITK: c += 0.5
        elif i.t.startswith(TRANS): c += 2
        elif i.t.startswith("ds_write_b128"): c += 3
        else: c += 1
    return c

class Stream:
    def __init__(self, items, start=0, dl=None, every=1, wev=1):
        self.it = list(items); self.nb = start; self.dl = dl; self.every = every; self.wev = wev
    def ready(self, gap):
        while self.it and isinstance(self.it[0], tuple):
            self.nb = max(self.nb, self.it.pop(0)[1])
        return bool(self.it) and gap >= self.nb
    def pop(self, gap):
        g = self.it.pop(0)
        if self.every > 1 and any(i.kind == "vm" for i in g): self.nb = gap + self.every
        if any(i.t.startswith("ds_write_b128") for i in g): self.nb = gap + self.wev
        return g
    def rest(self):
        r = [g for g in self.it if not isinstance(g, tuple)]; self.it = []; return r

def fill_gap(q, gap, used, cap, streams):
    for s in streams:
        if s.dl is not None and gap >= s.dl:
            for g in s.rest(): q.e(*g); used += cost(g)
    for s in streams:
        while s.ready(gap) and (used + cost(s.it[0]) <= cap or (used <= cap - 2 and cost(s.it[0]) > 3)):
            g = s.pop(gap); q.e(*g); used += cost(g)
def flush(q, streams):
    for s in streams:
        for g in s.rest(): q.e(*g)

def pack_order(o): return sum(v << (4 * k) for k, v in enumerate(o))
def hyb(xa):
    first = [0, (1 + 2 * xa), (2 + 2 * xa) & 7 or 1]
    rest = [v for v in [(3 + 2 * xa + k) & 7 for k in range(8)] if v not in first]
    return first + rest
ORDERS = {"xa": [[(i + 2 * xa) & 7 for i in range(8)] for xa in range(4)],
          "none": [list(range(8))] * 4,
          "two": [[(i + 4 * (xa & 1)) & 7 for i in range(8)] for xa in range(4)],
          "hyb": [hyb(xa) for xa in range(4)]}

class Gen:
    def __init__(self, cfg):
        self.c = cfg; self.nts = 0; self.nreq = 0; self.w2_last = {}; self.w2_rd = {}; self.ool = Seq()
    def stamp(self, q):
        self.nreq += 1
        if self.c.ts and self.nts < self.c.ts_max and self.nreq > self.c.ts_min:
            r = TSREG[self.nts]
            q.e(f"s_memtime s[{r}:{r+1}]"); self.nts += 1

    def stage_dma(self, i):
        base = (i % 3) * SLOT
        def ld(v, r, so, off): return I(f"buffer_load_dwordx4 v{v}, {srd(r)}, s{so} offen offset:{off} lds", "vm")
        def m0(o): return I(f"s_add_u32 m0, s{sLB}, {base + o}")
        def st(k): return I(f"s_bfe_u32 s{sKW}, s{sORD}, {(3 << 16) | (4 * k)}")
        mul = lambda: I(f"s_mul_i32 s{sKW}, s{sKW}, {64*3584}")
        G = []
        if i < 8:
            G.append([m0(0), st(i), I(f"s_lshl_b32 s{sKX}, s{sKW}, 7"), ld(vX, R_X, sKX, 0)])
            for j in range(1, 4): G.append([ld(vX + j, R_X, sKX, 1024 * j)])
            G.append([m0(4096), mul(), ld(vB, R_BS, sKX, 0)]); G.append([ld(vB + 1, R_BS, sKX, 1024)])
            G.append([m0(6144), ld(vW, R_W1A, sKW, 0)]); G.append([ld(vW + 1, R_W1A, sKW, 1024)])
        else:
            for t in range(4):
                G.append([m0(2048 * t), st(4 * (i - 8) + t), mul(), ld(vW, R_W1B, sKW, 0)])
                G.append([ld(vW + 1, R_W1B, sKW, 1024)])
        return G, G[-1][-1]

    def fb(self, n): return ACC_F2 + 8 * (n & 3) if n < 32 else FR - 4 + 4 * (n & 3)
    def frag_reads(self, n):
        b = self.fb(n)
        if n < 32:
            i, p = divmod(n, 4); slot = i % 3
            hi = 12 if slot == 2 else 0; o = SLOT if slot == 1 else 0
            S = I(f"ds_read_b128 {vr(b)}, v{RS+hi+p} offset:{o}", "ds")
            A0 = I(f"ds_read_b128 {ar(8*n)}, v{RA+hi+p} offset:{o}", "ds")
            A1 = I(f"ds_read_b128 {ar(8*n+4)}, v{RA+hi+p} offset:{o+WBLK}", "ds")
            F = [I(f"ds_read_b64_tr_b16 {vr(b+4+2*k, 2)}, v{RF+hi+p} offset:{o + 6144 + k*512}", "ds") for k in range(2)]
            return [S, A0, A1] + F
        if n >= 64: return []
        i, p = divmod(n - 32, 4)
        hi = 12 if i < 4 else 0
        return [I(f"ds_read_b64_tr_b16 {vr(b+4+2*k, 2)}, v{RF+hi+p} offset:{2048*(i&3) + k*512}", "ds") for k in range(2)]

    def prologue(self, q):
        c = self.c
        q.e("s_cmp_ge_u32 s2, 256", "s_cbranch_scc1 L_end")
        q.e("s_load_dwordx16 s[16:31], s[0:1], 0", "s_load_dwordx4 s[36:39], s[0:1], 80", "s_load_dwordx2 s[44:45], s[0:1], 112",
            "s_load_dwordx2 s[32:33], s[0:1], 64", "s_load_dwordx2 s[40:41], s[0:1], 96")
        q.e("s_getpc_b64 s[64:65]", "L_pc:", "s_and_b32 s3, s2, 0xf8", "s_lshl_b32 s3, s3, 7", "v_lshlrev_b32 v9, 2, v0", "v_add_u32 v9, s3, v9",
            "v_min_u32 v9, L_end-L_pc, v9")
        q.e("global_load_dword v10, v9, s[64:65]")
        if c.ts: q.e("s_memtime s[42:43]", "s_memrealtime s[46:47]")
        if c.spin_to: q.e("s_memrealtime s[42:43]")
        q.e(f"v_and_b32 v{vL}, 63, v0", "v_lshrrev_b32 v2, 6, v0", f"v_readfirstlane_b32 s{sW}, v2")
        O = [pack_order(o) for o in ORDERS[c.order]]
        q.e("s_bitcmp1_b32 s2, 1", f"s_mov_b32 s{sT0}, {O[0]:#x}", f"s_cmov_b32 s{sT0}, {O[1]:#x}", f"s_mov_b32 s{sORD}, {O[2]:#x}", f"s_cmov_b32 s{sORD}, {O[3]:#x}",
            "s_bitcmp0_b32 s2, 2", f"s_cmov_b32 s{sORD}, s{sT0}")
        q.e(f"s_and_b32 s{sXB}, s2, 1", f"s_and_b32 s{sT0}, s2, 6", f"s_lshr_b32 s{sT2}, s2, 6",
            f"s_lshl1_add_u32 s{sC}, s{sT0}, s{sT2}", f"s_bfe_u32 s{sGL}, s2, 0x30003", f"s_lshl3_add_u32 s{sG}, s{sXB}, s{sGL}")
        q.e(f"s_and_b32 s{sT2}, s{sT2}, 1", f"s_lshl1_add_u32 s{sT0}, s{sGL}, s{sT2}", f"s_add_u32 s{sT1}, s{sGL}, 6",
            f"s_cmp_lt_u32 s{sGL}, 6", f"s_cselect_b32 s{sU0}, s{sT0}, s{sT1}", f"s_cselect_b32 s{R_W1B+2}, {512*3584}, 0", f"s_xor_b32 s{sU1}, s{sU0}, 1",
            f"s_lshr_b32 s{sWM}, s{sW}, 1", f"s_and_b32 s{sWN}, s{sW}, 1", f"s_lshl_b32 s{sLB}, s{sW}, 13")
        q.e(f"v_lshrrev_b32 v2, 3, v{vL}", f"v_and_b32 v3, 7, v{vL}", f"v_lshrrev_b32 v4, 4, v{vL}")
        q.e("v_xor_b32 v5, v3, v4", "v_lshlrev_b32 v5, 4, v5")
        q.e(f"v_lshrrev_b32 v7, 5, v{vL}", "v_and_b32 v8, 3, v2", "v_lshl_add_u32 v7, v7, 4, v8",
            f"s_lshl2_add_u32 s{sT0}, s{sC}, s{sW}", f"s_lshl_b32 s{sT0}, s{sT0}, 5",
            f"v_add_u32 v7, s{sT0}, v7", f"v_lshl_add_u32 v{vX}, v7, 10, v5",
            f"v_xor_b32 v{vX+1}, 64, v{vX}", f"v_add_u32 v{vX+1}, {3072}, v{vX+1}",
            f"v_add_u32 v{vX+2}, {6144}, v{vX}", f"v_add_u32 v{vX+3}, {6144}, v{vX+1}")
        q.e(f"s_lshl1_add_u32 s{sK4}, s{sG}, s{sWN}", f"s_lshl_b32 s{sK4}, s{sK4}, 4",
            f"v_add_u32 v7, s{sK4}, v2", f"v_lshl_add_u32 v{vB}, v7, 10, v5",
            f"v_xor_b32 v{vB+1}, 64, v{vB}", f"v_add_u32 v{vB+1}, {7168}, v{vB+1}")
        q.e(f"s_lshl_b32 s{sT0}, s{sW}, 4", f"v_add_u32 v7, s{sT0}, v2", "v_mul_u32_u24 v7, 3584, v7",
            "v_and_b32 v8, 1, v4", "v_lshlrev_b32 v8, 2, v8", "v_xor_b32 v8, v8, v3", f"v_lshl_add_u32 v{vW}, v8, 4, v7",
            f"v_add_u32 v{vW+1}, {8*3584-1024}, v{vW}",
            f"s_mul_i32 s{sT0}, s{sXB}, 14", f"s_add_u32 s{sT1}, s{sT0}, s{sU1}", f"s_add_u32 s{sT0}, s{sT0}, s{sU0}",
            f"s_lshl_b32 s{sT0}, s{sT0}, 7", f"s_lshl_b32 s{sT1}, s{sT1}, 7",
            f"s_sub_u32 s{R_W1A+2}, {512*3584}, s{sT0}", f"s_max_u32 s{R_W1B+2}, s{R_W1B+2}, s{sT1}", f"s_sub_u32 s{R_W1B+2}, s{R_W1B+2}, s{sT1}")
        for r, size in ((R_X, 2048*1024), (R_BS, 512*1024)): q.e(f"s_mov_b32 s{r+2}, {size}")
        for r in (R_X, R_BS, R_W1A, R_W1B): q.e(f"s_mov_b32 s{r+3}, 0x20000")
        q.e(f"v_lshl_add_u32 v{vC2}, v2, 10, v5", "v_lshlrev_b32 v7, 10, v2", f"v_lshl_add_u32 v{vW2}, v8, 4, v7")
        q.e(f"v_lshlrev_b32 v33, 4, v{vL}", f"v_and_b32 v6, 15, v{vL}", f"v_add_lshl_u32 v11, v6, s{sK4}, 1", "v_mov_b32 v15, 0")
        q.e(f"s_lshl1_add_u32 s{sT2}, s{sC}, s{sWM}", f"s_lshl4_add_u32 s{sT2}, s{sT2}, s{sG}", f"s_lshl1_add_u32 s{sT2}, s{sT2}, s{sWN}",
            f"s_lshl_b32 s{sPOLL}, s{sT2}, 11")
        G0, l0 = self.stage_dma(0)
        q.e(*G0[0][:-1])
        q.wds_all()
        if c.ts: q.e("v_mov_b32 v255, s46")
        q.e(f"s_mov_b32 s{R_X}, s{P_X}", f"s_and_b32 s{R_X+1}, s{P_X+1}, 0xffff")
        q.e(G0[0][-1]); [q.e(*g) for g in G0[1:4]]
        q.e(f"s_cmp_eq_u32 s{sWM}, 0", f"s_cselect_b32 s{R_BS}, s{P_BRE}, s{P_BIM}", f"s_cselect_b32 s{R_BS+1}, s{P_BRE+1}, s{P_BIM+1}", f"s_and_b32 s{R_BS+1}, s{R_BS+1}, 0xffff")
        [q.e(*g) for g in G0[4:6]]
        q.e(f"s_and_b32 s{P_W1+1}, s{P_W1+1}, 0xffff", f"s_add_u32 s{R_W1A}, s{P_W1}, s{sT0}", f"s_addc_u32 s{R_W1A+1}, s{P_W1+1}, 0")
        [q.e(*g) for g in G0[6:8]]
        q.e(f"s_add_u32 s{R_W1B}, s{P_W1}, s{sT1}", f"s_addc_u32 s{R_W1B+1}, s{P_W1+1}, 0")
        last = [l0]
        q.e(f"buffer_load_dwordx4 {vr(40)}, v33, {srd(R_X)}, s{sPOLL} offen", f"buffer_load_dwordx4 {vr(44)}, v33, {srd(R_X)}, s{sPOLL} offen offset:1024")
        self.small0 = q.e(f"global_load_dword v16, v15, s[{P_WS}:{P_WS+1}] sc1")
        q.e(f"global_load_ushort v12, v11, s[{P_LRE}:{P_LRE+1}]", f"global_load_ushort v13, v11, s[{P_LIM}:{P_LIM+1}]")
        self.small = q.e(f"global_load_ushort v14, v11, s[{P_LDT}:{P_LDT+1}]")
        q.e(f"s_lshl_b32 s{sT1}, s{sGL}, 7", f"v_lshl_add_u32 v35, v6, 3, s{sT1}")
        self.dsk = q.e(f"global_load_dwordx2 {vr(38,2)}, v35, s[{P_DSK}:{P_DSK+1}]")
        f = Seq()
        f.e(f"v_and_b32 v2, 31, v{vL}", f"v_lshrrev_b32 v3, 5, v{vL}")
        f.e("v_bfe_u32 v7, v2, 1, 3", "v_xor_b32 v7, v7, v3", "v_lshlrev_b32 v7, 4, v7",
            f"v_lshl_add_u32 v{vCR}, v2, 7, v7",
            f"s_lshl_b32 s{sT1}, s{sWM}, 5", f"v_xor_b32 v7, s{sT1}, v7", f"v_xor_b32 v5, s{sT1}, v{vCR}",
            f"s_lshl_b32 s{sT1}, s{sWM}, 14", f"v_add_u32 v{RA}, s{sT1}, v5")
        f.e("v_lshl_add_u32 v7, v6, 7, v7", "v_and_b32 v8, 16, v2", "v_lshl_add_u32 v7, v8, 10, v7",
            f"s_lshl_b32 s{sT1}, s{sWN}, 13", f"s_add_u32 s{sT1}, s{sT1}, 4096", f"v_add_u32 v{RS}, s{sT1}, v7")
        for p in range(1, 4): f.e(f"v_xor_b32 v{RA+p}, {32*p}, v{RA}", f"v_xor_b32 v{RS+p}, {32*p}, v{RS}")
        f.e("v_lshrrev_b32 v9, 2, v6", "v_lshlrev_b32 v5, 7, v9", "v_and_b32 v7, 3, v6", "v_lshl_add_u32 v5, v7, 3, v5", "v_lshl_add_u32 v5, v8, 1, v5",
            "v_and_b32 v7, 8, v6", "v_lshl_add_u32 v5, v7, 3, v5",
            f"v_lshl_add_u32 v{vTR}, v3, 9, v5",
            "v_lshl_add_u32 v5, v3, 10, v5", f"s_lshl_b32 s{sT1}, s{sWN}, 6", f"s_lshl_b32 s{sT0}, s{sWM}, 13", f"s_or_b32 s{sT1}, s{sT1}, s{sT0}",
            f"v_xor_b32 v{RF}, s{sT1}, v5")
        for p in range(1, 4): f.e(f"v_xor_b32 v{RF+p}, {WBLK*p}, v{RF}")
        f.e(f"s_mov_b32 s{sONES}, 0x3f803f80", f"v_mov_b32 v{CS}, 0", f"v_mov_b32 v{CS+1}, 0")
        for k in range(4): f.e(f"v_mov_b32 v{48+k}, 0")
        for k in range(12): f.e(f"v_add_u32 v{RA+12+k}, {2*SLOT}, v{RA+k}")
        mk_srd(f, R_SY, P_WS, WS_END); mk_srd(f, R_W2, P_W2, 1792*1024); mk_srd(f, R_CRE, P_CRE, 512*1024)
        mk_srd(f, R_CIM, P_CIM, 512*1024); mk_srd(f, R_OUT, P_OUT, 2048*2048)
        q.extend(f)
        q.e(f"s_mul_i32 s{sT0}, s2, 56", f"s_mul_i32 s{sT1}, s{sWN}, 28", f"s_add_u32 s{sT0}, s{sT0}, s{sT1}", f"s_lshl_b32 s{sT1}, s2, 4", f"s_min_u32 s{sT1}, s{sT1}, {4096-28}",
            f"s_cmp_eq_u32 s{sWN}, 0", f"s_cselect_b32 s70, s{P_CRE}, s{P_CIM}", f"s_cselect_b32 s71, s{P_CRE+1}, s{P_CIM+1}",
            f"s_cmp_eq_u32 s{sWM}, 0", f"s_cselect_b32 s{sT0}, s{sT0}, s{sT1}",
            f"s_cselect_b32 s70, s{P_W2}, s70", f"s_cselect_b32 s71, s{P_W2+1}, s71",
            f"v_min_u32 v7, {c.pf_n - 1}, v{vL}", f"v_add_lshl_u32 v{vPF}, v7, s{sT0}, 7")
        f = Seq(); self.consts_early(f)
        G, l = self.stage_dma(1); last.append(l)
        q.extend(merge(f, G))
        return last

    def consts_early(self, f):
        f.e("v_and_b32 v5, 1, v4", "v_lshl_add_u32 v32, v5, 1, v3")
        f.e(f"s_lshl_b32 s{sT2}, s{sT2}, 5", f"s_add_u32 s{sT2}, s{sT2}, {WS_STAT}", f"v_lshl_add_u32 v7, v3, 4, s{sT2}", f"v_lshl_add_u32 v{vSTS}, v2, 25, v7")
        f.e(f"s_lshl1_add_u32 s{sT0}, s{sC}, s{sXB}", f"s_lshl_b32 s{sT1}, s{sT0}, 13", f"s_add_u32 s{sT1}, s{sT1}, {WS_FLAG}",
            f"s_lshl_b32 s{sT2}, s{sW}, 3", f"s_mul_i32 s{sT0}, s{sWM}, 3", f"s_add_u32 s{sT0}, s{sT0}, s{sWN}", f"s_lshl_b32 s{sT0}, s{sT0}, 2", f"s_sub_u32 s{sT0}, s{sT0}, 8",
            f"v_mov_b32 v7, s{sT2}", f"v_mov_b32 v8, s{sT0}", f"v_cmp_gt_u32 vcc, 8, v{vL}", "v_cndmask_b32 v7, v8, v7, vcc",
            f"v_add_u32 v7, v7, v{vL}", f"v_lshl_add_u32 v7, v7, 8, s{sT1}", "v_lshl_add_u32 v36, v4, 28, v7",
            f"s_lshl2_add_u32 s{sT2}, s{sGL}, s{sW}", f"s_lshl_b32 s{sT2}, s{sT2}, 8", f"s_add_u32 s{sT1}, s{sT1}, s{sT2}",
            f"v_lshl_add_u32 v7, v2, 2, s{sT1}", f"v_lshl_add_u32 v{vFL}, v3, 30, v7", f"v_lshl_add_u32 v{vFP}, v3, 7, v7")
        f.e(f"s_lshl4_add_u32 s{sT0}, s{sC}, s{sG}", f"s_lshl1_add_u32 s{sT0}, s{sT0}, s{sWN}", f"s_lshl_b32 s{sT0}, s{sT0}, 9", f"s_add_u32 s{sT0}, s{sT0}, {WS_CS}",
            f"v_lshl_add_u32 v7, v{vL}, 3, s{sT0}", f"v_xor_b32 v{vGC}, 0x4000, v7", f"s_lshl_b32 s{sT2}, s{sWM}, 30", f"v_add_u32 v{vCSS}, s{sT2}, v7")
        f.e(f"s_lshl_b32 s{sT0}, s{sWN}, 8", f"v_lshl_add_u32 v8, v6, 4, s{sT0}",
            f"s_lshl1_add_u32 s{sNV}, s{sC}, s{sWM}", f"s_sub_u32 s{sT0}, 31, s{sNV}", f"s_lshl_b32 s{sT0}, s{sT0}, 9",
            f"s_lshl_b32 s{sT1}, s{sG}, 14", f"s_add_u32 s{sT1}, s{sT1}, {WS_AGG}", f"s_add_u32 s{sT1}, s{sT1}, s{sT0}",
            f"v_add_u32 v7, s{sT1}, v8", f"v_lshl_add_u32 v{vAGS}, v4, 28, v7",
            f"s_add_u32 s{sT0}, s{sT0}, 512", "v_sub_u32 v7, 3, v4", "v_lshl_add_u32 v7, v7, 12, v8", f"v_add_u32 v{vLBK}, s{sT0}, v7",
            f"s_lshl_b32 s{sNV}, s{sNV}, 4")

    def consts_late(self, f):
        f.e(f"v_and_b32 v7, 4, v{vL}", f"v_and_b32 v8, 35, v{vL}", "v_lshl_add_u32 v7, v7, 2, v8", f"v_and_b32 v8, 24, v{vL}", "v_lshrrev_b32 v8, 1, v8",
            "v_add_u32 v37, v7, v8")
        f.e(f"s_lshl1_add_u32 s{sT1}, s{sC}, s{sWM}", f"s_lshl_b32 s{sT1}, s{sT1}, 10", f"s_add_u32 s{sT1}, s{sT1}, {WS_STAT}",
            f"v_lshl_add_u32 v{vGS}, v37, 4, s{sT1}", "v_lshl_add_u32 v7, v32, 4, v6", f"v_lshl_add_u32 v{vGR}, v7, 4, s{sT1}")
        f.e(f"s_lshl_b32 s{sT0}, s{sW}, 9", f"s_add_u32 s{sT0}, s{sT0}, {L_CS}", f"v_lshl_add_u32 v{vGC+1}, v{vL}, 3, s{sT0}", f"v_xor_b32 v{vGC+2}, 1024, v{vGC+1}")
        f.e(f"s_lshl1_add_u32 s{sT0}, s{sC}, s{sXB}", f"s_lshl1_add_u32 s{sT1}, s{sT0}, s{sWM}", f"s_mul_i32 s{sT1}, s{sT1}, {HBLK}", f"s_add_u32 s{sT1}, s{sT1}, {WS_H}",
            f"s_lshl1_add_u32 s{sT0}, s{sT0}, s{sXB}", f"s_mul_i32 s{sB1}, s{sT0}, {HBLK}", f"s_xor_b32 s{sT0}, s{sT0}, 1", f"s_mul_i32 s{sB0}, s{sT0}, {HBLK}",
            f"s_add_u32 s{sB0}, s{sB0}, {WS_H}", f"s_add_u32 s{sB1}, s{sB1}, {WS_H}",
            f"s_lshl_b32 s{sHS}, s{sW}, 14", f"s_add_u32 s{sHS}, s{sHS}, {56*2048}")
        f.e(f"s_lshl_b32 s{sT0}, s{sWN}, 12", f"s_add_u32 s{sT0}, s{sT0}, s{sT1}", f"s_lshl_b32 s{sT2}, s{sU0}, 13", f"s_add_u32 s{sT2}, s{sT2}, s{sT0}",
            f"v_add_u32 v{vHF1}, s{sT2}, v33", f"s_lshl_b32 s{sT2}, s{sU1}, 13", f"s_add_u32 s{sT2}, s{sT2}, s{sT0}",
            f"s_min_u32 s{sT0}, s{R_W1B+2}, 1", f"s_sub_u32 s{sT0}, 1, s{sT0}", f"s_lshl_b32 s{sT0}, s{sT0}, 30", f"s_add_u32 s{sT2}, s{sT2}, s{sT0}",
            f"v_add_u32 v{vHF2}, s{sT2}, v33")
        f.e(f"s_lshr_b32 s{sT0}, s{sGL}, 1", f"s_and_b32 s{sT2}, s{sGL}, 1", f"s_lshl2_add_u32 s{sT0}, s{sT0}, s{sT2}", f"s_lshl1_add_u32 s{sT0}, s{sT0}, s{sWN}",
            f"s_add_u32 s{sT0}, s{sT0}, 56", f"s_lshl_b32 s{sT0}, s{sT0}, 11", f"s_add_u32 s{sT0}, s{sT0}, s{sT1}", f"v_add_u32 v{vHS}, s{sT0}, v33")
        f.e(f"s_and_b32 s{sT2}, s{sC}, 1", f"s_lshl2_add_u32 s{sT0}, s{sW}, s{sT2}", f"s_add_u32 s{sT1}, s{sT0}, 2",
            f"s_min_u32 s{sT0}, s{sT0}, 12", f"s_min_u32 s{sT1}, s{sT1}, 13", f"s_lshl_b32 s{UO[0]}, s{sT0}, 13", f"s_lshl_b32 s{UO[1]}, s{sT1}, 13",
            f"s_xor_b32 s{sT2}, s{sT2}, 1", f"s_mul_i32 s{sT0}, s{sWM}, 6", f"s_add_u32 s{sT0}, s{sT0}, s{sT2}",
            f"s_lshl2_add_u32 s{sT1}, s{sWN}, s{sT0}", f"s_lshl_b32 s{UO[2]}, s{sT1}, 13",
            f"s_add_u32 s{sT0}, s{sT0}, 2", f"s_lshl1_add_u32 s{sT0}, s{sT0}, s{sWN}", f"s_lshl_b32 s{UO[5]}, s{sT0}, 12")
        f.e(f"s_mul_i32 s{sLE}, s{sW}, {SPW}", f"s_add_u32 s{sLE}, s{sLE}, {L_SP}",
            f"s_mul_i32 s{sW2O}, s{sXB}, {896*1024}", f"s_lshl_b32 s{sT1}, s{sGL}, 7", f"s_add_u32 s{sW2O}, s{sW2O}, s{sT1}",
            f"s_lshl2_add_u32 s{sCO}, s{sXB}, s{sW}", f"s_lshl_b32 s{sCO}, s{sCO}, 7", f"s_lshl_b32 s{sT0}, s{sGL}, 16", f"s_add_u32 s{sCO}, s{sCO}, s{sT0}")
        f.e(f"v_xor_b32 v{vC2+1}, 64, v{vC2}", f"v_add_u32 v{vC2+1}, 7168, v{vC2+1}", f"v_add_u32 v{vC2+2}, 14336, v{vC2}", f"v_add_u32 v{vC2+3}, 14336, v{vC2+1}")
        for j in range(1, 4): f.e(f"v_add_u32 v{vW2+j}, {7168*j}, v{vW2}")
        f.e(f"s_lshl1_add_u32 s{sT0}, s{sC}, s{sXB}", f"s_lshl2_add_u32 s{sT0}, s{sT0}, s{sW}", f"s_lshl_b32 s{sT0}, s{sT0}, 4", f"v_add_u32 v7, s{sT0}, v4",
            "v_lshlrev_b32 v34, 4, v7", f"v_add_u32 v34, {WS_STAT}, v34", "v_lshl_add_u32 v18, v7, 10, v35", "v_lshlrev_b32 v19, 1, v18")
        f.e(f"s_lshl4_add_u32 s{sT0}, s{sC}, s{sG}", f"s_lshl2_add_u32 s{sT0}, s{sT0}, s{sW}", f"s_lshl_b32 s{sT0}, s{sT0}, 12", f"s_add_u32 s{sT0}, s{sT0}, {WS_XCH}",
            f"v_add_u32 v{vXS}, s{sT0}, v33", f"v_xor_b32 v{vXR}, 0x20000, v{vXS}")
        f.e("v_and_b32 v7, 7, v2", "v_xor_b32 v7, v7, v3", "v_lshlrev_b32 v7, 4, v7", "v_and_b32 v8, 31, v37", "v_lshl_add_u32 v7, v8, 8, v7",
            f"s_lshl_b32 s{sT0}, s{sW}, 14", f"v_add_u32 v{vRW}, s{sT0}, v7")
        for g4 in range(1, 4): f.e(f"v_xor_b32 v{vRW+g4}, {32*g4}, v{vRW}")
        f.e("v_xor_b32 v7, v6, v4", "v_lshlrev_b32 v7, 4, v7", "v_lshl_add_u32 v7, v4, 8, v7", f"s_lshl_b32 s{sT0}, s{sW}, 12", f"s_lshl_b32 s{sT1}, s{sWN}, 6",
            f"s_or_b32 s{sT0}, s{sT0}, s{sT1}", f"v_xor_b32 v{vRR}, s{sT0}, v7")
        f.e("v_and_b32 v7, 2, v6", "v_and_b32 v8, 1, v6", "v_lshl_add_u32 v7, v7, 1, v8", "v_and_b32 v8, 4, v6", "v_lshrrev_b32 v8, 1, v8", "v_or_b32 v7, v7, v8",
            "v_lshlrev_b32 v8, 1, v32", "v_xor_b32 v7, v7, v8", "v_lshlrev_b32 v7, 4, v7", "v_lshl_add_u32 v7, v6, 7, v7",
            f"s_add_u32 s{sT0}, s{sLE}, 8192", f"v_add_u32 v{vTW}, s{sT0}, v7", f"v_xor_b32 v{vTW+1}, 16, v{vTW}")
        f.e("v_and_b32 v5, 1, v6", "v_and_b32 v8, 16, v2", "v_lshl_add_u32 v5, v5, 5, v8", "v_and_b32 v8, 2, v6", "v_lshl_add_u32 v5, v8, 2, v5")
        f.e("v_and_b32 v7, 2, v9", "v_and_b32 v8, 1, v9", "v_lshl_add_u32 v7, v7, 1, v8", "v_lshlrev_b32 v7, 4, v7", "v_xor_b32 v7, v7, v5",
            "v_lshl_add_u32 v8, v3, 3, v9", "v_lshl_add_u32 v7, v8, 7, v7", f"v_add_u32 v{vTD}, s{sT0}, v7")

    def ssm_consts(self, q):
        q.wvm(self.small)
        q.e("v_lshlrev_b32 v14, 16, v14", "v_lshlrev_b32 v12, 16, v12", f"v_mul_f32 v14, {fh(1.4426950408889634)}, v14", "v_lshlrev_b32 v13, 16, v13",
            "v_exp_f32 v14, v14", "v_lshlrev_b32 v3, 4, v32", "v_cvt_pk_bf16_f32 v14, v14, v14", "v_lshlrev_b32 v14, 16, v14",
            "v_mul_f32 v17, v14, v12", "v_mul_f32 v16, v14, v13",
            f"v_mul_f32 v17, {fh(1.4426950408889634)}, v17", f"v_mul_f32 v16, {fh(0.15915494309189535)}, v16",
            "v_cvt_f32_u32 v3, v3", "v_sub_u32 v4, 3, v4", "v_lshlrev_b32 v4, 9, v4", "v_cvt_f32_u32 v4, v4")
        def cexp(d, n):
            q.e(f"v_mul_f32 v6, {n}, v16", f"v_mul_f32 v5, {n}, v17", "v_fract_f32 v6, v6", "v_exp_f32 v5, v5", f"v_cos_f32 v{d}, v6", f"v_sin_f32 v{d+1}, v6",
                f"v_mul_f32 v{d}, v{d}, v5", f"v_mul_f32 v{d+1}, v{d+1}, v5")
        cexp(20, "1.0"); cexp(22, fh(16.0)); cexp(24, fh(64.0)); cexp(26, "v3"); cexp(28, "v4")
        q.e("v_mul_f32 v6, v12, v12", "v_fmac_f32 v6, v13, v13", "v_rcp_f32 v6, v6", "v_add_f32 v5, -1.0, v20",
            "v_mul_f32 v30, v5, v12", "v_fmac_f32 v30, v21, v13", "v_mul_f32 v31, v21, v12", "v_fma_f32 v31, -v5, v13, v31",
            "v_add_f32 v6, v6, v6", "v_mul_f32 v30, v30, v6", "v_mul_f32 v31, v31, v6")

    def check(self, name, loads, test):
        q = Seq()
        q.wvm(loads[-1])
        q.e(*test)
        q.e(f"s_cbranch_scc1 L_{name}_slow")
        q.label(f"L_{name}_ok")
        o = self.ool
        o.label(f"L_{name}_slow")
        o.e(f"s_mov_b32 s{sPOLL}, 0x40000")
        o.label(f"L_{name}_loop")
        o.e(f"s_sleep {self.c.poll_sleep}")
        for l in loads: o.append(I(l.t, "o"))
        o.e("s_waitcnt vmcnt(0)", f"s_sub_u32 s{sPOLL}, s{sPOLL}, 1", f"s_cbranch_scc1 L_{name}_ok")
        o.e(*test)
        o.e(f"s_cbranch_scc1 L_{name}_loop", f"s_branch L_{name}_ok")
        return list(q)
    def tags(self, regs, lo=False):
        if len(regs) == 1: return [f"v_cmp_ne_u32 vcc, s{sTAG}, v{regs[0]}", f"s_and_b32 s{sM}, vcc_lo, {lo}" if lo else "s_cmp_lg_u64 vcc, 0"]
        t = [f"v_cmp_ne_u32 s[{sM}:{sM+1}], s{sTAG}, v{regs[0]}"]
        for r in regs[1:]: t += [f"v_cmp_ne_u32 vcc, s{sTAG}, v{r}", f"s_or_b64 s[{sM}:{sM+1}], s[{sM}:{sM+1}], vcc"]
        return t

    def cmul_acc(self, q, d, a, b, c, c2=None):
        c2 = c + 1 if c2 is None else c2
        q.e(f"v_fma_f32 v{d}, v{a}, v{b}, v{c}", f"v_fma_f32 v{d+1}, v{a}, v{b+1}, v{c2}",
            f"v_fma_f32 v{d}, -v{a+1}, v{b+1}, v{d}", f"v_fma_f32 v{d+1}, v{a+1}, v{b}, v{d+1}")
    def cmul(self, q, d, a, b):
        q.e(f"v_mul_f32 v{d}, v{a}, v{b}", f"v_mul_f32 v{d+1}, v{a}, v{b+1}",
            f"v_fma_f32 v{d}, -v{a+1}, v{b+1}, v{d}", f"v_fma_f32 v{d+1}, v{a+1}, v{b}, v{d+1}")

    def w2_area(self, pc):
        return {0: (sLE, 0), 5: (sLE, 8192), 1: (sLB, SLOT), 2: (sLB, 2*SLOT), 3: (sLE, 0), 4: (sLB, SLOT)}[pc]
    def w2_dma(self, pc, run=4):
        sb, ao = self.w2_area(pc)
        G = []
        for k in range(4 if pc == 5 else 8):
            g = []; j = k % run
            if pc in UO:
                if j == 0:
                    g += [I(f"s_add_u32 m0, s{sb}, {ao + 1024*k}"), I(f"s_lshl3_add_u32 s{sKX}, s{UO[pc]}, s{sW2O}")]
                    if k: g.append(I(f"s_add_u32 s{sKX}, s{sKX}, {8*k*1024}"))
                g.append(I(f"buffer_load_dwordx4 v{vW2+j}, {srd(R_W2)}, s{sKX} offen offset:{1024*j} lds", "vm"))
            else:
                if j == 0: g += [I(f"s_add_u32 m0, s{sb}, {ao + 1024*k}"), I(f"s_add_u32 s{sKX}, s{sCO}, {8*k*1024}")]
                g.append(I(f"buffer_load_dwordx4 v{vC2+j}, {srd(R_CRE if pc == 3 else R_CIM)}, s{sKX} offen offset:{1024*j} lds", "vm"))
            G.append(g)
        self.w2_last[pc] = G[-1][-1]
        return G
    def w2_reads(self, pc):
        sb, ao = self.w2_area(pc)
        L = Seq()
        if pc in UO:
            L.e(f"v_add_u32 v{vTA}, s{sb}, v{vTR}")
            if ao >= 2 * SLOT: L.e(f"v_add_u32 v{vTA}, {ao}, v{vTA}"); ao = 0
            L.e(f"v_xor_b32 v{vTA+1}, 64, v{vTA}")
            L.wvm(self.w2_last[pc])
            j0 = {0: 0, 1: 4, 2: 8, 5: 12}[pc]
            for k in range(2 if pc == 5 else 4):
                for nu in range(2):
                    for e in range(2):
                        a = 8 * (j0 + k) + 4 * nu + 2 * e
                        r = L.e(f"ds_read_b64_tr_b16 {ar(a,2)}, v{vTA+nu} offset:{ao + 2048*k + 1024*e}")
        else:
            L.e(f"v_add_u32 v{vTA}, s{sb}, v{vCR}")
            for k in range(1, 4): L.e(f"v_xor_b32 v{vTA+k}, {32*k}, v{vTA}")
            L.wvm(self.w2_last[pc])
            j0 = 14 if pc == 3 else 18
            for k in range(4):
                for nu in range(2):
                    r = L.e(f"ds_read_b128 {ar(8*(j0+k)+4*nu)}, v{vTA+k} offset:{ao + 4096*nu}")
        self.w2_rd[pc] = r
        return groups(L)
    def after_reads(self, pc, G):
        w = Seq(); w.wds(self.w2_rd[pc])
        return [list(w) + G[0]] + G[1:]

    def ffn_epi(self, a, voff):
        f = Seq()
        for t in range(2):
            b = a + 16 * t
            for j in range(8): f.e(f"v_pk_mul_f32 {vr(b+2*j,2)}, {vr(b+2*j,2)}, {vr(42,2)} op_sel:[0,{t}] op_sel_hi:[1,{t}]")
            for j in range(8): f.e(f"v_cvt_pk_bf16_f32 v{b+j}, v{b+2*j}, v{b+2*j+1}")
            for j in range(8): f.e(f"v_pk_max_i16 v{b+j}, v{b+j}, 0")
        st = [I(f"buffer_store_dwordx4 {vr(a+16*t+4*al)}, v{voff}, {srd(R_SY)}, 0 offen offset:{2048*al + 1024*t} sc1", "vm") for t in range(2) for al in range(2)]
        return f, st

    def split3(self, s, src, d):
        s.e(f"v_and_b32 v240, 0xffff0000, v{src}", f"v_sub_f32 v240, v{src}, v240",
            f"v_perm_b32 v{d}, v240, v{src}, s{sONES}", "v_and_b32 v241, 0xffff0000, v240", "v_sub_f32 v241, v240, v241",
            f"v_cvt_pk_bf16_f32 v{d+1}, v241, 0")

    def flag_store(self, kind, after):
        q = Seq(); q.wvm(after)
        q.e(f"buffer_store_dword v251, v{vFL}, {srd(R_SY)}, 0 offen offset:{128*kind} sc1")
        return list(q)

    def phase1(self, q, last):
        c = self.c
        RE, IM = ACC_S, ACC_S + 16
        MF8 = "v_mfma_f32_32x32x8_bf16"; MF = "v_mfma_f32_32x32x16_bf16"
        MFR = 200
        q.wvm(last[0]); q.e("s_barrier"); self.stamp(q)
        D = 2; D2 = 3
        RD = {}
        for n in range(D): RD[n] = self.frag_reads(n); q.e(*RD[n])
        G, l = self.stage_dma(2); last.append(l)
        dma = Stream(G, every=1)
        s = Seq()
        s.e(f"v_readfirstlane_b32 s{sTAG}, v16", "v_permlane32_swap_b32 v48, v49", "v_permlane32_swap_b32 v50, v51", f"s_add_u32 s{sTAG}, s{sTAG}, {hex(TAGK)}",
            "v_add_f32 v48, v48, v49", "v_add_f32 v50, v50, v51", f"s_or_b32 s{sTAG}, s{sTAG}, 1", f"v_mov_b32 v54, s{sTAG}",
            "v_permlane16_swap_b32 v48, v50", "v_add_f32 v48, v48, v50", f"v_mov_b32 v251, s{sTAG}")
        for k in (8, 4, 2, 1): s.e(f"v_add_f32_dpp v48, v48, v48 row_ror:{k} row_mask:0xf bank_mask:0xf")
        s.e("v_mov_b32 v49, v48", "v_permlane16_swap_b32 v48, v49",
            f"v_mul_f32 v48, {fh(1/512)}, v48", f"v_mul_f32 v49, {fh(1/512)}, v49", "v_fma_f32 v49, -v48, v48, v49", "v_max_f32 v49, 0, v49",
            "v_cvt_pk_bf16_f32 v49, v49, v49", "v_lshlrev_b32 v49, 16, v49", f"v_add_f32 v49, {fh(1e-5)}, v49",
            "v_cvt_pk_bf16_f32 v49, v49, v49", "v_lshlrev_b32 v49, 16, v49", "v_sqrt_f32 v49, v49",
            "v_cvt_pk_bf16_f32 v53, -v48, -v48",
            "v_cvt_pk_bf16_f32 v49, v49, v49", "v_lshlrev_b32 v49, 16, v49", "v_rcp_f32 v52, v49")
        s.e(f"buffer_store_dwordx4 {vr(52)}, v{vSTS}, {srd(R_SY)}, 0 offen sc1")
        sA = Stream(groups(s), start=4 * (c.stat_at + 1), dl=40)
        s = Seq(); self.consts_late(s); self.ssm_consts(s)
        sC_ = Stream(groups(s), dl=c.gather_at - 1)
        gl_ = [I(f"buffer_load_dwordx3 {vr(40,3)}, v{vGS}, {srd(R_SY)}, 0 offen sc1", "vm"), I(f"buffer_load_dwordx3 {vr(44,3)}, v{vGR}, {srd(R_SY)}, 0 offen sc1", "vm")]
        A = [gl_, ("nb", c.check_at), self.check("ga", gl_, self.tags([42, 46]))]
        s = Seq()
        s.e(f"v_mov_b32 v{MFR}, v41", f"v_mov_b32 v{MFR+2}, v41", "v_mov_b32 v42, v40", "v_mov_b32 v43, v40",
            f"s_lshl_b32 s{sT0}, s{sG}, 14", f"s_add_u32 s{sT0}, s{sT0}, {WS_AGG}",
            f"v_permlane32_swap_b32 v{MFR}, v{MFR+2}", "v_permlane32_swap_b32 v42, v43", f"v_mov_b32 v{MFR+1}, v{MFR}", f"v_mov_b32 v{MFR+3}, v{MFR+2}")
        A += groups(s)
        A.append([I(f"s_add_u32 s{R_AG}, s{R_SY}, s{sT0}"), I(f"s_addc_u32 s{R_AG+1}, s{R_SY+1}, 0"), I(f"s_movk_i32 s{R_AG+2}, 16384")])
        assert c.check_at >= 92
        sG_ = Stream(A, start=c.gather_at, dl=127)
        early = self.w2_dma(0, 2) + self.w2_dma(5, 2)
        for n in range(32):
            p = n & 3
            b = self.fb(n); rd = RD[n]
            if (n + D) % 4 == 0:
                i = (n + D) // 4 - 1
                flush(q, [dma])
                q.wds_all()
                if i < 7: q.wvm(last[i + 1])
                q.e("s_barrier")
                if i in c.ts_stages: self.stamp(q)
                if i < 6:
                    G, l = self.stage_dma(i + 3); last.append(l)
                    if c.early_from <= i < 6:
                        assert not sC_.it
                        G = G + early[:c.early_n]; early = early[c.early_n:]
                    dma = Stream(G, every=2)
                if i == 7: csr = q.e(f"ds_read_b64 {vr(62,2)}, v{vGC+2}")
            if n >= c.pf_from and (n - c.pf_from) % c.pf_step == 0 and (n - c.pf_from) // c.pf_step * c.pf_n < 28:
                q.e(f"global_load_dword v10, v{vPF}, s[70:71] offset:{(n - c.pf_from) // c.pf_step * c.pf_n * 128}")
                if n == c.pf_from:
                    for v in (vFP, vAGS, vCSS): q.e(f"buffer_load_dword v10, v{v}, {srd(R_SY)}, 0 offen")
            nxt = []
            if n + D < 32: nxt = RD[n + D] = self.frag_reads(n + D)
            z = lambda a: ("0" if n == 0 else vr(a, 16))
            M = [f"{MF} {vr(ACC_F1,16)}, {vr(b+4)}, {ar(8*n)}, {z(ACC_F1)}", f"{MF} {vr(ACC_F1+16,16)}, {vr(b+4)}, {ar(8*n+4)}, {z(ACC_F1+16)}",
                 f"{MF} {vr(RE,16)}, {ar(8*n)}, {vr(b)}, {z(RE)}", f"{MF} {vr(IM,16)}, {ar(8*n+4)}, {vr(b)}, {z(IM)}"]
            sched = [2, 1, 1, 2]
            k = 0
            for j, m in enumerate(M):
                q.wds(rd[4]); q.e(m)
                mine = nxt[k:k + sched[j]]; k += sched[j]
                q.e(*mine)
                fill_gap(q, 4 * n + j, len(mine), c.cap1, [dma, sA, sG_, sC_])
                if n == 30 and j == 2:
                    q.e(f"s_mov_b32 s{sONES}, 0x07060302"); q.wds(csr)
                    q.e(f"v_add_f32 v{CS+1}, v{CS+1}, v63", f"v_add_f32 v{CS}, v{CS}, v62")
                if n == 30 and j == 3: self.split3(q, CS + 1, 222)
                if n == 31 and j == 0: self.split3(q, CS, 204)
                if n == 31 and j == 1:
                    flush(q, [sG_])
                    for t in range(2): q.e(f"{MF8} {vr(ACC_F1+16*t,16)}, {vr(222,2)}, {vr(MFR+2*t,2)}, {vr(ACC_F1+16*t,16)}")
            if n == c.stat_at:
                q.wvm(self.small0)
                for r in range(4):
                    q.e(f"v_dot2c_f32_bf16 v48, s{sONES}, v{40+r}", f"v_dot2c_f32_bf16 v49, s{sONES}, v{44+r}",
                        f"v_dot2c_f32_bf16 v50, v{40+r}, v{40+r}", f"v_dot2c_f32_bf16 v51, v{44+r}, v{44+r}")
            if p == 1:
                if dma.it: q.e(*dma.it.pop(0))
                for e in (n - 1, n + 1):
                    q.wds(RD[e][4]); be = self.fb(e)
                    for r in range(4):
                        q.e(f"v_dot2c_f32_bf16 v{CS}, s{sONES}, v{be+r}", f"v_dot2c_f32_bf16 v{CS+1}, s{sONES}, v{be+4+r}")
            if n == 29: q.e(f"ds_write_b64 v{vGC+1}, {vr(CS,2)}")
        for t in range(2): q.e(f"{MF8} {vr(RE+16*t,16)}, {vr(MFR+2*t,2)}, {vr(204,2)}, {vr(RE+16*t,16)}")
        self.stamp(q)
        G9, l = self.stage_dma(9); last.append(l)
        f, st = self.ffn_epi(ACC_F1, vHF1)
        q.e(f"v_mov_b32 v{CS}, s{sTAG}")
        q.extend(merge(f, G9[:c.g9_pre]))
        st = [I(f"buffer_store_dwordx2 {vr(CS,2)}, v{vCSS}, {srd(R_SY)}, 0 offen sc1", "vm")] + st
        s = Seq()
        for i in range(16): s.e(f"v_permlane16_swap_b32 v{RE+i}, v{IM+i}")
        cr, ci = RE, IM
        def scale(i): s.e(f"v_mul_f32_dpp v{RE+i}, v44, v{RE+i} row_newbcast:{i} row_mask:0xf bank_mask:0xf", f"v_mul_f32_dpp v{IM+i}, v44, v{IM+i} row_newbcast:{i} row_mask:0xf bank_mask:0xf")
        scale(0); scale(1)
        for i in range(1, 16):
            d = 48 if i & 1 else 46
            s.e(f"v_fma_f32 v{d}, v20, v{cr}, v{RE+i}", f"v_fma_f32 v{d+1}, v20, v{ci}, v{IM+i}")
            if i < 15: scale(i + 1)
            s.e(f"v_fma_f32 v{d}, -v21, v{ci}, v{d}", f"v_fma_f32 v{d+1}, v21, v{cr}, v{d+1}")
            cr, ci = d, d + 1
        q.extend(merge(s, [[x] for x in st] + G9[c.g9_pre:]))
        s = Seq()
        s.e("v_mov_b32 v50, v48", "v_mov_b32 v51, v49", f"v_mov_b32 v62, s{sTAG}", "v_mov_b32 v40, 0",
            "v_permlane32_swap_b32 v48, v50", "v_permlane32_swap_b32 v49, v51",
            "v_mov_b32 v52, v48", "v_mov_b32 v54, v50", "v_mov_b32 v53, v49", "v_mov_b32 v55, v51",
            "v_permlane16_swap_b32 v48, v52", "v_permlane16_swap_b32 v50, v54", "v_permlane16_swap_b32 v49, v53", "v_permlane16_swap_b32 v51, v55", "v_mov_b32 v41, 0")
        self.cmul_acc(s, 50, 22, 48, 50); self.cmul_acc(s, 52, 22, 50, 52); self.cmul_acc(s, 60, 22, 52, 54)
        s.e(f"buffer_store_dwordx4 {vr(60)}, v{vAGS}, {srd(R_SY)}, 0 offen sc1")
        q.extend(s)
        self.stamp(q)
        q.wvm(last[8]); q.e("s_barrier")
        for e in range(32, 32 + D2):
            RD[e] = self.frag_reads(e); q.e(*RD[e])
        cl_ = I(f"buffer_load_dwordx2 {vr(CS,2)}, v{vGC}, {srd(R_SY)}, 0 offen sc1", "vm")
        S1 = []
        for j in range(1, 4):
            S1.append([I(f"v_cmp_eq_u32 vcc, {j}, v32"), I(f"v_cndmask_b32 v40, v40, v{46+2*j}, vcc"), I(f"v_cndmask_b32 v41, v41, v{47+2*j}, vcc")])
        s = Seq()
        for i in range(16):
            s.e(f"v_mul_f32 v46, v31, v{IM+i}", f"v_mul_f32 v{IM+i}, v30, v{IM+i}", f"v_fmac_f32 v{IM+i}, v31, v{RE+i}", f"v_fma_f32 v{RE+i}, v30, v{RE+i}, -v46")
        sS1 = Stream(S1 + groups(s))
        self.fa = I(f"buffer_load_dword v{vFP}, v36, {srd(R_SY)}, 0 offen sc1", "vm")
        W = early + self.w2_dma(1) + self.w2_dma(2)
        W = W[:c.w2_first] + [("nb", c.w2_at2), self.flag_store(0, st[-1]) + [cl_]] + W[c.w2_first:c.w2_first + c.w2_n2] + [("nb", c.w2_at3)] + W[c.w2_first + c.w2_n2:]
        sW2 = Stream(W, every=2)
        for g in S1[:3]: q.e(*g)
        sS1.it = sS1.it[3:]
        sR0 = Stream(self.w2_reads(0), start=c.r0_at)
        self.lb = [I(f"buffer_load_dwordx3 {vr(96+4*t,3)}, v{vLBK}, {srd(R_AG)}, 0 offen offset:{512*t} sc1", "vm") for t in range(8)]
        sLB_ = Stream([[x] for x in self.lb], start=c.lb_at)
        r5 = self.w2_reads(5)
        _, B, self.ssm_last = self.ssm_part2()
        sR0.it += r5
        if c.b_at < 64: sR0.dl = c.b_at - 1; sS1.dl = c.b_at - 1
        sB2 = Stream(B[:-1], start=c.b_at); self.hst = B[-1]
        K9 = 16 - D2
        for n in range(32, 64):
            k = n - 32
            b = self.fb(n)
            if k == K9:
                q.wds_all(); q.wvm(last[9]); q.e("s_barrier")
            nxt = RD[n + D2] = self.frag_reads(n + D2)
            for t in range(2):
                d = ACC_F2 + 16 * t
                q.wds(RD[n][-1])
                q.e(f"{MF} {vr(d,16)}, {vr(b+4)}, {ar(8*k+4*t)}, {'0' if k == 0 else vr(d,16)}")
                q.e(*nxt[t:t+1])
                fill_gap(q, 2 * k + t, 1.25, c.cap2, [sLB_, sW2, sS1, sR0, sB2])
                if k == 30 and t == 0: q.extend(self.check("c2", [cl_], self.tags([CS])))
                if k == 30 and t == 1: self.split3(q, CS + 1, 222)
        for t in range(2): q.e(f"{MF8} {vr(ACC_F2+16*t,16)}, {vr(222,2)}, {vr(MFR+2*t,2)}, {vr(ACC_F2+16*t,16)}")
        self.stamp(q)
        self.left = (sW2.rest(), sS1.rest(), sR0.rest(), sLB_.rest(), sB2.rest())

    def ssm_part2(self):
        RE, IM = ACC_S, ACC_S + 16
        LB = 96
        lb = self.lb
        test = []
        for t in range(8):
            test += [f"v_cmp_eq_u32 vcc, s{sTAG}, v{LB+4*t+2}", f"s_bcnt1_i32_b64 s{sT0 if t == 0 else sT1}, vcc"]
            if t: test.append(f"s_add_u32 s{sT0}, s{sT0}, s{sT1}")
        test.append(f"s_cmp_lg_u32 s{sT0}, s{sNV}")
        B = [self.check("lb", lb, test)]
        q = Seq()
        self.stamp(q)
        for t in range(6, -1, -1): self.cmul_acc(q, LB + 4 * t, 24, LB + 4 * (t + 1), LB + 4 * t)
        self.cmul(q, 62, 28, LB)
        for sw in ("16", "32"):
            q.e("v_mov_b32 v60, v62", "v_mov_b32 v61, v63", f"v_permlane{sw}_swap_b32 v60, v62", f"v_permlane{sw}_swap_b32 v61, v63",
                "v_add_f32 v62, v60, v62", "v_add_f32 v63, v61, v63")
        self.cmul_acc(q, 60, 26, 62, 40)
        self.cmul(q, 62, 30, 60)
        self.nB1 = len(groups(q)) + 1
        pr, pi_ = 62, 63
        for i in range(16):
            q.e(f"v_fma_f32 v{RE+i}, v20, v{pr}, v{RE+i}", f"v_fma_f32 v{IM+i}, v20, v{pi_}, v{IM+i}",
                f"v_fma_f32 v{RE+i}, -v21, v{pi_}, v{RE+i}", f"v_fma_f32 v{IM+i}, v21, v{pr}, v{IM+i}")
            pr, pi_ = RE + i, IM + i
            if i & 1:
                j = i >> 1
                q.e(f"v_cvt_pk_bf16_f32 v{44+j}, v{RE+2*j}, v{RE+2*j+1}", f"v_cvt_pk_bf16_f32 v{52+j}, -v{IM+2*j}, -v{IM+2*j+1}")
            if i == 7:
                q.wds(self.w2_rd[5])
                q.e(f"ds_write_b128 v{vTW}, {vr(44)}", f"ds_write_b128 v{vTW}, {vr(52)} offset:2048")
        q.e(f"ds_write_b128 v{vTW+1}, {vr(48)}", f"ds_write_b128 v{vTW+1}, {vr(56)} offset:2048")
        q.e(f"v_xor_b32 v61, {512|32}, v{vTD}", f"v_xor_b32 v62, 64, v{vTD}", "v_xor_b32 v63, 64, v61", f"s_movk_i32 s{sT1}, 8192")
        ad = {(0, 0): vTD, (0, 1): 61, (1, 0): 62, (1, 1): 63}
        for part in range(2):
            for mu in range(2):
                for e in range(2):
                    tr = q.e(f"ds_read_b64_tr_b16 {vr(64 + 8*part + 4*mu + 2*e,2)}, v{ad[mu, e]} offset:{2048*part}")
        B += groups(q)
        st = [I(f"buffer_store_dwordx4 {vr(64+8*part+4*mu)}, v{vHS}, {srd(R_SY)}, {('0', f's{sT1}')[part]} offen offset:{1024*mu} sc1", "vm") for part in range(2) for mu in range(2)]
        w = Seq(); w.wds(tr)
        B.append(list(w) + st)
        return lb, B, st[-1]

    def base_stream(self):
        f = Seq()
        T = 88; D = 20
        f.wvm(self.xl[-1])
        f.e(f"v_lshlrev_b32 v{D}, 16, v38", f"v_and_b32 v{D+1}, 0xffff0000, v38", f"v_lshlrev_b32 v{D+2}, 16, v39", f"v_and_b32 v{D+3}, 0xffff0000, v39")
        for ii in range(4):
            b = BASE + 4 * ii; r = 24 + 2 * ii
            f.e(f"v_lshlrev_b32 v{b+2}, 16, v{b+1}", f"v_and_b32 v{b+3}, 0xffff0000, v{b+1}", f"v_and_b32 v{b+1}, 0xffff0000, v{b}", f"v_lshlrev_b32 v{b}, 16, v{b}",
                f"v_lshlrev_b32 v{r+1}, 16, v{r+1}")
            for e in range(4): f.e(f"v_add_f32 v{T+e}, v{b+e}, v{r+1}")
            def rnd():
                f.e(f"v_cvt_pk_bf16_f32 v{T+4}, v{T}, v{T+1}", f"v_cvt_pk_bf16_f32 v{T+5}, v{T+2}, v{T+3}",
                    f"v_lshlrev_b32 v{T}, 16, v{T+4}", f"v_and_b32 v{T+1}, 0xffff0000, v{T+4}", f"v_lshlrev_b32 v{T+2}, 16, v{T+5}", f"v_and_b32 v{T+3}, 0xffff0000, v{T+5}")
            rnd()
            for e in range(4): f.e(f"v_mul_f32 v{T+e}, v{T+e}, v{r}")
            rnd()
            for e in range(4): f.e(f"v_mul_f32 v{T+e}, v{T+e}, v{D+e}")
            rnd()
            for e in range(4): f.e(f"v_add_f32 v{b+e}, v{b+e}, v{T+e}")
        return groups(f)

    def phase2(self, q):
        c = self.c
        NR = c.nring; ak = c.akept; NT = c.ntail; LEAD = c.lead
        assert ak % 2 == 0 and ak <= 8 and NR >= LEAD + NT - 1 and NR <= 10
        wl, sl, rl, ll, B = self.left
        ssm_last = self.ssm_last
        for g in sl + rl: q.e(*g)
        f, st2 = self.ffn_epi(ACC_F2, vHF2)
        q.extend(merge(f, [[self.fa]] + ll + wl[:c.left_pre]))
        wl = wl[c.left_pre:]
        q.e(*st2)
        self.stamp(q)
        k = max(len(B) - c.b_tail, 0)
        for g in B[:k]: q.e(*g)
        B = B[k:] + [self.hst]
        q.extend(self.check("fa", [self.fa], self.tags([vFP], 0xff)))
        self.stamp(q)
        ACC = (96, 160)
        steps = [(0, j) for j in range(8)] + [(1, j) for j in range(ak)] + [(0, j) for j in range(8, 22)] + [(1, j) for j in range(ak, 22)]
        firstB = 8 + ak; sent_done = firstB + 13
        ld = {}
        def issue(n):
            ps, j = steps[n]
            a = 176 + 8 * (n % NR)
            blk = (sB0, sB1)[ps]
            g = []
            if j % 2 == 0:
                if j < 14:
                    pc = (0, 1, 2, 5)[j // 4]
                    if j % 4 == 2 and steps[n-1] == (ps, j - 1): g.append(I(f"s_add_u32 s{sKW}, s{sKW}, 4096"))
                    else:
                        g.append(I(f"s_add_u32 s{sKW}, s{blk}, s{UO[pc]}"))
                        if j % 4: g.append(I(f"s_add_u32 s{sKW}, s{sKW}, 4096"))
                elif j == 14: g.append(I(f"s_add_u32 s{sKW}, s{blk}, s{sHS}"))
                else: g.append(I(f"s_add_u32 s{sKW}, s{sKW}, 4096"))
            o = 2048 * (j % 2)
            ld[n, 0] = I(f"buffer_load_dwordx4 {ar(a)}, v33, {srd(R_SY)}, s{sKW} offen offset:{o} sc1", "vm")
            ld[n, 1] = I(f"buffer_load_dwordx4 {ar(a+4)}, v33, {srd(R_SY)}, s{sKW} offen offset:{o+1024} sc1", "vm")
            return [g + [ld[n, 0]], [ld[n, 1]]]
        order = []
        n = 0
        while n < 44:
            if n in (sent_done + 1 - NT, 44 - NT):
                for k in range(4): order += [(m, k) for m in range(n, n + NT)]
                n += NT
            else:
                order += [(n, k) for k in range(4)]; n += 1
        pos = {e: i for i, e in enumerate(order)}
        L0 = c.lead0
        f = Seq()
        for g in B[:-1]: f.e(*g)
        q.extend(merge(f, [g for n in range(L0) for g in issue(n)]))
        q.e(*B[-1])
        fs = I(f"buffer_load_dword v{vFP}, v36, {srd(R_SY)}, 0 offen offset:128 sc1", "vm")
        st = Seq(); self.stamp(st)
        gate = 4 * firstB - c.gate_lead
        L = []
        for n in range(L0, 44):
            nb = max(4 * (n - LEAD), 0)
            if n >= NR: nb = max(nb, max(pos[n - NR, k] for k in range(4)))
            if n >= firstB: nb = max(nb, gate)
            if firstB < n < firstB + c.burst:
                assert nb <= gate
                L[-1] += [x for g in issue(n) for x in g]; continue
            L.append(("nb", nb))
            if n == firstB: L.append(self.check("fs", [fs], self.tags([vFP], 0xffff)) + list(st) + [x for g in issue(n) for x in g])
            else: L += issue(n)
        sL = Stream(L, every=2)
        P = [("nb", c.flagB_at)] + [self.flag_store(1, ssm_last)] + [("nb", gate - c.fs_lead), [fs]]
        sP = Stream(P, dl=gate - 1)
        self.xl = []
        n1 = sum(1 for g in wl if any(x is self.w2_last[1] for x in g))
        assert n1 == 0, "piece 1 must be issued before phase 2"
        r1 = self.w2_reads(1)
        for g in r1: q.e(*g)
        Wc = [("nb", c.flagB_at + 1)] + wl + self.after_reads(0, self.w2_dma(3)) + self.after_reads(1, self.w2_dma(4)) + self.w2_reads(2)
        for ii in range(4):
            self.xl.append(I(f"buffer_load_dwordx2 {vr(2+4*ii,2)}, v18, {srd(R_X)}, s{sKX} offen", "vm"))
            Wc.append([I(f"s_movk_i32 s{sKX}, {4096*ii}"), self.xl[-1]])
        Wc += self.w2_reads(3) + self.w2_reads(4)
        for ii in range(4):
            self.xl.append(I(f"buffer_load_dwordx2 {vr(24+2*ii,2)}, v34, {srd(R_SY)}, 0 offen offset:{64*ii} sc1", "vm")); Wc.append([self.xl[-1]])
        d_c = gate - 2
        sWc = Stream(Wc, start=1, dl=d_c, every=c.wc_every)
        sB = Stream(self.base_stream(), start=d_c + 4)
        XV = 64; TB = 80
        s = Seq()
        s.e(f"v_mov_b32 v{TB}, s{sTAG}")
        for k in range(1, 4): s.e(f"v_lshrrev_b32 v{TB+k}, {8*k}, v{TB}")
        s.e(f"s_movk_i32 s{sT2}, 0xff")
        s.wds_all(); s.e("s_barrier")
        R0 = [("nb", gate + 24)] + groups(s)
        def tile(k): return (k & 1, k >> 1)
        def red_write(ps, lastn):
            out = []
            for k in range(4):
                nu, mu = tile(k)
                out.append(("nb", pos[lastn, k] + 2))
                for g4 in range(4):
                    out.append([I(f"ds_write_b128 v{vRW+g4}, {vr(ACC[ps] + 32*nu + 16*mu + 4*g4)} offset:{128*nu + 8192*mu}", "ds")])
            return out
        def red_read(s, dst):
            return [s.e(f"ds_read_b128 {vr(dst + 16*ii + 4*src)}, v{vRR} offset:{1024*ii + 16384*src}") for ii in range(4) for src in range(4)]
        s = Seq()
        s.wds_all(); s.e("s_barrier")
        R = red_read(s, 96)
        for g4 in range(4): s.e(f"v_add_u32 v{vRW+g4}, 0x10000, v{vRW+g4}")
        Ga = groups(s); s = Seq()
        for ii in range(4):
            s.wds(R[4 * ii + 3])
            for e in range(4):
                d = XV + 4 * ii + e; s0 = 96 + 16 * ii + e
                s.e(f"v_add_f32 v{s0}, v{s0}, v{s0+4}", f"v_add_f32 v{d}, v{s0+8}, v{s0+12}", f"v_add_f32 v{d}, v{d}, v{s0}",
                    f"v_bfi_b32 v{d}, s{sT2}, v{TB+e}, v{d}")
        s.e(f"v_add_u32 v{vRR}, 0x10000, v{vRR}")
        Gb = groups(s)
        s = Seq()
        for k in range(4): s.e(f"buffer_store_dwordx4 {vr(XV+4*k)}, v{vXS}, {srd(R_SY)}, 0 offen offset:{1024*k} sc1")
        self.stamp(s)
        e0 = 4 * (sent_done + 1)
        XR = 40
        xl = [I(f"buffer_load_dwordx4 {vr(XR+4*k)}, v{vXR}, {srd(R_SY)}, 0 offen offset:{1024*k} sc1", "vm") for k in range(4)]
        sR = Stream(R0 + red_write(0, sent_done) + [("nb", e0 + c.bar_lag)] + Ga + [("nb", e0 + c.bar_lag + 8)] + Gb + [("nb", 4 * c.send_at)] + [list(s)]
                    + red_write(1, 43), wev=c.wev)
        sX = Stream([[x] for x in xl], start=c.xl_at, every=2)
        q.wds(self.w2_rd[1])
        emitted = set(id(x) for x in q)
        for gi, (n, k) in enumerate(order):
            ps, j = steps[n]; nu, mu = tile(k)
            a = 176 + 8 * (n % NR); d = ACC[ps] + 32 * nu + 16 * mu
            while not any(ld[n, mu] is x for x in q[-400:]):
                g = sL.it.pop(0)
                if not isinstance(g, tuple): q.e(*g)
            q.wvm(ld[n, mu])
            if n == firstB: q.wds(self.w2_rd[2])
            if n == firstB + 6: q.wds(self.w2_rd[4])
            if k == 0 and n in c.p2stamps: self.stamp(q)
            q.e(f"v_mfma_f32_32x32x16_bf16 {vr(d,16)}, {ar(8*j+4*nu)}, {ar(a+4*mu)}, {'0' if j == 0 else vr(d,16)}")
            fill_gap(q, gi, 0.5, c.cap3, [sP, sWc, sL, sR, sX, sB])
        self.stamp(q)
        flush(q, [sR, sX, sB])
        q.wds_all(); q.e("s_barrier")
        R = red_read(q, 96)
        pre = [f"s_mov_b32 s{sT0}, 0x0c0c0400", f"s_mov_b32 s{sT1}, 0x05040100"]
        for k in range(4):
            r = XR + 4 * k
            pre += [f"v_perm_b32 v60, v{r+1}, v{r}, s{sT0}", f"v_perm_b32 v61, v{r+3}, v{r+2}, s{sT0}", f"v_perm_b32 v{56+k}, v61, v60, s{sT1}"]
        for ii in range(4):
            q.wds(R[4 * ii + 3])
            s0 = 96 + 16 * ii
            for e in range(2):
                q.e(f"v_pk_add_f32 {vr(s0+2*e,2)}, {vr(s0+2*e,2)}, {vr(s0+4+2*e,2)}", f"v_pk_add_f32 {vr(s0+8+2*e,2)}, {vr(s0+8+2*e,2)}, {vr(s0+12+2*e,2)}")
            for e in range(2): q.e(f"v_pk_add_f32 {vr(s0+2*e,2)}, {vr(s0+2*e,2)}, {vr(BASE+4*ii+2*e,2)}")
            for e in range(2): q.e(f"v_pk_add_f32 {vr(s0+2*e,2)}, {vr(s0+2*e,2)}, {vr(s0+8+2*e,2)}")
        q.extend(self.check("xc", xl, pre + self.tags([56 + k for k in range(4)])))
        self.stamp(q)
        for ii in range(4):
            s0 = 96 + 16 * ii
            for e in range(2): q.e(f"v_pk_add_f32 {vr(s0+2*e,2)}, {vr(s0+2*e,2)}, {vr(XR+4*ii+2*e,2)}")
            q.e(f"s_movk_i32 s{sT0}, {8192*ii}")
            q.e(f"buffer_store_dwordx4 {vr(s0)}, v19, {srd(R_OUT)}, s{sT0} offen {c.ost}")
        q.e(f"s_lshl_b32 s{sT0}, s{sG}, 2", f"s_or_b32 s{sT0}, s{sT0}, s{sW}", f"s_lshl_b32 s{sT0}, s{sT0}, 4", f"s_or_b32 s{sT0}, s{sT0}, s{sC}",
            f"s_cmp_eq_u32 s{sT0}, 15", "s_cbranch_scc0 L_nobump", "v_mov_b32 v57, 0", "s_mov_b64 exec, 1")
        q.e(f"buffer_store_dword v251, v57, {srd(R_SY)}, 0 offen sc1")
        q.e("s_mov_b64 exec, -1")
        q.label("L_nobump")

    def write_ts(self, q):
        if not self.c.ts: return
        q.wds_all(); q.wvm_all()
        q.e("s_memtime s[46:47]", "s_memrealtime s[92:93]"); q.wds_all()
        q.e(f"s_lshl_b32 s{sT0}, s2, 2", f"s_add_u32 s{sT0}, s{sT0}, s{sW}", f"s_lshl_b32 s{sT0}, s{sT0}, 6", f"s_add_u32 s{sT0}, s{sT0}, {WS_TS}", "v_mov_b32 v2, 0")
        q.e("s_mov_b64 exec, 1")
        def put(k): q.e(f"buffer_store_dword v3, v2, {srd(R_SY)}, s{sT0} offen offset:{4*k}")
        for k in range(self.nts + 2):
            if k == 0: q.e("v_mov_b32 v3, v255")
            elif k == self.nts + 1: q.e("s_sub_u32 s46, s46, s42", "v_mov_b32 v3, s46")
            else:
                r = TSREG[k - 1]; q.e(f"s_sub_u32 s{r}, s{r}, s42", f"v_mov_b32 v3, s{r}")
            put(k)
        q.e("v_mov_b32 v3, s92"); put(15)
        q.wvm_all()

    def add_prof(self, q):
        lo, step = self.c.prof
        out = Seq(); unsafe = False; started = False; acc = 0; n = 0; idx = 0; nm = 0
        NP = len(TSREG)
        self.prof_pts = []
        for ins in q:
            t = ins.t
            if started and not unsafe and n < 64 and idx >= lo and acc >= step and ins.kind not in WAITK and not t.startswith(("s_cbranch", "s_branch", "s_cselect", "s_addc")) and ins.kind != "label":
                r = TSREG[n % NP]
                if n >= NP: out.e(f"v_writelane_b32 v0, s{r}, {n - NP}")
                out.e(f"s_memtime s[{r}:{r+1}]"); self.prof_pts.append((idx, nm, t[:50])); n += 1; acc = 0
            out.append(ins)
            if t == "s_barrier": started = True
            if started and ins.kind != "label":
                idx += 1; acc += 1
                if t.startswith("v_mfma"): nm += 1
            if t.startswith("s_cbranch"): unsafe = started
            if ins.kind == "label" and (t.endswith("_ok:") or t.startswith("L_nobump")): unsafe = False
        out.wds_all()
        for k in range(max(0, n - NP), n): out.e(f"v_writelane_b32 v0, s{TSREG[k % NP]}, {k}")
        out.e(f"s_lshl_b32 s{sT0}, s2, 2", f"s_add_u32 s{sT0}, s{sT0}, s{sW}", f"s_lshl_b32 s{sT0}, s{sT0}, 8", f"s_add_u32 s{sT0}, s{sT0}, {WS_TS + 65536}",
              "v_subrev_u32 v0, s42, v0", f"v_lshlrev_b32 v2, 2, v{vL}")
        out.e(f"buffer_store_dword v0, v2, {srd(R_SY)}, s{sT0} offen")
        return out

    def build(self):
        q = Seq()
        q.label("L_start")
        last = self.prologue(q)
        self.phase1(q, last)
        self.phase2(q)
        if self.c.prof: q = self.add_prof(q)
        self.write_ts(q)
        if self.c.spin_to:
            q.label("L_spin")
            q.e("s_memrealtime s[46:47]", "s_waitcnt lgkmcnt(0)", "s_sub_u32 s46, s46, s42", f"s_cmp_lt_u32 s46, {self.c.spin_to}", "s_cbranch_scc1 L_spin")
        q.label("L_end")
        q.e("s_endpgm")
        q.extend(self.ool)
        return finalize(q)

HDR = """; @launch grid=(256,1,1) block=(256,1,1) lds=163840
.amdgcn_target "amdgcn-amd-amdhsa--gfx950"
.text
.globl {n}_kernel
.p2align 8
.type {n}_kernel,@function
{n}_kernel:
"""
TAIL = """
.section .rodata,"a"
.p2align 6
.amdhsa_kernel {n}_kernel
  .amdhsa_next_free_vgpr 512
  .amdhsa_next_free_sgpr 102
  .amdhsa_accum_offset 256
  .amdhsa_group_segment_fixed_size 0
  .amdhsa_kernarg_size 120
  .amdhsa_user_sgpr_count 2
  .amdhsa_user_sgpr_kernarg_segment_ptr 1
  .amdhsa_system_sgpr_workgroup_id_x 1
.end_amdhsa_kernel
"""
def generate(cfg):
    g = Gen(cfg)
    body = g.build()
    return HDR.format(n=NAME) + "\n".join(("" if l.endswith(":") else "    ") + l for l in body) + TAIL.format(n=NAME), g

if __name__ == "__main__":
    cfg = Cfg()
    for a in sys.argv[2:]:
        k, v = a.split("=", 1); assert hasattr(cfg, k), k; setattr(cfg, k, eval(v))
    txt, g = generate(cfg)
    open(sys.argv[1], "w").write(txt)
```

```python
import sys, struct
from asmlib import *

NAME = "parallel_sum__ssm_conv_s5__dense_activation_relu__prompt"
def f2u(x): return struct.unpack("<I", struct.pack("<f", x))[0]
def fh(x): return hex(f2u(x))

WS_CS   = 262144
WS_FLAG = 524288
WS_STAT = 786432
WS_AGG  = 1 << 20
WS_XCH  = 2 << 20
WS_TS   = (7 << 20) + (1 << 19)
WS_H    = 8 << 20
HBLK = 88 * 2048
WS_END = WS_H + 64 * HBLK
TAGK = 0x9E3779B9
OOB = 0x40000000

sCO, sW, sWM, sWN, sC, sG, sGL, sU0, sORD, sXB, sT0, sT1, sT2 = 3, 4, 5, 6, 7, 8, 9, 10, 11, 12, 13, 14, 15
P_X, P_LRE, P_LIM, P_BRE, P_BIM, P_CRE, P_CIM, P_LDT = 16, 18, 20, 22, 24, 26, 28, 30
P_DSK, P_W1, P_W2, P_OUT, P_WS = 32, 36, 38, 40, 44
sU1, sK4 = 34, 35
sM = 46
R_X, R_BS, R_W1A, R_W1B, R_W2, R_CRE, R_CIM, R_OUT, R_SY = 48, 52, 56, 60, 72, 76, 80, 84, 88
R_AG = R_BS
sB0, sB1, sHS, sNV = 64, 65, 66, 67
sUO = 32
UO = {0: 32, 1: 33, 2: 100, 5: 101}
sKX, sKW, sLB, sONES, sTAG, sPOLL, sLE, sW2O = 92, 93, 94, 95, 96, 97, 98, 99
TSREG = [16, 18, 20, 22, 24, 26, 28, 30, 36, 38, 40, 68]
def srd(r): return f"s[{r}:{r+3}]"

vL = 1
BASE = 2
ACC_S, ACC_F1, ACC_F2 = 64, 96, 128
FR = 160
RA, RS, RF = 176, 180, 184
vX, vB, vW = 200, 204, 206
vSTS, vCSS, vGS, vGC, vPF, vAGS, vHF1, vHF2, vGR = 208, 209, 210, 211, 214, 215, 216, 217, 218
CS = 220
vW2, vC2, vTR, vCR, vTA, vLBK, vFP, vHS, vFL, vXS, vXR, vRW, vRR, vTW, vTD = 224, 228, 232, 233, 234, 238, 239, 242, 243, 244, 245, 246, 250, 252, 254
def vr(a, n=4): return f"v[{a}:{a+n-1}]"
def ar(a, n=4): return f"a[{a}:{a+n-1}]"

SLOT = 32768; WBLK = 8192
L_SP = 98304; SPW = 14336
L_CS = 155648

class Cfg:
    ts = False; ts_stages = (); ts_max = 12; ts_min = 0; prof = None; p2stamps = ()
    order = "xa"
    pf_from = 14; pf_n = 28; pf_step = 12
    early_from = 9; early_n = 2
    cap1 = 5.5; cap2 = 5.5; cap3 = 5
    stat_at = 4; gather_at = 86; check_at = 108
    w2_first = 8; w2_at2 = 20; w2_n2 = 8; w2_at3 = 36; lb_at = 38; left_pre = 5; g9_pre = 4; r0_at = 30; b_at = 48; b_mid = 36; lb_every = 1; rc_at = 40
    akept = 8; nring = 10; lead = 6; ntail = 4
    lead0 = 4; flagB_at = 15; fs_lead = 12; gate_lead = 20; wc_every = 2; burst = 1
    bar_lag = 9; send_at = 0; xl_at = 164; wev = 1
    poll_sleep = 1
    add_lag = 5; cap4 = 8
    l2pf_at = 99; pt_at = 14
    hrot = True
    nt_upto = 0; nt_srd = (48, 52, 56, 60)
    strow_at = -1
    spin_to = 0
    ost = 'nt'

def mk_srd(q, r, p, size):
    q.e(f"s_mov_b32 s{r}, s{p}", f"s_and_b32 s{r+1}, s{p+1}, 0xffff", f"s_mov_b32 s{r+2}, {size}", f"s_mov_b32 s{r+3}, 0x20000")

WAITK = ("wvm", "wds", "wvm0", "wds0")
def groups(seq):
    G = []; cur = []
    for ins in seq:
        cur.append(ins)
        if ins.kind not in WAITK and not ins.t.startswith(("v_cmp", "s_cmp")):
            G.append(cur); cur = []
    if cur: G.append(cur)
    return G
def cost(g):
    c = 0
    for i in g:
        if i.kind == "label": continue
        if i.kind in WAITK: c += 0.5
        elif i.t.startswith(TRANS): c += 2
        elif i.t.startswith("ds_write_b128"): c += 3
        else: c += 1
    return c

class Stream:
    def __init__(self, items, start=0, dl=None, every=1, wev=1):
        self.it = list(items); self.nb = start; self.dl = dl; self.every = every; self.wev = wev
    def ready(self, gap):
        while self.it and isinstance(self.it[0], tuple):
            self.nb = max(self.nb, self.it.pop(0)[1])
        return bool(self.it) and gap >= self.nb
    def pop(self, gap):
        g = self.it.pop(0)
        if self.every > 1 and any(i.kind == "vm" for i in g): self.nb = gap + self.every
        if any(i.t.startswith("ds_write_b128") for i in g): self.nb = gap + self.wev
        return g
    def rest(self):
        r = [g for g in self.it if not isinstance(g, tuple)]; self.it = []; return r

def fill_gap(q, gap, used, cap, streams):
    for s in streams:
        if s.dl is not None and gap >= s.dl:
            for g in s.rest(): q.e(*g); used += cost(g)
    for s in streams:
        while s.ready(gap) and (used + cost(s.it[0]) <= cap or (used <= cap - 2 and cost(s.it[0]) > 3)):
            g = s.pop(gap); q.e(*g); used += cost(g)
def flush(q, streams):
    for s in streams:
        for g in s.rest(): q.e(*g)

def pack_order(o): return sum(v << (4 * k) for k, v in enumerate(o))
def hyb(xa):
    first = [0, (1 + 2 * xa), (2 + 2 * xa) & 7 or 1]
    rest = [v for v in [(3 + 2 * xa + k) & 7 for k in range(8)] if v not in first]
    return first + rest
ORDERS = {"xa": [[(i + 2 * xa) & 7 for i in range(8)] for xa in range(4)],
          "none": [list(range(8))] * 4,
          "two": [[(i + 4 * (xa & 1)) & 7 for i in range(8)] for xa in range(4)],
          "hyb": [hyb(xa) for xa in range(4)]}

class Gen:
    def __init__(self, cfg):
        self.c = cfg; self.nts = 0; self.nreq = 0; self.w2_last = {}; self.w2_rd = {}; self.ool = Seq()
    def stamp(self, q):
        self.nreq += 1
        if self.c.ts and self.nts < self.c.ts_max and self.nreq > self.c.ts_min:
            r = TSREG[self.nts]
            q.e(f"s_memtime s[{r}:{r+1}]"); self.nts += 1

    def stage_dma(self, i):
        base = (i % 3) * SLOT
        def ld(v, r, so, off):
            fl = " nt" if (i < self.c.nt_upto and r in self.c.nt_srd) else ""
            return I(f"buffer_load_dwordx4 v{v}, {srd(r)}, s{so} offen offset:{off}{fl} lds", "vm")
        def m0(o): return I(f"s_add_u32 m0, s{sLB}, {base + o}")
        def st(k): return I(f"s_bfe_u32 s{sKW}, s{sORD}, {(3 << 16) | (4 * k)}")
        mul = lambda: I(f"s_mul_i32 s{sKW}, s{sKW}, {64*3584}")
        G = []
        if i < 8:
            G.append([m0(0), st(i), I(f"s_lshl_b32 s{sKX}, s{sKW}, 7"), ld(vX, R_X, sKX, 0)])
            for j in range(1, 4): G.append([ld(vX + j, R_X, sKX, 1024 * j)])
            G.append([m0(4096), mul(), ld(vB, R_BS, sKX, 0)]); G.append([ld(vB + 1, R_BS, sKX, 1024)])
            G.append([m0(6144), ld(vW, R_W1A, sKW, 0)]); G.append([ld(vW + 1, R_W1A, sKW, 1024)])
        else:
            for t in range(4):
                G.append([m0(2048 * t), st(4 * (i - 8) + t), mul(), ld(vW, R_W1B, sKW, 0)])
                G.append([ld(vW + 1, R_W1B, sKW, 1024)])
        return G, G[-1][-1]

    def fb(self, n): return ACC_F2 + 8 * (n & 3) if n < 32 else FR - 4 + 4 * (n & 3)
    def frag_reads(self, n):
        b = self.fb(n)
        if n < 32:
            i, p = divmod(n, 4); slot = i % 3
            hi = 12 if slot == 2 else 0; o = SLOT if slot == 1 else 0
            S = I(f"ds_read_b128 {vr(b)}, v{RS+hi+p} offset:{o}", "ds")
            A0 = I(f"ds_read_b128 {ar(8*n)}, v{RA+hi+p} offset:{o}", "ds")
            A1 = I(f"ds_read_b128 {ar(8*n+4)}, v{RA+hi+p} offset:{o+WBLK}", "ds")
            F = [I(f"ds_read_b64_tr_b16 {vr(b+4+2*k, 2)}, v{RF+hi+p} offset:{o + 6144 + k*512}", "ds") for k in range(2)]
            return [S, A0, A1] + F
        if n >= 64: return []
        i, p = divmod(n - 32, 4)
        hi = 12 if i < 4 else 0
        return [I(f"ds_read_b64_tr_b16 {vr(b+4+2*k, 2)}, v{RF+hi+p} offset:{2048*(i&3) + k*512}", "ds") for k in range(2)]

    def prologue(self, q):
        c = self.c
        q.e("s_cmp_ge_u32 s2, 256", "s_cbranch_scc1 L_end")
        q.e("s_load_dwordx16 s[16:31], s[0:1], 0", "s_load_dwordx4 s[36:39], s[0:1], 80", "s_load_dwordx2 s[44:45], s[0:1], 112",
            "s_load_dwordx2 s[32:33], s[0:1], 64", "s_load_dwordx2 s[40:41], s[0:1], 96")
        q.e("s_getpc_b64 s[64:65]", "L_pc:", "s_and_b32 s3, s2, 0xf8", "s_lshl_b32 s3, s3, 7", "v_lshlrev_b32 v9, 2, v0", "v_add_u32 v9, s3, v9",
            "v_min_u32 v9, L_end-L_pc, v9")
        q.e("global_load_dword v10, v9, s[64:65]")
        if c.ts: q.e("s_memtime s[42:43]", "s_memrealtime s[46:47]")
        if c.spin_to: q.e("s_memrealtime s[42:43]")
        q.e(f"v_and_b32 v{vL}, 63, v0", "v_lshrrev_b32 v2, 6, v0", f"v_readfirstlane_b32 s{sW}, v2")
        O = [pack_order(o) for o in ORDERS[c.order]]
        q.e("s_bitcmp1_b32 s2, 1", f"s_mov_b32 s{sT0}, {O[0]:#x}", f"s_cmov_b32 s{sT0}, {O[1]:#x}", f"s_mov_b32 s{sORD}, {O[2]:#x}", f"s_cmov_b32 s{sORD}, {O[3]:#x}",
            "s_bitcmp0_b32 s2, 2", f"s_cmov_b32 s{sORD}, s{sT0}")
        q.e(f"s_and_b32 s{sXB}, s2, 1", f"s_and_b32 s{sT0}, s2, 6", f"s_lshr_b32 s{sT2}, s2, 6",
            f"s_lshl1_add_u32 s{sC}, s{sT0}, s{sT2}", f"s_bfe_u32 s{sGL}, s2, 0x30003", f"s_lshl3_add_u32 s{sG}, s{sXB}, s{sGL}")
        q.e(f"s_and_b32 s{sT2}, s{sT2}, 1", f"s_lshl1_add_u32 s{sT0}, s{sGL}, s{sT2}", f"s_add_u32 s{sT1}, s{sGL}, 6",
            f"s_cmp_lt_u32 s{sGL}, 6", f"s_cselect_b32 s{sU0}, s{sT0}, s{sT1}", f"s_cselect_b32 s{R_W1B+2}, {512*3584}, 0", f"s_xor_b32 s{sU1}, s{sU0}, 1",
            f"s_lshr_b32 s{sWM}, s{sW}, 1", f"s_and_b32 s{sWN}, s{sW}, 1", f"s_lshl_b32 s{sLB}, s{sW}, 13")
        q.e(f"v_lshrrev_b32 v2, 3, v{vL}", f"v_and_b32 v3, 7, v{vL}", f"v_lshrrev_b32 v4, 4, v{vL}")
        q.e("v_xor_b32 v5, v3, v4", "v_lshlrev_b32 v5, 4, v5")
        q.e(f"v_lshrrev_b32 v7, 5, v{vL}", "v_and_b32 v8, 3, v2", "v_lshl_add_u32 v7, v7, 4, v8",
            f"s_lshl2_add_u32 s{sT0}, s{sC}, s{sW}", f"s_lshl_b32 s{sT0}, s{sT0}, 5",
            f"v_add_u32 v7, s{sT0}, v7", f"v_lshl_add_u32 v{vX}, v7, 10, v5",
            f"v_xor_b32 v{vX+1}, 64, v{vX}", f"v_add_u32 v{vX+1}, {3072}, v{vX+1}",
            f"v_add_u32 v{vX+2}, {6144}, v{vX}", f"v_add_u32 v{vX+3}, {6144}, v{vX+1}")
        q.e(f"s_lshl1_add_u32 s{sK4}, s{sG}, s{sWN}", f"s_lshl_b32 s{sK4}, s{sK4}, 4",
            f"v_add_u32 v7, s{sK4}, v2", f"v_lshl_add_u32 v{vB}, v7, 10, v5",
            f"v_xor_b32 v{vB+1}, 64, v{vB}", f"v_add_u32 v{vB+1}, {7168}, v{vB+1}")
        q.e(f"s_lshl_b32 s{sT0}, s{sW}, 4", f"v_add_u32 v7, s{sT0}, v2", "v_mul_u32_u24 v7, 3584, v7",
            "v_and_b32 v8, 1, v4", "v_lshlrev_b32 v8, 2, v8", "v_xor_b32 v8, v8, v3", f"v_lshl_add_u32 v{vW}, v8, 4, v7",
            f"v_add_u32 v{vW+1}, {8*3584-1024}, v{vW}",
            f"s_mul_i32 s{sT0}, s{sXB}, 14", f"s_add_u32 s{sT1}, s{sT0}, s{sU1}", f"s_add_u32 s{sT0}, s{sT0}, s{sU0}",
            f"s_lshl_b32 s{sT0}, s{sT0}, 7", f"s_lshl_b32 s{sT1}, s{sT1}, 7",
            f"s_sub_u32 s{R_W1A+2}, {512*3584}, s{sT0}", f"s_max_u32 s{R_W1B+2}, s{R_W1B+2}, s{sT1}", f"s_sub_u32 s{R_W1B+2}, s{R_W1B+2}, s{sT1}")
        for r, size in ((R_X, 2048*1024), (R_BS, 512*1024)): q.e(f"s_mov_b32 s{r+2}, {size}")
        for r in (R_X, R_BS, R_W1A, R_W1B): q.e(f"s_mov_b32 s{r+3}, 0x20000")
        q.e(f"v_lshl_add_u32 v{vC2}, v2, 10, v5", "v_lshlrev_b32 v7, 10, v2", f"v_lshl_add_u32 v{vW2}, v8, 4, v7")
        q.e(f"v_lshlrev_b32 v33, 4, v{vL}", f"v_and_b32 v6, 15, v{vL}", f"v_add_lshl_u32 v11, v6, s{sK4}, 1", "v_mov_b32 v15, 0")
        q.e(f"s_lshl1_add_u32 s{sT2}, s{sC}, s{sWM}", f"s_lshl4_add_u32 s{sT2}, s{sT2}, s{sG}", f"s_lshl1_add_u32 s{sT2}, s{sT2}, s{sWN}",
            f"s_lshl_b32 s{sPOLL}, s{sT2}, 11")
        G0, l0 = self.stage_dma(0)
        q.e(*G0[0][:-1])
        q.wds_all()
        if c.ts: q.e("v_mov_b32 v255, s46")
        q.e(f"s_mov_b32 s{R_X}, s{P_X}", f"s_and_b32 s{R_X+1}, s{P_X+1}, 0xffff")
        q.e(G0[0][-1]); [q.e(*g) for g in G0[1:4]]
        q.e(f"s_cmp_eq_u32 s{sWM}, 0", f"s_cselect_b32 s{R_BS}, s{P_BRE}, s{P_BIM}", f"s_cselect_b32 s{R_BS+1}, s{P_BRE+1}, s{P_BIM+1}", f"s_and_b32 s{R_BS+1}, s{R_BS+1}, 0xffff")
        [q.e(*g) for g in G0[4:6]]
        q.e(f"s_and_b32 s{P_W1+1}, s{P_W1+1}, 0xffff", f"s_add_u32 s{R_W1A}, s{P_W1}, s{sT0}", f"s_addc_u32 s{R_W1A+1}, s{P_W1+1}, 0")
        [q.e(*g) for g in G0[6:8]]
        q.e(f"s_add_u32 s{R_W1B}, s{P_W1}, s{sT1}", f"s_addc_u32 s{R_W1B+1}, s{P_W1+1}, 0")
        last = [l0]
        self.strows = [I(f"buffer_load_dwordx4 {vr(40)}, v33, {srd(R_X)}, s{sPOLL} offen", "vm"), I(f"buffer_load_dwordx4 {vr(44)}, v33, {srd(R_X)}, s{sPOLL} offen offset:1024", "vm")]
        if c.strow_at == -2: q.e(*self.strows)
        self.small0 = q.e(f"global_load_dword v16, v15, s[{P_WS}:{P_WS+1}] sc1")
        q.e(f"global_load_ushort v12, v11, s[{P_LRE}:{P_LRE+1}]", f"global_load_ushort v13, v11, s[{P_LIM}:{P_LIM+1}]")
        self.small = q.e(f"global_load_ushort v14, v11, s[{P_LDT}:{P_LDT+1}]")
        q.e(f"s_lshl_b32 s{sT1}, s{sGL}, 7", f"v_lshl_add_u32 v35, v6, 3, s{sT1}")
        self.dsk = q.e(f"global_load_dwordx2 {vr(38,2)}, v35, s[{P_DSK}:{P_DSK+1}]")
        f = Seq()
        f.e(f"v_and_b32 v2, 31, v{vL}", f"v_lshrrev_b32 v3, 5, v{vL}")
        f.e("v_bfe_u32 v7, v2, 1, 3", "v_xor_b32 v7, v7, v3", "v_lshlrev_b32 v7, 4, v7",
            f"v_lshl_add_u32 v{vCR}, v2, 7, v7",
            f"s_lshl_b32 s{sT1}, s{sWM}, 5", f"v_xor_b32 v7, s{sT1}, v7", f"v_xor_b32 v5, s{sT1}, v{vCR}",
            f"s_lshl_b32 s{sT1}, s{sWM}, 14", f"v_add_u32 v{RA}, s{sT1}, v5")
        f.e("v_lshl_add_u32 v7, v6, 7, v7", "v_and_b32 v8, 16, v2", "v_lshl_add_u32 v7, v8, 10, v7",
            f"s_lshl_b32 s{sT1}, s{sWN}, 13", f"s_add_u32 s{sT1}, s{sT1}, 4096", f"v_add_u32 v{RS}, s{sT1}, v7")
        for p in range(1, 4): f.e(f"v_xor_b32 v{RA+p}, {32*p}, v{RA}", f"v_xor_b32 v{RS+p}, {32*p}, v{RS}")
        f.e("v_lshrrev_b32 v9, 2, v6", "v_lshlrev_b32 v5, 7, v9", "v_and_b32 v7, 3, v6", "v_lshl_add_u32 v5, v7, 3, v5", "v_lshl_add_u32 v5, v8, 1, v5",
            "v_and_b32 v7, 8, v6", "v_lshl_add_u32 v5, v7, 3, v5",
            f"v_lshl_add_u32 v{vTR}, v3, 9, v5",
            "v_lshl_add_u32 v5, v3, 10, v5", f"s_lshl_b32 s{sT1}, s{sWN}, 6", f"s_lshl_b32 s{sT0}, s{sWM}, 13", f"s_or_b32 s{sT1}, s{sT1}, s{sT0}",
            f"v_xor_b32 v{RF}, s{sT1}, v5")
        for p in range(1, 4): f.e(f"v_xor_b32 v{RF+p}, {WBLK*p}, v{RF}")
        f.e(f"s_mov_b32 s{sONES}, 0x3f803f80", f"v_mov_b32 v{CS}, 0", f"v_mov_b32 v{CS+1}, 0")
        for k in range(4): f.e(f"v_mov_b32 v{48+k}, 0")
        for k in range(12): f.e(f"v_add_u32 v{RA+12+k}, {2*SLOT}, v{RA+k}")
        mk_srd(f, R_SY, P_WS, WS_END); mk_srd(f, R_W2, P_W2, 1792*1024); mk_srd(f, R_OUT, P_OUT, 2048*2048)
        f.e(f"s_and_b32 s{P_CRE+1}, s{P_CRE+1}, 0xffff", f"s_and_b32 s{P_CIM+1}, s{P_CIM+1}, 0xffff",
            f"s_bitcmp1_b32 s{sGL}, {0 if c.hrot else 5}", f"s_cselect_b64 s[{R_CRE}:{R_CRE+1}], s[{P_CIM}:{P_CIM+1}], s[{P_CRE}:{P_CRE+1}]",
            f"s_cselect_b64 s[{R_CIM}:{R_CIM+1}], s[{P_CRE}:{P_CRE+1}], s[{P_CIM}:{P_CIM+1}]")
        for r in (R_CRE, R_CIM): f.e(f"s_mov_b32 s{r+2}, {512*1024}", f"s_mov_b32 s{r+3}, 0x20000")
        q.extend(f)
        q.e(f"s_mul_i32 s{sT0}, s2, 56", f"s_mul_i32 s{sT1}, s{sWN}, 28", f"s_add_u32 s{sT0}, s{sT0}, s{sT1}", f"s_lshl_b32 s{sT1}, s2, 4", f"s_min_u32 s{sT1}, s{sT1}, {4096-28}",
            f"s_cmp_eq_u32 s{sWN}, 0", f"s_cselect_b32 s70, s{P_CRE}, s{P_CIM}", f"s_cselect_b32 s71, s{P_CRE+1}, s{P_CIM+1}",
            f"s_cmp_eq_u32 s{sWM}, 0", f"s_cselect_b32 s{sT0}, s{sT0}, s{sT1}",
            f"s_cselect_b32 s70, s{P_W2}, s70", f"s_cselect_b32 s71, s{P_W2+1}, s71",
            f"v_min_u32 v7, {c.pf_n - 1}, v{vL}", f"v_add_lshl_u32 v{vPF}, v7, s{sT0}, 7")
        f = Seq(); self.consts_early(f)
        G, l = self.stage_dma(1); last.append(l)
        q.extend(merge(f, G))
        if c.strow_at == -1: q.e(*self.strows)
        return last

    def consts_early(self, f):
        f.e("v_and_b32 v5, 1, v4", "v_lshl_add_u32 v32, v5, 1, v3")
        f.e(f"s_lshl_b32 s{sT2}, s{sT2}, 5", f"s_add_u32 s{sT2}, s{sT2}, {WS_STAT}", f"v_lshl_add_u32 v7, v3, 4, s{sT2}", f"v_lshl_add_u32 v{vSTS}, v2, 25, v7")
        f.e(f"s_lshl1_add_u32 s{sT0}, s{sC}, s{sXB}", f"s_lshl_b32 s{sT1}, s{sT0}, 13", f"s_add_u32 s{sT1}, s{sT1}, {WS_FLAG}",
            f"s_lshl_b32 s{sT2}, s{sW}, 3", f"s_mul_i32 s{sT0}, s{sWM}, 3", f"s_add_u32 s{sT0}, s{sT0}, s{sWN}", f"s_lshl_b32 s{sT0}, s{sT0}, 2", f"s_sub_u32 s{sT0}, s{sT0}, 8",
            f"v_mov_b32 v7, s{sT2}", f"v_mov_b32 v8, s{sT0}", f"v_cmp_gt_u32 vcc, 8, v{vL}", "v_cndmask_b32 v7, v8, v7, vcc",
            f"v_add_u32 v7, v7, v{vL}", f"v_lshl_add_u32 v7, v7, 8, s{sT1}", "v_lshl_add_u32 v36, v4, 28, v7",
            f"s_lshl2_add_u32 s{sT2}, s{sGL}, s{sW}", f"s_lshl_b32 s{sT2}, s{sT2}, 8", f"s_add_u32 s{sT1}, s{sT1}, s{sT2}",
            f"v_lshl_add_u32 v7, v2, 2, s{sT1}", f"v_lshl_add_u32 v{vFL}, v3, 30, v7", f"v_lshl_add_u32 v{vFP}, v3, 7, v7")
        f.e(f"s_lshl4_add_u32 s{sT0}, s{sC}, s{sG}", f"s_lshl1_add_u32 s{sT0}, s{sT0}, s{sWN}", f"s_lshl_b32 s{sT0}, s{sT0}, 9", f"s_add_u32 s{sT0}, s{sT0}, {WS_CS}",
            f"v_lshl_add_u32 v7, v{vL}, 3, s{sT0}", f"v_xor_b32 v{vGC}, 0x4000, v7", f"s_lshl_b32 s{sT2}, s{sWM}, 30", f"v_add_u32 v{vCSS}, s{sT2}, v7")
        f.e(f"s_lshl_b32 s{sT0}, s{sWN}, 8", f"v_lshl_add_u32 v8, v6, 4, s{sT0}",
            f"s_lshl1_add_u32 s{sNV}, s{sC}, s{sWM}", f"s_sub_u32 s{sT0}, 31, s{sNV}", f"s_lshl_b32 s{sT0}, s{sT0}, 9",
            f"s_lshl_b32 s{sT1}, s{sG}, 14", f"s_add_u32 s{sT1}, s{sT1}, {WS_AGG}", f"s_add_u32 s{sT1}, s{sT1}, s{sT0}",
            f"v_add_u32 v7, s{sT1}, v8", f"v_lshl_add_u32 v{vAGS}, v4, 28, v7",
            f"s_add_u32 s{sT0}, s{sT0}, 512", "v_sub_u32 v7, 3, v4", "v_lshl_add_u32 v7, v7, 12, v8", f"v_add_u32 v{vLBK}, s{sT0}, v7",
            f"s_lshl_b32 s{sNV}, s{sNV}, 4")

    def consts_late(self, f):
        f.e(f"v_and_b32 v7, 4, v{vL}", f"v_and_b32 v8, 35, v{vL}", "v_lshl_add_u32 v7, v7, 2, v8", f"v_and_b32 v8, 24, v{vL}", "v_lshrrev_b32 v8, 1, v8",
            "v_add_u32 v37, v7, v8")
        f.e(f"s_lshl1_add_u32 s{sT1}, s{sC}, s{sWM}", f"s_lshl_b32 s{sT1}, s{sT1}, 10", f"s_add_u32 s{sT1}, s{sT1}, {WS_STAT}",
            f"v_lshl_add_u32 v{vGS}, v37, 4, s{sT1}", "v_lshl_add_u32 v7, v32, 4, v6", f"v_lshl_add_u32 v{vGR}, v7, 4, s{sT1}")
        f.e(f"s_lshl_b32 s{sT0}, s{sW}, 9", f"s_add_u32 s{sT0}, s{sT0}, {L_CS}", f"v_lshl_add_u32 v{vGC+1}, v{vL}, 3, s{sT0}", f"v_xor_b32 v{vGC+2}, 1024, v{vGC+1}")
        f.e(f"s_lshl1_add_u32 s{sT0}, s{sC}, s{sXB}", f"s_lshl1_add_u32 s{sT1}, s{sT0}, s{sWM}", f"s_mul_i32 s{sT1}, s{sT1}, {HBLK}", f"s_add_u32 s{sT1}, s{sT1}, {WS_H}",
            f"s_lshl1_add_u32 s{sT0}, s{sT0}, s{sXB}", f"s_mul_i32 s{sB1}, s{sT0}, {HBLK}", f"s_xor_b32 s{sT0}, s{sT0}, 1", f"s_mul_i32 s{sB0}, s{sT0}, {HBLK}",
            f"s_add_u32 s{sB0}, s{sB0}, {WS_H}", f"s_add_u32 s{sB1}, s{sB1}, {WS_H}",
            f"s_lshl_b32 s{sHS}, s{sW}, 14", f"s_add_u32 s{sHS}, s{sHS}, {56*2048}")
        f.e(f"s_lshl_b32 s{sT0}, s{sWN}, 12", f"s_add_u32 s{sT0}, s{sT0}, s{sT1}", f"s_lshl_b32 s{sT2}, s{sU0}, 13", f"s_add_u32 s{sT2}, s{sT2}, s{sT0}",
            f"v_add_u32 v{vHF1}, s{sT2}, v33", f"s_lshl_b32 s{sT2}, s{sU1}, 13", f"s_add_u32 s{sT2}, s{sT2}, s{sT0}",
            f"s_min_u32 s{sT0}, s{R_W1B+2}, 1", f"s_sub_u32 s{sT0}, 1, s{sT0}", f"s_lshl_b32 s{sT0}, s{sT0}, 30", f"s_add_u32 s{sT2}, s{sT2}, s{sT0}",
            f"v_add_u32 v{vHF2}, s{sT2}, v33")
        f.e(f"s_lshr_b32 s{sT0}, s{sGL}, 1", f"s_and_b32 s{sT2}, s{sGL}, 1", f"s_lshl2_add_u32 s{sT0}, s{sT0}, s{sT2}", f"s_lshl1_add_u32 s{sT0}, s{sT0}, s{sWN}",
            f"s_add_u32 s{sT0}, s{sT0}, 56", f"s_lshl_b32 s{sT0}, s{sT0}, 11", f"s_add_u32 s{sT0}, s{sT0}, s{sT1}", f"v_add_u32 v{vHS}, s{sT0}, v33")
        f.e(f"s_and_b32 s{sT2}, s{sC}, 1", f"s_lshl2_add_u32 s{sT0}, s{sW}, s{sT2}", f"s_add_u32 s{sT1}, s{sT0}, 2",
            f"s_min_u32 s{sT0}, s{sT0}, 12", f"s_min_u32 s{sT1}, s{sT1}, 13", f"s_lshl_b32 s{UO[0]}, s{sT0}, 13", f"s_lshl_b32 s{UO[1]}, s{sT1}, 13",
            f"s_xor_b32 s{sT2}, s{sT2}, 1", f"s_mul_i32 s{sT0}, s{sWM}, 6", f"s_add_u32 s{sT0}, s{sT0}, s{sT2}",
            f"s_lshl2_add_u32 s{sT1}, s{sWN}, s{sT0}", f"s_lshl_b32 s{UO[2]}, s{sT1}, 13",
            f"s_add_u32 s{sT0}, s{sT0}, 2", f"s_lshl1_add_u32 s{sT0}, s{sT0}, s{sWN}", f"s_lshl_b32 s{UO[5]}, s{sT0}, 12")
        if self.c.hrot:
            f.e(f"s_and_b32 s{sT0}, s{sGL}, 1", f"s_sub_u32 s{sT0}, 0, s{sT0}", f"s_xor_b32 s{sT1}, s{UO[0]}, s{UO[1]}", f"s_and_b32 s{sT1}, s{sT1}, s{sT0}",
                f"s_xor_b32 s{UO[0]}, s{UO[0]}, s{sT1}", f"s_xor_b32 s{UO[1]}, s{UO[1]}, s{sT1}",
                f"s_and_b32 s{sT0}, s{sT0}, 8192", f"s_xor_b32 s{sHS}, s{sHS}, s{sT0}",
                f"s_and_b32 s{sT0}, s{sGL}, 2", f"s_lshl_b32 s{sT1}, s{sT0}, 11", f"s_lshl_b32 s{sT0}, s{sT0}, 5", f"v_xor_b32 v{vC2}, s{sT0}, v{vC2}")
            for r in (UO[0], UO[1], UO[2], sHS): f.e(f"s_xor_b32 s{r}, s{r}, s{sT1}")
        f.e(f"s_mul_i32 s{sLE}, s{sW}, {SPW}", f"s_add_u32 s{sLE}, s{sLE}, {L_SP}",
            f"s_mul_i32 s{sW2O}, s{sXB}, {896*1024}", f"s_lshl_b32 s{sT1}, s{sGL}, 7", f"s_add_u32 s{sW2O}, s{sW2O}, s{sT1}",
            f"s_lshl2_add_u32 s{sCO}, s{sXB}, s{sW}", f"s_lshl_b32 s{sCO}, s{sCO}, 7", f"s_lshl_b32 s{sT0}, s{sGL}, 16", f"s_add_u32 s{sCO}, s{sCO}, s{sT0}")
        f.e(f"v_xor_b32 v{vC2+1}, 64, v{vC2}", f"v_add_u32 v{vC2+1}, 7168, v{vC2+1}", f"v_add_u32 v{vC2+2}, 14336, v{vC2}", f"v_add_u32 v{vC2+3}, 14336, v{vC2+1}")
        for j in range(1, 4): f.e(f"v_add_u32 v{vW2+j}, {7168*j}, v{vW2}")
        f.e(f"s_lshl1_add_u32 s{sT0}, s{sC}, s{sXB}", f"s_lshl2_add_u32 s{sT0}, s{sT0}, s{sW}", f"s_lshl_b32 s{sT0}, s{sT0}, 4", f"v_add_u32 v7, s{sT0}, v4",
            "v_lshlrev_b32 v34, 4, v7", f"v_add_u32 v34, {WS_STAT}, v34", "v_lshl_add_u32 v18, v7, 10, v35", "v_lshlrev_b32 v19, 1, v18")
        f.e(f"s_lshl4_add_u32 s{sT0}, s{sC}, s{sG}", f"s_lshl2_add_u32 s{sT0}, s{sT0}, s{sW}", f"s_lshl_b32 s{sT0}, s{sT0}, 12", f"s_add_u32 s{sT0}, s{sT0}, {WS_XCH}",
            f"v_add_u32 v{vXS}, s{sT0}, v33", f"v_xor_b32 v{vXR}, 0x20000, v{vXS}")
        f.e("v_and_b32 v7, 7, v2", "v_xor_b32 v7, v7, v3", "v_lshlrev_b32 v7, 4, v7", "v_and_b32 v8, 31, v37", "v_lshl_add_u32 v7, v8, 8, v7",
            f"s_lshl_b32 s{sT0}, s{sW}, 14", f"v_add_u32 v{vRW}, s{sT0}, v7")
        for g4 in range(1, 4): f.e(f"v_xor_b32 v{vRW+g4}, {32*g4}, v{vRW}")
        f.e("v_xor_b32 v7, v6, v4", "v_lshlrev_b32 v7, 4, v7", "v_lshl_add_u32 v7, v4, 8, v7", f"s_lshl_b32 s{sT0}, s{sW}, 12", f"s_lshl_b32 s{sT1}, s{sWN}, 6",
            f"s_or_b32 s{sT0}, s{sT0}, s{sT1}", f"v_xor_b32 v{vRR}, s{sT0}, v7")
        f.e("v_and_b32 v7, 2, v6", "v_and_b32 v8, 1, v6", "v_lshl_add_u32 v7, v7, 1, v8", "v_and_b32 v8, 4, v6", "v_lshrrev_b32 v8, 1, v8", "v_or_b32 v7, v7, v8",
            "v_lshlrev_b32 v8, 1, v32", "v_xor_b32 v7, v7, v8", "v_lshlrev_b32 v7, 4, v7", "v_lshl_add_u32 v7, v6, 7, v7",
            f"s_add_u32 s{sT0}, s{sLE}, 8192", f"v_add_u32 v{vTW}, s{sT0}, v7", f"v_xor_b32 v{vTW+1}, 16, v{vTW}")
        f.e("v_and_b32 v5, 1, v6", "v_and_b32 v8, 16, v2", "v_lshl_add_u32 v5, v5, 5, v8", "v_and_b32 v8, 2, v6", "v_lshl_add_u32 v5, v8, 2, v5")
        f.e("v_and_b32 v7, 2, v9", "v_and_b32 v8, 1, v9", "v_lshl_add_u32 v7, v7, 1, v8", "v_lshlrev_b32 v7, 4, v7", "v_xor_b32 v7, v7, v5",
            "v_lshl_add_u32 v8, v3, 3, v9", "v_lshl_add_u32 v7, v8, 7, v7", f"v_add_u32 v{vTD}, s{sT0}, v7")

    def ssm_consts(self, q):
        q.wvm(self.small)
        q.e("v_lshlrev_b32 v14, 16, v14", "v_lshlrev_b32 v12, 16, v12", f"v_mul_f32 v14, {fh(1.4426950408889634)}, v14", "v_lshlrev_b32 v13, 16, v13",
            "v_exp_f32 v14, v14", "v_lshlrev_b32 v3, 4, v32", "v_cvt_pk_bf16_f32 v14, v14, v14", "v_lshlrev_b32 v14, 16, v14",
            "v_mul_f32 v17, v14, v12", "v_mul_f32 v15, v14, v13",
            f"v_mul_f32 v17, {fh(1.4426950408889634)}, v17", f"v_mul_f32 v15, {fh(0.15915494309189535)}, v15",
            "v_cvt_f32_u32 v3, v3", "v_sub_u32 v4, 3, v4", "v_lshlrev_b32 v4, 9, v4", "v_cvt_f32_u32 v4, v4")
        def cexp(d, n):
            q.e(f"v_mul_f32 v6, {n}, v15", f"v_mul_f32 v5, {n}, v17", "v_fract_f32 v6, v6", "v_exp_f32 v5, v5", f"v_cos_f32 v{d}, v6", f"v_sin_f32 v{d+1}, v6",
                f"v_mul_f32 v{d}, v{d}, v5", f"v_mul_f32 v{d+1}, v{d+1}, v5")
        cexp(20, "1.0"); cexp(22, fh(16.0)); cexp(24, fh(64.0)); cexp(26, "v3"); cexp(28, "v4")
        q.e("v_mul_f32 v6, v12, v12", "v_fmac_f32 v6, v13, v13", "v_rcp_f32 v6, v6", "v_add_f32 v5, -1.0, v20",
            "v_mul_f32 v30, v5, v12", "v_fmac_f32 v30, v21, v13", "v_mul_f32 v31, v21, v12", "v_fma_f32 v31, -v5, v13, v31",
            "v_add_f32 v6, v6, v6", "v_mul_f32 v30, v30, v6", "v_mul_f32 v31, v31, v6")

    def check(self, name, loads, test):
        q = Seq()
        q.wvm(loads[-1])
        q.e(*test)
        q.e(f"s_cbranch_scc1 L_{name}_slow")
        q.label(f"L_{name}_ok")
        o = self.ool
        o.label(f"L_{name}_slow")
        o.e(f"s_mov_b32 s{sPOLL}, 0x40000")
        o.label(f"L_{name}_loop")
        o.e(f"s_sleep {self.c.poll_sleep}")
        for l in loads: o.append(I(l.t, "o"))
        o.e("s_waitcnt vmcnt(0)", f"s_sub_u32 s{sPOLL}, s{sPOLL}, 1", f"s_cbranch_scc1 L_{name}_ok")
        o.e(*test)
        o.e(f"s_cbranch_scc1 L_{name}_loop", f"s_branch L_{name}_ok")
        return list(q)
    def tags(self, regs, lo=False):
        if len(regs) == 1: return [f"v_cmp_ne_u32 vcc, s{sTAG}, v{regs[0]}", f"s_and_b32 s{sM}, vcc_lo, {lo}" if lo else "s_cmp_lg_u64 vcc, 0"]
        t = [f"v_cmp_ne_u32 s[{sM}:{sM+1}], s{sTAG}, v{regs[0]}"]
        for r in regs[1:]: t += [f"v_cmp_ne_u32 vcc, s{sTAG}, v{r}", f"s_or_b64 s[{sM}:{sM+1}], s[{sM}:{sM+1}], vcc"]
        return t

    def cmul_acc(self, q, d, a, b, c, c2=None):
        c2 = c + 1 if c2 is None else c2
        q.e(f"v_fma_f32 v{d}, v{a}, v{b}, v{c}", f"v_fma_f32 v{d+1}, v{a}, v{b+1}, v{c2}",
            f"v_fma_f32 v{d}, -v{a+1}, v{b+1}, v{d}", f"v_fma_f32 v{d+1}, v{a+1}, v{b}, v{d+1}")
    def cmul(self, q, d, a, b):
        q.e(f"v_mul_f32 v{d}, v{a}, v{b}", f"v_mul_f32 v{d+1}, v{a}, v{b+1}",
            f"v_fma_f32 v{d}, -v{a+1}, v{b+1}, v{d}", f"v_fma_f32 v{d+1}, v{a+1}, v{b}, v{d+1}")

    def w2_area(self, pc):
        return {0: (sLE, 0), 5: (sLE, 8192), 1: (sLB, SLOT), 2: (sLB, 2*SLOT), 3: (sLE, 0), 4: (sLB, SLOT)}[pc]
    def w2_dma(self, pc, run=4):
        sb, ao = self.w2_area(pc)
        G = []
        for k in range(4 if pc == 5 else 8):
            g = []; j = k % run
            if pc in UO:
                if j == 0:
                    g.append(I(f"s_add_u32 m0, s{sb}, {ao + 1024*k}"))
                    if k: g += [I(f"s_xor_b32 s{sKX}, s{UO[pc]}, {k*1024}"), I(f"s_lshl3_add_u32 s{sKX}, s{sKX}, s{sW2O}")]
                    else: g.append(I(f"s_lshl3_add_u32 s{sKX}, s{UO[pc]}, s{sW2O}"))
                g.append(I(f"buffer_load_dwordx4 v{vW2+j}, {srd(R_W2)}, s{sKX} offen offset:{1024*j} lds", "vm"))
            else:
                if j == 0: g += [I(f"s_add_u32 m0, s{sb}, {ao + 1024*k}"), I(f"s_add_u32 s{sKX}, s{sCO}, {8*k*1024}")]
                g.append(I(f"buffer_load_dwordx4 v{vC2+j}, {srd(R_CRE if pc == 3 else R_CIM)}, s{sKX} offen offset:{1024*j} lds", "vm"))
            G.append(g)
        self.w2_last[pc] = G[-1][-1]
        return G
    def w2_reads(self, pc):
        sb, ao = self.w2_area(pc)
        L = Seq()
        if pc in UO:
            L.e(f"v_add_u32 v{vTA}, s{sb}, v{vTR}")
            if ao >= 2 * SLOT: L.e(f"v_add_u32 v{vTA}, {ao}, v{vTA}"); ao = 0
            L.e(f"v_xor_b32 v{vTA+1}, 64, v{vTA}")
            L.wvm(self.w2_last[pc])
            j0 = {0: 0, 1: 4, 2: 8, 5: 12}[pc]
            for k in range(2 if pc == 5 else 4):
                for nu in range(2):
                    for e in range(2):
                        a = 8 * (j0 + k) + 4 * nu + 2 * e
                        r = L.e(f"ds_read_b64_tr_b16 {ar(a,2)}, v{vTA+nu} offset:{ao + 2048*k + 1024*e}")
        else:
            L.e(f"v_add_u32 v{vTA}, s{sb}, v{vCR}")
            for k in range(1, 4): L.e(f"v_xor_b32 v{vTA+k}, {32*k}, v{vTA}")
            L.wvm(self.w2_last[pc])
            j0 = 14 if pc == 3 else 18
            for k in range(4):
                for nu in range(2):
                    r = L.e(f"ds_read_b128 {ar(8*(j0+k)+4*nu)}, v{vTA+k} offset:{ao + 4096*nu}")
        self.w2_rd[pc] = r
        return groups(L)
    def after_reads(self, pc, G):
        w = Seq(); w.wds(self.w2_rd[pc])
        return [list(w) + G[0]] + G[1:]

    def ffn_epi(self, a, voff):
        f = Seq()
        for t in range(2):
            b = a + 16 * t
            for j in range(8): f.e(f"v_pk_mul_f32 {vr(b+2*j,2)}, {vr(b+2*j,2)}, {vr(42,2)} op_sel:[0,{t}] op_sel_hi:[1,{t}]")
            for j in range(8): f.e(f"v_cvt_pk_bf16_f32 v{b+j}, v{b+2*j}, v{b+2*j+1}")
            for j in range(8): f.e(f"v_pk_max_i16 v{b+j}, v{b+j}, 0")
        st = [I(f"buffer_store_dwordx4 {vr(a+16*t+4*al)}, v{voff}, {srd(R_SY)}, 0 offen offset:{2048*al + 1024*t} sc1", "vm") for t in range(2) for al in range(2)]
        return f, st

    def split3(self, s, src, d):
        s.e(f"v_and_b32 v240, 0xffff0000, v{src}", f"v_sub_f32 v240, v{src}, v240",
            f"v_perm_b32 v{d}, v240, v{src}, s{sONES}", "v_and_b32 v241, 0xffff0000, v240", "v_sub_f32 v241, v240, v241",
            f"v_cvt_pk_bf16_f32 v{d+1}, v241, 0")

    def flag_store(self, kind, after):
        q = Seq(); q.wvm(after)
        q.e(f"buffer_store_dword v251, v{vFL}, {srd(R_SY)}, 0 offen offset:{128*kind} sc1")
        return list(q)

    def phase1(self, q, last):
        c = self.c
        RE, IM = ACC_S, ACC_S + 16
        MF8 = "v_mfma_f32_32x32x8_bf16"; MF = "v_mfma_f32_32x32x16_bf16"
        MFR = 200
        q.wvm(last[0]); q.e("s_barrier"); self.stamp(q)
        D = 2; D2 = 3
        RD = {}
        for n in range(D): RD[n] = self.frag_reads(n); q.e(*RD[n])
        G, l = self.stage_dma(2); last.append(l)
        dma = Stream(G, every=1)
        s = Seq()
        s.e(f"v_readfirstlane_b32 s{sTAG}, v16", "v_permlane32_swap_b32 v48, v49", "v_permlane32_swap_b32 v50, v51", f"s_add_u32 s{sTAG}, s{sTAG}, {hex(TAGK)}",
            "v_add_f32 v48, v48, v49", "v_add_f32 v50, v50, v51", f"s_or_b32 s{sTAG}, s{sTAG}, 1", f"v_mov_b32 v54, s{sTAG}",
            "v_permlane16_swap_b32 v48, v50", "v_add_f32 v48, v48, v50", f"v_mov_b32 v251, s{sTAG}")
        for k in (8, 4, 2, 1): s.e(f"v_add_f32_dpp v48, v48, v48 row_ror:{k} row_mask:0xf bank_mask:0xf")
        s.e("v_mov_b32 v49, v48", "v_permlane16_swap_b32 v48, v49",
            f"v_mul_f32 v48, {fh(1/512)}, v48", f"v_mul_f32 v49, {fh(1/512)}, v49", "v_fma_f32 v49, -v48, v48, v49", "v_max_f32 v49, 0, v49",
            "v_cvt_pk_bf16_f32 v49, v49, v49", "v_lshlrev_b32 v49, 16, v49", f"v_add_f32 v49, {fh(1e-5)}, v49",
            "v_cvt_pk_bf16_f32 v49, v49, v49", "v_lshlrev_b32 v49, 16, v49", "v_sqrt_f32 v49, v49",
            "v_cvt_pk_bf16_f32 v53, -v48, -v48",
            "v_cvt_pk_bf16_f32 v49, v49, v49", "v_lshlrev_b32 v49, 16, v49", "v_rcp_f32 v52, v49")
        s.e(f"buffer_store_dwordx4 {vr(52)}, v{vSTS}, {srd(R_SY)}, 0 offen sc1")
        sA = Stream(groups(s), start=4 * (c.stat_at + 1), dl=4 * c.stat_at + 28)
        s = Seq(); self.consts_late(s); self.ssm_consts(s)
        sC_ = Stream(groups(s), dl=c.gather_at - 1)
        gl_ = [I(f"buffer_load_dwordx3 {vr(40,3)}, v{vGS}, {srd(R_SY)}, 0 offen sc1", "vm"), I(f"buffer_load_dwordx3 {vr(44,3)}, v{vGR}, {srd(R_SY)}, 0 offen sc1", "vm")]
        A = [gl_, ("nb", c.check_at), self.check("ga", gl_, self.tags([42, 46]))]
        s = Seq()
        s.e(f"v_mov_b32 v{MFR}, v41", f"v_mov_b32 v{MFR+2}, v41", "v_mov_b32 v42, v40", "v_mov_b32 v43, v40",
            f"s_lshl_b32 s{sT0}, s{sG}, 14", f"s_add_u32 s{sT0}, s{sT0}, {WS_AGG}",
            f"v_permlane32_swap_b32 v{MFR}, v{MFR+2}", "v_permlane32_swap_b32 v42, v43", f"v_mov_b32 v{MFR+1}, v{MFR}", f"v_mov_b32 v{MFR+3}, v{MFR+2}")
        A += groups(s)
        A.append([I(f"s_add_u32 s{R_AG}, s{R_SY}, s{sT0}"), I(f"s_addc_u32 s{R_AG+1}, s{R_SY+1}, 0"), I(f"s_movk_i32 s{R_AG+2}, 16384")])
        assert c.check_at >= 92
        sG_ = Stream(A, start=c.gather_at, dl=119)
        early = self.w2_dma(0, 2) + self.w2_dma(5, 2)
        self.xl = []; X = []
        for ii in range(4):
            self.xl.append(I(f"buffer_load_dwordx2 {vr(2+4*ii,2)}, v18, {srd(R_X)}, s{sK4} offen", "vm"))
            X.append([I(f"s_movk_i32 s{sK4}, {4096*ii}"), self.xl[-1]])
        X.append(("nb", 120))
        for ii in range(4):
            self.xl.append(I(f"buffer_load_dwordx2 {vr(4+4*ii,2)}, v34, {srd(R_SY)}, 0 offen offset:{64*ii} sc1", "vm")); X.append([self.xl[-1]])
        assert c.check_at < 116
        sX_ = Stream(X, start=106, dl=127, every=2)
        for n in range(32):
            p = n & 3
            b = self.fb(n); rd = RD[n]
            if (n + D) % 4 == 0:
                i = (n + D) // 4 - 1
                flush(q, [dma])
                q.wds_all()
                if i < 7: q.wvm(last[i + 1])
                q.e("s_barrier")
                if i in c.ts_stages: self.stamp(q)
                if i < 6:
                    G, l = self.stage_dma(i + 3); last.append(l)
                    if c.early_from <= i < 6:
                        assert not sC_.it
                        G = G + early[:c.early_n]; early = early[c.early_n:]
                    dma = Stream(G, every=2)
                if i == 7: csr = q.e(f"ds_read_b64 {vr(62,2)}, v{vGC+2}")
            if n >= c.pf_from and (n - c.pf_from) % c.pf_step == 0 and (n - c.pf_from) // c.pf_step * c.pf_n < 28:
                q.e(f"global_load_dword v10, v{vPF}, s[70:71] offset:{(n - c.pf_from) // c.pf_step * c.pf_n * 128}")
            if n == c.l2pf_at:
                q.e(f"s_lshr_b32 s{sT0}, s2, 3", f"s_lshl2_add_u32 s{sT1}, s{sT0}, s{sW}", f"s_mul_i32 s{sT1}, s{sT1}, {56*128}", f"s_mul_i32 s{sT2}, s{sXB}, {896*1024}",
                    f"s_add_u32 s{sT1}, s{sT1}, s{sT2}", f"v_min_u32 v240, 55, v{vL}", "v_lshlrev_b32 v240, 7, v240")
                q.e(f"buffer_load_dword v219, v240, {srd(R_W2)}, s{sT1} offen")
                q.e(f"s_lshl2_add_u32 s{sT1}, s{sT0}, s{sW}", f"s_lshl_b32 s{sT1}, s{sT1}, 12", f"s_lshl_b32 s{sT2}, s{sXB}, 9", f"s_add_u32 s{sT1}, s{sT1}, s{sT2}",
                    f"v_and_b32 v240, 3, v{vL}", f"v_bfe_u32 v241, v{vL}, 2, 2", "v_lshlrev_b32 v240, 7, v240", "v_lshl_add_u32 v240, v241, 10, v240")
                q.e(f"buffer_load_dword v219, v240, {srd(R_CRE)}, s{sT1} offen", f"buffer_load_dword v219, v240, {srd(R_CIM)}, s{sT1} offen")
            if n == c.pt_at:
                for v in (vFP, vAGS, vCSS): q.e(f"buffer_load_dword v219, v{v}, {srd(R_SY)}, 0 offen")
            if n == c.strow_at: q.e(*self.strows)
            nxt = []
            if n + D < 32: nxt = RD[n + D] = self.frag_reads(n + D)
            z = lambda a: ("0" if n == 0 else vr(a, 16))
            M = [f"{MF} {vr(ACC_F1,16)}, {vr(b+4)}, {ar(8*n)}, {z(ACC_F1)}", f"{MF} {vr(ACC_F1+16,16)}, {vr(b+4)}, {ar(8*n+4)}, {z(ACC_F1+16)}",
                 f"{MF} {vr(RE,16)}, {ar(8*n)}, {vr(b)}, {z(RE)}", f"{MF} {vr(IM,16)}, {ar(8*n+4)}, {vr(b)}, {z(IM)}"]
            sched = [2, 1, 1, 2]
            k = 0
            for j, m in enumerate(M):
                q.wds(rd[4]); q.e(m)
                mine = nxt[k:k + sched[j]]; k += sched[j]
                q.e(*mine)
                fill_gap(q, 4 * n + j, len(mine), c.cap1, [dma, sA, sG_, sC_, sX_])
                if n == 30 and j == 2:
                    q.e(f"s_mov_b32 s{sONES}, 0x07060302"); q.wds(csr)
                    q.e(f"v_add_f32 v{CS+1}, v{CS+1}, v63", f"v_add_f32 v{CS}, v{CS}, v62")
                if n == 30 and j == 3: self.split3(q, CS + 1, 222)
                if n == 31 and j == 0: self.split3(q, CS, 204)
                if n == 31 and j == 1:
                    flush(q, [sG_])
                    for t in range(2): q.e(f"{MF8} {vr(ACC_F1+16*t,16)}, {vr(222,2)}, {vr(MFR+2*t,2)}, {vr(ACC_F1+16*t,16)}")
            if n == c.stat_at:
                q.wvm(self.small0, self.strows[1])
                for r in range(4):
                    q.e(f"v_dot2c_f32_bf16 v48, s{sONES}, v{40+r}", f"v_dot2c_f32_bf16 v49, s{sONES}, v{44+r}",
                        f"v_dot2c_f32_bf16 v50, v{40+r}, v{40+r}", f"v_dot2c_f32_bf16 v51, v{44+r}, v{44+r}")
            if p == 1:
                if dma.it: q.e(*dma.it.pop(0))
                for e in (n - 1, n + 1):
                    q.wds(RD[e][4]); be = self.fb(e)
                    for r in range(4):
                        q.e(f"v_dot2c_f32_bf16 v{CS}, s{sONES}, v{be+r}", f"v_dot2c_f32_bf16 v{CS+1}, s{sONES}, v{be+4+r}")
            if n == 29: q.e(f"ds_write_b64 v{vGC+1}, {vr(CS,2)}")
        for t in range(2): q.e(f"{MF8} {vr(RE+16*t,16)}, {vr(MFR+2*t,2)}, {vr(204,2)}, {vr(RE+16*t,16)}")
        self.stamp(q)
        G9, l = self.stage_dma(9); last.append(l)
        f, st = self.ffn_epi(ACC_F1, vHF1)
        q.e(f"v_mov_b32 v{CS}, s{sTAG}")
        q.extend(merge(f, G9[:c.g9_pre]))
        st = [I(f"buffer_store_dwordx2 {vr(CS,2)}, v{vCSS}, {srd(R_SY)}, 0 offen sc1", "vm")] + st
        s = Seq()
        for i in range(16): s.e(f"v_permlane16_swap_b32 v{RE+i}, v{IM+i}")
        cr, ci = RE, IM
        def scale(i): s.e(f"v_mul_f32_dpp v{RE+i}, v44, v{RE+i} row_newbcast:{i} row_mask:0xf bank_mask:0xf", f"v_mul_f32_dpp v{IM+i}, v44, v{IM+i} row_newbcast:{i} row_mask:0xf bank_mask:0xf")
        scale(0); scale(1)
        for i in range(1, 16):
            d = 48 if i & 1 else 46
            s.e(f"v_fma_f32 v{d}, v20, v{cr}, v{RE+i}", f"v_fma_f32 v{d+1}, v20, v{ci}, v{IM+i}")
            if i < 15: scale(i + 1)
            s.e(f"v_fma_f32 v{d}, -v21, v{ci}, v{d}", f"v_fma_f32 v{d+1}, v21, v{cr}, v{d+1}")
            cr, ci = d, d + 1
        q.extend(merge(s, [[x] for x in st] + G9[c.g9_pre:]))
        s = Seq()
        s.e("v_mov_b32 v50, v48", "v_mov_b32 v51, v49", f"v_mov_b32 v62, s{sTAG}", "v_mov_b32 v40, 0",
            "v_permlane32_swap_b32 v48, v50", "v_permlane32_swap_b32 v49, v51",
            "v_mov_b32 v52, v48", "v_mov_b32 v54, v50", "v_mov_b32 v53, v49", "v_mov_b32 v55, v51",
            "v_permlane16_swap_b32 v48, v52", "v_permlane16_swap_b32 v50, v54", "v_permlane16_swap_b32 v49, v53", "v_permlane16_swap_b32 v51, v55", "v_mov_b32 v41, 0")
        self.cmul_acc(s, 50, 22, 48, 50); self.cmul_acc(s, 52, 22, 50, 52); self.cmul_acc(s, 60, 22, 52, 54)
        s.e(f"buffer_store_dwordx4 {vr(60)}, v{vAGS}, {srd(R_SY)}, 0 offen sc1")
        q.extend(s)
        self.stamp(q)
        q.wvm(last[8]); q.e("s_barrier")
        for e in range(32, 32 + D2):
            RD[e] = self.frag_reads(e); q.e(*RD[e])
        cl_ = I(f"buffer_load_dwordx2 {vr(CS,2)}, v{vGC}, {srd(R_SY)}, 0 offen sc1", "vm")
        S1 = []
        for j in range(1, 4):
            S1.append([I(f"v_cmp_eq_u32 vcc, {j}, v32"), I(f"v_cndmask_b32 v40, v40, v{46+2*j}, vcc"), I(f"v_cndmask_b32 v41, v41, v{47+2*j}, vcc")])
        s = Seq()
        for i in range(16):
            s.e(f"v_mul_f32 v46, v31, v{IM+i}", f"v_mul_f32 v{IM+i}, v30, v{IM+i}", f"v_fmac_f32 v{IM+i}, v31, v{RE+i}", f"v_fma_f32 v{RE+i}, v30, v{RE+i}, -v46")
        sS1 = Stream(S1 + groups(s))
        self.fa = I(f"buffer_load_dword v{vFP}, v36, {srd(R_SY)}, 0 offen sc1", "vm")
        W = early + self.w2_dma(1) + self.w2_dma(2)
        W = W[:c.w2_first] + [("nb", c.w2_at2), self.flag_store(0, st[-1]) + [cl_]] + W[c.w2_first:c.w2_first + c.w2_n2] + [("nb", c.w2_at3)] + W[c.w2_first + c.w2_n2:]
        for g in S1[:3]: q.e(*g)
        sS1.it = sS1.it[3:]
        sR0 = Stream(self.w2_reads(0), start=c.r0_at)
        W += self.after_reads(0, self.w2_dma(3))
        sW2 = Stream(W, every=2)
        self.lb = [I(f"buffer_load_dwordx3 {vr(96+4*t,3)}, v{vLBK}, {srd(R_AG)}, 0 offen offset:{512*t} sc1", "vm") for t in range(8)]
        sLB_ = Stream([[x] for x in self.lb], start=c.lb_at, every=c.lb_every)
        r5 = self.w2_reads(5)
        _, B, self.ssm_last = self.ssm_part2()
        sR0.it += r5
        if c.b_at < 64: sR0.dl = c.b_at - 1; sS1.dl = c.b_at - 1
        sB2 = Stream(B[:-1], start=c.b_at); self.hst = B[-1]
        sBase = Stream(self.base_stream(), start=64)
        K9 = 16 - D2
        for n in range(32, 64):
            k = n - 32
            b = self.fb(n)
            if k == K9:
                q.wds_all(); q.wvm(last[9]); q.e("s_barrier")
            nxt = RD[n + D2] = self.frag_reads(n + D2)
            for t in range(2):
                d = ACC_F2 + 16 * t
                q.wds(RD[n][-1])
                q.e(f"{MF} {vr(d,16)}, {vr(b+4)}, {ar(8*k+4*t)}, {'0' if k == 0 else vr(d,16)}")
                q.e(*nxt[t:t+1])
                fill_gap(q, 2 * k + t, 1.25, c.cap2, [sLB_, sW2, sS1, sR0, sB2, sBase])
                if k == 30 and t == 0: q.extend(self.check("c2", [cl_], self.tags([CS])))
                if k == 30 and t == 1: self.split3(q, CS + 1, 222)
        for t in range(2): q.e(f"{MF8} {vr(ACC_F2+16*t,16)}, {vr(222,2)}, {vr(MFR+2*t,2)}, {vr(ACC_F2+16*t,16)}")
        self.stamp(q)
        self.left = (sW2.rest(), sS1.rest(), sR0.rest(), sLB_.rest(), sB2.rest())
        self.base_left = sBase.rest()

    def ssm_part2(self):
        RE, IM = ACC_S, ACC_S + 16
        LB = 96
        lb = self.lb
        pr_ = [48, 50, 56, 58, 60, 62, 70, sM]
        test = [f"v_cmp_eq_u32 s[{pr_[t]}:{pr_[t]+1}], s{sTAG}, v{LB+4*t+2}" for t in range(8)]
        test += [f"s_bcnt1_i32_b64 s{pr_[t]}, s[{pr_[t]}:{pr_[t]+1}]" for t in range(8)]
        test += [f"s_add_u32 s{pr_[0]}, s{pr_[0]}, s{pr_[t]}" for t in range(1, 8)]
        test.append(f"s_cmp_lg_u32 s{pr_[0]}, s{sNV}")
        B = [self.check("lb", lb, test)]
        q = Seq()
        self.stamp(q)
        for t in range(6, -1, -1): self.cmul_acc(q, LB + 4 * t, 24, LB + 4 * (t + 1), LB + 4 * t)
        self.cmul(q, 62, 28, LB)
        for sw in ("16", "32"):
            q.e("v_mov_b32 v60, v62", "v_mov_b32 v61, v63", f"v_permlane{sw}_swap_b32 v60, v62", f"v_permlane{sw}_swap_b32 v61, v63",
                "v_add_f32 v62, v60, v62", "v_add_f32 v63, v61, v63")
        self.cmul_acc(q, 60, 26, 62, 40)
        self.cmul(q, 62, 30, 60)
        self.nB1 = len(groups(q)) + 1
        pr, pi_ = 62, 63
        for i in range(16):
            q.e(f"v_fma_f32 v{RE+i}, v20, v{pr}, v{RE+i}", f"v_fma_f32 v{IM+i}, v20, v{pi_}, v{IM+i}",
                f"v_fma_f32 v{RE+i}, -v21, v{pi_}, v{RE+i}", f"v_fma_f32 v{IM+i}, v21, v{pr}, v{IM+i}")
            pr, pi_ = RE + i, IM + i
            if i & 1:
                j = i >> 1
                q.e(f"v_cvt_pk_bf16_f32 v{44+j}, v{RE+2*j}, v{RE+2*j+1}", f"v_cvt_pk_bf16_f32 v{52+j}, -v{IM+2*j}, -v{IM+2*j+1}")
            if i == 7:
                q.wds(self.w2_rd[5])
                q.e(f"ds_write_b128 v{vTW}, {vr(44)}", f"ds_write_b128 v{vTW}, {vr(52)} offset:2048")
        q.e(f"ds_write_b128 v{vTW+1}, {vr(48)}", f"ds_write_b128 v{vTW+1}, {vr(56)} offset:2048")
        q.e(f"v_xor_b32 v61, {512|32}, v{vTD}", f"v_xor_b32 v62, 64, v{vTD}", "v_xor_b32 v63, 64, v61", f"s_movk_i32 s{sT1}, 8192")
        ad = {(0, 0): vTD, (0, 1): 61, (1, 0): 62, (1, 1): 63}
        for part in range(2):
            for mu in range(2):
                for e in range(2):
                    tr = q.e(f"ds_read_b64_tr_b16 {vr(64 + 8*part + 4*mu + 2*e,2)}, v{ad[mu, e]} offset:{2048*part}")
        B += groups(q)
        st = [I(f"buffer_store_dwordx4 {vr(64+8*part+4*mu)}, v{vHS}, {srd(R_SY)}, {('0', f's{sT1}')[part]} offen offset:{1024*mu} sc1", "vm") for part in range(2) for mu in range(2)]
        w = Seq(); w.wds(tr)
        B.append(list(w) + st)
        return lb, B, st[-1]

    def base_stream(self):
        f = Seq()
        T = 88; D = 20; r = 24
        f.wvm(self.xl[-1])
        f.e(f"v_lshlrev_b32 v{D}, 16, v38", f"v_and_b32 v{D+1}, 0xffff0000, v38", f"v_lshlrev_b32 v{D+2}, 16, v39", f"v_and_b32 v{D+3}, 0xffff0000, v39")
        for ii in range(4):
            b = BASE + 4 * ii
            f.e(f"v_mov_b32 v{r}, v{b+2}", f"v_lshlrev_b32 v{r+1}, 16, v{b+3}",
                f"v_lshlrev_b32 v{b+2}, 16, v{b+1}", f"v_and_b32 v{b+3}, 0xffff0000, v{b+1}", f"v_and_b32 v{b+1}, 0xffff0000, v{b}", f"v_lshlrev_b32 v{b}, 16, v{b}")
            for e in range(4): f.e(f"v_add_f32 v{T+e}, v{b+e}, v{r+1}")
            def rnd():
                f.e(f"v_cvt_pk_bf16_f32 v{T+4}, v{T}, v{T+1}", f"v_cvt_pk_bf16_f32 v{T+5}, v{T+2}, v{T+3}",
                    f"v_lshlrev_b32 v{T}, 16, v{T+4}", f"v_and_b32 v{T+1}, 0xffff0000, v{T+4}", f"v_lshlrev_b32 v{T+2}, 16, v{T+5}", f"v_and_b32 v{T+3}, 0xffff0000, v{T+5}")
            rnd()
            for e in range(4): f.e(f"v_mul_f32 v{T+e}, v{T+e}, v{r}")
            rnd()
            for e in range(4): f.e(f"v_mul_f32 v{T+e}, v{T+e}, v{D+e}")
            rnd()
            for e in range(4): f.e(f"v_add_f32 v{b+e}, v{b+e}, v{T+e}")
        return groups(f)

    def phase2(self, q):
        c = self.c
        NR = c.nring; ak = c.akept; NT = c.ntail; LEAD = c.lead
        assert ak % 2 == 0 and ak <= 8 and NR >= LEAD + NT - 1 and NR <= 10
        wl, sl, rl, ll, B = self.left
        ssm_last = self.ssm_last
        for g in sl + rl: q.e(*g)
        f, st2 = self.ffn_epi(ACC_F2, vHF2)
        r1 = self.w2_reads(1)
        f2 = Seq()
        for g in r1: f2.e(*g)
        f2.extend(f)
        wl = wl + self.after_reads(1, self.w2_dma(4))
        q.extend(merge(f2, [[self.fa]] + ll + wl[:c.left_pre], start=0))
        wl = wl[c.left_pre:]
        k = c.b_mid
        f = Seq()
        for g in B[:k]: f.e(*g)
        assert not any(x.kind == "label" for x in f)
        q.e(st2[0]); q.extend(merge(f, [[x] for x in st2[1:]]))
        self.stamp(q)
        B = B[k:] + [self.hst]
        q.extend(self.check("fa", [self.fa], self.tags([vFP], 0xff)))
        self.stamp(q)
        ACC = (96, 160)
        steps = [(0, j) for j in range(8)] + [(1, j) for j in range(ak)] + [(0, j) for j in range(8, 22)] + [(1, j) for j in range(ak, 22)]
        firstB = 8 + ak; sent_done = firstB + 13
        ld = {}
        def issue(n):
            ps, j = steps[n]
            a = 176 + 8 * (n % NR)
            blk = (sB0, sB1)[ps]
            g = []
            if j % 2 == 0:
                if j < 14:
                    pc = (0, 1, 2, 5)[j // 4]
                    if j % 4 == 2 and steps[n-1] == (ps, j - 1): g.append(I(f"s_xor_b32 s{sKW}, s{sKW}, 4096"))
                    else:
                        g.append(I(f"s_add_u32 s{sKW}, s{blk}, s{UO[pc]}"))
                        if j % 4: g.append(I(f"s_xor_b32 s{sKW}, s{sKW}, 4096"))
                elif j == 14: g.append(I(f"s_add_u32 s{sKW}, s{blk}, s{sHS}"))
                elif j == 18: g += [I(f"s_xor_b32 s{sKW}, s{sHS}, 8192"), I(f"s_add_u32 s{sKW}, s{sKW}, s{blk}")]
                else: g.append(I(f"s_xor_b32 s{sKW}, s{sKW}, 4096"))
            o = 2048 * (j % 2)
            ld[n, 0] = I(f"buffer_load_dwordx4 {ar(a)}, v33, {srd(R_SY)}, s{sKW} offen offset:{o} sc1", "vm")
            ld[n, 1] = I(f"buffer_load_dwordx4 {ar(a+4)}, v33, {srd(R_SY)}, s{sKW} offen offset:{o+1024} sc1", "vm")
            return [g + [ld[n, 0]], [ld[n, 1]]]
        order = []
        n = 0
        while n < 44:
            if n in (sent_done + 1 - NT, 44 - NT):
                for k in range(4): order += [(m, k) for m in range(n, n + NT)]
                n += NT
            else:
                order += [(n, k) for k in range(4)]; n += 1
        pos = {e: i for i, e in enumerate(order)}
        L0 = c.lead0
        f = Seq()
        for g in B[:-1]: f.e(*g)
        q.extend(merge(f, [g for n in range(L0) for g in issue(n)]))
        q.e(*B[-1])
        fs = I(f"buffer_load_dword v{vFP}, v36, {srd(R_SY)}, 0 offen offset:128 sc1", "vm")
        st = Seq(); self.stamp(st)
        gate = 4 * firstB - c.gate_lead
        L = []
        for n in range(L0, 44):
            nb = max(4 * (n - LEAD), 0)
            if n >= NR: nb = max(nb, max(pos[n - NR, k] for k in range(4)))
            if n >= firstB: nb = max(nb, gate)
            if firstB < n < firstB + c.burst:
                assert nb <= gate
                L[-1] += [x for g in issue(n) for x in g]; continue
            L.append(("nb", nb))
            if n == firstB: L.append(self.check("fs", [fs], self.tags([vFP], 0xffff)) + list(st) + [x for g in issue(n) for x in g])
            else: L += issue(n)
        sL = Stream(L, every=2)
        P = [("nb", c.flagB_at)] + [self.flag_store(1, ssm_last)] + [("nb", gate - c.fs_lead), [fs]]
        sP = Stream(P, dl=gate - 1)
        Wc = self.w2_reads(2) + [("nb", c.flagB_at + 1)] + wl + [("nb", c.rc_at)]
        Wc += self.w2_reads(3) + self.w2_reads(4)
        d_c = 4 * (firstB + 5)
        sWc = Stream(Wc, start=1, dl=d_c, every=c.wc_every)
        sB = Stream(self.base_left)
        XV = 64; TB = 80
        s = Seq()
        s.e(f"v_mov_b32 v{TB}, s{sTAG}")
        for k in range(1, 4): s.e(f"v_lshrrev_b32 v{TB+k}, {8*k}, v{TB}")
        s.e(f"s_movk_i32 s{sT2}, 0xff")
        s.wds_all(); s.e("s_barrier")
        R0 = [("nb", d_c + 6)] + groups(s)
        def tile(k): return (k & 1, k >> 1)
        def red_write(ps, lastn):
            out = []
            for k in range(4):
                nu, mu = tile(k)
                out.append(("nb", pos[lastn, k] + 2))
                for g4 in range(4):
                    out.append([I(f"ds_write_b128 v{vRW+g4}, {vr(ACC[ps] + 32*nu + 16*mu + 4*g4)} offset:{128*nu + 8192*mu}", "ds")])
            return out
        def red_read(s, dst):
            return [s.e(f"ds_read_b128 {vr(dst + 16*ii + 4*src)}, v{vRR} offset:{1024*ii + 16384*src}") for ii in range(4) for src in range(4)]
        s = Seq()
        s.wds_all(); s.e("s_barrier")
        R = red_read(s, 96)
        for g4 in range(4): s.e(f"v_add_u32 v{vRW+g4}, 0x10000, v{vRW+g4}")
        Ga = groups(s); s = Seq()
        for ii in range(4):
            s.wds(R[4 * ii + 3])
            for e in range(4):
                d = XV + 4 * ii + e; s0 = 96 + 16 * ii + e
                s.e(f"v_add_f32 v{s0}, v{s0}, v{s0+4}", f"v_add_f32 v{d}, v{s0+8}, v{s0+12}", f"v_add_f32 v{d}, v{d}, v{s0}",
                    f"v_bfi_b32 v{d}, s{sT2}, v{TB+e}, v{d}")
        s.e(f"v_add_u32 v{vRR}, 0x10000, v{vRR}")
        Gb = groups(s)
        s = Seq()
        for k in range(4): s.e(f"buffer_store_dwordx4 {vr(XV+4*k)}, v{vXS}, {srd(R_SY)}, 0 offen offset:{1024*k} sc1")
        self.stamp(s)
        e0 = 4 * (sent_done + 1)
        XR = 40
        xl = [I(f"buffer_load_dwordx4 {vr(XR+4*k)}, v{vXR}, {srd(R_SY)}, 0 offen offset:{1024*k} sc1", "vm") for k in range(4)]
        sR = Stream(R0 + red_write(0, sent_done) + [("nb", e0 + c.bar_lag)] + Ga + [("nb", e0 + c.bar_lag + c.add_lag)] + Gb + [("nb", 4 * c.send_at)] + [list(s)]
                    + red_write(1, 43), wev=c.wev)
        sX = Stream([[x] for x in xl], start=c.xl_at, every=2)
        q.wds(self.w2_rd[1])
        emitted = set(id(x) for x in q)
        for gi, (n, k) in enumerate(order):
            ps, j = steps[n]; nu, mu = tile(k)
            a = 176 + 8 * (n % NR); d = ACC[ps] + 32 * nu + 16 * mu
            while not any(ld[n, mu] is x for x in q[-400:]):
                g = sL.it.pop(0)
                if not isinstance(g, tuple): q.e(*g)
            q.wvm(ld[n, mu])
            if n == firstB: q.wds(self.w2_rd[2])
            if n == firstB + 6: q.wds(self.w2_rd[4])
            if k == 0 and n in c.p2stamps: self.stamp(q)
            q.e(f"v_mfma_f32_32x32x16_bf16 {vr(d,16)}, {ar(8*j+4*nu)}, {ar(a+4*mu)}, {'0' if j == 0 else vr(d,16)}")
            fill_gap(q, gi, 0.5, c.cap4 if gi >= e0 else c.cap3, [sP, sL, sWc, sR, sX, sB])
        self.stamp(q)
        flush(q, [sR, sX, sB])
        q.wds_all(); q.e("s_barrier")
        R = red_read(q, 96)
        pre = [f"s_mov_b32 s{sT0}, 0x0c0c0400", f"s_mov_b32 s{sT1}, 0x05040100"]
        for k in range(4):
            r = XR + 4 * k
            pre += [f"v_perm_b32 v60, v{r+1}, v{r}, s{sT0}", f"v_perm_b32 v61, v{r+3}, v{r+2}, s{sT0}", f"v_perm_b32 v{56+k}, v61, v60, s{sT1}"]
        for ii in range(4):
            q.wds(R[4 * ii + 3])
            s0 = 96 + 16 * ii
            for e in range(2):
                q.e(f"v_pk_add_f32 {vr(s0+2*e,2)}, {vr(s0+2*e,2)}, {vr(s0+4+2*e,2)}", f"v_pk_add_f32 {vr(s0+8+2*e,2)}, {vr(s0+8+2*e,2)}, {vr(s0+12+2*e,2)}")
            for e in range(2): q.e(f"v_pk_add_f32 {vr(s0+2*e,2)}, {vr(s0+2*e,2)}, {vr(BASE+4*ii+2*e,2)}")
            for e in range(2): q.e(f"v_pk_add_f32 {vr(s0+2*e,2)}, {vr(s0+2*e,2)}, {vr(s0+8+2*e,2)}")
        q.extend(self.check("xc", xl, pre + self.tags([56 + k for k in range(4)])))
        self.stamp(q)
        for ii in range(4):
            s0 = 96 + 16 * ii
            for e in range(2): q.e(f"v_pk_add_f32 {vr(s0+2*e,2)}, {vr(s0+2*e,2)}, {vr(XR+4*ii+2*e,2)}")
            q.e(f"s_movk_i32 s{sT0}, {8192*ii}")
            q.e(f"buffer_store_dwordx4 {vr(s0)}, v19, {srd(R_OUT)}, s{sT0} offen {c.ost}")
        q.e(f"s_lshl_b32 s{sT0}, s{sG}, 2", f"s_or_b32 s{sT0}, s{sT0}, s{sW}", f"s_lshl_b32 s{sT0}, s{sT0}, 4", f"s_or_b32 s{sT0}, s{sT0}, s{sC}",
            f"s_cmp_eq_u32 s{sT0}, 15", "s_cbranch_scc0 L_nobump", "v_mov_b32 v57, 0", "s_mov_b64 exec, 1")
        q.e(f"buffer_store_dword v251, v57, {srd(R_SY)}, 0 offen sc1")
        q.e("s_mov_b64 exec, -1")
        q.label("L_nobump")

    def write_ts(self, q):
        if not self.c.ts: return
        q.wds_all(); q.wvm_all()
        q.e("s_memtime s[46:47]", "s_memrealtime s[92:93]"); q.wds_all()
        q.e(f"s_lshl_b32 s{sT0}, s2, 2", f"s_add_u32 s{sT0}, s{sT0}, s{sW}", f"s_lshl_b32 s{sT0}, s{sT0}, 6", f"s_add_u32 s{sT0}, s{sT0}, {WS_TS}", "v_mov_b32 v2, 0")
        q.e("s_mov_b64 exec, 1")
        def put(k): q.e(f"buffer_store_dword v3, v2, {srd(R_SY)}, s{sT0} offen offset:{4*k}")
        for k in range(self.nts + 2):
            if k == 0: q.e("v_mov_b32 v3, v255")
            elif k == self.nts + 1: q.e("s_sub_u32 s46, s46, s42", "v_mov_b32 v3, s46")
            else:
                r = TSREG[k - 1]; q.e(f"s_sub_u32 s{r}, s{r}, s42", f"v_mov_b32 v3, s{r}")
            put(k)
        q.e("v_mov_b32 v3, s92"); put(15)
        q.wvm_all()

    def add_prof(self, q):
        lo, step = self.c.prof
        out = Seq(); unsafe = False; started = False; acc = 0; n = 0; idx = 0; nm = 0
        NP = len(TSREG)
        self.prof_pts = []
        for ins in q:
            t = ins.t
            if started and not unsafe and n < 64 and idx >= lo and acc >= step and ins.kind not in WAITK and not t.startswith(("s_cbranch", "s_branch", "s_cselect", "s_addc")) and ins.kind != "label":
                r = TSREG[n % NP]
                if n >= NP: out.e(f"v_writelane_b32 v0, s{r}, {n - NP}")
                out.e(f"s_memtime s[{r}:{r+1}]"); self.prof_pts.append((idx, nm, t[:50])); n += 1; acc = 0
            out.append(ins)
            if t == "s_barrier": started = True
            if started and ins.kind != "label":
                idx += 1; acc += 1
                if t.startswith("v_mfma"): nm += 1
            if t.startswith("s_cbranch"): unsafe = started
            if ins.kind == "label" and (t.endswith("_ok:") or t.startswith("L_nobump")): unsafe = False
        out.wds_all()
        for k in range(max(0, n - NP), n): out.e(f"v_writelane_b32 v0, s{TSREG[k % NP]}, {k}")
        out.e(f"s_lshl_b32 s{sT0}, s2, 2", f"s_add_u32 s{sT0}, s{sT0}, s{sW}", f"s_lshl_b32 s{sT0}, s{sT0}, 8", f"s_add_u32 s{sT0}, s{sT0}, {WS_TS + 65536}",
              "v_subrev_u32 v0, s42, v0", f"v_lshlrev_b32 v2, 2, v{vL}")
        out.e(f"buffer_store_dword v0, v2, {srd(R_SY)}, s{sT0} offen")
        return out

    def build(self):
        q = Seq()
        q.label("L_start")
        last = self.prologue(q)
        self.phase1(q, last)
        self.phase2(q)
        if self.c.prof: q = self.add_prof(q)
        self.write_ts(q)
        if self.c.spin_to:
            q.label("L_spin")
            q.e("s_memrealtime s[46:47]", "s_waitcnt lgkmcnt(0)", "s_sub_u32 s46, s46, s42", f"s_cmp_lt_u32 s46, {self.c.spin_to}", "s_cbranch_scc1 L_spin")
        q.label("L_end")
        q.e("s_endpgm")
        q.extend(self.ool)
        return finalize(q)

HDR = """; @launch grid=(256,1,1) block=(256,1,1) lds=163840
.amdgcn_target "amdgcn-amd-amdhsa--gfx950"
.text
.globl {n}_kernel
.p2align 8
.type {n}_kernel,@function
{n}_kernel:
"""
TAIL = """
.section .rodata,"a"
.p2align 6
.amdhsa_kernel {n}_kernel
  .amdhsa_next_free_vgpr 512
  .amdhsa_next_free_sgpr 102
  .amdhsa_accum_offset 256
  .amdhsa_group_segment_fixed_size 0
  .amdhsa_kernarg_size 120
  .amdhsa_user_sgpr_count 2
  .amdhsa_user_sgpr_kernarg_segment_ptr 1
  .amdhsa_system_sgpr_workgroup_id_x 1
.end_amdhsa_kernel
"""
def generate(cfg):
    g = Gen(cfg)
    body = g.build()
    return HDR.format(n=NAME) + "\n".join(("" if l.endswith(":") else "    ") + l for l in body) + TAIL.format(n=NAME), g

if __name__ == "__main__":
    cfg = Cfg()
    for a in sys.argv[2:]:
        k, v = a.split("=", 1); assert hasattr(cfg, k), k; setattr(cfg, k, eval(v))
    txt, g = generate(cfg)
    open(sys.argv[1], "w").write(txt)
```

```python
import sys, struct
from asmlib import *

NAME = "parallel_sum__ssm_conv_s5__dense_activation_relu__prompt"
def f2u(x): return struct.unpack("<I", struct.pack("<f", x))[0]
def fh(x): return hex(f2u(x))

WS_CS   = 262144
WS_FLAG = 524288
WS_STAT = 786432
WS_AGG  = 1 << 20
WS_XCH  = 2 << 20
WS_TS   = (7 << 20) + (1 << 19)
WS_H    = 8 << 20
HBLK = 88 * 2048
WS_END = WS_H + 64 * HBLK
TAGK = 0x9E3779B9
OOB = 0x40000000

sCO, sW, sWM, sWN, sC, sG, sGL, sU0, sORD, sXB, sT0, sT1, sT2 = 3, 4, 5, 6, 7, 8, 9, 10, 11, 12, 13, 14, 15
P_X, P_LRE, P_LIM, P_BRE, P_BIM, P_CRE, P_CIM, P_LDT = 16, 18, 20, 22, 24, 26, 28, 30
P_DSK, P_W1, P_W2, P_OUT, P_WS = 32, 36, 38, 40, 44
sU1, sK4 = 34, 35
sM = 46
R_X, R_BS, R_W1A, R_W1B, R_W2, R_CRE, R_CIM, R_OUT, R_SY = 48, 52, 56, 60, 72, 76, 80, 84, 88
R_AG = R_BS
sB0, sB1, sHS, sNV = 64, 65, 66, 67
sUO = 32
UO = {0: 32, 1: 33, 2: 100, 5: 101}
sKX, sKW, sLB, sONES, sTAG, sPOLL, sLE, sW2O = 92, 93, 94, 95, 96, 97, 98, 99
TSREG = [16, 18, 20, 22, 24, 26, 28, 30, 36, 38, 40, 68]
def srd(r): return f"s[{r}:{r+3}]"

vL = 1
BASE = 2
ACC_S, ACC_F1, ACC_F2 = 64, 96, 128
FR = 160
RA, RS, RF = 176, 180, 184
vX, vB, vW = 200, 204, 206
vSTS, vCSS, vGS, vGC, vPF, vAGS, vHF1, vHF2, vGR = 208, 209, 210, 211, 214, 215, 216, 217, 218
CS = 220
vW2, vC2, vTR, vCR, vTA, vLBK, vFP, vHS, vFL, vXS, vXR, vRW, vRR, vTW, vTD = 224, 228, 232, 233, 234, 238, 239, 242, 243, 244, 245, 246, 250, 252, 254
def vr(a, n=4): return f"v[{a}:{a+n-1}]"
def ar(a, n=4): return f"a[{a}:{a+n-1}]"

SLOT = 32768; WBLK = 8192
L_SP = 98304; SPW = 14336
L_CS = 155648

class Cfg:
    ts = False; ts_stages = (); ts_max = 12; ts_min = 0; prof = None; p2stamps = ()
    order = "xa"
    pf_from = 14; pf_n = 28; pf_step = 12
    early_from = 9; early_n = 2
    cap1 = 5.5; cap2 = 5.5; cap3 = 5
    stat_at = 4; gather_at = 86; check_at = 108
    w2_first = 8; w2_at2 = 20; w2_n2 = 8; w2_at3 = 36; lb_at = 38; left_pre = 5; g9_pre = 4; r0_at = 30; b_at = 48; b_mid = 36; lb_every = 1; rc_at = 40
    akept = 6; nring = 10; lead = 6; ntail = 4
    lead0 = 4; flagB_at = 15; fs_lead = 4; gate_lead = 20; wc_every = 2; burst = 1
    bar_lag = 9; send_at = 0; xl_at = 164; wev = 1
    poll_sleep = 1
    probe = 0
    spin_x = -1
    add_lag = 5; cap4 = 8
    l2pf_at = 99; pt_at = 14
    hrot = True
    nt_upto = 0; nt_srd = (48, 52, 56, 60)
    strow_at = -1
    spin_to = 0
    ost = 'nt'

def mk_srd(q, r, p, size):
    q.e(f"s_mov_b32 s{r}, s{p}", f"s_and_b32 s{r+1}, s{p+1}, 0xffff", f"s_mov_b32 s{r+2}, {size}", f"s_mov_b32 s{r+3}, 0x20000")

WAITK = ("wvm", "wds", "wvm0", "wds0")
def groups(seq):
    G = []; cur = []
    for ins in seq:
        cur.append(ins)
        if ins.kind not in WAITK and not ins.t.startswith(("v_cmp", "s_cmp")):
            G.append(cur); cur = []
    if cur: G.append(cur)
    return G
def cost(g):
    c = 0
    for i in g:
        if i.kind == "label": continue
        if i.kind in WAITK: c += 0.5
        elif i.t.startswith(TRANS): c += 2
        elif i.t.startswith("ds_write_b128"): c += 3
        else: c += 1
    return c

class Stream:
    def __init__(self, items, start=0, dl=None, every=1, wev=1):
        self.it = list(items); self.nb = start; self.dl = dl; self.every = every; self.wev = wev
    def ready(self, gap):
        while self.it and isinstance(self.it[0], tuple):
            self.nb = max(self.nb, self.it.pop(0)[1])
        return bool(self.it) and gap >= self.nb
    def pop(self, gap):
        g = self.it.pop(0)
        if self.every > 1 and any(i.kind == "vm" for i in g): self.nb = gap + self.every
        if any(i.t.startswith("ds_write_b128") for i in g): self.nb = gap + self.wev
        return g
    def rest(self):
        r = [g for g in self.it if not isinstance(g, tuple)]; self.it = []; return r

def fill_gap(q, gap, used, cap, streams):
    for s in streams:
        if s.dl is not None and gap >= s.dl:
            for g in s.rest(): q.e(*g); used += cost(g)
    for s in streams:
        while s.ready(gap) and (used + cost(s.it[0]) <= cap or (used <= cap - 2 and cost(s.it[0]) > 3)):
            g = s.pop(gap); q.e(*g); used += cost(g)
def flush(q, streams):
    for s in streams:
        for g in s.rest(): q.e(*g)

def pack_order(o): return sum(v << (4 * k) for k, v in enumerate(o))
def hyb(xa):
    first = [0, (1 + 2 * xa), (2 + 2 * xa) & 7 or 1]
    rest = [v for v in [(3 + 2 * xa + k) & 7 for k in range(8)] if v not in first]
    return first + rest
ORDERS = {"xa": [[(i + 2 * xa) & 7 for i in range(8)] for xa in range(4)],
          "none": [list(range(8))] * 4,
          "two": [[(i + 4 * (xa & 1)) & 7 for i in range(8)] for xa in range(4)],
          "hyb": [hyb(xa) for xa in range(4)]}

class Gen:
    def __init__(self, cfg):
        self.c = cfg; self.nts = 0; self.nreq = 0; self.w2_last = {}; self.w2_rd = {}; self.ool = Seq()
    def stamp(self, q):
        self.nreq += 1
        if self.c.probe == self.nreq: q.e("s_memrealtime s[68:69]")
        if self.c.ts and self.nts < self.c.ts_max and self.nreq > self.c.ts_min:
            r = TSREG[self.nts]
            q.e(f"s_memtime s[{r}:{r+1}]"); self.nts += 1

    def stage_dma(self, i):
        base = (i % 3) * SLOT
        def ld(v, r, so, off):
            fl = " nt" if (i < self.c.nt_upto and r in self.c.nt_srd) else ""
            return I(f"buffer_load_dwordx4 v{v}, {srd(r)}, s{so} offen offset:{off}{fl} lds", "vm")
        def m0(o): return I(f"s_add_u32 m0, s{sLB}, {base + o}")
        def st(k): return I(f"s_bfe_u32 s{sKW}, s{sORD}, {(3 << 16) | (4 * k)}")
        mul = lambda: I(f"s_mul_i32 s{sKW}, s{sKW}, {64*3584}")
        G = []
        if i < 8:
            G.append([m0(0), st(i), I(f"s_lshl_b32 s{sKX}, s{sKW}, 7"), ld(vX, R_X, sKX, 0)])
            for j in range(1, 4): G.append([ld(vX + j, R_X, sKX, 1024 * j)])
            G.append([m0(4096), mul(), ld(vB, R_BS, sKX, 0)]); G.append([ld(vB + 1, R_BS, sKX, 1024)])
            G.append([m0(6144), ld(vW, R_W1A, sKW, 0)]); G.append([ld(vW + 1, R_W1A, sKW, 1024)])
        else:
            for t in range(4):
                G.append([m0(2048 * t), st(4 * (i - 8) + t), mul(), ld(vW, R_W1B, sKW, 0)])
                G.append([ld(vW + 1, R_W1B, sKW, 1024)])
        return G, G[-1][-1]

    def fb(self, n): return ACC_F2 + 8 * (n & 3) if n < 32 else FR - 4 + 4 * (n & 3)
    def frag_reads(self, n):
        b = self.fb(n)
        if n < 32:
            i, p = divmod(n, 4); slot = i % 3
            hi = 12 if slot == 2 else 0; o = SLOT if slot == 1 else 0
            S = I(f"ds_read_b128 {vr(b)}, v{RS+hi+p} offset:{o}", "ds")
            A0 = I(f"ds_read_b128 {ar(8*n)}, v{RA+hi+p} offset:{o}", "ds")
            A1 = I(f"ds_read_b128 {ar(8*n+4)}, v{RA+hi+p} offset:{o+WBLK}", "ds")
            F = [I(f"ds_read_b64_tr_b16 {vr(b+4+2*k, 2)}, v{RF+hi+p} offset:{o + 6144 + k*512}", "ds") for k in range(2)]
            return [S, A0, A1] + F
        if n >= 64: return []
        i, p = divmod(n - 32, 4)
        hi = 12 if i < 4 else 0
        return [I(f"ds_read_b64_tr_b16 {vr(b+4+2*k, 2)}, v{RF+hi+p} offset:{2048*(i&3) + k*512}", "ds") for k in range(2)]

    def prologue(self, q):
        c = self.c
        q.e("s_cmp_ge_u32 s2, 256", "s_cbranch_scc1 L_end")
        q.e("s_load_dwordx16 s[16:31], s[0:1], 0", "s_load_dwordx4 s[36:39], s[0:1], 80", "s_load_dwordx2 s[44:45], s[0:1], 112",
            "s_load_dwordx2 s[32:33], s[0:1], 64", "s_load_dwordx2 s[40:41], s[0:1], 96")
        q.e("s_getpc_b64 s[64:65]", "L_pc:", "s_and_b32 s3, s2, 0xf8", "s_lshl_b32 s3, s3, 7", "v_lshlrev_b32 v9, 2, v0", "v_add_u32 v9, s3, v9",
            "v_min_u32 v9, L_end-L_pc, v9")
        q.e("global_load_dword v10, v9, s[64:65]")
        if c.ts: q.e("s_memtime s[42:43]", "s_memrealtime s[46:47]")
        if c.spin_to: q.e("s_memrealtime s[42:43]")
        q.e(f"v_and_b32 v{vL}, 63, v0", "v_lshrrev_b32 v2, 6, v0", f"v_readfirstlane_b32 s{sW}, v2")
        O = [pack_order(o) for o in ORDERS[c.order]]
        q.e("s_bitcmp1_b32 s2, 1", f"s_mov_b32 s{sT0}, {O[0]:#x}", f"s_cmov_b32 s{sT0}, {O[1]:#x}", f"s_mov_b32 s{sORD}, {O[2]:#x}", f"s_cmov_b32 s{sORD}, {O[3]:#x}",
            "s_bitcmp0_b32 s2, 2", f"s_cmov_b32 s{sORD}, s{sT0}")
        q.e(f"s_and_b32 s{sXB}, s2, 1", f"s_and_b32 s{sT0}, s2, 6", f"s_lshr_b32 s{sT2}, s2, 6",
            f"s_lshl1_add_u32 s{sC}, s{sT0}, s{sT2}", f"s_bfe_u32 s{sGL}, s2, 0x30003", f"s_lshl3_add_u32 s{sG}, s{sXB}, s{sGL}")
        q.e(f"s_and_b32 s{sT2}, s{sT2}, 1", f"s_lshl1_add_u32 s{sT0}, s{sGL}, s{sT2}", f"s_add_u32 s{sT1}, s{sGL}, 6",
            f"s_cmp_lt_u32 s{sGL}, 6", f"s_cselect_b32 s{sU0}, s{sT0}, s{sT1}", f"s_cselect_b32 s{R_W1B+2}, {512*3584}, 0", f"s_xor_b32 s{sU1}, s{sU0}, 1",
            f"s_lshr_b32 s{sWM}, s{sW}, 1", f"s_and_b32 s{sWN}, s{sW}, 1", f"s_lshl_b32 s{sLB}, s{sW}, 13")
        q.e(f"v_lshrrev_b32 v2, 3, v{vL}", f"v_and_b32 v3, 7, v{vL}", f"v_lshrrev_b32 v4, 4, v{vL}")
        q.e("v_xor_b32 v5, v3, v4", "v_lshlrev_b32 v5, 4, v5")
        q.e(f"v_lshrrev_b32 v7, 5, v{vL}", "v_and_b32 v8, 3, v2", "v_lshl_add_u32 v7, v7, 4, v8",
            f"s_lshl2_add_u32 s{sT0}, s{sC}, s{sW}", f"s_lshl_b32 s{sT0}, s{sT0}, 5",
            f"v_add_u32 v7, s{sT0}, v7", f"v_lshl_add_u32 v{vX}, v7, 10, v5",
            f"v_xor_b32 v{vX+1}, 64, v{vX}", f"v_add_u32 v{vX+1}, {3072}, v{vX+1}",
            f"v_add_u32 v{vX+2}, {6144}, v{vX}", f"v_add_u32 v{vX+3}, {6144}, v{vX+1}")
        q.e(f"s_lshl1_add_u32 s{sK4}, s{sG}, s{sWN}", f"s_lshl_b32 s{sK4}, s{sK4}, 4",
            f"v_add_u32 v7, s{sK4}, v2", f"v_lshl_add_u32 v{vB}, v7, 10, v5",
            f"v_xor_b32 v{vB+1}, 64, v{vB}", f"v_add_u32 v{vB+1}, {7168}, v{vB+1}")
        q.e(f"s_lshl_b32 s{sT0}, s{sW}, 4", f"v_add_u32 v7, s{sT0}, v2", "v_mul_u32_u24 v7, 3584, v7",
            "v_and_b32 v8, 1, v4", "v_lshlrev_b32 v8, 2, v8", "v_xor_b32 v8, v8, v3", f"v_lshl_add_u32 v{vW}, v8, 4, v7",
            f"v_add_u32 v{vW+1}, {8*3584-1024}, v{vW}",
            f"s_mul_i32 s{sT0}, s{sXB}, 14", f"s_add_u32 s{sT1}, s{sT0}, s{sU1}", f"s_add_u32 s{sT0}, s{sT0}, s{sU0}",
            f"s_lshl_b32 s{sT0}, s{sT0}, 7", f"s_lshl_b32 s{sT1}, s{sT1}, 7",
            f"s_sub_u32 s{R_W1A+2}, {512*3584}, s{sT0}", f"s_max_u32 s{R_W1B+2}, s{R_W1B+2}, s{sT1}", f"s_sub_u32 s{R_W1B+2}, s{R_W1B+2}, s{sT1}")
        for r, size in ((R_X, 2048*1024), (R_BS, 512*1024)): q.e(f"s_mov_b32 s{r+2}, {size}")
        for r in (R_X, R_BS, R_W1A, R_W1B): q.e(f"s_mov_b32 s{r+3}, 0x20000")
        q.e(f"v_lshl_add_u32 v{vC2}, v2, 10, v5", "v_lshlrev_b32 v7, 10, v2", f"v_lshl_add_u32 v{vW2}, v8, 4, v7")
        q.e(f"v_lshlrev_b32 v33, 4, v{vL}", f"v_and_b32 v6, 15, v{vL}", f"v_add_lshl_u32 v11, v6, s{sK4}, 1", "v_mov_b32 v15, 0")
        q.e(f"s_lshl1_add_u32 s{sT2}, s{sC}, s{sWM}", f"s_lshl4_add_u32 s{sT2}, s{sT2}, s{sG}", f"s_lshl1_add_u32 s{sT2}, s{sT2}, s{sWN}",
            f"s_lshl_b32 s{sPOLL}, s{sT2}, 11")
        G0, l0 = self.stage_dma(0)
        q.e(*G0[0][:-1])
        q.wds_all()
        if c.ts: q.e("v_mov_b32 v255, s46")
        q.e(f"s_mov_b32 s{R_X}, s{P_X}", f"s_and_b32 s{R_X+1}, s{P_X+1}, 0xffff")
        q.e(G0[0][-1]); [q.e(*g) for g in G0[1:4]]
        q.e(f"s_cmp_eq_u32 s{sWM}, 0", f"s_cselect_b32 s{R_BS}, s{P_BRE}, s{P_BIM}", f"s_cselect_b32 s{R_BS+1}, s{P_BRE+1}, s{P_BIM+1}", f"s_and_b32 s{R_BS+1}, s{R_BS+1}, 0xffff")
        [q.e(*g) for g in G0[4:6]]
        q.e(f"s_and_b32 s{P_W1+1}, s{P_W1+1}, 0xffff", f"s_add_u32 s{R_W1A}, s{P_W1}, s{sT0}", f"s_addc_u32 s{R_W1A+1}, s{P_W1+1}, 0")
        [q.e(*g) for g in G0[6:8]]
        q.e(f"s_add_u32 s{R_W1B}, s{P_W1}, s{sT1}", f"s_addc_u32 s{R_W1B+1}, s{P_W1+1}, 0")
        last = [l0]
        self.strows = [I(f"buffer_load_dwordx4 {vr(40)}, v33, {srd(R_X)}, s{sPOLL} offen", "vm"), I(f"buffer_load_dwordx4 {vr(44)}, v33, {srd(R_X)}, s{sPOLL} offen offset:1024", "vm")]
        if c.strow_at == -2: q.e(*self.strows)
        self.small0 = q.e(f"global_load_dword v16, v15, s[{P_WS}:{P_WS+1}] sc1")
        q.e(f"global_load_ushort v12, v11, s[{P_LRE}:{P_LRE+1}]", f"global_load_ushort v13, v11, s[{P_LIM}:{P_LIM+1}]")
        self.small = q.e(f"global_load_ushort v14, v11, s[{P_LDT}:{P_LDT+1}]")
        q.e(f"s_lshl_b32 s{sT1}, s{sGL}, 7", f"v_lshl_add_u32 v35, v6, 3, s{sT1}")
        self.dsk = q.e(f"global_load_dwordx2 {vr(38,2)}, v35, s[{P_DSK}:{P_DSK+1}]")
        f = Seq()
        f.e(f"v_and_b32 v2, 31, v{vL}", f"v_lshrrev_b32 v3, 5, v{vL}")
        f.e("v_bfe_u32 v7, v2, 1, 3", "v_xor_b32 v7, v7, v3", "v_lshlrev_b32 v7, 4, v7",
            f"v_lshl_add_u32 v{vCR}, v2, 7, v7",
            f"s_lshl_b32 s{sT1}, s{sWM}, 5", f"v_xor_b32 v7, s{sT1}, v7", f"v_xor_b32 v5, s{sT1}, v{vCR}",
            f"s_lshl_b32 s{sT1}, s{sWM}, 14", f"v_add_u32 v{RA}, s{sT1}, v5")
        f.e("v_lshl_add_u32 v7, v6, 7, v7", "v_and_b32 v8, 16, v2", "v_lshl_add_u32 v7, v8, 10, v7",
            f"s_lshl_b32 s{sT1}, s{sWN}, 13", f"s_add_u32 s{sT1}, s{sT1}, 4096", f"v_add_u32 v{RS}, s{sT1}, v7")
        for p in range(1, 4): f.e(f"v_xor_b32 v{RA+p}, {32*p}, v{RA}", f"v_xor_b32 v{RS+p}, {32*p}, v{RS}")
        f.e("v_lshrrev_b32 v9, 2, v6", "v_lshlrev_b32 v5, 7, v9", "v_and_b32 v7, 3, v6", "v_lshl_add_u32 v5, v7, 3, v5", "v_lshl_add_u32 v5, v8, 1, v5",
            "v_and_b32 v7, 8, v6", "v_lshl_add_u32 v5, v7, 3, v5",
            f"v_lshl_add_u32 v{vTR}, v3, 9, v5",
            "v_lshl_add_u32 v5, v3, 10, v5", f"s_lshl_b32 s{sT1}, s{sWN}, 6", f"s_lshl_b32 s{sT0}, s{sWM}, 13", f"s_or_b32 s{sT1}, s{sT1}, s{sT0}",
            f"v_xor_b32 v{RF}, s{sT1}, v5")
        for p in range(1, 4): f.e(f"v_xor_b32 v{RF+p}, {WBLK*p}, v{RF}")
        f.e(f"s_mov_b32 s{sONES}, 0x3f803f80", f"v_mov_b32 v{CS}, 0", f"v_mov_b32 v{CS+1}, 0")
        for k in range(4): f.e(f"v_mov_b32 v{48+k}, 0")
        for k in range(12): f.e(f"v_add_u32 v{RA+12+k}, {2*SLOT}, v{RA+k}")
        mk_srd(f, R_SY, P_WS, WS_END); mk_srd(f, R_W2, P_W2, 1792*1024); mk_srd(f, R_OUT, P_OUT, 2048*2048)
        f.e(f"s_and_b32 s{P_CRE+1}, s{P_CRE+1}, 0xffff", f"s_and_b32 s{P_CIM+1}, s{P_CIM+1}, 0xffff",
            f"s_bitcmp1_b32 s{sGL}, {0 if c.hrot else 5}", f"s_cselect_b64 s[{R_CRE}:{R_CRE+1}], s[{P_CIM}:{P_CIM+1}], s[{P_CRE}:{P_CRE+1}]",
            f"s_cselect_b64 s[{R_CIM}:{R_CIM+1}], s[{P_CRE}:{P_CRE+1}], s[{P_CIM}:{P_CIM+1}]")
        for r in (R_CRE, R_CIM): f.e(f"s_mov_b32 s{r+2}, {512*1024}", f"s_mov_b32 s{r+3}, 0x20000")
        q.extend(f)
        q.e(f"s_mul_i32 s{sT0}, s2, 56", f"s_mul_i32 s{sT1}, s{sWN}, 28", f"s_add_u32 s{sT0}, s{sT0}, s{sT1}", f"s_lshl_b32 s{sT1}, s2, 4", f"s_min_u32 s{sT1}, s{sT1}, {4096-28}",
            f"s_cmp_eq_u32 s{sWN}, 0", f"s_cselect_b32 s70, s{P_CRE}, s{P_CIM}", f"s_cselect_b32 s71, s{P_CRE+1}, s{P_CIM+1}",
            f"s_cmp_eq_u32 s{sWM}, 0", f"s_cselect_b32 s{sT0}, s{sT0}, s{sT1}",
            f"s_cselect_b32 s70, s{P_W2}, s70", f"s_cselect_b32 s71, s{P_W2+1}, s71",
            f"v_min_u32 v7, {c.pf_n - 1}, v{vL}", f"v_add_lshl_u32 v{vPF}, v7, s{sT0}, 7")
        f = Seq(); self.consts_early(f)
        G, l = self.stage_dma(1); last.append(l)
        q.extend(merge(f, G))
        if c.strow_at == -1: q.e(*self.strows)
        return last

    def consts_early(self, f):
        f.e("v_and_b32 v5, 1, v4", "v_lshl_add_u32 v32, v5, 1, v3")
        f.e(f"s_lshl_b32 s{sT2}, s{sT2}, 5", f"s_add_u32 s{sT2}, s{sT2}, {WS_STAT}", f"v_lshl_add_u32 v7, v3, 4, s{sT2}", f"v_lshl_add_u32 v{vSTS}, v2, 25, v7")
        f.e(f"s_lshl1_add_u32 s{sT0}, s{sC}, s{sXB}", f"s_lshl_b32 s{sT1}, s{sT0}, 13", f"s_add_u32 s{sT1}, s{sT1}, {WS_FLAG}",
            f"s_lshl_b32 s{sT2}, s{sW}, 3", f"s_mul_i32 s{sT0}, s{sWM}, 3", f"s_add_u32 s{sT0}, s{sT0}, s{sWN}", f"s_lshl_b32 s{sT0}, s{sT0}, 2", f"s_sub_u32 s{sT0}, s{sT0}, 8",
            f"v_mov_b32 v7, s{sT2}", f"v_mov_b32 v8, s{sT0}", f"v_cmp_gt_u32 vcc, 8, v{vL}", "v_cndmask_b32 v7, v8, v7, vcc",
            f"v_add_u32 v7, v7, v{vL}", f"v_lshl_add_u32 v7, v7, 8, s{sT1}", "v_lshl_add_u32 v36, v4, 28, v7",
            f"s_lshl2_add_u32 s{sT2}, s{sGL}, s{sW}", f"s_lshl_b32 s{sT2}, s{sT2}, 8", f"s_add_u32 s{sT1}, s{sT1}, s{sT2}",
            f"v_lshl_add_u32 v7, v2, 2, s{sT1}", f"v_lshl_add_u32 v{vFL}, v3, 30, v7", f"v_lshl_add_u32 v{vFP}, v3, 7, v7")
        f.e(f"s_lshl4_add_u32 s{sT0}, s{sC}, s{sG}", f"s_lshl1_add_u32 s{sT0}, s{sT0}, s{sWN}", f"s_lshl_b32 s{sT0}, s{sT0}, 9", f"s_add_u32 s{sT0}, s{sT0}, {WS_CS}",
            f"v_lshl_add_u32 v7, v{vL}, 3, s{sT0}", f"v_xor_b32 v{vGC}, 0x4000, v7", f"s_lshl_b32 s{sT2}, s{sWM}, 30", f"v_add_u32 v{vCSS}, s{sT2}, v7")
        f.e(f"s_lshl_b32 s{sT0}, s{sWN}, 8", f"v_lshl_add_u32 v8, v6, 4, s{sT0}",
            f"s_lshl1_add_u32 s{sNV}, s{sC}, s{sWM}", f"s_sub_u32 s{sT0}, 31, s{sNV}", f"s_lshl_b32 s{sT0}, s{sT0}, 9",
            f"s_lshl_b32 s{sT1}, s{sG}, 14", f"s_add_u32 s{sT1}, s{sT1}, {WS_AGG}", f"s_add_u32 s{sT1}, s{sT1}, s{sT0}",
            f"v_add_u32 v7, s{sT1}, v8", f"v_lshl_add_u32 v{vAGS}, v4, 28, v7",
            f"s_add_u32 s{sT0}, s{sT0}, 512", "v_sub_u32 v7, 3, v4", "v_lshl_add_u32 v7, v7, 12, v8", f"v_add_u32 v{vLBK}, s{sT0}, v7",
            f"s_lshl_b32 s{sNV}, s{sNV}, 4")

    def consts_late(self, f):
        f.e(f"v_and_b32 v7, 4, v{vL}", f"v_and_b32 v8, 35, v{vL}", "v_lshl_add_u32 v7, v7, 2, v8", f"v_and_b32 v8, 24, v{vL}", "v_lshrrev_b32 v8, 1, v8",
            "v_add_u32 v37, v7, v8")
        f.e(f"s_lshl1_add_u32 s{sT1}, s{sC}, s{sWM}", f"s_lshl_b32 s{sT1}, s{sT1}, 10", f"s_add_u32 s{sT1}, s{sT1}, {WS_STAT}",
            f"v_lshl_add_u32 v{vGS}, v37, 4, s{sT1}", "v_lshl_add_u32 v7, v32, 4, v6", f"v_lshl_add_u32 v{vGR}, v7, 4, s{sT1}")
        f.e(f"s_lshl_b32 s{sT0}, s{sW}, 9", f"s_add_u32 s{sT0}, s{sT0}, {L_CS}", f"v_lshl_add_u32 v{vGC+1}, v{vL}, 3, s{sT0}", f"v_xor_b32 v{vGC+2}, 1024, v{vGC+1}")
        f.e(f"s_lshl1_add_u32 s{sT0}, s{sC}, s{sXB}", f"s_lshl1_add_u32 s{sT1}, s{sT0}, s{sWM}", f"s_mul_i32 s{sT1}, s{sT1}, {HBLK}", f"s_add_u32 s{sT1}, s{sT1}, {WS_H}",
            f"s_lshl1_add_u32 s{sT0}, s{sT0}, s{sXB}", f"s_mul_i32 s{sB1}, s{sT0}, {HBLK}", f"s_xor_b32 s{sT0}, s{sT0}, 1", f"s_mul_i32 s{sB0}, s{sT0}, {HBLK}",
            f"s_add_u32 s{sB0}, s{sB0}, {WS_H}", f"s_add_u32 s{sB1}, s{sB1}, {WS_H}",
            f"s_lshl_b32 s{sHS}, s{sW}, 14", f"s_add_u32 s{sHS}, s{sHS}, {56*2048}")
        f.e(f"s_lshl_b32 s{sT0}, s{sWN}, 12", f"s_add_u32 s{sT0}, s{sT0}, s{sT1}", f"s_lshl_b32 s{sT2}, s{sU0}, 13", f"s_add_u32 s{sT2}, s{sT2}, s{sT0}",
            f"v_add_u32 v{vHF1}, s{sT2}, v33", f"s_lshl_b32 s{sT2}, s{sU1}, 13", f"s_add_u32 s{sT2}, s{sT2}, s{sT0}",
            f"s_min_u32 s{sT0}, s{R_W1B+2}, 1", f"s_sub_u32 s{sT0}, 1, s{sT0}", f"s_lshl_b32 s{sT0}, s{sT0}, 30", f"s_add_u32 s{sT2}, s{sT2}, s{sT0}",
            f"v_add_u32 v{vHF2}, s{sT2}, v33")
        f.e(f"s_lshr_b32 s{sT0}, s{sGL}, 1", f"s_and_b32 s{sT2}, s{sGL}, 1", f"s_lshl2_add_u32 s{sT0}, s{sT0}, s{sT2}", f"s_lshl1_add_u32 s{sT0}, s{sT0}, s{sWN}",
            f"s_add_u32 s{sT0}, s{sT0}, 56", f"s_lshl_b32 s{sT0}, s{sT0}, 11", f"s_add_u32 s{sT0}, s{sT0}, s{sT1}", f"v_add_u32 v{vHS}, s{sT0}, v33")
        f.e(f"s_and_b32 s{sT2}, s{sC}, 1", f"s_lshl2_add_u32 s{sT0}, s{sW}, s{sT2}", f"s_add_u32 s{sT1}, s{sT0}, 2",
            f"s_min_u32 s{sT0}, s{sT0}, 12", f"s_min_u32 s{sT1}, s{sT1}, 13", f"s_lshl_b32 s{UO[0]}, s{sT0}, 13", f"s_lshl_b32 s{UO[1]}, s{sT1}, 13",
            f"s_xor_b32 s{sT2}, s{sT2}, 1", f"s_mul_i32 s{sT0}, s{sWM}, 6", f"s_add_u32 s{sT0}, s{sT0}, s{sT2}",
            f"s_lshl2_add_u32 s{sT1}, s{sWN}, s{sT0}", f"s_lshl_b32 s{UO[2]}, s{sT1}, 13",
            f"s_add_u32 s{sT0}, s{sT0}, 2", f"s_lshl1_add_u32 s{sT0}, s{sT0}, s{sWN}", f"s_lshl_b32 s{UO[5]}, s{sT0}, 12")
        if self.c.hrot:
            f.e(f"s_and_b32 s{sT0}, s{sGL}, 1", f"s_sub_u32 s{sT0}, 0, s{sT0}", f"s_xor_b32 s{sT1}, s{UO[0]}, s{UO[1]}", f"s_and_b32 s{sT1}, s{sT1}, s{sT0}",
                f"s_xor_b32 s{UO[0]}, s{UO[0]}, s{sT1}", f"s_xor_b32 s{UO[1]}, s{UO[1]}, s{sT1}",
                f"s_and_b32 s{sT0}, s{sT0}, 8192", f"s_xor_b32 s{sHS}, s{sHS}, s{sT0}",
                f"s_and_b32 s{sT0}, s{sGL}, 2", f"s_lshl_b32 s{sT1}, s{sT0}, 11", f"s_lshl_b32 s{sT0}, s{sT0}, 5", f"v_xor_b32 v{vC2}, s{sT0}, v{vC2}")
            for r in (UO[0], UO[1], UO[2], sHS): f.e(f"s_xor_b32 s{r}, s{r}, s{sT1}")
        f.e(f"s_mul_i32 s{sLE}, s{sW}, {SPW}", f"s_add_u32 s{sLE}, s{sLE}, {L_SP}",
            f"s_mul_i32 s{sW2O}, s{sXB}, {896*1024}", f"s_lshl_b32 s{sT1}, s{sGL}, 7", f"s_add_u32 s{sW2O}, s{sW2O}, s{sT1}",
            f"s_lshl2_add_u32 s{sCO}, s{sXB}, s{sW}", f"s_lshl_b32 s{sCO}, s{sCO}, 7", f"s_lshl_b32 s{sT0}, s{sGL}, 16", f"s_add_u32 s{sCO}, s{sCO}, s{sT0}")
        f.e(f"v_xor_b32 v{vC2+1}, 64, v{vC2}", f"v_add_u32 v{vC2+1}, 7168, v{vC2+1}", f"v_add_u32 v{vC2+2}, 14336, v{vC2}", f"v_add_u32 v{vC2+3}, 14336, v{vC2+1}")
        for j in range(1, 4): f.e(f"v_add_u32 v{vW2+j}, {7168*j}, v{vW2}")
        f.e(f"s_lshl1_add_u32 s{sT0}, s{sC}, s{sXB}", f"s_lshl2_add_u32 s{sT0}, s{sT0}, s{sW}", f"s_lshl_b32 s{sT0}, s{sT0}, 4", f"v_add_u32 v7, s{sT0}, v4",
            "v_lshlrev_b32 v34, 4, v7", f"v_add_u32 v34, {WS_STAT}, v34", "v_lshl_add_u32 v18, v7, 10, v35", "v_lshlrev_b32 v19, 1, v18")
        f.e(f"s_lshl4_add_u32 s{sT0}, s{sC}, s{sG}", f"s_lshl2_add_u32 s{sT0}, s{sT0}, s{sW}", f"s_lshl_b32 s{sT0}, s{sT0}, 12", f"s_add_u32 s{sT0}, s{sT0}, {WS_XCH}",
            f"v_add_u32 v{vXS}, s{sT0}, v33", f"v_xor_b32 v{vXR}, 0x20000, v{vXS}")
        f.e("v_and_b32 v7, 7, v2", "v_xor_b32 v7, v7, v3", "v_lshlrev_b32 v7, 4, v7", "v_and_b32 v8, 31, v37", "v_lshl_add_u32 v7, v8, 8, v7",
            f"s_lshl_b32 s{sT0}, s{sW}, 14", f"v_add_u32 v{vRW}, s{sT0}, v7")
        for g4 in range(1, 4): f.e(f"v_xor_b32 v{vRW+g4}, {32*g4}, v{vRW}")
        f.e("v_xor_b32 v7, v6, v4", "v_lshlrev_b32 v7, 4, v7", "v_lshl_add_u32 v7, v4, 8, v7", f"s_lshl_b32 s{sT0}, s{sW}, 12", f"s_lshl_b32 s{sT1}, s{sWN}, 6",
            f"s_or_b32 s{sT0}, s{sT0}, s{sT1}", f"v_xor_b32 v{vRR}, s{sT0}, v7")
        f.e("v_and_b32 v7, 2, v6", "v_and_b32 v8, 1, v6", "v_lshl_add_u32 v7, v7, 1, v8", "v_and_b32 v8, 4, v6", "v_lshrrev_b32 v8, 1, v8", "v_or_b32 v7, v7, v8",
            "v_lshlrev_b32 v8, 1, v32", "v_xor_b32 v7, v7, v8", "v_lshlrev_b32 v7, 4, v7", "v_lshl_add_u32 v7, v6, 7, v7",
            f"s_add_u32 s{sT0}, s{sLE}, 8192", f"v_add_u32 v{vTW}, s{sT0}, v7", f"v_xor_b32 v{vTW+1}, 16, v{vTW}")
        f.e("v_and_b32 v5, 1, v6", "v_and_b32 v8, 16, v2", "v_lshl_add_u32 v5, v5, 5, v8", "v_and_b32 v8, 2, v6", "v_lshl_add_u32 v5, v8, 2, v5")
        f.e("v_and_b32 v7, 2, v9", "v_and_b32 v8, 1, v9", "v_lshl_add_u32 v7, v7, 1, v8", "v_lshlrev_b32 v7, 4, v7", "v_xor_b32 v7, v7, v5",
            "v_lshl_add_u32 v8, v3, 3, v9", "v_lshl_add_u32 v7, v8, 7, v7", f"v_add_u32 v{vTD}, s{sT0}, v7")

    def ssm_consts(self, q):
        q.wvm(self.small)
        q.e("v_lshlrev_b32 v14, 16, v14", "v_lshlrev_b32 v12, 16, v12", f"v_mul_f32 v14, {fh(1.4426950408889634)}, v14", "v_lshlrev_b32 v13, 16, v13",
            "v_exp_f32 v14, v14", "v_lshlrev_b32 v3, 4, v32", "v_cvt_pk_bf16_f32 v14, v14, v14", "v_lshlrev_b32 v14, 16, v14",
            "v_mul_f32 v17, v14, v12", "v_mul_f32 v15, v14, v13",
            f"v_mul_f32 v17, {fh(1.4426950408889634)}, v17", f"v_mul_f32 v15, {fh(0.15915494309189535)}, v15",
            "v_cvt_f32_u32 v3, v3", "v_sub_u32 v4, 3, v4", "v_lshlrev_b32 v4, 9, v4", "v_cvt_f32_u32 v4, v4")
        def cexp(d, n):
            q.e(f"v_mul_f32 v6, {n}, v15", f"v_mul_f32 v5, {n}, v17", "v_fract_f32 v6, v6", "v_exp_f32 v5, v5", f"v_cos_f32 v{d}, v6", f"v_sin_f32 v{d+1}, v6",
                f"v_mul_f32 v{d}, v{d}, v5", f"v_mul_f32 v{d+1}, v{d+1}, v5")
        cexp(20, "1.0"); cexp(22, fh(16.0)); cexp(24, fh(64.0)); cexp(26, "v3"); cexp(28, "v4")
        q.e("v_mul_f32 v6, v12, v12", "v_fmac_f32 v6, v13, v13", "v_rcp_f32 v6, v6", "v_add_f32 v5, -1.0, v20",
            "v_mul_f32 v30, v5, v12", "v_fmac_f32 v30, v21, v13", "v_mul_f32 v31, v21, v12", "v_fma_f32 v31, -v5, v13, v31",
            "v_add_f32 v6, v6, v6", "v_mul_f32 v30, v30, v6", "v_mul_f32 v31, v31, v6")

    def check(self, name, loads, test):
        q = Seq()
        q.wvm(loads[-1])
        q.e(*test)
        q.e(f"s_cbranch_scc1 L_{name}_slow")
        q.label(f"L_{name}_ok")
        o = self.ool
        o.label(f"L_{name}_slow")
        o.e(f"s_mov_b32 s{sPOLL}, 0x40000")
        o.label(f"L_{name}_loop")
        o.e(f"s_sleep {self.c.poll_sleep}")
        for l in loads: o.append(I(l.t, "o"))
        o.e("s_waitcnt vmcnt(0)", f"s_sub_u32 s{sPOLL}, s{sPOLL}, 1", f"s_cbranch_scc1 L_{name}_ok")
        o.e(*test)
        o.e(f"s_cbranch_scc1 L_{name}_loop", f"s_branch L_{name}_ok")
        return list(q)
    def tags(self, regs, lo=False):
        if len(regs) == 1: return [f"v_cmp_ne_u32 vcc, s{sTAG}, v{regs[0]}", f"s_and_b32 s{sM}, vcc_lo, {lo}" if lo else "s_cmp_lg_u64 vcc, 0"]
        t = [f"v_cmp_ne_u32 s[{sM}:{sM+1}], s{sTAG}, v{regs[0]}"]
        for r in regs[1:]: t += [f"v_cmp_ne_u32 vcc, s{sTAG}, v{r}", f"s_or_b64 s[{sM}:{sM+1}], s[{sM}:{sM+1}], vcc"]
        return t

    def cmul_acc(self, q, d, a, b, c, c2=None):
        c2 = c + 1 if c2 is None else c2
        q.e(f"v_fma_f32 v{d}, v{a}, v{b}, v{c}", f"v_fma_f32 v{d+1}, v{a}, v{b+1}, v{c2}",
            f"v_fma_f32 v{d}, -v{a+1}, v{b+1}, v{d}", f"v_fma_f32 v{d+1}, v{a+1}, v{b}, v{d+1}")
    def cmul(self, q, d, a, b):
        q.e(f"v_mul_f32 v{d}, v{a}, v{b}", f"v_mul_f32 v{d+1}, v{a}, v{b+1}",
            f"v_fma_f32 v{d}, -v{a+1}, v{b+1}, v{d}", f"v_fma_f32 v{d+1}, v{a+1}, v{b}, v{d+1}")

    def w2_area(self, pc):
        return {0: (sLE, 0), 5: (sLE, 8192), 1: (sLB, SLOT), 2: (sLB, 2*SLOT), 3: (sLE, 0), 4: (sLB, SLOT)}[pc]
    def w2_dma(self, pc, run=4):
        sb, ao = self.w2_area(pc)
        G = []
        for k in range(4 if pc == 5 else 8):
            g = []; j = k % run
            if pc in UO:
                if j == 0:
                    g.append(I(f"s_add_u32 m0, s{sb}, {ao + 1024*k}"))
                    if k: g += [I(f"s_xor_b32 s{sKX}, s{UO[pc]}, {k*1024}"), I(f"s_lshl3_add_u32 s{sKX}, s{sKX}, s{sW2O}")]
                    else: g.append(I(f"s_lshl3_add_u32 s{sKX}, s{UO[pc]}, s{sW2O}"))
                g.append(I(f"buffer_load_dwordx4 v{vW2+j}, {srd(R_W2)}, s{sKX} offen offset:{1024*j} lds", "vm"))
            else:
                if j == 0: g += [I(f"s_add_u32 m0, s{sb}, {ao + 1024*k}"), I(f"s_add_u32 s{sKX}, s{sCO}, {8*k*1024}")]
                g.append(I(f"buffer_load_dwordx4 v{vC2+j}, {srd(R_CRE if pc == 3 else R_CIM)}, s{sKX} offen offset:{1024*j} lds", "vm"))
            G.append(g)
        self.w2_last[pc] = G[-1][-1]
        return G
    def w2_reads(self, pc):
        sb, ao = self.w2_area(pc)
        L = Seq()
        if pc in UO:
            L.e(f"v_add_u32 v{vTA}, s{sb}, v{vTR}")
            if ao >= 2 * SLOT: L.e(f"v_add_u32 v{vTA}, {ao}, v{vTA}"); ao = 0
            L.e(f"v_xor_b32 v{vTA+1}, 64, v{vTA}")
            L.wvm(self.w2_last[pc])
            j0 = {0: 0, 1: 4, 2: 8, 5: 12}[pc]
            for k in range(2 if pc == 5 else 4):
                for nu in range(2):
                    for e in range(2):
                        a = 8 * (j0 + k) + 4 * nu + 2 * e
                        r = L.e(f"ds_read_b64_tr_b16 {ar(a,2)}, v{vTA+nu} offset:{ao + 2048*k + 1024*e}")
        else:
            L.e(f"v_add_u32 v{vTA}, s{sb}, v{vCR}")
            for k in range(1, 4): L.e(f"v_xor_b32 v{vTA+k}, {32*k}, v{vTA}")
            L.wvm(self.w2_last[pc])
            j0 = 14 if pc == 3 else 18
            for k in range(4):
                for nu in range(2):
                    r = L.e(f"ds_read_b128 {ar(8*(j0+k)+4*nu)}, v{vTA+k} offset:{ao + 4096*nu}")
        self.w2_rd[pc] = r
        return groups(L)
    def after_reads(self, pc, G):
        w = Seq(); w.wds(self.w2_rd[pc])
        return [list(w) + G[0]] + G[1:]

    def ffn_epi(self, a, voff):
        f = Seq()
        for t in range(2):
            b = a + 16 * t
            for j in range(8): f.e(f"v_pk_mul_f32 {vr(b+2*j,2)}, {vr(b+2*j,2)}, {vr(42,2)} op_sel:[0,{t}] op_sel_hi:[1,{t}]")
            for j in range(8): f.e(f"v_cvt_pk_bf16_f32 v{b+j}, v{b+2*j}, v{b+2*j+1}")
            for j in range(8): f.e(f"v_pk_max_i16 v{b+j}, v{b+j}, 0")
        st = [I(f"buffer_store_dwordx4 {vr(a+16*t+4*al)}, v{voff}, {srd(R_SY)}, 0 offen offset:{2048*al + 1024*t} sc1", "vm") for t in range(2) for al in range(2)]
        return f, st

    def split3(self, s, src, d):
        s.e(f"v_and_b32 v240, 0xffff0000, v{src}", f"v_sub_f32 v240, v{src}, v240",
            f"v_perm_b32 v{d}, v240, v{src}, s{sONES}", "v_and_b32 v241, 0xffff0000, v240", "v_sub_f32 v241, v240, v241",
            f"v_cvt_pk_bf16_f32 v{d+1}, v241, 0")

    def flag_store(self, kind, after):
        q = Seq(); q.wvm(after)
        q.e(f"buffer_store_dword v251, v{vFL}, {srd(R_SY)}, 0 offen offset:{128*kind} sc1")
        return list(q)

    def phase1(self, q, last):
        c = self.c
        RE, IM = ACC_S, ACC_S + 16
        MF8 = "v_mfma_f32_32x32x8_bf16"; MF = "v_mfma_f32_32x32x16_bf16"
        MFR = 200
        q.wvm(last[0]); q.e("s_barrier"); self.stamp(q)
        D = 2; D2 = 3
        RD = {}
        for n in range(D): RD[n] = self.frag_reads(n); q.e(*RD[n])
        G, l = self.stage_dma(2); last.append(l)
        dma = Stream(G, every=1)
        s = Seq()
        s.e(f"v_readfirstlane_b32 s{sTAG}, v16", "v_permlane32_swap_b32 v48, v49", "v_permlane32_swap_b32 v50, v51", f"s_add_u32 s{sTAG}, s{sTAG}, {hex(TAGK)}",
            "v_add_f32 v48, v48, v49", "v_add_f32 v50, v50, v51", f"s_or_b32 s{sTAG}, s{sTAG}, 1", f"v_mov_b32 v54, s{sTAG}",
            "v_permlane16_swap_b32 v48, v50", "v_add_f32 v48, v48, v50", f"v_mov_b32 v251, s{sTAG}")
        for k in (8, 4, 2, 1): s.e(f"v_add_f32_dpp v48, v48, v48 row_ror:{k} row_mask:0xf bank_mask:0xf")
        s.e("v_mov_b32 v49, v48", "v_permlane16_swap_b32 v48, v49",
            f"v_mul_f32 v48, {fh(1/512)}, v48", f"v_mul_f32 v49, {fh(1/512)}, v49", "v_fma_f32 v49, -v48, v48, v49", "v_max_f32 v49, 0, v49",
            "v_cvt_pk_bf16_f32 v49, v49, v49", "v_lshlrev_b32 v49, 16, v49", f"v_add_f32 v49, {fh(1e-5)}, v49",
            "v_cvt_pk_bf16_f32 v49, v49, v49", "v_lshlrev_b32 v49, 16, v49", "v_sqrt_f32 v49, v49",
            "v_cvt_pk_bf16_f32 v53, -v48, -v48",
            "v_cvt_pk_bf16_f32 v49, v49, v49", "v_lshlrev_b32 v49, 16, v49", "v_rcp_f32 v52, v49")
        s.e(f"buffer_store_dwordx4 {vr(52)}, v{vSTS}, {srd(R_SY)}, 0 offen sc1")
        sA = Stream(groups(s), start=4 * (c.stat_at + 1), dl=4 * c.stat_at + 28)
        s = Seq(); self.consts_late(s); self.ssm_consts(s)
        sC_ = Stream(groups(s), dl=c.gather_at - 1)
        gl_ = [I(f"buffer_load_dwordx3 {vr(40,3)}, v{vGS}, {srd(R_SY)}, 0 offen sc1", "vm"), I(f"buffer_load_dwordx3 {vr(44,3)}, v{vGR}, {srd(R_SY)}, 0 offen sc1", "vm")]
        A = [gl_, ("nb", c.check_at), self.check("ga", gl_, self.tags([42, 46]))]
        s = Seq()
        s.e(f"v_mov_b32 v{MFR}, v41", f"v_mov_b32 v{MFR+2}, v41", "v_mov_b32 v42, v40", "v_mov_b32 v43, v40",
            f"s_lshl_b32 s{sT0}, s{sG}, 14", f"s_add_u32 s{sT0}, s{sT0}, {WS_AGG}",
            f"v_permlane32_swap_b32 v{MFR}, v{MFR+2}", "v_permlane32_swap_b32 v42, v43", f"v_mov_b32 v{MFR+1}, v{MFR}", f"v_mov_b32 v{MFR+3}, v{MFR+2}")
        A += groups(s)
        A.append([I(f"s_add_u32 s{R_AG}, s{R_SY}, s{sT0}"), I(f"s_addc_u32 s{R_AG+1}, s{R_SY+1}, 0"), I(f"s_movk_i32 s{R_AG+2}, 16384")])
        assert c.check_at >= 92
        sG_ = Stream(A, start=c.gather_at, dl=119)
        early = self.w2_dma(0, 2) + self.w2_dma(5, 2)
        self.xl = []; X = []
        for ii in range(4):
            self.xl.append(I(f"buffer_load_dwordx2 {vr(2+4*ii,2)}, v18, {srd(R_X)}, s{sK4} offen", "vm"))
            X.append([I(f"s_movk_i32 s{sK4}, {4096*ii}"), self.xl[-1]])
        X.append(("nb", 120))
        for ii in range(4):
            self.xl.append(I(f"buffer_load_dwordx2 {vr(4+4*ii,2)}, v34, {srd(R_SY)}, 0 offen offset:{64*ii} sc1", "vm")); X.append([self.xl[-1]])
        assert c.check_at < 116
        sX_ = Stream(X, start=106, dl=127, every=2)
        for n in range(32):
            p = n & 3
            b = self.fb(n); rd = RD[n]
            if (n + D) % 4 == 0:
                i = (n + D) // 4 - 1
                flush(q, [dma])
                q.wds_all()
                if i < 7: q.wvm(last[i + 1])
                q.e("s_barrier")
                if i in c.ts_stages: self.stamp(q)
                if i < 6:
                    G, l = self.stage_dma(i + 3); last.append(l)
                    if c.early_from <= i < 6:
                        assert not sC_.it
                        G = G + early[:c.early_n]; early = early[c.early_n:]
                    dma = Stream(G, every=2)
                if i == 7: csr = q.e(f"ds_read_b64 {vr(62,2)}, v{vGC+2}")
            if n >= c.pf_from and (n - c.pf_from) % c.pf_step == 0 and (n - c.pf_from) // c.pf_step * c.pf_n < 28:
                q.e(f"global_load_dword v10, v{vPF}, s[70:71] offset:{(n - c.pf_from) // c.pf_step * c.pf_n * 128}")
            if n == c.l2pf_at:
                q.e(f"s_lshr_b32 s{sT0}, s2, 3", f"s_lshl2_add_u32 s{sT1}, s{sT0}, s{sW}", f"s_mul_i32 s{sT1}, s{sT1}, {56*128}", f"s_mul_i32 s{sT2}, s{sXB}, {896*1024}",
                    f"s_add_u32 s{sT1}, s{sT1}, s{sT2}", f"v_min_u32 v240, 55, v{vL}", "v_lshlrev_b32 v240, 7, v240")
                q.e(f"buffer_load_dword v219, v240, {srd(R_W2)}, s{sT1} offen")
                q.e(f"s_lshl2_add_u32 s{sT1}, s{sT0}, s{sW}", f"s_lshl_b32 s{sT1}, s{sT1}, 12", f"s_lshl_b32 s{sT2}, s{sXB}, 9", f"s_add_u32 s{sT1}, s{sT1}, s{sT2}",
                    f"v_and_b32 v240, 3, v{vL}", f"v_bfe_u32 v241, v{vL}, 2, 2", "v_lshlrev_b32 v240, 7, v240", "v_lshl_add_u32 v240, v241, 10, v240")
                q.e(f"buffer_load_dword v219, v240, {srd(R_CRE)}, s{sT1} offen", f"buffer_load_dword v219, v240, {srd(R_CIM)}, s{sT1} offen")
            if n == c.pt_at:
                for v in (vFP, vAGS, vCSS): q.e(f"buffer_load_dword v219, v{v}, {srd(R_SY)}, 0 offen")
            if n == c.strow_at: q.e(*self.strows)
            nxt = []
            if n + D < 32: nxt = RD[n + D] = self.frag_reads(n + D)
            z = lambda a: ("0" if n == 0 else vr(a, 16))
            M = [f"{MF} {vr(ACC_F1,16)}, {vr(b+4)}, {ar(8*n)}, {z(ACC_F1)}", f"{MF} {vr(ACC_F1+16,16)}, {vr(b+4)}, {ar(8*n+4)}, {z(ACC_F1+16)}",
                 f"{MF} {vr(RE,16)}, {ar(8*n)}, {vr(b)}, {z(RE)}", f"{MF} {vr(IM,16)}, {ar(8*n+4)}, {vr(b)}, {z(IM)}"]
            sched = [2, 1, 1, 2]
            k = 0
            for j, m in enumerate(M):
                q.wds(rd[4]); q.e(m)
                mine = nxt[k:k + sched[j]]; k += sched[j]
                q.e(*mine)
                fill_gap(q, 4 * n + j, len(mine), c.cap1, [dma, sA, sG_, sC_, sX_])
                if n == 30 and j == 2:
                    q.e(f"s_mov_b32 s{sONES}, 0x07060302"); q.wds(csr)
                    q.e(f"v_add_f32 v{CS+1}, v{CS+1}, v63", f"v_add_f32 v{CS}, v{CS}, v62")
                if n == 30 and j == 3: self.split3(q, CS + 1, 222)
                if n == 31 and j == 0: self.split3(q, CS, 204)
                if n == 31 and j == 1:
                    flush(q, [sG_])
                    for t in range(2): q.e(f"{MF8} {vr(ACC_F1+16*t,16)}, {vr(222,2)}, {vr(MFR+2*t,2)}, {vr(ACC_F1+16*t,16)}")
            if n == c.stat_at:
                q.wvm(self.small0, self.strows[1])
                for r in range(4):
                    q.e(f"v_dot2c_f32_bf16 v48, s{sONES}, v{40+r}", f"v_dot2c_f32_bf16 v49, s{sONES}, v{44+r}",
                        f"v_dot2c_f32_bf16 v50, v{40+r}, v{40+r}", f"v_dot2c_f32_bf16 v51, v{44+r}, v{44+r}")
            if p == 1:
                if dma.it: q.e(*dma.it.pop(0))
                for e in (n - 1, n + 1):
                    q.wds(RD[e][4]); be = self.fb(e)
                    for r in range(4):
                        q.e(f"v_dot2c_f32_bf16 v{CS}, s{sONES}, v{be+r}", f"v_dot2c_f32_bf16 v{CS+1}, s{sONES}, v{be+4+r}")
            if n == 29: q.e(f"ds_write_b64 v{vGC+1}, {vr(CS,2)}")
        for t in range(2): q.e(f"{MF8} {vr(RE+16*t,16)}, {vr(MFR+2*t,2)}, {vr(204,2)}, {vr(RE+16*t,16)}")
        self.stamp(q)
        G9, l = self.stage_dma(9); last.append(l)
        f, st = self.ffn_epi(ACC_F1, vHF1)
        q.e(f"v_mov_b32 v{CS}, s{sTAG}")
        q.extend(merge(f, G9[:c.g9_pre]))
        st = [I(f"buffer_store_dwordx2 {vr(CS,2)}, v{vCSS}, {srd(R_SY)}, 0 offen sc1", "vm")] + st
        s = Seq()
        for i in range(16): s.e(f"v_permlane16_swap_b32 v{RE+i}, v{IM+i}")
        cr, ci = RE, IM
        def scale(i): s.e(f"v_mul_f32_dpp v{RE+i}, v44, v{RE+i} row_newbcast:{i} row_mask:0xf bank_mask:0xf", f"v_mul_f32_dpp v{IM+i}, v44, v{IM+i} row_newbcast:{i} row_mask:0xf bank_mask:0xf")
        scale(0); scale(1)
        for i in range(1, 16):
            d = 48 if i & 1 else 46
            s.e(f"v_fma_f32 v{d}, v20, v{cr}, v{RE+i}", f"v_fma_f32 v{d+1}, v20, v{ci}, v{IM+i}")
            if i < 15: scale(i + 1)
            s.e(f"v_fma_f32 v{d}, -v21, v{ci}, v{d}", f"v_fma_f32 v{d+1}, v21, v{cr}, v{d+1}")
            cr, ci = d, d + 1
        q.extend(merge(s, [[x] for x in st] + G9[c.g9_pre:]))
        s = Seq()
        s.e("v_mov_b32 v50, v48", "v_mov_b32 v51, v49", f"v_mov_b32 v62, s{sTAG}", "v_mov_b32 v40, 0",
            "v_permlane32_swap_b32 v48, v50", "v_permlane32_swap_b32 v49, v51",
            "v_mov_b32 v52, v48", "v_mov_b32 v54, v50", "v_mov_b32 v53, v49", "v_mov_b32 v55, v51",
            "v_permlane16_swap_b32 v48, v52", "v_permlane16_swap_b32 v50, v54", "v_permlane16_swap_b32 v49, v53", "v_permlane16_swap_b32 v51, v55", "v_mov_b32 v41, 0")
        self.cmul_acc(s, 50, 22, 48, 50); self.cmul_acc(s, 52, 22, 50, 52); self.cmul_acc(s, 60, 22, 52, 54)
        s.e(f"buffer_store_dwordx4 {vr(60)}, v{vAGS}, {srd(R_SY)}, 0 offen sc1")
        q.extend(s)
        self.stamp(q)
        q.wvm(last[8]); q.e("s_barrier")
        for e in range(32, 32 + D2):
            RD[e] = self.frag_reads(e); q.e(*RD[e])
        cl_ = I(f"buffer_load_dwordx2 {vr(CS,2)}, v{vGC}, {srd(R_SY)}, 0 offen sc1", "vm")
        S1 = []
        for j in range(1, 4):
            S1.append([I(f"v_cmp_eq_u32 vcc, {j}, v32"), I(f"v_cndmask_b32 v40, v40, v{46+2*j}, vcc"), I(f"v_cndmask_b32 v41, v41, v{47+2*j}, vcc")])
        s = Seq()
        for i in range(16):
            s.e(f"v_mul_f32 v46, v31, v{IM+i}", f"v_mul_f32 v{IM+i}, v30, v{IM+i}", f"v_fmac_f32 v{IM+i}, v31, v{RE+i}", f"v_fma_f32 v{RE+i}, v30, v{RE+i}, -v46")
        sS1 = Stream(S1 + groups(s))
        self.fa = I(f"buffer_load_dword v{vFP}, v36, {srd(R_SY)}, 0 offen sc1", "vm")
        W = early + self.w2_dma(1) + self.w2_dma(2)
        W = W[:c.w2_first] + [("nb", c.w2_at2), self.flag_store(0, st[-1]) + [cl_]] + W[c.w2_first:c.w2_first + c.w2_n2] + [("nb", c.w2_at3)] + W[c.w2_first + c.w2_n2:]
        for g in S1[:3]: q.e(*g)
        sS1.it = sS1.it[3:]
        sR0 = Stream(self.w2_reads(0), start=c.r0_at)
        W += self.after_reads(0, self.w2_dma(3))
        sW2 = Stream(W, every=2)
        self.lb = [I(f"buffer_load_dwordx3 {vr(96+4*t,3)}, v{vLBK}, {srd(R_AG)}, 0 offen offset:{512*t} sc1", "vm") for t in range(8)]
        sLB_ = Stream([[x] for x in self.lb], start=c.lb_at, every=c.lb_every)
        r5 = self.w2_reads(5)
        _, B, self.ssm_last = self.ssm_part2()
        sR0.it += r5
        if c.b_at < 64: sR0.dl = c.b_at - 1; sS1.dl = c.b_at - 1
        sB2 = Stream(B[:-1], start=c.b_at); self.hst = B[-1]
        sBase = Stream(self.base_stream(), start=64)
        K9 = 16 - D2
        for n in range(32, 64):
            k = n - 32
            b = self.fb(n)
            if k == K9:
                q.wds_all(); q.wvm(last[9]); q.e("s_barrier")
            nxt = RD[n + D2] = self.frag_reads(n + D2)
            for t in range(2):
                d = ACC_F2 + 16 * t
                q.wds(RD[n][-1])
                q.e(f"{MF} {vr(d,16)}, {vr(b+4)}, {ar(8*k+4*t)}, {'0' if k == 0 else vr(d,16)}")
                q.e(*nxt[t:t+1])
                fill_gap(q, 2 * k + t, 1.25, c.cap2, [sLB_, sW2, sS1, sR0, sB2, sBase])
                if k == 30 and t == 0: q.extend(self.check("c2", [cl_], self.tags([CS])))
                if k == 30 and t == 1: self.split3(q, CS + 1, 222)
        for t in range(2): q.e(f"{MF8} {vr(ACC_F2+16*t,16)}, {vr(222,2)}, {vr(MFR+2*t,2)}, {vr(ACC_F2+16*t,16)}")
        self.stamp(q)
        self.left = (sW2.rest(), sS1.rest(), sR0.rest(), sLB_.rest(), sB2.rest())
        self.base_left = sBase.rest()

    def ssm_part2(self):
        RE, IM = ACC_S, ACC_S + 16
        LB = 96
        lb = self.lb
        pr_ = [48, 50, 56, 58, 60, 62, 70, sM]
        test = [f"v_cmp_eq_u32 s[{pr_[t]}:{pr_[t]+1}], s{sTAG}, v{LB+4*t+2}" for t in range(8)]
        test += [f"s_bcnt1_i32_b64 s{pr_[t]}, s[{pr_[t]}:{pr_[t]+1}]" for t in range(8)]
        test += [f"s_add_u32 s{pr_[0]}, s{pr_[0]}, s{pr_[t]}" for t in range(1, 8)]
        test.append(f"s_cmp_lg_u32 s{pr_[0]}, s{sNV}")
        B = [self.check("lb", lb, test)]
        q = Seq()
        self.stamp(q)
        for t in range(6, -1, -1): self.cmul_acc(q, LB + 4 * t, 24, LB + 4 * (t + 1), LB + 4 * t)
        self.cmul(q, 62, 28, LB)
        for sw in ("16", "32"):
            q.e("v_mov_b32 v60, v62", "v_mov_b32 v61, v63", f"v_permlane{sw}_swap_b32 v60, v62", f"v_permlane{sw}_swap_b32 v61, v63",
                "v_add_f32 v62, v60, v62", "v_add_f32 v63, v61, v63")
        self.cmul_acc(q, 60, 26, 62, 40)
        self.cmul(q, 62, 30, 60)
        self.nB1 = len(groups(q)) + 1
        pr, pi_ = 62, 63
        for i in range(16):
            q.e(f"v_fma_f32 v{RE+i}, v20, v{pr}, v{RE+i}", f"v_fma_f32 v{IM+i}, v20, v{pi_}, v{IM+i}",
                f"v_fma_f32 v{RE+i}, -v21, v{pi_}, v{RE+i}", f"v_fma_f32 v{IM+i}, v21, v{pr}, v{IM+i}")
            pr, pi_ = RE + i, IM + i
            if i & 1:
                j = i >> 1
                q.e(f"v_cvt_pk_bf16_f32 v{44+j}, v{RE+2*j}, v{RE+2*j+1}", f"v_cvt_pk_bf16_f32 v{52+j}, -v{IM+2*j}, -v{IM+2*j+1}")
            if i == 7:
                q.wds(self.w2_rd[5])
                q.e(f"ds_write_b128 v{vTW}, {vr(44)}", f"ds_write_b128 v{vTW}, {vr(52)} offset:2048")
        q.e(f"ds_write_b128 v{vTW+1}, {vr(48)}", f"ds_write_b128 v{vTW+1}, {vr(56)} offset:2048")
        q.e(f"v_xor_b32 v61, {512|32}, v{vTD}", f"v_xor_b32 v62, 64, v{vTD}", "v_xor_b32 v63, 64, v61", f"s_movk_i32 s{sT1}, 8192")
        ad = {(0, 0): vTD, (0, 1): 61, (1, 0): 62, (1, 1): 63}
        for part in range(2):
            for mu in range(2):
                for e in range(2):
                    tr = q.e(f"ds_read_b64_tr_b16 {vr(64 + 8*part + 4*mu + 2*e,2)}, v{ad[mu, e]} offset:{2048*part}")
        B += groups(q)
        st = [I(f"buffer_store_dwordx4 {vr(64+8*part+4*mu)}, v{vHS}, {srd(R_SY)}, {('0', f's{sT1}')[part]} offen offset:{1024*mu} sc1", "vm") for part in range(2) for mu in range(2)]
        w = Seq(); w.wds(tr)
        B.append(list(w) + st)
        return lb, B, st[-1]

    def base_stream(self):
        f = Seq()
        T = 88; D = 20; r = 24
        f.wvm(self.xl[-1])
        f.e(f"v_lshlrev_b32 v{D}, 16, v38", f"v_and_b32 v{D+1}, 0xffff0000, v38", f"v_lshlrev_b32 v{D+2}, 16, v39", f"v_and_b32 v{D+3}, 0xffff0000, v39")
        for ii in range(4):
            b = BASE + 4 * ii
            f.e(f"v_mov_b32 v{r}, v{b+2}", f"v_lshlrev_b32 v{r+1}, 16, v{b+3}",
                f"v_lshlrev_b32 v{b+2}, 16, v{b+1}", f"v_and_b32 v{b+3}, 0xffff0000, v{b+1}", f"v_and_b32 v{b+1}, 0xffff0000, v{b}", f"v_lshlrev_b32 v{b}, 16, v{b}")
            for e in range(4): f.e(f"v_add_f32 v{T+e}, v{b+e}, v{r+1}")
            def rnd():
                f.e(f"v_cvt_pk_bf16_f32 v{T+4}, v{T}, v{T+1}", f"v_cvt_pk_bf16_f32 v{T+5}, v{T+2}, v{T+3}",
                    f"v_lshlrev_b32 v{T}, 16, v{T+4}", f"v_and_b32 v{T+1}, 0xffff0000, v{T+4}", f"v_lshlrev_b32 v{T+2}, 16, v{T+5}", f"v_and_b32 v{T+3}, 0xffff0000, v{T+5}")
            rnd()
            for e in range(4): f.e(f"v_mul_f32 v{T+e}, v{T+e}, v{r}")
            rnd()
            for e in range(4): f.e(f"v_mul_f32 v{T+e}, v{T+e}, v{D+e}")
            rnd()
            for e in range(4): f.e(f"v_add_f32 v{b+e}, v{b+e}, v{T+e}")
        return groups(f)

    def phase2(self, q):
        c = self.c
        NR = c.nring; ak = c.akept; NT = c.ntail; LEAD = c.lead
        assert ak % 2 == 0 and ak <= 8 and NR >= LEAD + NT - 1 and NR <= 10
        wl, sl, rl, ll, B = self.left
        ssm_last = self.ssm_last
        for g in sl + rl: q.e(*g)
        f, st2 = self.ffn_epi(ACC_F2, vHF2)
        r1 = self.w2_reads(1)
        f2 = Seq()
        for g in r1: f2.e(*g)
        f2.extend(f)
        wl = wl + self.after_reads(1, self.w2_dma(4))
        q.extend(merge(f2, [[self.fa]] + ll + wl[:c.left_pre], start=0))
        wl = wl[c.left_pre:]
        k = c.b_mid
        f = Seq()
        for g in B[:k]: f.e(*g)
        assert not any(x.kind == "label" for x in f)
        q.e(st2[0]); q.extend(merge(f, [[x] for x in st2[1:]]))
        self.stamp(q)
        B = B[k:] + [self.hst]
        q.extend(self.check("fa", [self.fa], self.tags([vFP], 0xff)))
        self.stamp(q)
        ACC = (96, 160)
        steps = [(0, j) for j in range(8)] + [(1, j) for j in range(ak)] + [(0, j) for j in range(8, 22)] + [(1, j) for j in range(ak, 22)]
        firstB = 8 + ak; sent_done = firstB + 13
        ld = {}
        def issue(n):
            ps, j = steps[n]
            a = 176 + 8 * (n % NR)
            blk = (sB0, sB1)[ps]
            g = []
            if j % 2 == 0:
                if j < 14:
                    pc = (0, 1, 2, 5)[j // 4]
                    if j % 4 == 2 and steps[n-1] == (ps, j - 1): g.append(I(f"s_xor_b32 s{sKW}, s{sKW}, 4096"))
                    else:
                        g.append(I(f"s_add_u32 s{sKW}, s{blk}, s{UO[pc]}"))
                        if j % 4: g.append(I(f"s_xor_b32 s{sKW}, s{sKW}, 4096"))
                elif j == 14: g.append(I(f"s_add_u32 s{sKW}, s{blk}, s{sHS}"))
                elif j == 18: g += [I(f"s_xor_b32 s{sKW}, s{sHS}, 8192"), I(f"s_add_u32 s{sKW}, s{sKW}, s{blk}")]
                else: g.append(I(f"s_xor_b32 s{sKW}, s{sKW}, 4096"))
            o = 2048 * (j % 2)
            ld[n, 0] = I(f"buffer_load_dwordx4 {ar(a)}, v33, {srd(R_SY)}, s{sKW} offen offset:{o} sc1", "vm")
            ld[n, 1] = I(f"buffer_load_dwordx4 {ar(a+4)}, v33, {srd(R_SY)}, s{sKW} offen offset:{o+1024} sc1", "vm")
            return [g + [ld[n, 0]], [ld[n, 1]]]
        order = []
        n = 0
        while n < 44:
            if n in (sent_done + 1 - NT, 44 - NT):
                for k in range(4): order += [(m, k) for m in range(n, n + NT)]
                n += NT
            else:
                order += [(n, k) for k in range(4)]; n += 1
        pos = {e: i for i, e in enumerate(order)}
        L0 = c.lead0
        f = Seq()
        for g in B[:-1]: f.e(*g)
        q.extend(merge(f, [g for n in range(L0) for g in issue(n)]))
        q.e(*B[-1])
        fs = I(f"buffer_load_dword v{vFP}, v36, {srd(R_SY)}, 0 offen offset:128 sc1", "vm")
        st = Seq(); self.stamp(st)
        gate = 4 * firstB - c.gate_lead
        L = []
        for n in range(L0, 44):
            nb = max(4 * (n - LEAD), 0)
            if n >= NR: nb = max(nb, max(pos[n - NR, k] for k in range(4)))
            if n >= firstB: nb = max(nb, gate)
            if firstB < n < firstB + c.burst:
                assert nb <= gate
                L[-1] += [x for g in issue(n) for x in g]; continue
            L.append(("nb", nb))
            if n == firstB: L.append(self.check("fs", [fs], self.tags([vFP], 0xffff)) + list(st) + [x for g in issue(n) for x in g])
            else: L += issue(n)
        sL = Stream(L, every=2)
        P = [("nb", c.flagB_at)] + [self.flag_store(1, ssm_last)] + [("nb", gate - c.fs_lead), [fs]]
        sP = Stream(P, dl=gate - 1)
        Wc = self.w2_reads(2) + [("nb", c.flagB_at + 1)] + wl + [("nb", c.rc_at)]
        Wc += self.w2_reads(3) + self.w2_reads(4)
        d_c = 4 * (firstB + 5)
        sWc = Stream(Wc, start=1, dl=d_c, every=c.wc_every)
        sB = Stream(self.base_left)
        XV = 64; TB = 80
        s = Seq()
        s.e(f"v_mov_b32 v{TB}, s{sTAG}")
        for k in range(1, 4): s.e(f"v_lshrrev_b32 v{TB+k}, {8*k}, v{TB}")
        s.e(f"s_movk_i32 s{sT2}, 0xff")
        s.wds_all(); s.e("s_barrier")
        R0 = [("nb", d_c + 6)] + groups(s)
        def tile(k): return (k & 1, k >> 1)
        def red_write(ps, lastn):
            out = []
            for k in range(4):
                nu, mu = tile(k)
                out.append(("nb", pos[lastn, k] + 2))
                for g4 in range(4):
                    out.append([I(f"ds_write_b128 v{vRW+g4}, {vr(ACC[ps] + 32*nu + 16*mu + 4*g4)} offset:{128*nu + 8192*mu}", "ds")])
            return out
        def red_read(s, dst):
            return [s.e(f"ds_read_b128 {vr(dst + 16*ii + 4*src)}, v{vRR} offset:{1024*ii + 16384*src}") for ii in range(4) for src in range(4)]
        s = Seq()
        s.wds_all(); s.e("s_barrier")
        R = red_read(s, 96)
        for g4 in range(4): s.e(f"v_add_u32 v{vRW+g4}, 0x10000, v{vRW+g4}")
        Ga = groups(s); s = Seq()
        for ii in range(4):
            s.wds(R[4 * ii + 3])
            for e in range(4):
                d = XV + 4 * ii + e; s0 = 96 + 16 * ii + e
                s.e(f"v_add_f32 v{s0}, v{s0}, v{s0+4}", f"v_add_f32 v{d}, v{s0+8}, v{s0+12}", f"v_add_f32 v{d}, v{d}, v{s0}",
                    f"v_bfi_b32 v{d}, s{sT2}, v{TB+e}, v{d}")
        s.e(f"v_add_u32 v{vRR}, 0x10000, v{vRR}")
        Gb = groups(s)
        s = Seq()
        for k in range(4): s.e(f"buffer_store_dwordx4 {vr(XV+4*k)}, v{vXS}, {srd(R_SY)}, 0 offen offset:{1024*k} sc1")
        self.stamp(s)
        e0 = 4 * (sent_done + 1)
        XR = 40
        xl = [I(f"buffer_load_dwordx4 {vr(XR+4*k)}, v{vXR}, {srd(R_SY)}, 0 offen offset:{1024*k} sc1", "vm") for k in range(4)]
        sR = Stream(R0 + red_write(0, sent_done) + [("nb", e0 + c.bar_lag)] + Ga + [("nb", e0 + c.bar_lag + c.add_lag)] + Gb + [("nb", 4 * c.send_at)] + [list(s)]
                    + red_write(1, 43), wev=c.wev)
        sX = Stream([[x] for x in xl], start=c.xl_at, every=2)
        q.wds(self.w2_rd[1])
        emitted = set(id(x) for x in q)
        for gi, (n, k) in enumerate(order):
            ps, j = steps[n]; nu, mu = tile(k)
            a = 176 + 8 * (n % NR); d = ACC[ps] + 32 * nu + 16 * mu
            while not any(ld[n, mu] is x for x in q[-400:]):
                g = sL.it.pop(0)
                if not isinstance(g, tuple): q.e(*g)
            q.wvm(ld[n, mu])
            if n == firstB: q.wds(self.w2_rd[2])
            if n == firstB + 6: q.wds(self.w2_rd[4])
            if k == 0 and n in c.p2stamps: self.stamp(q)
            q.e(f"v_mfma_f32_32x32x16_bf16 {vr(d,16)}, {ar(8*j+4*nu)}, {ar(a+4*mu)}, {'0' if j == 0 else vr(d,16)}")
            fill_gap(q, gi, 0.5, c.cap4 if gi >= e0 else c.cap3, [sP, sL, sWc, sR, sX, sB])
        self.stamp(q)
        flush(q, [sR, sX, sB])
        q.wds_all(); q.e("s_barrier")
        R = red_read(q, 96)
        pre = [f"s_mov_b32 s{sT0}, 0x0c0c0400", f"s_mov_b32 s{sT1}, 0x05040100"]
        for k in range(4):
            r = XR + 4 * k
            pre += [f"v_perm_b32 v60, v{r+1}, v{r}, s{sT0}", f"v_perm_b32 v61, v{r+3}, v{r+2}, s{sT0}", f"v_perm_b32 v{56+k}, v61, v60, s{sT1}"]
        for ii in range(4):
            q.wds(R[4 * ii + 3])
            s0 = 96 + 16 * ii
            for e in range(2):
                q.e(f"v_pk_add_f32 {vr(s0+2*e,2)}, {vr(s0+2*e,2)}, {vr(s0+4+2*e,2)}", f"v_pk_add_f32 {vr(s0+8+2*e,2)}, {vr(s0+8+2*e,2)}, {vr(s0+12+2*e,2)}")
            for e in range(2): q.e(f"v_pk_add_f32 {vr(s0+2*e,2)}, {vr(s0+2*e,2)}, {vr(BASE+4*ii+2*e,2)}")
            for e in range(2): q.e(f"v_pk_add_f32 {vr(s0+2*e,2)}, {vr(s0+2*e,2)}, {vr(s0+8+2*e,2)}")
        q.extend(self.check("xc", xl, pre + self.tags([56 + k for k in range(4)])))
        self.stamp(q)
        for ii in range(4):
            s0 = 96 + 16 * ii
            for e in range(2): q.e(f"v_pk_add_f32 {vr(s0+2*e,2)}, {vr(s0+2*e,2)}, {vr(XR+4*ii+2*e,2)}")
            q.e(f"s_movk_i32 s{sT0}, {8192*ii}")
            q.e(f"buffer_store_dwordx4 {vr(s0)}, v19, {srd(R_OUT)}, s{sT0} offen {c.ost}")
        q.e(f"s_lshl_b32 s{sT0}, s{sG}, 2", f"s_or_b32 s{sT0}, s{sT0}, s{sW}", f"s_lshl_b32 s{sT0}, s{sT0}, 4", f"s_or_b32 s{sT0}, s{sT0}, s{sC}",
            f"s_cmp_eq_u32 s{sT0}, 15", "s_cbranch_scc0 L_nobump", "v_mov_b32 v57, 0", "s_mov_b64 exec, 1")
        q.e(f"buffer_store_dword v251, v57, {srd(R_SY)}, 0 offen sc1")
        q.e("s_mov_b64 exec, -1")
        q.label("L_nobump")

    def write_ts(self, q):
        if not self.c.ts: return
        q.wds_all(); q.wvm_all()
        q.e("s_memtime s[46:47]", "s_memrealtime s[92:93]"); q.wds_all()
        q.e(f"s_lshl_b32 s{sT0}, s2, 2", f"s_add_u32 s{sT0}, s{sT0}, s{sW}", f"s_lshl_b32 s{sT0}, s{sT0}, 6", f"s_add_u32 s{sT0}, s{sT0}, {WS_TS}", "v_mov_b32 v2, 0")
        q.e("s_mov_b64 exec, 1")
        def put(k): q.e(f"buffer_store_dword v3, v2, {srd(R_SY)}, s{sT0} offen offset:{4*k}")
        for k in range(self.nts + 2):
            if k == 0: q.e("v_mov_b32 v3, v255")
            elif k == self.nts + 1: q.e("s_sub_u32 s46, s46, s42", "v_mov_b32 v3, s46")
            else:
                r = TSREG[k - 1]; q.e(f"s_sub_u32 s{r}, s{r}, s42", f"v_mov_b32 v3, s{r}")
            put(k)
        q.e("v_mov_b32 v3, s92"); put(15)
        q.wvm_all()

    def add_prof(self, q):
        lo, step = self.c.prof
        out = Seq(); unsafe = False; started = False; acc = 0; n = 0; idx = 0; nm = 0
        NP = len(TSREG)
        self.prof_pts = []
        for ins in q:
            t = ins.t
            if started and not unsafe and n < 64 and idx >= lo and acc >= step and ins.kind not in WAITK and not t.startswith(("s_cbranch", "s_branch", "s_cselect", "s_addc")) and ins.kind != "label":
                r = TSREG[n % NP]
                if n >= NP: out.e(f"v_writelane_b32 v0, s{r}, {n - NP}")
                out.e(f"s_memtime s[{r}:{r+1}]"); self.prof_pts.append((idx, nm, t[:50])); n += 1; acc = 0
            out.append(ins)
            if t == "s_barrier": started = True
            if started and ins.kind != "label":
                idx += 1; acc += 1
                if t.startswith("v_mfma"): nm += 1
            if t.startswith("s_cbranch"): unsafe = started
            if ins.kind == "label" and (t.endswith("_ok:") or t.startswith("L_nobump")): unsafe = False
        out.wds_all()
        for k in range(max(0, n - NP), n): out.e(f"v_writelane_b32 v0, s{TSREG[k % NP]}, {k}")
        out.e(f"s_lshl_b32 s{sT0}, s2, 2", f"s_add_u32 s{sT0}, s{sT0}, s{sW}", f"s_lshl_b32 s{sT0}, s{sT0}, 8", f"s_add_u32 s{sT0}, s{sT0}, {WS_TS + 65536}",
              "v_subrev_u32 v0, s42, v0", f"v_lshlrev_b32 v2, 2, v{vL}")
        out.e(f"buffer_store_dword v0, v2, {srd(R_SY)}, s{sT0} offen")
        return out

    def build(self):
        q = Seq()
        q.label("L_start")
        last = self.prologue(q)
        self.phase1(q, last)
        self.phase2(q)
        if self.c.prof: q = self.add_prof(q)
        self.write_ts(q)
        if self.c.spin_to:
            q.e("s_waitcnt lgkmcnt(0)")
            if self.c.spin_x >= 0: q.e("s_and_b32 s46, s2, 7", f"s_cmp_eq_u32 s46, {self.c.spin_x}", "s_cbranch_scc0 L_end")
            if self.c.probe: q.e("s_sub_u32 s68, s68, s42", f"s_add_u32 s68, s68, {self.c.spin_to}")
            else: q.e(f"s_mov_b32 s68, {self.c.spin_to}")
            q.label("L_spin")
            q.e("s_memrealtime s[46:47]", "s_waitcnt lgkmcnt(0)", "s_sub_u32 s46, s46, s42", "s_cmp_lt_u32 s46, s68", "s_cbranch_scc1 L_spin")
        q.label("L_end")
        q.e("s_endpgm")
        q.extend(self.ool)
        return finalize(q)

HDR = """; @launch grid=(256,1,1) block=(256,1,1) lds=163840
.amdgcn_target "amdgcn-amd-amdhsa--gfx950"
.text
.globl {n}_kernel
.p2align 8
.type {n}_kernel,@function
{n}_kernel:
"""
TAIL = """
.section .rodata,"a"
.p2align 6
.amdhsa_kernel {n}_kernel
  .amdhsa_next_free_vgpr 512
  .amdhsa_next_free_sgpr 102
  .amdhsa_accum_offset 256
  .amdhsa_group_segment_fixed_size 0
  .amdhsa_kernarg_size 120
  .amdhsa_user_sgpr_count 2
  .amdhsa_user_sgpr_kernarg_segment_ptr 1
  .amdhsa_system_sgpr_workgroup_id_x 1
.end_amdhsa_kernel
"""
def generate(cfg):
    g = Gen(cfg)
    body = g.build()
    return HDR.format(n=NAME) + "\n".join(("" if l.endswith(":") else "    ") + l for l in body) + TAIL.format(n=NAME), g

if __name__ == "__main__":
    cfg = Cfg()
    for a in sys.argv[2:]:
        k, v = a.split("=", 1); assert hasattr(cfg, k), k; setattr(cfg, k, eval(v))
    txt, g = generate(cfg)
    open(sys.argv[1], "w").write(txt)
```

```python
import sys, gen as G
def srd(d, b, size):
    return [f"s_mov_b32 s{d}, s{b}", f"s_and_b32 s{d+1}, s{b+1}, 0xffff", f"s_mov_b32 s{d+2}, {size}", f"s_mov_b32 s{d+3}, 0x20000"]
def k0(mode):
    L = ["s_cmp_ge_u32 s2, 256", "s_cbranch_scc1 L0_end"]
    if mode != "empty":
        L += ["s_load_dwordx16 s[16:31], s[0:1], 0", "s_load_dwordx4 s[36:39], s[0:1], 80", "v_lshlrev_b32 v1, 7, v0", "s_waitcnt lgkmcnt(0)"]
        bufs = [(16, 2<<20), (22, 512<<10), (24, 512<<10), (36, 1792<<10), (38, 1792<<10), (26, 512<<10), (28, 512<<10)]
        if mode == "mall":
            for i, (p, sz) in enumerate(bufs):
                per = sz // 256
                L += srd(48, p, sz) + [f"s_mul_i32 s3, s2, {per}", f"v_min_u32 v2, {per-128}, v1", f"buffer_load_dword v{10+i}, v2, s[48:51], s3 offen"]
        L += ["s_waitcnt vmcnt(0)"]
    L += ["L0_end:", "s_endpgm"]
    return ".globl pre_kernel\n.p2align 8\n.type pre_kernel,@function\npre_kernel:\n" + "\n".join(L) + """
.section .rodata,"a"
.p2align 6
.amdhsa_kernel pre_kernel
  .amdhsa_next_free_vgpr 32
  .amdhsa_next_free_sgpr 64
  .amdhsa_accum_offset 32
  .amdhsa_group_segment_fixed_size 0
  .amdhsa_kernarg_size 120
  .amdhsa_user_sgpr_count 2
  .amdhsa_user_sgpr_kernarg_segment_ptr 1
  .amdhsa_system_sgpr_workgroup_id_x 1
.end_amdhsa_kernel
.text
"""
cfg = G.Cfg()
for a in sys.argv[3:]:
    k, v = a.split("=", 1); setattr(cfg, k, eval(v))
txt, g = G.generate(cfg)
lines = txt.split("\n")
hdr = [f"; @launch kernel=pre_kernel grid=(256,1,1) block=(64,1,1) lds=0", f"; @launch kernel={G.NAME}_kernel grid=(256,1,1) block=(256,1,1) lds=163840"]
if sys.argv[2] == "single": out = hdr[1:] + lines[1:]
else: out = hdr + lines[1:3] + [k0(sys.argv[2])] + lines[3:]
open(sys.argv[1], "w").write("\n".join(out))
```

```python
import sys, struct
from asmlib import *

NAME = "parallel_sum__ssm_conv_s5__dense_activation_relu__prompt"
def f2u(x): return struct.unpack("<I", struct.pack("<f", x))[0]
def fh(x): return hex(f2u(x))

WS_CS   = 262144
WS_FLAG = 524288
WS_STAT = 786432
WS_AGG  = 1 << 20
WS_XCH  = 2 << 20
WS_TS   = (7 << 20) + (1 << 19)
WS_H    = 8 << 20
HBLK = 88 * 2048
WS_END = WS_H + 64 * HBLK
TAGK = 0x9E3779B9
OOB = 0x40000000

sCO, sW, sWM, sWN, sC, sG, sGL, sU0, sORD, sXB, sT0, sT1, sT2 = 3, 4, 5, 6, 7, 8, 9, 10, 11, 12, 13, 14, 15
P_X, P_LRE, P_LIM, P_BRE, P_BIM, P_CRE, P_CIM, P_LDT = 16, 18, 20, 22, 24, 26, 28, 30
P_DSK, P_W1, P_W2, P_OUT, P_WS = 32, 36, 38, 40, 44
sU1, sK4 = 34, 35
sM = 46
R_X, R_BS, R_W1A, R_W1B, R_W2, R_CRE, R_CIM, R_OUT, R_SY = 48, 52, 56, 60, 72, 76, 80, 84, 88
R_AG = R_BS
sB0, sB1, sHS, sNV = 64, 65, 66, 67
sUO = 32
UO = {0: 32, 1: 33, 2: 100, 5: 101}
sKX, sKW, sLB, sONES, sTAG, sPOLL, sLE, sW2O = 92, 93, 94, 95, 96, 97, 98, 99
TSREG = [16, 18, 20, 22, 24, 26, 28, 30, 36, 38, 40, 68]
def srd(r): return f"s[{r}:{r+3}]"

vL = 1
BASE = 2
ACC_S, ACC_F1, ACC_F2 = 64, 96, 128
FR = 160
RA, RS, RF = 176, 180, 184
vX, vB, vW = 200, 204, 206
vSTS, vCSS, vGS, vGC, vPF, vAGS, vHF1, vHF2, vGR = 208, 209, 210, 211, 214, 215, 216, 217, 218
CS = 220
vW2, vC2, vTR, vCR, vTA, vLBK, vFP, vHS, vFL, vXS, vXR, vRW, vRR, vTW, vTD = 224, 228, 232, 233, 234, 238, 239, 242, 243, 244, 245, 246, 250, 252, 254
def vr(a, n=4): return f"v[{a}:{a+n-1}]"
def ar(a, n=4): return f"a[{a}:{a+n-1}]"

SLOT = 32768; WBLK = 8192
L_SP = 98304; SPW = 14336
L_CS = 155648

class Cfg:
    ts = False; ts_stages = (); ts_max = 12; ts_min = 0; prof = None; p2stamps = ()
    order = "xa"
    pf_from = 14; pf_n = 28; pf_step = 12
    early_from = 9; early_n = 2
    cap1 = 5.5; cap2 = 5.5; cap3 = 5
    stat_at = 4; gather_at = 86; check_at = 108
    w2_first = 8; w2_at2 = 20; w2_n2 = 8; w2_at3 = 36; lb_at = 38; left_pre = 5; g9_pre = 4; r0_at = 30; b_at = 48; b_mid = 36; lb_every = 1; rc_at = 40
    akept = 6; nring = 10; lead = 6; ntail = 4
    lead0 = 4; flagB_at = 15; fs_lead = 4; gate_lead = 20; wc_every = 2; burst = 1
    bar_lag = 9; send_at = 0; xl_at = 164; wev = 1
    poll_sleep = 1
    probe = 0
    boot = 0; boot_late = True; boot_bar = True
    spin_x = -1
    add_lag = 5; cap4 = 8
    l2pf_at = 99; pt_at = 14
    hrot = True
    nt_upto = 0; nt_srd = (48, 52, 56, 60)
    strow_at = -1
    spin_to = 0
    ost = 'nt'

def mk_srd(q, r, p, size):
    q.e(f"s_mov_b32 s{r}, s{p}", f"s_and_b32 s{r+1}, s{p+1}, 0xffff", f"s_mov_b32 s{r+2}, {size}", f"s_mov_b32 s{r+3}, 0x20000")

WAITK = ("wvm", "wds", "wvm0", "wds0")
def groups(seq):
    G = []; cur = []
    for ins in seq:
        cur.append(ins)
        if ins.kind not in WAITK and not ins.t.startswith(("v_cmp", "s_cmp")):
            G.append(cur); cur = []
    if cur: G.append(cur)
    return G
def cost(g):
    c = 0
    for i in g:
        if i.kind == "label": continue
        if i.kind in WAITK: c += 0.5
        elif i.t.startswith(TRANS): c += 2
        elif i.t.startswith("ds_write_b128"): c += 3
        else: c += 1
    return c

class Stream:
    def __init__(self, items, start=0, dl=None, every=1, wev=1):
        self.it = list(items); self.nb = start; self.dl = dl; self.every = every; self.wev = wev
    def ready(self, gap):
        while self.it and isinstance(self.it[0], tuple):
            self.nb = max(self.nb, self.it.pop(0)[1])
        return bool(self.it) and gap >= self.nb
    def pop(self, gap):
        g = self.it.pop(0)
        if self.every > 1 and any(i.kind == "vm" for i in g): self.nb = gap + self.every
        if any(i.t.startswith("ds_write_b128") for i in g): self.nb = gap + self.wev
        return g
    def rest(self):
        r = [g for g in self.it if not isinstance(g, tuple)]; self.it = []; return r

def fill_gap(q, gap, used, cap, streams):
    for s in streams:
        if s.dl is not None and gap >= s.dl:
            for g in s.rest(): q.e(*g); used += cost(g)
    for s in streams:
        while s.ready(gap) and (used + cost(s.it[0]) <= cap or (used <= cap - 2 and cost(s.it[0]) > 3)):
            g = s.pop(gap); q.e(*g); used += cost(g)
def flush(q, streams):
    for s in streams:
        for g in s.rest(): q.e(*g)

def pack_order(o): return sum(v << (4 * k) for k, v in enumerate(o))
def hyb(xa):
    first = [0, (1 + 2 * xa), (2 + 2 * xa) & 7 or 1]
    rest = [v for v in [(3 + 2 * xa + k) & 7 for k in range(8)] if v not in first]
    return first + rest
ORDERS = {"xa": [[(i + 2 * xa) & 7 for i in range(8)] for xa in range(4)],
          "none": [list(range(8))] * 4,
          "two": [[(i + 4 * (xa & 1)) & 7 for i in range(8)] for xa in range(4)],
          "hyb": [hyb(xa) for xa in range(4)]}

class Gen:
    def __init__(self, cfg):
        self.c = cfg; self.nts = 0; self.nreq = 0; self.w2_last = {}; self.w2_rd = {}; self.ool = Seq()
    def stamp(self, q):
        self.nreq += 1
        if self.c.probe == self.nreq: q.e("s_memrealtime s[68:69]")
        if self.c.ts and self.nts < self.c.ts_max and self.nreq > self.c.ts_min:
            r = TSREG[self.nts]
            q.e(f"s_memtime s[{r}:{r+1}]"); self.nts += 1

    def stage_dma(self, i):
        base = (i % 3) * SLOT
        def ld(v, r, so, off):
            fl = " nt" if (i < self.c.nt_upto and r in self.c.nt_srd) else ""
            return I(f"buffer_load_dwordx4 v{v}, {srd(r)}, s{so} offen offset:{off}{fl} lds", "vm")
        def m0(o): return I(f"s_add_u32 m0, s{sLB}, {base + o}")
        def st(k): return I(f"s_bfe_u32 s{sKW}, s{sORD}, {(3 << 16) | (4 * k)}")
        mul = lambda: I(f"s_mul_i32 s{sKW}, s{sKW}, {64*3584}")
        G = []
        if i < 8:
            G.append([m0(0), st(i), I(f"s_lshl_b32 s{sKX}, s{sKW}, 7"), ld(vX, R_X, sKX, 0)])
            for j in range(1, 4): G.append([ld(vX + j, R_X, sKX, 1024 * j)])
            G.append([m0(4096), mul(), ld(vB, R_BS, sKX, 0)]); G.append([ld(vB + 1, R_BS, sKX, 1024)])
            G.append([m0(6144), ld(vW, R_W1A, sKW, 0)]); G.append([ld(vW + 1, R_W1A, sKW, 1024)])
        else:
            for t in range(4):
                G.append([m0(2048 * t), st(4 * (i - 8) + t), mul(), ld(vW, R_W1B, sKW, 0)])
                G.append([ld(vW + 1, R_W1B, sKW, 1024)])
        return G, G[-1][-1]

    def fb(self, n): return ACC_F2 + 8 * (n & 3) if n < 32 else FR - 4 + 4 * (n & 3)
    def frag_reads(self, n):
        b = self.fb(n)
        if n < 32:
            i, p = divmod(n, 4); slot = i % 3
            hi = 12 if slot == 2 else 0; o = SLOT if slot == 1 else 0
            S = I(f"ds_read_b128 {vr(b)}, v{RS+hi+p} offset:{o}", "ds")
            A0 = I(f"ds_read_b128 {ar(8*n)}, v{RA+hi+p} offset:{o}", "ds")
            A1 = I(f"ds_read_b128 {ar(8*n+4)}, v{RA+hi+p} offset:{o+WBLK}", "ds")
            F = [I(f"ds_read_b64_tr_b16 {vr(b+4+2*k, 2)}, v{RF+hi+p} offset:{o + 6144 + k*512}", "ds") for k in range(2)]
            return [S, A0, A1] + F
        if n >= 64: return []
        i, p = divmod(n - 32, 4)
        hi = 12 if i < 4 else 0
        return [I(f"ds_read_b64_tr_b16 {vr(b+4+2*k, 2)}, v{RF+hi+p} offset:{2048*(i&3) + k*512}", "ds") for k in range(2)]

    def prologue(self, q):
        c = self.c
        q.e("s_cmp_ge_u32 s2, 256", "s_cbranch_scc1 L_end")
        q.e("s_load_dwordx16 s[16:31], s[0:1], 0", "s_load_dwordx4 s[36:39], s[0:1], 80", "s_load_dwordx2 s[44:45], s[0:1], 112",
            "s_load_dwordx2 s[32:33], s[0:1], 64", "s_load_dwordx2 s[40:41], s[0:1], 96")
        q.e("s_getpc_b64 s[64:65]", "L_pc:", "s_and_b32 s3, s2, 0xf8", "s_lshl_b32 s3, s3, 7", "v_lshlrev_b32 v9, 2, v0", "v_add_u32 v9, s3, v9",
            "v_min_u32 v9, L_end-L_pc, v9")
        q.e("global_load_dword v10, v9, s[64:65]")
        if c.ts: q.e("s_memtime s[42:43]", "s_memrealtime s[46:47]")
        if c.spin_to: q.e("s_memrealtime s[42:43]")
        q.e(f"v_and_b32 v{vL}, 63, v0", "v_lshrrev_b32 v2, 6, v0", f"v_readfirstlane_b32 s{sW}, v2")
        O = [pack_order(o) for o in ORDERS[c.order]]
        q.e("s_bitcmp1_b32 s2, 1", f"s_mov_b32 s{sT0}, {O[0]:#x}", f"s_cmov_b32 s{sT0}, {O[1]:#x}", f"s_mov_b32 s{sORD}, {O[2]:#x}", f"s_cmov_b32 s{sORD}, {O[3]:#x}",
            "s_bitcmp0_b32 s2, 2", f"s_cmov_b32 s{sORD}, s{sT0}")
        q.e(f"s_and_b32 s{sXB}, s2, 1", f"s_and_b32 s{sT0}, s2, 6", f"s_lshr_b32 s{sT2}, s2, 6",
            f"s_lshl1_add_u32 s{sC}, s{sT0}, s{sT2}", f"s_bfe_u32 s{sGL}, s2, 0x30003", f"s_lshl3_add_u32 s{sG}, s{sXB}, s{sGL}")
        q.e(f"s_and_b32 s{sT2}, s{sT2}, 1", f"s_lshl1_add_u32 s{sT0}, s{sGL}, s{sT2}", f"s_add_u32 s{sT1}, s{sGL}, 6",
            f"s_cmp_lt_u32 s{sGL}, 6", f"s_cselect_b32 s{sU0}, s{sT0}, s{sT1}", f"s_cselect_b32 s{R_W1B+2}, {512*3584}, 0", f"s_xor_b32 s{sU1}, s{sU0}, 1",
            f"s_lshr_b32 s{sWM}, s{sW}, 1", f"s_and_b32 s{sWN}, s{sW}, 1", f"s_lshl_b32 s{sLB}, s{sW}, 13")
        q.e(f"v_lshrrev_b32 v2, 3, v{vL}", f"v_and_b32 v3, 7, v{vL}", f"v_lshrrev_b32 v4, 4, v{vL}")
        q.e("v_xor_b32 v5, v3, v4", "v_lshlrev_b32 v5, 4, v5")
        q.e(f"v_lshrrev_b32 v7, 5, v{vL}", "v_and_b32 v8, 3, v2", "v_lshl_add_u32 v7, v7, 4, v8",
            f"s_lshl2_add_u32 s{sT0}, s{sC}, s{sW}", f"s_lshl_b32 s{sT0}, s{sT0}, 5",
            f"v_add_u32 v7, s{sT0}, v7", f"v_lshl_add_u32 v{vX}, v7, 10, v5",
            f"v_xor_b32 v{vX+1}, 64, v{vX}", f"v_add_u32 v{vX+1}, {3072}, v{vX+1}",
            f"v_add_u32 v{vX+2}, {6144}, v{vX}", f"v_add_u32 v{vX+3}, {6144}, v{vX+1}")
        q.e(f"s_lshl1_add_u32 s{sK4}, s{sG}, s{sWN}", f"s_lshl_b32 s{sK4}, s{sK4}, 4",
            f"v_add_u32 v7, s{sK4}, v2", f"v_lshl_add_u32 v{vB}, v7, 10, v5",
            f"v_xor_b32 v{vB+1}, 64, v{vB}", f"v_add_u32 v{vB+1}, {7168}, v{vB+1}")
        q.e(f"s_lshl_b32 s{sT0}, s{sW}, 4", f"v_add_u32 v7, s{sT0}, v2", "v_mul_u32_u24 v7, 3584, v7",
            "v_and_b32 v8, 1, v4", "v_lshlrev_b32 v8, 2, v8", "v_xor_b32 v8, v8, v3", f"v_lshl_add_u32 v{vW}, v8, 4, v7",
            f"v_add_u32 v{vW+1}, {8*3584-1024}, v{vW}",
            f"s_mul_i32 s{sT0}, s{sXB}, 14", f"s_add_u32 s{sT1}, s{sT0}, s{sU1}", f"s_add_u32 s{sT0}, s{sT0}, s{sU0}",
            f"s_lshl_b32 s{R_W1A}, s{sT0}, 7", f"s_lshl_b32 s{R_W1B}, s{sT1}, 7",
            f"s_sub_u32 s{R_W1A+2}, {512*3584}, s{R_W1A}", f"s_max_u32 s{R_W1B+2}, s{R_W1B+2}, s{R_W1B}", f"s_sub_u32 s{R_W1B+2}, s{R_W1B+2}, s{R_W1B}")
        for r, size in ((R_X, 2048*1024), (R_BS, 512*1024)): q.e(f"s_mov_b32 s{r+2}, {size}")
        for r in (R_X, R_BS, R_W1A, R_W1B): q.e(f"s_mov_b32 s{r+3}, 0x20000")
        q.e(f"v_lshl_add_u32 v{vC2}, v2, 10, v5", "v_lshlrev_b32 v7, 10, v2", f"v_lshl_add_u32 v{vW2}, v8, 4, v7")
        q.e(f"v_lshlrev_b32 v33, 4, v{vL}", f"v_and_b32 v6, 15, v{vL}", f"v_add_lshl_u32 v11, v6, s{sK4}, 1", "v_mov_b32 v15, 0")
        q.e(f"s_lshl1_add_u32 s{sT2}, s{sC}, s{sWM}", f"s_lshl4_add_u32 s{sT2}, s{sT2}, s{sG}", f"s_lshl1_add_u32 s{sT2}, s{sT2}, s{sWN}",
            f"s_lshl_b32 s{sPOLL}, s{sT2}, 11")
        G0, l0 = self.stage_dma(0)
        q.e(*G0[0][:-1])
        q.wds_all()
        if c.ts: q.e("v_mov_b32 v255, s46")
        if c.boot:
            b = c.boot
            q.e(f"v_lshlrev_b32 v17, 7, v{vL}", f"s_cmp_eq_u32 s{sW}, 2", "s_cbranch_scc1 L_b2")
            q.e(f"s_cmp_eq_u32 s{sW}, 0", f"s_cselect_b64 s[46:47], s[{P_X}:{P_X+1}], s[{P_W1}:{P_W1+1}]", "s_cselect_b32 s70, 64, 56",
                f"s_cmp_eq_u32 s{sW}, 3", f"s_cselect_b64 s[46:47], s[{(P_W2 if b == 1 else P_W1)}:{(P_W2 if b == 1 else P_W1)+1}], s[46:47]",
                "s_lshl_b32 s70, s70, 7", "s_sub_u32 s71, s70, 128", "s_mul_i32 s70, s70, s2", "v_min_u32 v17, s71, v17", "v_add_u32 v17, s70, v17")
            q.append(I("global_load_dword v10, v17, s[46:47]", "o"))
            q.e("s_branch L_b3")
            q.label("L_b2")
            q.e("v_and_b32 v17, 0x780, v17", "s_lshl_b32 s70, s2, 11", "v_add_u32 v17, s70, v17")
            for p in (P_BRE, P_BIM) + ((P_CRE, P_CIM) if b == 1 else ()): q.append(I(f"global_load_dword v10, v17, s[{p}:{p+1}]", "o"))
            q.label("L_b3")
            self.bootq = q; q = self.postq = Seq()
        q.e(f"s_mov_b32 s{R_X}, s{P_X}", f"s_and_b32 s{R_X+1}, s{P_X+1}, 0xffff")
        q.e(G0[0][-1]); [q.e(*g) for g in G0[1:4]]
        q.e(f"s_cmp_eq_u32 s{sWM}, 0", f"s_cselect_b32 s{R_BS}, s{P_BRE}, s{P_BIM}", f"s_cselect_b32 s{R_BS+1}, s{P_BRE+1}, s{P_BIM+1}", f"s_and_b32 s{R_BS+1}, s{R_BS+1}, 0xffff")
        [q.e(*g) for g in G0[4:6]]
        q.e(f"s_and_b32 s{P_W1+1}, s{P_W1+1}, 0xffff", f"s_add_u32 s{R_W1A}, s{P_W1}, s{R_W1A}", f"s_addc_u32 s{R_W1A+1}, s{P_W1+1}, 0")
        [q.e(*g) for g in G0[6:8]]
        q.e(f"s_add_u32 s{R_W1B}, s{P_W1}, s{R_W1B}", f"s_addc_u32 s{R_W1B+1}, s{P_W1+1}, 0")
        last = [l0]
        if c.boot: q = self.bootq
        self.strows = [I(f"buffer_load_dwordx4 {vr(40)}, v33, {srd(R_X)}, s{sPOLL} offen", "vm"), I(f"buffer_load_dwordx4 {vr(44)}, v33, {srd(R_X)}, s{sPOLL} offen offset:1024", "vm")]
        if c.strow_at == -2: q.e(*self.strows)
        self.small0 = q.e(f"global_load_dword v16, v15, s[{P_WS}:{P_WS+1}] sc1")
        q.e(f"global_load_ushort v12, v11, s[{P_LRE}:{P_LRE+1}]", f"global_load_ushort v13, v11, s[{P_LIM}:{P_LIM+1}]")
        self.small = q.e(f"global_load_ushort v14, v11, s[{P_LDT}:{P_LDT+1}]")
        q.e(f"s_lshl_b32 s{sT1}, s{sGL}, 7", f"v_lshl_add_u32 v35, v6, 3, s{sT1}")
        self.dsk = q.e(f"global_load_dwordx2 {vr(38,2)}, v35, s[{P_DSK}:{P_DSK+1}]")
        f = Seq()
        f.e(f"v_and_b32 v2, 31, v{vL}", f"v_lshrrev_b32 v3, 5, v{vL}")
        f.e("v_bfe_u32 v7, v2, 1, 3", "v_xor_b32 v7, v7, v3", "v_lshlrev_b32 v7, 4, v7",
            f"v_lshl_add_u32 v{vCR}, v2, 7, v7",
            f"s_lshl_b32 s{sT1}, s{sWM}, 5", f"v_xor_b32 v7, s{sT1}, v7", f"v_xor_b32 v5, s{sT1}, v{vCR}",
            f"s_lshl_b32 s{sT1}, s{sWM}, 14", f"v_add_u32 v{RA}, s{sT1}, v5")
        f.e("v_lshl_add_u32 v7, v6, 7, v7", "v_and_b32 v8, 16, v2", "v_lshl_add_u32 v7, v8, 10, v7",
            f"s_lshl_b32 s{sT1}, s{sWN}, 13", f"s_add_u32 s{sT1}, s{sT1}, 4096", f"v_add_u32 v{RS}, s{sT1}, v7")
        for p in range(1, 4): f.e(f"v_xor_b32 v{RA+p}, {32*p}, v{RA}", f"v_xor_b32 v{RS+p}, {32*p}, v{RS}")
        f.e("v_lshrrev_b32 v9, 2, v6", "v_lshlrev_b32 v5, 7, v9", "v_and_b32 v7, 3, v6", "v_lshl_add_u32 v5, v7, 3, v5", "v_lshl_add_u32 v5, v8, 1, v5",
            "v_and_b32 v7, 8, v6", "v_lshl_add_u32 v5, v7, 3, v5",
            f"v_lshl_add_u32 v{vTR}, v3, 9, v5",
            "v_lshl_add_u32 v5, v3, 10, v5", f"s_lshl_b32 s{sT1}, s{sWN}, 6", f"s_lshl_b32 s{sT0}, s{sWM}, 13", f"s_or_b32 s{sT1}, s{sT1}, s{sT0}",
            f"v_xor_b32 v{RF}, s{sT1}, v5")
        for p in range(1, 4): f.e(f"v_xor_b32 v{RF+p}, {WBLK*p}, v{RF}")
        f.e(f"s_mov_b32 s{sONES}, 0x3f803f80", f"v_mov_b32 v{CS}, 0", f"v_mov_b32 v{CS+1}, 0")
        for k in range(4): f.e(f"v_mov_b32 v{48+k}, 0")
        for k in range(12): f.e(f"v_add_u32 v{RA+12+k}, {2*SLOT}, v{RA+k}")
        mk_srd(f, R_SY, P_WS, WS_END); mk_srd(f, R_W2, P_W2, 1792*1024); mk_srd(f, R_OUT, P_OUT, 2048*2048)
        f.e(f"s_and_b32 s{P_CRE+1}, s{P_CRE+1}, 0xffff", f"s_and_b32 s{P_CIM+1}, s{P_CIM+1}, 0xffff",
            f"s_bitcmp1_b32 s{sGL}, {0 if c.hrot else 5}", f"s_cselect_b64 s[{R_CRE}:{R_CRE+1}], s[{P_CIM}:{P_CIM+1}], s[{P_CRE}:{P_CRE+1}]",
            f"s_cselect_b64 s[{R_CIM}:{R_CIM+1}], s[{P_CRE}:{P_CRE+1}], s[{P_CIM}:{P_CIM+1}]")
        for r in (R_CRE, R_CIM): f.e(f"s_mov_b32 s{r+2}, {512*1024}", f"s_mov_b32 s{r+3}, 0x20000")
        q.extend(f)
        q.e(f"s_mul_i32 s{sT0}, s2, 56", f"s_mul_i32 s{sT1}, s{sWN}, 28", f"s_add_u32 s{sT0}, s{sT0}, s{sT1}", f"s_lshl_b32 s{sT1}, s2, 4", f"s_min_u32 s{sT1}, s{sT1}, {4096-28}",
            f"s_cmp_eq_u32 s{sWN}, 0", f"s_cselect_b32 s70, s{P_CRE}, s{P_CIM}", f"s_cselect_b32 s71, s{P_CRE+1}, s{P_CIM+1}",
            f"s_cmp_eq_u32 s{sWM}, 0", f"s_cselect_b32 s{sT0}, s{sT0}, s{sT1}",
            f"s_cselect_b32 s70, s{P_W2}, s70", f"s_cselect_b32 s71, s{P_W2+1}, s71",
            f"v_min_u32 v7, {c.pf_n - 1}, v{vL}", f"v_add_lshl_u32 v{vPF}, v7, s{sT0}, 7")
        f = Seq(); self.consts_early(f)
        G, l = self.stage_dma(1); last.append(l)
        if c.boot:
            q.extend(f)
            if c.boot_late:
                f = Seq(); self.consts_late(f); q.extend(f)
            q.wvm_all()
            if c.boot_bar: q.e("s_barrier")
            q.extend(self.postq)
            for g in G: q.e(*g)
        else: q.extend(merge(f, G))
        if c.strow_at == -1: q.e(*self.strows)
        return last

    def consts_early(self, f):
        f.e("v_and_b32 v5, 1, v4", "v_lshl_add_u32 v32, v5, 1, v3")
        f.e(f"s_lshl_b32 s{sT2}, s{sT2}, 5", f"s_add_u32 s{sT2}, s{sT2}, {WS_STAT}", f"v_lshl_add_u32 v7, v3, 4, s{sT2}", f"v_lshl_add_u32 v{vSTS}, v2, 25, v7")
        f.e(f"s_lshl1_add_u32 s{sT0}, s{sC}, s{sXB}", f"s_lshl_b32 s{sT1}, s{sT0}, 13", f"s_add_u32 s{sT1}, s{sT1}, {WS_FLAG}",
            f"s_lshl_b32 s{sT2}, s{sW}, 3", f"s_mul_i32 s{sT0}, s{sWM}, 3", f"s_add_u32 s{sT0}, s{sT0}, s{sWN}", f"s_lshl_b32 s{sT0}, s{sT0}, 2", f"s_sub_u32 s{sT0}, s{sT0}, 8",
            f"v_mov_b32 v7, s{sT2}", f"v_mov_b32 v8, s{sT0}", f"v_cmp_gt_u32 vcc, 8, v{vL}", "v_cndmask_b32 v7, v8, v7, vcc",
            f"v_add_u32 v7, v7, v{vL}", f"v_lshl_add_u32 v7, v7, 8, s{sT1}", "v_lshl_add_u32 v36, v4, 28, v7",
            f"s_lshl2_add_u32 s{sT2}, s{sGL}, s{sW}", f"s_lshl_b32 s{sT2}, s{sT2}, 8", f"s_add_u32 s{sT1}, s{sT1}, s{sT2}",
            f"v_lshl_add_u32 v7, v2, 2, s{sT1}", f"v_lshl_add_u32 v{vFL}, v3, 30, v7", f"v_lshl_add_u32 v{vFP}, v3, 7, v7")
        f.e(f"s_lshl4_add_u32 s{sT0}, s{sC}, s{sG}", f"s_lshl1_add_u32 s{sT0}, s{sT0}, s{sWN}", f"s_lshl_b32 s{sT0}, s{sT0}, 9", f"s_add_u32 s{sT0}, s{sT0}, {WS_CS}",
            f"v_lshl_add_u32 v7, v{vL}, 3, s{sT0}", f"v_xor_b32 v{vGC}, 0x4000, v7", f"s_lshl_b32 s{sT2}, s{sWM}, 30", f"v_add_u32 v{vCSS}, s{sT2}, v7")
        f.e(f"s_lshl_b32 s{sT0}, s{sWN}, 8", f"v_lshl_add_u32 v8, v6, 4, s{sT0}",
            f"s_lshl1_add_u32 s{sNV}, s{sC}, s{sWM}", f"s_sub_u32 s{sT0}, 31, s{sNV}", f"s_lshl_b32 s{sT0}, s{sT0}, 9",
            f"s_lshl_b32 s{sT1}, s{sG}, 14", f"s_add_u32 s{sT1}, s{sT1}, {WS_AGG}", f"s_add_u32 s{sT1}, s{sT1}, s{sT0}",
            f"v_add_u32 v7, s{sT1}, v8", f"v_lshl_add_u32 v{vAGS}, v4, 28, v7",
            f"s_add_u32 s{sT0}, s{sT0}, 512", "v_sub_u32 v7, 3, v4", "v_lshl_add_u32 v7, v7, 12, v8", f"v_add_u32 v{vLBK}, s{sT0}, v7",
            f"s_lshl_b32 s{sNV}, s{sNV}, 4")

    def consts_late(self, f):
        f.e(f"v_and_b32 v7, 4, v{vL}", f"v_and_b32 v8, 35, v{vL}", "v_lshl_add_u32 v7, v7, 2, v8", f"v_and_b32 v8, 24, v{vL}", "v_lshrrev_b32 v8, 1, v8",
            "v_add_u32 v37, v7, v8")
        f.e(f"s_lshl1_add_u32 s{sT1}, s{sC}, s{sWM}", f"s_lshl_b32 s{sT1}, s{sT1}, 10", f"s_add_u32 s{sT1}, s{sT1}, {WS_STAT}",
            f"v_lshl_add_u32 v{vGS}, v37, 4, s{sT1}", "v_lshl_add_u32 v7, v32, 4, v6", f"v_lshl_add_u32 v{vGR}, v7, 4, s{sT1}")
        f.e(f"s_lshl_b32 s{sT0}, s{sW}, 9", f"s_add_u32 s{sT0}, s{sT0}, {L_CS}", f"v_lshl_add_u32 v{vGC+1}, v{vL}, 3, s{sT0}", f"v_xor_b32 v{vGC+2}, 1024, v{vGC+1}")
        f.e(f"s_lshl1_add_u32 s{sT0}, s{sC}, s{sXB}", f"s_lshl1_add_u32 s{sT1}, s{sT0}, s{sWM}", f"s_mul_i32 s{sT1}, s{sT1}, {HBLK}", f"s_add_u32 s{sT1}, s{sT1}, {WS_H}",
            f"s_lshl1_add_u32 s{sT0}, s{sT0}, s{sXB}", f"s_mul_i32 s{sB1}, s{sT0}, {HBLK}", f"s_xor_b32 s{sT0}, s{sT0}, 1", f"s_mul_i32 s{sB0}, s{sT0}, {HBLK}",
            f"s_add_u32 s{sB0}, s{sB0}, {WS_H}", f"s_add_u32 s{sB1}, s{sB1}, {WS_H}",
            f"s_lshl_b32 s{sHS}, s{sW}, 14", f"s_add_u32 s{sHS}, s{sHS}, {56*2048}")
        f.e(f"s_lshl_b32 s{sT0}, s{sWN}, 12", f"s_add_u32 s{sT0}, s{sT0}, s{sT1}", f"s_lshl_b32 s{sT2}, s{sU0}, 13", f"s_add_u32 s{sT2}, s{sT2}, s{sT0}",
            f"v_add_u32 v{vHF1}, s{sT2}, v33", f"s_lshl_b32 s{sT2}, s{sU1}, 13", f"s_add_u32 s{sT2}, s{sT2}, s{sT0}",
            f"s_min_u32 s{sT0}, s{R_W1B+2}, 1", f"s_sub_u32 s{sT0}, 1, s{sT0}", f"s_lshl_b32 s{sT0}, s{sT0}, 30", f"s_add_u32 s{sT2}, s{sT2}, s{sT0}",
            f"v_add_u32 v{vHF2}, s{sT2}, v33")
        f.e(f"s_lshr_b32 s{sT0}, s{sGL}, 1", f"s_and_b32 s{sT2}, s{sGL}, 1", f"s_lshl2_add_u32 s{sT0}, s{sT0}, s{sT2}", f"s_lshl1_add_u32 s{sT0}, s{sT0}, s{sWN}",
            f"s_add_u32 s{sT0}, s{sT0}, 56", f"s_lshl_b32 s{sT0}, s{sT0}, 11", f"s_add_u32 s{sT0}, s{sT0}, s{sT1}", f"v_add_u32 v{vHS}, s{sT0}, v33")
        f.e(f"s_and_b32 s{sT2}, s{sC}, 1", f"s_lshl2_add_u32 s{sT0}, s{sW}, s{sT2}", f"s_add_u32 s{sT1}, s{sT0}, 2",
            f"s_min_u32 s{sT0}, s{sT0}, 12", f"s_min_u32 s{sT1}, s{sT1}, 13", f"s_lshl_b32 s{UO[0]}, s{sT0}, 13", f"s_lshl_b32 s{UO[1]}, s{sT1}, 13",
            f"s_xor_b32 s{sT2}, s{sT2}, 1", f"s_mul_i32 s{sT0}, s{sWM}, 6", f"s_add_u32 s{sT0}, s{sT0}, s{sT2}",
            f"s_lshl2_add_u32 s{sT1}, s{sWN}, s{sT0}", f"s_lshl_b32 s{UO[2]}, s{sT1}, 13",
            f"s_add_u32 s{sT0}, s{sT0}, 2", f"s_lshl1_add_u32 s{sT0}, s{sT0}, s{sWN}", f"s_lshl_b32 s{UO[5]}, s{sT0}, 12")
        if self.c.hrot:
            f.e(f"s_and_b32 s{sT0}, s{sGL}, 1", f"s_sub_u32 s{sT0}, 0, s{sT0}", f"s_xor_b32 s{sT1}, s{UO[0]}, s{UO[1]}", f"s_and_b32 s{sT1}, s{sT1}, s{sT0}",
                f"s_xor_b32 s{UO[0]}, s{UO[0]}, s{sT1}", f"s_xor_b32 s{UO[1]}, s{UO[1]}, s{sT1}",
                f"s_and_b32 s{sT0}, s{sT0}, 8192", f"s_xor_b32 s{sHS}, s{sHS}, s{sT0}",
                f"s_and_b32 s{sT0}, s{sGL}, 2", f"s_lshl_b32 s{sT1}, s{sT0}, 11", f"s_lshl_b32 s{sT0}, s{sT0}, 5", f"v_xor_b32 v{vC2}, s{sT0}, v{vC2}")
            for r in (UO[0], UO[1], UO[2], sHS): f.e(f"s_xor_b32 s{r}, s{r}, s{sT1}")
        f.e(f"s_mul_i32 s{sLE}, s{sW}, {SPW}", f"s_add_u32 s{sLE}, s{sLE}, {L_SP}",
            f"s_mul_i32 s{sW2O}, s{sXB}, {896*1024}", f"s_lshl_b32 s{sT1}, s{sGL}, 7", f"s_add_u32 s{sW2O}, s{sW2O}, s{sT1}",
            f"s_lshl2_add_u32 s{sCO}, s{sXB}, s{sW}", f"s_lshl_b32 s{sCO}, s{sCO}, 7", f"s_lshl_b32 s{sT0}, s{sGL}, 16", f"s_add_u32 s{sCO}, s{sCO}, s{sT0}")
        f.e(f"v_xor_b32 v{vC2+1}, 64, v{vC2}", f"v_add_u32 v{vC2+1}, 7168, v{vC2+1}", f"v_add_u32 v{vC2+2}, 14336, v{vC2}", f"v_add_u32 v{vC2+3}, 14336, v{vC2+1}")
        for j in range(1, 4): f.e(f"v_add_u32 v{vW2+j}, {7168*j}, v{vW2}")
        f.e(f"s_lshl1_add_u32 s{sT0}, s{sC}, s{sXB}", f"s_lshl2_add_u32 s{sT0}, s{sT0}, s{sW}", f"s_lshl_b32 s{sT0}, s{sT0}, 4", f"v_add_u32 v7, s{sT0}, v4",
            "v_lshlrev_b32 v34, 4, v7", f"v_add_u32 v34, {WS_STAT}, v34", "v_lshl_add_u32 v18, v7, 10, v35", "v_lshlrev_b32 v19, 1, v18")
        f.e(f"s_lshl4_add_u32 s{sT0}, s{sC}, s{sG}", f"s_lshl2_add_u32 s{sT0}, s{sT0}, s{sW}", f"s_lshl_b32 s{sT0}, s{sT0}, 12", f"s_add_u32 s{sT0}, s{sT0}, {WS_XCH}",
            f"v_add_u32 v{vXS}, s{sT0}, v33", f"v_xor_b32 v{vXR}, 0x20000, v{vXS}")
        f.e("v_and_b32 v7, 7, v2", "v_xor_b32 v7, v7, v3", "v_lshlrev_b32 v7, 4, v7", "v_and_b32 v8, 31, v37", "v_lshl_add_u32 v7, v8, 8, v7",
            f"s_lshl_b32 s{sT0}, s{sW}, 14", f"v_add_u32 v{vRW}, s{sT0}, v7")
        for g4 in range(1, 4): f.e(f"v_xor_b32 v{vRW+g4}, {32*g4}, v{vRW}")
        f.e("v_xor_b32 v7, v6, v4", "v_lshlrev_b32 v7, 4, v7", "v_lshl_add_u32 v7, v4, 8, v7", f"s_lshl_b32 s{sT0}, s{sW}, 12", f"s_lshl_b32 s{sT1}, s{sWN}, 6",
            f"s_or_b32 s{sT0}, s{sT0}, s{sT1}", f"v_xor_b32 v{vRR}, s{sT0}, v7")
        f.e("v_and_b32 v7, 2, v6", "v_and_b32 v8, 1, v6", "v_lshl_add_u32 v7, v7, 1, v8", "v_and_b32 v8, 4, v6", "v_lshrrev_b32 v8, 1, v8", "v_or_b32 v7, v7, v8",
            "v_lshlrev_b32 v8, 1, v32", "v_xor_b32 v7, v7, v8", "v_lshlrev_b32 v7, 4, v7", "v_lshl_add_u32 v7, v6, 7, v7",
            f"s_add_u32 s{sT0}, s{sLE}, 8192", f"v_add_u32 v{vTW}, s{sT0}, v7", f"v_xor_b32 v{vTW+1}, 16, v{vTW}")
        f.e("v_and_b32 v5, 1, v6", "v_and_b32 v8, 16, v2", "v_lshl_add_u32 v5, v5, 5, v8", "v_and_b32 v8, 2, v6", "v_lshl_add_u32 v5, v8, 2, v5")
        f.e("v_and_b32 v7, 2, v9", "v_and_b32 v8, 1, v9", "v_lshl_add_u32 v7, v7, 1, v8", "v_lshlrev_b32 v7, 4, v7", "v_xor_b32 v7, v7, v5",
            "v_lshl_add_u32 v8, v3, 3, v9", "v_lshl_add_u32 v7, v8, 7, v7", f"v_add_u32 v{vTD}, s{sT0}, v7")

    def ssm_consts(self, q):
        q.wvm(self.small)
        q.e("v_lshlrev_b32 v14, 16, v14", "v_lshlrev_b32 v12, 16, v12", f"v_mul_f32 v14, {fh(1.4426950408889634)}, v14", "v_lshlrev_b32 v13, 16, v13",
            "v_exp_f32 v14, v14", "v_lshlrev_b32 v3, 4, v32", "v_cvt_pk_bf16_f32 v14, v14, v14", "v_lshlrev_b32 v14, 16, v14",
            "v_mul_f32 v17, v14, v12", "v_mul_f32 v15, v14, v13",
            f"v_mul_f32 v17, {fh(1.4426950408889634)}, v17", f"v_mul_f32 v15, {fh(0.15915494309189535)}, v15",
            "v_cvt_f32_u32 v3, v3", "v_sub_u32 v4, 3, v4", "v_lshlrev_b32 v4, 9, v4", "v_cvt_f32_u32 v4, v4")
        def cexp(d, n):
            q.e(f"v_mul_f32 v6, {n}, v15", f"v_mul_f32 v5, {n}, v17", "v_fract_f32 v6, v6", "v_exp_f32 v5, v5", f"v_cos_f32 v{d}, v6", f"v_sin_f32 v{d+1}, v6",
                f"v_mul_f32 v{d}, v{d}, v5", f"v_mul_f32 v{d+1}, v{d+1}, v5")
        cexp(20, "1.0"); cexp(22, fh(16.0)); cexp(24, fh(64.0)); cexp(26, "v3"); cexp(28, "v4")
        q.e("v_mul_f32 v6, v12, v12", "v_fmac_f32 v6, v13, v13", "v_rcp_f32 v6, v6", "v_add_f32 v5, -1.0, v20",
            "v_mul_f32 v30, v5, v12", "v_fmac_f32 v30, v21, v13", "v_mul_f32 v31, v21, v12", "v_fma_f32 v31, -v5, v13, v31",
            "v_add_f32 v6, v6, v6", "v_mul_f32 v30, v30, v6", "v_mul_f32 v31, v31, v6")

    def check(self, name, loads, test):
        q = Seq()
        q.wvm(loads[-1])
        q.e(*test)
        q.e(f"s_cbranch_scc1 L_{name}_slow")
        q.label(f"L_{name}_ok")
        o = self.ool
        o.label(f"L_{name}_slow")
        o.e(f"s_mov_b32 s{sPOLL}, 0x40000")
        o.label(f"L_{name}_loop")
        o.e(f"s_sleep {self.c.poll_sleep}")
        for l in loads: o.append(I(l.t, "o"))
        o.e("s_waitcnt vmcnt(0)", f"s_sub_u32 s{sPOLL}, s{sPOLL}, 1", f"s_cbranch_scc1 L_{name}_ok")
        o.e(*test)
        o.e(f"s_cbranch_scc1 L_{name}_loop", f"s_branch L_{name}_ok")
        return list(q)
    def tags(self, regs, lo=False):
        if len(regs) == 1: return [f"v_cmp_ne_u32 vcc, s{sTAG}, v{regs[0]}", f"s_and_b32 s{sM}, vcc_lo, {lo}" if lo else "s_cmp_lg_u64 vcc, 0"]
        t = [f"v_cmp_ne_u32 s[{sM}:{sM+1}], s{sTAG}, v{regs[0]}"]
        for r in regs[1:]: t += [f"v_cmp_ne_u32 vcc, s{sTAG}, v{r}", f"s_or_b64 s[{sM}:{sM+1}], s[{sM}:{sM+1}], vcc"]
        return t

    def cmul_acc(self, q, d, a, b, c, c2=None):
        c2 = c + 1 if c2 is None else c2
        q.e(f"v_fma_f32 v{d}, v{a}, v{b}, v{c}", f"v_fma_f32 v{d+1}, v{a}, v{b+1}, v{c2}",
            f"v_fma_f32 v{d}, -v{a+1}, v{b+1}, v{d}", f"v_fma_f32 v{d+1}, v{a+1}, v{b}, v{d+1}")
    def cmul(self, q, d, a, b):
        q.e(f"v_mul_f32 v{d}, v{a}, v{b}", f"v_mul_f32 v{d+1}, v{a}, v{b+1}",
            f"v_fma_f32 v{d}, -v{a+1}, v{b+1}, v{d}", f"v_fma_f32 v{d+1}, v{a+1}, v{b}, v{d+1}")

    def w2_area(self, pc):
        return {0: (sLE, 0), 5: (sLE, 8192), 1: (sLB, SLOT), 2: (sLB, 2*SLOT), 3: (sLE, 0), 4: (sLB, SLOT)}[pc]
    def w2_dma(self, pc, run=4):
        sb, ao = self.w2_area(pc)
        G = []
        for k in range(4 if pc == 5 else 8):
            g = []; j = k % run
            if pc in UO:
                if j == 0:
                    g.append(I(f"s_add_u32 m0, s{sb}, {ao + 1024*k}"))
                    if k: g += [I(f"s_xor_b32 s{sKX}, s{UO[pc]}, {k*1024}"), I(f"s_lshl3_add_u32 s{sKX}, s{sKX}, s{sW2O}")]
                    else: g.append(I(f"s_lshl3_add_u32 s{sKX}, s{UO[pc]}, s{sW2O}"))
                g.append(I(f"buffer_load_dwordx4 v{vW2+j}, {srd(R_W2)}, s{sKX} offen offset:{1024*j} lds", "vm"))
            else:
                if j == 0: g += [I(f"s_add_u32 m0, s{sb}, {ao + 1024*k}"), I(f"s_add_u32 s{sKX}, s{sCO}, {8*k*1024}")]
                g.append(I(f"buffer_load_dwordx4 v{vC2+j}, {srd(R_CRE if pc == 3 else R_CIM)}, s{sKX} offen offset:{1024*j} lds", "vm"))
            G.append(g)
        self.w2_last[pc] = G[-1][-1]
        return G
    def w2_reads(self, pc):
        sb, ao = self.w2_area(pc)
        L = Seq()
        if pc in UO:
            L.e(f"v_add_u32 v{vTA}, s{sb}, v{vTR}")
            if ao >= 2 * SLOT: L.e(f"v_add_u32 v{vTA}, {ao}, v{vTA}"); ao = 0
            L.e(f"v_xor_b32 v{vTA+1}, 64, v{vTA}")
            L.wvm(self.w2_last[pc])
            j0 = {0: 0, 1: 4, 2: 8, 5: 12}[pc]
            for k in range(2 if pc == 5 else 4):
                for nu in range(2):
                    for e in range(2):
                        a = 8 * (j0 + k) + 4 * nu + 2 * e
                        r = L.e(f"ds_read_b64_tr_b16 {ar(a,2)}, v{vTA+nu} offset:{ao + 2048*k + 1024*e}")
        else:
            L.e(f"v_add_u32 v{vTA}, s{sb}, v{vCR}")
            for k in range(1, 4): L.e(f"v_xor_b32 v{vTA+k}, {32*k}, v{vTA}")
            L.wvm(self.w2_last[pc])
            j0 = 14 if pc == 3 else 18
            for k in range(4):
                for nu in range(2):
                    r = L.e(f"ds_read_b128 {ar(8*(j0+k)+4*nu)}, v{vTA+k} offset:{ao + 4096*nu}")
        self.w2_rd[pc] = r
        return groups(L)
    def after_reads(self, pc, G):
        w = Seq(); w.wds(self.w2_rd[pc])
        return [list(w) + G[0]] + G[1:]

    def ffn_epi(self, a, voff):
        f = Seq()
        for t in range(2):
            b = a + 16 * t
            for j in range(8): f.e(f"v_pk_mul_f32 {vr(b+2*j,2)}, {vr(b+2*j,2)}, {vr(42,2)} op_sel:[0,{t}] op_sel_hi:[1,{t}]")
            for j in range(8): f.e(f"v_cvt_pk_bf16_f32 v{b+j}, v{b+2*j}, v{b+2*j+1}")
            for j in range(8): f.e(f"v_pk_max_i16 v{b+j}, v{b+j}, 0")
        st = [I(f"buffer_store_dwordx4 {vr(a+16*t+4*al)}, v{voff}, {srd(R_SY)}, 0 offen offset:{2048*al + 1024*t} sc1", "vm") for t in range(2) for al in range(2)]
        return f, st

    def split3(self, s, src, d):
        s.e(f"v_and_b32 v240, 0xffff0000, v{src}", f"v_sub_f32 v240, v{src}, v240",
            f"v_perm_b32 v{d}, v240, v{src}, s{sONES}", "v_and_b32 v241, 0xffff0000, v240", "v_sub_f32 v241, v240, v241",
            f"v_cvt_pk_bf16_f32 v{d+1}, v241, 0")

    def flag_store(self, kind, after):
        q = Seq(); q.wvm(after)
        q.e(f"buffer_store_dword v251, v{vFL}, {srd(R_SY)}, 0 offen offset:{128*kind} sc1")
        return list(q)

    def phase1(self, q, last):
        c = self.c
        RE, IM = ACC_S, ACC_S + 16
        MF8 = "v_mfma_f32_32x32x8_bf16"; MF = "v_mfma_f32_32x32x16_bf16"
        MFR = 200
        q.wvm(last[0]); q.e("s_barrier"); self.stamp(q)
        D = 2; D2 = 3
        RD = {}
        for n in range(D): RD[n] = self.frag_reads(n); q.e(*RD[n])
        G, l = self.stage_dma(2); last.append(l)
        dma = Stream(G, every=1)
        s = Seq()
        s.e(f"v_readfirstlane_b32 s{sTAG}, v16", "v_permlane32_swap_b32 v48, v49", "v_permlane32_swap_b32 v50, v51", f"s_add_u32 s{sTAG}, s{sTAG}, {hex(TAGK)}",
            "v_add_f32 v48, v48, v49", "v_add_f32 v50, v50, v51", f"s_or_b32 s{sTAG}, s{sTAG}, 1", f"v_mov_b32 v54, s{sTAG}",
            "v_permlane16_swap_b32 v48, v50", "v_add_f32 v48, v48, v50", f"v_mov_b32 v251, s{sTAG}")
        for k in (8, 4, 2, 1): s.e(f"v_add_f32_dpp v48, v48, v48 row_ror:{k} row_mask:0xf bank_mask:0xf")
        s.e("v_mov_b32 v49, v48", "v_permlane16_swap_b32 v48, v49",
            f"v_mul_f32 v48, {fh(1/512)}, v48", f"v_mul_f32 v49, {fh(1/512)}, v49", "v_fma_f32 v49, -v48, v48, v49", "v_max_f32 v49, 0, v49",
            "v_cvt_pk_bf16_f32 v49, v49, v49", "v_lshlrev_b32 v49, 16, v49", f"v_add_f32 v49, {fh(1e-5)}, v49",
            "v_cvt_pk_bf16_f32 v49, v49, v49", "v_lshlrev_b32 v49, 16, v49", "v_sqrt_f32 v49, v49",
            "v_cvt_pk_bf16_f32 v53, -v48, -v48",
            "v_cvt_pk_bf16_f32 v49, v49, v49", "v_lshlrev_b32 v49, 16, v49", "v_rcp_f32 v52, v49")
        s.e(f"buffer_store_dwordx4 {vr(52)}, v{vSTS}, {srd(R_SY)}, 0 offen sc1")
        sA = Stream(groups(s), start=4 * (c.stat_at + 1), dl=4 * c.stat_at + 28)
        s = Seq()
        if not (c.boot and c.boot_late): self.consts_late(s)
        self.ssm_consts(s)
        sC_ = Stream(groups(s), dl=c.gather_at - 1)
        gl_ = [I(f"buffer_load_dwordx3 {vr(40,3)}, v{vGS}, {srd(R_SY)}, 0 offen sc1", "vm"), I(f"buffer_load_dwordx3 {vr(44,3)}, v{vGR}, {srd(R_SY)}, 0 offen sc1", "vm")]
        A = [gl_, ("nb", c.check_at), self.check("ga", gl_, self.tags([42, 46]))]
        s = Seq()
        s.e(f"v_mov_b32 v{MFR}, v41", f"v_mov_b32 v{MFR+2}, v41", "v_mov_b32 v42, v40", "v_mov_b32 v43, v40",
            f"s_lshl_b32 s{sT0}, s{sG}, 14", f"s_add_u32 s{sT0}, s{sT0}, {WS_AGG}",
            f"v_permlane32_swap_b32 v{MFR}, v{MFR+2}", "v_permlane32_swap_b32 v42, v43", f"v_mov_b32 v{MFR+1}, v{MFR}", f"v_mov_b32 v{MFR+3}, v{MFR+2}")
        A += groups(s)
        A.append([I(f"s_add_u32 s{R_AG}, s{R_SY}, s{sT0}"), I(f"s_addc_u32 s{R_AG+1}, s{R_SY+1}, 0"), I(f"s_movk_i32 s{R_AG+2}, 16384")])
        assert c.check_at >= 92
        sG_ = Stream(A, start=c.gather_at, dl=119)
        early = self.w2_dma(0, 2) + self.w2_dma(5, 2)
        self.xl = []; X = []
        for ii in range(4):
            self.xl.append(I(f"buffer_load_dwordx2 {vr(2+4*ii,2)}, v18, {srd(R_X)}, s{sK4} offen", "vm"))
            X.append([I(f"s_movk_i32 s{sK4}, {4096*ii}"), self.xl[-1]])
        X.append(("nb", 120))
        for ii in range(4):
            self.xl.append(I(f"buffer_load_dwordx2 {vr(4+4*ii,2)}, v34, {srd(R_SY)}, 0 offen offset:{64*ii} sc1", "vm")); X.append([self.xl[-1]])
        assert c.check_at < 116
        sX_ = Stream(X, start=106, dl=127, every=2)
        for n in range(32):
            p = n & 3
            b = self.fb(n); rd = RD[n]
            if (n + D) % 4 == 0:
                i = (n + D) // 4 - 1
                flush(q, [dma])
                q.wds_all()
                if i < 7: q.wvm(last[i + 1])
                q.e("s_barrier")
                if i in c.ts_stages: self.stamp(q)
                if i < 6:
                    G, l = self.stage_dma(i + 3); last.append(l)
                    if c.early_from <= i < 6:
                        assert not sC_.it
                        G = G + early[:c.early_n]; early = early[c.early_n:]
                    dma = Stream(G, every=2)
                if i == 7: csr = q.e(f"ds_read_b64 {vr(62,2)}, v{vGC+2}")
            if n >= c.pf_from and (n - c.pf_from) % c.pf_step == 0 and (n - c.pf_from) // c.pf_step * c.pf_n < 28:
                q.e(f"global_load_dword v10, v{vPF}, s[70:71] offset:{(n - c.pf_from) // c.pf_step * c.pf_n * 128}")
            if n == c.l2pf_at:
                q.e(f"s_lshr_b32 s{sT0}, s2, 3", f"s_lshl2_add_u32 s{sT1}, s{sT0}, s{sW}", f"s_mul_i32 s{sT1}, s{sT1}, {56*128}", f"s_mul_i32 s{sT2}, s{sXB}, {896*1024}",
                    f"s_add_u32 s{sT1}, s{sT1}, s{sT2}", f"v_min_u32 v240, 55, v{vL}", "v_lshlrev_b32 v240, 7, v240")
                q.e(f"buffer_load_dword v219, v240, {srd(R_W2)}, s{sT1} offen")
                q.e(f"s_lshl2_add_u32 s{sT1}, s{sT0}, s{sW}", f"s_lshl_b32 s{sT1}, s{sT1}, 12", f"s_lshl_b32 s{sT2}, s{sXB}, 9", f"s_add_u32 s{sT1}, s{sT1}, s{sT2}",
                    f"v_and_b32 v240, 3, v{vL}", f"v_bfe_u32 v241, v{vL}, 2, 2", "v_lshlrev_b32 v240, 7, v240", "v_lshl_add_u32 v240, v241, 10, v240")
                q.e(f"buffer_load_dword v219, v240, {srd(R_CRE)}, s{sT1} offen", f"buffer_load_dword v219, v240, {srd(R_CIM)}, s{sT1} offen")
            if n == c.pt_at:
                for v in (vFP, vAGS, vCSS): q.e(f"buffer_load_dword v219, v{v}, {srd(R_SY)}, 0 offen")
            if n == c.strow_at: q.e(*self.strows)
            nxt = []
            if n + D < 32: nxt = RD[n + D] = self.frag_reads(n + D)
            z = lambda a: ("0" if n == 0 else vr(a, 16))
            M = [f"{MF} {vr(ACC_F1,16)}, {vr(b+4)}, {ar(8*n)}, {z(ACC_F1)}", f"{MF} {vr(ACC_F1+16,16)}, {vr(b+4)}, {ar(8*n+4)}, {z(ACC_F1+16)}",
                 f"{MF} {vr(RE,16)}, {ar(8*n)}, {vr(b)}, {z(RE)}", f"{MF} {vr(IM,16)}, {ar(8*n+4)}, {vr(b)}, {z(IM)}"]
            sched = [2, 1, 1, 2]
            k = 0
            for j, m in enumerate(M):
                q.wds(rd[4]); q.e(m)
                mine = nxt[k:k + sched[j]]; k += sched[j]
                q.e(*mine)
                fill_gap(q, 4 * n + j, len(mine), c.cap1, [dma, sA, sG_, sC_, sX_])
                if n == 30 and j == 2:
                    q.e(f"s_mov_b32 s{sONES}, 0x07060302"); q.wds(csr)
                    q.e(f"v_add_f32 v{CS+1}, v{CS+1}, v63", f"v_add_f32 v{CS}, v{CS}, v62")
                if n == 30 and j == 3: self.split3(q, CS + 1, 222)
                if n == 31 and j == 0: self.split3(q, CS, 204)
                if n == 31 and j == 1:
                    flush(q, [sG_])
                    for t in range(2): q.e(f"{MF8} {vr(ACC_F1+16*t,16)}, {vr(222,2)}, {vr(MFR+2*t,2)}, {vr(ACC_F1+16*t,16)}")
            if n == c.stat_at:
                q.wvm(self.small0, self.strows[1])
                for r in range(4):
                    q.e(f"v_dot2c_f32_bf16 v48, s{sONES}, v{40+r}", f"v_dot2c_f32_bf16 v49, s{sONES}, v{44+r}",
                        f"v_dot2c_f32_bf16 v50, v{40+r}, v{40+r}", f"v_dot2c_f32_bf16 v51, v{44+r}, v{44+r}")
            if p == 1:
                if dma.it: q.e(*dma.it.pop(0))
                for e in (n - 1, n + 1):
                    q.wds(RD[e][4]); be = self.fb(e)
                    for r in range(4):
                        q.e(f"v_dot2c_f32_bf16 v{CS}, s{sONES}, v{be+r}", f"v_dot2c_f32_bf16 v{CS+1}, s{sONES}, v{be+4+r}")
            if n == 29: q.e(f"ds_write_b64 v{vGC+1}, {vr(CS,2)}")
        for t in range(2): q.e(f"{MF8} {vr(RE+16*t,16)}, {vr(MFR+2*t,2)}, {vr(204,2)}, {vr(RE+16*t,16)}")
        self.stamp(q)
        G9, l = self.stage_dma(9); last.append(l)
        f, st = self.ffn_epi(ACC_F1, vHF1)
        q.e(f"v_mov_b32 v{CS}, s{sTAG}")
        q.extend(merge(f, G9[:c.g9_pre]))
        st = [I(f"buffer_store_dwordx2 {vr(CS,2)}, v{vCSS}, {srd(R_SY)}, 0 offen sc1", "vm")] + st
        s = Seq()
        for i in range(16): s.e(f"v_permlane16_swap_b32 v{RE+i}, v{IM+i}")
        cr, ci = RE, IM
        def scale(i): s.e(f"v_mul_f32_dpp v{RE+i}, v44, v{RE+i} row_newbcast:{i} row_mask:0xf bank_mask:0xf", f"v_mul_f32_dpp v{IM+i}, v44, v{IM+i} row_newbcast:{i} row_mask:0xf bank_mask:0xf")
        scale(0); scale(1)
        for i in range(1, 16):
            d = 48 if i & 1 else 46
            s.e(f"v_fma_f32 v{d}, v20, v{cr}, v{RE+i}", f"v_fma_f32 v{d+1}, v20, v{ci}, v{IM+i}")
            if i < 15: scale(i + 1)
            s.e(f"v_fma_f32 v{d}, -v21, v{ci}, v{d}", f"v_fma_f32 v{d+1}, v21, v{cr}, v{d+1}")
            cr, ci = d, d + 1
        q.extend(merge(s, [[x] for x in st] + G9[c.g9_pre:]))
        s = Seq()
        s.e("v_mov_b32 v50, v48", "v_mov_b32 v51, v49", f"v_mov_b32 v62, s{sTAG}", "v_mov_b32 v40, 0",
            "v_permlane32_swap_b32 v48, v50", "v_permlane32_swap_b32 v49, v51",
            "v_mov_b32 v52, v48", "v_mov_b32 v54, v50", "v_mov_b32 v53, v49", "v_mov_b32 v55, v51",
            "v_permlane16_swap_b32 v48, v52", "v_permlane16_swap_b32 v50, v54", "v_permlane16_swap_b32 v49, v53", "v_permlane16_swap_b32 v51, v55", "v_mov_b32 v41, 0")
        self.cmul_acc(s, 50, 22, 48, 50); self.cmul_acc(s, 52, 22, 50, 52); self.cmul_acc(s, 60, 22, 52, 54)
        s.e(f"buffer_store_dwordx4 {vr(60)}, v{vAGS}, {srd(R_SY)}, 0 offen sc1")
        q.extend(s)
        self.stamp(q)
        q.wvm(last[8]); q.e("s_barrier")
        for e in range(32, 32 + D2):
            RD[e] = self.frag_reads(e); q.e(*RD[e])
        cl_ = I(f"buffer_load_dwordx2 {vr(CS,2)}, v{vGC}, {srd(R_SY)}, 0 offen sc1", "vm")
        S1 = []
        for j in range(1, 4):
            S1.append([I(f"v_cmp_eq_u32 vcc, {j}, v32"), I(f"v_cndmask_b32 v40, v40, v{46+2*j}, vcc"), I(f"v_cndmask_b32 v41, v41, v{47+2*j}, vcc")])
        s = Seq()
        for i in range(16):
            s.e(f"v_mul_f32 v46, v31, v{IM+i}", f"v_mul_f32 v{IM+i}, v30, v{IM+i}", f"v_fmac_f32 v{IM+i}, v31, v{RE+i}", f"v_fma_f32 v{RE+i}, v30, v{RE+i}, -v46")
        sS1 = Stream(S1 + groups(s))
        self.fa = I(f"buffer_load_dword v{vFP}, v36, {srd(R_SY)}, 0 offen sc1", "vm")
        W = early + self.w2_dma(1) + self.w2_dma(2)
        W = W[:c.w2_first] + [("nb", c.w2_at2), self.flag_store(0, st[-1]) + [cl_]] + W[c.w2_first:c.w2_first + c.w2_n2] + [("nb", c.w2_at3)] + W[c.w2_first + c.w2_n2:]
        for g in S1[:3]: q.e(*g)
        sS1.it = sS1.it[3:]
        sR0 = Stream(self.w2_reads(0), start=c.r0_at)
        W += self.after_reads(0, self.w2_dma(3))
        sW2 = Stream(W, every=2)
        self.lb = [I(f"buffer_load_dwordx3 {vr(96+4*t,3)}, v{vLBK}, {srd(R_AG)}, 0 offen offset:{512*t} sc1", "vm") for t in range(8)]
        sLB_ = Stream([[x] for x in self.lb], start=c.lb_at, every=c.lb_every)
        r5 = self.w2_reads(5)
        _, B, self.ssm_last = self.ssm_part2()
        sR0.it += r5
        if c.b_at < 64: sR0.dl = c.b_at - 1; sS1.dl = c.b_at - 1
        sB2 = Stream(B[:-1], start=c.b_at); self.hst = B[-1]
        sBase = Stream(self.base_stream(), start=64)
        K9 = 16 - D2
        for n in range(32, 64):
            k = n - 32
            b = self.fb(n)
            if k == K9:
                q.wds_all(); q.wvm(last[9]); q.e("s_barrier")
            nxt = RD[n + D2] = self.frag_reads(n + D2)
            for t in range(2):
                d = ACC_F2 + 16 * t
                q.wds(RD[n][-1])
                q.e(f"{MF} {vr(d,16)}, {vr(b+4)}, {ar(8*k+4*t)}, {'0' if k == 0 else vr(d,16)}")
                q.e(*nxt[t:t+1])
                fill_gap(q, 2 * k + t, 1.25, c.cap2, [sLB_, sW2, sS1, sR0, sB2, sBase])
                if k == 30 and t == 0: q.extend(self.check("c2", [cl_], self.tags([CS])))
                if k == 30 and t == 1: self.split3(q, CS + 1, 222)
        for t in range(2): q.e(f"{MF8} {vr(ACC_F2+16*t,16)}, {vr(222,2)}, {vr(MFR+2*t,2)}, {vr(ACC_F2+16*t,16)}")
        self.stamp(q)
        self.left = (sW2.rest(), sS1.rest(), sR0.rest(), sLB_.rest(), sB2.rest())
        self.base_left = sBase.rest()

    def ssm_part2(self):
        RE, IM = ACC_S, ACC_S + 16
        LB = 96
        lb = self.lb
        pr_ = [48, 50, 56, 58, 60, 62, 70, sM]
        test = [f"v_cmp_eq_u32 s[{pr_[t]}:{pr_[t]+1}], s{sTAG}, v{LB+4*t+2}" for t in range(8)]
        test += [f"s_bcnt1_i32_b64 s{pr_[t]}, s[{pr_[t]}:{pr_[t]+1}]" for t in range(8)]
        test += [f"s_add_u32 s{pr_[0]}, s{pr_[0]}, s{pr_[t]}" for t in range(1, 8)]
        test.append(f"s_cmp_lg_u32 s{pr_[0]}, s{sNV}")
        B = [self.check("lb", lb, test)]
        q = Seq()
        self.stamp(q)
        for t in range(6, -1, -1): self.cmul_acc(q, LB + 4 * t, 24, LB + 4 * (t + 1), LB + 4 * t)
        self.cmul(q, 62, 28, LB)
        for sw in ("16", "32"):
            q.e("v_mov_b32 v60, v62", "v_mov_b32 v61, v63", f"v_permlane{sw}_swap_b32 v60, v62", f"v_permlane{sw}_swap_b32 v61, v63",
                "v_add_f32 v62, v60, v62", "v_add_f32 v63, v61, v63")
        self.cmul_acc(q, 60, 26, 62, 40)
        self.cmul(q, 62, 30, 60)
        self.nB1 = len(groups(q)) + 1
        pr, pi_ = 62, 63
        for i in range(16):
            q.e(f"v_fma_f32 v{RE+i}, v20, v{pr}, v{RE+i}", f"v_fma_f32 v{IM+i}, v20, v{pi_}, v{IM+i}",
                f"v_fma_f32 v{RE+i}, -v21, v{pi_}, v{RE+i}", f"v_fma_f32 v{IM+i}, v21, v{pr}, v{IM+i}")
            pr, pi_ = RE + i, IM + i
            if i & 1:
                j = i >> 1
                q.e(f"v_cvt_pk_bf16_f32 v{44+j}, v{RE+2*j}, v{RE+2*j+1}", f"v_cvt_pk_bf16_f32 v{52+j}, -v{IM+2*j}, -v{IM+2*j+1}")
            if i == 7:
                q.wds(self.w2_rd[5])
                q.e(f"ds_write_b128 v{vTW}, {vr(44)}", f"ds_write_b128 v{vTW}, {vr(52)} offset:2048")
        q.e(f"ds_write_b128 v{vTW+1}, {vr(48)}", f"ds_write_b128 v{vTW+1}, {vr(56)} offset:2048")
        q.e(f"v_xor_b32 v61, {512|32}, v{vTD}", f"v_xor_b32 v62, 64, v{vTD}", "v_xor_b32 v63, 64, v61", f"s_movk_i32 s{sT1}, 8192")
        ad = {(0, 0): vTD, (0, 1): 61, (1, 0): 62, (1, 1): 63}
        for part in range(2):
            for mu in range(2):
                for e in range(2):
                    tr = q.e(f"ds_read_b64_tr_b16 {vr(64 + 8*part + 4*mu + 2*e,2)}, v{ad[mu, e]} offset:{2048*part}")
        B += groups(q)
        st = [I(f"buffer_store_dwordx4 {vr(64+8*part+4*mu)}, v{vHS}, {srd(R_SY)}, {('0', f's{sT1}')[part]} offen offset:{1024*mu} sc1", "vm") for part in range(2) for mu in range(2)]
        w = Seq(); w.wds(tr)
        B.append(list(w) + st)
        return lb, B, st[-1]

    def base_stream(self):
        f = Seq()
        T = 88; D = 20; r = 24
        f.wvm(self.xl[-1])
        f.e(f"v_lshlrev_b32 v{D}, 16, v38", f"v_and_b32 v{D+1}, 0xffff0000, v38", f"v_lshlrev_b32 v{D+2}, 16, v39", f"v_and_b32 v{D+3}, 0xffff0000, v39")
        for ii in range(4):
            b = BASE + 4 * ii
            f.e(f"v_mov_b32 v{r}, v{b+2}", f"v_lshlrev_b32 v{r+1}, 16, v{b+3}",
                f"v_lshlrev_b32 v{b+2}, 16, v{b+1}", f"v_and_b32 v{b+3}, 0xffff0000, v{b+1}", f"v_and_b32 v{b+1}, 0xffff0000, v{b}", f"v_lshlrev_b32 v{b}, 16, v{b}")
            for e in range(4): f.e(f"v_add_f32 v{T+e}, v{b+e}, v{r+1}")
            def rnd():
                f.e(f"v_cvt_pk_bf16_f32 v{T+4}, v{T}, v{T+1}", f"v_cvt_pk_bf16_f32 v{T+5}, v{T+2}, v{T+3}",
                    f"v_lshlrev_b32 v{T}, 16, v{T+4}", f"v_and_b32 v{T+1}, 0xffff0000, v{T+4}", f"v_lshlrev_b32 v{T+2}, 16, v{T+5}", f"v_and_b32 v{T+3}, 0xffff0000, v{T+5}")
            rnd()
            for e in range(4): f.e(f"v_mul_f32 v{T+e}, v{T+e}, v{r}")
            rnd()
            for e in range(4): f.e(f"v_mul_f32 v{T+e}, v{T+e}, v{D+e}")
            rnd()
            for e in range(4): f.e(f"v_add_f32 v{b+e}, v{b+e}, v{T+e}")
        return groups(f)

    def phase2(self, q):
        c = self.c
        NR = c.nring; ak = c.akept; NT = c.ntail; LEAD = c.lead
        assert ak % 2 == 0 and ak <= 8 and NR >= LEAD + NT - 1 and NR <= 10
        wl, sl, rl, ll, B = self.left
        ssm_last = self.ssm_last
        for g in sl + rl: q.e(*g)
        f, st2 = self.ffn_epi(ACC_F2, vHF2)
        r1 = self.w2_reads(1)
        f2 = Seq()
        for g in r1: f2.e(*g)
        f2.extend(f)
        wl = wl + self.after_reads(1, self.w2_dma(4))
        q.extend(merge(f2, [[self.fa]] + ll + wl[:c.left_pre], start=0))
        wl = wl[c.left_pre:]
        k = c.b_mid
        f = Seq()
        for g in B[:k]: f.e(*g)
        assert not any(x.kind == "label" for x in f)
        q.e(st2[0]); q.extend(merge(f, [[x] for x in st2[1:]]))
        self.stamp(q)
        B = B[k:] + [self.hst]
        q.extend(self.check("fa", [self.fa], self.tags([vFP], 0xff)))
        self.stamp(q)
        ACC = (96, 160)
        steps = [(0, j) for j in range(8)] + [(1, j) for j in range(ak)] + [(0, j) for j in range(8, 22)] + [(1, j) for j in range(ak, 22)]
        firstB = 8 + ak; sent_done = firstB + 13
        ld = {}
        def issue(n):
            ps, j = steps[n]
            a = 176 + 8 * (n % NR)
            blk = (sB0, sB1)[ps]
            g = []
            if j % 2 == 0:
                if j < 14:
                    pc = (0, 1, 2, 5)[j // 4]
                    if j % 4 == 2 and steps[n-1] == (ps, j - 1): g.append(I(f"s_xor_b32 s{sKW}, s{sKW}, 4096"))
                    else:
                        g.append(I(f"s_add_u32 s{sKW}, s{blk}, s{UO[pc]}"))
                        if j % 4: g.append(I(f"s_xor_b32 s{sKW}, s{sKW}, 4096"))
                elif j == 14: g.append(I(f"s_add_u32 s{sKW}, s{blk}, s{sHS}"))
                elif j == 18: g += [I(f"s_xor_b32 s{sKW}, s{sHS}, 8192"), I(f"s_add_u32 s{sKW}, s{sKW}, s{blk}")]
                else: g.append(I(f"s_xor_b32 s{sKW}, s{sKW}, 4096"))
            o = 2048 * (j % 2)
            ld[n, 0] = I(f"buffer_load_dwordx4 {ar(a)}, v33, {srd(R_SY)}, s{sKW} offen offset:{o} sc1", "vm")
            ld[n, 1] = I(f"buffer_load_dwordx4 {ar(a+4)}, v33, {srd(R_SY)}, s{sKW} offen offset:{o+1024} sc1", "vm")
            return [g + [ld[n, 0]], [ld[n, 1]]]
        order = []
        n = 0
        while n < 44:
            if n in (sent_done + 1 - NT, 44 - NT):
                for k in range(4): order += [(m, k) for m in range(n, n + NT)]
                n += NT
            else:
                order += [(n, k) for k in range(4)]; n += 1
        pos = {e: i for i, e in enumerate(order)}
        L0 = c.lead0
        f = Seq()
        for g in B[:-1]: f.e(*g)
        q.extend(merge(f, [g for n in range(L0) for g in issue(n)]))
        q.e(*B[-1])
        fs = I(f"buffer_load_dword v{vFP}, v36, {srd(R_SY)}, 0 offen offset:128 sc1", "vm")
        st = Seq(); self.stamp(st)
        gate = 4 * firstB - c.gate_lead
        L = []
        for n in range(L0, 44):
            nb = max(4 * (n - LEAD), 0)
            if n >= NR: nb = max(nb, max(pos[n - NR, k] for k in range(4)))
            if n >= firstB: nb = max(nb, gate)
            if firstB < n < firstB + c.burst:
                assert nb <= gate
                L[-1] += [x for g in issue(n) for x in g]; continue
            L.append(("nb", nb))
            if n == firstB: L.append(self.check("fs", [fs], self.tags([vFP], 0xffff)) + list(st) + [x for g in issue(n) for x in g])
            else: L += issue(n)
        sL = Stream(L, every=2)
        P = [("nb", c.flagB_at)] + [self.flag_store(1, ssm_last)] + [("nb", gate - c.fs_lead), [fs]]
        sP = Stream(P, dl=gate - 1)
        Wc = self.w2_reads(2) + [("nb", c.flagB_at + 1)] + wl + [("nb", c.rc_at)]
        Wc += self.w2_reads(3) + self.w2_reads(4)
        d_c = 4 * (firstB + 5)
        sWc = Stream(Wc, start=1, dl=d_c, every=c.wc_every)
        sB = Stream(self.base_left)
        XV = 64; TB = 80
        s = Seq()
        s.e(f"v_mov_b32 v{TB}, s{sTAG}")
        for k in range(1, 4): s.e(f"v_lshrrev_b32 v{TB+k}, {8*k}, v{TB}")
        s.e(f"s_movk_i32 s{sT2}, 0xff")
        s.wds_all(); s.e("s_barrier")
        R0 = [("nb", d_c + 6)] + groups(s)
        def tile(k): return (k & 1, k >> 1)
        def red_write(ps, lastn):
            out = []
            for k in range(4):
                nu, mu = tile(k)
                out.append(("nb", pos[lastn, k] + 2))
                for g4 in range(4):
                    out.append([I(f"ds_write_b128 v{vRW+g4}, {vr(ACC[ps] + 32*nu + 16*mu + 4*g4)} offset:{128*nu + 8192*mu}", "ds")])
            return out
        def red_read(s, dst):
            return [s.e(f"ds_read_b128 {vr(dst + 16*ii + 4*src)}, v{vRR} offset:{1024*ii + 16384*src}") for ii in range(4) for src in range(4)]
        s = Seq()
        s.wds_all(); s.e("s_barrier")
        R = red_read(s, 96)
        for g4 in range(4): s.e(f"v_add_u32 v{vRW+g4}, 0x10000, v{vRW+g4}")
        Ga = groups(s); s = Seq()
        for ii in range(4):
            s.wds(R[4 * ii + 3])
            for e in range(4):
                d = XV + 4 * ii + e; s0 = 96 + 16 * ii + e
                s.e(f"v_add_f32 v{s0}, v{s0}, v{s0+4}", f"v_add_f32 v{d}, v{s0+8}, v{s0+12}", f"v_add_f32 v{d}, v{d}, v{s0}",
                    f"v_bfi_b32 v{d}, s{sT2}, v{TB+e}, v{d}")
        s.e(f"v_add_u32 v{vRR}, 0x10000, v{vRR}")
        Gb = groups(s)
        s = Seq()
        for k in range(4): s.e(f"buffer_store_dwordx4 {vr(XV+4*k)}, v{vXS}, {srd(R_SY)}, 0 offen offset:{1024*k} sc1")
        self.stamp(s)
        e0 = 4 * (sent_done + 1)
        XR = 40
        xl = [I(f"buffer_load_dwordx4 {vr(XR+4*k)}, v{vXR}, {srd(R_SY)}, 0 offen offset:{1024*k} sc1", "vm") for k in range(4)]
        sR = Stream(R0 + red_write(0, sent_done) + [("nb", e0 + c.bar_lag)] + Ga + [("nb", e0 + c.bar_lag + c.add_lag)] + Gb + [("nb", 4 * c.send_at)] + [list(s)]
                    + red_write(1, 43), wev=c.wev)
        sX = Stream([[x] for x in xl], start=c.xl_at, every=2)
        q.wds(self.w2_rd[1])
        emitted = set(id(x) for x in q)
        for gi, (n, k) in enumerate(order):
            ps, j = steps[n]; nu, mu = tile(k)
            a = 176 + 8 * (n % NR); d = ACC[ps] + 32 * nu + 16 * mu
            while not any(ld[n, mu] is x for x in q[-400:]):
                g = sL.it.pop(0)
                if not isinstance(g, tuple): q.e(*g)
            q.wvm(ld[n, mu])
            if n == firstB: q.wds(self.w2_rd[2])
            if n == firstB + 6: q.wds(self.w2_rd[4])
            if k == 0 and n in c.p2stamps: self.stamp(q)
            q.e(f"v_mfma_f32_32x32x16_bf16 {vr(d,16)}, {ar(8*j+4*nu)}, {ar(a+4*mu)}, {'0' if j == 0 else vr(d,16)}")
            fill_gap(q, gi, 0.5, c.cap4 if gi >= e0 else c.cap3, [sP, sL, sWc, sR, sX, sB])
        self.stamp(q)
        flush(q, [sR, sX, sB])
        q.wds_all(); q.e("s_barrier")
        R = red_read(q, 96)
        pre = [f"s_mov_b32 s{sT0}, 0x0c0c0400", f"s_mov_b32 s{sT1}, 0x05040100"]
        for k in range(4):
            r = XR + 4 * k
            pre += [f"v_perm_b32 v60, v{r+1}, v{r}, s{sT0}", f"v_perm_b32 v61, v{r+3}, v{r+2}, s{sT0}", f"v_perm_b32 v{56+k}, v61, v60, s{sT1}"]
        for ii in range(4):
            q.wds(R[4 * ii + 3])
            s0 = 96 + 16 * ii
            for e in range(2):
                q.e(f"v_pk_add_f32 {vr(s0+2*e,2)}, {vr(s0+2*e,2)}, {vr(s0+4+2*e,2)}", f"v_pk_add_f32 {vr(s0+8+2*e,2)}, {vr(s0+8+2*e,2)}, {vr(s0+12+2*e,2)}")
            for e in range(2): q.e(f"v_pk_add_f32 {vr(s0+2*e,2)}, {vr(s0+2*e,2)}, {vr(BASE+4*ii+2*e,2)}")
            for e in range(2): q.e(f"v_pk_add_f32 {vr(s0+2*e,2)}, {vr(s0+2*e,2)}, {vr(s0+8+2*e,2)}")
        q.extend(self.check("xc", xl, pre + self.tags([56 + k for k in range(4)])))
        self.stamp(q)
        for ii in range(4):
            s0 = 96 + 16 * ii
            for e in range(2): q.e(f"v_pk_add_f32 {vr(s0+2*e,2)}, {vr(s0+2*e,2)}, {vr(XR+4*ii+2*e,2)}")
            q.e(f"s_movk_i32 s{sT0}, {8192*ii}")
            q.e(f"buffer_store_dwordx4 {vr(s0)}, v19, {srd(R_OUT)}, s{sT0} offen {c.ost}")
        q.e(f"s_lshl_b32 s{sT0}, s{sG}, 2", f"s_or_b32 s{sT0}, s{sT0}, s{sW}", f"s_lshl_b32 s{sT0}, s{sT0}, 4", f"s_or_b32 s{sT0}, s{sT0}, s{sC}",
            f"s_cmp_eq_u32 s{sT0}, 15", "s_cbranch_scc0 L_nobump", "v_mov_b32 v57, 0", "s_mov_b64 exec, 1")
        q.e(f"buffer_store_dword v251, v57, {srd(R_SY)}, 0 offen sc1")
        q.e("s_mov_b64 exec, -1")
        q.label("L_nobump")

    def write_ts(self, q):
        if not self.c.ts: return
        q.wds_all(); q.wvm_all()
        q.e("s_memtime s[46:47]", "s_memrealtime s[92:93]"); q.wds_all()
        q.e(f"s_lshl_b32 s{sT0}, s2, 2", f"s_add_u32 s{sT0}, s{sT0}, s{sW}", f"s_lshl_b32 s{sT0}, s{sT0}, 6", f"s_add_u32 s{sT0}, s{sT0}, {WS_TS}", "v_mov_b32 v2, 0")
        q.e("s_mov_b64 exec, 1")
        def put(k): q.e(f"buffer_store_dword v3, v2, {srd(R_SY)}, s{sT0} offen offset:{4*k}")
        for k in range(self.nts + 2):
            if k == 0: q.e("v_mov_b32 v3, v255")
            elif k == self.nts + 1: q.e("s_sub_u32 s46, s46, s42", "v_mov_b32 v3, s46")
            else:
                r = TSREG[k - 1]; q.e(f"s_sub_u32 s{r}, s{r}, s42", f"v_mov_b32 v3, s{r}")
            put(k)
        q.e("v_mov_b32 v3, s92"); put(15)
        q.wvm_all()

    def add_prof(self, q):
        lo, step = self.c.prof
        out = Seq(); unsafe = False; started = False; acc = 0; n = 0; idx = 0; nm = 0
        NP = len(TSREG)
        self.prof_pts = []
        for ins in q:
            t = ins.t
            if started and not unsafe and n < 64 and idx >= lo and acc >= step and ins.kind not in WAITK and not t.startswith(("s_cbranch", "s_branch", "s_cselect", "s_addc")) and ins.kind != "label":
                r = TSREG[n % NP]
                if n >= NP: out.e(f"v_writelane_b32 v0, s{r}, {n - NP}")
                out.e(f"s_memtime s[{r}:{r+1}]"); self.prof_pts.append((idx, nm, t[:50])); n += 1; acc = 0
            out.append(ins)
            if t == "s_barrier": started = True
            if started and ins.kind != "label":
                idx += 1; acc += 1
                if t.startswith("v_mfma"): nm += 1
            if t.startswith("s_cbranch"): unsafe = started
            if ins.kind == "label" and (t.endswith("_ok:") or t.startswith("L_nobump")): unsafe = False
        out.wds_all()
        for k in range(max(0, n - NP), n): out.e(f"v_writelane_b32 v0, s{TSREG[k % NP]}, {k}")
        out.e(f"s_lshl_b32 s{sT0}, s2, 2", f"s_add_u32 s{sT0}, s{sT0}, s{sW}", f"s_lshl_b32 s{sT0}, s{sT0}, 8", f"s_add_u32 s{sT0}, s{sT0}, {WS_TS + 65536}",
              "v_subrev_u32 v0, s42, v0", f"v_lshlrev_b32 v2, 2, v{vL}")
        out.e(f"buffer_store_dword v0, v2, {srd(R_SY)}, s{sT0} offen")
        return out

    def build(self):
        q = Seq()
        q.label("L_start")
        last = self.prologue(q)
        self.phase1(q, last)
        self.phase2(q)
        if self.c.prof: q = self.add_prof(q)
        self.write_ts(q)
        if self.c.spin_to:
            q.e("s_waitcnt lgkmcnt(0)")
            if self.c.spin_x >= 0: q.e("s_and_b32 s46, s2, 7", f"s_cmp_eq_u32 s46, {self.c.spin_x}", "s_cbranch_scc0 L_end")
            if self.c.probe: q.e("s_sub_u32 s68, s68, s42", f"s_add_u32 s68, s68, {self.c.spin_to}")
            else: q.e(f"s_mov_b32 s68, {self.c.spin_to}")
            q.label("L_spin")
            q.e("s_memrealtime s[46:47]", "s_waitcnt lgkmcnt(0)", "s_sub_u32 s46, s46, s42", "s_cmp_lt_u32 s46, s68", "s_cbranch_scc1 L_spin")
        q.label("L_end")
        q.e("s_endpgm")
        q.extend(self.ool)
        return finalize(q)

HDR = """; @launch grid=(256,1,1) block=(256,1,1) lds=163840
.amdgcn_target "amdgcn-amd-amdhsa--gfx950"
.text
.globl {n}_kernel
.p2align 8
.type {n}_kernel,@function
{n}_kernel:
"""
TAIL = """
.section .rodata,"a"
.p2align 6
.amdhsa_kernel {n}_kernel
  .amdhsa_next_free_vgpr 512
  .amdhsa_next_free_sgpr 102
  .amdhsa_accum_offset 256
  .amdhsa_group_segment_fixed_size 0
  .amdhsa_kernarg_size 120
  .amdhsa_user_sgpr_count 2
  .amdhsa_user_sgpr_kernarg_segment_ptr 1
  .amdhsa_system_sgpr_workgroup_id_x 1
.end_amdhsa_kernel
"""
def generate(cfg):
    g = Gen(cfg)
    body = g.build()
    return HDR.format(n=NAME) + "\n".join(("" if l.endswith(":") else "    ") + l for l in body) + TAIL.format(n=NAME), g

if __name__ == "__main__":
    cfg = Cfg()
    for a in sys.argv[2:]:
        k, v = a.split("=", 1); assert hasattr(cfg, k), k; setattr(cfg, k, eval(v))
    txt, g = generate(cfg)
    open(sys.argv[1], "w").write(txt)
```

```python
import sys, struct
from asmlib import *

NAME = "parallel_sum__ssm_conv_s5__dense_activation_relu__prompt"
def f2u(x): return struct.unpack("<I", struct.pack("<f", x))[0]
def fh(x): return hex(f2u(x))

WS_CS   = 262144
WS_FLAG = 524288
WS_STAT = 786432
WS_AGG  = 1 << 20
WS_XCH  = 2 << 20
WS_TS   = (7 << 20) + (1 << 19)
WS_H    = 8 << 20
HBLK = 88 * 2048
WS_END = WS_H + 64 * HBLK
TAGK = 0x9E3779B9
OOB = 0x40000000

sCO, sW, sWM, sWN, sC, sG, sGL, sU0, sORD, sXB, sT0, sT1, sT2 = 3, 4, 5, 6, 7, 8, 9, 10, 11, 12, 13, 14, 15
P_X, P_LRE, P_LIM, P_BRE, P_BIM, P_CRE, P_CIM, P_LDT = 16, 18, 20, 22, 24, 26, 28, 30
P_DSK, P_W1, P_W2, P_OUT, P_WS = 32, 36, 38, 40, 44
sU1, sK4 = 34, 35
sM = 46
R_X, R_BS, R_W1A, R_W1B, R_W2, R_CRE, R_CIM, R_OUT, R_SY = 48, 52, 56, 60, 72, 76, 80, 84, 88
R_AG = R_BS
sB0, sB1, sHS, sNV = 64, 65, 66, 67
sUO = 32
UO = {0: 32, 1: 33, 2: 100, 5: 101}
sKX, sKW, sLB, sONES, sTAG, sPOLL, sLE, sW2O = 92, 93, 94, 95, 96, 97, 98, 99
TSREG = [16, 18, 20, 22, 24, 26, 28, 30, 36, 38, 40, 68]
def srd(r): return f"s[{r}:{r+3}]"

vL = 1
BASE = 2
ACC_S, ACC_F1, ACC_F2 = 64, 96, 128
FR = 160
RA, RS, RF = 176, 180, 184
vX, vB, vW = 200, 204, 206
vSTS, vCSS, vGS, vGC, vPF, vAGS, vHF1, vHF2, vGR = 208, 209, 210, 211, 214, 215, 216, 217, 218
CS = 220
vW2, vC2, vTR, vCR, vTA, vLBK, vFP, vHS, vFL, vXS, vXR, vRW, vRR, vTW, vTD = 224, 228, 232, 233, 234, 238, 239, 242, 243, 244, 245, 246, 250, 252, 254
def vr(a, n=4): return f"v[{a}:{a+n-1}]"
def ar(a, n=4): return f"a[{a}:{a+n-1}]"

LBR = 96
SLOT = 32768; WBLK = 8192
L_SP = 98304; SPW = 16384
L_CS = 0

class Cfg:
    ts = False; ts_stages = (); ts_max = 12; ts_min = 0; prof = None; p2stamps = ()
    order = "xa"
    pf_from = 2; pf_n = 28; pf_step = 12
    early_from = 1; early_n = 2; early_last = 6
    cap1 = 5.5; cap2 = 5.5; cap3 = 5
    stat_at = 4; gather_at = 86; check_at = 108
    w2_first = 8; w2_at2 = 24; w2_n2 = 12; w2_at3 = 54; lb_at = 50; lb_grp = 2; left_pre = 0; g9_pre = 4; r0_at = 10; b_at = 64; b_mid = 60; lb_every = 1; rc_at = 40
    akept = 6; nring = 10; lead = 6; ntail = 4
    lead0 = 4; flagB_at = 15; fs_lead = 4; gate_lead = 20; wc_every = 2; burst = 1
    bar_lag = 9; send_at = 0; xl_at = 164; wev = 1
    poll_sleep = 1
    probe = 0
    s_first = True
    boot = 0; boot_late = True; boot_bar = True
    spin_x = -1
    add_lag = 5; cap4 = 8
    l2pf_at = 99; pt_at = 2
    hrot = True
    nt_upto = 0; nt_srd = (48, 52, 56, 60)
    strow_at = -1
    spin_to = 0
    ost = 'nt'

def mk_srd(q, r, p, size):
    q.e(f"s_mov_b32 s{r}, s{p}", f"s_and_b32 s{r+1}, s{p+1}, 0xffff", f"s_mov_b32 s{r+2}, {size}", f"s_mov_b32 s{r+3}, 0x20000")

WAITK = ("wvm", "wds", "wvm0", "wds0")
def groups(seq):
    G = []; cur = []
    for ins in seq:
        cur.append(ins)
        if ins.kind not in WAITK and not ins.t.startswith(("v_cmp", "s_cmp")):
            G.append(cur); cur = []
    if cur: G.append(cur)
    return G
def cost(g):
    c = 0
    for i in g:
        if i.kind == "label": continue
        if i.kind in WAITK: c += 0.5
        elif i.t.startswith(TRANS): c += 2
        elif i.t.startswith("ds_write_b128"): c += 3
        else: c += 1
    return c

class Stream:
    def __init__(self, items, start=0, dl=None, every=1, wev=1):
        self.it = list(items); self.nb = start; self.dl = dl; self.every = every; self.wev = wev
    def ready(self, gap):
        while self.it and isinstance(self.it[0], tuple):
            self.nb = max(self.nb, self.it.pop(0)[1])
        return bool(self.it) and gap >= self.nb
    def pop(self, gap):
        g = self.it.pop(0)
        if self.every > 1 and any(i.kind == "vm" for i in g): self.nb = gap + self.every
        if any(i.t.startswith("ds_write_b128") for i in g): self.nb = gap + self.wev
        return g
    def rest(self):
        r = [g for g in self.it if not isinstance(g, tuple)]; self.it = []; return r

def fill_gap(q, gap, used, cap, streams):
    for s in streams:
        if s.dl is not None and gap >= s.dl:
            for g in s.rest(): q.e(*g); used += cost(g)
    for s in streams:
        while s.ready(gap) and (used + cost(s.it[0]) <= cap or (used <= cap - 2 and cost(s.it[0]) > 3)):
            g = s.pop(gap); q.e(*g); used += cost(g)
def flush(q, streams):
    for s in streams:
        for g in s.rest(): q.e(*g)

def pack_order(o): return sum(v << (4 * k) for k, v in enumerate(o))
def hyb(xa):
    first = [0, (1 + 2 * xa), (2 + 2 * xa) & 7 or 1]
    rest = [v for v in [(3 + 2 * xa + k) & 7 for k in range(8)] if v not in first]
    return first + rest
ORDERS = {"xa": [[(i + 2 * xa) & 7 for i in range(8)] for xa in range(4)],
          "none": [list(range(8))] * 4,
          "two": [[(i + 4 * (xa & 1)) & 7 for i in range(8)] for xa in range(4)],
          "hyb": [hyb(xa) for xa in range(4)]}

class Gen:
    def __init__(self, cfg):
        self.c = cfg; self.nts = 0; self.nreq = 0; self.w2_last = {}; self.w2_rd = {}; self.ool = Seq()
    def stamp(self, q):
        self.nreq += 1
        if self.c.probe == self.nreq: q.e("s_memrealtime s[68:69]")
        if self.c.ts and self.nts < self.c.ts_max and self.nreq > self.c.ts_min:
            r = TSREG[self.nts]
            q.e(f"s_memtime s[{r}:{r+1}]"); self.nts += 1

    def stage_dma(self, i):
        base = (i % 3) * SLOT
        def ld(v, r, so, off):
            fl = " nt" if (i < self.c.nt_upto and r in self.c.nt_srd) else ""
            return I(f"buffer_load_dwordx4 v{v}, {srd(r)}, s{so} offen offset:{off}{fl} lds", "vm")
        def m0(o): return I(f"s_add_u32 m0, s{sLB}, {base + o}")
        def st(k): return I(f"s_bfe_u32 s{sKW}, s{sORD}, {(3 << 16) | (4 * k)}")
        mul = lambda: I(f"s_mul_i32 s{sKW}, s{sKW}, {64*3584}")
        G = []
        if i < 8:
            G.append([m0(0), st(i), I(f"s_lshl_b32 s{sKX}, s{sKW}, 7"), ld(vX, R_X, sKX, 0)])
            for j in range(1, 4): G.append([ld(vX + j, R_X, sKX, 1024 * j)])
            G.append([m0(4096), mul(), ld(vB, R_BS, sKX, 0)]); G.append([ld(vB + 1, R_BS, sKX, 1024)])
            G.append([m0(6144), ld(vW, R_W1A, sKW, 0)]); G.append([ld(vW + 1, R_W1A, sKW, 1024)])
        else:
            for t in range(4):
                G.append([m0(2048 * t), st(4 * (i - 8) + t), mul(), ld(vW, R_W1B, sKW, 0)])
                G.append([ld(vW + 1, R_W1B, sKW, 1024)])
        return G, G[-1][-1]

    def fb(self, n): return ACC_F2 + 8 * (n & 3) if n < 32 else FR - 4 + 4 * (n & 3)
    def frag_reads(self, n):
        b = self.fb(n)
        if n < 32:
            i, p = divmod(n, 4); slot = i % 3
            hi = 12 if slot == 2 else 0; o = SLOT if slot == 1 else 0
            S = I(f"ds_read_b128 {vr(b)}, v{RS+hi+p} offset:{o}", "ds")
            A0 = I(f"ds_read_b128 {ar(8*n)}, v{RA+hi+p} offset:{o}", "ds")
            A1 = I(f"ds_read_b128 {ar(8*n+4)}, v{RA+hi+p} offset:{o+WBLK}", "ds")
            F = [I(f"ds_read_b64_tr_b16 {vr(b+4+2*k, 2)}, v{RF+hi+p} offset:{o + 6144 + k*512}", "ds") for k in range(2)]
            return [S, A0, A1] + F
        if n >= 64: return []
        i, p = divmod(n - 32, 4)
        hi = 12 if i < 4 else 0
        return [I(f"ds_read_b64_tr_b16 {vr(b+4+2*k, 2)}, v{RF+hi+p} offset:{2048*(i&3) + k*512}", "ds") for k in range(2)]

    def prologue(self, q):
        c = self.c
        q.e("s_cmp_ge_u32 s2, 256", "s_cbranch_scc1 L_end")
        q.e("s_load_dwordx16 s[16:31], s[0:1], 0", "s_load_dwordx4 s[36:39], s[0:1], 80", "s_load_dwordx2 s[44:45], s[0:1], 112",
            "s_load_dwordx2 s[32:33], s[0:1], 64", "s_load_dwordx2 s[40:41], s[0:1], 96")
        q.e("s_getpc_b64 s[64:65]", "L_pc:", "s_and_b32 s3, s2, 0xf8", "s_lshl_b32 s3, s3, 7", "v_lshlrev_b32 v9, 2, v0", "v_add_u32 v9, s3, v9",
            "v_min_u32 v9, L_end-L_pc, v9")
        q.e("global_load_dword v10, v9, s[64:65]")
        if c.ts: q.e("s_memtime s[42:43]", "s_memrealtime s[46:47]")
        if c.spin_to: q.e("s_memrealtime s[42:43]")
        q.e(f"v_and_b32 v{vL}, 63, v0", "v_lshrrev_b32 v2, 6, v0", f"v_readfirstlane_b32 s{sW}, v2")
        O = [pack_order(o) for o in ORDERS[c.order]]
        q.e("s_bitcmp1_b32 s2, 1", f"s_mov_b32 s{sT0}, {O[0]:#x}", f"s_cmov_b32 s{sT0}, {O[1]:#x}", f"s_mov_b32 s{sORD}, {O[2]:#x}", f"s_cmov_b32 s{sORD}, {O[3]:#x}",
            "s_bitcmp0_b32 s2, 2", f"s_cmov_b32 s{sORD}, s{sT0}")
        q.e(f"s_and_b32 s{sXB}, s2, 1", f"s_and_b32 s{sT0}, s2, 6", f"s_lshr_b32 s{sT2}, s2, 6",
            f"s_lshl1_add_u32 s{sC}, s{sT0}, s{sT2}", f"s_bfe_u32 s{sGL}, s2, 0x30003", f"s_lshl3_add_u32 s{sG}, s{sXB}, s{sGL}")
        q.e(f"s_and_b32 s{sT2}, s{sT2}, 1", f"s_lshl1_add_u32 s{sT0}, s{sGL}, s{sT2}", f"s_add_u32 s{sT1}, s{sGL}, 6",
            f"s_cmp_lt_u32 s{sGL}, 6", f"s_cselect_b32 s{sU0}, s{sT0}, s{sT1}", f"s_cselect_b32 s{R_W1B+2}, {512*3584}, 0", f"s_xor_b32 s{sU1}, s{sU0}, 1",
            f"s_lshr_b32 s{sWM}, s{sW}, 1", f"s_and_b32 s{sWN}, s{sW}, 1", f"s_lshl_b32 s{sLB}, s{sW}, 13")
        q.e(f"v_lshrrev_b32 v2, 3, v{vL}", f"v_and_b32 v3, 7, v{vL}", f"v_lshrrev_b32 v4, 4, v{vL}")
        q.e("v_xor_b32 v5, v3, v4", "v_lshlrev_b32 v5, 4, v5")
        q.e(f"v_lshrrev_b32 v7, 5, v{vL}", "v_and_b32 v8, 3, v2", "v_lshl_add_u32 v7, v7, 4, v8",
            f"s_lshl2_add_u32 s{sT0}, s{sC}, s{sW}", f"s_lshl_b32 s{sT0}, s{sT0}, 5",
            f"v_add_u32 v7, s{sT0}, v7", f"v_lshl_add_u32 v{vX}, v7, 10, v5",
            f"v_xor_b32 v{vX+1}, 64, v{vX}", f"v_add_u32 v{vX+1}, {3072}, v{vX+1}",
            f"v_add_u32 v{vX+2}, {6144}, v{vX}", f"v_add_u32 v{vX+3}, {6144}, v{vX+1}")
        q.e(f"s_lshl1_add_u32 s{sK4}, s{sG}, s{sWN}", f"s_lshl_b32 s{sK4}, s{sK4}, 4",
            f"v_add_u32 v7, s{sK4}, v2", f"v_lshl_add_u32 v{vB}, v7, 10, v5",
            f"v_xor_b32 v{vB+1}, 64, v{vB}", f"v_add_u32 v{vB+1}, {7168}, v{vB+1}")
        q.e(f"s_lshl_b32 s{sT0}, s{sW}, 4", f"v_add_u32 v7, s{sT0}, v2", "v_mul_u32_u24 v7, 3584, v7",
            "v_and_b32 v8, 1, v4", "v_lshlrev_b32 v8, 2, v8", "v_xor_b32 v8, v8, v3", f"v_lshl_add_u32 v{vW}, v8, 4, v7",
            f"v_add_u32 v{vW+1}, {8*3584-1024}, v{vW}",
            f"s_mul_i32 s{sT0}, s{sXB}, 14", f"s_add_u32 s{sT1}, s{sT0}, s{sU1}", f"s_add_u32 s{sT0}, s{sT0}, s{sU0}",
            f"s_lshl_b32 s{R_W1A}, s{sT0}, 7", f"s_lshl_b32 s{R_W1B}, s{sT1}, 7",
            f"s_sub_u32 s{R_W1A+2}, {512*3584}, s{R_W1A}", f"s_max_u32 s{R_W1B+2}, s{R_W1B+2}, s{R_W1B}", f"s_sub_u32 s{R_W1B+2}, s{R_W1B+2}, s{R_W1B}")
        for r, size in ((R_X, 2048*1024), (R_BS, 512*1024)): q.e(f"s_mov_b32 s{r+2}, {size}")
        for r in (R_X, R_BS, R_W1A, R_W1B): q.e(f"s_mov_b32 s{r+3}, 0x20000")
        q.e(f"v_lshl_add_u32 v{vC2}, v2, 10, v5", "v_lshlrev_b32 v7, 10, v2", f"v_lshl_add_u32 v{vW2}, v8, 4, v7")
        q.e(f"v_lshlrev_b32 v33, 4, v{vL}", f"v_and_b32 v6, 15, v{vL}", f"v_add_lshl_u32 v11, v6, s{sK4}, 1", "v_mov_b32 v15, 0")
        q.e(f"s_lshl1_add_u32 s{sT2}, s{sC}, s{sWM}", f"s_lshl4_add_u32 s{sT2}, s{sT2}, s{sG}", f"s_lshl1_add_u32 s{sT2}, s{sT2}, s{sWN}",
            f"s_lshl_b32 s{sPOLL}, s{sT2}, 11")
        G0, l0 = self.stage_dma(0)
        q.e(*G0[0][:-1])
        q.wds_all()
        if c.ts: q.e("v_mov_b32 v255, s46")
        if c.boot:
            b = c.boot
            q.e(f"v_lshlrev_b32 v17, 7, v{vL}", f"s_cmp_eq_u32 s{sW}, 2", "s_cbranch_scc1 L_b2")
            q.e(f"s_cmp_eq_u32 s{sW}, 0", f"s_cselect_b64 s[46:47], s[{P_X}:{P_X+1}], s[{P_W1}:{P_W1+1}]", "s_cselect_b32 s70, 64, 56",
                f"s_cmp_eq_u32 s{sW}, 3", f"s_cselect_b64 s[46:47], s[{(P_W2 if b == 1 else P_W1)}:{(P_W2 if b == 1 else P_W1)+1}], s[46:47]",
                "s_lshl_b32 s70, s70, 7", "s_sub_u32 s71, s70, 128", "s_mul_i32 s70, s70, s2", "v_min_u32 v17, s71, v17", "v_add_u32 v17, s70, v17")
            q.append(I("global_load_dword v10, v17, s[46:47]", "o"))
            q.e("s_branch L_b3")
            q.label("L_b2")
            q.e("v_and_b32 v17, 0x780, v17", "s_lshl_b32 s70, s2, 11", "v_add_u32 v17, s70, v17")
            for p in (P_BRE, P_BIM) + ((P_CRE, P_CIM) if b == 1 else ()): q.append(I(f"global_load_dword v10, v17, s[{p}:{p+1}]", "o"))
            q.label("L_b3")
            self.bootq = q; q = self.postq = Seq()
        q.e(f"s_mov_b32 s{R_X}, s{P_X}", f"s_and_b32 s{R_X+1}, s{P_X+1}, 0xffff")
        q.e(G0[0][-1]); [q.e(*g) for g in G0[1:4]]
        q.e(f"s_cmp_eq_u32 s{sWM}, 0", f"s_cselect_b32 s{R_BS}, s{P_BRE}, s{P_BIM}", f"s_cselect_b32 s{R_BS+1}, s{P_BRE+1}, s{P_BIM+1}", f"s_and_b32 s{R_BS+1}, s{R_BS+1}, 0xffff")
        [q.e(*g) for g in G0[4:6]]
        q.e(f"s_and_b32 s{P_W1+1}, s{P_W1+1}, 0xffff", f"s_add_u32 s{R_W1A}, s{P_W1}, s{R_W1A}", f"s_addc_u32 s{R_W1A+1}, s{P_W1+1}, 0")
        [q.e(*g) for g in G0[6:8]]
        q.e(f"s_add_u32 s{R_W1B}, s{P_W1}, s{R_W1B}", f"s_addc_u32 s{R_W1B+1}, s{P_W1+1}, 0")
        last = [l0]
        if c.boot: q = self.bootq
        self.strows = [I(f"buffer_load_dwordx4 {vr(40)}, v33, {srd(R_X)}, s{sPOLL} offen", "vm"), I(f"buffer_load_dwordx4 {vr(44)}, v33, {srd(R_X)}, s{sPOLL} offen offset:1024", "vm")]
        if c.strow_at == -2: q.e(*self.strows)
        self.small0 = q.e(f"global_load_dword v16, v15, s[{P_WS}:{P_WS+1}] sc1")
        q.e(f"global_load_ushort v12, v11, s[{P_LRE}:{P_LRE+1}]", f"global_load_ushort v13, v11, s[{P_LIM}:{P_LIM+1}]")
        self.small = q.e(f"global_load_ushort v14, v11, s[{P_LDT}:{P_LDT+1}]")
        q.e(f"s_lshl_b32 s{sT1}, s{sGL}, 7", f"v_lshl_add_u32 v35, v6, 3, s{sT1}")
        self.dsk = q.e(f"global_load_dwordx2 {vr(38,2)}, v35, s[{P_DSK}:{P_DSK+1}]")
        f = Seq()
        f.e(f"v_and_b32 v2, 31, v{vL}", f"v_lshrrev_b32 v3, 5, v{vL}")
        f.e("v_bfe_u32 v7, v2, 1, 3", "v_xor_b32 v7, v7, v3", "v_lshlrev_b32 v7, 4, v7",
            f"v_lshl_add_u32 v{vCR}, v2, 7, v7",
            f"s_lshl_b32 s{sT1}, s{sWM}, 5", f"v_xor_b32 v7, s{sT1}, v7", f"v_xor_b32 v5, s{sT1}, v{vCR}",
            f"s_lshl_b32 s{sT1}, s{sWM}, 14", f"v_add_u32 v{RA}, s{sT1}, v5")
        f.e("v_lshl_add_u32 v7, v6, 7, v7", "v_and_b32 v8, 16, v2", "v_lshl_add_u32 v7, v8, 10, v7",
            f"s_lshl_b32 s{sT1}, s{sWN}, 13", f"s_add_u32 s{sT1}, s{sT1}, 4096", f"v_add_u32 v{RS}, s{sT1}, v7")
        for p in range(1, 4): f.e(f"v_xor_b32 v{RA+p}, {32*p}, v{RA}", f"v_xor_b32 v{RS+p}, {32*p}, v{RS}")
        f.e("v_lshrrev_b32 v9, 2, v6", "v_lshlrev_b32 v5, 7, v9", "v_and_b32 v7, 3, v6", "v_lshl_add_u32 v5, v7, 3, v5", "v_lshl_add_u32 v5, v8, 1, v5",
            "v_and_b32 v7, 8, v6", "v_lshl_add_u32 v5, v7, 3, v5",
            f"v_lshl_add_u32 v{vTR}, v3, 9, v5",
            "v_lshl_add_u32 v5, v3, 10, v5", f"s_lshl_b32 s{sT1}, s{sWN}, 6", f"s_lshl_b32 s{sT0}, s{sWM}, 13", f"s_or_b32 s{sT1}, s{sT1}, s{sT0}",
            f"v_xor_b32 v{RF}, s{sT1}, v5")
        for p in range(1, 4): f.e(f"v_xor_b32 v{RF+p}, {WBLK*p}, v{RF}")
        f.e(f"s_mov_b32 s{sONES}, 0x3f803f80", f"v_mov_b32 v{CS}, 0", f"v_mov_b32 v{CS+1}, 0")
        for k in range(4): f.e(f"v_mov_b32 v{48+k}, 0")
        for k in range(12): f.e(f"v_add_u32 v{RA+12+k}, {2*SLOT}, v{RA+k}")
        mk_srd(f, R_SY, P_WS, WS_END); mk_srd(f, R_W2, P_W2, 1792*1024); mk_srd(f, R_OUT, P_OUT, 2048*2048)
        f.e(f"s_and_b32 s{P_CRE+1}, s{P_CRE+1}, 0xffff", f"s_and_b32 s{P_CIM+1}, s{P_CIM+1}, 0xffff",
            f"s_bitcmp1_b32 s{sGL}, {0 if c.hrot else 5}", f"s_cselect_b64 s[{R_CRE}:{R_CRE+1}], s[{P_CIM}:{P_CIM+1}], s[{P_CRE}:{P_CRE+1}]",
            f"s_cselect_b64 s[{R_CIM}:{R_CIM+1}], s[{P_CRE}:{P_CRE+1}], s[{P_CIM}:{P_CIM+1}]")
        for r in (R_CRE, R_CIM): f.e(f"s_mov_b32 s{r+2}, {512*1024}", f"s_mov_b32 s{r+3}, 0x20000")
        q.extend(f)
        q.e(f"s_mul_i32 s{sT0}, s2, 56", f"s_mul_i32 s{sT1}, s{sWN}, 28", f"s_add_u32 s{sT0}, s{sT0}, s{sT1}", f"s_lshl_b32 s{sT1}, s2, 4", f"s_min_u32 s{sT1}, s{sT1}, {4096-28}",
            f"s_cmp_eq_u32 s{sWN}, 0", f"s_cselect_b32 s70, s{P_CRE}, s{P_CIM}", f"s_cselect_b32 s71, s{P_CRE+1}, s{P_CIM+1}",
            f"s_cmp_eq_u32 s{sWM}, 0", f"s_cselect_b32 s{sT0}, s{sT0}, s{sT1}",
            f"s_cselect_b32 s70, s{P_W2}, s70", f"s_cselect_b32 s71, s{P_W2+1}, s71",
            f"v_min_u32 v7, {c.pf_n - 1}, v{vL}", f"v_add_lshl_u32 v{vPF}, v7, s{sT0}, 7")
        f = Seq(); self.consts_early(f); self.consts_w2(f)
        G, l = self.stage_dma(1); last.append(l)
        if c.boot:
            q.extend(f)
            if c.boot_late:
                f = Seq(); self.consts_late(f); q.extend(f)
            q.wvm_all()
            if c.boot_bar: q.e("s_barrier")
            q.extend(self.postq)
            for g in G: q.e(*g)
        else: q.extend(merge(f, G))
        if c.strow_at == -1: q.e(*self.strows)
        return last

    def consts_early(self, f):
        f.e("v_and_b32 v5, 1, v4", "v_lshl_add_u32 v32, v5, 1, v3")
        f.e(f"s_lshl_b32 s{sT2}, s{sT2}, 5", f"s_add_u32 s{sT2}, s{sT2}, {WS_STAT}", f"v_lshl_add_u32 v7, v3, 4, s{sT2}", f"v_lshl_add_u32 v{vSTS}, v2, 25, v7")
        f.e(f"s_lshl1_add_u32 s{sT0}, s{sC}, s{sXB}", f"s_lshl_b32 s{sT1}, s{sT0}, 13", f"s_add_u32 s{sT1}, s{sT1}, {WS_FLAG}",
            f"s_lshl_b32 s{sT2}, s{sW}, 3", f"s_mul_i32 s{sT0}, s{sWM}, 3", f"s_add_u32 s{sT0}, s{sT0}, s{sWN}", f"s_lshl_b32 s{sT0}, s{sT0}, 2", f"s_sub_u32 s{sT0}, s{sT0}, 8",
            f"v_mov_b32 v7, s{sT2}", f"v_mov_b32 v8, s{sT0}", f"v_cmp_gt_u32 vcc, 8, v{vL}", "v_cndmask_b32 v7, v8, v7, vcc",
            f"v_add_u32 v7, v7, v{vL}", f"v_lshl_add_u32 v7, v7, 8, s{sT1}", "v_lshl_add_u32 v36, v4, 28, v7",
            f"s_lshl2_add_u32 s{sT2}, s{sGL}, s{sW}", f"s_lshl_b32 s{sT2}, s{sT2}, 8", f"s_add_u32 s{sT1}, s{sT1}, s{sT2}",
            f"v_lshl_add_u32 v7, v2, 2, s{sT1}", f"v_lshl_add_u32 v{vFL}, v3, 30, v7", f"v_lshl_add_u32 v{vFP}, v3, 7, v7")
        f.e(f"s_lshl4_add_u32 s{sT0}, s{sC}, s{sG}", f"s_lshl1_add_u32 s{sT0}, s{sT0}, s{sWN}", f"s_lshl_b32 s{sT0}, s{sT0}, 9", f"s_add_u32 s{sT0}, s{sT0}, {WS_CS}",
            f"v_lshl_add_u32 v7, v{vL}, 3, s{sT0}", f"v_xor_b32 v{vGC}, 0x4000, v7", f"s_lshl_b32 s{sT2}, s{sWM}, 30", f"v_add_u32 v{vCSS}, s{sT2}, v7")
        f.e(f"s_lshl_b32 s{sT0}, s{sWN}, 8", f"v_lshl_add_u32 v8, v6, 4, s{sT0}",
            f"s_lshl1_add_u32 s{sNV}, s{sC}, s{sWM}", f"s_sub_u32 s{sT0}, 31, s{sNV}", f"s_lshl_b32 s{sT0}, s{sT0}, 9",
            f"s_lshl_b32 s{sT1}, s{sG}, 14", f"s_add_u32 s{sT1}, s{sT1}, {WS_AGG}", f"s_add_u32 s{sT1}, s{sT1}, s{sT0}",
            f"v_add_u32 v7, s{sT1}, v8", f"v_lshl_add_u32 v{vAGS}, v4, 28, v7",
            f"s_add_u32 s{sT0}, s{sT0}, 512", "v_sub_u32 v7, 3, v4", "v_lshl_add_u32 v7, v7, 12, v8", f"v_add_u32 v{vLBK}, s{sT0}, v7",
            f"s_lshl_b32 s{sNV}, s{sNV}, 4")

    def consts_w2(self, f):
        f.e(f"s_lshl_b32 s{sHS}, s{sW}, 14", f"s_add_u32 s{sHS}, s{sHS}, {56*2048}")
        f.e(f"s_and_b32 s{sT2}, s{sC}, 1", f"s_lshl2_add_u32 s{sT0}, s{sW}, s{sT2}", f"s_add_u32 s{sT1}, s{sT0}, 2",
            f"s_min_u32 s{sT0}, s{sT0}, 12", f"s_min_u32 s{sT1}, s{sT1}, 13", f"s_lshl_b32 s{UO[0]}, s{sT0}, 13", f"s_lshl_b32 s{UO[1]}, s{sT1}, 13",
            f"s_xor_b32 s{sT2}, s{sT2}, 1", f"s_mul_i32 s{sT0}, s{sWM}, 6", f"s_add_u32 s{sT0}, s{sT0}, s{sT2}",
            f"s_lshl2_add_u32 s{sT1}, s{sWN}, s{sT0}", f"s_lshl_b32 s{UO[2]}, s{sT1}, 13",
            f"s_add_u32 s{sT0}, s{sT0}, 2", f"s_lshl1_add_u32 s{sT0}, s{sT0}, s{sWN}", f"s_lshl_b32 s{UO[5]}, s{sT0}, 12")
        if self.c.hrot:
            f.e(f"s_and_b32 s{sT0}, s{sGL}, 1", f"s_sub_u32 s{sT0}, 0, s{sT0}", f"s_xor_b32 s{sT1}, s{UO[0]}, s{UO[1]}", f"s_and_b32 s{sT1}, s{sT1}, s{sT0}",
                f"s_xor_b32 s{UO[0]}, s{UO[0]}, s{sT1}", f"s_xor_b32 s{UO[1]}, s{UO[1]}, s{sT1}",
                f"s_and_b32 s{sT0}, s{sT0}, 8192", f"s_xor_b32 s{sHS}, s{sHS}, s{sT0}",
                f"s_and_b32 s{sT0}, s{sGL}, 2", f"s_lshl_b32 s{sT1}, s{sT0}, 11", f"s_lshl_b32 s{sT0}, s{sT0}, 5", f"v_xor_b32 v{vC2}, s{sT0}, v{vC2}")
            for r in (UO[0], UO[1], UO[2], sHS): f.e(f"s_xor_b32 s{r}, s{r}, s{sT1}")
        f.e(f"s_mul_i32 s{sLE}, s{sW}, {SPW}", f"s_add_u32 s{sLE}, s{sLE}, {L_SP}",
            f"s_mul_i32 s{sW2O}, s{sXB}, {896*1024}", f"s_lshl_b32 s{sT1}, s{sGL}, 7", f"s_add_u32 s{sW2O}, s{sW2O}, s{sT1}",
            f"s_lshl2_add_u32 s{sCO}, s{sXB}, s{sW}", f"s_lshl_b32 s{sCO}, s{sCO}, 7", f"s_lshl_b32 s{sT0}, s{sGL}, 16", f"s_add_u32 s{sCO}, s{sCO}, s{sT0}")
        f.e(f"v_xor_b32 v{vC2+1}, 64, v{vC2}", f"v_add_u32 v{vC2+1}, 7168, v{vC2+1}", f"v_add_u32 v{vC2+2}, 14336, v{vC2}", f"v_add_u32 v{vC2+3}, 14336, v{vC2+1}")
        for j in range(1, 4): f.e(f"v_add_u32 v{vW2+j}, {7168*j}, v{vW2}")

    def consts_late(self, f):
        f.e(f"v_and_b32 v7, 4, v{vL}", f"v_and_b32 v8, 35, v{vL}", "v_lshl_add_u32 v7, v7, 2, v8", f"v_and_b32 v8, 24, v{vL}", "v_lshrrev_b32 v8, 1, v8",
            "v_add_u32 v37, v7, v8")
        f.e(f"s_lshl1_add_u32 s{sT1}, s{sC}, s{sWM}", f"s_lshl_b32 s{sT1}, s{sT1}, 10", f"s_add_u32 s{sT1}, s{sT1}, {WS_STAT}",
            f"v_lshl_add_u32 v{vGS}, v37, 4, s{sT1}", "v_lshl_add_u32 v7, v32, 4, v6", f"v_lshl_add_u32 v{vGR}, v7, 4, s{sT1}")
        f.e(f"v_lshl_add_u32 v{vGC+2}, v{vL}, 3, s{sLB}", f"v_xor_b32 v{vGC+1}, {2*WBLK}, v{vGC+2}")
        f.e(f"s_lshl1_add_u32 s{sT0}, s{sC}, s{sXB}", f"s_lshl1_add_u32 s{sT1}, s{sT0}, s{sWM}", f"s_mul_i32 s{sT1}, s{sT1}, {HBLK}", f"s_add_u32 s{sT1}, s{sT1}, {WS_H}",
            f"s_lshl1_add_u32 s{sT0}, s{sT0}, s{sXB}", f"s_mul_i32 s{sB1}, s{sT0}, {HBLK}", f"s_xor_b32 s{sT0}, s{sT0}, 1", f"s_mul_i32 s{sB0}, s{sT0}, {HBLK}",
            f"s_add_u32 s{sB0}, s{sB0}, {WS_H}", f"s_add_u32 s{sB1}, s{sB1}, {WS_H}")
        f.e(f"s_lshl_b32 s{sT0}, s{sWN}, 12", f"s_add_u32 s{sT0}, s{sT0}, s{sT1}", f"s_lshl_b32 s{sT2}, s{sU0}, 13", f"s_add_u32 s{sT2}, s{sT2}, s{sT0}",
            f"v_add_u32 v{vHF1}, s{sT2}, v33", f"s_lshl_b32 s{sT2}, s{sU1}, 13", f"s_add_u32 s{sT2}, s{sT2}, s{sT0}",
            f"s_min_u32 s{sT0}, s{R_W1B+2}, 1", f"s_sub_u32 s{sT0}, 1, s{sT0}", f"s_lshl_b32 s{sT0}, s{sT0}, 30", f"s_add_u32 s{sT2}, s{sT2}, s{sT0}",
            f"v_add_u32 v{vHF2}, s{sT2}, v33")
        f.e(f"s_lshr_b32 s{sT0}, s{sGL}, 1", f"s_and_b32 s{sT2}, s{sGL}, 1", f"s_lshl2_add_u32 s{sT0}, s{sT0}, s{sT2}", f"s_lshl1_add_u32 s{sT0}, s{sT0}, s{sWN}",
            f"s_add_u32 s{sT0}, s{sT0}, 56", f"s_lshl_b32 s{sT0}, s{sT0}, 11", f"s_add_u32 s{sT0}, s{sT0}, s{sT1}", f"v_add_u32 v{vHS}, s{sT0}, v33")
        f.e(f"s_lshl1_add_u32 s{sT0}, s{sC}, s{sXB}", f"s_lshl2_add_u32 s{sT0}, s{sT0}, s{sW}", f"s_lshl_b32 s{sT0}, s{sT0}, 4", f"v_add_u32 v7, s{sT0}, v4",
            "v_lshlrev_b32 v34, 4, v7", f"v_add_u32 v34, {WS_STAT}, v34", "v_lshl_add_u32 v18, v7, 10, v35", "v_lshlrev_b32 v19, 1, v18")
        f.e(f"s_lshl4_add_u32 s{sT0}, s{sC}, s{sG}", f"s_lshl2_add_u32 s{sT0}, s{sT0}, s{sW}", f"s_lshl_b32 s{sT0}, s{sT0}, 12", f"s_add_u32 s{sT0}, s{sT0}, {WS_XCH}",
            f"v_add_u32 v{vXS}, s{sT0}, v33", f"v_xor_b32 v{vXR}, 0x20000, v{vXS}")
        f.e("v_and_b32 v7, 7, v2", "v_xor_b32 v7, v7, v3", "v_lshlrev_b32 v7, 4, v7", "v_and_b32 v8, 31, v37", "v_lshl_add_u32 v7, v8, 8, v7",
            f"s_lshl_b32 s{sT0}, s{sW}, 14", f"v_add_u32 v{vRW}, s{sT0}, v7")
        for g4 in range(1, 4): f.e(f"v_xor_b32 v{vRW+g4}, {32*g4}, v{vRW}")
        f.e("v_xor_b32 v7, v6, v4", "v_lshlrev_b32 v7, 4, v7", "v_lshl_add_u32 v7, v4, 8, v7", f"s_lshl_b32 s{sT0}, s{sW}, 12", f"s_lshl_b32 s{sT1}, s{sWN}, 6",
            f"s_or_b32 s{sT0}, s{sT0}, s{sT1}", f"v_xor_b32 v{vRR}, s{sT0}, v7")
        f.e("v_and_b32 v7, 2, v6", "v_and_b32 v8, 1, v6", "v_lshl_add_u32 v7, v7, 1, v8", "v_and_b32 v8, 4, v6", "v_lshrrev_b32 v8, 1, v8", "v_or_b32 v7, v7, v8",
            "v_lshlrev_b32 v8, 1, v32", "v_xor_b32 v7, v7, v8", "v_lshlrev_b32 v7, 4, v7", "v_lshl_add_u32 v7, v6, 7, v7",
            f"s_add_u32 s{sT0}, s{sLB}, {2*SLOT + 4096}", f"v_add_u32 v{vTW}, s{sT0}, v7", f"v_xor_b32 v{vTW+1}, 16, v{vTW}")
        f.e("v_and_b32 v5, 1, v6", "v_and_b32 v8, 16, v2", "v_lshl_add_u32 v5, v5, 5, v8", "v_and_b32 v8, 2, v6", "v_lshl_add_u32 v5, v8, 2, v5")
        f.e("v_and_b32 v7, 2, v9", "v_and_b32 v8, 1, v9", "v_lshl_add_u32 v7, v7, 1, v8", "v_lshlrev_b32 v7, 4, v7", "v_xor_b32 v7, v7, v5",
            "v_lshl_add_u32 v8, v3, 3, v9", "v_lshl_add_u32 v7, v8, 7, v7", f"v_add_u32 v{vTD}, s{sT0}, v7")

    def ssm_consts(self, q):
        q.wvm(self.small)
        q.e("v_lshlrev_b32 v14, 16, v14", "v_lshlrev_b32 v12, 16, v12", f"v_mul_f32 v14, {fh(1.4426950408889634)}, v14", "v_lshlrev_b32 v13, 16, v13",
            "v_exp_f32 v14, v14", "v_lshlrev_b32 v3, 4, v32", "v_cvt_pk_bf16_f32 v14, v14, v14", "v_lshlrev_b32 v14, 16, v14",
            "v_mul_f32 v17, v14, v12", "v_mul_f32 v15, v14, v13",
            f"v_mul_f32 v17, {fh(1.4426950408889634)}, v17", f"v_mul_f32 v15, {fh(0.15915494309189535)}, v15",
            "v_cvt_f32_u32 v3, v3", "v_sub_u32 v4, 3, v4", "v_lshlrev_b32 v4, 9, v4", "v_cvt_f32_u32 v4, v4")
        def cexp(d, n):
            q.e(f"v_mul_f32 v6, {n}, v15", f"v_mul_f32 v5, {n}, v17", "v_fract_f32 v6, v6", "v_exp_f32 v5, v5", f"v_cos_f32 v{d}, v6", f"v_sin_f32 v{d+1}, v6",
                f"v_mul_f32 v{d}, v{d}, v5", f"v_mul_f32 v{d+1}, v{d+1}, v5")
        cexp(20, "1.0"); cexp(22, fh(16.0)); cexp(24, fh(64.0)); cexp(26, "v3"); cexp(28, "v4")
        q.e("v_mul_f32 v6, v12, v12", "v_fmac_f32 v6, v13, v13", "v_rcp_f32 v6, v6", "v_add_f32 v5, -1.0, v20",
            "v_mul_f32 v30, v5, v12", "v_fmac_f32 v30, v21, v13", "v_mul_f32 v31, v21, v12", "v_fma_f32 v31, -v5, v13, v31",
            "v_add_f32 v6, v6, v6", "v_mul_f32 v30, v30, v6", "v_mul_f32 v31, v31, v6")

    def check(self, name, loads, test):
        q = Seq()
        q.wvm(loads[-1])
        q.e(*test)
        q.e(f"s_cbranch_scc1 L_{name}_slow")
        q.label(f"L_{name}_ok")
        o = self.ool
        o.label(f"L_{name}_slow")
        o.e(f"s_mov_b32 s{sPOLL}, 0x40000")
        o.label(f"L_{name}_loop")
        o.e(f"s_sleep {self.c.poll_sleep}")
        for l in loads: o.append(I(l.t, "o"))
        o.e("s_waitcnt vmcnt(0)", f"s_sub_u32 s{sPOLL}, s{sPOLL}, 1", f"s_cbranch_scc1 L_{name}_ok")
        o.e(*test)
        o.e(f"s_cbranch_scc1 L_{name}_loop", f"s_branch L_{name}_ok")
        return list(q)
    def tags(self, regs, lo=False):
        if len(regs) == 1: return [f"v_cmp_ne_u32 vcc, s{sTAG}, v{regs[0]}", f"s_and_b32 s{sM}, vcc_lo, {lo}" if lo else "s_cmp_lg_u64 vcc, 0"]
        t = [f"v_cmp_ne_u32 s[{sM}:{sM+1}], s{sTAG}, v{regs[0]}"]
        for r in regs[1:]: t += [f"v_cmp_ne_u32 vcc, s{sTAG}, v{r}", f"s_or_b64 s[{sM}:{sM+1}], s[{sM}:{sM+1}], vcc"]
        return t

    def cmul_acc(self, q, d, a, b, c, c2=None):
        c2 = c + 1 if c2 is None else c2
        q.e(f"v_fma_f32 v{d}, v{a}, v{b}, v{c}", f"v_fma_f32 v{d+1}, v{a}, v{b+1}, v{c2}",
            f"v_fma_f32 v{d}, -v{a+1}, v{b+1}, v{d}", f"v_fma_f32 v{d+1}, v{a+1}, v{b}, v{d+1}")
    def cmul(self, q, d, a, b):
        q.e(f"v_mul_f32 v{d}, v{a}, v{b}", f"v_mul_f32 v{d+1}, v{a}, v{b+1}",
            f"v_fma_f32 v{d}, -v{a+1}, v{b+1}, v{d}", f"v_fma_f32 v{d+1}, v{a+1}, v{b}, v{d+1}")

    def w2_area(self, pc):
        return {0: (sLE, 0), 1: (sLE, 8192), 2: (sLB, SLOT), 5: (sLB, 2*SLOT), 3: (sLE, 0), 4: (sLE, 8192)}[pc]
    def w2_dma(self, pc, run=4):
        sb, ao = self.w2_area(pc)
        G = []
        for k in range(4 if pc == 5 else 8):
            g = []; j = k % run
            if pc in UO:
                if j == 0:
                    g.append(I(f"s_add_u32 m0, s{sb}, {ao + 1024*k}"))
                    if k: g += [I(f"s_xor_b32 s{sKX}, s{UO[pc]}, {k*1024}"), I(f"s_lshl3_add_u32 s{sKX}, s{sKX}, s{sW2O}")]
                    else: g.append(I(f"s_lshl3_add_u32 s{sKX}, s{UO[pc]}, s{sW2O}"))
                g.append(I(f"buffer_load_dwordx4 v{vW2+j}, {srd(R_W2)}, s{sKX} offen offset:{1024*j} lds", "vm"))
            else:
                if j == 0: g += [I(f"s_add_u32 m0, s{sb}, {ao + 1024*k}"), I(f"s_add_u32 s{sKX}, s{sCO}, {8*k*1024}")]
                g.append(I(f"buffer_load_dwordx4 v{vC2+j}, {srd(R_CRE if pc == 3 else R_CIM)}, s{sKX} offen offset:{1024*j} lds", "vm"))
            G.append(g)
        self.w2_last[pc] = G[-1][-1]
        return G
    def w2_reads(self, pc):
        sb, ao = self.w2_area(pc)
        L = Seq()
        if pc in UO:
            L.e(f"v_add_u32 v{vTA}, s{sb}, v{vTR}")
            if ao >= 2 * SLOT: L.e(f"v_add_u32 v{vTA}, {ao}, v{vTA}"); ao = 0
            L.e(f"v_xor_b32 v{vTA+1}, 64, v{vTA}")
            L.wvm(self.w2_last[pc])
            j0 = {0: 0, 1: 4, 2: 8, 5: 12}[pc]
            for k in range(2 if pc == 5 else 4):
                for nu in range(2):
                    for e in range(2):
                        a = 8 * (j0 + k) + 4 * nu + 2 * e
                        r = L.e(f"ds_read_b64_tr_b16 {ar(a,2)}, v{vTA+nu} offset:{ao + 2048*k + 1024*e}")
        else:
            L.e(f"v_add_u32 v{vTA}, s{sb}, v{vCR}")
            for k in range(1, 4): L.e(f"v_xor_b32 v{vTA+k}, {32*k}, v{vTA}")
            L.wvm(self.w2_last[pc])
            j0 = 14 if pc == 3 else 18
            for k in range(4):
                for nu in range(2):
                    r = L.e(f"ds_read_b128 {ar(8*(j0+k)+4*nu)}, v{vTA+k} offset:{ao + 4096*nu}")
        self.w2_rd[pc] = r
        return groups(L)
    def after_reads(self, pc, G):
        w = Seq(); w.wds(self.w2_rd[pc])
        return [list(w) + G[0]] + G[1:]

    def ffn_epi(self, a, voff):
        f = Seq()
        for t in range(2):
            b = a + 16 * t
            for j in range(8): f.e(f"v_pk_mul_f32 {vr(b+2*j,2)}, {vr(b+2*j,2)}, {vr(42,2)} op_sel:[0,{t}] op_sel_hi:[1,{t}]")
            for j in range(8): f.e(f"v_cvt_pk_bf16_f32 v{b+j}, v{b+2*j}, v{b+2*j+1}")
            for j in range(8): f.e(f"v_pk_max_i16 v{b+j}, v{b+j}, 0")
        st = [I(f"buffer_store_dwordx4 {vr(a+16*t+4*al)}, v{voff}, {srd(R_SY)}, 0 offen offset:{2048*al + 1024*t} sc1", "vm") for t in range(2) for al in range(2)]
        return f, st

    def split3(self, s, src, d):
        s.e(f"v_and_b32 v240, 0xffff0000, v{src}", f"v_sub_f32 v240, v{src}, v240",
            f"v_perm_b32 v{d}, v240, v{src}, s{sONES}", "v_and_b32 v241, 0xffff0000, v240", "v_sub_f32 v241, v240, v241",
            f"v_cvt_pk_bf16_f32 v{d+1}, v241, 0")

    def flag_store(self, kind, after):
        q = Seq(); q.wvm(after)
        q.e(f"buffer_store_dword v251, v{vFL}, {srd(R_SY)}, 0 offen offset:{128*kind} sc1")
        return list(q)

    def phase1(self, q, last):
        c = self.c
        RE, IM = ACC_S, ACC_S + 16
        MF8 = "v_mfma_f32_32x32x8_bf16"; MF = "v_mfma_f32_32x32x16_bf16"
        MFR = 200
        q.wvm(last[0]); q.e("s_barrier"); self.stamp(q)
        D = 2; D2 = 3
        RD = {}
        for n in range(D): RD[n] = self.frag_reads(n); q.e(*RD[n])
        G, l = self.stage_dma(2); last.append(l)
        dma = Stream(G, every=1)
        s = Seq()
        s.e(f"v_readfirstlane_b32 s{sTAG}, v16", "v_permlane32_swap_b32 v48, v49", "v_permlane32_swap_b32 v50, v51", f"s_add_u32 s{sTAG}, s{sTAG}, {hex(TAGK)}",
            "v_add_f32 v48, v48, v49", "v_add_f32 v50, v50, v51", f"s_or_b32 s{sTAG}, s{sTAG}, 1", f"v_mov_b32 v54, s{sTAG}",
            "v_permlane16_swap_b32 v48, v50", "v_add_f32 v48, v48, v50", f"v_mov_b32 v251, s{sTAG}")
        for k in (8, 4, 2, 1): s.e(f"v_add_f32_dpp v48, v48, v48 row_ror:{k} row_mask:0xf bank_mask:0xf")
        s.e("v_mov_b32 v49, v48", "v_permlane16_swap_b32 v48, v49",
            f"v_mul_f32 v48, {fh(1/512)}, v48", f"v_mul_f32 v49, {fh(1/512)}, v49", "v_fma_f32 v49, -v48, v48, v49", "v_max_f32 v49, 0, v49",
            "v_cvt_pk_bf16_f32 v49, v49, v49", "v_lshlrev_b32 v49, 16, v49", f"v_add_f32 v49, {fh(1e-5)}, v49",
            "v_cvt_pk_bf16_f32 v49, v49, v49", "v_lshlrev_b32 v49, 16, v49", "v_sqrt_f32 v49, v49",
            "v_cvt_pk_bf16_f32 v53, -v48, -v48",
            "v_cvt_pk_bf16_f32 v49, v49, v49", "v_lshlrev_b32 v49, 16, v49", "v_rcp_f32 v52, v49")
        s.e(f"buffer_store_dwordx4 {vr(52)}, v{vSTS}, {srd(R_SY)}, 0 offen sc1")
        sA = Stream(groups(s), start=4 * (c.stat_at + 1), dl=4 * c.stat_at + 28)
        s = Seq()
        if not (c.boot and c.boot_late): self.consts_late(s)
        self.ssm_consts(s)
        sC_ = Stream(groups(s), dl=c.gather_at - 1)
        gl_ = [I(f"buffer_load_dwordx3 {vr(40,3)}, v{vGS}, {srd(R_SY)}, 0 offen sc1", "vm"), I(f"buffer_load_dwordx3 {vr(44,3)}, v{vGR}, {srd(R_SY)}, 0 offen sc1", "vm")]
        A = [gl_, ("nb", c.check_at), self.check("ga", gl_, self.tags([42, 46]))]
        s = Seq()
        s.e(f"v_mov_b32 v{MFR}, v41", f"v_mov_b32 v{MFR+2}, v41", "v_mov_b32 v42, v40", "v_mov_b32 v43, v40",
            f"s_lshl_b32 s{sT0}, s{sG}, 14", f"s_add_u32 s{sT0}, s{sT0}, {WS_AGG}",
            f"v_permlane32_swap_b32 v{MFR}, v{MFR+2}", "v_permlane32_swap_b32 v42, v43", f"v_mov_b32 v{MFR+1}, v{MFR}", f"v_mov_b32 v{MFR+3}, v{MFR+2}")
        A += groups(s)
        A.append([I(f"s_add_u32 s{R_AG}, s{R_SY}, s{sT0}"), I(f"s_addc_u32 s{R_AG+1}, s{R_SY+1}, 0"), I(f"s_movk_i32 s{R_AG+2}, 16384")])
        assert c.check_at >= 92
        sG_ = Stream(A, start=c.gather_at, dl=119)
        early = self.w2_dma(0, 2) + self.w2_dma(1, 2)
        self.xl = []; X = []
        for ii in range(4):
            self.xl.append(I(f"buffer_load_dwordx2 {vr(2+4*ii,2)}, v18, {srd(R_X)}, s{sK4} offen", "vm"))
            X.append([I(f"s_movk_i32 s{sK4}, {4096*ii}"), self.xl[-1]])
        X.append(("nb", 120))
        for ii in range(4):
            self.xl.append(I(f"buffer_load_dwordx2 {vr(4+4*ii,2)}, v34, {srd(R_SY)}, 0 offen offset:{64*ii} sc1", "vm")); X.append([self.xl[-1]])
        assert c.check_at < 116
        sX_ = Stream(X, start=106, dl=127, every=2)
        for n in range(32):
            p = n & 3
            b = self.fb(n); rd = RD[n]
            if (n + D) % 4 == 0:
                i = (n + D) // 4 - 1
                flush(q, [dma])
                q.wds_all()
                if i < 7: q.wvm(last[i + 1])
                q.e("s_barrier")
                if i in c.ts_stages: self.stamp(q)
                if i < 6:
                    G, l = self.stage_dma(i + 3); last.append(l)
                    if c.early_from <= i:
                        G = G + early[:c.early_n]; early = early[c.early_n:]
                    dma = Stream(G, every=2)
                if i == 6:
                    dma = Stream(early[:c.early_last], every=2); early = early[c.early_last:]
                if i == 7: csr = q.e(f"ds_read_b64 {vr(62,2)}, v{vGC+2}")
            if n >= c.pf_from and (n - c.pf_from) % c.pf_step == 0 and (n - c.pf_from) // c.pf_step * c.pf_n < 28:
                q.e(f"global_load_dword v10, v{vPF}, s[70:71] offset:{(n - c.pf_from) // c.pf_step * c.pf_n * 128}")
            if n == c.l2pf_at:
                q.e(f"s_lshr_b32 s{sT0}, s2, 3", f"s_lshl2_add_u32 s{sT1}, s{sT0}, s{sW}", f"s_mul_i32 s{sT1}, s{sT1}, {56*128}", f"s_mul_i32 s{sT2}, s{sXB}, {896*1024}",
                    f"s_add_u32 s{sT1}, s{sT1}, s{sT2}", f"v_min_u32 v240, 55, v{vL}", "v_lshlrev_b32 v240, 7, v240")
                q.e(f"buffer_load_dword v219, v240, {srd(R_W2)}, s{sT1} offen")
                q.e(f"s_lshl2_add_u32 s{sT1}, s{sT0}, s{sW}", f"s_lshl_b32 s{sT1}, s{sT1}, 12", f"s_lshl_b32 s{sT2}, s{sXB}, 9", f"s_add_u32 s{sT1}, s{sT1}, s{sT2}",
                    f"v_and_b32 v240, 3, v{vL}", f"v_bfe_u32 v241, v{vL}, 2, 2", "v_lshlrev_b32 v240, 7, v240", "v_lshl_add_u32 v240, v241, 10, v240")
                q.e(f"buffer_load_dword v219, v240, {srd(R_CRE)}, s{sT1} offen", f"buffer_load_dword v219, v240, {srd(R_CIM)}, s{sT1} offen")
            if n == c.pt_at:
                for v in (vFP, vAGS, vCSS): q.e(f"buffer_load_dword v219, v{v}, {srd(R_SY)}, 0 offen")
            if n == c.strow_at: q.e(*self.strows)
            nxt = []
            if n + D < 32: nxt = RD[n + D] = self.frag_reads(n + D)
            z = lambda a: ("0" if n == 0 else vr(a, 16))
            M = [f"{MF} {vr(ACC_F1,16)}, {vr(b+4)}, {ar(8*n)}, {z(ACC_F1)}", f"{MF} {vr(ACC_F1+16,16)}, {vr(b+4)}, {ar(8*n+4)}, {z(ACC_F1+16)}",
                 f"{MF} {vr(RE,16)}, {ar(8*n)}, {vr(b)}, {z(RE)}", f"{MF} {vr(IM,16)}, {ar(8*n+4)}, {vr(b)}, {z(IM)}"]
            sched = [2, 1, 1, 2]
            k = 0
            if c.s_first: M = M[2:] + M[:2]
            for j, m in enumerate(M):
                q.wds(rd[4]); q.e(m)
                mine = nxt[k:k + sched[j]]; k += sched[j]
                q.e(*mine)
                fill_gap(q, 4 * n + j, len(mine), c.cap1, [dma, sA, sG_, sC_, sX_])
                if n == 30 and j == 2:
                    q.e(f"s_mov_b32 s{sONES}, 0x07060302"); q.wds(csr)
                    q.e(f"v_add_f32 v{CS+1}, v{CS+1}, v63", f"v_add_f32 v{CS}, v{CS}, v62")
                corrF = [f"{MF8} {vr(ACC_F1+16*t,16)}, {vr(222,2)}, {vr(MFR+2*t,2)}, {vr(ACC_F1+16*t,16)}" for t in range(2)]
                corrS = [f"{MF8} {vr(RE+16*t,16)}, {vr(MFR+2*t,2)}, {vr(204,2)}, {vr(RE+16*t,16)}" for t in range(2)]
                if n == 30 and j == 3: self.split3(q, *((CS, 204) if c.s_first else (CS + 1, 222)))
                if n == 31 and j == 0: self.split3(q, *((CS + 1, 222) if c.s_first else (CS, 204)))
                if n == 31 and j == 1:
                    flush(q, [sG_])
                    q.e(*(corrS if c.s_first else corrF))
            if n == c.stat_at:
                q.wvm(self.small0, self.strows[1])
                for r in range(4):
                    q.e(f"v_dot2c_f32_bf16 v48, s{sONES}, v{40+r}", f"v_dot2c_f32_bf16 v49, s{sONES}, v{44+r}",
                        f"v_dot2c_f32_bf16 v50, v{40+r}, v{40+r}", f"v_dot2c_f32_bf16 v51, v{44+r}, v{44+r}")
            if p == 1:
                if dma.it: q.e(*dma.it.pop(0))
                for e in (n - 1, n + 1):
                    q.wds(RD[e][4]); be = self.fb(e)
                    for r in range(4):
                        q.e(f"v_dot2c_f32_bf16 v{CS}, s{sONES}, v{be+r}", f"v_dot2c_f32_bf16 v{CS+1}, s{sONES}, v{be+4+r}")
            if n == 29: q.e(f"ds_write_b64 v{vGC+1}, {vr(CS,2)}")
        q.e(*(corrF if c.s_first else corrS))
        self.stamp(q)
        G9, l = self.stage_dma(9); last.append(l)
        f, st = self.ffn_epi(ACC_F1, vHF1)
        q.e(f"v_mov_b32 v{CS}, s{sTAG}")
        st = [I(f"buffer_store_dwordx2 {vr(CS,2)}, v{vCSS}, {srd(R_SY)}, 0 offen sc1", "vm")] + st
        if not c.s_first: q.extend(merge(f, G9[:c.g9_pre]))
        s = Seq()
        for i in range(16): s.e(f"v_permlane16_swap_b32 v{RE+i}, v{IM+i}")
        cr, ci = RE, IM
        def scale(i): s.e(f"v_mul_f32_dpp v{RE+i}, v44, v{RE+i} row_newbcast:{i} row_mask:0xf bank_mask:0xf", f"v_mul_f32_dpp v{IM+i}, v44, v{IM+i} row_newbcast:{i} row_mask:0xf bank_mask:0xf")
        scale(0); scale(1)
        for i in range(1, 16):
            d = 48 if i & 1 else 46
            s.e(f"v_fma_f32 v{d}, v20, v{cr}, v{RE+i}", f"v_fma_f32 v{d+1}, v20, v{ci}, v{IM+i}")
            if i < 15: scale(i + 1)
            s.e(f"v_fma_f32 v{d}, -v21, v{ci}, v{d}", f"v_fma_f32 v{d+1}, v21, v{cr}, v{d+1}")
            cr, ci = d, d + 1
        q.extend(merge(s, G9 if c.s_first else [[x] for x in st] + G9[c.g9_pre:]))
        s = Seq()
        s.e("v_mov_b32 v50, v48", "v_mov_b32 v51, v49", f"v_mov_b32 v62, s{sTAG}", "v_mov_b32 v40, 0",
            "v_permlane32_swap_b32 v48, v50", "v_permlane32_swap_b32 v49, v51",
            "v_mov_b32 v52, v48", "v_mov_b32 v54, v50", "v_mov_b32 v53, v49", "v_mov_b32 v55, v51",
            "v_permlane16_swap_b32 v48, v52", "v_permlane16_swap_b32 v50, v54", "v_permlane16_swap_b32 v49, v53", "v_permlane16_swap_b32 v51, v55", "v_mov_b32 v41, 0")
        self.cmul_acc(s, 50, 22, 48, 50); self.cmul_acc(s, 52, 22, 50, 52); self.cmul_acc(s, 60, 22, 52, 54)
        s.e(f"buffer_store_dwordx4 {vr(60)}, v{vAGS}, {srd(R_SY)}, 0 offen sc1")
        q.extend(s)
        self.stamp(q)
        q.wvm(last[8]); q.e("s_barrier")
        for e in range(32, 32 + D2):
            RD[e] = self.frag_reads(e); q.e(*RD[e])
        if c.s_first:
            q.e(st[0]); q.extend(f[:24]); q.e(st[1]); q.extend(f[24:36]); q.e(st[2]); q.extend(f[36:]); q.e(st[3])
        cl_ = I(f"buffer_load_dwordx2 {vr(CS,2)}, v{vGC}, {srd(R_SY)}, 0 offen sc1", "vm")
        S1 = []
        for j in range(1, 4):
            S1.append([I(f"v_cmp_eq_u32 vcc, {j}, v32"), I(f"v_cndmask_b32 v40, v40, v{46+2*j}, vcc"), I(f"v_cndmask_b32 v41, v41, v{47+2*j}, vcc")])
        s = Seq()
        for i in range(16):
            s.e(f"v_mul_f32 v46, v31, v{IM+i}", f"v_mul_f32 v{IM+i}, v30, v{IM+i}", f"v_fmac_f32 v{IM+i}, v31, v{RE+i}", f"v_fma_f32 v{RE+i}, v30, v{RE+i}, -v46")
        sS1 = Stream(S1 + groups(s))
        self.fa = I(f"buffer_load_dword v{vFP}, v36, {srd(R_SY)}, 0 offen sc1", "vm")
        for g in S1[:3]: q.e(*g)
        sS1.it = sS1.it[3:]
        self.lb = [I(f"buffer_load_dwordx3 {vr(LBR+4*t,3)}, v{vLBK}, {srd(R_AG)}, 0 offen offset:{512*t} sc1", "vm") for t in range(8)]
        assert len(early) % 2 == 0 and len(early) <= 8
        sR0 = Stream(self.w2_reads(0) + [("nb", 18)] + self.w2_reads(1), start=c.r0_at, dl=c.lb_at - 1)
        W = early + self.w2_dma(2, 2)
        if c.s_first: q.e(st[4])
        W2_ = self.after_reads(0, self.w2_dma(3)) + self.w2_dma(5) + self.after_reads(1, self.w2_dma(4))
        lbg = [self.lb[k:k + c.lb_grp] for k in range(0, 8, c.lb_grp)]
        fA = [[cl_] + self.flag_store(0, st[-1])]
        if c.b_at < 64:
            W = W[:c.w2_first] + [("nb", c.lb_at)] + lbg + fA + W[c.w2_first:] + W2_[:c.w2_n2] + [("nb", c.w2_at3)] + W2_[c.w2_n2:]
            sLB_ = Stream([])
        else:
            sR0.dl = c.w2_at2
            W = W[:c.w2_first] + [("nb", c.w2_at2)] + fA + W[c.w2_first:] + W2_[:c.w2_n2] + [("nb", 64)] + W2_[c.w2_n2:]
            sLB_ = Stream(lbg, start=c.lb_at, every=2)
        sW2 = Stream(W, every=2)
        _, B, self.ssm_last = self.ssm_part2()
        if c.b_at < 64: sS1.dl = c.b_at - 1
        sB2 = Stream(B[:-1], start=c.b_at); self.hst = B[-1]
        sBase = Stream(self.base_stream(), start=64)
        K9 = 16 - D2
        for n in range(32, 64):
            k = n - 32
            b = self.fb(n)
            if k == K9:
                q.wds_all(); q.wvm(last[9]); q.e("s_barrier")
            nxt = RD[n + D2] = self.frag_reads(n + D2)
            for t in range(2):
                d = ACC_F2 + 16 * t
                q.wds(RD[n][-1])
                q.e(f"{MF} {vr(d,16)}, {vr(b+4)}, {ar(8*k+4*t)}, {'0' if k == 0 else vr(d,16)}")
                q.e(*nxt[t:t+1])
                fill_gap(q, 2 * k + t, 1.25, c.cap2, [sLB_, sW2, sR0, sS1, sB2, sBase])
                if k == 30 and t == 0: q.extend(self.check("c2", [cl_], self.tags([CS])))
                if k == 30 and t == 1: self.split3(q, CS + 1, 222)
        for t in range(2): q.e(f"{MF8} {vr(ACC_F2+16*t,16)}, {vr(222,2)}, {vr(MFR+2*t,2)}, {vr(ACC_F2+16*t,16)}")
        self.stamp(q)
        self.left = (sW2.rest(), sS1.rest(), sR0.rest(), sLB_.rest(), sB2.rest())
        self.base_left = sBase.rest()

    def ssm_part2(self):
        RE, IM = ACC_S, ACC_S + 16
        LB = LBR
        lb = self.lb
        pr_ = [48, 50, 56, 58, 60, 62, 70, sM]
        test = [f"v_cmp_eq_u32 s[{pr_[t]}:{pr_[t]+1}], s{sTAG}, v{LB+4*t+2}" for t in range(8)]
        test += [f"s_bcnt1_i32_b64 s{pr_[t]}, s[{pr_[t]}:{pr_[t]+1}]" for t in range(8)]
        test += [f"s_add_u32 s{pr_[0]}, s{pr_[0]}, s{pr_[t]}" for t in range(1, 8)]
        test.append(f"s_cmp_lg_u32 s{pr_[0]}, s{sNV}")
        B = [self.check("lb", lb, test)]
        q = Seq()
        self.stamp(q)
        for t in range(6, -1, -1): self.cmul_acc(q, LB + 4 * t, 24, LB + 4 * (t + 1), LB + 4 * t)
        self.cmul(q, 62, 28, LB)
        for sw in ("16", "32"):
            q.e("v_mov_b32 v60, v62", "v_mov_b32 v61, v63", f"v_permlane{sw}_swap_b32 v60, v62", f"v_permlane{sw}_swap_b32 v61, v63",
                "v_add_f32 v62, v60, v62", "v_add_f32 v63, v61, v63")
        self.cmul_acc(q, 60, 26, 62, 40)
        self.cmul(q, 62, 30, 60)
        self.nB1 = len(groups(q)) + 1
        pr, pi_ = 62, 63
        for i in range(16):
            q.e(f"v_fma_f32 v{RE+i}, v20, v{pr}, v{RE+i}", f"v_fma_f32 v{IM+i}, v20, v{pi_}, v{IM+i}",
                f"v_fma_f32 v{RE+i}, -v21, v{pi_}, v{RE+i}", f"v_fma_f32 v{IM+i}, v21, v{pr}, v{IM+i}")
            pr, pi_ = RE + i, IM + i
            if i & 1:
                j = i >> 1
                q.e(f"v_cvt_pk_bf16_f32 v{44+j}, v{RE+2*j}, v{RE+2*j+1}", f"v_cvt_pk_bf16_f32 v{52+j}, -v{IM+2*j}, -v{IM+2*j+1}")
            if i == 7:
                q.e(f"ds_write_b128 v{vTW}, {vr(44)}", f"ds_write_b128 v{vTW}, {vr(52)} offset:2048")
        q.e(f"ds_write_b128 v{vTW+1}, {vr(48)}", f"ds_write_b128 v{vTW+1}, {vr(56)} offset:2048")
        q.e(f"v_xor_b32 v61, {512|32}, v{vTD}", f"v_xor_b32 v62, 64, v{vTD}", "v_xor_b32 v63, 64, v61", f"s_movk_i32 s{sT1}, 8192")
        ad = {(0, 0): vTD, (0, 1): 61, (1, 0): 62, (1, 1): 63}
        for part in range(2):
            for mu in range(2):
                for e in range(2):
                    tr = q.e(f"ds_read_b64_tr_b16 {vr(64 + 8*part + 4*mu + 2*e,2)}, v{ad[mu, e]} offset:{2048*part}")
        B += groups(q)
        st = [I(f"buffer_store_dwordx4 {vr(64+8*part+4*mu)}, v{vHS}, {srd(R_SY)}, {('0', f's{sT1}')[part]} offen offset:{1024*mu} sc1", "vm") for part in range(2) for mu in range(2)]
        w = Seq(); w.wds(tr)
        B.append(list(w) + st)
        return lb, B, st[-1]

    def base_stream(self):
        f = Seq()
        T = 88; D = 20; r = 24
        f.wvm(self.xl[-1])
        f.e(f"v_lshlrev_b32 v{D}, 16, v38", f"v_and_b32 v{D+1}, 0xffff0000, v38", f"v_lshlrev_b32 v{D+2}, 16, v39", f"v_and_b32 v{D+3}, 0xffff0000, v39")
        for ii in range(4):
            b = BASE + 4 * ii
            f.e(f"v_mov_b32 v{r}, v{b+2}", f"v_lshlrev_b32 v{r+1}, 16, v{b+3}",
                f"v_lshlrev_b32 v{b+2}, 16, v{b+1}", f"v_and_b32 v{b+3}, 0xffff0000, v{b+1}", f"v_and_b32 v{b+1}, 0xffff0000, v{b}", f"v_lshlrev_b32 v{b}, 16, v{b}")
            for e in range(4): f.e(f"v_add_f32 v{T+e}, v{b+e}, v{r+1}")
            def rnd():
                f.e(f"v_cvt_pk_bf16_f32 v{T+4}, v{T}, v{T+1}", f"v_cvt_pk_bf16_f32 v{T+5}, v{T+2}, v{T+3}",
                    f"v_lshlrev_b32 v{T}, 16, v{T+4}", f"v_and_b32 v{T+1}, 0xffff0000, v{T+4}", f"v_lshlrev_b32 v{T+2}, 16, v{T+5}", f"v_and_b32 v{T+3}, 0xffff0000, v{T+5}")
            rnd()
            for e in range(4): f.e(f"v_mul_f32 v{T+e}, v{T+e}, v{r}")
            rnd()
            for e in range(4): f.e(f"v_mul_f32 v{T+e}, v{T+e}, v{D+e}")
            rnd()
            for e in range(4): f.e(f"v_add_f32 v{b+e}, v{b+e}, v{T+e}")
        return groups(f)

    def phase2(self, q):
        c = self.c
        NR = c.nring; ak = c.akept; NT = c.ntail; LEAD = c.lead
        assert ak % 2 == 0 and ak <= 8 and NR >= LEAD + NT - 1 and NR <= 10
        wl, sl, rl, ll, B = self.left
        ssm_last = self.ssm_last
        for g in sl + rl: q.e(*g)
        f, st2 = self.ffn_epi(ACC_F2, vHF2)
        q.extend(merge(f, [[self.fa]] + ll + wl[:c.left_pre], start=0))
        wl = wl[c.left_pre:]
        k = c.b_mid
        q.e(st2[0])
        if any(x.kind == "label" for x in B[0]):
            q.e(st2[1]); st2 = st2[1:]; q.e(*B.pop(0))
        f = Seq()
        for g in B[:k]: f.e(*g)
        q.extend(merge(f, [[x] for x in st2[1:]], end=min(len(f), 40)))
        B = B[k:] + [self.hst]
        if len(B) == 1: q.e(*B.pop())
        self.stamp(q)
        q.extend(self.check("fa", [self.fa], self.tags([vFP], 0xff)))
        self.stamp(q)
        ACC = (96, 160)
        steps = [(0, j) for j in range(8)] + [(1, j) for j in range(ak)] + [(0, j) for j in range(8, 22)] + [(1, j) for j in range(ak, 22)]
        firstB = 8 + ak; sent_done = firstB + 13
        ld = {}
        def issue(n):
            ps, j = steps[n]
            a = 176 + 8 * (n % NR)
            blk = (sB0, sB1)[ps]
            g = []
            if j % 2 == 0:
                if j < 14:
                    pc = (0, 1, 2, 5)[j // 4]
                    if j % 4 == 2 and steps[n-1] == (ps, j - 1): g.append(I(f"s_xor_b32 s{sKW}, s{sKW}, 4096"))
                    else:
                        g.append(I(f"s_add_u32 s{sKW}, s{blk}, s{UO[pc]}"))
                        if j % 4: g.append(I(f"s_xor_b32 s{sKW}, s{sKW}, 4096"))
                elif j == 14: g.append(I(f"s_add_u32 s{sKW}, s{blk}, s{sHS}"))
                elif j == 18: g += [I(f"s_xor_b32 s{sKW}, s{sHS}, 8192"), I(f"s_add_u32 s{sKW}, s{sKW}, s{blk}")]
                else: g.append(I(f"s_xor_b32 s{sKW}, s{sKW}, 4096"))
            o = 2048 * (j % 2)
            ld[n, 0] = I(f"buffer_load_dwordx4 {ar(a)}, v33, {srd(R_SY)}, s{sKW} offen offset:{o} sc1", "vm")
            ld[n, 1] = I(f"buffer_load_dwordx4 {ar(a+4)}, v33, {srd(R_SY)}, s{sKW} offen offset:{o+1024} sc1", "vm")
            return [g + [ld[n, 0]], [ld[n, 1]]]
        order = []
        n = 0
        while n < 44:
            if n in (sent_done + 1 - NT, 44 - NT):
                for k in range(4): order += [(m, k) for m in range(n, n + NT)]
                n += NT
            else:
                order += [(n, k) for k in range(4)]; n += 1
        pos = {e: i for i, e in enumerate(order)}
        L0 = c.lead0
        f = Seq()
        for g in B[:-1]: f.e(*g)
        q.extend(merge(f, [g for n in range(L0) for g in issue(n)]))
        if B: q.e(*B[-1])
        if c.flagB_at < 0: q.extend(self.flag_store(1, ssm_last))
        fs = I(f"buffer_load_dword v{vFP}, v36, {srd(R_SY)}, 0 offen offset:128 sc1", "vm")
        st = Seq(); self.stamp(st)
        gate = 4 * firstB - c.gate_lead
        L = []
        for n in range(L0, 44):
            nb = max(4 * (n - LEAD), 0)
            if n >= NR: nb = max(nb, max(pos[n - NR, k] for k in range(4)))
            if n >= firstB: nb = max(nb, gate)
            if firstB < n < firstB + c.burst:
                assert nb <= gate
                L[-1] += [x for g in issue(n) for x in g]; continue
            L.append(("nb", nb))
            if n == firstB: L.append(self.check("fs", [fs], self.tags([vFP], 0xffff)) + list(st) + [x for g in issue(n) for x in g])
            else: L += issue(n)
        sL = Stream(L, every=2)
        P = ([("nb", c.flagB_at)] + [self.flag_store(1, ssm_last)] if c.flagB_at >= 0 else []) + [("nb", gate - c.fs_lead), [fs]]
        sP = Stream(P, dl=gate - 1)
        Wc = self.w2_reads(2) + [("nb", c.flagB_at + 1)] + wl + self.w2_reads(5) + [("nb", c.rc_at)]
        Wc += self.w2_reads(3) + self.w2_reads(4)
        d_c = 4 * (firstB + 3)
        sWc = Stream(Wc, start=1, dl=d_c, every=c.wc_every)
        sB = Stream(self.base_left)
        XV = 64; TB = 80
        s = Seq()
        s.e(f"v_mov_b32 v{TB}, s{sTAG}")
        for k in range(1, 4): s.e(f"v_lshrrev_b32 v{TB+k}, {8*k}, v{TB}")
        s.e(f"s_movk_i32 s{sT2}, 0xff")
        s.wds_all(); s.e("s_barrier")
        R0 = [("nb", d_c + 6)] + groups(s)
        def tile(k): return (k & 1, k >> 1)
        def red_write(ps, lastn):
            out = []
            for k in range(4):
                nu, mu = tile(k)
                out.append(("nb", pos[lastn, k] + 2))
                for g4 in range(4):
                    out.append([I(f"ds_write_b128 v{vRW+g4}, {vr(ACC[ps] + 32*nu + 16*mu + 4*g4)} offset:{128*nu + 8192*mu}", "ds")])
            return out
        def red_read(s, dst):
            return [s.e(f"ds_read_b128 {vr(dst + 16*ii + 4*src)}, v{vRR} offset:{1024*ii + 16384*src}") for ii in range(4) for src in range(4)]
        s = Seq()
        s.wds_all(); s.e("s_barrier")
        R = red_read(s, 96)
        for g4 in range(4): s.e(f"v_add_u32 v{vRW+g4}, 0x10000, v{vRW+g4}")
        Ga = groups(s); s = Seq()
        for ii in range(4):
            s.wds(R[4 * ii + 3])
            for e in range(4):
                d = XV + 4 * ii + e; s0 = 96 + 16 * ii + e
                s.e(f"v_add_f32 v{s0}, v{s0}, v{s0+4}", f"v_add_f32 v{d}, v{s0+8}, v{s0+12}", f"v_add_f32 v{d}, v{d}, v{s0}",
                    f"v_bfi_b32 v{d}, s{sT2}, v{TB+e}, v{d}")
        s.e(f"v_add_u32 v{vRR}, 0x10000, v{vRR}")
        Gb = groups(s)
        s = Seq()
        for k in range(4): s.e(f"buffer_store_dwordx4 {vr(XV+4*k)}, v{vXS}, {srd(R_SY)}, 0 offen offset:{1024*k} sc1")
        self.stamp(s)
        e0 = 4 * (sent_done + 1)
        XR = 40
        xl = [I(f"buffer_load_dwordx4 {vr(XR+4*k)}, v{vXR}, {srd(R_SY)}, 0 offen offset:{1024*k} sc1", "vm") for k in range(4)]
        sR = Stream(R0 + red_write(0, sent_done) + [("nb", e0 + c.bar_lag)] + Ga + [("nb", e0 + c.bar_lag + c.add_lag)] + Gb + [("nb", 4 * c.send_at)] + [list(s)]
                    + red_write(1, 43), wev=c.wev)
        sX = Stream([[x] for x in xl], start=c.xl_at, every=2)
        q.wds(self.w2_rd[1])
        emitted = set(id(x) for x in q)
        for gi, (n, k) in enumerate(order):
            ps, j = steps[n]; nu, mu = tile(k)
            a = 176 + 8 * (n % NR); d = ACC[ps] + 32 * nu + 16 * mu
            while not any(ld[n, mu] is x for x in q[-400:]):
                g = sL.it.pop(0)
                if not isinstance(g, tuple): q.e(*g)
            q.wvm(ld[n, mu])
            if n == firstB: q.wds(self.w2_rd[2])
            if n == firstB + 4: q.wds(self.w2_rd[5])
            if n == firstB + 6: q.wds(self.w2_rd[4])
            if k == 0 and n in c.p2stamps: self.stamp(q)
            q.e(f"v_mfma_f32_32x32x16_bf16 {vr(d,16)}, {ar(8*j+4*nu)}, {ar(a+4*mu)}, {'0' if j == 0 else vr(d,16)}")
            fill_gap(q, gi, 0.5, c.cap4 if gi >= e0 else c.cap3, [sP, sL, sWc, sR, sX, sB])
        self.stamp(q)
        flush(q, [sR, sX, sB])
        q.wds_all(); q.e("s_barrier")
        R = red_read(q, 96)
        pre = [f"s_mov_b32 s{sT0}, 0x0c0c0400", f"s_mov_b32 s{sT1}, 0x05040100"]
        for k in range(4):
            r = XR + 4 * k
            pre += [f"v_perm_b32 v60, v{r+1}, v{r}, s{sT0}", f"v_perm_b32 v61, v{r+3}, v{r+2}, s{sT0}", f"v_perm_b32 v{56+k}, v61, v60, s{sT1}"]
        for ii in range(4):
            q.wds(R[4 * ii + 3])
            s0 = 96 + 16 * ii
            for e in range(2):
                q.e(f"v_pk_add_f32 {vr(s0+2*e,2)}, {vr(s0+2*e,2)}, {vr(s0+4+2*e,2)}", f"v_pk_add_f32 {vr(s0+8+2*e,2)}, {vr(s0+8+2*e,2)}, {vr(s0+12+2*e,2)}")
            for e in range(2): q.e(f"v_pk_add_f32 {vr(s0+2*e,2)}, {vr(s0+2*e,2)}, {vr(BASE+4*ii+2*e,2)}")
            for e in range(2): q.e(f"v_pk_add_f32 {vr(s0+2*e,2)}, {vr(s0+2*e,2)}, {vr(s0+8+2*e,2)}")
        q.extend(self.check("xc", xl, pre + self.tags([56 + k for k in range(4)])))
        self.stamp(q)
        for ii in range(4):
            s0 = 96 + 16 * ii
            for e in range(2): q.e(f"v_pk_add_f32 {vr(s0+2*e,2)}, {vr(s0+2*e,2)}, {vr(XR+4*ii+2*e,2)}")
            q.e(f"s_movk_i32 s{sT0}, {8192*ii}")
            q.e(f"buffer_store_dwordx4 {vr(s0)}, v19, {srd(R_OUT)}, s{sT0} offen {c.ost}")
        q.e(f"s_lshl_b32 s{sT0}, s{sG}, 2", f"s_or_b32 s{sT0}, s{sT0}, s{sW}", f"s_lshl_b32 s{sT0}, s{sT0}, 4", f"s_or_b32 s{sT0}, s{sT0}, s{sC}",
            f"s_cmp_eq_u32 s{sT0}, 15", "s_cbranch_scc0 L_nobump", "v_mov_b32 v57, 0", "s_mov_b64 exec, 1")
        q.e(f"buffer_store_dword v251, v57, {srd(R_SY)}, 0 offen sc1")
        q.e("s_mov_b64 exec, -1")
        q.label("L_nobump")

    def write_ts(self, q):
        if not self.c.ts: return
        q.wds_all(); q.wvm_all()
        q.e("s_memtime s[46:47]", "s_memrealtime s[92:93]"); q.wds_all()
        q.e(f"s_lshl_b32 s{sT0}, s2, 2", f"s_add_u32 s{sT0}, s{sT0}, s{sW}", f"s_lshl_b32 s{sT0}, s{sT0}, 6", f"s_add_u32 s{sT0}, s{sT0}, {WS_TS}", "v_mov_b32 v2, 0")
        q.e("s_mov_b64 exec, 1")
        def put(k): q.e(f"buffer_store_dword v3, v2, {srd(R_SY)}, s{sT0} offen offset:{4*k}")
        for k in range(self.nts + 2):
            if k == 0: q.e("v_mov_b32 v3, v255")
            elif k == self.nts + 1: q.e("s_sub_u32 s46, s46, s42", "v_mov_b32 v3, s46")
            else:
                r = TSREG[k - 1]; q.e(f"s_sub_u32 s{r}, s{r}, s42", f"v_mov_b32 v3, s{r}")
            put(k)
        q.e("v_mov_b32 v3, s92"); put(15)
        q.wvm_all()

    def add_prof(self, q):
        lo, step = self.c.prof
        out = Seq(); unsafe = False; started = False; acc = 0; n = 0; idx = 0; nm = 0
        NP = len(TSREG)
        self.prof_pts = []
        for ins in q:
            t = ins.t
            if started and not unsafe and n < 64 and idx >= lo and acc >= step and ins.kind not in WAITK and not t.startswith(("s_cbranch", "s_branch", "s_cselect", "s_addc")) and ins.kind != "label":
                r = TSREG[n % NP]
                if n >= NP: out.e(f"v_writelane_b32 v0, s{r}, {n - NP}")
                out.e(f"s_memtime s[{r}:{r+1}]"); self.prof_pts.append((idx, nm, t[:50])); n += 1; acc = 0
            out.append(ins)
            if t == "s_barrier": started = True
            if started and ins.kind != "label":
                idx += 1; acc += 1
                if t.startswith("v_mfma"): nm += 1
            if t.startswith("s_cbranch"): unsafe = started
            if ins.kind == "label" and (t.endswith("_ok:") or t.startswith("L_nobump")): unsafe = False
        out.wds_all()
        for k in range(max(0, n - NP), n): out.e(f"v_writelane_b32 v0, s{TSREG[k % NP]}, {k}")
        out.e(f"s_lshl_b32 s{sT0}, s2, 2", f"s_add_u32 s{sT0}, s{sT0}, s{sW}", f"s_lshl_b32 s{sT0}, s{sT0}, 8", f"s_add_u32 s{sT0}, s{sT0}, {WS_TS + 65536}",
              "v_subrev_u32 v0, s42, v0", f"v_lshlrev_b32 v2, 2, v{vL}")
        out.e(f"buffer_store_dword v0, v2, {srd(R_SY)}, s{sT0} offen")
        return out

    def build(self):
        q = Seq()
        q.label("L_start")
        last = self.prologue(q)
        self.phase1(q, last)
        self.phase2(q)
        if self.c.prof: q = self.add_prof(q)
        self.write_ts(q)
        if self.c.spin_to:
            q.e("s_waitcnt lgkmcnt(0)")
            if self.c.spin_x >= 0: q.e("s_and_b32 s46, s2, 7", f"s_cmp_eq_u32 s46, {self.c.spin_x}", "s_cbranch_scc0 L_end")
            if self.c.probe: q.e("s_sub_u32 s68, s68, s42", f"s_add_u32 s68, s68, {self.c.spin_to}")
            else: q.e(f"s_mov_b32 s68, {self.c.spin_to}")
            q.label("L_spin")
            q.e("s_memrealtime s[46:47]", "s_waitcnt lgkmcnt(0)", "s_sub_u32 s46, s46, s42", "s_cmp_lt_u32 s46, s68", "s_cbranch_scc1 L_spin")
        q.label("L_end")
        q.e("s_endpgm")
        q.extend(self.ool)
        return finalize(q)

HDR = """; @launch grid=(256,1,1) block=(256,1,1) lds=163840
.amdgcn_target "amdgcn-amd-amdhsa--gfx950"
.text
.globl {n}_kernel
.p2align 8
.type {n}_kernel,@function
{n}_kernel:
"""
TAIL = """
.section .rodata,"a"
.p2align 6
.amdhsa_kernel {n}_kernel
  .amdhsa_next_free_vgpr 512
  .amdhsa_next_free_sgpr 102
  .amdhsa_accum_offset 256
  .amdhsa_group_segment_fixed_size 0
  .amdhsa_kernarg_size 120
  .amdhsa_user_sgpr_count 2
  .amdhsa_user_sgpr_kernarg_segment_ptr 1
  .amdhsa_system_sgpr_workgroup_id_x 1
.end_amdhsa_kernel
"""
def generate(cfg):
    g = Gen(cfg)
    body = g.build()
    return HDR.format(n=NAME) + "\n".join(("" if l.endswith(":") else "    ") + l for l in body) + TAIL.format(n=NAME), g

if __name__ == "__main__":
    cfg = Cfg()
    for a in sys.argv[2:]:
        k, v = a.split("=", 1); assert hasattr(cfg, k), k; setattr(cfg, k, eval(v))
    txt, g = generate(cfg)
    open(sys.argv[1], "w").write(txt)
```

```python
import sys, struct
from asmlib import *

NAME = "parallel_sum__ssm_conv_s5__dense_activation_relu__prompt"
def f2u(x): return struct.unpack("<I", struct.pack("<f", x))[0]
def fh(x): return hex(f2u(x))

WS_CS   = 262144
WS_FLAG = 524288
WS_STAT = 786432
WS_AGG  = 1 << 20
WS_XCH  = 2 << 20
WS_TS   = (7 << 20) + (1 << 19)
WS_H    = 8 << 20
HBLK = 88 * 2048
WS_END = WS_H + 64 * HBLK
TAGK = 0x9E3779B9
OOB = 0x40000000

sCO, sW, sWM, sWN, sC, sG, sGL, sU0, sORD, sXB, sT0, sT1, sT2 = 3, 4, 5, 6, 7, 8, 9, 10, 11, 12, 13, 14, 15
P_X, P_LRE, P_LIM, P_BRE, P_BIM, P_CRE, P_CIM, P_LDT = 16, 18, 20, 22, 24, 26, 28, 30
P_DSK, P_W1, P_W2, P_OUT, P_WS = 32, 36, 38, 40, 44
sU1, sK4 = 34, 35
sM = 46
R_X, R_BS, R_W1A, R_W1B, R_W2, R_CRE, R_CIM, R_OUT, R_SY = 48, 52, 56, 60, 72, 76, 80, 84, 88
R_AG = R_BS
sB0, sB1, sHS, sNV = 64, 65, 66, 67
sUO = 32
UO = {0: 32, 1: 33, 2: 100, 5: 101}
sKX, sKW, sLB, sONES, sTAG, sPOLL, sLE, sW2O = 92, 93, 94, 95, 96, 97, 98, 99
TSREG = [16, 18, 20, 22, 24, 26, 28, 30, 36, 38, 40, 68]
def srd(r): return f"s[{r}:{r+3}]"

vL = 1
BASE = 2
ACC_S, ACC_F1, ACC_F2 = 64, 96, 128
FR = 160
RA, RS, RF = 176, 180, 184
vX, vB, vW = 200, 204, 206
vSTS, vCSS, vGS, vGC, vPF, vAGS, vHF1, vHF2, vGR = 208, 209, 210, 211, 214, 215, 216, 217, 218
CS = 220
vW2, vC2, vTR, vCR, vTA, vLBK, vFP, vHS, vFL, vXS, vXR, vRW, vRR, vTW, vTD = 224, 228, 232, 233, 234, 238, 239, 242, 243, 244, 245, 246, 250, 252, 254
def vr(a, n=4): return f"v[{a}:{a+n-1}]"
def ar(a, n=4): return f"a[{a}:{a+n-1}]"

LBR = 96
SLOT = 32768; WBLK = 8192
L_SP = 98304; SPW = 16384
L_CS = 0

class Cfg:
    ts = False; ts_stages = (); ts_max = 12; ts_min = 0; prof = None; p2stamps = ()
    order = "xa"
    pf_from = 2; pf_n = 28; pf_step = 12
    early_from = 1; early_n = 2; early_last = 6
    cap1 = 5.5; cap2 = 5.5; cap3 = 5
    stat_at = 2; gather_at = 86; check_at = 108
    w2_first = 8; w2_at2 = 24; w2_n2 = 12; w2_at3 = 54; lb_at = 50; lb_grp = 2; left_pre = 0; g9_pre = 4; r0_at = 10; b_at = 64; b_mid = 60; lb_every = 1; rc_at = 40
    akept = 6; nring = 10; lead = 6; ntail = 4
    lead0 = 4; flagB_at = 15; fs_lead = 4; gate_lead = 20; wc_every = 2; burst = 1
    bar_lag = 9; send_at = 0; xl_at = 164; wev = 1
    poll_sleep = 1
    probe = 0
    lead2 = 10; fast_from = 112; fast_to = 140; recv_early = False; red_bare = True; xbf = False
    s_first = True
    boot = 0; boot_late = True; boot_bar = True
    spin_x = -1
    add_lag = 5; cap4 = 8
    l2pf_at = 99; pt_at = 2
    hrot = True
    nt_upto = 0; nt_srd = (48, 52, 56, 60)
    strow_at = -2
    spin_to = 0
    ost = 'nt'

def mk_srd(q, r, p, size):
    q.e(f"s_mov_b32 s{r}, s{p}", f"s_and_b32 s{r+1}, s{p+1}, 0xffff", f"s_mov_b32 s{r+2}, {size}", f"s_mov_b32 s{r+3}, 0x20000")

WAITK = ("wvm", "wds", "wvm0", "wds0")
def groups(seq):
    G = []; cur = []
    for ins in seq:
        cur.append(ins)
        if ins.kind not in WAITK and not ins.t.startswith(("v_cmp", "s_cmp")):
            G.append(cur); cur = []
    if cur: G.append(cur)
    return G
def cost(g):
    c = 0
    for i in g:
        if i.kind == "label": continue
        if i.kind in WAITK: c += 0.5
        elif i.t.startswith(TRANS): c += 2
        elif i.t.startswith("ds_write_b128"): c += 3
        else: c += 1
    return c

class Stream:
    def __init__(self, items, start=0, dl=None, every=1, wev=1):
        self.it = list(items); self.nb = start; self.dl = dl; self.every = every; self.wev = wev
    def ready(self, gap):
        while self.it and isinstance(self.it[0], tuple):
            self.nb = max(self.nb, self.it.pop(0)[1])
        return bool(self.it) and gap >= self.nb
    def pop(self, gap):
        g = self.it.pop(0)
        if self.every > 1 and any(i.kind == "vm" for i in g): self.nb = gap + int(self.every)
        if any(i.t.startswith("ds_write_b128") for i in g): self.nb = gap + self.wev
        return g
    def rest(self):
        r = [g for g in self.it if not isinstance(g, tuple)]; self.it = []; return r

def fill_gap(q, gap, used, cap, streams):
    for s in streams:
        if s.dl is not None and gap >= s.dl:
            for g in s.rest(): q.e(*g); used += cost(g)
    for s in streams:
        while s.ready(gap) and (used + cost(s.it[0]) <= cap or (used <= cap - 2 and cost(s.it[0]) > 3)):
            g = s.pop(gap); q.e(*g); used += cost(g)
def flush(q, streams):
    for s in streams:
        for g in s.rest(): q.e(*g)

def pack_order(o): return sum(v << (4 * k) for k, v in enumerate(o))
def hyb(xa):
    first = [0, (1 + 2 * xa), (2 + 2 * xa) & 7 or 1]
    rest = [v for v in [(3 + 2 * xa + k) & 7 for k in range(8)] if v not in first]
    return first + rest
ORDERS = {"xa": [[(i + 2 * xa) & 7 for i in range(8)] for xa in range(4)],
          "none": [list(range(8))] * 4,
          "two": [[(i + 4 * (xa & 1)) & 7 for i in range(8)] for xa in range(4)],
          "hyb": [hyb(xa) for xa in range(4)]}

class Gen:
    def __init__(self, cfg):
        self.c = cfg; self.nts = 0; self.nreq = 0; self.w2_last = {}; self.w2_rd = {}; self.ool = Seq()
    def stamp(self, q):
        self.nreq += 1
        if self.c.probe == self.nreq: q.e("s_memrealtime s[68:69]")
        if self.c.ts and self.nts < self.c.ts_max and self.nreq > self.c.ts_min:
            r = TSREG[self.nts]
            q.e(f"s_memtime s[{r}:{r+1}]"); self.nts += 1

    def stage_dma(self, i):
        base = (i % 3) * SLOT
        def ld(v, r, so, off):
            fl = " nt" if (i < self.c.nt_upto and r in self.c.nt_srd) else ""
            return I(f"buffer_load_dwordx4 v{v}, {srd(r)}, s{so} offen offset:{off}{fl} lds", "vm")
        def m0(o): return I(f"s_add_u32 m0, s{sLB}, {base + o}")
        def st(k): return I(f"s_bfe_u32 s{sKW}, s{sORD}, {(3 << 16) | (4 * k)}")
        mul = lambda: I(f"s_mul_i32 s{sKW}, s{sKW}, {64*3584}")
        G = []
        if i < 8:
            G.append([m0(0), st(i), I(f"s_lshl_b32 s{sKX}, s{sKW}, 7"), ld(vX, R_X, sKX, 0)])
            for j in range(1, 4): G.append([ld(vX + j, R_X, sKX, 1024 * j)])
            G.append([m0(4096), mul(), ld(vB, R_BS, sKX, 0)]); G.append([ld(vB + 1, R_BS, sKX, 1024)])
            G.append([m0(6144), ld(vW, R_W1A, sKW, 0)]); G.append([ld(vW + 1, R_W1A, sKW, 1024)])
        else:
            for t in range(4):
                G.append([m0(2048 * t), st(4 * (i - 8) + t), mul(), ld(vW, R_W1B, sKW, 0)])
                G.append([ld(vW + 1, R_W1B, sKW, 1024)])
        return G, G[-1][-1]

    def fb(self, n): return ACC_F2 + 8 * (n & 3) if n < 32 else FR - 4 + 4 * (n & 3)
    def frag_reads(self, n):
        b = self.fb(n)
        if n < 32:
            i, p = divmod(n, 4); slot = i % 3
            hi = 12 if slot == 2 else 0; o = SLOT if slot == 1 else 0
            S = I(f"ds_read_b128 {vr(b)}, v{RS+hi+p} offset:{o}", "ds")
            A0 = I(f"ds_read_b128 {ar(8*n)}, v{RA+hi+p} offset:{o}", "ds")
            A1 = I(f"ds_read_b128 {ar(8*n+4)}, v{RA+hi+p} offset:{o+WBLK}", "ds")
            F = [I(f"ds_read_b64_tr_b16 {vr(b+4+2*k, 2)}, v{RF+hi+p} offset:{o + 6144 + k*512}", "ds") for k in range(2)]
            return [S, A0, A1] + F
        if n >= 64: return []
        i, p = divmod(n - 32, 4)
        hi = 12 if i < 4 else 0
        return [I(f"ds_read_b64_tr_b16 {vr(b+4+2*k, 2)}, v{RF+hi+p} offset:{2048*(i&3) + k*512}", "ds") for k in range(2)]

    def prologue(self, q):
        c = self.c
        q.e("s_cmp_ge_u32 s2, 256", "s_cbranch_scc1 L_end")
        q.e("s_load_dwordx16 s[16:31], s[0:1], 0", "s_load_dwordx4 s[36:39], s[0:1], 80", "s_load_dwordx2 s[44:45], s[0:1], 112",
            "s_load_dwordx2 s[32:33], s[0:1], 64", "s_load_dwordx2 s[40:41], s[0:1], 96")
        q.e("s_getpc_b64 s[64:65]", "L_pc:", "s_and_b32 s3, s2, 0xf8", "s_lshl_b32 s3, s3, 7", "v_lshlrev_b32 v9, 2, v0", "v_add_u32 v9, s3, v9",
            "v_min_u32 v9, L_end-L_pc, v9")
        q.e("global_load_dword v10, v9, s[64:65]")
        if c.ts: q.e("s_memtime s[42:43]", "s_memrealtime s[46:47]")
        if c.spin_to: q.e("s_memrealtime s[42:43]")
        q.e(f"v_and_b32 v{vL}, 63, v0", "v_lshrrev_b32 v2, 6, v0", f"v_readfirstlane_b32 s{sW}, v2")
        O = [pack_order(o) for o in ORDERS[c.order]]
        q.e("s_bitcmp1_b32 s2, 1", f"s_mov_b32 s{sT0}, {O[0]:#x}", f"s_cmov_b32 s{sT0}, {O[1]:#x}", f"s_mov_b32 s{sORD}, {O[2]:#x}", f"s_cmov_b32 s{sORD}, {O[3]:#x}",
            "s_bitcmp0_b32 s2, 2", f"s_cmov_b32 s{sORD}, s{sT0}")
        q.e(f"s_and_b32 s{sXB}, s2, 1", f"s_and_b32 s{sT0}, s2, 6", f"s_lshr_b32 s{sT2}, s2, 6",
            f"s_lshl1_add_u32 s{sC}, s{sT0}, s{sT2}", f"s_bfe_u32 s{sGL}, s2, 0x30003", f"s_lshl3_add_u32 s{sG}, s{sXB}, s{sGL}")
        q.e(f"s_and_b32 s{sT2}, s{sT2}, 1", f"s_lshl1_add_u32 s{sT0}, s{sGL}, s{sT2}", f"s_add_u32 s{sT1}, s{sGL}, 6",
            f"s_cmp_lt_u32 s{sGL}, 6", f"s_cselect_b32 s{sU0}, s{sT0}, s{sT1}", f"s_cselect_b32 s{R_W1B+2}, {512*3584}, 0", f"s_xor_b32 s{sU1}, s{sU0}, 1",
            f"s_lshr_b32 s{sWM}, s{sW}, 1", f"s_and_b32 s{sWN}, s{sW}, 1", f"s_lshl_b32 s{sLB}, s{sW}, 13")
        q.e(f"v_lshrrev_b32 v2, 3, v{vL}", f"v_and_b32 v3, 7, v{vL}", f"v_lshrrev_b32 v4, 4, v{vL}")
        q.e("v_xor_b32 v5, v3, v4", "v_lshlrev_b32 v5, 4, v5")
        q.e(f"v_lshrrev_b32 v7, 5, v{vL}", "v_and_b32 v8, 3, v2", "v_lshl_add_u32 v7, v7, 4, v8",
            f"s_lshl2_add_u32 s{sT0}, s{sC}, s{sW}", f"s_lshl_b32 s{sT0}, s{sT0}, 5",
            f"v_add_u32 v7, s{sT0}, v7", f"v_lshl_add_u32 v{vX}, v7, 10, v5",
            f"v_xor_b32 v{vX+1}, 64, v{vX}", f"v_add_u32 v{vX+1}, {3072}, v{vX+1}",
            f"v_add_u32 v{vX+2}, {6144}, v{vX}", f"v_add_u32 v{vX+3}, {6144}, v{vX+1}")
        q.e(f"s_lshl1_add_u32 s{sK4}, s{sG}, s{sWN}", f"s_lshl_b32 s{sK4}, s{sK4}, 4",
            f"v_add_u32 v7, s{sK4}, v2", f"v_lshl_add_u32 v{vB}, v7, 10, v5",
            f"v_xor_b32 v{vB+1}, 64, v{vB}", f"v_add_u32 v{vB+1}, {7168}, v{vB+1}")
        q.e(f"s_lshl_b32 s{sT0}, s{sW}, 4", f"v_add_u32 v7, s{sT0}, v2", "v_mul_u32_u24 v7, 3584, v7",
            "v_and_b32 v8, 1, v4", "v_lshlrev_b32 v8, 2, v8", "v_xor_b32 v8, v8, v3", f"v_lshl_add_u32 v{vW}, v8, 4, v7",
            f"v_add_u32 v{vW+1}, {8*3584-1024}, v{vW}",
            f"s_mul_i32 s{sT0}, s{sXB}, 14", f"s_add_u32 s{sT1}, s{sT0}, s{sU1}", f"s_add_u32 s{sT0}, s{sT0}, s{sU0}",
            f"s_lshl_b32 s{R_W1A}, s{sT0}, 7", f"s_lshl_b32 s{R_W1B}, s{sT1}, 7",
            f"s_sub_u32 s{R_W1A+2}, {512*3584}, s{R_W1A}", f"s_max_u32 s{R_W1B+2}, s{R_W1B+2}, s{R_W1B}", f"s_sub_u32 s{R_W1B+2}, s{R_W1B+2}, s{R_W1B}")
        for r, size in ((R_X, 2048*1024), (R_BS, 512*1024)): q.e(f"s_mov_b32 s{r+2}, {size}")
        for r in (R_X, R_BS, R_W1A, R_W1B): q.e(f"s_mov_b32 s{r+3}, 0x20000")
        q.e(f"v_lshl_add_u32 v{vC2}, v2, 10, v5", "v_lshlrev_b32 v7, 10, v2", f"v_lshl_add_u32 v{vW2}, v8, 4, v7")
        q.e(f"v_lshlrev_b32 v33, 4, v{vL}", f"v_and_b32 v6, 15, v{vL}", f"v_add_lshl_u32 v11, v6, s{sK4}, 1", "v_mov_b32 v15, 0")
        q.e(f"s_lshl1_add_u32 s{sT2}, s{sC}, s{sWM}", f"s_lshl4_add_u32 s{sT2}, s{sT2}, s{sG}", f"s_lshl1_add_u32 s{sT2}, s{sT2}, s{sWN}",
            f"s_lshl_b32 s{sPOLL}, s{sT2}, 11")
        G0, l0 = self.stage_dma(0)
        q.e(*G0[0][:-1])
        q.wds_all()
        if c.ts: q.e("v_mov_b32 v255, s46")
        if c.boot:
            b = c.boot
            q.e(f"v_lshlrev_b32 v17, 7, v{vL}", f"s_cmp_eq_u32 s{sW}, 2", "s_cbranch_scc1 L_b2")
            q.e(f"s_cmp_eq_u32 s{sW}, 0", f"s_cselect_b64 s[46:47], s[{P_X}:{P_X+1}], s[{P_W1}:{P_W1+1}]", "s_cselect_b32 s70, 64, 56",
                f"s_cmp_eq_u32 s{sW}, 3", f"s_cselect_b64 s[46:47], s[{(P_W2 if b == 1 else P_W1)}:{(P_W2 if b == 1 else P_W1)+1}], s[46:47]",
                "s_lshl_b32 s70, s70, 7", "s_sub_u32 s71, s70, 128", "s_mul_i32 s70, s70, s2", "v_min_u32 v17, s71, v17", "v_add_u32 v17, s70, v17")
            q.append(I("global_load_dword v10, v17, s[46:47]", "o"))
            q.e("s_branch L_b3")
            q.label("L_b2")
            q.e("v_and_b32 v17, 0x780, v17", "s_lshl_b32 s70, s2, 11", "v_add_u32 v17, s70, v17")
            for p in (P_BRE, P_BIM) + ((P_CRE, P_CIM) if b == 1 else ()): q.append(I(f"global_load_dword v10, v17, s[{p}:{p+1}]", "o"))
            q.label("L_b3")
            self.bootq = q; q = self.postq = Seq()
        q.e(f"s_mov_b32 s{R_X}, s{P_X}", f"s_and_b32 s{R_X+1}, s{P_X+1}, 0xffff")
        q.e(G0[0][-1]); [q.e(*g) for g in G0[1:4]]
        q.e(f"s_cmp_eq_u32 s{sWM}, 0", f"s_cselect_b32 s{R_BS}, s{P_BRE}, s{P_BIM}", f"s_cselect_b32 s{R_BS+1}, s{P_BRE+1}, s{P_BIM+1}", f"s_and_b32 s{R_BS+1}, s{R_BS+1}, 0xffff")
        [q.e(*g) for g in G0[4:6]]
        q.e(f"s_and_b32 s{P_W1+1}, s{P_W1+1}, 0xffff", f"s_add_u32 s{R_W1A}, s{P_W1}, s{R_W1A}", f"s_addc_u32 s{R_W1A+1}, s{P_W1+1}, 0")
        [q.e(*g) for g in G0[6:8]]
        q.e(f"s_add_u32 s{R_W1B}, s{P_W1}, s{R_W1B}", f"s_addc_u32 s{R_W1B+1}, s{P_W1+1}, 0")
        last = [l0]
        if c.boot: q = self.bootq
        self.strows = [I(f"buffer_load_dwordx4 {vr(40)}, v33, {srd(R_X)}, s{sPOLL} offen", "vm"), I(f"buffer_load_dwordx4 {vr(44)}, v33, {srd(R_X)}, s{sPOLL} offen offset:1024", "vm")]
        if c.strow_at == -2: q.e(*self.strows)
        self.small0 = q.e(f"global_load_dword v16, v15, s[{P_WS}:{P_WS+1}] sc1")
        q.e(f"global_load_ushort v12, v11, s[{P_LRE}:{P_LRE+1}]", f"global_load_ushort v13, v11, s[{P_LIM}:{P_LIM+1}]")
        self.small = q.e(f"global_load_ushort v14, v11, s[{P_LDT}:{P_LDT+1}]")
        q.e(f"s_lshl_b32 s{sT1}, s{sGL}, 7", f"v_lshl_add_u32 v35, v6, 3, s{sT1}")
        self.dsk = q.e(f"global_load_dwordx2 {vr(38,2)}, v35, s[{P_DSK}:{P_DSK+1}]")
        f = Seq()
        f.e(f"v_and_b32 v2, 31, v{vL}", f"v_lshrrev_b32 v3, 5, v{vL}")
        f.e("v_bfe_u32 v7, v2, 1, 3", "v_xor_b32 v7, v7, v3", "v_lshlrev_b32 v7, 4, v7",
            f"v_lshl_add_u32 v{vCR}, v2, 7, v7",
            f"s_lshl_b32 s{sT1}, s{sWM}, 5", f"v_xor_b32 v7, s{sT1}, v7", f"v_xor_b32 v5, s{sT1}, v{vCR}",
            f"s_lshl_b32 s{sT1}, s{sWM}, 14", f"v_add_u32 v{RA}, s{sT1}, v5")
        f.e("v_lshl_add_u32 v7, v6, 7, v7", "v_and_b32 v8, 16, v2", "v_lshl_add_u32 v7, v8, 10, v7",
            f"s_lshl_b32 s{sT1}, s{sWN}, 13", f"s_add_u32 s{sT1}, s{sT1}, 4096", f"v_add_u32 v{RS}, s{sT1}, v7")
        for p in range(1, 4): f.e(f"v_xor_b32 v{RA+p}, {32*p}, v{RA}", f"v_xor_b32 v{RS+p}, {32*p}, v{RS}")
        f.e("v_lshrrev_b32 v9, 2, v6", "v_lshlrev_b32 v5, 7, v9", "v_and_b32 v7, 3, v6", "v_lshl_add_u32 v5, v7, 3, v5", "v_lshl_add_u32 v5, v8, 1, v5",
            "v_and_b32 v7, 8, v6", "v_lshl_add_u32 v5, v7, 3, v5",
            f"v_lshl_add_u32 v{vTR}, v3, 9, v5",
            "v_lshl_add_u32 v5, v3, 10, v5", f"s_lshl_b32 s{sT1}, s{sWN}, 6", f"s_lshl_b32 s{sT0}, s{sWM}, 13", f"s_or_b32 s{sT1}, s{sT1}, s{sT0}",
            f"v_xor_b32 v{RF}, s{sT1}, v5")
        for p in range(1, 4): f.e(f"v_xor_b32 v{RF+p}, {WBLK*p}, v{RF}")
        f.e(f"s_mov_b32 s{sONES}, 0x3f803f80", f"v_mov_b32 v{CS}, 0", f"v_mov_b32 v{CS+1}, 0")
        for k in range(4): f.e(f"v_mov_b32 v{48+k}, 0")
        for k in range(12): f.e(f"v_add_u32 v{RA+12+k}, {2*SLOT}, v{RA+k}")
        mk_srd(f, R_SY, P_WS, WS_END); mk_srd(f, R_W2, P_W2, 1792*1024); mk_srd(f, R_OUT, P_OUT, 2048*2048)
        f.e(f"s_and_b32 s{P_CRE+1}, s{P_CRE+1}, 0xffff", f"s_and_b32 s{P_CIM+1}, s{P_CIM+1}, 0xffff",
            f"s_bitcmp1_b32 s{sGL}, {0 if c.hrot else 5}", f"s_cselect_b64 s[{R_CRE}:{R_CRE+1}], s[{P_CIM}:{P_CIM+1}], s[{P_CRE}:{P_CRE+1}]",
            f"s_cselect_b64 s[{R_CIM}:{R_CIM+1}], s[{P_CRE}:{P_CRE+1}], s[{P_CIM}:{P_CIM+1}]")
        for r in (R_CRE, R_CIM): f.e(f"s_mov_b32 s{r+2}, {512*1024}", f"s_mov_b32 s{r+3}, 0x20000")
        q.extend(f)
        q.e(f"s_mul_i32 s{sT0}, s2, 56", f"s_mul_i32 s{sT1}, s{sWN}, 28", f"s_add_u32 s{sT0}, s{sT0}, s{sT1}", f"s_lshl_b32 s{sT1}, s2, 4", f"s_min_u32 s{sT1}, s{sT1}, {4096-28}",
            f"s_cmp_eq_u32 s{sWN}, 0", f"s_cselect_b32 s70, s{P_CRE}, s{P_CIM}", f"s_cselect_b32 s71, s{P_CRE+1}, s{P_CIM+1}",
            f"s_cmp_eq_u32 s{sWM}, 0", f"s_cselect_b32 s{sT0}, s{sT0}, s{sT1}",
            f"s_cselect_b32 s70, s{P_W2}, s70", f"s_cselect_b32 s71, s{P_W2+1}, s71",
            f"v_min_u32 v7, {c.pf_n - 1}, v{vL}", f"v_add_lshl_u32 v{vPF}, v7, s{sT0}, 7")
        f = Seq(); self.consts_early(f); self.consts_w2(f)
        G, l = self.stage_dma(1); last.append(l)
        if c.boot:
            q.extend(f)
            if c.boot_late:
                f = Seq(); self.consts_late(f); q.extend(f)
            q.wvm_all()
            if c.boot_bar: q.e("s_barrier")
            q.extend(self.postq)
            for g in G: q.e(*g)
        else: q.extend(merge(f, G))
        if c.strow_at == -1: q.e(*self.strows)
        return last

    def consts_early(self, f):
        f.e("v_and_b32 v5, 1, v4", "v_lshl_add_u32 v32, v5, 1, v3")
        f.e(f"s_lshl_b32 s{sT2}, s{sT2}, 5", f"s_add_u32 s{sT2}, s{sT2}, {WS_STAT}", f"v_lshl_add_u32 v7, v3, 4, s{sT2}", f"v_lshl_add_u32 v{vSTS}, v2, 25, v7")
        f.e(f"s_lshl1_add_u32 s{sT0}, s{sC}, s{sXB}", f"s_lshl_b32 s{sT1}, s{sT0}, 13", f"s_add_u32 s{sT1}, s{sT1}, {WS_FLAG}",
            f"s_lshl_b32 s{sT2}, s{sW}, 3", f"s_mul_i32 s{sT0}, s{sWM}, 3", f"s_add_u32 s{sT0}, s{sT0}, s{sWN}", f"s_lshl_b32 s{sT0}, s{sT0}, 2", f"s_sub_u32 s{sT0}, s{sT0}, 8",
            f"v_mov_b32 v7, s{sT2}", f"v_mov_b32 v8, s{sT0}", f"v_cmp_gt_u32 vcc, 8, v{vL}", "v_cndmask_b32 v7, v8, v7, vcc",
            f"v_add_u32 v7, v7, v{vL}", f"v_lshl_add_u32 v7, v7, 8, s{sT1}", "v_lshl_add_u32 v36, v4, 28, v7",
            f"s_lshl2_add_u32 s{sT2}, s{sGL}, s{sW}", f"s_lshl_b32 s{sT2}, s{sT2}, 8", f"s_add_u32 s{sT1}, s{sT1}, s{sT2}",
            f"v_lshl_add_u32 v7, v2, 2, s{sT1}", f"v_lshl_add_u32 v{vFL}, v3, 30, v7", f"v_lshl_add_u32 v{vFP}, v3, 7, v7")
        f.e(f"s_lshl4_add_u32 s{sT0}, s{sC}, s{sG}", f"s_lshl1_add_u32 s{sT0}, s{sT0}, s{sWN}", f"s_lshl_b32 s{sT0}, s{sT0}, 9", f"s_add_u32 s{sT0}, s{sT0}, {WS_CS}",
            f"v_lshl_add_u32 v7, v{vL}, 3, s{sT0}", f"v_xor_b32 v{vGC}, 0x4000, v7", f"s_lshl_b32 s{sT2}, s{sWM}, 30", f"v_add_u32 v{vCSS}, s{sT2}, v7")
        f.e(f"s_lshl_b32 s{sT0}, s{sWN}, 8", f"v_lshl_add_u32 v8, v6, 4, s{sT0}",
            f"s_lshl1_add_u32 s{sNV}, s{sC}, s{sWM}", f"s_sub_u32 s{sT0}, 31, s{sNV}", f"s_lshl_b32 s{sT0}, s{sT0}, 9",
            f"s_lshl_b32 s{sT1}, s{sG}, 14", f"s_add_u32 s{sT1}, s{sT1}, {WS_AGG}", f"s_add_u32 s{sT1}, s{sT1}, s{sT0}",
            f"v_add_u32 v7, s{sT1}, v8", f"v_lshl_add_u32 v{vAGS}, v4, 28, v7",
            f"s_add_u32 s{sT0}, s{sT0}, 512", "v_sub_u32 v7, 3, v4", "v_lshl_add_u32 v7, v7, 12, v8", f"v_add_u32 v{vLBK}, s{sT0}, v7",
            f"s_lshl_b32 s{sNV}, s{sNV}, 4")

    def consts_w2(self, f):
        f.e(f"s_lshl_b32 s{sHS}, s{sW}, 14", f"s_add_u32 s{sHS}, s{sHS}, {56*2048}")
        f.e(f"s_and_b32 s{sT2}, s{sC}, 1", f"s_lshl2_add_u32 s{sT0}, s{sW}, s{sT2}", f"s_add_u32 s{sT1}, s{sT0}, 2",
            f"s_min_u32 s{sT0}, s{sT0}, 12", f"s_min_u32 s{sT1}, s{sT1}, 13", f"s_lshl_b32 s{UO[0]}, s{sT0}, 13", f"s_lshl_b32 s{UO[1]}, s{sT1}, 13",
            f"s_xor_b32 s{sT2}, s{sT2}, 1", f"s_mul_i32 s{sT0}, s{sWM}, 6", f"s_add_u32 s{sT0}, s{sT0}, s{sT2}",
            f"s_lshl2_add_u32 s{sT1}, s{sWN}, s{sT0}", f"s_lshl_b32 s{UO[2]}, s{sT1}, 13",
            f"s_add_u32 s{sT0}, s{sT0}, 2", f"s_lshl1_add_u32 s{sT0}, s{sT0}, s{sWN}", f"s_lshl_b32 s{UO[5]}, s{sT0}, 12")
        if self.c.hrot:
            f.e(f"s_and_b32 s{sT0}, s{sGL}, 1", f"s_sub_u32 s{sT0}, 0, s{sT0}", f"s_xor_b32 s{sT1}, s{UO[0]}, s{UO[1]}", f"s_and_b32 s{sT1}, s{sT1}, s{sT0}",
                f"s_xor_b32 s{UO[0]}, s{UO[0]}, s{sT1}", f"s_xor_b32 s{UO[1]}, s{UO[1]}, s{sT1}",
                f"s_and_b32 s{sT0}, s{sT0}, 8192", f"s_xor_b32 s{sHS}, s{sHS}, s{sT0}",
                f"s_and_b32 s{sT0}, s{sGL}, 2", f"s_lshl_b32 s{sT1}, s{sT0}, 11", f"s_lshl_b32 s{sT0}, s{sT0}, 5", f"v_xor_b32 v{vC2}, s{sT0}, v{vC2}")
            for r in (UO[0], UO[1], UO[2], sHS): f.e(f"s_xor_b32 s{r}, s{r}, s{sT1}")
        f.e(f"s_mul_i32 s{sLE}, s{sW}, {SPW}", f"s_add_u32 s{sLE}, s{sLE}, {L_SP}",
            f"s_mul_i32 s{sW2O}, s{sXB}, {896*1024}", f"s_lshl_b32 s{sT1}, s{sGL}, 7", f"s_add_u32 s{sW2O}, s{sW2O}, s{sT1}",
            f"s_lshl2_add_u32 s{sCO}, s{sXB}, s{sW}", f"s_lshl_b32 s{sCO}, s{sCO}, 7", f"s_lshl_b32 s{sT0}, s{sGL}, 16", f"s_add_u32 s{sCO}, s{sCO}, s{sT0}")
        f.e(f"v_xor_b32 v{vC2+1}, 64, v{vC2}", f"v_add_u32 v{vC2+1}, 7168, v{vC2+1}", f"v_add_u32 v{vC2+2}, 14336, v{vC2}", f"v_add_u32 v{vC2+3}, 14336, v{vC2+1}")
        for j in range(1, 4): f.e(f"v_add_u32 v{vW2+j}, {7168*j}, v{vW2}")

    def consts_late(self, f):
        f.e(f"v_and_b32 v7, 4, v{vL}", f"v_and_b32 v8, 35, v{vL}", "v_lshl_add_u32 v7, v7, 2, v8", f"v_and_b32 v8, 24, v{vL}", "v_lshrrev_b32 v8, 1, v8",
            "v_add_u32 v37, v7, v8")
        f.e(f"s_lshl1_add_u32 s{sT1}, s{sC}, s{sWM}", f"s_lshl_b32 s{sT1}, s{sT1}, 10", f"s_add_u32 s{sT1}, s{sT1}, {WS_STAT}",
            f"v_lshl_add_u32 v{vGS}, v37, 4, s{sT1}", "v_lshl_add_u32 v7, v32, 4, v6", f"v_lshl_add_u32 v{vGR}, v7, 4, s{sT1}")
        f.e(f"v_lshl_add_u32 v{vGC+2}, v{vL}, 3, s{sLB}", f"v_xor_b32 v{vGC+1}, {2*WBLK}, v{vGC+2}")
        f.e(f"s_lshl1_add_u32 s{sT0}, s{sC}, s{sXB}", f"s_lshl1_add_u32 s{sT1}, s{sT0}, s{sWM}", f"s_mul_i32 s{sT1}, s{sT1}, {HBLK}", f"s_add_u32 s{sT1}, s{sT1}, {WS_H}",
            f"s_lshl1_add_u32 s{sT0}, s{sT0}, s{sXB}", f"s_mul_i32 s{sB1}, s{sT0}, {HBLK}", f"s_xor_b32 s{sT0}, s{sT0}, 1", f"s_mul_i32 s{sB0}, s{sT0}, {HBLK}",
            f"s_add_u32 s{sB0}, s{sB0}, {WS_H}", f"s_add_u32 s{sB1}, s{sB1}, {WS_H}")
        f.e(f"s_lshl_b32 s{sT0}, s{sWN}, 12", f"s_add_u32 s{sT0}, s{sT0}, s{sT1}", f"s_lshl_b32 s{sT2}, s{sU0}, 13", f"s_add_u32 s{sT2}, s{sT2}, s{sT0}",
            f"v_add_u32 v{vHF1}, s{sT2}, v33", f"s_lshl_b32 s{sT2}, s{sU1}, 13", f"s_add_u32 s{sT2}, s{sT2}, s{sT0}",
            f"s_min_u32 s{sT0}, s{R_W1B+2}, 1", f"s_sub_u32 s{sT0}, 1, s{sT0}", f"s_lshl_b32 s{sT0}, s{sT0}, 30", f"s_add_u32 s{sT2}, s{sT2}, s{sT0}",
            f"v_add_u32 v{vHF2}, s{sT2}, v33")
        f.e(f"s_lshr_b32 s{sT0}, s{sGL}, 1", f"s_and_b32 s{sT2}, s{sGL}, 1", f"s_lshl2_add_u32 s{sT0}, s{sT0}, s{sT2}", f"s_lshl1_add_u32 s{sT0}, s{sT0}, s{sWN}",
            f"s_add_u32 s{sT0}, s{sT0}, 56", f"s_lshl_b32 s{sT0}, s{sT0}, 11", f"s_add_u32 s{sT0}, s{sT0}, s{sT1}", f"v_add_u32 v{vHS}, s{sT0}, v33")
        f.e(f"s_lshl1_add_u32 s{sT0}, s{sC}, s{sXB}", f"s_lshl2_add_u32 s{sT0}, s{sT0}, s{sW}", f"s_lshl_b32 s{sT0}, s{sT0}, 4", f"v_add_u32 v7, s{sT0}, v4",
            "v_lshlrev_b32 v34, 4, v7", f"v_add_u32 v34, {WS_STAT}, v34", "v_lshl_add_u32 v18, v7, 10, v35", "v_lshlrev_b32 v19, 1, v18")
        f.e(f"s_lshl4_add_u32 s{sT0}, s{sC}, s{sG}", f"s_lshl2_add_u32 s{sT0}, s{sT0}, s{sW}", f"s_lshl_b32 s{sT0}, s{sT0}, 12", f"s_add_u32 s{sT0}, s{sT0}, {WS_XCH}",
            f"v_add_u32 v{vXS}, s{sT0}, v33", f"v_xor_b32 v{vXR}, 0x20000, v{vXS}")
        f.e("v_and_b32 v7, 7, v2", "v_xor_b32 v7, v7, v3", "v_lshlrev_b32 v7, 4, v7", "v_and_b32 v8, 31, v37", "v_lshl_add_u32 v7, v8, 8, v7",
            f"v_add_u32 v{vRW}, s{sLE}, v7")
        for g4 in range(1, 4): f.e(f"v_xor_b32 v{vRW+g4}, {32*g4}, v{vRW}")
        f.e("v_xor_b32 v7, v6, v4", "v_lshlrev_b32 v7, 4, v7", "v_lshl_add_u32 v7, v4, 8, v7", f"s_lshl_b32 s{sT0}, s{sW}, 12", f"s_lshl_b32 s{sT1}, s{sWN}, 6",
            f"s_or_b32 s{sT0}, s{sT0}, s{sT1}", f"s_add_u32 s{sT0}, s{sT0}, {L_SP}", f"v_xor_b32 v{vRR}, s{sT0}, v7")
        f.e("v_and_b32 v7, 2, v6", "v_and_b32 v8, 1, v6", "v_lshl_add_u32 v7, v7, 1, v8", "v_and_b32 v8, 4, v6", "v_lshrrev_b32 v8, 1, v8", "v_or_b32 v7, v7, v8",
            "v_lshlrev_b32 v8, 1, v32", "v_xor_b32 v7, v7, v8", "v_lshlrev_b32 v7, 4, v7", "v_lshl_add_u32 v7, v6, 7, v7",
            f"s_add_u32 s{sT0}, s{sLB}, {2*SLOT + 4096}", f"v_add_u32 v{vTW}, s{sT0}, v7", f"v_xor_b32 v{vTW+1}, 16, v{vTW}")
        f.e("v_and_b32 v5, 1, v6", "v_and_b32 v8, 16, v2", "v_lshl_add_u32 v5, v5, 5, v8", "v_and_b32 v8, 2, v6", "v_lshl_add_u32 v5, v8, 2, v5")
        f.e("v_and_b32 v7, 2, v9", "v_and_b32 v8, 1, v9", "v_lshl_add_u32 v7, v7, 1, v8", "v_lshlrev_b32 v7, 4, v7", "v_xor_b32 v7, v7, v5",
            "v_lshl_add_u32 v8, v3, 3, v9", "v_lshl_add_u32 v7, v8, 7, v7", f"v_add_u32 v{vTD}, s{sT0}, v7")

    def ssm_consts(self, q):
        q.wvm(self.small)
        q.e("v_lshlrev_b32 v14, 16, v14", "v_lshlrev_b32 v12, 16, v12", f"v_mul_f32 v14, {fh(1.4426950408889634)}, v14", "v_lshlrev_b32 v13, 16, v13",
            "v_exp_f32 v14, v14", "v_lshlrev_b32 v3, 4, v32", "v_cvt_pk_bf16_f32 v14, v14, v14", "v_lshlrev_b32 v14, 16, v14",
            "v_mul_f32 v17, v14, v12", "v_mul_f32 v15, v14, v13",
            f"v_mul_f32 v17, {fh(1.4426950408889634)}, v17", f"v_mul_f32 v15, {fh(0.15915494309189535)}, v15",
            "v_cvt_f32_u32 v3, v3", "v_sub_u32 v4, 3, v4", "v_lshlrev_b32 v4, 9, v4", "v_cvt_f32_u32 v4, v4")
        def cexp(d, n):
            q.e(f"v_mul_f32 v6, {n}, v15", f"v_mul_f32 v5, {n}, v17", "v_fract_f32 v6, v6", "v_exp_f32 v5, v5", f"v_cos_f32 v{d}, v6", f"v_sin_f32 v{d+1}, v6",
                f"v_mul_f32 v{d}, v{d}, v5", f"v_mul_f32 v{d+1}, v{d+1}, v5")
        cexp(20, "1.0"); cexp(22, fh(16.0)); cexp(24, fh(64.0)); cexp(26, "v3"); cexp(28, "v4")
        q.e("v_mul_f32 v6, v12, v12", "v_fmac_f32 v6, v13, v13", "v_rcp_f32 v6, v6", "v_add_f32 v5, -1.0, v20",
            "v_mul_f32 v30, v5, v12", "v_fmac_f32 v30, v21, v13", "v_mul_f32 v31, v21, v12", "v_fma_f32 v31, -v5, v13, v31",
            "v_add_f32 v6, v6, v6", "v_mul_f32 v30, v30, v6", "v_mul_f32 v31, v31, v6")

    def check(self, name, loads, test):
        q = Seq()
        q.wvm(loads[-1])
        q.e(*test)
        q.e(f"s_cbranch_scc1 L_{name}_slow")
        q.label(f"L_{name}_ok")
        o = self.ool
        o.label(f"L_{name}_slow")
        o.e(f"s_mov_b32 s{sPOLL}, 0x40000")
        o.label(f"L_{name}_loop")
        o.e(f"s_sleep {self.c.poll_sleep}")
        for l in loads: o.append(I(l.t, "o"))
        o.e("s_waitcnt vmcnt(0)", f"s_sub_u32 s{sPOLL}, s{sPOLL}, 1", f"s_cbranch_scc1 L_{name}_ok")
        o.e(*test)
        o.e(f"s_cbranch_scc1 L_{name}_loop", f"s_branch L_{name}_ok")
        return list(q)
    def tags(self, regs, lo=False):
        if len(regs) == 1: return [f"v_cmp_ne_u32 vcc, s{sTAG}, v{regs[0]}", f"s_and_b32 s{sM}, vcc_lo, {lo}" if lo else "s_cmp_lg_u64 vcc, 0"]
        t = [f"v_cmp_ne_u32 s[{sM}:{sM+1}], s{sTAG}, v{regs[0]}"]
        for r in regs[1:]: t += [f"v_cmp_ne_u32 vcc, s{sTAG}, v{r}", f"s_or_b64 s[{sM}:{sM+1}], s[{sM}:{sM+1}], vcc"]
        return t

    def cmul_acc(self, q, d, a, b, c, c2=None):
        c2 = c + 1 if c2 is None else c2
        q.e(f"v_fma_f32 v{d}, v{a}, v{b}, v{c}", f"v_fma_f32 v{d+1}, v{a}, v{b+1}, v{c2}",
            f"v_fma_f32 v{d}, -v{a+1}, v{b+1}, v{d}", f"v_fma_f32 v{d+1}, v{a+1}, v{b}, v{d+1}")
    def cmul(self, q, d, a, b):
        q.e(f"v_mul_f32 v{d}, v{a}, v{b}", f"v_mul_f32 v{d+1}, v{a}, v{b+1}",
            f"v_fma_f32 v{d}, -v{a+1}, v{b+1}, v{d}", f"v_fma_f32 v{d+1}, v{a+1}, v{b}, v{d+1}")

    def w2_area(self, pc):
        return {0: (sLE, 0), 1: (sLE, 8192), 2: (sLB, SLOT), 5: (sLB, 2*SLOT), 3: (sLE, 0), 4: (sLE, 8192)}[pc]
    def w2_dma(self, pc, run=4):
        sb, ao = self.w2_area(pc)
        G = []
        for k in range(4 if pc == 5 else 8):
            g = []; j = k % run
            if pc in UO:
                if j == 0:
                    g.append(I(f"s_add_u32 m0, s{sb}, {ao + 1024*k}"))
                    if k: g += [I(f"s_xor_b32 s{sKX}, s{UO[pc]}, {k*1024}"), I(f"s_lshl3_add_u32 s{sKX}, s{sKX}, s{sW2O}")]
                    else: g.append(I(f"s_lshl3_add_u32 s{sKX}, s{UO[pc]}, s{sW2O}"))
                g.append(I(f"buffer_load_dwordx4 v{vW2+j}, {srd(R_W2)}, s{sKX} offen offset:{1024*j} lds", "vm"))
            else:
                if j == 0: g += [I(f"s_add_u32 m0, s{sb}, {ao + 1024*k}"), I(f"s_add_u32 s{sKX}, s{sCO}, {8*k*1024}")]
                g.append(I(f"buffer_load_dwordx4 v{vC2+j}, {srd(R_CRE if pc == 3 else R_CIM)}, s{sKX} offen offset:{1024*j} lds", "vm"))
            G.append(g)
        self.w2_last[pc] = G[-1][-1]
        return G
    def w2_reads(self, pc):
        sb, ao = self.w2_area(pc)
        L = Seq()
        if pc in UO:
            L.e(f"v_add_u32 v{vTA}, s{sb}, v{vTR}")
            if ao >= 2 * SLOT: L.e(f"v_add_u32 v{vTA}, {ao}, v{vTA}"); ao = 0
            L.e(f"v_xor_b32 v{vTA+1}, 64, v{vTA}")
            L.wvm(self.w2_last[pc])
            j0 = {0: 0, 1: 4, 2: 8, 5: 12}[pc]
            for k in range(2 if pc == 5 else 4):
                for nu in range(2):
                    for e in range(2):
                        a = 8 * (j0 + k) + 4 * nu + 2 * e
                        r = L.e(f"ds_read_b64_tr_b16 {ar(a,2)}, v{vTA+nu} offset:{ao + 2048*k + 1024*e}")
        else:
            L.e(f"v_add_u32 v{vTA}, s{sb}, v{vCR}")
            for k in range(1, 4): L.e(f"v_xor_b32 v{vTA+k}, {32*k}, v{vTA}")
            L.wvm(self.w2_last[pc])
            j0 = 14 if pc == 3 else 18
            for k in range(4):
                for nu in range(2):
                    r = L.e(f"ds_read_b128 {ar(8*(j0+k)+4*nu)}, v{vTA+k} offset:{ao + 4096*nu}")
        self.w2_rd[pc] = r
        return groups(L)
    def after_reads(self, pc, G):
        w = Seq(); w.wds(self.w2_rd[pc])
        return [list(w) + G[0]] + G[1:]

    def ffn_epi(self, a, voff):
        f = Seq()
        for t in range(2):
            b = a + 16 * t
            for j in range(8): f.e(f"v_pk_mul_f32 {vr(b+2*j,2)}, {vr(b+2*j,2)}, {vr(42,2)} op_sel:[0,{t}] op_sel_hi:[1,{t}]")
            for j in range(8): f.e(f"v_cvt_pk_bf16_f32 v{b+j}, v{b+2*j}, v{b+2*j+1}")
            for j in range(8): f.e(f"v_pk_max_i16 v{b+j}, v{b+j}, 0")
        st = [I(f"buffer_store_dwordx4 {vr(a+16*t+4*al)}, v{voff}, {srd(R_SY)}, 0 offen offset:{2048*al + 1024*t} sc1", "vm") for t in range(2) for al in range(2)]
        return f, st

    def split3(self, s, src, d):
        s.e(f"v_and_b32 v240, 0xffff0000, v{src}", f"v_sub_f32 v240, v{src}, v240",
            f"v_perm_b32 v{d}, v240, v{src}, s{sONES}", "v_and_b32 v241, 0xffff0000, v240", "v_sub_f32 v241, v240, v241",
            f"v_cvt_pk_bf16_f32 v{d+1}, v241, 0")

    def flag_store(self, kind, after):
        q = Seq(); q.wvm(after)
        q.e(f"buffer_store_dword v251, v{vFL}, {srd(R_SY)}, 0 offen offset:{128*kind} sc1")
        return list(q)

    def phase1(self, q, last):
        c = self.c
        RE, IM = ACC_S, ACC_S + 16
        MF8 = "v_mfma_f32_32x32x8_bf16"; MF = "v_mfma_f32_32x32x16_bf16"
        MFR = 200
        q.wvm(last[0]); q.e("s_barrier"); self.stamp(q)
        D = 2; D2 = 3
        RD = {}
        for n in range(D): RD[n] = self.frag_reads(n); q.e(*RD[n])
        G, l = self.stage_dma(2); last.append(l)
        dma = Stream(G, every=1)
        s = Seq()
        s.e(f"v_readfirstlane_b32 s{sTAG}, v16", "v_permlane32_swap_b32 v48, v49", "v_permlane32_swap_b32 v50, v51", f"s_add_u32 s{sTAG}, s{sTAG}, {hex(TAGK)}",
            "v_add_f32 v48, v48, v49", "v_add_f32 v50, v50, v51", f"s_or_b32 s{sTAG}, s{sTAG}, 1", f"v_mov_b32 v54, s{sTAG}",
            "v_permlane16_swap_b32 v48, v50", "v_add_f32 v48, v48, v50", f"v_mov_b32 v251, s{sTAG}")
        for k in (8, 4, 2, 1): s.e(f"v_add_f32_dpp v48, v48, v48 row_ror:{k} row_mask:0xf bank_mask:0xf")
        s.e("v_mov_b32 v49, v48", "v_permlane16_swap_b32 v48, v49",
            f"v_mul_f32 v48, {fh(1/512)}, v48", f"v_mul_f32 v49, {fh(1/512)}, v49", "v_fma_f32 v49, -v48, v48, v49", "v_max_f32 v49, 0, v49",
            "v_cvt_pk_bf16_f32 v49, v49, v49", "v_lshlrev_b32 v49, 16, v49", f"v_add_f32 v49, {fh(1e-5)}, v49",
            "v_cvt_pk_bf16_f32 v49, v49, v49", "v_lshlrev_b32 v49, 16, v49", "v_sqrt_f32 v49, v49",
            "v_cvt_pk_bf16_f32 v53, -v48, -v48",
            "v_cvt_pk_bf16_f32 v49, v49, v49", "v_lshlrev_b32 v49, 16, v49", "v_rcp_f32 v52, v49")
        s.e(f"buffer_store_dwordx4 {vr(52)}, v{vSTS}, {srd(R_SY)}, 0 offen sc1")
        sA = Stream(groups(s), start=4 * (c.stat_at + 1), dl=4 * c.stat_at + 28)
        s = Seq()
        if not (c.boot and c.boot_late): self.consts_late(s)
        self.ssm_consts(s)
        sC_ = Stream(groups(s), dl=c.gather_at - 1)
        gl_ = [I(f"buffer_load_dwordx3 {vr(40,3)}, v{vGS}, {srd(R_SY)}, 0 offen sc1", "vm"), I(f"buffer_load_dwordx3 {vr(44,3)}, v{vGR}, {srd(R_SY)}, 0 offen sc1", "vm")]
        A = [gl_, ("nb", c.check_at), self.check("ga", gl_, self.tags([42, 46]))]
        s = Seq()
        s.e(f"v_mov_b32 v{MFR}, v41", f"v_mov_b32 v{MFR+2}, v41", "v_mov_b32 v42, v40", "v_mov_b32 v43, v40",
            f"s_lshl_b32 s{sT0}, s{sG}, 14", f"s_add_u32 s{sT0}, s{sT0}, {WS_AGG}",
            f"v_permlane32_swap_b32 v{MFR}, v{MFR+2}", "v_permlane32_swap_b32 v42, v43", f"v_mov_b32 v{MFR+1}, v{MFR}", f"v_mov_b32 v{MFR+3}, v{MFR+2}")
        A += groups(s)
        A.append([I(f"s_add_u32 s{R_AG}, s{R_SY}, s{sT0}"), I(f"s_addc_u32 s{R_AG+1}, s{R_SY+1}, 0"), I(f"s_movk_i32 s{R_AG+2}, 16384")])
        assert c.check_at >= 92
        sG_ = Stream(A, start=c.gather_at, dl=119)
        early = self.w2_dma(0, 2) + self.w2_dma(1, 2)
        self.xl = []; X = []
        for ii in range(4):
            self.xl.append(I(f"buffer_load_dwordx2 {vr(2+4*ii,2)}, v18, {srd(R_X)}, s{sK4} offen", "vm"))
            X.append([I(f"s_movk_i32 s{sK4}, {4096*ii}"), self.xl[-1]])
        X.append(("nb", 120))
        for ii in range(4):
            self.xl.append(I(f"buffer_load_dwordx2 {vr(4+4*ii,2)}, v34, {srd(R_SY)}, 0 offen offset:{64*ii} sc1", "vm")); X.append([self.xl[-1]])
        assert c.check_at < 116
        sX_ = Stream(X, start=106, dl=127, every=2)
        for n in range(32):
            p = n & 3
            b = self.fb(n); rd = RD[n]
            if (n + D) % 4 == 0:
                i = (n + D) // 4 - 1
                flush(q, [dma])
                q.wds_all()
                if i < 7: q.wvm(last[i + 1])
                q.e("s_barrier")
                if i in c.ts_stages: self.stamp(q)
                if i < 6:
                    G, l = self.stage_dma(i + 3); last.append(l)
                    if c.early_from <= i:
                        G = G + early[:c.early_n]; early = early[c.early_n:]
                    dma = Stream(G, every=2)
                if i == 6:
                    dma = Stream(early[:c.early_last], every=2); early = early[c.early_last:]
                if i == 7: csr = q.e(f"ds_read_b64 {vr(62,2)}, v{vGC+2}")
            if n >= c.pf_from and (n - c.pf_from) % c.pf_step == 0 and (n - c.pf_from) // c.pf_step * c.pf_n < 28:
                q.e(f"global_load_dword v10, v{vPF}, s[70:71] offset:{(n - c.pf_from) // c.pf_step * c.pf_n * 128}")
            if n == c.l2pf_at:
                q.e(f"s_lshr_b32 s{sT0}, s2, 3", f"s_lshl2_add_u32 s{sT1}, s{sT0}, s{sW}", f"s_mul_i32 s{sT1}, s{sT1}, {56*128}", f"s_mul_i32 s{sT2}, s{sXB}, {896*1024}",
                    f"s_add_u32 s{sT1}, s{sT1}, s{sT2}", f"v_min_u32 v240, 55, v{vL}", "v_lshlrev_b32 v240, 7, v240")
                q.e(f"buffer_load_dword v219, v240, {srd(R_W2)}, s{sT1} offen")
                q.e(f"s_lshl2_add_u32 s{sT1}, s{sT0}, s{sW}", f"s_lshl_b32 s{sT1}, s{sT1}, 12", f"s_lshl_b32 s{sT2}, s{sXB}, 9", f"s_add_u32 s{sT1}, s{sT1}, s{sT2}",
                    f"v_and_b32 v240, 3, v{vL}", f"v_bfe_u32 v241, v{vL}, 2, 2", "v_lshlrev_b32 v240, 7, v240", "v_lshl_add_u32 v240, v241, 10, v240")
                q.e(f"buffer_load_dword v219, v240, {srd(R_CRE)}, s{sT1} offen", f"buffer_load_dword v219, v240, {srd(R_CIM)}, s{sT1} offen")
            if n == c.pt_at:
                for v in (vFP, vAGS, vCSS): q.e(f"buffer_load_dword v219, v{v}, {srd(R_SY)}, 0 offen")
            if n == c.strow_at: q.e(*self.strows)
            nxt = []
            if n + D < 32: nxt = RD[n + D] = self.frag_reads(n + D)
            z = lambda a: ("0" if n == 0 else vr(a, 16))
            M = [f"{MF} {vr(ACC_F1,16)}, {vr(b+4)}, {ar(8*n)}, {z(ACC_F1)}", f"{MF} {vr(ACC_F1+16,16)}, {vr(b+4)}, {ar(8*n+4)}, {z(ACC_F1+16)}",
                 f"{MF} {vr(RE,16)}, {ar(8*n)}, {vr(b)}, {z(RE)}", f"{MF} {vr(IM,16)}, {ar(8*n+4)}, {vr(b)}, {z(IM)}"]
            sched = [2, 1, 1, 2]
            k = 0
            if c.s_first: M = M[2:] + M[:2]
            for j, m in enumerate(M):
                q.wds(rd[4]); q.e(m)
                mine = nxt[k:k + sched[j]]; k += sched[j]
                q.e(*mine)
                fill_gap(q, 4 * n + j, len(mine), c.cap1, [dma, sA, sG_, sC_, sX_])
                if n == 30 and j == 2:
                    q.e(f"s_mov_b32 s{sONES}, 0x07060302"); q.wds(csr)
                    q.e(f"v_add_f32 v{CS+1}, v{CS+1}, v63", f"v_add_f32 v{CS}, v{CS}, v62")
                corrF = [f"{MF8} {vr(ACC_F1+16*t,16)}, {vr(222,2)}, {vr(MFR+2*t,2)}, {vr(ACC_F1+16*t,16)}" for t in range(2)]
                corrS = [f"{MF8} {vr(RE+16*t,16)}, {vr(MFR+2*t,2)}, {vr(204,2)}, {vr(RE+16*t,16)}" for t in range(2)]
                if n == 30 and j == 3: self.split3(q, *((CS, 204) if c.s_first else (CS + 1, 222)))
                if n == 31 and j == 0: self.split3(q, *((CS + 1, 222) if c.s_first else (CS, 204)))
                if n == 31 and j == 1:
                    flush(q, [sG_])
                    q.e(*(corrS if c.s_first else corrF))
            if n == c.stat_at:
                q.wvm(self.small0, self.strows[1])
                for r in range(4):
                    q.e(f"v_dot2c_f32_bf16 v48, s{sONES}, v{40+r}", f"v_dot2c_f32_bf16 v49, s{sONES}, v{44+r}",
                        f"v_dot2c_f32_bf16 v50, v{40+r}, v{40+r}", f"v_dot2c_f32_bf16 v51, v{44+r}, v{44+r}")
            if p == 1:
                if dma.it: q.e(*dma.it.pop(0))
                for e in (n - 1, n + 1):
                    q.wds(RD[e][4]); be = self.fb(e)
                    for r in range(4):
                        q.e(f"v_dot2c_f32_bf16 v{CS}, s{sONES}, v{be+r}", f"v_dot2c_f32_bf16 v{CS+1}, s{sONES}, v{be+4+r}")
            if n == 29: q.e(f"ds_write_b64 v{vGC+1}, {vr(CS,2)}")
        q.e(*(corrF if c.s_first else corrS))
        self.stamp(q)
        G9, l = self.stage_dma(9); last.append(l)
        f, st = self.ffn_epi(ACC_F1, vHF1)
        q.e(f"v_mov_b32 v{CS}, s{sTAG}")
        st = [I(f"buffer_store_dwordx2 {vr(CS,2)}, v{vCSS}, {srd(R_SY)}, 0 offen sc1", "vm")] + st
        if not c.s_first: q.extend(merge(f, G9[:c.g9_pre]))
        s = Seq()
        for i in range(16): s.e(f"v_permlane16_swap_b32 v{RE+i}, v{IM+i}")
        cr, ci = RE, IM
        def scale(i): s.e(f"v_mul_f32_dpp v{RE+i}, v44, v{RE+i} row_newbcast:{i} row_mask:0xf bank_mask:0xf", f"v_mul_f32_dpp v{IM+i}, v44, v{IM+i} row_newbcast:{i} row_mask:0xf bank_mask:0xf")
        scale(0); scale(1)
        for i in range(1, 16):
            d = 48 if i & 1 else 46
            s.e(f"v_fma_f32 v{d}, v20, v{cr}, v{RE+i}", f"v_fma_f32 v{d+1}, v20, v{ci}, v{IM+i}")
            if i < 15: scale(i + 1)
            s.e(f"v_fma_f32 v{d}, -v21, v{ci}, v{d}", f"v_fma_f32 v{d+1}, v21, v{cr}, v{d+1}")
            cr, ci = d, d + 1
        q.extend(merge(s, G9 if c.s_first else [[x] for x in st] + G9[c.g9_pre:]))
        s = Seq()
        s.e("v_mov_b32 v50, v48", "v_mov_b32 v51, v49", f"v_mov_b32 v62, s{sTAG}", "v_mov_b32 v40, 0",
            "v_permlane32_swap_b32 v48, v50", "v_permlane32_swap_b32 v49, v51",
            "v_mov_b32 v52, v48", "v_mov_b32 v54, v50", "v_mov_b32 v53, v49", "v_mov_b32 v55, v51",
            "v_permlane16_swap_b32 v48, v52", "v_permlane16_swap_b32 v50, v54", "v_permlane16_swap_b32 v49, v53", "v_permlane16_swap_b32 v51, v55", "v_mov_b32 v41, 0")
        self.cmul_acc(s, 50, 22, 48, 50); self.cmul_acc(s, 52, 22, 50, 52); self.cmul_acc(s, 60, 22, 52, 54)
        s.e(f"buffer_store_dwordx4 {vr(60)}, v{vAGS}, {srd(R_SY)}, 0 offen sc1")
        q.extend(s)
        self.stamp(q)
        q.wvm(last[8]); q.e("s_barrier")
        for e in range(32, 32 + D2):
            RD[e] = self.frag_reads(e); q.e(*RD[e])
        if c.s_first:
            q.e(st[0]); q.extend(f[:24]); q.e(st[1]); q.extend(f[24:36]); q.e(st[2]); q.extend(f[36:]); q.e(st[3])
        cl_ = I(f"buffer_load_dwordx2 {vr(CS,2)}, v{vGC}, {srd(R_SY)}, 0 offen sc1", "vm")
        S1 = []
        for j in range(1, 4):
            S1.append([I(f"v_cmp_eq_u32 vcc, {j}, v32"), I(f"v_cndmask_b32 v40, v40, v{46+2*j}, vcc"), I(f"v_cndmask_b32 v41, v41, v{47+2*j}, vcc")])
        s = Seq()
        for i in range(16):
            s.e(f"v_mul_f32 v46, v31, v{IM+i}", f"v_mul_f32 v{IM+i}, v30, v{IM+i}", f"v_fmac_f32 v{IM+i}, v31, v{RE+i}", f"v_fma_f32 v{RE+i}, v30, v{RE+i}, -v46")
        sS1 = Stream(S1 + groups(s))
        self.fa = I(f"buffer_load_dword v{vFP}, v36, {srd(R_SY)}, 0 offen sc1", "vm")
        for g in S1[:3]: q.e(*g)
        sS1.it = sS1.it[3:]
        self.lb = [I(f"buffer_load_dwordx3 {vr(LBR+4*t,3)}, v{vLBK}, {srd(R_AG)}, 0 offen offset:{512*t} sc1", "vm") for t in range(8)]
        assert len(early) % 2 == 0 and len(early) <= 8
        sR0 = Stream(self.w2_reads(0) + [("nb", 18)] + self.w2_reads(1), start=c.r0_at, dl=c.lb_at - 1)
        W = early + self.w2_dma(2, 2)
        if c.s_first: q.e(st[4])
        W2_ = self.after_reads(0, self.w2_dma(3)) + self.w2_dma(5) + self.after_reads(1, self.w2_dma(4))
        lbg = [self.lb[k:k + c.lb_grp] for k in range(0, 8, c.lb_grp)]
        fA = [[cl_] + self.flag_store(0, st[-1])]
        if c.b_at < 64:
            W = W[:c.w2_first] + [("nb", c.lb_at)] + lbg + fA + W[c.w2_first:] + W2_[:c.w2_n2] + [("nb", c.w2_at3)] + W2_[c.w2_n2:]
            sLB_ = Stream([])
        else:
            sR0.dl = c.w2_at2
            W = W[:c.w2_first] + [("nb", c.w2_at2)] + fA + W[c.w2_first:] + W2_[:c.w2_n2] + [("nb", 64)] + W2_[c.w2_n2:]
            sLB_ = Stream(lbg, start=c.lb_at, every=2)
        sW2 = Stream(W, every=2)
        _, B, self.ssm_last = self.ssm_part2()
        if c.b_at < 64: sS1.dl = c.b_at - 1
        sB2 = Stream(B[:-1], start=c.b_at); self.hst = B[-1]
        sBase = Stream(self.base_stream(), start=64)
        K9 = 16 - D2
        for n in range(32, 64):
            k = n - 32
            b = self.fb(n)
            if k == K9:
                q.wds_all(); q.wvm(last[9]); q.e("s_barrier")
            nxt = RD[n + D2] = self.frag_reads(n + D2)
            for t in range(2):
                d = ACC_F2 + 16 * t
                q.wds(RD[n][-1])
                q.e(f"{MF} {vr(d,16)}, {vr(b+4)}, {ar(8*k+4*t)}, {'0' if k == 0 else vr(d,16)}")
                q.e(*nxt[t:t+1])
                fill_gap(q, 2 * k + t, 1.25, c.cap2, [sLB_, sW2, sR0, sS1, sB2, sBase])
                if k == 30 and t == 0: q.extend(self.check("c2", [cl_], self.tags([CS])))
                if k == 30 and t == 1: self.split3(q, CS + 1, 222)
        for t in range(2): q.e(f"{MF8} {vr(ACC_F2+16*t,16)}, {vr(222,2)}, {vr(MFR+2*t,2)}, {vr(ACC_F2+16*t,16)}")
        self.stamp(q)
        self.left = (sW2.rest(), sS1.rest(), sR0.rest(), sLB_.rest(), sB2.rest())
        self.base_left = sBase.rest()

    def ssm_part2(self):
        RE, IM = ACC_S, ACC_S + 16
        LB = LBR
        lb = self.lb
        pr_ = [48, 50, 56, 58, 60, 62, 70, sM]
        test = [f"v_cmp_eq_u32 s[{pr_[t]}:{pr_[t]+1}], s{sTAG}, v{LB+4*t+2}" for t in range(8)]
        test += [f"s_bcnt1_i32_b64 s{pr_[t]}, s[{pr_[t]}:{pr_[t]+1}]" for t in range(8)]
        test += [f"s_add_u32 s{pr_[0]}, s{pr_[0]}, s{pr_[t]}" for t in range(1, 8)]
        test.append(f"s_cmp_lg_u32 s{pr_[0]}, s{sNV}")
        B = [self.check("lb", lb, test)]
        q = Seq()
        self.stamp(q)
        for t in range(6, -1, -1): self.cmul_acc(q, LB + 4 * t, 24, LB + 4 * (t + 1), LB + 4 * t)
        self.cmul(q, 62, 28, LB)
        for sw in ("16", "32"):
            q.e("v_mov_b32 v60, v62", "v_mov_b32 v61, v63", f"v_permlane{sw}_swap_b32 v60, v62", f"v_permlane{sw}_swap_b32 v61, v63",
                "v_add_f32 v62, v60, v62", "v_add_f32 v63, v61, v63")
        self.cmul_acc(q, 60, 26, 62, 40)
        self.cmul(q, 62, 30, 60)
        self.nB1 = len(groups(q)) + 1
        pr, pi_ = 62, 63
        for i in range(16):
            q.e(f"v_fma_f32 v{RE+i}, v20, v{pr}, v{RE+i}", f"v_fma_f32 v{IM+i}, v20, v{pi_}, v{IM+i}",
                f"v_fma_f32 v{RE+i}, -v21, v{pi_}, v{RE+i}", f"v_fma_f32 v{IM+i}, v21, v{pr}, v{IM+i}")
            pr, pi_ = RE + i, IM + i
            if i & 1:
                j = i >> 1
                q.e(f"v_cvt_pk_bf16_f32 v{44+j}, v{RE+2*j}, v{RE+2*j+1}", f"v_cvt_pk_bf16_f32 v{52+j}, -v{IM+2*j}, -v{IM+2*j+1}")
            if i == 7:
                q.e(f"ds_write_b128 v{vTW}, {vr(44)}", f"ds_write_b128 v{vTW}, {vr(52)} offset:2048")
        q.e(f"ds_write_b128 v{vTW+1}, {vr(48)}", f"ds_write_b128 v{vTW+1}, {vr(56)} offset:2048")
        q.e(f"v_xor_b32 v61, {512|32}, v{vTD}", f"v_xor_b32 v62, 64, v{vTD}", "v_xor_b32 v63, 64, v61", f"s_movk_i32 s{sT1}, 8192")
        ad = {(0, 0): vTD, (0, 1): 61, (1, 0): 62, (1, 1): 63}
        for part in range(2):
            for mu in range(2):
                for e in range(2):
                    tr = q.e(f"ds_read_b64_tr_b16 {vr(64 + 8*part + 4*mu + 2*e,2)}, v{ad[mu, e]} offset:{2048*part}")
        B += groups(q)
        st = [I(f"buffer_store_dwordx4 {vr(64+8*part+4*mu)}, v{vHS}, {srd(R_SY)}, {('0', f's{sT1}')[part]} offen offset:{1024*mu} sc1", "vm") for part in range(2) for mu in range(2)]
        w = Seq(); w.wds(tr)
        B.append(list(w) + st)
        return lb, B, st[-1]

    def base_stream(self):
        f = Seq()
        T = 88; D = 20; r = 24
        f.wvm(self.xl[-1])
        f.e(f"v_lshlrev_b32 v{D}, 16, v38", f"v_and_b32 v{D+1}, 0xffff0000, v38", f"v_lshlrev_b32 v{D+2}, 16, v39", f"v_and_b32 v{D+3}, 0xffff0000, v39")
        for ii in range(4):
            b = BASE + 4 * ii
            f.e(f"v_mov_b32 v{r}, v{b+2}", f"v_lshlrev_b32 v{r+1}, 16, v{b+3}",
                f"v_lshlrev_b32 v{b+2}, 16, v{b+1}", f"v_and_b32 v{b+3}, 0xffff0000, v{b+1}", f"v_and_b32 v{b+1}, 0xffff0000, v{b}", f"v_lshlrev_b32 v{b}, 16, v{b}")
            for e in range(4): f.e(f"v_add_f32 v{T+e}, v{b+e}, v{r+1}")
            def rnd():
                f.e(f"v_cvt_pk_bf16_f32 v{T+4}, v{T}, v{T+1}", f"v_cvt_pk_bf16_f32 v{T+5}, v{T+2}, v{T+3}",
                    f"v_lshlrev_b32 v{T}, 16, v{T+4}", f"v_and_b32 v{T+1}, 0xffff0000, v{T+4}", f"v_lshlrev_b32 v{T+2}, 16, v{T+5}", f"v_and_b32 v{T+3}, 0xffff0000, v{T+5}")
            rnd()
            for e in range(4): f.e(f"v_mul_f32 v{T+e}, v{T+e}, v{r}")
            rnd()
            for e in range(4): f.e(f"v_mul_f32 v{T+e}, v{T+e}, v{D+e}")
            rnd()
            for e in range(4): f.e(f"v_add_f32 v{b+e}, v{b+e}, v{T+e}")
        return groups(f)

    def phase2(self, q):
        c = self.c
        NR = c.nring; ak = c.akept; NT = c.ntail; LEAD = c.lead
        assert ak % 2 == 0 and ak <= 8 and NR >= LEAD + NT - 1 and NR <= 10
        wl, sl, rl, ll, B = self.left
        ssm_last = self.ssm_last
        for g in sl + rl: q.e(*g)
        f, st2 = self.ffn_epi(ACC_F2, vHF2)
        q.extend(merge(f, [[self.fa]] + ll + wl[:c.left_pre], start=0))
        wl = wl[c.left_pre:]
        k = c.b_mid
        q.e(st2[0])
        if any(x.kind == "label" for x in B[0]):
            q.e(st2[1]); st2 = st2[1:]; q.e(*B.pop(0))
        f = Seq()
        for g in B[:k]: f.e(*g)
        q.extend(merge(f, [[x] for x in st2[1:]], end=min(len(f), 40)))
        B = B[k:] + [self.hst]
        if len(B) == 1: q.e(*B.pop())
        self.stamp(q)
        q.extend(self.check("fa", [self.fa], self.tags([vFP], 0xff)))
        self.stamp(q)
        ACC = (96, 160)
        steps = [(0, j) for j in range(8)] + [(1, j) for j in range(ak)] + [(0, j) for j in range(8, 22)] + [(1, j) for j in range(ak, 22)]
        firstB = 8 + ak; sent_done = firstB + 13
        ld = {}
        def issue(n):
            ps, j = steps[n]
            a = 176 + 8 * (n % NR)
            blk = (sB0, sB1)[ps]
            g = []
            if j % 2 == 0:
                if j < 14:
                    pc = (0, 1, 2, 5)[j // 4]
                    if j % 4 == 2 and steps[n-1] == (ps, j - 1): g.append(I(f"s_xor_b32 s{sKW}, s{sKW}, 4096"))
                    else:
                        g.append(I(f"s_add_u32 s{sKW}, s{blk}, s{UO[pc]}"))
                        if j % 4: g.append(I(f"s_xor_b32 s{sKW}, s{sKW}, 4096"))
                elif j == 14: g.append(I(f"s_add_u32 s{sKW}, s{blk}, s{sHS}"))
                elif j == 18: g += [I(f"s_xor_b32 s{sKW}, s{sHS}, 8192"), I(f"s_add_u32 s{sKW}, s{sKW}, s{blk}")]
                else: g.append(I(f"s_xor_b32 s{sKW}, s{sKW}, 4096"))
            o = 2048 * (j % 2)
            ld[n, 0] = I(f"buffer_load_dwordx4 {ar(a)}, v33, {srd(R_SY)}, s{sKW} offen offset:{o} sc1", "vm")
            ld[n, 1] = I(f"buffer_load_dwordx4 {ar(a+4)}, v33, {srd(R_SY)}, s{sKW} offen offset:{o+1024} sc1", "vm")
            return [g + [ld[n, 0]], [ld[n, 1]]]
        order = []
        n = 0
        while n < 44:
            if n in (sent_done + 1 - NT, 44 - NT):
                for k in range(4): order += [(m, k) for m in range(n, n + NT)]
                n += NT
            else:
                order += [(n, k) for k in range(4)]; n += 1
        pos = {e: i for i, e in enumerate(order)}
        L0 = c.lead0
        f = Seq()
        for g in B[:-1]: f.e(*g)
        q.extend(merge(f, [g for n in range(L0) for g in issue(n)]))
        if B: q.e(*B[-1])
        if c.flagB_at < 0: q.extend(self.flag_store(1, ssm_last))
        fs = I(f"buffer_load_dword v{vFP}, v36, {srd(R_SY)}, 0 offen offset:128 sc1", "vm")
        st = Seq(); self.stamp(st)
        gate = 4 * firstB - c.gate_lead
        L = []
        for n in range(L0, 44):
            nb = max(4 * (n - LEAD), 0)
            nb = min(nb, max(4 * (n - c.lead2), c.fast_from))
            if n >= NR: nb = max(nb, max(pos[n - NR, k] for k in range(4)))
            if n >= firstB: nb = max(nb, gate)
            if firstB < n < firstB + c.burst:
                assert nb <= gate
                L[-1] += [x for g in issue(n) for x in g]; continue
            L.append(("nb", nb))
            if n == firstB: L.append(self.check("fs", [fs], self.tags([vFP], 0xffff)) + list(st) + [x for g in issue(n) for x in g])
            else: L += issue(n)
        sL = Stream(L, every=2)
        P = ([("nb", c.flagB_at)] + [self.flag_store(1, ssm_last)] if c.flagB_at >= 0 else []) + [("nb", gate - c.fs_lead), [fs]]
        sP = Stream(P, dl=gate - 1)
        Wc = self.w2_reads(2) + [("nb", c.flagB_at + 1)] + wl + self.w2_reads(5) + [("nb", c.rc_at)]
        Wc += self.w2_reads(3) + self.w2_reads(4)
        d_c = 4 * (firstB + 3)
        sWc = Stream(Wc, start=1, dl=d_c, every=c.wc_every)
        sB = Stream(self.base_left)
        XV = 64; TB = 80
        s = Seq()
        if c.xbf:
            for k in range(3): s.e(f"v_mov_b32 v{XV+4*k+3}, s{sTAG}")
        else:
            s.e(f"v_mov_b32 v{TB}, s{sTAG}")
            for k in range(1, 4): s.e(f"v_lshrrev_b32 v{TB+k}, {8*k}, v{TB}")
        s.e(f"s_movk_i32 s{sT2}, 0xff")
        R0 = [("nb", d_c + 6)] + groups(s)
        def tile(k): return (k & 1, k >> 1)
        def red_write(ps, lastn):
            out = []
            for k in range(4):
                nu, mu = tile(k)
                out.append(("nb", pos[lastn, k] + 2))
                for g4 in range(4):
                    out.append([I(f"ds_write_b128 v{vRW+g4}, {vr(ACC[ps] + 32*nu + 16*mu + 4*g4)} offset:{128*nu + 8192*mu}", "ds")])
            return out
        def red_read(s, dst):
            return [s.e(f"ds_read_b128 {vr(dst + 16*ii + 4*src)}, v{vRR} offset:{1024*ii + 16384*src}") for ii in range(4) for src in range(4)]
        s = Seq()
        s.wds_all(); s.e("s_barrier")
        R = red_read(s, 96)
        for g4 in range(4): s.e(f"v_subrev_u32 v{vRW+g4}, {L_SP}, v{vRW+g4}")
        Ga = groups(s); s = Seq()
        NS = 3 if c.xbf else 4
        if c.red_bare:
            for ii in range(4):
                s.wds(R[4 * ii + 3])
                s0 = 96 + 16 * ii; d = XV + 4 * ii
                for e in range(2):
                    s.e(f"v_pk_add_f32 {vr(s0+2*e,2)}, {vr(s0+2*e,2)}, {vr(s0+4+2*e,2)}", f"v_pk_add_f32 {vr(s0+8+2*e,2)}, {vr(s0+8+2*e,2)}, {vr(s0+12+2*e,2)}")
                for e in range(2): s.e(f"v_pk_add_f32 {vr(s0+2*e,2)}, {vr(s0+2*e,2)}, {vr(s0+8+2*e,2)}")
                if c.xbf:
                    for e in range(2):
                        k = 2 * ii + e
                        s.e(f"v_cvt_pk_bf16_f32 v{XV + (k // 3) * 4 + k % 3}, v{s0+2*e}, v{s0+2*e+1}")
                    if ii: s.e(f"buffer_store_dwordx4 {vr(XV+4*(ii-1))}, v{vXS}, {srd(R_SY)}, 0 offen offset:{1024*(ii-1)} sc1")
                else:
                    for e in range(4): s.e(f"v_bfi_b32 v{d+e}, s{sT2}, v{TB+e}, v{s0+e}")
                    s.e(f"buffer_store_dwordx4 {vr(d)}, v{vXS}, {srd(R_SY)}, 0 offen offset:{1024*ii} sc1")
            s.e(f"v_subrev_u32 v{vRR}, {L_SP}, v{vRR}")
            Gb = []
        else:
            for ii in range(4):
                s.wds(R[4 * ii + 3])
                for e in range(4):
                    d = XV + 4 * ii + e; s0 = 96 + 16 * ii + e
                    s.e(f"v_add_f32 v{s0}, v{s0}, v{s0+4}", f"v_add_f32 v{d}, v{s0+8}, v{s0+12}", f"v_add_f32 v{d}, v{d}, v{s0}",
                        f"v_bfi_b32 v{d}, s{sT2}, v{TB+e}, v{d}")
            s.e(f"v_subrev_u32 v{vRR}, {L_SP}, v{vRR}")
            Gb = groups(s)
            s = Seq()
            for k in range(4): s.e(f"buffer_store_dwordx4 {vr(XV+4*k)}, v{vXS}, {srd(R_SY)}, 0 offen offset:{1024*k} sc1")
        self.stamp(s)
        e0 = 4 * (sent_done + 1)
        XR = 40
        xl = [I(f"buffer_load_dwordx4 {vr(XR+4*k)}, v{vXR}, {srd(R_SY)}, 0 offen offset:{1024*k} sc1", "vm") for k in range(NS)]
        sR = Stream(R0 + red_write(0, sent_done) + [("nb", e0 + c.bar_lag)] + Ga + [("nb", e0 + c.bar_lag + c.add_lag)] + Gb + [("nb", 4 * c.send_at)] + [list(s)]
                    + red_write(1, 43), wev=c.wev)
        sX = Stream([[x] for x in xl], start=c.xl_at, every=2)
        q.wds(self.w2_rd[1])
        emitted = set(id(x) for x in q)
        for gi, (n, k) in enumerate(order):
            ps, j = steps[n]; nu, mu = tile(k)
            a = 176 + 8 * (n % NR); d = ACC[ps] + 32 * nu + 16 * mu
            while not any(ld[n, mu] is x for x in q[-400:]):
                g = sL.it.pop(0)
                if not isinstance(g, tuple): q.e(*g)
            q.wvm(ld[n, mu])
            if n == firstB: q.wds(self.w2_rd[2])
            if n == firstB + 4: q.wds(self.w2_rd[5])
            if n == firstB + 6: q.wds(self.w2_rd[4])
            if k == 0 and n in c.p2stamps: self.stamp(q)
            q.e(f"v_mfma_f32_32x32x16_bf16 {vr(d,16)}, {ar(8*j+4*nu)}, {ar(a+4*mu)}, {'0' if j == 0 else vr(d,16)}")
            sL.every = 1.5 if c.fast_from <= gi < c.fast_to else 2
            fill_gap(q, gi, 0.5, c.cap4 if gi >= e0 else c.cap3, [sP, sL, sWc, sR, sX, sB])
        self.stamp(q)
        flush(q, [sR, sX, sB])
        pre = [f"s_mov_b32 s{sT0}, 0x0c0c0400", f"s_mov_b32 s{sT1}, 0x05040100"]
        for k in range(4):
            r = XR + 4 * k
            pre += [f"v_perm_b32 v60, v{r+1}, v{r}, s{sT0}", f"v_perm_b32 v61, v{r+3}, v{r+2}, s{sT0}", f"v_perm_b32 v{56+k}, v61, v60, s{sT1}"]
        def recv():
            if c.xbf:
                q.extend(self.check("xc", xl, self.tags([XR + 4 * k + 3 for k in range(3)])))
                self.stamp(q)
                for k in range(8):
                    r = XR + (k // 3) * 4 + k % 3
                    q.e(f"v_lshlrev_b32 v{64+2*k}, 16, v{r}", f"v_and_b32 v{65+2*k}, 0xffff0000, v{r}")
                for e in range(8): q.e(f"v_pk_add_f32 {vr(BASE+2*e,2)}, {vr(BASE+2*e,2)}, {vr(64+2*e,2)}")
                return
            q.extend(self.check("xc", xl, pre + self.tags([56 + k for k in range(4)])))
            self.stamp(q)
            for e in range(16): q.e(f"v_and_b32 v{XR+e}, 0xffffff00, v{XR+e}")
            for e in range(8): q.e(f"v_pk_add_f32 {vr(BASE+2*e,2)}, {vr(BASE+2*e,2)}, {vr(XR+2*e,2)}")
        if c.recv_early: recv()
        q.wds_all(); q.e("s_barrier")
        R = red_read(q, 96)
        if not c.recv_early: recv()
        for ii in range(4):
            s0 = 96 + 16 * ii
            q.wds(R[4 * ii + 1])
            for e in range(2): q.e(f"v_pk_add_f32 {vr(s0+2*e,2)}, {vr(s0+2*e,2)}, {vr(BASE+4*ii+2*e,2)}")
            for e in range(2): q.e(f"v_pk_add_f32 {vr(s0+2*e,2)}, {vr(s0+2*e,2)}, {vr(s0+4+2*e,2)}")
            q.wds(R[4 * ii + 3])
            for e in range(2): q.e(f"v_pk_add_f32 {vr(s0+8+2*e,2)}, {vr(s0+8+2*e,2)}, {vr(s0+12+2*e,2)}")
            q.e(f"s_movk_i32 s{sT0}, {8192*ii}")
            for e in range(2): q.e(f"v_pk_add_f32 {vr(s0+2*e,2)}, {vr(s0+2*e,2)}, {vr(s0+8+2*e,2)}")
            q.e(f"buffer_store_dwordx4 {vr(s0)}, v19, {srd(R_OUT)}, s{sT0} offen {c.ost}")
        q.e(f"s_lshl_b32 s{sT0}, s{sG}, 2", f"s_or_b32 s{sT0}, s{sT0}, s{sW}", f"s_lshl_b32 s{sT0}, s{sT0}, 4", f"s_or_b32 s{sT0}, s{sT0}, s{sC}",
            f"s_cmp_eq_u32 s{sT0}, 15", "s_cbranch_scc0 L_nobump", "v_mov_b32 v57, 0", "s_mov_b64 exec, 1")
        q.e(f"buffer_store_dword v251, v57, {srd(R_SY)}, 0 offen sc1")
        q.e("s_mov_b64 exec, -1")
        q.label("L_nobump")

    def write_ts(self, q):
        if not self.c.ts: return
        q.wds_all(); q.wvm_all()
        q.e("s_memtime s[46:47]", "s_memrealtime s[92:93]"); q.wds_all()
        q.e(f"s_lshl_b32 s{sT0}, s2, 2", f"s_add_u32 s{sT0}, s{sT0}, s{sW}", f"s_lshl_b32 s{sT0}, s{sT0}, 6", f"s_add_u32 s{sT0}, s{sT0}, {WS_TS}", "v_mov_b32 v2, 0")
        q.e("s_mov_b64 exec, 1")
        def put(k): q.e(f"buffer_store_dword v3, v2, {srd(R_SY)}, s{sT0} offen offset:{4*k}")
        for k in range(self.nts + 2):
            if k == 0: q.e("v_mov_b32 v3, v255")
            elif k == self.nts + 1: q.e("s_sub_u32 s46, s46, s42", "v_mov_b32 v3, s46")
            else:
                r = TSREG[k - 1]; q.e(f"s_sub_u32 s{r}, s{r}, s42", f"v_mov_b32 v3, s{r}")
            put(k)
        q.e("v_mov_b32 v3, s92"); put(15)
        q.wvm_all()

    def add_prof(self, q):
        lo, step = self.c.prof
        out = Seq(); unsafe = False; started = False; acc = 0; n = 0; idx = 0; nm = 0
        NP = len(TSREG)
        self.prof_pts = []
        for ins in q:
            t = ins.t
            if started and not unsafe and n < 64 and idx >= lo and acc >= step and ins.kind not in WAITK and not t.startswith(("s_cbranch", "s_branch", "s_cselect", "s_addc")) and ins.kind != "label":
                r = TSREG[n % NP]
                if n >= NP: out.e(f"v_writelane_b32 v0, s{r}, {n - NP}")
                out.e(f"s_memtime s[{r}:{r+1}]"); self.prof_pts.append((idx, nm, t[:50])); n += 1; acc = 0
            out.append(ins)
            if t == "s_barrier": started = True
            if started and ins.kind != "label":
                idx += 1; acc += 1
                if t.startswith("v_mfma"): nm += 1
            if t.startswith("s_cbranch"): unsafe = started
            if ins.kind == "label" and (t.endswith("_ok:") or t.startswith("L_nobump")): unsafe = False
        out.wds_all()
        for k in range(max(0, n - NP), n): out.e(f"v_writelane_b32 v0, s{TSREG[k % NP]}, {k}")
        out.e(f"s_lshl_b32 s{sT0}, s2, 2", f"s_add_u32 s{sT0}, s{sT0}, s{sW}", f"s_lshl_b32 s{sT0}, s{sT0}, 8", f"s_add_u32 s{sT0}, s{sT0}, {WS_TS + 65536}",
              "v_subrev_u32 v0, s42, v0", f"v_lshlrev_b32 v2, 2, v{vL}")
        out.e(f"buffer_store_dword v0, v2, {srd(R_SY)}, s{sT0} offen")
        return out

    def build(self):
        q = Seq()
        q.label("L_start")
        last = self.prologue(q)
        self.phase1(q, last)
        self.phase2(q)
        if self.c.prof: q = self.add_prof(q)
        self.write_ts(q)
        if self.c.spin_to:
            q.e("s_waitcnt lgkmcnt(0)")
            if self.c.spin_x >= 0: q.e("s_and_b32 s46, s2, 7", f"s_cmp_eq_u32 s46, {self.c.spin_x}", "s_cbranch_scc0 L_end")
            if self.c.probe: q.e("s_sub_u32 s68, s68, s42", f"s_add_u32 s68, s68, {self.c.spin_to}")
            else: q.e(f"s_mov_b32 s68, {self.c.spin_to}")
            q.label("L_spin")
            q.e("s_memrealtime s[46:47]", "s_waitcnt lgkmcnt(0)", "s_sub_u32 s46, s46, s42", "s_cmp_lt_u32 s46, s68", "s_cbranch_scc1 L_spin")
        q.label("L_end")
        q.e("s_endpgm")
        q.extend(self.ool)
        return finalize(q)

HDR = """; @launch grid=(256,1,1) block=(256,1,1) lds=163840
.amdgcn_target "amdgcn-amd-amdhsa--gfx950"
.text
.globl {n}_kernel
.p2align 8
.type {n}_kernel,@function
{n}_kernel:
"""
TAIL = """
.section .rodata,"a"
.p2align 6
.amdhsa_kernel {n}_kernel
  .amdhsa_next_free_vgpr 512
  .amdhsa_next_free_sgpr 102
  .amdhsa_accum_offset 256
  .amdhsa_group_segment_fixed_size 0
  .amdhsa_kernarg_size 120
  .amdhsa_user_sgpr_count 2
  .amdhsa_user_sgpr_kernarg_segment_ptr 1
  .amdhsa_system_sgpr_workgroup_id_x 1
.end_amdhsa_kernel
"""
def generate(cfg):
    g = Gen(cfg)
    body = g.build()
    return HDR.format(n=NAME) + "\n".join(("" if l.endswith(":") else "    ") + l for l in body) + TAIL.format(n=NAME), g

if __name__ == "__main__":
    cfg = Cfg()
    for a in sys.argv[2:]:
        k, v = a.split("=", 1); assert hasattr(cfg, k), k; setattr(cfg, k, eval(v))
    txt, g = generate(cfg)
    open(sys.argv[1], "w").write(txt)
```

```python
import sys, struct
from asmlib import *

NAME = "parallel_sum__ssm_conv_s5__dense_activation_relu__prompt"
def f2u(x): return struct.unpack("<I", struct.pack("<f", x))[0]
def fh(x): return hex(f2u(x))

WS_CS   = 262144
WS_FLAG = 524288
WS_STAT = 786432
WS_AGG  = 1 << 20
WS_XCH  = 2 << 20
WS_TS   = (7 << 20) + (1 << 19)
WS_H    = 8 << 20
HBLK = 88 * 2048
WS_END = WS_H + 64 * HBLK
TAGK = 0x9E3779B9
OOB = 0x40000000

sCO, sW, sWM, sWN, sC, sG, sGL, sU0, sORD, sXB, sT0, sT1, sT2 = 3, 4, 5, 6, 7, 8, 9, 10, 11, 12, 13, 14, 15
P_X, P_LRE, P_LIM, P_BRE, P_BIM, P_CRE, P_CIM, P_LDT = 16, 18, 20, 22, 24, 26, 28, 30
P_DSK, P_W1, P_W2, P_OUT, P_WS = 32, 36, 38, 40, 44
sU1, sK4 = 34, 35
sM = 46
R_X, R_BS, R_W1A, R_W1B, R_W2, R_CRE, R_CIM, R_OUT, R_SY = 48, 52, 56, 60, 72, 76, 80, 84, 88
R_AG = R_BS
sB0, sB1, sHS, sNV = 64, 65, 66, 67
sUO = 32
UO = {0: 32, 1: 33, 2: 100, 5: 101}
sKX, sKW, sLB, sONES, sTAG, sPOLL, sLE, sW2O = 92, 93, 94, 95, 96, 97, 98, 99
TSREG = [16, 18, 20, 22, 24, 26, 28, 30, 36, 38, 40, 68]
def srd(r): return f"s[{r}:{r+3}]"

vL = 1
BASE = 2
ACC_S, ACC_F1, ACC_F2 = 64, 96, 128
FR = 160
RA, RS, RF = 176, 180, 184
vX, vB, vW = 200, 204, 206
vSTS, vCSS, vGS, vGC, vPF, vAGS, vHF1, vHF2, vGR = 208, 209, 210, 211, 214, 215, 216, 217, 218
CS = 220
vW2, vC2, vTR, vCR, vTA, vLBK, vFP, vHS, vFL, vXS, vXR, vRW, vRR, vTW, vTD = 224, 228, 232, 233, 234, 238, 239, 242, 243, 244, 245, 246, 250, 252, 254
def vr(a, n=4): return f"v[{a}:{a+n-1}]"
def ar(a, n=4): return f"a[{a}:{a+n-1}]"

LBR = 96
SLOT = 32768; WBLK = 8192
L_SP = 98304; SPW = 16384
L_CS = 0

class Cfg:
    ts = False; ts_stages = (); ts_max = 12; ts_min = 0; prof = None; p2stamps = ()
    order = "xa"
    pf_from = 2; pf_n = 28; pf_step = 12
    early_from = 1; early_n = 2; early_last = 6
    cap1 = 5.5; cap2 = 5.5; cap3 = 5
    stat_at = 2; gather_at = 86; check_at = 108
    w2_first = 8; w2_at2 = 24; w2_n2 = 12; w2_at3 = 64; fa_late = False; lb_at = 50; lb_grp = 2; left_pre = 0; g9_pre = 4; r0_at = 10; b_at = 64; b_mid = 60; lb_every = 1; rc_at = 40
    akept = 6; nring = 10; lead = 6; ntail = 4
    lead0 = 4; flagB_at = 15; fs_lead = 4; gate_lead = 20; wc_every = 2; burst = 1
    bar_lag = 7; send_at = 0; xl_at = 164; wev = 1
    poll_sleep = 1
    probe = 0
    hs = 'sc1'; prest = {}
    lead2 = 10; fast_from = 96; fast_to = 140; recv_early = False; red_bare = True; xbf = False
    s_first = True
    boot = 0; boot_late = True; boot_bar = True
    spin_x = -1
    add_lag = 4; cap4 = 8
    l2pf_at = 99; pt_at = 2
    hrot = True
    nt_upto = 0; nt_srd = (48, 52, 56, 60)
    strow_at = -2
    spin_to = 0
    ost = 'nt'

def mk_srd(q, r, p, size):
    q.e(f"s_mov_b32 s{r}, s{p}", f"s_and_b32 s{r+1}, s{p+1}, 0xffff", f"s_mov_b32 s{r+2}, {size}", f"s_mov_b32 s{r+3}, 0x20000")

WAITK = ("wvm", "wds", "wvm0", "wds0")
def groups(seq):
    G = []; cur = []
    for ins in seq:
        cur.append(ins)
        if ins.kind not in WAITK and not ins.t.startswith(("v_cmp", "s_cmp")):
            G.append(cur); cur = []
    if cur: G.append(cur)
    return G
def cost(g):
    c = 0
    for i in g:
        if i.kind == "label": continue
        if i.kind in WAITK: c += 0.5
        elif i.t.startswith(TRANS): c += 2
        elif i.t.startswith("ds_write_b128"): c += 3
        else: c += 1
    return c

class Stream:
    def __init__(self, items, start=0, dl=None, every=1, wev=1):
        self.it = list(items); self.nb = start; self.dl = dl; self.every = every; self.wev = wev
    def ready(self, gap):
        while self.it and isinstance(self.it[0], tuple):
            self.nb = max(self.nb, self.it.pop(0)[1])
        return bool(self.it) and gap >= self.nb
    def pop(self, gap):
        g = self.it.pop(0)
        if self.every > 1 and any(i.kind == "vm" for i in g): self.nb = gap + int(self.every)
        if any(i.t.startswith("ds_write_b128") for i in g): self.nb = gap + self.wev
        return g
    def rest(self):
        r = [g for g in self.it if not isinstance(g, tuple)]; self.it = []; return r

def fill_gap(q, gap, used, cap, streams):
    for s in streams:
        if s.dl is not None and gap >= s.dl:
            for g in s.rest(): q.e(*g); used += cost(g)
    for s in streams:
        while s.ready(gap) and (used + cost(s.it[0]) <= cap or (used <= cap - 2 and cost(s.it[0]) > 3)):
            g = s.pop(gap); q.e(*g); used += cost(g)
def flush(q, streams):
    for s in streams:
        for g in s.rest(): q.e(*g)

def pack_order(o): return sum(v << (4 * k) for k, v in enumerate(o))
def hyb(xa):
    first = [0, (1 + 2 * xa), (2 + 2 * xa) & 7 or 1]
    rest = [v for v in [(3 + 2 * xa + k) & 7 for k in range(8)] if v not in first]
    return first + rest
ORDERS = {"xa": [[(i + 2 * xa) & 7 for i in range(8)] for xa in range(4)],
          "none": [list(range(8))] * 4,
          "two": [[(i + 4 * (xa & 1)) & 7 for i in range(8)] for xa in range(4)],
          "hyb": [hyb(xa) for xa in range(4)]}

class Gen:
    def __init__(self, cfg):
        self.c = cfg; self.nts = 0; self.nreq = 0; self.w2_last = {}; self.w2_rd = {}; self.ool = Seq()
    def stamp(self, q):
        self.nreq += 1
        if self.c.probe == self.nreq: q.e("s_memrealtime s[68:69]")
        if self.c.ts and self.nts < self.c.ts_max and self.nreq > self.c.ts_min:
            r = TSREG[self.nts]
            q.e(f"s_memtime s[{r}:{r+1}]"); self.nts += 1

    def stage_dma(self, i):
        base = (i % 3) * SLOT
        def ld(v, r, so, off):
            fl = " nt" if (i < self.c.nt_upto and r in self.c.nt_srd) else ""
            return I(f"buffer_load_dwordx4 v{v}, {srd(r)}, s{so} offen offset:{off}{fl} lds", "vm")
        def m0(o): return I(f"s_add_u32 m0, s{sLB}, {base + o}")
        def st(k): return I(f"s_bfe_u32 s{sKW}, s{sORD}, {(3 << 16) | (4 * k)}")
        mul = lambda: I(f"s_mul_i32 s{sKW}, s{sKW}, {64*3584}")
        G = []
        if i < 8:
            G.append([m0(0), st(i), I(f"s_lshl_b32 s{sKX}, s{sKW}, 7"), ld(vX, R_X, sKX, 0)])
            for j in range(1, 4): G.append([ld(vX + j, R_X, sKX, 1024 * j)])
            G.append([m0(4096), mul(), ld(vB, R_BS, sKX, 0)]); G.append([ld(vB + 1, R_BS, sKX, 1024)])
            G.append([m0(6144), ld(vW, R_W1A, sKW, 0)]); G.append([ld(vW + 1, R_W1A, sKW, 1024)])
        else:
            for t in range(4):
                G.append([m0(2048 * t), st(4 * (i - 8) + t), mul(), ld(vW, R_W1B, sKW, 0)])
                G.append([ld(vW + 1, R_W1B, sKW, 1024)])
        return G, G[-1][-1]

    def fb(self, n): return ACC_F2 + 8 * (n & 3) if n < 32 else FR - 4 + 4 * (n & 3)
    def frag_reads(self, n):
        b = self.fb(n)
        if n < 32:
            i, p = divmod(n, 4); slot = i % 3
            hi = 12 if slot == 2 else 0; o = SLOT if slot == 1 else 0
            S = I(f"ds_read_b128 {vr(b)}, v{RS+hi+p} offset:{o}", "ds")
            A0 = I(f"ds_read_b128 {ar(8*n)}, v{RA+hi+p} offset:{o}", "ds")
            A1 = I(f"ds_read_b128 {ar(8*n+4)}, v{RA+hi+p} offset:{o+WBLK}", "ds")
            F = [I(f"ds_read_b64_tr_b16 {vr(b+4+2*k, 2)}, v{RF+hi+p} offset:{o + 6144 + k*512}", "ds") for k in range(2)]
            return [S, A0, A1] + F
        if n >= 64: return []
        i, p = divmod(n - 32, 4)
        hi = 12 if i < 4 else 0
        return [I(f"ds_read_b64_tr_b16 {vr(b+4+2*k, 2)}, v{RF+hi+p} offset:{2048*(i&3) + k*512}", "ds") for k in range(2)]

    def prologue(self, q):
        c = self.c
        q.e("s_cmp_ge_u32 s2, 256", "s_cbranch_scc1 L_end")
        q.e("s_load_dwordx16 s[16:31], s[0:1], 0", "s_load_dwordx4 s[36:39], s[0:1], 80", "s_load_dwordx2 s[44:45], s[0:1], 112",
            "s_load_dwordx2 s[32:33], s[0:1], 64", "s_load_dwordx2 s[40:41], s[0:1], 96")
        q.e("s_getpc_b64 s[64:65]", "L_pc:", "s_and_b32 s3, s2, 0xf8", "s_lshl_b32 s3, s3, 7", "v_lshlrev_b32 v9, 2, v0", "v_add_u32 v9, s3, v9",
            "v_min_u32 v9, L_fin-L_pc-4, v9")
        q.e("global_load_dword v10, v9, s[64:65]")
        if c.ts: q.e("s_memtime s[42:43]", "s_memrealtime s[46:47]")
        if c.spin_to: q.e("s_memrealtime s[42:43]")
        q.e(f"v_and_b32 v{vL}, 63, v0", "v_lshrrev_b32 v2, 6, v0", f"v_readfirstlane_b32 s{sW}, v2")
        O = [pack_order(o) for o in ORDERS[c.order]]
        q.e("s_bitcmp1_b32 s2, 1", f"s_mov_b32 s{sT0}, {O[0]:#x}", f"s_cmov_b32 s{sT0}, {O[1]:#x}", f"s_mov_b32 s{sORD}, {O[2]:#x}", f"s_cmov_b32 s{sORD}, {O[3]:#x}",
            "s_bitcmp0_b32 s2, 2", f"s_cmov_b32 s{sORD}, s{sT0}")
        q.e(f"s_and_b32 s{sXB}, s2, 1", f"s_and_b32 s{sT0}, s2, 6", f"s_lshr_b32 s{sT2}, s2, 6",
            f"s_lshl1_add_u32 s{sC}, s{sT0}, s{sT2}", f"s_bfe_u32 s{sGL}, s2, 0x30003", f"s_lshl3_add_u32 s{sG}, s{sXB}, s{sGL}")
        q.e(f"s_and_b32 s{sT2}, s{sT2}, 1", f"s_lshl1_add_u32 s{sT0}, s{sGL}, s{sT2}", f"s_add_u32 s{sT1}, s{sGL}, 6",
            f"s_cmp_lt_u32 s{sGL}, 6", f"s_cselect_b32 s{sU0}, s{sT0}, s{sT1}", f"s_cselect_b32 s{R_W1B+2}, {512*3584}, 0", f"s_xor_b32 s{sU1}, s{sU0}, 1",
            f"s_lshr_b32 s{sWM}, s{sW}, 1", f"s_and_b32 s{sWN}, s{sW}, 1", f"s_lshl_b32 s{sLB}, s{sW}, 13")
        q.e(f"v_lshrrev_b32 v2, 3, v{vL}", f"v_and_b32 v3, 7, v{vL}", f"v_lshrrev_b32 v4, 4, v{vL}")
        q.e("v_xor_b32 v5, v3, v4", "v_lshlrev_b32 v5, 4, v5")
        q.e(f"v_lshrrev_b32 v7, 5, v{vL}", "v_and_b32 v8, 3, v2", "v_lshl_add_u32 v7, v7, 4, v8",
            f"s_lshl2_add_u32 s{sT0}, s{sC}, s{sW}", f"s_lshl_b32 s{sT0}, s{sT0}, 5",
            f"v_add_u32 v7, s{sT0}, v7", f"v_lshl_add_u32 v{vX}, v7, 10, v5",
            f"v_xor_b32 v{vX+1}, 64, v{vX}", f"v_add_u32 v{vX+1}, {3072}, v{vX+1}",
            f"v_add_u32 v{vX+2}, {6144}, v{vX}", f"v_add_u32 v{vX+3}, {6144}, v{vX+1}")
        q.e(f"s_lshl1_add_u32 s{sK4}, s{sG}, s{sWN}", f"s_lshl_b32 s{sK4}, s{sK4}, 4",
            f"v_add_u32 v7, s{sK4}, v2", f"v_lshl_add_u32 v{vB}, v7, 10, v5",
            f"v_xor_b32 v{vB+1}, 64, v{vB}", f"v_add_u32 v{vB+1}, {7168}, v{vB+1}")
        q.e(f"s_lshl_b32 s{sT0}, s{sW}, 4", f"v_add_u32 v7, s{sT0}, v2", "v_mul_u32_u24 v7, 3584, v7",
            "v_and_b32 v8, 1, v4", "v_lshlrev_b32 v8, 2, v8", "v_xor_b32 v8, v8, v3", f"v_lshl_add_u32 v{vW}, v8, 4, v7",
            f"v_add_u32 v{vW+1}, {8*3584-1024}, v{vW}",
            f"s_mul_i32 s{sT0}, s{sXB}, 14", f"s_add_u32 s{sT1}, s{sT0}, s{sU1}", f"s_add_u32 s{sT0}, s{sT0}, s{sU0}",
            f"s_lshl_b32 s{R_W1A}, s{sT0}, 7", f"s_lshl_b32 s{R_W1B}, s{sT1}, 7",
            f"s_sub_u32 s{R_W1A+2}, {512*3584}, s{R_W1A}", f"s_max_u32 s{R_W1B+2}, s{R_W1B+2}, s{R_W1B}", f"s_sub_u32 s{R_W1B+2}, s{R_W1B+2}, s{R_W1B}")
        for r, size in ((R_X, 2048*1024), (R_BS, 512*1024)): q.e(f"s_mov_b32 s{r+2}, {size}")
        for r in (R_X, R_BS, R_W1A, R_W1B): q.e(f"s_mov_b32 s{r+3}, 0x20000")
        q.e(f"v_lshl_add_u32 v{vC2}, v2, 10, v5", "v_lshlrev_b32 v7, 10, v2", f"v_lshl_add_u32 v{vW2}, v8, 4, v7")
        q.e(f"v_lshlrev_b32 v33, 4, v{vL}", f"v_and_b32 v6, 15, v{vL}", f"v_add_lshl_u32 v11, v6, s{sK4}, 1", "v_mov_b32 v15, 0")
        q.e(f"s_lshl1_add_u32 s{sT2}, s{sC}, s{sWM}", f"s_lshl4_add_u32 s{sT2}, s{sT2}, s{sG}", f"s_lshl1_add_u32 s{sT2}, s{sT2}, s{sWN}",
            f"s_lshl_b32 s{sPOLL}, s{sT2}, 11")
        G0, l0 = self.stage_dma(0)
        q.e(*G0[0][:-1])
        q.wds_all()
        if c.ts: q.e("v_mov_b32 v255, s46")
        if c.boot:
            b = c.boot
            q.e(f"v_lshlrev_b32 v17, 7, v{vL}", f"s_cmp_eq_u32 s{sW}, 2", "s_cbranch_scc1 L_b2")
            q.e(f"s_cmp_eq_u32 s{sW}, 0", f"s_cselect_b64 s[46:47], s[{P_X}:{P_X+1}], s[{P_W1}:{P_W1+1}]", "s_cselect_b32 s70, 64, 56",
                f"s_cmp_eq_u32 s{sW}, 3", f"s_cselect_b64 s[46:47], s[{(P_W2 if b == 1 else P_W1)}:{(P_W2 if b == 1 else P_W1)+1}], s[46:47]",
                "s_lshl_b32 s70, s70, 7", "s_sub_u32 s71, s70, 128", "s_mul_i32 s70, s70, s2", "v_min_u32 v17, s71, v17", "v_add_u32 v17, s70, v17")
            q.append(I("global_load_dword v10, v17, s[46:47]", "o"))
            q.e("s_branch L_b3")
            q.label("L_b2")
            q.e("v_and_b32 v17, 0x780, v17", "s_lshl_b32 s70, s2, 11", "v_add_u32 v17, s70, v17")
            for p in (P_BRE, P_BIM) + ((P_CRE, P_CIM) if b == 1 else ()): q.append(I(f"global_load_dword v10, v17, s[{p}:{p+1}]", "o"))
            q.label("L_b3")
            self.bootq = q; q = self.postq = Seq()
        q.e(f"s_mov_b32 s{R_X}, s{P_X}", f"s_and_b32 s{R_X+1}, s{P_X+1}, 0xffff")
        q.e(G0[0][-1]); [q.e(*g) for g in G0[1:4]]
        q.e(f"s_cmp_eq_u32 s{sWM}, 0", f"s_cselect_b32 s{R_BS}, s{P_BRE}, s{P_BIM}", f"s_cselect_b32 s{R_BS+1}, s{P_BRE+1}, s{P_BIM+1}", f"s_and_b32 s{R_BS+1}, s{R_BS+1}, 0xffff")
        [q.e(*g) for g in G0[4:6]]
        q.e(f"s_and_b32 s{P_W1+1}, s{P_W1+1}, 0xffff", f"s_add_u32 s{R_W1A}, s{P_W1}, s{R_W1A}", f"s_addc_u32 s{R_W1A+1}, s{P_W1+1}, 0")
        [q.e(*g) for g in G0[6:8]]
        q.e(f"s_add_u32 s{R_W1B}, s{P_W1}, s{R_W1B}", f"s_addc_u32 s{R_W1B+1}, s{P_W1+1}, 0")
        last = [l0]
        if c.boot: q = self.bootq
        self.strows = [I(f"buffer_load_dwordx4 {vr(40)}, v33, {srd(R_X)}, s{sPOLL} offen", "vm"), I(f"buffer_load_dwordx4 {vr(44)}, v33, {srd(R_X)}, s{sPOLL} offen offset:1024", "vm")]
        if c.strow_at == -2: q.e(*self.strows)
        self.small0 = q.e(f"global_load_dword v16, v15, s[{P_WS}:{P_WS+1}] sc1")
        q.e(f"global_load_ushort v12, v11, s[{P_LRE}:{P_LRE+1}]", f"global_load_ushort v13, v11, s[{P_LIM}:{P_LIM+1}]")
        self.small = q.e(f"global_load_ushort v14, v11, s[{P_LDT}:{P_LDT+1}]")
        q.e(f"s_lshl_b32 s{sT1}, s{sGL}, 7", f"v_lshl_add_u32 v35, v6, 3, s{sT1}")
        self.dsk = q.e(f"global_load_dwordx2 {vr(38,2)}, v35, s[{P_DSK}:{P_DSK+1}]")
        f = Seq()
        f.e(f"v_and_b32 v2, 31, v{vL}", f"v_lshrrev_b32 v3, 5, v{vL}")
        f.e("v_bfe_u32 v7, v2, 1, 3", "v_xor_b32 v7, v7, v3", "v_lshlrev_b32 v7, 4, v7",
            f"v_lshl_add_u32 v{vCR}, v2, 7, v7",
            f"s_lshl_b32 s{sT1}, s{sWM}, 5", f"v_xor_b32 v7, s{sT1}, v7", f"v_xor_b32 v5, s{sT1}, v{vCR}",
            f"s_lshl_b32 s{sT1}, s{sWM}, 14", f"v_add_u32 v{RA}, s{sT1}, v5")
        f.e("v_lshl_add_u32 v7, v6, 7, v7", "v_and_b32 v8, 16, v2", "v_lshl_add_u32 v7, v8, 10, v7",
            f"s_lshl_b32 s{sT1}, s{sWN}, 13", f"s_add_u32 s{sT1}, s{sT1}, 4096", f"v_add_u32 v{RS}, s{sT1}, v7")
        for p in range(1, 4): f.e(f"v_xor_b32 v{RA+p}, {32*p}, v{RA}", f"v_xor_b32 v{RS+p}, {32*p}, v{RS}")
        f.e("v_lshrrev_b32 v9, 2, v6", "v_lshlrev_b32 v5, 7, v9", "v_and_b32 v7, 3, v6", "v_lshl_add_u32 v5, v7, 3, v5", "v_lshl_add_u32 v5, v8, 1, v5",
            "v_and_b32 v7, 8, v6", "v_lshl_add_u32 v5, v7, 3, v5",
            f"v_lshl_add_u32 v{vTR}, v3, 9, v5",
            "v_lshl_add_u32 v5, v3, 10, v5", f"s_lshl_b32 s{sT1}, s{sWN}, 6", f"s_lshl_b32 s{sT0}, s{sWM}, 13", f"s_or_b32 s{sT1}, s{sT1}, s{sT0}",
            f"v_xor_b32 v{RF}, s{sT1}, v5")
        for p in range(1, 4): f.e(f"v_xor_b32 v{RF+p}, {WBLK*p}, v{RF}")
        f.e(f"s_mov_b32 s{sONES}, 0x3f803f80", f"v_mov_b32 v{CS}, 0", f"v_mov_b32 v{CS+1}, 0")
        for k in range(4): f.e(f"v_mov_b32 v{48+k}, 0")
        for k in range(12): f.e(f"v_add_u32 v{RA+12+k}, {2*SLOT}, v{RA+k}")
        mk_srd(f, R_SY, P_WS, WS_END); mk_srd(f, R_W2, P_W2, 1792*1024); mk_srd(f, R_OUT, P_OUT, 2048*2048)
        f.e(f"s_and_b32 s{P_CRE+1}, s{P_CRE+1}, 0xffff", f"s_and_b32 s{P_CIM+1}, s{P_CIM+1}, 0xffff",
            f"s_bitcmp1_b32 s{sGL}, {0 if c.hrot else 5}", f"s_cselect_b64 s[{R_CRE}:{R_CRE+1}], s[{P_CIM}:{P_CIM+1}], s[{P_CRE}:{P_CRE+1}]",
            f"s_cselect_b64 s[{R_CIM}:{R_CIM+1}], s[{P_CRE}:{P_CRE+1}], s[{P_CIM}:{P_CIM+1}]")
        for r in (R_CRE, R_CIM): f.e(f"s_mov_b32 s{r+2}, {512*1024}", f"s_mov_b32 s{r+3}, 0x20000")
        q.extend(f)
        q.e(f"s_mul_i32 s{sT0}, s2, 56", f"s_mul_i32 s{sT1}, s{sWN}, 28", f"s_add_u32 s{sT0}, s{sT0}, s{sT1}", f"s_lshl_b32 s{sT1}, s2, 4", f"s_min_u32 s{sT1}, s{sT1}, {4096-28}",
            f"s_cmp_eq_u32 s{sWN}, 0", f"s_cselect_b32 s70, s{P_CRE}, s{P_CIM}", f"s_cselect_b32 s71, s{P_CRE+1}, s{P_CIM+1}",
            f"s_cmp_eq_u32 s{sWM}, 0", f"s_cselect_b32 s{sT0}, s{sT0}, s{sT1}",
            f"s_cselect_b32 s70, s{P_W2}, s70", f"s_cselect_b32 s71, s{P_W2+1}, s71",
            f"v_min_u32 v7, {c.pf_n - 1}, v{vL}", f"v_add_lshl_u32 v{vPF}, v7, s{sT0}, 7")
        f = Seq(); self.consts_early(f); self.consts_w2(f)
        G, l = self.stage_dma(1); last.append(l)
        if c.boot:
            q.extend(f)
            if c.boot_late:
                f = Seq(); self.consts_late(f); q.extend(f)
            for kind, at in c.prest.items():
                if at == -1:
                    if kind == "S":
                        q.e(f"s_movk_i32 s{sK4}, 8192")
                        for part in range(2):
                            for mu in range(2): q.e(f"buffer_store_dwordx4 {vr(160)}, v{vHS}, {srd(R_SY)}, {('0', f's{sK4}')[part]} offen offset:{1024*mu} sc1")
                    else:
                        for k in range(4): q.e(f"buffer_store_dwordx4 {vr(160)}, v{vHF1 if kind == 'F1' else vHF2}, {srd(R_SY)}, 0 offen offset:{1024*k} sc1")
            q.wvm_all()
            if c.boot_bar: q.e("s_barrier")
            q.extend(self.postq)
            for g in G: q.e(*g)
        else: q.extend(merge(f, G))
        if c.strow_at == -1: q.e(*self.strows)
        return last

    def consts_early(self, f):
        f.e("v_and_b32 v5, 1, v4", "v_lshl_add_u32 v32, v5, 1, v3")
        f.e(f"s_lshl_b32 s{sT2}, s{sT2}, 5", f"s_add_u32 s{sT2}, s{sT2}, {WS_STAT}", f"v_lshl_add_u32 v7, v3, 4, s{sT2}", f"v_lshl_add_u32 v{vSTS}, v2, 25, v7")
        f.e(f"s_lshl1_add_u32 s{sT0}, s{sC}, s{sXB}", f"s_lshl_b32 s{sT1}, s{sT0}, 13", f"s_add_u32 s{sT1}, s{sT1}, {WS_FLAG}",
            f"s_lshl_b32 s{sT2}, s{sW}, 3", f"s_mul_i32 s{sT0}, s{sWM}, 3", f"s_add_u32 s{sT0}, s{sT0}, s{sWN}", f"s_lshl_b32 s{sT0}, s{sT0}, 2", f"s_sub_u32 s{sT0}, s{sT0}, 8",
            f"v_mov_b32 v7, s{sT2}", f"v_mov_b32 v8, s{sT0}", f"v_cmp_gt_u32 vcc, 8, v{vL}", "v_cndmask_b32 v7, v8, v7, vcc",
            f"v_add_u32 v7, v7, v{vL}", f"v_lshl_add_u32 v7, v7, 8, s{sT1}", "v_lshl_add_u32 v36, v4, 28, v7",
            f"s_lshl2_add_u32 s{sT2}, s{sGL}, s{sW}", f"s_lshl_b32 s{sT2}, s{sT2}, 8", f"s_add_u32 s{sT1}, s{sT1}, s{sT2}",
            f"v_lshl_add_u32 v7, v2, 2, s{sT1}", f"v_lshl_add_u32 v{vFL}, v3, 30, v7", f"v_lshl_add_u32 v{vFP}, v3, 7, v7")
        f.e(f"s_lshl4_add_u32 s{sT0}, s{sC}, s{sG}", f"s_lshl1_add_u32 s{sT0}, s{sT0}, s{sWN}", f"s_lshl_b32 s{sT0}, s{sT0}, 9", f"s_add_u32 s{sT0}, s{sT0}, {WS_CS}",
            f"v_lshl_add_u32 v7, v{vL}, 3, s{sT0}", f"v_xor_b32 v{vGC}, 0x4000, v7", f"s_lshl_b32 s{sT2}, s{sWM}, 30", f"v_add_u32 v{vCSS}, s{sT2}, v7")
        f.e(f"s_lshl_b32 s{sT0}, s{sWN}, 8", f"v_lshl_add_u32 v8, v6, 4, s{sT0}",
            f"s_lshl1_add_u32 s{sNV}, s{sC}, s{sWM}", f"s_sub_u32 s{sT0}, 31, s{sNV}", f"s_lshl_b32 s{sT0}, s{sT0}, 9",
            f"s_lshl_b32 s{sT1}, s{sG}, 14", f"s_add_u32 s{sT1}, s{sT1}, {WS_AGG}", f"s_add_u32 s{sT1}, s{sT1}, s{sT0}",
            f"v_add_u32 v7, s{sT1}, v8", f"v_lshl_add_u32 v{vAGS}, v4, 28, v7",
            f"s_add_u32 s{sT0}, s{sT0}, 512", "v_sub_u32 v7, 3, v4", "v_lshl_add_u32 v7, v7, 12, v8", f"v_add_u32 v{vLBK}, s{sT0}, v7",
            f"s_lshl_b32 s{sNV}, s{sNV}, 4")

    def consts_w2(self, f):
        f.e(f"s_lshl_b32 s{sHS}, s{sW}, 14", f"s_add_u32 s{sHS}, s{sHS}, {56*2048}")
        f.e(f"s_and_b32 s{sT2}, s{sC}, 1", f"s_lshl2_add_u32 s{sT0}, s{sW}, s{sT2}", f"s_add_u32 s{sT1}, s{sT0}, 2",
            f"s_min_u32 s{sT0}, s{sT0}, 12", f"s_min_u32 s{sT1}, s{sT1}, 13", f"s_lshl_b32 s{UO[0]}, s{sT0}, 13", f"s_lshl_b32 s{UO[1]}, s{sT1}, 13",
            f"s_xor_b32 s{sT2}, s{sT2}, 1", f"s_mul_i32 s{sT0}, s{sWM}, 6", f"s_add_u32 s{sT0}, s{sT0}, s{sT2}",
            f"s_lshl2_add_u32 s{sT1}, s{sWN}, s{sT0}", f"s_lshl_b32 s{UO[2]}, s{sT1}, 13",
            f"s_add_u32 s{sT0}, s{sT0}, 2", f"s_lshl1_add_u32 s{sT0}, s{sT0}, s{sWN}", f"s_lshl_b32 s{UO[5]}, s{sT0}, 12")
        if self.c.hrot:
            f.e(f"s_and_b32 s{sT0}, s{sGL}, 1", f"s_sub_u32 s{sT0}, 0, s{sT0}", f"s_xor_b32 s{sT1}, s{UO[0]}, s{UO[1]}", f"s_and_b32 s{sT1}, s{sT1}, s{sT0}",
                f"s_xor_b32 s{UO[0]}, s{UO[0]}, s{sT1}", f"s_xor_b32 s{UO[1]}, s{UO[1]}, s{sT1}",
                f"s_and_b32 s{sT0}, s{sT0}, 8192", f"s_xor_b32 s{sHS}, s{sHS}, s{sT0}",
                f"s_and_b32 s{sT0}, s{sGL}, 2", f"s_lshl_b32 s{sT1}, s{sT0}, 11", f"s_lshl_b32 s{sT0}, s{sT0}, 5", f"v_xor_b32 v{vC2}, s{sT0}, v{vC2}")
            for r in (UO[0], UO[1], UO[2], sHS): f.e(f"s_xor_b32 s{r}, s{r}, s{sT1}")
        f.e(f"s_mul_i32 s{sLE}, s{sW}, {SPW}", f"s_add_u32 s{sLE}, s{sLE}, {L_SP}",
            f"s_mul_i32 s{sW2O}, s{sXB}, {896*1024}", f"s_lshl_b32 s{sT1}, s{sGL}, 7", f"s_add_u32 s{sW2O}, s{sW2O}, s{sT1}",
            f"s_lshl2_add_u32 s{sCO}, s{sXB}, s{sW}", f"s_lshl_b32 s{sCO}, s{sCO}, 7", f"s_lshl_b32 s{sT0}, s{sGL}, 16", f"s_add_u32 s{sCO}, s{sCO}, s{sT0}")
        f.e(f"v_xor_b32 v{vC2+1}, 64, v{vC2}", f"v_add_u32 v{vC2+1}, 7168, v{vC2+1}", f"v_add_u32 v{vC2+2}, 14336, v{vC2}", f"v_add_u32 v{vC2+3}, 14336, v{vC2+1}")
        for j in range(1, 4): f.e(f"v_add_u32 v{vW2+j}, {7168*j}, v{vW2}")

    def consts_late(self, f):
        f.e(f"v_and_b32 v7, 4, v{vL}", f"v_and_b32 v8, 35, v{vL}", "v_lshl_add_u32 v7, v7, 2, v8", f"v_and_b32 v8, 24, v{vL}", "v_lshrrev_b32 v8, 1, v8",
            "v_add_u32 v37, v7, v8")
        f.e(f"s_lshl1_add_u32 s{sT1}, s{sC}, s{sWM}", f"s_lshl_b32 s{sT1}, s{sT1}, 10", f"s_add_u32 s{sT1}, s{sT1}, {WS_STAT}",
            f"v_lshl_add_u32 v{vGS}, v37, 4, s{sT1}", "v_lshl_add_u32 v7, v32, 4, v6", f"v_lshl_add_u32 v{vGR}, v7, 4, s{sT1}")
        f.e(f"v_lshl_add_u32 v{vGC+2}, v{vL}, 3, s{sLB}", f"v_xor_b32 v{vGC+1}, {2*WBLK}, v{vGC+2}")
        f.e(f"s_lshl1_add_u32 s{sT0}, s{sC}, s{sXB}", f"s_lshl1_add_u32 s{sT1}, s{sT0}, s{sWM}", f"s_mul_i32 s{sT1}, s{sT1}, {HBLK}", f"s_add_u32 s{sT1}, s{sT1}, {WS_H}",
            f"s_lshl1_add_u32 s{sT0}, s{sT0}, s{sXB}", f"s_mul_i32 s{sB1}, s{sT0}, {HBLK}", f"s_xor_b32 s{sT0}, s{sT0}, 1", f"s_mul_i32 s{sB0}, s{sT0}, {HBLK}",
            f"s_add_u32 s{sB0}, s{sB0}, {WS_H}", f"s_add_u32 s{sB1}, s{sB1}, {WS_H}")
        f.e(f"s_lshl_b32 s{sT0}, s{sWN}, 12", f"s_add_u32 s{sT0}, s{sT0}, s{sT1}", f"s_lshl_b32 s{sT2}, s{sU0}, 13", f"s_add_u32 s{sT2}, s{sT2}, s{sT0}",
            f"v_add_u32 v{vHF1}, s{sT2}, v33", f"s_lshl_b32 s{sT2}, s{sU1}, 13", f"s_add_u32 s{sT2}, s{sT2}, s{sT0}",
            f"s_min_u32 s{sT0}, s{R_W1B+2}, 1", f"s_sub_u32 s{sT0}, 1, s{sT0}", f"s_lshl_b32 s{sT0}, s{sT0}, 30", f"s_add_u32 s{sT2}, s{sT2}, s{sT0}",
            f"v_add_u32 v{vHF2}, s{sT2}, v33")
        f.e(f"s_lshr_b32 s{sT0}, s{sGL}, 1", f"s_and_b32 s{sT2}, s{sGL}, 1", f"s_lshl2_add_u32 s{sT0}, s{sT0}, s{sT2}", f"s_lshl1_add_u32 s{sT0}, s{sT0}, s{sWN}",
            f"s_add_u32 s{sT0}, s{sT0}, 56", f"s_lshl_b32 s{sT0}, s{sT0}, 11", f"s_add_u32 s{sT0}, s{sT0}, s{sT1}", f"v_add_u32 v{vHS}, s{sT0}, v33")
        f.e(f"s_lshl1_add_u32 s{sT0}, s{sC}, s{sXB}", f"s_lshl2_add_u32 s{sT0}, s{sT0}, s{sW}", f"s_lshl_b32 s{sT0}, s{sT0}, 4", f"v_add_u32 v7, s{sT0}, v4",
            "v_lshlrev_b32 v34, 4, v7", f"v_add_u32 v34, {WS_STAT}, v34", "v_lshl_add_u32 v18, v7, 10, v35", "v_lshlrev_b32 v19, 1, v18")
        f.e(f"s_lshl4_add_u32 s{sT0}, s{sC}, s{sG}", f"s_lshl2_add_u32 s{sT0}, s{sT0}, s{sW}", f"s_lshl_b32 s{sT0}, s{sT0}, 12", f"s_add_u32 s{sT0}, s{sT0}, {WS_XCH}",
            f"v_add_u32 v{vXS}, s{sT0}, v33", f"v_xor_b32 v{vXR}, 0x20000, v{vXS}")
        f.e("v_and_b32 v7, 7, v2", "v_xor_b32 v7, v7, v3", "v_lshlrev_b32 v7, 4, v7", "v_and_b32 v8, 31, v37", "v_lshl_add_u32 v7, v8, 8, v7",
            f"v_add_u32 v{vRW}, s{sLE}, v7")
        for g4 in range(1, 4): f.e(f"v_xor_b32 v{vRW+g4}, {32*g4}, v{vRW}")
        f.e("v_xor_b32 v7, v6, v4", "v_lshlrev_b32 v7, 4, v7", "v_lshl_add_u32 v7, v4, 8, v7", f"s_lshl_b32 s{sT0}, s{sW}, 12", f"s_lshl_b32 s{sT1}, s{sWN}, 6",
            f"s_or_b32 s{sT0}, s{sT0}, s{sT1}", f"s_add_u32 s{sT0}, s{sT0}, {L_SP}", f"v_xor_b32 v{vRR}, s{sT0}, v7")
        f.e("v_and_b32 v7, 2, v6", "v_and_b32 v8, 1, v6", "v_lshl_add_u32 v7, v7, 1, v8", "v_and_b32 v8, 4, v6", "v_lshrrev_b32 v8, 1, v8", "v_or_b32 v7, v7, v8",
            "v_lshlrev_b32 v8, 1, v32", "v_xor_b32 v7, v7, v8", "v_lshlrev_b32 v7, 4, v7", "v_lshl_add_u32 v7, v6, 7, v7",
            f"s_add_u32 s{sT0}, s{sLB}, {2*SLOT + 4096}", f"v_add_u32 v{vTW}, s{sT0}, v7", f"v_xor_b32 v{vTW+1}, 16, v{vTW}")
        f.e("v_and_b32 v5, 1, v6", "v_and_b32 v8, 16, v2", "v_lshl_add_u32 v5, v5, 5, v8", "v_and_b32 v8, 2, v6", "v_lshl_add_u32 v5, v8, 2, v5")
        f.e("v_and_b32 v7, 2, v9", "v_and_b32 v8, 1, v9", "v_lshl_add_u32 v7, v7, 1, v8", "v_lshlrev_b32 v7, 4, v7", "v_xor_b32 v7, v7, v5",
            "v_lshl_add_u32 v8, v3, 3, v9", "v_lshl_add_u32 v7, v8, 7, v7", f"v_add_u32 v{vTD}, s{sT0}, v7")

    def ssm_consts(self, q):
        q.wvm(self.small)
        q.e("v_lshlrev_b32 v14, 16, v14", "v_lshlrev_b32 v12, 16, v12", f"v_mul_f32 v14, {fh(1.4426950408889634)}, v14", "v_lshlrev_b32 v13, 16, v13",
            "v_exp_f32 v14, v14", "v_lshlrev_b32 v3, 4, v32", "v_cvt_pk_bf16_f32 v14, v14, v14", "v_lshlrev_b32 v14, 16, v14",
            "v_mul_f32 v17, v14, v12", "v_mul_f32 v15, v14, v13",
            f"v_mul_f32 v17, {fh(1.4426950408889634)}, v17", f"v_mul_f32 v15, {fh(0.15915494309189535)}, v15",
            "v_cvt_f32_u32 v3, v3", "v_sub_u32 v4, 3, v4", "v_lshlrev_b32 v4, 9, v4", "v_cvt_f32_u32 v4, v4")
        def cexp(d, n):
            q.e(f"v_mul_f32 v6, {n}, v15", f"v_mul_f32 v5, {n}, v17", "v_fract_f32 v6, v6", "v_exp_f32 v5, v5", f"v_cos_f32 v{d}, v6", f"v_sin_f32 v{d+1}, v6",
                f"v_mul_f32 v{d}, v{d}, v5", f"v_mul_f32 v{d+1}, v{d+1}, v5")
        cexp(20, "1.0"); cexp(22, fh(16.0)); cexp(24, fh(64.0)); cexp(26, "v3"); cexp(28, "v4")
        q.e("v_mul_f32 v6, v12, v12", "v_fmac_f32 v6, v13, v13", "v_rcp_f32 v6, v6", "v_add_f32 v5, -1.0, v20",
            "v_mul_f32 v30, v5, v12", "v_fmac_f32 v30, v21, v13", "v_mul_f32 v31, v21, v12", "v_fma_f32 v31, -v5, v13, v31",
            "v_add_f32 v6, v6, v6", "v_mul_f32 v30, v30, v6", "v_mul_f32 v31, v31, v6")

    def check(self, name, loads, test):
        q = Seq()
        q.wvm(loads[-1])
        q.e(*test)
        q.e(f"s_cbranch_scc1 L_{name}_slow")
        q.label(f"L_{name}_ok")
        o = self.ool
        o.label(f"L_{name}_slow")
        o.e(f"s_mov_b32 s{sPOLL}, 0x40000")
        o.label(f"L_{name}_loop")
        o.e(f"s_sleep {self.c.poll_sleep}")
        for l in loads: o.append(I(l.t, "o"))
        o.e("s_waitcnt vmcnt(0)", f"s_sub_u32 s{sPOLL}, s{sPOLL}, 1", f"s_cbranch_scc1 L_{name}_ok")
        o.e(*test)
        o.e(f"s_cbranch_scc1 L_{name}_loop", f"s_branch L_{name}_ok")
        return list(q)
    def tags(self, regs, lo=False):
        if len(regs) == 1: return [f"v_cmp_ne_u32 vcc, s{sTAG}, v{regs[0]}", f"s_and_b32 s{sM}, vcc_lo, {lo}" if lo else "s_cmp_lg_u64 vcc, 0"]
        t = [f"v_cmp_ne_u32 s[{sM}:{sM+1}], s{sTAG}, v{regs[0]}"]
        for r in regs[1:]: t += [f"v_cmp_ne_u32 vcc, s{sTAG}, v{r}", f"s_or_b64 s[{sM}:{sM+1}], s[{sM}:{sM+1}], vcc"]
        return t

    def cmul_acc(self, q, d, a, b, c, c2=None):
        c2 = c + 1 if c2 is None else c2
        q.e(f"v_fma_f32 v{d}, v{a}, v{b}, v{c}", f"v_fma_f32 v{d+1}, v{a}, v{b+1}, v{c2}",
            f"v_fma_f32 v{d}, -v{a+1}, v{b+1}, v{d}", f"v_fma_f32 v{d+1}, v{a+1}, v{b}, v{d+1}")
    def cmul(self, q, d, a, b):
        q.e(f"v_mul_f32 v{d}, v{a}, v{b}", f"v_mul_f32 v{d+1}, v{a}, v{b+1}",
            f"v_fma_f32 v{d}, -v{a+1}, v{b+1}, v{d}", f"v_fma_f32 v{d+1}, v{a+1}, v{b}, v{d+1}")

    def w2_area(self, pc):
        return {0: (sLE, 0), 1: (sLE, 8192), 2: (sLB, SLOT), 5: (sLB, 2*SLOT), 3: (sLE, 0), 4: (sLE, 8192)}[pc]
    def w2_dma(self, pc, run=4):
        sb, ao = self.w2_area(pc)
        G = []
        for k in range(4 if pc == 5 else 8):
            g = []; j = k % run
            if pc in UO:
                if j == 0:
                    g.append(I(f"s_add_u32 m0, s{sb}, {ao + 1024*k}"))
                    if k: g += [I(f"s_xor_b32 s{sKX}, s{UO[pc]}, {k*1024}"), I(f"s_lshl3_add_u32 s{sKX}, s{sKX}, s{sW2O}")]
                    else: g.append(I(f"s_lshl3_add_u32 s{sKX}, s{UO[pc]}, s{sW2O}"))
                g.append(I(f"buffer_load_dwordx4 v{vW2+j}, {srd(R_W2)}, s{sKX} offen offset:{1024*j} lds", "vm"))
            else:
                if j == 0: g += [I(f"s_add_u32 m0, s{sb}, {ao + 1024*k}"), I(f"s_add_u32 s{sKX}, s{sCO}, {8*k*1024}")]
                g.append(I(f"buffer_load_dwordx4 v{vC2+j}, {srd(R_CRE if pc == 3 else R_CIM)}, s{sKX} offen offset:{1024*j} lds", "vm"))
            G.append(g)
        self.w2_last[pc] = G[-1][-1]
        return G
    def w2_reads(self, pc):
        sb, ao = self.w2_area(pc)
        L = Seq()
        if pc in UO:
            L.e(f"v_add_u32 v{vTA}, s{sb}, v{vTR}")
            if ao >= 2 * SLOT: L.e(f"v_add_u32 v{vTA}, {ao}, v{vTA}"); ao = 0
            L.e(f"v_xor_b32 v{vTA+1}, 64, v{vTA}")
            L.wvm(self.w2_last[pc])
            j0 = {0: 0, 1: 4, 2: 8, 5: 12}[pc]
            for k in range(2 if pc == 5 else 4):
                for nu in range(2):
                    for e in range(2):
                        a = 8 * (j0 + k) + 4 * nu + 2 * e
                        r = L.e(f"ds_read_b64_tr_b16 {ar(a,2)}, v{vTA+nu} offset:{ao + 2048*k + 1024*e}")
        else:
            L.e(f"v_add_u32 v{vTA}, s{sb}, v{vCR}")
            for k in range(1, 4): L.e(f"v_xor_b32 v{vTA+k}, {32*k}, v{vTA}")
            L.wvm(self.w2_last[pc])
            j0 = 14 if pc == 3 else 18
            for k in range(4):
                for nu in range(2):
                    r = L.e(f"ds_read_b128 {ar(8*(j0+k)+4*nu)}, v{vTA+k} offset:{ao + 4096*nu}")
        self.w2_rd[pc] = r
        return groups(L)
    def after_reads(self, pc, G):
        w = Seq(); w.wds(self.w2_rd[pc])
        return [list(w) + G[0]] + G[1:]

    def ffn_epi(self, a, voff):
        f = Seq()
        for t in range(2):
            b = a + 16 * t
            for j in range(8): f.e(f"v_pk_mul_f32 {vr(b+2*j,2)}, {vr(b+2*j,2)}, {vr(42,2)} op_sel:[0,{t}] op_sel_hi:[1,{t}]")
            for j in range(8): f.e(f"v_cvt_pk_bf16_f32 v{b+j}, v{b+2*j}, v{b+2*j+1}")
            for j in range(8): f.e(f"v_pk_max_i16 v{b+j}, v{b+j}, 0")
        st = [I(f"buffer_store_dwordx4 {vr(a+16*t+4*al)}, v{voff}, {srd(R_SY)}, 0 offen offset:{2048*al + 1024*t} {self.c.hs}", "vm") for t in range(2) for al in range(2)]
        return f, st

    def split3(self, s, src, d):
        s.e(f"v_and_b32 v240, 0xffff0000, v{src}", f"v_sub_f32 v240, v{src}, v240",
            f"v_perm_b32 v{d}, v240, v{src}, s{sONES}", "v_and_b32 v241, 0xffff0000, v240", "v_sub_f32 v241, v240, v241",
            f"v_cvt_pk_bf16_f32 v{d+1}, v241, 0")

    def flag_store(self, kind, after):
        q = Seq(); q.wvm(after)
        q.e(f"buffer_store_dword v251, v{vFL}, {srd(R_SY)}, 0 offen offset:{128*kind} {self.c.hs}")
        return list(q)

    def phase1(self, q, last):
        c = self.c
        RE, IM = ACC_S, ACC_S + 16
        MF8 = "v_mfma_f32_32x32x8_bf16"; MF = "v_mfma_f32_32x32x16_bf16"
        MFR = 200
        q.wvm(last[0]); q.e("s_barrier"); self.stamp(q)
        D = 2; D2 = 3
        RD = {}
        for n in range(D): RD[n] = self.frag_reads(n); q.e(*RD[n])
        G, l = self.stage_dma(2); last.append(l)
        dma = Stream(G, every=1)
        s = Seq()
        s.e(f"v_readfirstlane_b32 s{sTAG}, v16", "v_permlane32_swap_b32 v48, v49", "v_permlane32_swap_b32 v50, v51", f"s_add_u32 s{sTAG}, s{sTAG}, {hex(TAGK)}",
            "v_add_f32 v48, v48, v49", "v_add_f32 v50, v50, v51", f"s_or_b32 s{sTAG}, s{sTAG}, 1", f"v_mov_b32 v54, s{sTAG}",
            "v_permlane16_swap_b32 v48, v50", "v_add_f32 v48, v48, v50", f"v_mov_b32 v251, s{sTAG}")
        for k in (8, 4, 2, 1): s.e(f"v_add_f32_dpp v48, v48, v48 row_ror:{k} row_mask:0xf bank_mask:0xf")
        s.e("v_mov_b32 v49, v48", "v_permlane16_swap_b32 v48, v49",
            f"v_mul_f32 v48, {fh(1/512)}, v48", f"v_mul_f32 v49, {fh(1/512)}, v49", "v_fma_f32 v49, -v48, v48, v49", "v_max_f32 v49, 0, v49",
            "v_cvt_pk_bf16_f32 v49, v49, v49", "v_lshlrev_b32 v49, 16, v49", f"v_add_f32 v49, {fh(1e-5)}, v49",
            "v_cvt_pk_bf16_f32 v49, v49, v49", "v_lshlrev_b32 v49, 16, v49", "v_sqrt_f32 v49, v49",
            "v_cvt_pk_bf16_f32 v53, -v48, -v48",
            "v_cvt_pk_bf16_f32 v49, v49, v49", "v_lshlrev_b32 v49, 16, v49", "v_rcp_f32 v52, v49")
        s.e(f"buffer_store_dwordx4 {vr(52)}, v{vSTS}, {srd(R_SY)}, 0 offen sc1")
        sA = Stream(groups(s), start=4 * (c.stat_at + 1), dl=4 * c.stat_at + 28)
        s = Seq()
        if not (c.boot and c.boot_late): self.consts_late(s)
        self.ssm_consts(s)
        sC_ = Stream(groups(s), dl=c.gather_at - 1)
        gl_ = [I(f"buffer_load_dwordx3 {vr(40,3)}, v{vGS}, {srd(R_SY)}, 0 offen sc1", "vm"), I(f"buffer_load_dwordx3 {vr(44,3)}, v{vGR}, {srd(R_SY)}, 0 offen sc1", "vm")]
        A = [gl_, ("nb", c.check_at), self.check("ga", gl_, self.tags([42, 46]))]
        s = Seq()
        s.e(f"v_mov_b32 v{MFR}, v41", f"v_mov_b32 v{MFR+2}, v41", "v_mov_b32 v42, v40", "v_mov_b32 v43, v40",
            f"s_lshl_b32 s{sT0}, s{sG}, 14", f"s_add_u32 s{sT0}, s{sT0}, {WS_AGG}",
            f"v_permlane32_swap_b32 v{MFR}, v{MFR+2}", "v_permlane32_swap_b32 v42, v43", f"v_mov_b32 v{MFR+1}, v{MFR}", f"v_mov_b32 v{MFR+3}, v{MFR+2}")
        A += groups(s)
        A.append([I(f"s_add_u32 s{R_AG}, s{R_SY}, s{sT0}"), I(f"s_addc_u32 s{R_AG+1}, s{R_SY+1}, 0"), I(f"s_movk_i32 s{R_AG+2}, 16384")])
        assert c.check_at >= 92
        sG_ = Stream(A, start=c.gather_at, dl=119)
        early = self.w2_dma(0, 2) + self.w2_dma(1, 2)
        self.xl = []; X = []
        for ii in range(4):
            self.xl.append(I(f"buffer_load_dwordx2 {vr(2+4*ii,2)}, v18, {srd(R_X)}, s{sK4} offen", "vm"))
            X.append([I(f"s_movk_i32 s{sK4}, {4096*ii}"), self.xl[-1]])
        X.append(("nb", 120))
        for ii in range(4):
            self.xl.append(I(f"buffer_load_dwordx2 {vr(4+4*ii,2)}, v34, {srd(R_SY)}, 0 offen offset:{64*ii} sc1", "vm")); X.append([self.xl[-1]])
        assert c.check_at < 116
        sX_ = Stream(X, start=106, dl=127, every=2)
        for n in range(32):
            p = n & 3
            b = self.fb(n); rd = RD[n]
            if (n + D) % 4 == 0:
                i = (n + D) // 4 - 1
                flush(q, [dma])
                q.wds_all()
                if i < 7: q.wvm(last[i + 1])
                q.e("s_barrier")
                if i in c.ts_stages: self.stamp(q)
                if i < 6:
                    G, l = self.stage_dma(i + 3); last.append(l)
                    if c.early_from <= i:
                        G = G + early[:c.early_n]; early = early[c.early_n:]
                    dma = Stream(G, every=2)
                if i == 6:
                    dma = Stream(early[:c.early_last], every=2); early = early[c.early_last:]
                if i == 7: csr = q.e(f"ds_read_b64 {vr(62,2)}, v{vGC+2}")
            if n >= c.pf_from and (n - c.pf_from) % c.pf_step == 0 and (n - c.pf_from) // c.pf_step * c.pf_n < 28:
                q.e(f"global_load_dword v10, v{vPF}, s[70:71] offset:{(n - c.pf_from) // c.pf_step * c.pf_n * 128}")
            if n == c.l2pf_at:
                q.e(f"s_lshr_b32 s{sT0}, s2, 3", f"s_lshl2_add_u32 s{sT1}, s{sT0}, s{sW}", f"s_mul_i32 s{sT1}, s{sT1}, {56*128}", f"s_mul_i32 s{sT2}, s{sXB}, {896*1024}",
                    f"s_add_u32 s{sT1}, s{sT1}, s{sT2}", f"v_min_u32 v240, 55, v{vL}", "v_lshlrev_b32 v240, 7, v240")
                q.e(f"buffer_load_dword v219, v240, {srd(R_W2)}, s{sT1} offen")
                q.e(f"s_lshl2_add_u32 s{sT1}, s{sT0}, s{sW}", f"s_lshl_b32 s{sT1}, s{sT1}, 12", f"s_lshl_b32 s{sT2}, s{sXB}, 9", f"s_add_u32 s{sT1}, s{sT1}, s{sT2}",
                    f"v_and_b32 v240, 3, v{vL}", f"v_bfe_u32 v241, v{vL}, 2, 2", "v_lshlrev_b32 v240, 7, v240", "v_lshl_add_u32 v240, v241, 10, v240")
                q.e(f"buffer_load_dword v219, v240, {srd(R_CRE)}, s{sT1} offen", f"buffer_load_dword v219, v240, {srd(R_CIM)}, s{sT1} offen")
            for kind, at in c.prest.items():
                if at == n:
                    if kind == "S":
                        q.e(f"s_movk_i32 s{sK4}, 8192")
                        for part in range(2):
                            for mu in range(2): q.e(f"buffer_store_dwordx4 {vr(160)}, v{vHS}, {srd(R_SY)}, {('0', f's{sK4}')[part]} offen offset:{1024*mu} sc1")
                    else:
                        for k in range(4): q.e(f"buffer_store_dwordx4 {vr(160)}, v{vHF1 if kind == 'F1' else vHF2}, {srd(R_SY)}, 0 offen offset:{1024*k} sc1")
            if n == c.pt_at:
                for v in (vFP, vAGS, vCSS): q.e(f"buffer_load_dword v219, v{v}, {srd(R_SY)}, 0 offen")
            if n == c.strow_at: q.e(*self.strows)
            nxt = []
            if n + D < 32: nxt = RD[n + D] = self.frag_reads(n + D)
            z = lambda a: ("0" if n == 0 else vr(a, 16))
            M = [f"{MF} {vr(ACC_F1,16)}, {vr(b+4)}, {ar(8*n)}, {z(ACC_F1)}", f"{MF} {vr(ACC_F1+16,16)}, {vr(b+4)}, {ar(8*n+4)}, {z(ACC_F1+16)}",
                 f"{MF} {vr(RE,16)}, {ar(8*n)}, {vr(b)}, {z(RE)}", f"{MF} {vr(IM,16)}, {ar(8*n+4)}, {vr(b)}, {z(IM)}"]
            sched = [2, 1, 1, 2]
            k = 0
            if c.s_first: M = M[2:] + M[:2]
            for j, m in enumerate(M):
                q.wds(rd[4]); q.e(m)
                mine = nxt[k:k + sched[j]]; k += sched[j]
                q.e(*mine)
                fill_gap(q, 4 * n + j, len(mine), c.cap1, [dma, sA, sG_, sC_, sX_])
                if n == 30 and j == 2:
                    q.e(f"s_mov_b32 s{sONES}, 0x07060302"); q.wds(csr)
                    q.e(f"v_add_f32 v{CS+1}, v{CS+1}, v63", f"v_add_f32 v{CS}, v{CS}, v62")
                corrF = [f"{MF8} {vr(ACC_F1+16*t,16)}, {vr(222,2)}, {vr(MFR+2*t,2)}, {vr(ACC_F1+16*t,16)}" for t in range(2)]
                corrS = [f"{MF8} {vr(RE+16*t,16)}, {vr(MFR+2*t,2)}, {vr(204,2)}, {vr(RE+16*t,16)}" for t in range(2)]
                if n == 30 and j == 3: self.split3(q, *((CS, 204) if c.s_first else (CS + 1, 222)))
                if n == 31 and j == 0: self.split3(q, *((CS + 1, 222) if c.s_first else (CS, 204)))
                if n == 31 and j == 1:
                    flush(q, [sG_])
                    q.e(*(corrS if c.s_first else corrF))
            if n == c.stat_at:
                q.wvm(self.small0, self.strows[1])
                for r in range(4):
                    q.e(f"v_dot2c_f32_bf16 v48, s{sONES}, v{40+r}", f"v_dot2c_f32_bf16 v49, s{sONES}, v{44+r}",
                        f"v_dot2c_f32_bf16 v50, v{40+r}, v{40+r}", f"v_dot2c_f32_bf16 v51, v{44+r}, v{44+r}")
            if p == 1:
                if dma.it: q.e(*dma.it.pop(0))
                for e in (n - 1, n + 1):
                    q.wds(RD[e][4]); be = self.fb(e)
                    for r in range(4):
                        q.e(f"v_dot2c_f32_bf16 v{CS}, s{sONES}, v{be+r}", f"v_dot2c_f32_bf16 v{CS+1}, s{sONES}, v{be+4+r}")
            if n == 29: q.e(f"ds_write_b64 v{vGC+1}, {vr(CS,2)}")
        q.e(*(corrF if c.s_first else corrS))
        self.stamp(q)
        G9, l = self.stage_dma(9); last.append(l)
        f, st = self.ffn_epi(ACC_F1, vHF1)
        q.e(f"v_mov_b32 v{CS}, s{sTAG}")
        st = [I(f"buffer_store_dwordx2 {vr(CS,2)}, v{vCSS}, {srd(R_SY)}, 0 offen sc1", "vm")] + st
        if not c.s_first: q.extend(merge(f, G9[:c.g9_pre]))
        s = Seq()
        for i in range(16): s.e(f"v_permlane16_swap_b32 v{RE+i}, v{IM+i}")
        cr, ci = RE, IM
        def scale(i): s.e(f"v_mul_f32_dpp v{RE+i}, v44, v{RE+i} row_newbcast:{i} row_mask:0xf bank_mask:0xf", f"v_mul_f32_dpp v{IM+i}, v44, v{IM+i} row_newbcast:{i} row_mask:0xf bank_mask:0xf")
        scale(0); scale(1)
        for i in range(1, 16):
            d = 48 if i & 1 else 46
            s.e(f"v_fma_f32 v{d}, v20, v{cr}, v{RE+i}", f"v_fma_f32 v{d+1}, v20, v{ci}, v{IM+i}")
            if i < 15: scale(i + 1)
            s.e(f"v_fma_f32 v{d}, -v21, v{ci}, v{d}", f"v_fma_f32 v{d+1}, v21, v{cr}, v{d+1}")
            cr, ci = d, d + 1
        q.extend(merge(s, G9 if c.s_first else [[x] for x in st] + G9[c.g9_pre:]))
        s = Seq()
        s.e("v_mov_b32 v50, v48", "v_mov_b32 v51, v49", f"v_mov_b32 v62, s{sTAG}", "v_mov_b32 v40, 0",
            "v_permlane32_swap_b32 v48, v50", "v_permlane32_swap_b32 v49, v51",
            "v_mov_b32 v52, v48", "v_mov_b32 v54, v50", "v_mov_b32 v53, v49", "v_mov_b32 v55, v51",
            "v_permlane16_swap_b32 v48, v52", "v_permlane16_swap_b32 v50, v54", "v_permlane16_swap_b32 v49, v53", "v_permlane16_swap_b32 v51, v55", "v_mov_b32 v41, 0")
        self.cmul_acc(s, 50, 22, 48, 50); self.cmul_acc(s, 52, 22, 50, 52); self.cmul_acc(s, 60, 22, 52, 54)
        s.e(f"buffer_store_dwordx4 {vr(60)}, v{vAGS}, {srd(R_SY)}, 0 offen sc1")
        q.extend(s)
        self.stamp(q)
        q.wvm(last[8]); q.e("s_barrier")
        for e in range(32, 32 + D2):
            RD[e] = self.frag_reads(e); q.e(*RD[e])
        if c.s_first:
            q.e(st[0]); q.extend(f[:24]); q.e(st[1]); q.extend(f[24:36]); q.e(st[2]); q.extend(f[36:]); q.e(st[3])
        cl_ = I(f"buffer_load_dwordx2 {vr(CS,2)}, v{vGC}, {srd(R_SY)}, 0 offen sc1", "vm")
        S1 = []
        for j in range(1, 4):
            S1.append([I(f"v_cmp_eq_u32 vcc, {j}, v32"), I(f"v_cndmask_b32 v40, v40, v{46+2*j}, vcc"), I(f"v_cndmask_b32 v41, v41, v{47+2*j}, vcc")])
        s = Seq()
        for i in range(16):
            s.e(f"v_mul_f32 v46, v31, v{IM+i}", f"v_mul_f32 v{IM+i}, v30, v{IM+i}", f"v_fmac_f32 v{IM+i}, v31, v{RE+i}", f"v_fma_f32 v{RE+i}, v30, v{RE+i}, -v46")
        sS1 = Stream(S1 + groups(s))
        self.fa = I(f"buffer_load_dword v{vFP}, v36, {srd(R_SY)}, 0 offen sc1", "vm")
        for g in S1[:3]: q.e(*g)
        sS1.it = sS1.it[3:]
        self.lb = [I(f"buffer_load_dwordx3 {vr(LBR+4*t,3)}, v{vLBK}, {srd(R_AG)}, 0 offen offset:{512*t} sc1", "vm") for t in range(8)]
        assert len(early) % 2 == 0 and len(early) <= 8
        sR0 = Stream(self.w2_reads(0) + [("nb", 18)] + self.w2_reads(1), start=c.r0_at, dl=c.lb_at - 1)
        W = early + self.w2_dma(2, 2)
        if c.s_first: q.e(st[4])
        W2_ = self.after_reads(0, self.w2_dma(3)) + self.w2_dma(5) + self.after_reads(1, self.w2_dma(4))
        lbg = [self.lb[k:k + c.lb_grp] for k in range(0, 8, c.lb_grp)]
        fA = [[cl_] + self.flag_store(0, st[-1])]
        if c.fa_late:
            W = W[:c.w2_first] + [("nb", c.lb_at)] + lbg + fA + W[c.w2_first:] + W2_[:c.w2_n2] + [("nb", c.w2_at3)] + W2_[c.w2_n2:]
            sLB_ = Stream([])
        else:
            sR0.dl = c.w2_at2
            W = W[:c.w2_first] + [("nb", c.w2_at2)] + fA + W[c.w2_first:] + W2_[:c.w2_n2] + [("nb", c.w2_at3)] + W2_[c.w2_n2:]
            sLB_ = Stream(lbg, start=c.lb_at, every=2)
        sW2 = Stream(W, every=2)
        _, B, self.ssm_last = self.ssm_part2()
        if c.b_at < 64: sS1.dl = c.b_at - 1
        sB2 = Stream(B[:-1], start=c.b_at); self.hst = B[-1]
        sBase = Stream(self.base_stream(), start=64)
        K9 = 16 - D2
        for n in range(32, 64):
            k = n - 32
            b = self.fb(n)
            if k == K9:
                q.wds_all(); q.wvm(last[9]); q.e("s_barrier")
            nxt = RD[n + D2] = self.frag_reads(n + D2)
            for t in range(2):
                d = ACC_F2 + 16 * t
                q.wds(RD[n][-1])
                q.e(f"{MF} {vr(d,16)}, {vr(b+4)}, {ar(8*k+4*t)}, {'0' if k == 0 else vr(d,16)}")
                q.e(*nxt[t:t+1])
                fill_gap(q, 2 * k + t, 1.25, c.cap2, [sLB_, sW2, sR0, sS1, sB2, sBase])
                if k == 30 and t == 0: q.extend(self.check("c2", [cl_], self.tags([CS])))
                if k == 30 and t == 1: self.split3(q, CS + 1, 222)
        for t in range(2): q.e(f"{MF8} {vr(ACC_F2+16*t,16)}, {vr(222,2)}, {vr(MFR+2*t,2)}, {vr(ACC_F2+16*t,16)}")
        self.stamp(q)
        self.left = (sW2.rest(), sS1.rest(), sR0.rest(), sLB_.rest(), sB2.rest())
        self.base_left = sBase.rest()

    def ssm_part2(self):
        RE, IM = ACC_S, ACC_S + 16
        LB = LBR
        lb = self.lb
        pr_ = [48, 50, 56, 58, 60, 62, 70, sM]
        test = [f"v_cmp_eq_u32 s[{pr_[t]}:{pr_[t]+1}], s{sTAG}, v{LB+4*t+2}" for t in range(8)]
        test += [f"s_bcnt1_i32_b64 s{pr_[t]}, s[{pr_[t]}:{pr_[t]+1}]" for t in range(8)]
        test += [f"s_add_u32 s{pr_[0]}, s{pr_[0]}, s{pr_[t]}" for t in range(1, 8)]
        test.append(f"s_cmp_lg_u32 s{pr_[0]}, s{sNV}")
        B = [self.check("lb", lb, test)]
        q = Seq()
        self.stamp(q)
        for t in range(6, -1, -1): self.cmul_acc(q, LB + 4 * t, 24, LB + 4 * (t + 1), LB + 4 * t)
        self.cmul(q, 62, 28, LB)
        for sw in ("16", "32"):
            q.e("v_mov_b32 v60, v62", "v_mov_b32 v61, v63", f"v_permlane{sw}_swap_b32 v60, v62", f"v_permlane{sw}_swap_b32 v61, v63",
                "v_add_f32 v62, v60, v62", "v_add_f32 v63, v61, v63")
        self.cmul_acc(q, 60, 26, 62, 40)
        self.cmul(q, 62, 30, 60)
        self.nB1 = len(groups(q)) + 1
        pr, pi_ = 62, 63
        for i in range(16):
            q.e(f"v_fma_f32 v{RE+i}, v20, v{pr}, v{RE+i}", f"v_fma_f32 v{IM+i}, v20, v{pi_}, v{IM+i}",
                f"v_fma_f32 v{RE+i}, -v21, v{pi_}, v{RE+i}", f"v_fma_f32 v{IM+i}, v21, v{pr}, v{IM+i}")
            pr, pi_ = RE + i, IM + i
            if i & 1:
                j = i >> 1
                q.e(f"v_cvt_pk_bf16_f32 v{44+j}, v{RE+2*j}, v{RE+2*j+1}", f"v_cvt_pk_bf16_f32 v{52+j}, -v{IM+2*j}, -v{IM+2*j+1}")
            if i == 7:
                q.e(f"ds_write_b128 v{vTW}, {vr(44)}", f"ds_write_b128 v{vTW}, {vr(52)} offset:2048")
        q.e(f"ds_write_b128 v{vTW+1}, {vr(48)}", f"ds_write_b128 v{vTW+1}, {vr(56)} offset:2048")
        q.e(f"v_xor_b32 v61, {512|32}, v{vTD}", f"v_xor_b32 v62, 64, v{vTD}", "v_xor_b32 v63, 64, v61", f"s_movk_i32 s{sT1}, 8192")
        ad = {(0, 0): vTD, (0, 1): 61, (1, 0): 62, (1, 1): 63}
        for part in range(2):
            for mu in range(2):
                for e in range(2):
                    tr = q.e(f"ds_read_b64_tr_b16 {vr(64 + 8*part + 4*mu + 2*e,2)}, v{ad[mu, e]} offset:{2048*part}")
        B += groups(q)
        st = [I(f"buffer_store_dwordx4 {vr(64+8*part+4*mu)}, v{vHS}, {srd(R_SY)}, {('0', f's{sT1}')[part]} offen offset:{1024*mu} {self.c.hs}", "vm") for part in range(2) for mu in range(2)]
        w = Seq(); w.wds(tr)
        B.append(list(w) + st)
        return lb, B, st[-1]

    def base_stream(self):
        f = Seq()
        T = 88; D = 20; r = 24
        f.wvm(self.xl[-1])
        f.e(f"v_lshlrev_b32 v{D}, 16, v38", f"v_and_b32 v{D+1}, 0xffff0000, v38", f"v_lshlrev_b32 v{D+2}, 16, v39", f"v_and_b32 v{D+3}, 0xffff0000, v39")
        for ii in range(4):
            b = BASE + 4 * ii
            f.e(f"v_mov_b32 v{r}, v{b+2}", f"v_lshlrev_b32 v{r+1}, 16, v{b+3}",
                f"v_lshlrev_b32 v{b+2}, 16, v{b+1}", f"v_and_b32 v{b+3}, 0xffff0000, v{b+1}", f"v_and_b32 v{b+1}, 0xffff0000, v{b}", f"v_lshlrev_b32 v{b}, 16, v{b}")
            for e in range(4): f.e(f"v_add_f32 v{T+e}, v{b+e}, v{r+1}")
            def rnd():
                f.e(f"v_cvt_pk_bf16_f32 v{T+4}, v{T}, v{T+1}", f"v_cvt_pk_bf16_f32 v{T+5}, v{T+2}, v{T+3}",
                    f"v_lshlrev_b32 v{T}, 16, v{T+4}", f"v_and_b32 v{T+1}, 0xffff0000, v{T+4}", f"v_lshlrev_b32 v{T+2}, 16, v{T+5}", f"v_and_b32 v{T+3}, 0xffff0000, v{T+5}")
            rnd()
            for e in range(4): f.e(f"v_mul_f32 v{T+e}, v{T+e}, v{r}")
            rnd()
            for e in range(4): f.e(f"v_mul_f32 v{T+e}, v{T+e}, v{D+e}")
            rnd()
            for e in range(4): f.e(f"v_add_f32 v{b+e}, v{b+e}, v{T+e}")
        return groups(f)

    def phase2(self, q):
        c = self.c
        NR = c.nring; ak = c.akept; NT = c.ntail; LEAD = c.lead
        assert ak % 2 == 0 and ak <= 8 and NR >= LEAD + NT - 1 and NR <= 10
        wl, sl, rl, ll, B = self.left
        ssm_last = self.ssm_last
        for g in sl + rl: q.e(*g)
        f, st2 = self.ffn_epi(ACC_F2, vHF2)
        q.extend(merge(f, [[self.fa]] + ll + wl[:c.left_pre], start=0))
        wl = wl[c.left_pre:]
        k = c.b_mid
        q.e(st2[0])
        if any(x.kind == "label" for x in B[0]):
            q.e(st2[1]); st2 = st2[1:]; q.e(*B.pop(0))
        f = Seq()
        for g in B[:k]: f.e(*g)
        q.extend(merge(f, [[x] for x in st2[1:]], end=min(len(f), 40)))
        B = B[k:] + [self.hst]
        if len(B) == 1: q.e(*B.pop())
        self.stamp(q)
        q.extend(self.check("fa", [self.fa], self.tags([vFP], 0xff)))
        self.stamp(q)
        ACC = (96, 160)
        steps = [(0, j) for j in range(8)] + [(1, j) for j in range(ak)] + [(0, j) for j in range(8, 22)] + [(1, j) for j in range(ak, 22)]
        firstB = 8 + ak; sent_done = firstB + 13
        ld = {}
        def issue(n):
            ps, j = steps[n]
            a = 176 + 8 * (n % NR)
            blk = (sB0, sB1)[ps]
            g = []
            if j % 2 == 0:
                if j < 14:
                    pc = (0, 1, 2, 5)[j // 4]
                    if j % 4 == 2 and steps[n-1] == (ps, j - 1): g.append(I(f"s_xor_b32 s{sKW}, s{sKW}, 4096"))
                    else:
                        g.append(I(f"s_add_u32 s{sKW}, s{blk}, s{UO[pc]}"))
                        if j % 4: g.append(I(f"s_xor_b32 s{sKW}, s{sKW}, 4096"))
                elif j == 14: g.append(I(f"s_add_u32 s{sKW}, s{blk}, s{sHS}"))
                elif j == 18: g += [I(f"s_xor_b32 s{sKW}, s{sHS}, 8192"), I(f"s_add_u32 s{sKW}, s{sKW}, s{blk}")]
                else: g.append(I(f"s_xor_b32 s{sKW}, s{sKW}, 4096"))
            o = 2048 * (j % 2)
            ld[n, 0] = I(f"buffer_load_dwordx4 {ar(a)}, v33, {srd(R_SY)}, s{sKW} offen offset:{o} sc1", "vm")
            ld[n, 1] = I(f"buffer_load_dwordx4 {ar(a+4)}, v33, {srd(R_SY)}, s{sKW} offen offset:{o+1024} sc1", "vm")
            return [g + [ld[n, 0]], [ld[n, 1]]]
        order = []
        n = 0
        while n < 44:
            if n in (sent_done + 1 - NT, 44 - NT):
                for k in range(4): order += [(m, k) for m in range(n, n + NT)]
                n += NT
            else:
                order += [(n, k) for k in range(4)]; n += 1
        pos = {e: i for i, e in enumerate(order)}
        L0 = c.lead0
        f = Seq()
        for g in B[:-1]: f.e(*g)
        q.extend(merge(f, [g for n in range(L0) for g in issue(n)]))
        if B: q.e(*B[-1])
        if c.flagB_at < 0: q.extend(self.flag_store(1, ssm_last))
        fs = I(f"buffer_load_dword v{vFP}, v36, {srd(R_SY)}, 0 offen offset:128 sc1", "vm")
        st = Seq(); self.stamp(st)
        gate = 4 * firstB - c.gate_lead
        L = []
        for n in range(L0, 44):
            nb = max(4 * (n - LEAD), 0)
            nb = min(nb, max(4 * (n - c.lead2), c.fast_from))
            if n >= NR: nb = max(nb, max(pos[n - NR, k] for k in range(4)))
            if n >= firstB: nb = max(nb, gate)
            if firstB < n < firstB + c.burst:
                assert nb <= gate
                L[-1] += [x for g in issue(n) for x in g]; continue
            L.append(("nb", nb))
            if n == firstB: L.append(self.check("fs", [fs], self.tags([vFP], 0xffff)) + list(st) + [x for g in issue(n) for x in g])
            else: L += issue(n)
        sL = Stream(L, every=2)
        P = ([("nb", c.flagB_at)] + [self.flag_store(1, ssm_last)] if c.flagB_at >= 0 else []) + [("nb", gate - c.fs_lead), [fs]]
        sP = Stream(P, dl=gate - 1)
        Wc = self.w2_reads(2) + [("nb", c.flagB_at + 1)] + wl + self.w2_reads(5) + [("nb", c.rc_at)]
        Wc += self.w2_reads(3) + self.w2_reads(4)
        d_c = 4 * (firstB + 3)
        sWc = Stream(Wc, start=1, dl=d_c, every=c.wc_every)
        sB = Stream(self.base_left)
        XV = 64; TB = 80
        s = Seq()
        if c.xbf:
            for k in range(3): s.e(f"v_mov_b32 v{XV+4*k+3}, s{sTAG}")
        else:
            s.e(f"v_mov_b32 v{TB}, s{sTAG}")
            for k in range(1, 4): s.e(f"v_lshrrev_b32 v{TB+k}, {8*k}, v{TB}")
        s.e(f"s_movk_i32 s{sT2}, 0xff")
        R0 = [("nb", d_c + 6)] + groups(s)
        def tile(k): return (k & 1, k >> 1)
        def red_write(ps, lastn):
            out = []
            for k in range(4):
                nu, mu = tile(k)
                out.append(("nb", pos[lastn, k] + 2))
                for g4 in range(4):
                    out.append([I(f"ds_write_b128 v{vRW+g4}, {vr(ACC[ps] + 32*nu + 16*mu + 4*g4)} offset:{128*nu + 8192*mu}", "ds")])
            return out
        def red_read(s, dst):
            return [s.e(f"ds_read_b128 {vr(dst + 16*ii + 4*src)}, v{vRR} offset:{1024*ii + 16384*src}") for ii in range(4) for src in range(4)]
        s = Seq()
        s.wds_all(); s.e("s_barrier")
        R = red_read(s, 96)
        for g4 in range(4): s.e(f"v_subrev_u32 v{vRW+g4}, {L_SP}, v{vRW+g4}")
        Ga = groups(s); s = Seq()
        NS = 3 if c.xbf else 4
        if c.red_bare:
            for ii in range(4):
                s.wds(R[4 * ii + 3])
                s0 = 96 + 16 * ii; d = XV + 4 * ii
                for e in range(2):
                    s.e(f"v_pk_add_f32 {vr(s0+2*e,2)}, {vr(s0+2*e,2)}, {vr(s0+4+2*e,2)}", f"v_pk_add_f32 {vr(s0+8+2*e,2)}, {vr(s0+8+2*e,2)}, {vr(s0+12+2*e,2)}")
                for e in range(2): s.e(f"v_pk_add_f32 {vr(s0+2*e,2)}, {vr(s0+2*e,2)}, {vr(s0+8+2*e,2)}")
                if c.xbf:
                    for e in range(2):
                        k = 2 * ii + e
                        s.e(f"v_cvt_pk_bf16_f32 v{XV + (k // 3) * 4 + k % 3}, v{s0+2*e}, v{s0+2*e+1}")
                    if ii: s.e(f"buffer_store_dwordx4 {vr(XV+4*(ii-1))}, v{vXS}, {srd(R_SY)}, 0 offen offset:{1024*(ii-1)} sc1")
                else:
                    for e in range(4): s.e(f"v_bfi_b32 v{d+e}, s{sT2}, v{TB+e}, v{s0+e}")
                    s.e(f"buffer_store_dwordx4 {vr(d)}, v{vXS}, {srd(R_SY)}, 0 offen offset:{1024*ii} sc1")
            s.e(f"v_subrev_u32 v{vRR}, {L_SP}, v{vRR}")
            Gb = []
        else:
            for ii in range(4):
                s.wds(R[4 * ii + 3])
                for e in range(4):
                    d = XV + 4 * ii + e; s0 = 96 + 16 * ii + e
                    s.e(f"v_add_f32 v{s0}, v{s0}, v{s0+4}", f"v_add_f32 v{d}, v{s0+8}, v{s0+12}", f"v_add_f32 v{d}, v{d}, v{s0}",
                        f"v_bfi_b32 v{d}, s{sT2}, v{TB+e}, v{d}")
            s.e(f"v_subrev_u32 v{vRR}, {L_SP}, v{vRR}")
            Gb = groups(s)
            s = Seq()
            for k in range(4): s.e(f"buffer_store_dwordx4 {vr(XV+4*k)}, v{vXS}, {srd(R_SY)}, 0 offen offset:{1024*k} sc1")
        self.stamp(s)
        e0 = 4 * (sent_done + 1)
        XR = 40
        xl = [I(f"buffer_load_dwordx4 {vr(XR+4*k)}, v{vXR}, {srd(R_SY)}, 0 offen offset:{1024*k} sc1", "vm") for k in range(NS)]
        sR = Stream(R0 + red_write(0, sent_done) + [("nb", e0 + c.bar_lag)] + Ga + [("nb", e0 + c.bar_lag + c.add_lag)] + Gb + [("nb", 4 * c.send_at)] + [list(s)]
                    + red_write(1, 43), wev=c.wev)
        sX = Stream([[x] for x in xl], start=c.xl_at, every=2)
        q.wds(self.w2_rd[1])
        emitted = set(id(x) for x in q)
        for gi, (n, k) in enumerate(order):
            ps, j = steps[n]; nu, mu = tile(k)
            a = 176 + 8 * (n % NR); d = ACC[ps] + 32 * nu + 16 * mu
            while not any(ld[n, mu] is x for x in q[-400:]):
                g = sL.it.pop(0)
                if not isinstance(g, tuple): q.e(*g)
            q.wvm(ld[n, mu])
            if n == firstB: q.wds(self.w2_rd[2])
            if n == firstB + 4: q.wds(self.w2_rd[5])
            if n == firstB + 6: q.wds(self.w2_rd[4])
            if k == 0 and n in c.p2stamps: self.stamp(q)
            q.e(f"v_mfma_f32_32x32x16_bf16 {vr(d,16)}, {ar(8*j+4*nu)}, {ar(a+4*mu)}, {'0' if j == 0 else vr(d,16)}")
            sL.every = 1.5 if c.fast_from <= gi < c.fast_to else 2
            fill_gap(q, gi, 0.5, c.cap4 if gi >= e0 else c.cap3, [sP, sL, sWc, sR, sX, sB])
        self.stamp(q)
        flush(q, [sR, sX, sB])
        pre = [f"s_mov_b32 s{sT0}, 0x0c0c0400", f"s_mov_b32 s{sT1}, 0x05040100"]
        for k in range(4):
            r = XR + 4 * k
            pre += [f"v_perm_b32 v60, v{r+1}, v{r}, s{sT0}", f"v_perm_b32 v61, v{r+3}, v{r+2}, s{sT0}", f"v_perm_b32 v{56+k}, v61, v60, s{sT1}"]
        def recv():
            if c.xbf:
                q.extend(self.check("xc", xl, self.tags([XR + 4 * k + 3 for k in range(3)])))
                self.stamp(q)
                for k in range(8):
                    r = XR + (k // 3) * 4 + k % 3
                    q.e(f"v_lshlrev_b32 v{64+2*k}, 16, v{r}", f"v_and_b32 v{65+2*k}, 0xffff0000, v{r}")
                for e in range(8): q.e(f"v_pk_add_f32 {vr(BASE+2*e,2)}, {vr(BASE+2*e,2)}, {vr(64+2*e,2)}")
                return
            q.extend(self.check("xc", xl, pre + self.tags([56 + k for k in range(4)])))
            self.stamp(q)
            for e in range(16): q.e(f"v_and_b32 v{XR+e}, 0xffffff00, v{XR+e}")
            for e in range(8): q.e(f"v_pk_add_f32 {vr(BASE+2*e,2)}, {vr(BASE+2*e,2)}, {vr(XR+2*e,2)}")
        if c.recv_early: recv()
        q.wds_all(); q.e("s_barrier")
        R = red_read(q, 96)
        if not c.recv_early: recv()
        for ii in range(4):
            s0 = 96 + 16 * ii
            q.wds(R[4 * ii + 1])
            for e in range(2): q.e(f"v_pk_add_f32 {vr(s0+2*e,2)}, {vr(s0+2*e,2)}, {vr(BASE+4*ii+2*e,2)}")
            for e in range(2): q.e(f"v_pk_add_f32 {vr(s0+2*e,2)}, {vr(s0+2*e,2)}, {vr(s0+4+2*e,2)}")
            q.wds(R[4 * ii + 3])
            for e in range(2): q.e(f"v_pk_add_f32 {vr(s0+8+2*e,2)}, {vr(s0+8+2*e,2)}, {vr(s0+12+2*e,2)}")
            q.e(f"s_movk_i32 s{sT0}, {8192*ii}")
            for e in range(2): q.e(f"v_pk_add_f32 {vr(s0+2*e,2)}, {vr(s0+2*e,2)}, {vr(s0+8+2*e,2)}")
            q.e(f"buffer_store_dwordx4 {vr(s0)}, v19, {srd(R_OUT)}, s{sT0} offen {c.ost}")
        q.e(f"s_lshl_b32 s{sT0}, s{sG}, 2", f"s_or_b32 s{sT0}, s{sT0}, s{sW}", f"s_lshl_b32 s{sT0}, s{sT0}, 4", f"s_or_b32 s{sT0}, s{sT0}, s{sC}",
            f"s_cmp_eq_u32 s{sT0}, 15", "s_cbranch_scc0 L_nobump", "v_mov_b32 v57, 0", "s_mov_b64 exec, 1")
        q.e(f"buffer_store_dword v251, v57, {srd(R_SY)}, 0 offen sc1")
        q.e("s_mov_b64 exec, -1")
        q.label("L_nobump")

    def write_ts(self, q):
        if not self.c.ts: return
        q.wds_all(); q.wvm_all()
        q.e("s_memtime s[46:47]", "s_memrealtime s[92:93]"); q.wds_all()
        q.e(f"s_lshl_b32 s{sT0}, s2, 2", f"s_add_u32 s{sT0}, s{sT0}, s{sW}", f"s_lshl_b32 s{sT0}, s{sT0}, 6", f"s_add_u32 s{sT0}, s{sT0}, {WS_TS}", "v_mov_b32 v2, 0")
        q.e("s_mov_b64 exec, 1")
        def put(k): q.e(f"buffer_store_dword v3, v2, {srd(R_SY)}, s{sT0} offen offset:{4*k}")
        for k in range(self.nts + 2):
            if k == 0: q.e("v_mov_b32 v3, v255")
            elif k == self.nts + 1: q.e("s_sub_u32 s46, s46, s42", "v_mov_b32 v3, s46")
            else:
                r = TSREG[k - 1]; q.e(f"s_sub_u32 s{r}, s{r}, s42", f"v_mov_b32 v3, s{r}")
            put(k)
        q.e("v_mov_b32 v3, s92"); put(15)
        q.wvm_all()

    def add_prof(self, q):
        lo, step = self.c.prof
        out = Seq(); unsafe = False; started = False; acc = 0; n = 0; idx = 0; nm = 0
        NP = len(TSREG)
        self.prof_pts = []
        for ins in q:
            t = ins.t
            if started and not unsafe and n < 64 and idx >= lo and acc >= step and ins.kind not in WAITK and not t.startswith(("s_cbranch", "s_branch", "s_cselect", "s_addc")) and ins.kind != "label":
                r = TSREG[n % NP]
                if n >= NP: out.e(f"v_writelane_b32 v0, s{r}, {n - NP}")
                out.e(f"s_memtime s[{r}:{r+1}]"); self.prof_pts.append((idx, nm, t[:50])); n += 1; acc = 0
            out.append(ins)
            if t == "s_barrier": started = True
            if started and ins.kind != "label":
                idx += 1; acc += 1
                if t.startswith("v_mfma"): nm += 1
            if t.startswith("s_cbranch"): unsafe = started
            if ins.kind == "label" and (t.endswith("_ok:") or t.startswith("L_nobump")): unsafe = False
        out.wds_all()
        for k in range(max(0, n - NP), n): out.e(f"v_writelane_b32 v0, s{TSREG[k % NP]}, {k}")
        out.e(f"s_lshl_b32 s{sT0}, s2, 2", f"s_add_u32 s{sT0}, s{sT0}, s{sW}", f"s_lshl_b32 s{sT0}, s{sT0}, 8", f"s_add_u32 s{sT0}, s{sT0}, {WS_TS + 65536}",
              "v_subrev_u32 v0, s42, v0", f"v_lshlrev_b32 v2, 2, v{vL}")
        out.e(f"buffer_store_dword v0, v2, {srd(R_SY)}, s{sT0} offen")
        return out

    def build(self):
        q = Seq()
        q.label("L_start")
        last = self.prologue(q)
        self.phase1(q, last)
        self.phase2(q)
        if self.c.prof: q = self.add_prof(q)
        self.write_ts(q)
        if self.c.spin_to:
            q.e("s_waitcnt lgkmcnt(0)")
            if self.c.spin_x >= 0: q.e("s_and_b32 s46, s2, 7", f"s_cmp_eq_u32 s46, {self.c.spin_x}", "s_cbranch_scc0 L_end")
            if self.c.probe: q.e("s_sub_u32 s68, s68, s42", f"s_add_u32 s68, s68, {self.c.spin_to}")
            else: q.e(f"s_mov_b32 s68, {self.c.spin_to}")
            q.label("L_spin")
            q.e("s_memrealtime s[46:47]", "s_waitcnt lgkmcnt(0)", "s_sub_u32 s46, s46, s42", "s_cmp_lt_u32 s46, s68", "s_cbranch_scc1 L_spin")
        q.label("L_end")
        q.e("s_endpgm")
        q.extend(self.ool)
        q.label("L_fin")
        return finalize(q)

HDR = """; @launch grid=(256,1,1) block=(256,1,1) lds=163840
.amdgcn_target "amdgcn-amd-amdhsa--gfx950"
.text
.globl {n}_kernel
.p2align 8
.type {n}_kernel,@function
{n}_kernel:
"""
TAIL = """
.section .rodata,"a"
.p2align 6
.amdhsa_kernel {n}_kernel
  .amdhsa_next_free_vgpr 512
  .amdhsa_next_free_sgpr 102
  .amdhsa_accum_offset 256
  .amdhsa_group_segment_fixed_size 0
  .amdhsa_kernarg_size 120
  .amdhsa_user_sgpr_count 2
  .amdhsa_user_sgpr_kernarg_segment_ptr 1
  .amdhsa_system_sgpr_workgroup_id_x 1
.end_amdhsa_kernel
"""
def generate(cfg):
    g = Gen(cfg)
    body = g.build()
    return HDR.format(n=NAME) + "\n".join(("" if l.endswith(":") else "    ") + l for l in body) + TAIL.format(n=NAME), g

if __name__ == "__main__":
    cfg = Cfg()
    for a in sys.argv[2:]:
        k, v = a.split("=", 1); assert hasattr(cfg, k), k; setattr(cfg, k, eval(v))
    txt, g = generate(cfg)
    open(sys.argv[1], "w").write(txt)
```

```python
import sys, struct
from asmlib import *

NAME = "parallel_sum__ssm_conv_s5__dense_activation_relu__prompt"
def f2u(x): return struct.unpack("<I", struct.pack("<f", x))[0]
def fh(x): return hex(f2u(x))

WS_CS   = 262144
WS_FLAG = 524288
WS_STAT = 786432
WS_AGG  = 1 << 20
WS_XCH  = 2 << 20
WS_TS   = (7 << 20) + (1 << 19)
WS_H    = 8 << 20
HBLK = 88 * 2048
WS_END = WS_H + 64 * HBLK
TAGK = 0x9E3779B9
OOB = 0x40000000

sCO, sW, sWM, sWN, sC, sG, sGL, sU0, sORD, sXB, sT0, sT1, sT2 = 3, 4, 5, 6, 7, 8, 9, 10, 11, 12, 13, 14, 15
P_X, P_LRE, P_LIM, P_BRE, P_BIM, P_CRE, P_CIM, P_LDT = 16, 18, 20, 22, 24, 26, 28, 30
P_DSK, P_W1, P_W2, P_OUT, P_WS = 32, 36, 38, 40, 44
sU1, sK4 = 34, 35
sM = 46
R_X, R_BS, R_W1A, R_W1B, R_W2, R_CRE, R_CIM, R_OUT, R_SY = 48, 52, 56, 60, 72, 76, 80, 84, 88
R_AG = R_BS
sB0, sB1, sHS, sNV = 64, 65, 66, 67
sUO = 32
UO = {0: 32, 1: 33, 2: 100, 5: 101}
sKX, sKW, sLB, sONES, sTAG, sPOLL, sLE, sW2O = 92, 93, 94, 95, 96, 97, 98, 99
TSREG = [16, 18, 20, 22, 24, 26, 28, 30, 36, 38, 40, 68]
def srd(r): return f"s[{r}:{r+3}]"

vL = 1
BASE = 2
ACC_S, ACC_F1, ACC_F2 = 64, 96, 128
FR = 160
RA, RS, RF = 176, 180, 184
vX, vB, vW = 200, 204, 206
vSTS, vCSS, vGS, vGC, vPF, vAGS, vHF1, vHF2, vGR = 208, 209, 210, 211, 214, 215, 216, 217, 218
CS = 220
vW2, vC2, vTR, vCR, vTA, vLBK, vFP, vHS, vFL, vXS, vXR, vRW, vRR, vTW, vTD = 224, 228, 232, 233, 234, 238, 239, 242, 243, 244, 245, 246, 250, 252, 254
def vr(a, n=4): return f"v[{a}:{a+n-1}]"
def ar(a, n=4): return f"a[{a}:{a+n-1}]"

LBR = 96
SLOT = 32768; WBLK = 8192
L_SP = 98304; SPW = 16384
L_CS = 0

class Cfg:
    ts = False; ts_stages = (); ts_max = 12; ts_min = 0; prof = None; p2stamps = ()
    order = "xa"
    pf_from = 2; pf_n = 28; pf_step = 12
    early_from = 1; early_n = 2; early_last = 6
    cap1 = 5.5; cap2 = 5.5; cap3 = 5
    stat_at = 2; gather_at = 86; check_at = 108
    w2_first = 8; w2_at2 = 24; w2_n2 = 12; w2_at3 = 64; fa_late = False; lb_at = 50; lb_grp = 2; left_pre = 0; g9_pre = 4; r0_at = 10; b_at = 64; b_mid = 60; lb_every = 1; rc_at = 40
    akept = 6; nring = 10; lead = 6; ntail = 4
    lead0 = 4; flagB_at = 15; fs_lead = 4; gate_lead = 20; wc_every = 2; burst = 1
    bar_lag = 7; send_at = 0; xl_at = 164; wev = 1
    poll_sleep = 1
    probe = 0
    hs = 'sc1'; prest = {}
    lead2 = 10; fast_from = 96; fast_to = 140; recv_early = False; red_bare = True; xbf = False
    s_first = True
    boot = 0; boot_late = True; boot_bar = True
    spin_x = -1
    add_lag = 4; cap4 = 8
    l2pf_at = 99; pt_at = 2
    hrot = True
    nt_upto = 0; nt_srd = (48, 52, 56, 60)
    strow_at = -2
    spin_to = 0
    ost = 'nt'

def mk_srd(q, r, p, size):
    q.e(f"s_mov_b32 s{r}, s{p}", f"s_and_b32 s{r+1}, s{p+1}, 0xffff", f"s_mov_b32 s{r+2}, {size}", f"s_mov_b32 s{r+3}, 0x20000")

WAITK = ("wvm", "wds", "wvm0", "wds0")
def groups(seq):
    G = []; cur = []
    for ins in seq:
        cur.append(ins)
        if ins.kind not in WAITK and not ins.t.startswith(("v_cmp", "s_cmp")):
            G.append(cur); cur = []
    if cur: G.append(cur)
    return G
def cost(g):
    c = 0
    for i in g:
        if i.kind == "label": continue
        if i.kind in WAITK: c += 0.5
        elif i.t.startswith(TRANS): c += 2
        elif i.t.startswith("ds_write_b128"): c += 3
        else: c += 1
    return c

class Stream:
    def __init__(self, items, start=0, dl=None, every=1, wev=1):
        self.it = list(items); self.nb = start; self.dl = dl; self.every = every; self.wev = wev
    def ready(self, gap):
        while self.it and isinstance(self.it[0], tuple):
            self.nb = max(self.nb, self.it.pop(0)[1])
        return bool(self.it) and gap >= self.nb
    def pop(self, gap):
        g = self.it.pop(0)
        if self.every > 1 and any(i.kind == "vm" for i in g): self.nb = gap + int(self.every)
        if any(i.t.startswith("ds_write_b128") for i in g): self.nb = gap + self.wev
        return g
    def rest(self):
        r = [g for g in self.it if not isinstance(g, tuple)]; self.it = []; return r

def fill_gap(q, gap, used, cap, streams):
    for s in streams:
        if s.dl is not None and gap >= s.dl:
            for g in s.rest(): q.e(*g); used += cost(g)
    for s in streams:
        while s.ready(gap) and (used + cost(s.it[0]) <= cap or (used <= cap - 2 and cost(s.it[0]) > 3)):
            g = s.pop(gap); q.e(*g); used += cost(g)
def flush(q, streams):
    for s in streams:
        for g in s.rest(): q.e(*g)

def pack_order(o): return sum(v << (4 * k) for k, v in enumerate(o))
def hyb(xa):
    first = [0, (1 + 2 * xa), (2 + 2 * xa) & 7 or 1]
    rest = [v for v in [(3 + 2 * xa + k) & 7 for k in range(8)] if v not in first]
    return first + rest
ORDERS = {"xa": [[(i + 2 * xa) & 7 for i in range(8)] for xa in range(4)],
          "none": [list(range(8))] * 4,
          "two": [[(i + 4 * (xa & 1)) & 7 for i in range(8)] for xa in range(4)],
          "hyb": [hyb(xa) for xa in range(4)]}

class Gen:
    def __init__(self, cfg):
        self.c = cfg; self.nts = 0; self.nreq = 0; self.w2_last = {}; self.w2_rd = {}; self.ool = Seq()
    def stamp(self, q):
        self.nreq += 1
        if self.c.probe == self.nreq: q.e("s_memrealtime s[68:69]")
        if self.c.ts and self.nts < self.c.ts_max and self.nreq > self.c.ts_min:
            r = TSREG[self.nts]
            q.e(f"s_memtime s[{r}:{r+1}]"); self.nts += 1

    def stage_dma(self, i):
        base = (i % 3) * SLOT
        def ld(v, r, so, off):
            fl = " nt" if (i < self.c.nt_upto and r in self.c.nt_srd) else ""
            return I(f"buffer_load_dwordx4 v{v}, {srd(r)}, s{so} offen offset:{off}{fl} lds", "vm")
        def m0(o): return I(f"s_add_u32 m0, s{sLB}, {base + o}")
        def st(k): return I(f"s_bfe_u32 s{sKW}, s{sORD}, {(3 << 16) | (4 * k)}")
        mul = lambda: I(f"s_mul_i32 s{sKW}, s{sKW}, {64*3584}")
        G = []
        if i < 8:
            G.append([m0(0), st(i), I(f"s_lshl_b32 s{sKX}, s{sKW}, 7"), ld(vX, R_X, sKX, 0)])
            for j in range(1, 4): G.append([ld(vX + j, R_X, sKX, 1024 * j)])
            G.append([m0(4096), mul(), ld(vB, R_BS, sKX, 0)]); G.append([ld(vB + 1, R_BS, sKX, 1024)])
            G.append([m0(6144), ld(vW, R_W1A, sKW, 0)]); G.append([ld(vW + 1, R_W1A, sKW, 1024)])
        else:
            for t in range(4):
                G.append([m0(2048 * t), st(4 * (i - 8) + t), mul(), ld(vW, R_W1B, sKW, 0)])
                G.append([ld(vW + 1, R_W1B, sKW, 1024)])
        return G, G[-1][-1]

    def fb(self, n): return ACC_F2 + 8 * (n & 3) if n < 32 else FR - 4 + 4 * (n & 3)
    def frag_reads(self, n):
        b = self.fb(n)
        if n < 32:
            i, p = divmod(n, 4); slot = i % 3
            hi = 12 if slot == 2 else 0; o = SLOT if slot == 1 else 0
            S = I(f"ds_read_b128 {vr(b)}, v{RS+hi+p} offset:{o}", "ds")
            A0 = I(f"ds_read_b128 {ar(8*n)}, v{RA+hi+p} offset:{o}", "ds")
            A1 = I(f"ds_read_b128 {ar(8*n+4)}, v{RA+hi+p} offset:{o+WBLK}", "ds")
            F = [I(f"ds_read_b64_tr_b16 {vr(b+4+2*k, 2)}, v{RF+hi+p} offset:{o + 6144 + k*512}", "ds") for k in range(2)]
            return [S, A0, A1] + F
        if n >= 64: return []
        i, p = divmod(n - 32, 4)
        hi = 12 if i < 4 else 0
        return [I(f"ds_read_b64_tr_b16 {vr(b+4+2*k, 2)}, v{RF+hi+p} offset:{2048*(i&3) + k*512}", "ds") for k in range(2)]

    def prologue(self, q):
        c = self.c
        q.e("s_cmp_ge_u32 s2, 256", "s_cbranch_scc1 L_end")
        q.e("s_load_dwordx16 s[16:31], s[0:1], 0", "s_load_dwordx4 s[36:39], s[0:1], 80", "s_load_dwordx2 s[44:45], s[0:1], 112",
            "s_load_dwordx2 s[32:33], s[0:1], 64", "s_load_dwordx2 s[40:41], s[0:1], 96")
        q.e("s_getpc_b64 s[64:65]", "L_pc:", "s_and_b32 s3, s2, 0xf8", "s_lshl_b32 s3, s3, 7", "v_lshlrev_b32 v9, 2, v0", "v_add_u32 v9, s3, v9",
            "v_min_u32 v9, L_fin-L_pc-4, v9")
        q.e("global_load_dword v10, v9, s[64:65]")
        if c.ts: q.e("s_memtime s[42:43]", "s_memrealtime s[46:47]")
        if c.spin_to: q.e("s_memrealtime s[42:43]")
        q.e(f"v_and_b32 v{vL}, 63, v0", "v_lshrrev_b32 v2, 6, v0", f"v_readfirstlane_b32 s{sW}, v2")
        O = [pack_order(o) for o in ORDERS[c.order]]
        q.e("s_bitcmp1_b32 s2, 1", f"s_mov_b32 s{sT0}, {O[0]:#x}", f"s_cmov_b32 s{sT0}, {O[1]:#x}", f"s_mov_b32 s{sORD}, {O[2]:#x}", f"s_cmov_b32 s{sORD}, {O[3]:#x}",
            "s_bitcmp0_b32 s2, 2", f"s_cmov_b32 s{sORD}, s{sT0}")
        q.e(f"s_and_b32 s{sXB}, s2, 1", f"s_and_b32 s{sT0}, s2, 6", f"s_lshr_b32 s{sT2}, s2, 6",
            f"s_lshl1_add_u32 s{sC}, s{sT0}, s{sT2}", f"s_bfe_u32 s{sGL}, s2, 0x30003", f"s_lshl3_add_u32 s{sG}, s{sXB}, s{sGL}")
        q.e(f"s_and_b32 s{sT2}, s{sT2}, 1", f"s_lshl1_add_u32 s{sT0}, s{sGL}, s{sT2}", f"s_add_u32 s{sT1}, s{sGL}, 6",
            f"s_cmp_lt_u32 s{sGL}, 6", f"s_cselect_b32 s{sU0}, s{sT0}, s{sT1}", f"s_cselect_b32 s{R_W1B+2}, {512*3584}, 0", f"s_xor_b32 s{sU1}, s{sU0}, 1",
            f"s_lshr_b32 s{sWM}, s{sW}, 1", f"s_and_b32 s{sWN}, s{sW}, 1", f"s_lshl_b32 s{sLB}, s{sW}, 13")
        q.e(f"v_lshrrev_b32 v2, 3, v{vL}", f"v_and_b32 v3, 7, v{vL}", f"v_lshrrev_b32 v4, 4, v{vL}")
        q.e("v_xor_b32 v5, v3, v4", "v_lshlrev_b32 v5, 4, v5")
        q.e(f"v_lshrrev_b32 v7, 5, v{vL}", "v_and_b32 v8, 3, v2", "v_lshl_add_u32 v7, v7, 4, v8",
            f"s_lshl2_add_u32 s{sT0}, s{sC}, s{sW}", f"s_lshl_b32 s{sT0}, s{sT0}, 5",
            f"v_add_u32 v7, s{sT0}, v7", f"v_lshl_add_u32 v{vX}, v7, 10, v5",
            f"v_xor_b32 v{vX+1}, 64, v{vX}", f"v_add_u32 v{vX+1}, {3072}, v{vX+1}",
            f"v_add_u32 v{vX+2}, {6144}, v{vX}", f"v_add_u32 v{vX+3}, {6144}, v{vX+1}")
        q.e(f"s_lshl1_add_u32 s{sK4}, s{sG}, s{sWN}", f"s_lshl_b32 s{sK4}, s{sK4}, 4",
            f"v_add_u32 v7, s{sK4}, v2", f"v_lshl_add_u32 v{vB}, v7, 10, v5",
            f"v_xor_b32 v{vB+1}, 64, v{vB}", f"v_add_u32 v{vB+1}, {7168}, v{vB+1}")
        q.e(f"s_lshl_b32 s{sT0}, s{sW}, 4", f"v_add_u32 v7, s{sT0}, v2", "v_mul_u32_u24 v7, 3584, v7",
            "v_and_b32 v8, 1, v4", "v_lshlrev_b32 v8, 2, v8", "v_xor_b32 v8, v8, v3", f"v_lshl_add_u32 v{vW}, v8, 4, v7",
            f"v_add_u32 v{vW+1}, {8*3584-1024}, v{vW}",
            f"s_mul_i32 s{sT0}, s{sXB}, 14", f"s_add_u32 s{sT1}, s{sT0}, s{sU1}", f"s_add_u32 s{sT0}, s{sT0}, s{sU0}",
            f"s_lshl_b32 s{R_W1A}, s{sT0}, 7", f"s_lshl_b32 s{R_W1B}, s{sT1}, 7",
            f"s_sub_u32 s{R_W1A+2}, {512*3584}, s{R_W1A}", f"s_max_u32 s{R_W1B+2}, s{R_W1B+2}, s{R_W1B}", f"s_sub_u32 s{R_W1B+2}, s{R_W1B+2}, s{R_W1B}")
        for r, size in ((R_X, 2048*1024), (R_BS, 512*1024)): q.e(f"s_mov_b32 s{r+2}, {size}")
        for r in (R_X, R_BS, R_W1A, R_W1B): q.e(f"s_mov_b32 s{r+3}, 0x20000")
        q.e(f"v_lshl_add_u32 v{vC2}, v2, 10, v5", "v_lshlrev_b32 v7, 10, v2", f"v_lshl_add_u32 v{vW2}, v8, 4, v7")
        q.e(f"v_lshlrev_b32 v33, 4, v{vL}", f"v_and_b32 v6, 15, v{vL}", f"v_add_lshl_u32 v11, v6, s{sK4}, 1", "v_mov_b32 v15, 0")
        q.e(f"s_lshl1_add_u32 s{sT2}, s{sC}, s{sWM}", f"s_lshl4_add_u32 s{sT2}, s{sT2}, s{sG}", f"s_lshl1_add_u32 s{sT2}, s{sT2}, s{sWN}",
            f"s_lshl_b32 s{sPOLL}, s{sT2}, 11")
        G0, l0 = self.stage_dma(0)
        q.e(*G0[0][:-1])
        q.wds_all()
        if c.ts: q.e("v_mov_b32 v255, s46")
        if c.boot:
            b = c.boot
            q.e(f"v_lshlrev_b32 v17, 7, v{vL}", f"s_cmp_eq_u32 s{sW}, 2", "s_cbranch_scc1 L_b2")
            q.e(f"s_cmp_eq_u32 s{sW}, 0", f"s_cselect_b64 s[46:47], s[{P_X}:{P_X+1}], s[{P_W1}:{P_W1+1}]", "s_cselect_b32 s70, 64, 56",
                f"s_cmp_eq_u32 s{sW}, 3", f"s_cselect_b64 s[46:47], s[{(P_W2 if b == 1 else P_W1)}:{(P_W2 if b == 1 else P_W1)+1}], s[46:47]",
                "s_lshl_b32 s70, s70, 7", "s_sub_u32 s71, s70, 128", "s_mul_i32 s70, s70, s2", "v_min_u32 v17, s71, v17", "v_add_u32 v17, s70, v17")
            q.append(I("global_load_dword v10, v17, s[46:47]", "o"))
            q.e("s_branch L_b3")
            q.label("L_b2")
            q.e("v_and_b32 v17, 0x780, v17", "s_lshl_b32 s70, s2, 11", "v_add_u32 v17, s70, v17")
            for p in (P_BRE, P_BIM) + ((P_CRE, P_CIM) if b == 1 else ()): q.append(I(f"global_load_dword v10, v17, s[{p}:{p+1}]", "o"))
            q.label("L_b3")
            self.bootq = q; q = self.postq = Seq()
        q.e(f"s_mov_b32 s{R_X}, s{P_X}", f"s_and_b32 s{R_X+1}, s{P_X+1}, 0xffff")
        q.e(G0[0][-1]); [q.e(*g) for g in G0[1:4]]
        q.e(f"s_cmp_eq_u32 s{sWM}, 0", f"s_cselect_b32 s{R_BS}, s{P_BRE}, s{P_BIM}", f"s_cselect_b32 s{R_BS+1}, s{P_BRE+1}, s{P_BIM+1}", f"s_and_b32 s{R_BS+1}, s{R_BS+1}, 0xffff")
        [q.e(*g) for g in G0[4:6]]
        q.e(f"s_and_b32 s{P_W1+1}, s{P_W1+1}, 0xffff", f"s_add_u32 s{R_W1A}, s{P_W1}, s{R_W1A}", f"s_addc_u32 s{R_W1A+1}, s{P_W1+1}, 0")
        [q.e(*g) for g in G0[6:8]]
        q.e(f"s_add_u32 s{R_W1B}, s{P_W1}, s{R_W1B}", f"s_addc_u32 s{R_W1B+1}, s{P_W1+1}, 0")
        last = [l0]
        if c.boot: q = self.bootq
        self.strows = [I(f"buffer_load_dwordx4 {vr(40)}, v33, {srd(R_X)}, s{sPOLL} offen", "vm"), I(f"buffer_load_dwordx4 {vr(44)}, v33, {srd(R_X)}, s{sPOLL} offen offset:1024", "vm")]
        if c.strow_at == -2: q.e(*self.strows)
        self.small0 = q.e(f"global_load_dword v16, v15, s[{P_WS}:{P_WS+1}] sc1")
        q.e(f"global_load_ushort v12, v11, s[{P_LRE}:{P_LRE+1}]", f"global_load_ushort v13, v11, s[{P_LIM}:{P_LIM+1}]")
        self.small = q.e(f"global_load_ushort v14, v11, s[{P_LDT}:{P_LDT+1}]")
        q.e(f"s_lshl_b32 s{sT1}, s{sGL}, 7", f"v_lshl_add_u32 v35, v6, 3, s{sT1}")
        self.dsk = q.e(f"global_load_dwordx2 {vr(38,2)}, v35, s[{P_DSK}:{P_DSK+1}]")
        f = Seq()
        f.e(f"v_and_b32 v2, 31, v{vL}", f"v_lshrrev_b32 v3, 5, v{vL}")
        f.e("v_bfe_u32 v7, v2, 1, 3", "v_xor_b32 v7, v7, v3", "v_lshlrev_b32 v7, 4, v7",
            f"v_lshl_add_u32 v{vCR}, v2, 7, v7",
            f"s_lshl_b32 s{sT1}, s{sWM}, 5", f"v_xor_b32 v7, s{sT1}, v7", f"v_xor_b32 v5, s{sT1}, v{vCR}",
            f"s_lshl_b32 s{sT1}, s{sWM}, 14", f"v_add_u32 v{RA}, s{sT1}, v5")
        f.e("v_lshl_add_u32 v7, v6, 7, v7", "v_and_b32 v8, 16, v2", "v_lshl_add_u32 v7, v8, 10, v7",
            f"s_lshl_b32 s{sT1}, s{sWN}, 13", f"s_add_u32 s{sT1}, s{sT1}, 4096", f"v_add_u32 v{RS}, s{sT1}, v7")
        for p in range(1, 4): f.e(f"v_xor_b32 v{RA+p}, {32*p}, v{RA}", f"v_xor_b32 v{RS+p}, {32*p}, v{RS}")
        f.e("v_lshrrev_b32 v9, 2, v6", "v_lshlrev_b32 v5, 7, v9", "v_and_b32 v7, 3, v6", "v_lshl_add_u32 v5, v7, 3, v5", "v_lshl_add_u32 v5, v8, 1, v5",
            "v_and_b32 v7, 8, v6", "v_lshl_add_u32 v5, v7, 3, v5",
            f"v_lshl_add_u32 v{vTR}, v3, 9, v5",
            "v_lshl_add_u32 v5, v3, 10, v5", f"s_lshl_b32 s{sT1}, s{sWN}, 6", f"s_lshl_b32 s{sT0}, s{sWM}, 13", f"s_or_b32 s{sT1}, s{sT1}, s{sT0}",
            f"v_xor_b32 v{RF}, s{sT1}, v5")
        for p in range(1, 4): f.e(f"v_xor_b32 v{RF+p}, {WBLK*p}, v{RF}")
        f.e(f"s_mov_b32 s{sONES}, 0x3f803f80", f"v_mov_b32 v{CS}, 0", f"v_mov_b32 v{CS+1}, 0")
        for k in range(4): f.e(f"v_mov_b32 v{48+k}, 0")
        for k in range(12): f.e(f"v_add_u32 v{RA+12+k}, {2*SLOT}, v{RA+k}")
        mk_srd(f, R_SY, P_WS, WS_END); mk_srd(f, R_W2, P_W2, 1792*1024); mk_srd(f, R_OUT, P_OUT, 2048*2048)
        f.e(f"s_and_b32 s{P_CRE+1}, s{P_CRE+1}, 0xffff", f"s_and_b32 s{P_CIM+1}, s{P_CIM+1}, 0xffff",
            f"s_bitcmp1_b32 s{sGL}, {0 if c.hrot else 5}", f"s_cselect_b64 s[{R_CRE}:{R_CRE+1}], s[{P_CIM}:{P_CIM+1}], s[{P_CRE}:{P_CRE+1}]",
            f"s_cselect_b64 s[{R_CIM}:{R_CIM+1}], s[{P_CRE}:{P_CRE+1}], s[{P_CIM}:{P_CIM+1}]")
        for r in (R_CRE, R_CIM): f.e(f"s_mov_b32 s{r+2}, {512*1024}", f"s_mov_b32 s{r+3}, 0x20000")
        q.extend(f)
        q.e(f"s_mul_i32 s{sT0}, s2, 56", f"s_mul_i32 s{sT1}, s{sWN}, 28", f"s_add_u32 s{sT0}, s{sT0}, s{sT1}", f"s_lshl_b32 s{sT1}, s2, 4", f"s_min_u32 s{sT1}, s{sT1}, {4096-28}",
            f"s_cmp_eq_u32 s{sWN}, 0", f"s_cselect_b32 s70, s{P_CRE}, s{P_CIM}", f"s_cselect_b32 s71, s{P_CRE+1}, s{P_CIM+1}",
            f"s_cmp_eq_u32 s{sWM}, 0", f"s_cselect_b32 s{sT0}, s{sT0}, s{sT1}",
            f"s_cselect_b32 s70, s{P_W2}, s70", f"s_cselect_b32 s71, s{P_W2+1}, s71",
            f"v_min_u32 v7, {c.pf_n - 1}, v{vL}", f"v_add_lshl_u32 v{vPF}, v7, s{sT0}, 7")
        f = Seq(); self.consts_early(f); self.consts_w2(f)
        G, l = self.stage_dma(1); last.append(l)
        if c.boot:
            q.extend(f)
            if c.boot_late:
                f = Seq(); self.consts_late(f); q.extend(f)
            for kind, at in c.prest.items():
                if at == -1:
                    if kind == "S":
                        q.e(f"s_movk_i32 s{sK4}, 8192")
                        for part in range(2):
                            for mu in range(2): q.e(f"buffer_store_dwordx4 {vr(160)}, v{vHS}, {srd(R_SY)}, {('0', f's{sK4}')[part]} offen offset:{1024*mu} sc1")
                    else:
                        for k in range(4): q.e(f"buffer_store_dwordx4 {vr(160)}, v{vHF1 if kind == 'F1' else vHF2}, {srd(R_SY)}, 0 offen offset:{1024*k} sc1")
            q.wvm_all()
            if c.boot_bar: q.e("s_barrier")
            q.extend(self.postq)
            for g in G: q.e(*g)
        else: q.extend(merge(f, G))
        if c.strow_at == -1: q.e(*self.strows)
        return last

    def consts_early(self, f):
        f.e("v_and_b32 v5, 1, v4", "v_lshl_add_u32 v32, v5, 1, v3")
        f.e(f"s_lshl_b32 s{sT2}, s{sT2}, 5", f"s_add_u32 s{sT2}, s{sT2}, {WS_STAT}", f"v_lshl_add_u32 v7, v3, 4, s{sT2}", f"v_lshl_add_u32 v{vSTS}, v2, 25, v7")
        f.e(f"s_lshl1_add_u32 s{sT0}, s{sC}, s{sXB}", f"s_lshl_b32 s{sT1}, s{sT0}, 13", f"s_add_u32 s{sT1}, s{sT1}, {WS_FLAG}",
            f"s_lshl_b32 s{sT2}, s{sW}, 3", f"s_mul_i32 s{sT0}, s{sWM}, 3", f"s_add_u32 s{sT0}, s{sT0}, s{sWN}", f"s_lshl_b32 s{sT0}, s{sT0}, 2", f"s_sub_u32 s{sT0}, s{sT0}, 8",
            f"v_mov_b32 v7, s{sT2}", f"v_mov_b32 v8, s{sT0}", f"v_cmp_gt_u32 vcc, 8, v{vL}", "v_cndmask_b32 v7, v8, v7, vcc",
            f"v_add_u32 v7, v7, v{vL}", f"v_lshl_add_u32 v7, v7, 8, s{sT1}", "v_lshl_add_u32 v36, v4, 28, v7",
            f"s_lshl2_add_u32 s{sT2}, s{sGL}, s{sW}", f"s_lshl_b32 s{sT2}, s{sT2}, 8", f"s_add_u32 s{sT1}, s{sT1}, s{sT2}",
            f"v_lshl_add_u32 v7, v2, 2, s{sT1}", f"v_lshl_add_u32 v{vFL}, v3, 30, v7", f"v_lshl_add_u32 v{vFP}, v3, 7, v7")
        f.e(f"s_lshl4_add_u32 s{sT0}, s{sC}, s{sG}", f"s_lshl1_add_u32 s{sT0}, s{sT0}, s{sWN}", f"s_lshl_b32 s{sT0}, s{sT0}, 9", f"s_add_u32 s{sT0}, s{sT0}, {WS_CS}",
            f"v_lshl_add_u32 v7, v{vL}, 3, s{sT0}", f"v_xor_b32 v{vGC}, 0x4000, v7", f"s_lshl_b32 s{sT2}, s{sWM}, 30", f"v_add_u32 v{vCSS}, s{sT2}, v7")
        f.e(f"s_lshl_b32 s{sT0}, s{sWN}, 8", f"v_lshl_add_u32 v8, v6, 4, s{sT0}",
            f"s_lshl1_add_u32 s{sNV}, s{sC}, s{sWM}", f"s_sub_u32 s{sT0}, 31, s{sNV}", f"s_lshl_b32 s{sT0}, s{sT0}, 9",
            f"s_lshl_b32 s{sT1}, s{sG}, 14", f"s_add_u32 s{sT1}, s{sT1}, {WS_AGG}", f"s_add_u32 s{sT1}, s{sT1}, s{sT0}",
            f"v_add_u32 v7, s{sT1}, v8", f"v_lshl_add_u32 v{vAGS}, v4, 28, v7",
            f"s_add_u32 s{sT0}, s{sT0}, 512", "v_sub_u32 v7, 3, v4", "v_lshl_add_u32 v7, v7, 12, v8", f"v_add_u32 v{vLBK}, s{sT0}, v7",
            f"s_lshl_b32 s{sNV}, s{sNV}, 4")
        f.e("v_cmp_eq_u32 vcc, 0, v4", f"v_cndmask_b32 v{vFP}, v{vFP}, v{vAGS}, vcc",
            "v_mul_u32_u24 v7, 24, v6", f"v_add3_u32 v7, v7, v{vCSS}, -16", "v_subrev_u32 v7, 240, v7",
            "v_cmp_eq_u32 vcc, 2, v4", f"v_cndmask_b32 v{vFP}, v{vFP}, v7, vcc")

    def consts_w2(self, f):
        f.e(f"s_lshl_b32 s{sHS}, s{sW}, 14", f"s_add_u32 s{sHS}, s{sHS}, {56*2048}")
        f.e(f"s_and_b32 s{sT2}, s{sC}, 1", f"s_lshl2_add_u32 s{sT0}, s{sW}, s{sT2}", f"s_add_u32 s{sT1}, s{sT0}, 2",
            f"s_min_u32 s{sT0}, s{sT0}, 12", f"s_min_u32 s{sT1}, s{sT1}, 13", f"s_lshl_b32 s{UO[0]}, s{sT0}, 13", f"s_lshl_b32 s{UO[1]}, s{sT1}, 13",
            f"s_xor_b32 s{sT2}, s{sT2}, 1", f"s_mul_i32 s{sT0}, s{sWM}, 6", f"s_add_u32 s{sT0}, s{sT0}, s{sT2}",
            f"s_lshl2_add_u32 s{sT1}, s{sWN}, s{sT0}", f"s_lshl_b32 s{UO[2]}, s{sT1}, 13",
            f"s_add_u32 s{sT0}, s{sT0}, 2", f"s_lshl1_add_u32 s{sT0}, s{sT0}, s{sWN}", f"s_lshl_b32 s{UO[5]}, s{sT0}, 12")
        if self.c.hrot:
            f.e(f"s_and_b32 s{sT0}, s{sGL}, 1", f"s_sub_u32 s{sT0}, 0, s{sT0}", f"s_xor_b32 s{sT1}, s{UO[0]}, s{UO[1]}", f"s_and_b32 s{sT1}, s{sT1}, s{sT0}",
                f"s_xor_b32 s{UO[0]}, s{UO[0]}, s{sT1}", f"s_xor_b32 s{UO[1]}, s{UO[1]}, s{sT1}",
                f"s_and_b32 s{sT0}, s{sT0}, 8192", f"s_xor_b32 s{sHS}, s{sHS}, s{sT0}",
                f"s_and_b32 s{sT0}, s{sGL}, 2", f"s_lshl_b32 s{sT1}, s{sT0}, 11", f"s_lshl_b32 s{sT0}, s{sT0}, 5", f"v_xor_b32 v{vC2}, s{sT0}, v{vC2}")
            for r in (UO[0], UO[1], UO[2], sHS): f.e(f"s_xor_b32 s{r}, s{r}, s{sT1}")
        f.e(f"s_mul_i32 s{sLE}, s{sW}, {SPW}", f"s_add_u32 s{sLE}, s{sLE}, {L_SP}",
            f"s_mul_i32 s{sW2O}, s{sXB}, {896*1024}", f"s_lshl_b32 s{sT1}, s{sGL}, 7", f"s_add_u32 s{sW2O}, s{sW2O}, s{sT1}",
            f"s_lshl2_add_u32 s{sCO}, s{sXB}, s{sW}", f"s_lshl_b32 s{sCO}, s{sCO}, 7", f"s_lshl_b32 s{sT0}, s{sGL}, 16", f"s_add_u32 s{sCO}, s{sCO}, s{sT0}")
        f.e(f"v_xor_b32 v{vC2+1}, 64, v{vC2}", f"v_add_u32 v{vC2+1}, 7168, v{vC2+1}", f"v_add_u32 v{vC2+2}, 14336, v{vC2}", f"v_add_u32 v{vC2+3}, 14336, v{vC2+1}")
        for j in range(1, 4): f.e(f"v_add_u32 v{vW2+j}, {7168*j}, v{vW2}")

    def consts_late(self, f):
        f.e(f"v_and_b32 v7, 4, v{vL}", f"v_and_b32 v8, 35, v{vL}", "v_lshl_add_u32 v7, v7, 2, v8", f"v_and_b32 v8, 24, v{vL}", "v_lshrrev_b32 v8, 1, v8",
            "v_add_u32 v37, v7, v8")
        f.e(f"s_lshl1_add_u32 s{sT1}, s{sC}, s{sWM}", f"s_lshl_b32 s{sT1}, s{sT1}, 10", f"s_add_u32 s{sT1}, s{sT1}, {WS_STAT}",
            f"v_lshl_add_u32 v{vGS}, v37, 4, s{sT1}", "v_and_b32 v7, 3, v6", "v_lshl_add_u32 v7, v9, 3, v7", "v_lshl_add_u32 v7, v3, 2, v7", "v_and_b32 v8, 16, v2", "v_lshl_add_u32 v7, v8, 1, v7",
            f"v_lshlrev_b32 v{vGR}, 2, v7")
        f.e(f"v_lshl_add_u32 v{vGC+2}, v{vL}, 3, s{sLB}", f"v_xor_b32 v{vGC+1}, {2*WBLK}, v{vGC+2}")
        f.e(f"s_lshl1_add_u32 s{sT0}, s{sC}, s{sXB}", f"s_lshl1_add_u32 s{sT1}, s{sT0}, s{sWM}", f"s_mul_i32 s{sT1}, s{sT1}, {HBLK}", f"s_add_u32 s{sT1}, s{sT1}, {WS_H}",
            f"s_lshl1_add_u32 s{sT0}, s{sT0}, s{sXB}", f"s_mul_i32 s{sB1}, s{sT0}, {HBLK}", f"s_xor_b32 s{sT0}, s{sT0}, 1", f"s_mul_i32 s{sB0}, s{sT0}, {HBLK}",
            f"s_add_u32 s{sB0}, s{sB0}, {WS_H}", f"s_add_u32 s{sB1}, s{sB1}, {WS_H}")
        f.e(f"s_lshl_b32 s{sT0}, s{sWN}, 12", f"s_add_u32 s{sT0}, s{sT0}, s{sT1}", f"s_lshl_b32 s{sT2}, s{sU0}, 13", f"s_add_u32 s{sT2}, s{sT2}, s{sT0}",
            f"v_add_u32 v{vHF1}, s{sT2}, v33", f"s_lshl_b32 s{sT2}, s{sU1}, 13", f"s_add_u32 s{sT2}, s{sT2}, s{sT0}",
            f"s_min_u32 s{sT0}, s{R_W1B+2}, 1", f"s_sub_u32 s{sT0}, 1, s{sT0}", f"s_lshl_b32 s{sT0}, s{sT0}, 30", f"s_add_u32 s{sT2}, s{sT2}, s{sT0}",
            f"v_add_u32 v{vHF2}, s{sT2}, v33")
        f.e(f"s_lshr_b32 s{sT0}, s{sGL}, 1", f"s_and_b32 s{sT2}, s{sGL}, 1", f"s_lshl2_add_u32 s{sT0}, s{sT0}, s{sT2}", f"s_lshl1_add_u32 s{sT0}, s{sT0}, s{sWN}",
            f"s_add_u32 s{sT0}, s{sT0}, 56", f"s_lshl_b32 s{sT0}, s{sT0}, 11", f"s_add_u32 s{sT0}, s{sT0}, s{sT1}", f"v_add_u32 v{vHS}, s{sT0}, v33")
        f.e(f"s_lshl1_add_u32 s{sT0}, s{sC}, s{sXB}", f"s_lshl2_add_u32 s{sT0}, s{sT0}, s{sW}", f"s_lshl_b32 s{sT0}, s{sT0}, 4", f"v_add_u32 v7, s{sT0}, v4",
            "v_and_b32 v8, 3, v6", "v_lshl_add_u32 v34, v8, 2, v7", "v_lshlrev_b32 v34, 4, v34", f"v_add_u32 v34, {WS_STAT}, v34", "v_lshl_add_u32 v18, v7, 10, v35", "v_lshlrev_b32 v19, 1, v18")
        f.e(f"s_lshl4_add_u32 s{sT0}, s{sC}, s{sG}", f"s_lshl2_add_u32 s{sT0}, s{sT0}, s{sW}", f"s_lshl_b32 s{sT0}, s{sT0}, 12", f"s_add_u32 s{sT0}, s{sT0}, {WS_XCH}",
            f"v_add_u32 v{vXS}, s{sT0}, v33", f"v_xor_b32 v{vXR}, 0x20000, v{vXS}")
        f.e("v_and_b32 v7, 7, v2", "v_xor_b32 v7, v7, v3", "v_lshlrev_b32 v7, 4, v7", "v_and_b32 v8, 31, v37", "v_lshl_add_u32 v7, v8, 8, v7",
            f"v_add_u32 v{vRW}, s{sLE}, v7")
        for g4 in range(1, 4): f.e(f"v_xor_b32 v{vRW+g4}, {32*g4}, v{vRW}")
        f.e("v_xor_b32 v7, v6, v4", "v_lshlrev_b32 v7, 4, v7", "v_lshl_add_u32 v7, v4, 8, v7", f"s_lshl_b32 s{sT0}, s{sW}, 12", f"s_lshl_b32 s{sT1}, s{sWN}, 6",
            f"s_or_b32 s{sT0}, s{sT0}, s{sT1}", f"s_add_u32 s{sT0}, s{sT0}, {L_SP}", f"v_xor_b32 v{vRR}, s{sT0}, v7")
        f.e("v_and_b32 v7, 2, v6", "v_and_b32 v8, 1, v6", "v_lshl_add_u32 v7, v7, 1, v8", "v_and_b32 v8, 4, v6", "v_lshrrev_b32 v8, 1, v8", "v_or_b32 v7, v7, v8",
            "v_lshlrev_b32 v8, 1, v32", "v_xor_b32 v7, v7, v8", "v_lshlrev_b32 v7, 4, v7", "v_lshl_add_u32 v7, v6, 7, v7",
            f"s_add_u32 s{sT0}, s{sLB}, {2*SLOT + 4096}", f"v_add_u32 v{vTW}, s{sT0}, v7", f"v_xor_b32 v{vTW+1}, 16, v{vTW}")
        f.e("v_and_b32 v5, 1, v6", "v_and_b32 v8, 16, v2", "v_lshl_add_u32 v5, v5, 5, v8", "v_and_b32 v8, 2, v6", "v_lshl_add_u32 v5, v8, 2, v5")
        f.e("v_and_b32 v7, 2, v9", "v_and_b32 v8, 1, v9", "v_lshl_add_u32 v7, v7, 1, v8", "v_lshlrev_b32 v7, 4, v7", "v_xor_b32 v7, v7, v5",
            "v_lshl_add_u32 v8, v3, 3, v9", "v_lshl_add_u32 v7, v8, 7, v7", f"v_add_u32 v{vTD}, s{sT0}, v7")

    def ssm_consts(self, q):
        q.wvm(self.small)
        q.e("v_lshlrev_b32 v14, 16, v14", "v_lshlrev_b32 v12, 16, v12", f"v_mul_f32 v14, {fh(1.4426950408889634)}, v14", "v_lshlrev_b32 v13, 16, v13",
            "v_exp_f32 v14, v14", "v_lshlrev_b32 v3, 4, v32", "v_cvt_pk_bf16_f32 v14, v14, v14", "v_lshlrev_b32 v14, 16, v14",
            "v_mul_f32 v17, v14, v12", "v_mul_f32 v15, v14, v13",
            f"v_mul_f32 v17, {fh(1.4426950408889634)}, v17", f"v_mul_f32 v15, {fh(0.15915494309189535)}, v15",
            "v_cvt_f32_u32 v3, v3", "v_sub_u32 v4, 3, v4", "v_lshlrev_b32 v4, 9, v4", "v_cvt_f32_u32 v4, v4")
        def cexp(d, n):
            q.e(f"v_mul_f32 v6, {n}, v15", f"v_mul_f32 v5, {n}, v17", "v_fract_f32 v6, v6", "v_exp_f32 v5, v5", f"v_cos_f32 v{d}, v6", f"v_sin_f32 v{d+1}, v6",
                f"v_mul_f32 v{d}, v{d}, v5", f"v_mul_f32 v{d+1}, v{d+1}, v5")
        cexp(20, "1.0"); cexp(22, fh(16.0)); cexp(24, fh(64.0)); cexp(26, "v3"); cexp(28, "v4")
        q.e("v_mul_f32 v6, v12, v12", "v_fmac_f32 v6, v13, v13", "v_rcp_f32 v6, v6", "v_add_f32 v5, -1.0, v20",
            "v_mul_f32 v30, v5, v12", "v_fmac_f32 v30, v21, v13", "v_mul_f32 v31, v21, v12", "v_fma_f32 v31, -v5, v13, v31",
            "v_add_f32 v6, v6, v6", "v_mul_f32 v30, v30, v6", "v_mul_f32 v31, v31, v6")

    def check(self, name, loads, test):
        q = Seq()
        q.wvm(loads[-1])
        q.e(*test)
        q.e(f"s_cbranch_scc1 L_{name}_slow")
        q.label(f"L_{name}_ok")
        o = self.ool
        o.label(f"L_{name}_slow")
        o.e(f"s_mov_b32 s{sPOLL}, 0x40000")
        o.label(f"L_{name}_loop")
        o.e(f"s_sleep {self.c.poll_sleep}")
        for l in loads: o.append(I(l.t, "o"))
        o.e("s_waitcnt vmcnt(0)", f"s_sub_u32 s{sPOLL}, s{sPOLL}, 1", f"s_cbranch_scc1 L_{name}_ok")
        o.e(*test)
        o.e(f"s_cbranch_scc1 L_{name}_loop", f"s_branch L_{name}_ok")
        return list(q)
    def tags(self, regs, lo=False):
        if len(regs) == 1: return [f"v_cmp_ne_u32 vcc, s{sTAG}, v{regs[0]}", f"s_and_b32 s{sM}, vcc_lo, {lo}" if lo else "s_cmp_lg_u64 vcc, 0"]
        t = [f"v_cmp_ne_u32 s[{sM}:{sM+1}], s{sTAG}, v{regs[0]}"]
        for r in regs[1:]: t += [f"v_cmp_ne_u32 vcc, s{sTAG}, v{r}", f"s_or_b64 s[{sM}:{sM+1}], s[{sM}:{sM+1}], vcc"]
        return t

    def cmul_acc(self, q, d, a, b, c, c2=None):
        c2 = c + 1 if c2 is None else c2
        q.e(f"v_fma_f32 v{d}, v{a}, v{b}, v{c}", f"v_fma_f32 v{d+1}, v{a}, v{b+1}, v{c2}",
            f"v_fma_f32 v{d}, -v{a+1}, v{b+1}, v{d}", f"v_fma_f32 v{d+1}, v{a+1}, v{b}, v{d+1}")
    def cmul(self, q, d, a, b):
        q.e(f"v_mul_f32 v{d}, v{a}, v{b}", f"v_mul_f32 v{d+1}, v{a}, v{b+1}",
            f"v_fma_f32 v{d}, -v{a+1}, v{b+1}, v{d}", f"v_fma_f32 v{d+1}, v{a+1}, v{b}, v{d+1}")

    def w2_area(self, pc):
        return {0: (sLE, 0), 1: (sLE, 8192), 2: (sLB, SLOT), 5: (sLB, 2*SLOT), 3: (sLE, 0), 4: (sLE, 8192)}[pc]
    def w2_dma(self, pc, run=4):
        sb, ao = self.w2_area(pc)
        G = []
        for k in range(4 if pc == 5 else 8):
            g = []; j = k % run
            if pc in UO:
                if j == 0:
                    g.append(I(f"s_add_u32 m0, s{sb}, {ao + 1024*k}"))
                    if k: g += [I(f"s_xor_b32 s{sKX}, s{UO[pc]}, {k*1024}"), I(f"s_lshl3_add_u32 s{sKX}, s{sKX}, s{sW2O}")]
                    else: g.append(I(f"s_lshl3_add_u32 s{sKX}, s{UO[pc]}, s{sW2O}"))
                g.append(I(f"buffer_load_dwordx4 v{vW2+j}, {srd(R_W2)}, s{sKX} offen offset:{1024*j} lds", "vm"))
            else:
                if j == 0: g += [I(f"s_add_u32 m0, s{sb}, {ao + 1024*k}"), I(f"s_add_u32 s{sKX}, s{sCO}, {8*k*1024}")]
                g.append(I(f"buffer_load_dwordx4 v{vC2+j}, {srd(R_CRE if pc == 3 else R_CIM)}, s{sKX} offen offset:{1024*j} lds", "vm"))
            G.append(g)
        self.w2_last[pc] = G[-1][-1]
        return G
    def w2_reads(self, pc):
        sb, ao = self.w2_area(pc)
        L = Seq()
        if pc in UO:
            L.e(f"v_add_u32 v{vTA}, s{sb}, v{vTR}")
            if ao >= 2 * SLOT: L.e(f"v_add_u32 v{vTA}, {ao}, v{vTA}"); ao = 0
            L.e(f"v_xor_b32 v{vTA+1}, 64, v{vTA}")
            L.wvm(self.w2_last[pc])
            j0 = {0: 0, 1: 4, 2: 8, 5: 12}[pc]
            for k in range(2 if pc == 5 else 4):
                for nu in range(2):
                    for e in range(2):
                        a = 8 * (j0 + k) + 4 * nu + 2 * e
                        r = L.e(f"ds_read_b64_tr_b16 {ar(a,2)}, v{vTA+nu} offset:{ao + 2048*k + 1024*e}")
        else:
            L.e(f"v_add_u32 v{vTA}, s{sb}, v{vCR}")
            for k in range(1, 4): L.e(f"v_xor_b32 v{vTA+k}, {32*k}, v{vTA}")
            L.wvm(self.w2_last[pc])
            j0 = 14 if pc == 3 else 18
            for k in range(4):
                for nu in range(2):
                    r = L.e(f"ds_read_b128 {ar(8*(j0+k)+4*nu)}, v{vTA+k} offset:{ao + 4096*nu}")
        self.w2_rd[pc] = r
        return groups(L)
    def after_reads(self, pc, G):
        w = Seq(); w.wds(self.w2_rd[pc])
        return [list(w) + G[0]] + G[1:]

    def ffn_epi(self, a, voff):
        f = Seq()
        for t in range(2):
            b = a + 16 * t
            for j in range(8): f.e(f"v_pk_mul_f32 {vr(b+2*j,2)}, {vr(b+2*j,2)}, {vr(42,2)} op_sel:[0,{t}] op_sel_hi:[1,{t}]")
            for j in range(8): f.e(f"v_cvt_pk_bf16_f32 v{b+j}, v{b+2*j}, v{b+2*j+1}")
            for j in range(8): f.e(f"v_pk_max_i16 v{b+j}, v{b+j}, 0")
        st = [I(f"buffer_store_dwordx4 {vr(a+16*t+4*al)}, v{voff}, {srd(R_SY)}, 0 offen offset:{2048*al + 1024*t} {self.c.hs}", "vm") for t in range(2) for al in range(2)]
        return f, st

    def split3(self, s, src, d):
        s.e(f"v_and_b32 v240, 0xffff0000, v{src}", f"v_sub_f32 v240, v{src}, v240",
            f"v_perm_b32 v{d}, v240, v{src}, s{sONES}", "v_and_b32 v241, 0xffff0000, v240", "v_sub_f32 v241, v240, v241",
            f"v_cvt_pk_bf16_f32 v{d+1}, v241, 0")

    def flag_store(self, kind, after):
        q = Seq(); q.wvm(after)
        q.e(f"buffer_store_dword v251, v{vFL}, {srd(R_SY)}, 0 offen offset:{128*kind} {self.c.hs}")
        return list(q)

    def phase1(self, q, last):
        c = self.c
        RE, IM = ACC_S, ACC_S + 16
        MF8 = "v_mfma_f32_32x32x8_bf16"; MF = "v_mfma_f32_32x32x16_bf16"
        MFR = 200
        q.wvm(last[0]); q.e("s_barrier"); self.stamp(q)
        D = 2; D2 = 3
        RD = {}
        for n in range(D): RD[n] = self.frag_reads(n); q.e(*RD[n])
        G, l = self.stage_dma(2); last.append(l)
        dma = Stream(G, every=1)
        s = Seq()
        s.e(f"v_readfirstlane_b32 s{sTAG}, v16", "v_permlane32_swap_b32 v48, v49", "v_permlane32_swap_b32 v50, v51", f"s_add_u32 s{sTAG}, s{sTAG}, {hex(TAGK)}",
            "v_add_f32 v48, v48, v49", "v_add_f32 v50, v50, v51", f"s_or_b32 s{sTAG}, s{sTAG}, 1", f"v_mov_b32 v54, s{sTAG}",
            "v_permlane16_swap_b32 v48, v50", "v_add_f32 v48, v48, v50", f"v_mov_b32 v251, s{sTAG}")
        for k in (8, 4, 2, 1): s.e(f"v_add_f32_dpp v48, v48, v48 row_ror:{k} row_mask:0xf bank_mask:0xf")
        s.e("v_mov_b32 v49, v48", "v_permlane16_swap_b32 v48, v49",
            f"v_mul_f32 v48, {fh(1/512)}, v48", f"v_mul_f32 v49, {fh(1/512)}, v49", "v_fma_f32 v49, -v48, v48, v49", "v_max_f32 v49, 0, v49",
            "v_cvt_pk_bf16_f32 v49, v49, v49", "v_lshlrev_b32 v49, 16, v49", f"v_add_f32 v49, {fh(1e-5)}, v49",
            "v_cvt_pk_bf16_f32 v49, v49, v49", "v_lshlrev_b32 v49, 16, v49", "v_sqrt_f32 v49, v49",
            "v_cvt_pk_bf16_f32 v53, -v48, -v48",
            "v_cvt_pk_bf16_f32 v49, v49, v49", "v_lshlrev_b32 v49, 16, v49", "v_rcp_f32 v52, v49")
        s.e(f"buffer_store_dwordx4 {vr(52)}, v{vSTS}, {srd(R_SY)}, 0 offen sc1")
        sA = Stream(groups(s), start=4 * (c.stat_at + 1), dl=4 * c.stat_at + 28)
        s = Seq()
        if not (c.boot and c.boot_late): self.consts_late(s)
        self.ssm_consts(s)
        sC_ = Stream(groups(s), dl=c.gather_at - 1)
        gl_ = [I(f"buffer_load_dwordx3 {vr(40,3)}, v{vGS}, {srd(R_SY)}, 0 offen sc1", "vm")]
        A = [gl_, ("nb", c.check_at), self.check("ga", gl_, self.tags([42]))]
        s = Seq()
        s.e(f"ds_bpermute_b32 v44, v{vGR}, v40")
        s.e(f"v_mov_b32 v{MFR}, v41", f"v_mov_b32 v{MFR+2}, v41", "v_mov_b32 v42, v40", "v_mov_b32 v43, v40",
            f"s_lshl_b32 s{sT0}, s{sG}, 14", f"s_add_u32 s{sT0}, s{sT0}, {WS_AGG}",
            f"v_permlane32_swap_b32 v{MFR}, v{MFR+2}", "v_permlane32_swap_b32 v42, v43", f"v_mov_b32 v{MFR+1}, v{MFR}", f"v_mov_b32 v{MFR+3}, v{MFR+2}")
        A += groups(s)
        A.append([I(f"s_add_u32 s{R_AG}, s{R_SY}, s{sT0}"), I(f"s_addc_u32 s{R_AG+1}, s{R_SY+1}, 0"), I(f"s_movk_i32 s{R_AG+2}, 16384")])
        assert c.check_at >= 92
        sG_ = Stream(A, start=c.gather_at, dl=119)
        early = self.w2_dma(0, 2) + self.w2_dma(1, 2)
        self.xl = []; X = []
        for ii in range(4):
            self.xl.append(I(f"buffer_load_dwordx2 {vr(2+4*ii,2)}, v18, {srd(R_X)}, s{sK4} offen", "vm"))
            X.append([I(f"s_movk_i32 s{sK4}, {4096*ii}"), self.xl[-1]])
        X.append(("nb", 120))
        self.xl.append(I(f"buffer_load_dwordx2 {vr(34,2)}, v34, {srd(R_SY)}, 0 offen sc1", "vm")); X.append([self.xl[-1]])
        assert c.check_at < 116
        sX_ = Stream(X, start=106, dl=127, every=2)
        for n in range(32):
            p = n & 3
            b = self.fb(n); rd = RD[n]
            if (n + D) % 4 == 0:
                i = (n + D) // 4 - 1
                flush(q, [dma])
                q.wds_all()
                if i < 7: q.wvm(last[i + 1])
                q.e("s_barrier")
                if i in c.ts_stages: self.stamp(q)
                if i < 6:
                    G, l = self.stage_dma(i + 3); last.append(l)
                    if c.early_from <= i:
                        G = G + early[:c.early_n]; early = early[c.early_n:]
                    dma = Stream(G, every=2)
                if i == 6:
                    dma = Stream(early[:c.early_last], every=2); early = early[c.early_last:]
                if i == 7: csr = q.e(f"ds_read_b64 {vr(62,2)}, v{vGC+2}")
            if n >= c.pf_from and (n - c.pf_from) % c.pf_step == 0 and (n - c.pf_from) // c.pf_step * c.pf_n < 28:
                q.e(f"global_load_dword v10, v{vPF}, s[70:71] offset:{(n - c.pf_from) // c.pf_step * c.pf_n * 128}")
            if n == c.l2pf_at:
                q.e(f"s_lshr_b32 s{sT0}, s2, 3", f"s_lshl2_add_u32 s{sT1}, s{sT0}, s{sW}", f"s_mul_i32 s{sT1}, s{sT1}, {56*128}", f"s_mul_i32 s{sT2}, s{sXB}, {896*1024}",
                    f"s_add_u32 s{sT1}, s{sT1}, s{sT2}", f"v_min_u32 v240, 55, v{vL}", "v_lshlrev_b32 v240, 7, v240")
                q.e(f"buffer_load_dword v219, v240, {srd(R_W2)}, s{sT1} offen")
                q.e(f"s_lshl2_add_u32 s{sT1}, s{sT0}, s{sW}", f"s_lshl_b32 s{sT1}, s{sT1}, 12", f"s_lshl_b32 s{sT2}, s{sXB}, 9", f"s_add_u32 s{sT1}, s{sT1}, s{sT2}",
                    f"v_and_b32 v240, 3, v{vL}", f"v_bfe_u32 v241, v{vL}, 2, 2", "v_lshlrev_b32 v240, 7, v240", "v_lshl_add_u32 v240, v241, 10, v240")
                q.e(f"buffer_load_dword v219, v240, {srd(R_CRE)}, s{sT1} offen", f"buffer_load_dword v219, v240, {srd(R_CIM)}, s{sT1} offen")
            for kind, at in c.prest.items():
                if at == n:
                    if kind == "S":
                        q.e(f"s_movk_i32 s{sK4}, 8192")
                        for part in range(2):
                            for mu in range(2): q.e(f"buffer_store_dwordx4 {vr(160)}, v{vHS}, {srd(R_SY)}, {('0', f's{sK4}')[part]} offen offset:{1024*mu} sc1")
                    else:
                        for k in range(4): q.e(f"buffer_store_dwordx4 {vr(160)}, v{vHF1 if kind == 'F1' else vHF2}, {srd(R_SY)}, 0 offen offset:{1024*k} sc1")
            if n == c.pt_at:
                q.e(f"buffer_load_dword v219, v{vFP}, {srd(R_SY)}, 0 offen")
            if n == c.strow_at: q.e(*self.strows)
            nxt = []
            if n + D < 32: nxt = RD[n + D] = self.frag_reads(n + D)
            z = lambda a: ("0" if n == 0 else vr(a, 16))
            M = [f"{MF} {vr(ACC_F1,16)}, {vr(b+4)}, {ar(8*n)}, {z(ACC_F1)}", f"{MF} {vr(ACC_F1+16,16)}, {vr(b+4)}, {ar(8*n+4)}, {z(ACC_F1+16)}",
                 f"{MF} {vr(RE,16)}, {ar(8*n)}, {vr(b)}, {z(RE)}", f"{MF} {vr(IM,16)}, {ar(8*n+4)}, {vr(b)}, {z(IM)}"]
            sched = [2, 1, 1, 2]
            k = 0
            if c.s_first: M = M[2:] + M[:2]
            for j, m in enumerate(M):
                q.wds(rd[4]); q.e(m)
                mine = nxt[k:k + sched[j]]; k += sched[j]
                q.e(*mine)
                fill_gap(q, 4 * n + j, len(mine), c.cap1, [dma, sA, sG_, sC_, sX_])
                if n == 30 and j == 2:
                    q.e(f"s_mov_b32 s{sONES}, 0x07060302"); q.wds(csr)
                    q.e(f"v_add_f32 v{CS+1}, v{CS+1}, v63", f"v_add_f32 v{CS}, v{CS}, v62")
                corrF = [f"{MF8} {vr(ACC_F1+16*t,16)}, {vr(222,2)}, {vr(MFR+2*t,2)}, {vr(ACC_F1+16*t,16)}" for t in range(2)]
                corrS = [f"{MF8} {vr(RE+16*t,16)}, {vr(MFR+2*t,2)}, {vr(204,2)}, {vr(RE+16*t,16)}" for t in range(2)]
                if n == 30 and j == 3: self.split3(q, *((CS, 204) if c.s_first else (CS + 1, 222)))
                if n == 31 and j == 0: self.split3(q, *((CS + 1, 222) if c.s_first else (CS, 204)))
                if n == 31 and j == 1:
                    flush(q, [sG_])
                    q.e(*(corrS if c.s_first else corrF))
            if n == c.stat_at:
                q.wvm(self.small0, self.strows[1])
                for r in range(4):
                    q.e(f"v_dot2c_f32_bf16 v48, s{sONES}, v{40+r}", f"v_dot2c_f32_bf16 v49, s{sONES}, v{44+r}",
                        f"v_dot2c_f32_bf16 v50, v{40+r}, v{40+r}", f"v_dot2c_f32_bf16 v51, v{44+r}, v{44+r}")
            if p == 1:
                if dma.it: q.e(*dma.it.pop(0))
                for e in (n - 1, n + 1):
                    q.wds(RD[e][4]); be = self.fb(e)
                    for r in range(4):
                        q.e(f"v_dot2c_f32_bf16 v{CS}, s{sONES}, v{be+r}", f"v_dot2c_f32_bf16 v{CS+1}, s{sONES}, v{be+4+r}")
            if n == 29: q.e(f"ds_write_b64 v{vGC+1}, {vr(CS,2)}")
        q.e(*(corrF if c.s_first else corrS))
        self.stamp(q)
        G9, l = self.stage_dma(9); last.append(l)
        f, st = self.ffn_epi(ACC_F1, vHF1)
        q.e(f"v_mov_b32 v{CS}, s{sTAG}")
        st = [I(f"buffer_store_dwordx2 {vr(CS,2)}, v{vCSS}, {srd(R_SY)}, 0 offen sc1", "vm")] + st
        if not c.s_first: q.extend(merge(f, G9[:c.g9_pre]))
        s = Seq()
        for i in range(16): s.e(f"v_permlane16_swap_b32 v{RE+i}, v{IM+i}")
        cr, ci = RE, IM
        def scale(i): s.e(f"v_mul_f32_dpp v{RE+i}, v44, v{RE+i} row_newbcast:{i} row_mask:0xf bank_mask:0xf", f"v_mul_f32_dpp v{IM+i}, v44, v{IM+i} row_newbcast:{i} row_mask:0xf bank_mask:0xf")
        scale(0); scale(1)
        for i in range(1, 16):
            d = 48 if i & 1 else 46
            s.e(f"v_fma_f32 v{d}, v20, v{cr}, v{RE+i}", f"v_fma_f32 v{d+1}, v20, v{ci}, v{IM+i}")
            if i < 15: scale(i + 1)
            s.e(f"v_fma_f32 v{d}, -v21, v{ci}, v{d}", f"v_fma_f32 v{d+1}, v21, v{cr}, v{d+1}")
            cr, ci = d, d + 1
        q.extend(merge(s, G9 if c.s_first else [[x] for x in st] + G9[c.g9_pre:]))
        s = Seq()
        s.e("v_mov_b32 v50, v48", "v_mov_b32 v51, v49", f"v_mov_b32 v62, s{sTAG}", "v_mov_b32 v40, 0",
            "v_permlane32_swap_b32 v48, v50", "v_permlane32_swap_b32 v49, v51",
            "v_mov_b32 v52, v48", "v_mov_b32 v54, v50", "v_mov_b32 v53, v49", "v_mov_b32 v55, v51",
            "v_permlane16_swap_b32 v48, v52", "v_permlane16_swap_b32 v50, v54", "v_permlane16_swap_b32 v49, v53", "v_permlane16_swap_b32 v51, v55", "v_mov_b32 v41, 0")
        self.cmul_acc(s, 50, 22, 48, 50); self.cmul_acc(s, 52, 22, 50, 52); self.cmul_acc(s, 60, 22, 52, 54)
        s.e(f"buffer_store_dwordx4 {vr(60)}, v{vAGS}, {srd(R_SY)}, 0 offen sc1")
        q.extend(s)
        self.stamp(q)
        q.wvm(last[8]); q.e("s_barrier")
        for e in range(32, 32 + D2):
            RD[e] = self.frag_reads(e); q.e(*RD[e])
        if c.s_first:
            q.e(st[0]); q.extend(f[:24]); q.e(st[1]); q.extend(f[24:36]); q.e(st[2]); q.extend(f[36:]); q.e(st[3])
        cl_ = I(f"buffer_load_dwordx2 {vr(CS,2)}, v{vGC}, {srd(R_SY)}, 0 offen sc1", "vm")
        S1 = []
        for j in range(1, 4):
            S1.append([I(f"v_cmp_eq_u32 vcc, {j}, v32"), I(f"v_cndmask_b32 v40, v40, v{46+2*j}, vcc"), I(f"v_cndmask_b32 v41, v41, v{47+2*j}, vcc")])
        s = Seq()
        for i in range(16):
            s.e(f"v_mul_f32 v46, v31, v{IM+i}", f"v_mul_f32 v{IM+i}, v30, v{IM+i}", f"v_fmac_f32 v{IM+i}, v31, v{RE+i}", f"v_fma_f32 v{RE+i}, v30, v{RE+i}, -v46")
        sS1 = Stream(S1 + groups(s))
        self.fa = I(f"buffer_load_dword v{vFP}, v36, {srd(R_SY)}, 0 offen sc1", "vm")
        for g in S1[:3]: q.e(*g)
        sS1.it = sS1.it[3:]
        self.lb = [I(f"buffer_load_dwordx3 {vr(LBR+4*t,3)}, v{vLBK}, {srd(R_AG)}, 0 offen offset:{512*t} sc1", "vm") for t in range(8)]
        assert len(early) % 2 == 0 and len(early) <= 8
        sR0 = Stream(self.w2_reads(0) + [("nb", 18)] + self.w2_reads(1), start=c.r0_at, dl=c.lb_at - 1)
        W = early + self.w2_dma(2, 2)
        if c.s_first: q.e(st[4])
        W2_ = self.after_reads(0, self.w2_dma(3)) + self.w2_dma(5) + self.after_reads(1, self.w2_dma(4))
        lbg = [self.lb[k:k + c.lb_grp] for k in range(0, 8, c.lb_grp)]
        fA = [[cl_] + self.flag_store(0, st[-1])]
        if c.fa_late:
            W = W[:c.w2_first] + [("nb", c.lb_at)] + lbg + fA + W[c.w2_first:] + W2_[:c.w2_n2] + [("nb", c.w2_at3)] + W2_[c.w2_n2:]
            sLB_ = Stream([])
        else:
            sR0.dl = c.w2_at2
            W = W[:c.w2_first] + [("nb", c.w2_at2)] + fA + W[c.w2_first:] + W2_[:c.w2_n2] + [("nb", c.w2_at3)] + W2_[c.w2_n2:]
            sLB_ = Stream(lbg, start=c.lb_at, every=2)
        sW2 = Stream(W, every=2)
        _, B, self.ssm_last = self.ssm_part2()
        if c.b_at < 64: sS1.dl = c.b_at - 1
        sB2 = Stream(B[:-1], start=c.b_at); self.hst = B[-1]
        sBase = Stream(self.base_stream(), start=64)
        K9 = 16 - D2
        for n in range(32, 64):
            k = n - 32
            b = self.fb(n)
            if k == K9:
                q.wds_all(); q.wvm(last[9]); q.e("s_barrier")
            nxt = RD[n + D2] = self.frag_reads(n + D2)
            for t in range(2):
                d = ACC_F2 + 16 * t
                q.wds(RD[n][-1])
                q.e(f"{MF} {vr(d,16)}, {vr(b+4)}, {ar(8*k+4*t)}, {'0' if k == 0 else vr(d,16)}")
                q.e(*nxt[t:t+1])
                fill_gap(q, 2 * k + t, 1.25, c.cap2, [sLB_, sW2, sR0, sS1, sB2, sBase])
                if k == 30 and t == 0: q.extend(self.check("c2", [cl_], self.tags([CS])))
                if k == 30 and t == 1: self.split3(q, CS + 1, 222)
        for t in range(2): q.e(f"{MF8} {vr(ACC_F2+16*t,16)}, {vr(222,2)}, {vr(MFR+2*t,2)}, {vr(ACC_F2+16*t,16)}")
        self.stamp(q)
        self.left = (sW2.rest(), sS1.rest(), sR0.rest(), sLB_.rest(), sB2.rest())
        self.base_left = sBase.rest()

    def ssm_part2(self):
        RE, IM = ACC_S, ACC_S + 16
        LB = LBR
        lb = self.lb
        pr_ = [48, 50, 56, 58, 60, 62, 70, sM]
        test = [f"v_cmp_eq_u32 s[{pr_[t]}:{pr_[t]+1}], s{sTAG}, v{LB+4*t+2}" for t in range(8)]
        test += [f"s_bcnt1_i32_b64 s{pr_[t]}, s[{pr_[t]}:{pr_[t]+1}]" for t in range(8)]
        test += [f"s_add_u32 s{pr_[0]}, s{pr_[0]}, s{pr_[t]}" for t in range(1, 8)]
        test.append(f"s_cmp_lg_u32 s{pr_[0]}, s{sNV}")
        B = [self.check("lb", lb, test)]
        q = Seq()
        self.stamp(q)
        for t in range(6, -1, -1): self.cmul_acc(q, LB + 4 * t, 24, LB + 4 * (t + 1), LB + 4 * t)
        self.cmul(q, 62, 28, LB)
        for sw in ("16", "32"):
            q.e("v_mov_b32 v60, v62", "v_mov_b32 v61, v63", f"v_permlane{sw}_swap_b32 v60, v62", f"v_permlane{sw}_swap_b32 v61, v63",
                "v_add_f32 v62, v60, v62", "v_add_f32 v63, v61, v63")
        self.cmul_acc(q, 60, 26, 62, 40)
        self.cmul(q, 62, 30, 60)
        self.nB1 = len(groups(q)) + 1
        pr, pi_ = 62, 63
        for i in range(16):
            q.e(f"v_fma_f32 v{RE+i}, v20, v{pr}, v{RE+i}", f"v_fma_f32 v{IM+i}, v20, v{pi_}, v{IM+i}",
                f"v_fma_f32 v{RE+i}, -v21, v{pi_}, v{RE+i}", f"v_fma_f32 v{IM+i}, v21, v{pr}, v{IM+i}")
            pr, pi_ = RE + i, IM + i
            if i & 1:
                j = i >> 1
                q.e(f"v_cvt_pk_bf16_f32 v{44+j}, v{RE+2*j}, v{RE+2*j+1}", f"v_cvt_pk_bf16_f32 v{52+j}, -v{IM+2*j}, -v{IM+2*j+1}")
            if i == 7:
                q.e(f"ds_write_b128 v{vTW}, {vr(44)}", f"ds_write_b128 v{vTW}, {vr(52)} offset:2048")
        q.e(f"ds_write_b128 v{vTW+1}, {vr(48)}", f"ds_write_b128 v{vTW+1}, {vr(56)} offset:2048")
        q.e(f"v_xor_b32 v61, {512|32}, v{vTD}", f"v_xor_b32 v62, 64, v{vTD}", "v_xor_b32 v63, 64, v61", f"s_movk_i32 s{sT1}, 8192")
        ad = {(0, 0): vTD, (0, 1): 61, (1, 0): 62, (1, 1): 63}
        for part in range(2):
            for mu in range(2):
                for e in range(2):
                    tr = q.e(f"ds_read_b64_tr_b16 {vr(64 + 8*part + 4*mu + 2*e,2)}, v{ad[mu, e]} offset:{2048*part}")
        B += groups(q)
        st = [I(f"buffer_store_dwordx4 {vr(64+8*part+4*mu)}, v{vHS}, {srd(R_SY)}, {('0', f's{sT1}')[part]} offen offset:{1024*mu} {self.c.hs}", "vm") for part in range(2) for mu in range(2)]
        w = Seq(); w.wds(tr)
        B.append(list(w) + st)
        return lb, B, st[-1]

    def base_stream(self):
        f = Seq()
        T = 88; D = 20; r = 24
        f.wvm(self.xl[-1])
        f.e("v_lshlrev_b32 v35, 16, v35", f"v_lshlrev_b32 v{D}, 16, v38", f"v_and_b32 v{D+1}, 0xffff0000, v38", f"v_lshlrev_b32 v{D+2}, 16, v39", f"v_and_b32 v{D+3}, 0xffff0000, v39")
        for ii in range(4):
            b = BASE + 4 * ii
            f.e(f"v_mov_b32_dpp v{r}, v34 row_newbcast:{ii} row_mask:0xf bank_mask:0xf", f"v_mov_b32_dpp v{r+1}, v35 row_newbcast:{ii} row_mask:0xf bank_mask:0xf",
                f"v_lshlrev_b32 v{b+2}, 16, v{b+1}", f"v_and_b32 v{b+3}, 0xffff0000, v{b+1}", f"v_and_b32 v{b+1}, 0xffff0000, v{b}", f"v_lshlrev_b32 v{b}, 16, v{b}")
            for e in range(4): f.e(f"v_add_f32 v{T+e}, v{b+e}, v{r+1}")
            def rnd():
                f.e(f"v_cvt_pk_bf16_f32 v{T+4}, v{T}, v{T+1}", f"v_cvt_pk_bf16_f32 v{T+5}, v{T+2}, v{T+3}",
                    f"v_lshlrev_b32 v{T}, 16, v{T+4}", f"v_and_b32 v{T+1}, 0xffff0000, v{T+4}", f"v_lshlrev_b32 v{T+2}, 16, v{T+5}", f"v_and_b32 v{T+3}, 0xffff0000, v{T+5}")
            rnd()
            for e in range(4): f.e(f"v_mul_f32 v{T+e}, v{T+e}, v{r}")
            rnd()
            for e in range(4): f.e(f"v_mul_f32 v{T+e}, v{T+e}, v{D+e}")
            rnd()
            for e in range(4): f.e(f"v_add_f32 v{b+e}, v{b+e}, v{T+e}")
        return groups(f)

    def phase2(self, q):
        c = self.c
        NR = c.nring; ak = c.akept; NT = c.ntail; LEAD = c.lead
        assert ak % 2 == 0 and ak <= 8 and NR >= LEAD + NT - 1 and NR <= 10
        wl, sl, rl, ll, B = self.left
        ssm_last = self.ssm_last
        for g in sl + rl: q.e(*g)
        f, st2 = self.ffn_epi(ACC_F2, vHF2)
        q.extend(merge(f, [[self.fa]] + ll + wl[:c.left_pre], start=0))
        wl = wl[c.left_pre:]
        k = c.b_mid
        q.e(st2[0])
        if any(x.kind == "label" for x in B[0]):
            q.e(st2[1]); st2 = st2[1:]; q.e(*B.pop(0))
        f = Seq()
        for g in B[:k]: f.e(*g)
        q.extend(merge(f, [[x] for x in st2[1:]], end=min(len(f), 40)))
        B = B[k:] + [self.hst]
        if len(B) == 1: q.e(*B.pop())
        self.stamp(q)
        q.extend(self.check("fa", [self.fa], self.tags([vFP], 0xff)))
        self.stamp(q)
        ACC = (96, 160)
        steps = [(0, j) for j in range(8)] + [(1, j) for j in range(ak)] + [(0, j) for j in range(8, 22)] + [(1, j) for j in range(ak, 22)]
        firstB = 8 + ak; sent_done = firstB + 13
        ld = {}
        def issue(n):
            ps, j = steps[n]
            a = 176 + 8 * (n % NR)
            blk = (sB0, sB1)[ps]
            g = []
            if j % 2 == 0:
                if j < 14:
                    pc = (0, 1, 2, 5)[j // 4]
                    if j % 4 == 2 and steps[n-1] == (ps, j - 1): g.append(I(f"s_xor_b32 s{sKW}, s{sKW}, 4096"))
                    else:
                        g.append(I(f"s_add_u32 s{sKW}, s{blk}, s{UO[pc]}"))
                        if j % 4: g.append(I(f"s_xor_b32 s{sKW}, s{sKW}, 4096"))
                elif j == 14: g.append(I(f"s_add_u32 s{sKW}, s{blk}, s{sHS}"))
                elif j == 18: g += [I(f"s_xor_b32 s{sKW}, s{sHS}, 8192"), I(f"s_add_u32 s{sKW}, s{sKW}, s{blk}")]
                else: g.append(I(f"s_xor_b32 s{sKW}, s{sKW}, 4096"))
            o = 2048 * (j % 2)
            ld[n, 0] = I(f"buffer_load_dwordx4 {ar(a)}, v33, {srd(R_SY)}, s{sKW} offen offset:{o} sc1", "vm")
            ld[n, 1] = I(f"buffer_load_dwordx4 {ar(a+4)}, v33, {srd(R_SY)}, s{sKW} offen offset:{o+1024} sc1", "vm")
            return [g + [ld[n, 0]], [ld[n, 1]]]
        order = []
        n = 0
        while n < 44:
            if n in (sent_done + 1 - NT, 44 - NT):
                for k in range(4): order += [(m, k) for m in range(n, n + NT)]
                n += NT
            else:
                order += [(n, k) for k in range(4)]; n += 1
        pos = {e: i for i, e in enumerate(order)}
        L0 = c.lead0
        f = Seq()
        for g in B[:-1]: f.e(*g)
        q.extend(merge(f, [g for n in range(L0) for g in issue(n)]))
        if B: q.e(*B[-1])
        if c.flagB_at < 0: q.extend(self.flag_store(1, ssm_last))
        fs = I(f"buffer_load_dword v{vFP}, v36, {srd(R_SY)}, 0 offen offset:128 sc1", "vm")
        st = Seq(); self.stamp(st)
        gate = 4 * firstB - c.gate_lead
        L = []
        for n in range(L0, 44):
            nb = max(4 * (n - LEAD), 0)
            nb = min(nb, max(4 * (n - c.lead2), c.fast_from))
            if n >= NR: nb = max(nb, max(pos[n - NR, k] for k in range(4)))
            if n >= firstB: nb = max(nb, gate)
            if firstB < n < firstB + c.burst:
                assert nb <= gate
                L[-1] += [x for g in issue(n) for x in g]; continue
            L.append(("nb", nb))
            if n == firstB: L.append(self.check("fs", [fs], self.tags([vFP], 0xffff)) + list(st) + [x for g in issue(n) for x in g])
            else: L += issue(n)
        sL = Stream(L, every=2)
        P = ([("nb", c.flagB_at)] + [self.flag_store(1, ssm_last)] if c.flagB_at >= 0 else []) + [("nb", gate - c.fs_lead), [fs]]
        sP = Stream(P, dl=gate - 1)
        Wc = self.w2_reads(2) + [("nb", c.flagB_at + 1)] + wl + self.w2_reads(5) + [("nb", c.rc_at)]
        Wc += self.w2_reads(3) + self.w2_reads(4)
        d_c = 4 * (firstB + 3)
        sWc = Stream(Wc, start=1, dl=d_c, every=c.wc_every)
        sB = Stream(self.base_left)
        XV = 64; TB = 80
        s = Seq()
        if c.xbf:
            for k in range(3): s.e(f"v_mov_b32 v{XV+4*k+3}, s{sTAG}")
        else:
            s.e(f"v_mov_b32 v{TB}, s{sTAG}")
            for k in range(1, 4): s.e(f"v_lshrrev_b32 v{TB+k}, {8*k}, v{TB}")
        s.e(f"s_movk_i32 s{sT2}, 0xff")
        R0 = [("nb", d_c + 6)] + groups(s)
        def tile(k): return (k & 1, k >> 1)
        def red_write(ps, lastn):
            out = []
            for k in range(4):
                nu, mu = tile(k)
                out.append(("nb", pos[lastn, k] + 2))
                for g4 in range(4):
                    out.append([I(f"ds_write_b128 v{vRW+g4}, {vr(ACC[ps] + 32*nu + 16*mu + 4*g4)} offset:{128*nu + 8192*mu}", "ds")])
            return out
        def red_read(s, dst):
            return [s.e(f"ds_read_b128 {vr(dst + 16*ii + 4*src)}, v{vRR} offset:{1024*ii + 16384*src}") for ii in range(4) for src in range(4)]
        s = Seq()
        s.wds_all(); s.e("s_barrier")
        R = red_read(s, 96)
        for g4 in range(4): s.e(f"v_subrev_u32 v{vRW+g4}, {L_SP}, v{vRW+g4}")
        Ga = groups(s); s = Seq()
        NS = 3 if c.xbf else 4
        if c.red_bare:
            for ii in range(4):
                s.wds(R[4 * ii + 3])
                s0 = 96 + 16 * ii; d = XV + 4 * ii
                for e in range(2):
                    s.e(f"v_pk_add_f32 {vr(s0+2*e,2)}, {vr(s0+2*e,2)}, {vr(s0+4+2*e,2)}", f"v_pk_add_f32 {vr(s0+8+2*e,2)}, {vr(s0+8+2*e,2)}, {vr(s0+12+2*e,2)}")
                for e in range(2): s.e(f"v_pk_add_f32 {vr(s0+2*e,2)}, {vr(s0+2*e,2)}, {vr(s0+8+2*e,2)}")
                if c.xbf:
                    for e in range(2):
                        k = 2 * ii + e
                        s.e(f"v_cvt_pk_bf16_f32 v{XV + (k // 3) * 4 + k % 3}, v{s0+2*e}, v{s0+2*e+1}")
                    if ii: s.e(f"buffer_store_dwordx4 {vr(XV+4*(ii-1))}, v{vXS}, {srd(R_SY)}, 0 offen offset:{1024*(ii-1)} sc1")
                else:
                    for e in range(4): s.e(f"v_bfi_b32 v{d+e}, s{sT2}, v{TB+e}, v{s0+e}")
                    s.e(f"buffer_store_dwordx4 {vr(d)}, v{vXS}, {srd(R_SY)}, 0 offen offset:{1024*ii} sc1")
            s.e(f"v_subrev_u32 v{vRR}, {L_SP}, v{vRR}")
            Gb = []
        else:
            for ii in range(4):
                s.wds(R[4 * ii + 3])
                for e in range(4):
                    d = XV + 4 * ii + e; s0 = 96 + 16 * ii + e
                    s.e(f"v_add_f32 v{s0}, v{s0}, v{s0+4}", f"v_add_f32 v{d}, v{s0+8}, v{s0+12}", f"v_add_f32 v{d}, v{d}, v{s0}",
                        f"v_bfi_b32 v{d}, s{sT2}, v{TB+e}, v{d}")
            s.e(f"v_subrev_u32 v{vRR}, {L_SP}, v{vRR}")
            Gb = groups(s)
            s = Seq()
            for k in range(4): s.e(f"buffer_store_dwordx4 {vr(XV+4*k)}, v{vXS}, {srd(R_SY)}, 0 offen offset:{1024*k} sc1")
        self.stamp(s)
        e0 = 4 * (sent_done + 1)
        XR = 40
        xl = [I(f"buffer_load_dwordx4 {vr(XR+4*k)}, v{vXR}, {srd(R_SY)}, 0 offen offset:{1024*k} sc1", "vm") for k in range(NS)]
        sR = Stream(R0 + red_write(0, sent_done) + [("nb", e0 + c.bar_lag)] + Ga + [("nb", e0 + c.bar_lag + c.add_lag)] + Gb + [("nb", 4 * c.send_at)] + [list(s)]
                    + red_write(1, 43), wev=c.wev)
        sX = Stream([[x] for x in xl], start=c.xl_at, every=2)
        q.wds(self.w2_rd[1])
        emitted = set(id(x) for x in q)
        for gi, (n, k) in enumerate(order):
            ps, j = steps[n]; nu, mu = tile(k)
            a = 176 + 8 * (n % NR); d = ACC[ps] + 32 * nu + 16 * mu
            while not any(ld[n, mu] is x for x in q[-400:]):
                g = sL.it.pop(0)
                if not isinstance(g, tuple): q.e(*g)
            q.wvm(ld[n, mu])
            if n == firstB: q.wds(self.w2_rd[2])
            if n == firstB + 4: q.wds(self.w2_rd[5])
            if n == firstB + 6: q.wds(self.w2_rd[4])
            if k == 0 and n in c.p2stamps: self.stamp(q)
            q.e(f"v_mfma_f32_32x32x16_bf16 {vr(d,16)}, {ar(8*j+4*nu)}, {ar(a+4*mu)}, {'0' if j == 0 else vr(d,16)}")
            sL.every = 1.5 if c.fast_from <= gi < c.fast_to else 2
            fill_gap(q, gi, 0.5, c.cap4 if gi >= e0 else c.cap3, [sP, sL, sWc, sR, sX, sB])
        self.stamp(q)
        flush(q, [sR, sX, sB])
        pre = [f"s_mov_b32 s{sT0}, 0x0c0c0400", f"s_mov_b32 s{sT1}, 0x05040100"]
        for k in range(4):
            r = XR + 4 * k
            pre += [f"v_perm_b32 v60, v{r+1}, v{r}, s{sT0}", f"v_perm_b32 v61, v{r+3}, v{r+2}, s{sT0}", f"v_perm_b32 v{56+k}, v61, v60, s{sT1}"]
        def recv():
            if c.xbf:
                q.extend(self.check("xc", xl, self.tags([XR + 4 * k + 3 for k in range(3)])))
                self.stamp(q)
                for k in range(8):
                    r = XR + (k // 3) * 4 + k % 3
                    q.e(f"v_lshlrev_b32 v{64+2*k}, 16, v{r}", f"v_and_b32 v{65+2*k}, 0xffff0000, v{r}")
                for e in range(8): q.e(f"v_pk_add_f32 {vr(BASE+2*e,2)}, {vr(BASE+2*e,2)}, {vr(64+2*e,2)}")
                return
            q.extend(self.check("xc", xl, pre + self.tags([56 + k for k in range(4)])))
            self.stamp(q)
            for e in range(16): q.e(f"v_and_b32 v{XR+e}, 0xffffff00, v{XR+e}")
            for e in range(8): q.e(f"v_pk_add_f32 {vr(BASE+2*e,2)}, {vr(BASE+2*e,2)}, {vr(XR+2*e,2)}")
        if c.recv_early: recv()
        q.wds_all(); q.e("s_barrier")
        R = red_read(q, 96)
        if not c.recv_early: recv()
        for ii in range(4):
            s0 = 96 + 16 * ii
            q.wds(R[4 * ii + 1])
            for e in range(2): q.e(f"v_pk_add_f32 {vr(s0+2*e,2)}, {vr(s0+2*e,2)}, {vr(BASE+4*ii+2*e,2)}")
            for e in range(2): q.e(f"v_pk_add_f32 {vr(s0+2*e,2)}, {vr(s0+2*e,2)}, {vr(s0+4+2*e,2)}")
            q.wds(R[4 * ii + 3])
            for e in range(2): q.e(f"v_pk_add_f32 {vr(s0+8+2*e,2)}, {vr(s0+8+2*e,2)}, {vr(s0+12+2*e,2)}")
            q.e(f"s_movk_i32 s{sT0}, {8192*ii}")
            for e in range(2): q.e(f"v_pk_add_f32 {vr(s0+2*e,2)}, {vr(s0+2*e,2)}, {vr(s0+8+2*e,2)}")
            q.e(f"buffer_store_dwordx4 {vr(s0)}, v19, {srd(R_OUT)}, s{sT0} offen {c.ost}")
        q.e(f"s_lshl_b32 s{sT0}, s{sG}, 2", f"s_or_b32 s{sT0}, s{sT0}, s{sW}", f"s_lshl_b32 s{sT0}, s{sT0}, 4", f"s_or_b32 s{sT0}, s{sT0}, s{sC}",
            f"s_cmp_eq_u32 s{sT0}, 15", "s_cbranch_scc0 L_nobump", "v_mov_b32 v57, 0", "s_mov_b64 exec, 1")
        q.e(f"buffer_store_dword v251, v57, {srd(R_SY)}, 0 offen sc1")
        q.e("s_mov_b64 exec, -1")
        q.label("L_nobump")

    def write_ts(self, q):
        if not self.c.ts: return
        q.wds_all(); q.wvm_all()
        q.e("s_memtime s[46:47]", "s_memrealtime s[92:93]"); q.wds_all()
        q.e(f"s_lshl_b32 s{sT0}, s2, 2", f"s_add_u32 s{sT0}, s{sT0}, s{sW}", f"s_lshl_b32 s{sT0}, s{sT0}, 6", f"s_add_u32 s{sT0}, s{sT0}, {WS_TS}", "v_mov_b32 v2, 0")
        q.e("s_mov_b64 exec, 1")
        def put(k): q.e(f"buffer_store_dword v3, v2, {srd(R_SY)}, s{sT0} offen offset:{4*k}")
        for k in range(self.nts + 2):
            if k == 0: q.e("v_mov_b32 v3, v255")
            elif k == self.nts + 1: q.e("s_sub_u32 s46, s46, s42", "v_mov_b32 v3, s46")
            else:
                r = TSREG[k - 1]; q.e(f"s_sub_u32 s{r}, s{r}, s42", f"v_mov_b32 v3, s{r}")
            put(k)
        q.e("v_mov_b32 v3, s92"); put(15)
        q.wvm_all()

    def add_prof(self, q):
        lo, step = self.c.prof
        out = Seq(); unsafe = False; started = False; acc = 0; n = 0; idx = 0; nm = 0
        NP = len(TSREG)
        self.prof_pts = []
        for ins in q:
            t = ins.t
            if started and not unsafe and n < 64 and idx >= lo and acc >= step and ins.kind not in WAITK and not t.startswith(("s_cbranch", "s_branch", "s_cselect", "s_addc")) and ins.kind != "label":
                r = TSREG[n % NP]
                if n >= NP: out.e(f"v_writelane_b32 v0, s{r}, {n - NP}")
                out.e(f"s_memtime s[{r}:{r+1}]"); self.prof_pts.append((idx, nm, t[:50])); n += 1; acc = 0
            out.append(ins)
            if t == "s_barrier": started = True
            if started and ins.kind != "label":
                idx += 1; acc += 1
                if t.startswith("v_mfma"): nm += 1
            if t.startswith("s_cbranch"): unsafe = started
            if ins.kind == "label" and (t.endswith("_ok:") or t.startswith("L_nobump")): unsafe = False
        out.wds_all()
        for k in range(max(0, n - NP), n): out.e(f"v_writelane_b32 v0, s{TSREG[k % NP]}, {k}")
        out.e(f"s_lshl_b32 s{sT0}, s2, 2", f"s_add_u32 s{sT0}, s{sT0}, s{sW}", f"s_lshl_b32 s{sT0}, s{sT0}, 8", f"s_add_u32 s{sT0}, s{sT0}, {WS_TS + 65536}",
              "v_subrev_u32 v0, s42, v0", f"v_lshlrev_b32 v2, 2, v{vL}")
        out.e(f"buffer_store_dword v0, v2, {srd(R_SY)}, s{sT0} offen")
        return out

    def build(self):
        q = Seq()
        q.label("L_start")
        last = self.prologue(q)
        self.phase1(q, last)
        self.phase2(q)
        if self.c.prof: q = self.add_prof(q)
        self.write_ts(q)
        if self.c.spin_to:
            q.e("s_waitcnt lgkmcnt(0)")
            if self.c.spin_x >= 0: q.e("s_and_b32 s46, s2, 7", f"s_cmp_eq_u32 s46, {self.c.spin_x}", "s_cbranch_scc0 L_end")
            if self.c.probe: q.e("s_sub_u32 s68, s68, s42", f"s_add_u32 s68, s68, {self.c.spin_to}")
            else: q.e(f"s_mov_b32 s68, {self.c.spin_to}")
            q.label("L_spin")
            q.e("s_memrealtime s[46:47]", "s_waitcnt lgkmcnt(0)", "s_sub_u32 s46, s46, s42", "s_cmp_lt_u32 s46, s68", "s_cbranch_scc1 L_spin")
        q.label("L_end")
        q.e("s_endpgm")
        q.extend(self.ool)
        q.label("L_fin")
        return finalize(q)

HDR = """; @launch grid=(256,1,1) block=(256,1,1) lds=163840
.amdgcn_target "amdgcn-amd-amdhsa--gfx950"
.text
.globl {n}_kernel
.p2align 8
.type {n}_kernel,@function
{n}_kernel:
"""
TAIL = """
.section .rodata,"a"
.p2align 6
.amdhsa_kernel {n}_kernel
  .amdhsa_next_free_vgpr 512
  .amdhsa_next_free_sgpr 102
  .amdhsa_accum_offset 256
  .amdhsa_group_segment_fixed_size 0
  .amdhsa_kernarg_size 120
  .amdhsa_user_sgpr_count 2
  .amdhsa_user_sgpr_kernarg_segment_ptr 1
  .amdhsa_system_sgpr_workgroup_id_x 1
.end_amdhsa_kernel
"""
def generate(cfg):
    g = Gen(cfg)
    body = g.build()
    return HDR.format(n=NAME) + "\n".join(("" if l.endswith(":") else "    ") + l for l in body) + TAIL.format(n=NAME), g

if __name__ == "__main__":
    cfg = Cfg()
    for a in sys.argv[2:]:
        k, v = a.split("=", 1); assert hasattr(cfg, k), k; setattr(cfg, k, eval(v))
    txt, g = generate(cfg)
    open(sys.argv[1], "w").write(txt)
```

```python
import sys, struct
from asmlib import *

NAME = "parallel_sum__ssm_conv_s5__dense_activation_relu__prompt"
def f2u(x): return struct.unpack("<I", struct.pack("<f", x))[0]
def fh(x): return hex(f2u(x))

WS_CS   = 262144
WS_FLAG = 524288
WS_STAT = 786432
WS_AGG  = 1 << 20
WS_XCH  = 2 << 20
WS_TS   = (7 << 20) + (1 << 19)
WS_H    = 8 << 20
HBLK = 88 * 2048
WS_END = WS_H + 64 * HBLK
TAGK = 0x9E3779B9
OOB = 0x40000000

sCO, sW, sWM, sWN, sC, sG, sGL, sU0, sORD, sXB, sT0, sT1, sT2 = 3, 4, 5, 6, 7, 8, 9, 10, 11, 12, 13, 14, 15
P_X, P_LRE, P_LIM, P_BRE, P_BIM, P_CRE, P_CIM, P_LDT = 16, 18, 20, 22, 24, 26, 28, 30
P_DSK, P_W1, P_W2, P_OUT, P_WS = 32, 36, 38, 40, 44
sU1, sK4 = 34, 35
sM = 46
R_X, R_BS, R_W1A, R_W1B, R_W2, R_CRE, R_CIM, R_OUT, R_SY = 48, 52, 56, 60, 72, 76, 80, 84, 88
R_AG = R_BS
sB0, sB1, sHS, sNV = 64, 65, 66, 67
sUO = 32
UO = {0: 32, 1: 33, 2: 100, 5: 101}
sKX, sKW, sLB, sONES, sTAG, sPOLL, sLE, sW2O = 92, 93, 94, 95, 96, 97, 98, 99
TSREG = [16, 18, 20, 22, 24, 26, 28, 30, 36, 38, 40, 68]
def srd(r): return f"s[{r}:{r+3}]"

vL = 1
BASE = 2
ACC_S, ACC_F1, ACC_F2 = 64, 96, 128
FR = 160
RA, RS, RF = 176, 180, 184
vX, vB, vW = 200, 204, 206
vSTS, vCSS, vGS, vGC, vPF, vAGS, vHF1, vHF2, vGR = 208, 209, 210, 211, 214, 215, 216, 217, 218
CS = 220
vW2, vC2, vTR, vCR, vTA, vLBK, vFP, vHS, vFL, vXS, vXR, vRW, vRR, vTW, vTD = 224, 228, 232, 233, 234, 238, 239, 242, 243, 244, 245, 246, 250, 252, 254
def vr(a, n=4): return f"v[{a}:{a+n-1}]"
def ar(a, n=4): return f"a[{a}:{a+n-1}]"

LBR = 96
SLOT = 32768; WBLK = 8192
L_SP = 98304; SPW = 16384
L_CS = 0

class Cfg:
    ts = False; ts_stages = (); ts_max = 12; ts_min = 0; prof = None; p2stamps = ()
    order = "xa"
    pf_from = 2; pf_n = 28; pf_step = 12
    early_from = 1; early_n = 2; early_last = 6
    cap1 = 5.5; cap2 = 5.5; cap3 = 5
    stat_at = 2; gather_at = 86; check_at = 108
    w2_first = 8; w2_at2 = 24; w2_n2 = 12; w2_at3 = 64; fa_late = False; lb_at = 50; lb_grp = 2; left_pre = 0; g9_pre = 4; r0_at = 10; b_at = 64; b_mid = 60; lb_every = 1; rc_at = 40
    akept = 6; nring = 10; lead = 6; ntail = 4
    lead0 = 4; flagB_at = 15; fs_lead = 4; gate_lead = 20; wc_every = 2; burst = 1
    bar_lag = 7; send_at = 0; xl_at = 164; wev = 1
    poll_sleep = 1
    probe = 0
    x_at = 106; x_every = 2; l2c_only = False
    hs = 'sc1'; prest = {}
    lead2 = 10; fast_from = 96; fast_to = 140; recv_early = False; red_bare = True; xbf = False
    s_first = False
    boot = 0; boot_late = True; boot_bar = True
    spin_x = -1
    add_lag = 4; cap4 = 8
    l2pf_at = 99; pt_at = 2
    hrot = True
    nt_upto = 0; nt_srd = (48, 52, 56, 60)
    strow_at = -2
    spin_to = 0
    ost = 'nt'

def mk_srd(q, r, p, size):
    q.e(f"s_mov_b32 s{r}, s{p}", f"s_and_b32 s{r+1}, s{p+1}, 0xffff", f"s_mov_b32 s{r+2}, {size}", f"s_mov_b32 s{r+3}, 0x20000")

WAITK = ("wvm", "wds", "wvm0", "wds0")
def groups(seq):
    G = []; cur = []
    for ins in seq:
        cur.append(ins)
        if ins.kind not in WAITK and not ins.t.startswith(("v_cmp", "s_cmp")):
            G.append(cur); cur = []
    if cur: G.append(cur)
    return G
def cost(g):
    c = 0
    for i in g:
        if i.kind == "label": continue
        if i.kind in WAITK: c += 0.5
        elif i.t.startswith(TRANS): c += 2
        elif i.t.startswith("ds_write_b128"): c += 3
        else: c += 1
    return c

class Stream:
    def __init__(self, items, start=0, dl=None, every=1, wev=1):
        self.it = list(items); self.nb = start; self.dl = dl; self.every = every; self.wev = wev
    def ready(self, gap):
        while self.it and isinstance(self.it[0], tuple):
            self.nb = max(self.nb, self.it.pop(0)[1])
        return bool(self.it) and gap >= self.nb
    def pop(self, gap):
        g = self.it.pop(0)
        if self.every > 1 and any(i.kind == "vm" for i in g): self.nb = gap + int(self.every)
        if any(i.t.startswith("ds_write_b128") for i in g): self.nb = gap + self.wev
        return g
    def rest(self):
        r = [g for g in self.it if not isinstance(g, tuple)]; self.it = []; return r

def fill_gap(q, gap, used, cap, streams):
    for s in streams:
        if s.dl is not None and gap >= s.dl:
            for g in s.rest(): q.e(*g); used += cost(g)
    for s in streams:
        while s.ready(gap) and (used + cost(s.it[0]) <= cap or (used <= cap - 2 and cost(s.it[0]) > 3)):
            g = s.pop(gap); q.e(*g); used += cost(g)
def flush(q, streams):
    for s in streams:
        for g in s.rest(): q.e(*g)

def pack_order(o): return sum(v << (4 * k) for k, v in enumerate(o))
def hyb(xa):
    first = [0, (1 + 2 * xa), (2 + 2 * xa) & 7 or 1]
    rest = [v for v in [(3 + 2 * xa + k) & 7 for k in range(8)] if v not in first]
    return first + rest
ORDERS = {"xa": [[(i + 2 * xa) & 7 for i in range(8)] for xa in range(4)],
          "none": [list(range(8))] * 4,
          "two": [[(i + 4 * (xa & 1)) & 7 for i in range(8)] for xa in range(4)],
          "hyb": [hyb(xa) for xa in range(4)]}

class Gen:
    def __init__(self, cfg):
        self.c = cfg; self.nts = 0; self.nreq = 0; self.w2_last = {}; self.w2_rd = {}; self.ool = Seq()
    def stamp(self, q):
        self.nreq += 1
        if self.c.probe == self.nreq: q.e("s_memrealtime s[68:69]")
        if self.c.ts and self.nts < self.c.ts_max and self.nreq > self.c.ts_min:
            r = TSREG[self.nts]
            q.e(f"s_memtime s[{r}:{r+1}]"); self.nts += 1

    def stage_dma(self, i):
        base = (i % 3) * SLOT
        def ld(v, r, so, off):
            fl = " nt" if (i < self.c.nt_upto and r in self.c.nt_srd) else ""
            return I(f"buffer_load_dwordx4 v{v}, {srd(r)}, s{so} offen offset:{off}{fl} lds", "vm")
        def m0(o): return I(f"s_add_u32 m0, s{sLB}, {base + o}")
        def st(k): return I(f"s_bfe_u32 s{sKW}, s{sORD}, {(3 << 16) | (4 * k)}")
        mul = lambda: I(f"s_mul_i32 s{sKW}, s{sKW}, {64*3584}")
        G = []
        if i < 8:
            G.append([m0(0), st(i), I(f"s_lshl_b32 s{sKX}, s{sKW}, 7"), ld(vX, R_X, sKX, 0)])
            for j in range(1, 4): G.append([ld(vX + j, R_X, sKX, 1024 * j)])
            G.append([m0(4096), mul(), ld(vB, R_BS, sKX, 0)]); G.append([ld(vB + 1, R_BS, sKX, 1024)])
            G.append([m0(6144), ld(vW, R_W1A, sKW, 0)]); G.append([ld(vW + 1, R_W1A, sKW, 1024)])
        else:
            for t in range(4):
                G.append([m0(2048 * t), st(4 * (i - 8) + t), mul(), ld(vW, R_W1B, sKW, 0)])
                G.append([ld(vW + 1, R_W1B, sKW, 1024)])
        return G, G[-1][-1]

    def fb(self, n): return ACC_F2 + 8 * (n & 3) if n < 32 else FR - 4 + 4 * (n & 3)
    def frag_reads(self, n):
        b = self.fb(n)
        if n < 32:
            i, p = divmod(n, 4); slot = i % 3
            hi = 12 if slot == 2 else 0; o = SLOT if slot == 1 else 0
            S = I(f"ds_read_b128 {vr(b)}, v{RS+hi+p} offset:{o}", "ds")
            A0 = I(f"ds_read_b128 {ar(8*n)}, v{RA+hi+p} offset:{o}", "ds")
            A1 = I(f"ds_read_b128 {ar(8*n+4)}, v{RA+hi+p} offset:{o+WBLK}", "ds")
            F = [I(f"ds_read_b64_tr_b16 {vr(b+4+2*k, 2)}, v{RF+hi+p} offset:{o + 6144 + k*512}", "ds") for k in range(2)]
            return [S, A0, A1] + F
        if n >= 64: return []
        i, p = divmod(n - 32, 4)
        hi = 12 if i < 4 else 0
        return [I(f"ds_read_b64_tr_b16 {vr(b+4+2*k, 2)}, v{RF+hi+p} offset:{2048*(i&3) + k*512}", "ds") for k in range(2)]

    def prologue(self, q):
        c = self.c
        q.e("s_cmp_ge_u32 s2, 256", "s_cbranch_scc1 L_end")
        q.e("s_load_dwordx16 s[16:31], s[0:1], 0", "s_load_dwordx4 s[36:39], s[0:1], 80", "s_load_dwordx2 s[44:45], s[0:1], 112",
            "s_load_dwordx2 s[32:33], s[0:1], 64", "s_load_dwordx2 s[40:41], s[0:1], 96")
        q.e("s_getpc_b64 s[64:65]", "L_pc:", "s_and_b32 s3, s2, 0xf8", "s_lshl_b32 s3, s3, 7", "v_lshlrev_b32 v9, 2, v0", "v_add_u32 v9, s3, v9",
            "v_min_u32 v9, L_fin-L_pc-4, v9")
        q.e("global_load_dword v10, v9, s[64:65]")
        if c.ts: q.e("s_memtime s[42:43]", "s_memrealtime s[46:47]")
        if c.spin_to: q.e("s_memrealtime s[42:43]")
        q.e(f"v_and_b32 v{vL}, 63, v0", "v_lshrrev_b32 v2, 6, v0", f"v_readfirstlane_b32 s{sW}, v2")
        O = [pack_order(o) for o in ORDERS[c.order]]
        q.e("s_bitcmp1_b32 s2, 1", f"s_mov_b32 s{sT0}, {O[0]:#x}", f"s_cmov_b32 s{sT0}, {O[1]:#x}", f"s_mov_b32 s{sORD}, {O[2]:#x}", f"s_cmov_b32 s{sORD}, {O[3]:#x}",
            "s_bitcmp0_b32 s2, 2", f"s_cmov_b32 s{sORD}, s{sT0}")
        q.e(f"s_and_b32 s{sXB}, s2, 1", f"s_and_b32 s{sT0}, s2, 6", f"s_lshr_b32 s{sT2}, s2, 6",
            f"s_lshl1_add_u32 s{sC}, s{sT0}, s{sT2}", f"s_bfe_u32 s{sGL}, s2, 0x30003", f"s_lshl3_add_u32 s{sG}, s{sXB}, s{sGL}")
        q.e(f"s_and_b32 s{sT2}, s{sT2}, 1", f"s_lshl1_add_u32 s{sT0}, s{sGL}, s{sT2}", f"s_add_u32 s{sT1}, s{sGL}, 6",
            f"s_cmp_lt_u32 s{sGL}, 6", f"s_cselect_b32 s{sU0}, s{sT0}, s{sT1}", f"s_cselect_b32 s{R_W1B+2}, {512*3584}, 0", f"s_xor_b32 s{sU1}, s{sU0}, 1",
            f"s_lshr_b32 s{sWM}, s{sW}, 1", f"s_and_b32 s{sWN}, s{sW}, 1", f"s_lshl_b32 s{sLB}, s{sW}, 13")
        q.e(f"v_lshrrev_b32 v2, 3, v{vL}", f"v_and_b32 v3, 7, v{vL}", f"v_lshrrev_b32 v4, 4, v{vL}")
        q.e("v_xor_b32 v5, v3, v4", "v_lshlrev_b32 v5, 4, v5")
        q.e(f"v_lshrrev_b32 v7, 5, v{vL}", "v_and_b32 v8, 3, v2", "v_lshl_add_u32 v7, v7, 4, v8",
            f"s_lshl2_add_u32 s{sT0}, s{sC}, s{sW}", f"s_lshl_b32 s{sT0}, s{sT0}, 5",
            f"v_add_u32 v7, s{sT0}, v7", f"v_lshl_add_u32 v{vX}, v7, 10, v5",
            f"v_xor_b32 v{vX+1}, 64, v{vX}", f"v_add_u32 v{vX+1}, {3072}, v{vX+1}",
            f"v_add_u32 v{vX+2}, {6144}, v{vX}", f"v_add_u32 v{vX+3}, {6144}, v{vX+1}")
        q.e(f"s_lshl1_add_u32 s{sK4}, s{sG}, s{sWN}", f"s_lshl_b32 s{sK4}, s{sK4}, 4",
            f"v_add_u32 v7, s{sK4}, v2", f"v_lshl_add_u32 v{vB}, v7, 10, v5",
            f"v_xor_b32 v{vB+1}, 64, v{vB}", f"v_add_u32 v{vB+1}, {7168}, v{vB+1}")
        q.e(f"s_lshl_b32 s{sT0}, s{sW}, 4", f"v_add_u32 v7, s{sT0}, v2", "v_mul_u32_u24 v7, 3584, v7",
            "v_and_b32 v8, 1, v4", "v_lshlrev_b32 v8, 2, v8", "v_xor_b32 v8, v8, v3", f"v_lshl_add_u32 v{vW}, v8, 4, v7",
            f"v_add_u32 v{vW+1}, {8*3584-1024}, v{vW}",
            f"s_mul_i32 s{sT0}, s{sXB}, 14", f"s_add_u32 s{sT1}, s{sT0}, s{sU1}", f"s_add_u32 s{sT0}, s{sT0}, s{sU0}",
            f"s_lshl_b32 s{R_W1A}, s{sT0}, 7", f"s_lshl_b32 s{R_W1B}, s{sT1}, 7",
            f"s_sub_u32 s{R_W1A+2}, {512*3584}, s{R_W1A}", f"s_max_u32 s{R_W1B+2}, s{R_W1B+2}, s{R_W1B}", f"s_sub_u32 s{R_W1B+2}, s{R_W1B+2}, s{R_W1B}")
        for r, size in ((R_X, 2048*1024), (R_BS, 512*1024)): q.e(f"s_mov_b32 s{r+2}, {size}")
        for r in (R_X, R_BS, R_W1A, R_W1B): q.e(f"s_mov_b32 s{r+3}, 0x20000")
        q.e(f"v_lshl_add_u32 v{vC2}, v2, 10, v5", "v_lshlrev_b32 v7, 10, v2", f"v_lshl_add_u32 v{vW2}, v8, 4, v7")
        q.e(f"v_lshlrev_b32 v33, 4, v{vL}", f"v_and_b32 v6, 15, v{vL}", f"v_add_lshl_u32 v11, v6, s{sK4}, 1", "v_mov_b32 v15, 0")
        q.e(f"s_lshl1_add_u32 s{sT2}, s{sC}, s{sWM}", f"s_lshl4_add_u32 s{sT2}, s{sT2}, s{sG}", f"s_lshl1_add_u32 s{sT2}, s{sT2}, s{sWN}",
            f"s_lshl_b32 s{sPOLL}, s{sT2}, 11")
        G0, l0 = self.stage_dma(0)
        q.e(*G0[0][:-1])
        q.wds_all()
        if c.ts: q.e("v_mov_b32 v255, s46")
        if c.boot:
            b = c.boot
            q.e(f"v_lshlrev_b32 v17, 7, v{vL}", f"s_cmp_eq_u32 s{sW}, 2", "s_cbranch_scc1 L_b2")
            q.e(f"s_cmp_eq_u32 s{sW}, 0", f"s_cselect_b64 s[46:47], s[{P_X}:{P_X+1}], s[{P_W1}:{P_W1+1}]", "s_cselect_b32 s70, 64, 56",
                f"s_cmp_eq_u32 s{sW}, 3", f"s_cselect_b64 s[46:47], s[{(P_W2 if b == 1 else P_W1)}:{(P_W2 if b == 1 else P_W1)+1}], s[46:47]",
                "s_lshl_b32 s70, s70, 7", "s_sub_u32 s71, s70, 128", "s_mul_i32 s70, s70, s2", "v_min_u32 v17, s71, v17", "v_add_u32 v17, s70, v17")
            q.append(I("global_load_dword v10, v17, s[46:47]", "o"))
            q.e("s_branch L_b3")
            q.label("L_b2")
            q.e("v_and_b32 v17, 0x780, v17", "s_lshl_b32 s70, s2, 11", "v_add_u32 v17, s70, v17")
            for p in (P_BRE, P_BIM) + ((P_CRE, P_CIM) if b == 1 else ()): q.append(I(f"global_load_dword v10, v17, s[{p}:{p+1}]", "o"))
            q.label("L_b3")
            self.bootq = q; q = self.postq = Seq()
        q.e(f"s_mov_b32 s{R_X}, s{P_X}", f"s_and_b32 s{R_X+1}, s{P_X+1}, 0xffff")
        q.e(G0[0][-1]); [q.e(*g) for g in G0[1:4]]
        q.e(f"s_cmp_eq_u32 s{sWM}, 0", f"s_cselect_b32 s{R_BS}, s{P_BRE}, s{P_BIM}", f"s_cselect_b32 s{R_BS+1}, s{P_BRE+1}, s{P_BIM+1}", f"s_and_b32 s{R_BS+1}, s{R_BS+1}, 0xffff")
        [q.e(*g) for g in G0[4:6]]
        q.e(f"s_and_b32 s{P_W1+1}, s{P_W1+1}, 0xffff", f"s_add_u32 s{R_W1A}, s{P_W1}, s{R_W1A}", f"s_addc_u32 s{R_W1A+1}, s{P_W1+1}, 0")
        [q.e(*g) for g in G0[6:8]]
        q.e(f"s_add_u32 s{R_W1B}, s{P_W1}, s{R_W1B}", f"s_addc_u32 s{R_W1B+1}, s{P_W1+1}, 0")
        last = [l0]
        if c.boot: q = self.bootq
        self.strows = [I(f"buffer_load_dwordx4 {vr(40)}, v33, {srd(R_X)}, s{sPOLL} offen", "vm"), I(f"buffer_load_dwordx4 {vr(44)}, v33, {srd(R_X)}, s{sPOLL} offen offset:1024", "vm")]
        if c.strow_at == -2: q.e(*self.strows)
        self.small0 = q.e(f"global_load_dword v16, v15, s[{P_WS}:{P_WS+1}] sc1")
        q.e(f"global_load_ushort v12, v11, s[{P_LRE}:{P_LRE+1}]", f"global_load_ushort v13, v11, s[{P_LIM}:{P_LIM+1}]")
        self.small = q.e(f"global_load_ushort v14, v11, s[{P_LDT}:{P_LDT+1}]")
        q.e(f"s_lshl_b32 s{sT1}, s{sGL}, 7", f"v_lshl_add_u32 v35, v6, 3, s{sT1}")
        self.dsk = q.e(f"global_load_dwordx2 {vr(38,2)}, v35, s[{P_DSK}:{P_DSK+1}]")
        f = Seq()
        f.e(f"v_and_b32 v2, 31, v{vL}", f"v_lshrrev_b32 v3, 5, v{vL}")
        f.e("v_bfe_u32 v7, v2, 1, 3", "v_xor_b32 v7, v7, v3", "v_lshlrev_b32 v7, 4, v7",
            f"v_lshl_add_u32 v{vCR}, v2, 7, v7",
            f"s_lshl_b32 s{sT1}, s{sWM}, 5", f"v_xor_b32 v7, s{sT1}, v7", f"v_xor_b32 v5, s{sT1}, v{vCR}",
            f"s_lshl_b32 s{sT1}, s{sWM}, 14", f"v_add_u32 v{RA}, s{sT1}, v5")
        f.e("v_lshl_add_u32 v7, v6, 7, v7", "v_and_b32 v8, 16, v2", "v_lshl_add_u32 v7, v8, 10, v7",
            f"s_lshl_b32 s{sT1}, s{sWN}, 13", f"s_add_u32 s{sT1}, s{sT1}, 4096", f"v_add_u32 v{RS}, s{sT1}, v7")
        for p in range(1, 4): f.e(f"v_xor_b32 v{RA+p}, {32*p}, v{RA}", f"v_xor_b32 v{RS+p}, {32*p}, v{RS}")
        f.e("v_lshrrev_b32 v9, 2, v6", "v_lshlrev_b32 v5, 7, v9", "v_and_b32 v7, 3, v6", "v_lshl_add_u32 v5, v7, 3, v5", "v_lshl_add_u32 v5, v8, 1, v5",
            "v_and_b32 v7, 8, v6", "v_lshl_add_u32 v5, v7, 3, v5",
            f"v_lshl_add_u32 v{vTR}, v3, 9, v5",
            "v_lshl_add_u32 v5, v3, 10, v5", f"s_lshl_b32 s{sT1}, s{sWN}, 6", f"s_lshl_b32 s{sT0}, s{sWM}, 13", f"s_or_b32 s{sT1}, s{sT1}, s{sT0}",
            f"v_xor_b32 v{RF}, s{sT1}, v5")
        for p in range(1, 4): f.e(f"v_xor_b32 v{RF+p}, {WBLK*p}, v{RF}")
        f.e(f"s_mov_b32 s{sONES}, 0x3f803f80", f"v_mov_b32 v{CS}, 0", f"v_mov_b32 v{CS+1}, 0")
        for k in range(4): f.e(f"v_mov_b32 v{48+k}, 0")
        for k in range(12): f.e(f"v_add_u32 v{RA+12+k}, {2*SLOT}, v{RA+k}")
        mk_srd(f, R_SY, P_WS, WS_END); mk_srd(f, R_W2, P_W2, 1792*1024); mk_srd(f, R_OUT, P_OUT, 2048*2048)
        f.e(f"s_and_b32 s{P_CRE+1}, s{P_CRE+1}, 0xffff", f"s_and_b32 s{P_CIM+1}, s{P_CIM+1}, 0xffff",
            f"s_bitcmp1_b32 s{sGL}, {0 if c.hrot else 5}", f"s_cselect_b64 s[{R_CRE}:{R_CRE+1}], s[{P_CIM}:{P_CIM+1}], s[{P_CRE}:{P_CRE+1}]",
            f"s_cselect_b64 s[{R_CIM}:{R_CIM+1}], s[{P_CRE}:{P_CRE+1}], s[{P_CIM}:{P_CIM+1}]")
        for r in (R_CRE, R_CIM): f.e(f"s_mov_b32 s{r+2}, {512*1024}", f"s_mov_b32 s{r+3}, 0x20000")
        q.extend(f)
        q.e(f"s_mul_i32 s{sT0}, s2, 56", f"s_mul_i32 s{sT1}, s{sWN}, 28", f"s_add_u32 s{sT0}, s{sT0}, s{sT1}", f"s_lshl_b32 s{sT1}, s2, 4", f"s_min_u32 s{sT1}, s{sT1}, {4096-28}",
            f"s_cmp_eq_u32 s{sWN}, 0", f"s_cselect_b32 s70, s{P_CRE}, s{P_CIM}", f"s_cselect_b32 s71, s{P_CRE+1}, s{P_CIM+1}",
            f"s_cmp_eq_u32 s{sWM}, 0", f"s_cselect_b32 s{sT0}, s{sT0}, s{sT1}",
            f"s_cselect_b32 s70, s{P_W2}, s70", f"s_cselect_b32 s71, s{P_W2+1}, s71",
            f"v_min_u32 v7, {c.pf_n - 1}, v{vL}", f"v_add_lshl_u32 v{vPF}, v7, s{sT0}, 7")
        f = Seq(); self.consts_early(f); self.consts_w2(f)
        G, l = self.stage_dma(1); last.append(l)
        if c.boot:
            q.extend(f)
            if c.boot_late:
                f = Seq(); self.consts_late(f); q.extend(f)
            for kind, at in c.prest.items():
                if at == -1:
                    if kind == "S":
                        q.e(f"s_movk_i32 s{sK4}, 8192")
                        for part in range(2):
                            for mu in range(2): q.e(f"buffer_store_dwordx4 {vr(160)}, v{vHS}, {srd(R_SY)}, {('0', f's{sK4}')[part]} offen offset:{1024*mu} sc1")
                    else:
                        for k in range(4): q.e(f"buffer_store_dwordx4 {vr(160)}, v{vHF1 if kind == 'F1' else vHF2}, {srd(R_SY)}, 0 offen offset:{1024*k} sc1")
            q.wvm_all()
            if c.boot_bar: q.e("s_barrier")
            q.extend(self.postq)
            for g in G: q.e(*g)
        else: q.extend(merge(f, G))
        if c.strow_at == -1: q.e(*self.strows)
        return last

    def consts_early(self, f):
        f.e("v_and_b32 v5, 1, v4", "v_lshl_add_u32 v32, v5, 1, v3")
        f.e(f"s_lshl_b32 s{sT2}, s{sT2}, 5", f"s_add_u32 s{sT2}, s{sT2}, {WS_STAT}", f"v_lshl_add_u32 v7, v3, 4, s{sT2}", f"v_lshl_add_u32 v{vSTS}, v2, 25, v7")
        f.e(f"s_lshl1_add_u32 s{sT0}, s{sC}, s{sXB}", f"s_lshl_b32 s{sT1}, s{sT0}, 13", f"s_add_u32 s{sT1}, s{sT1}, {WS_FLAG}",
            f"s_lshl_b32 s{sT2}, s{sW}, 3", f"s_mul_i32 s{sT0}, s{sWM}, 3", f"s_add_u32 s{sT0}, s{sT0}, s{sWN}", f"s_lshl_b32 s{sT0}, s{sT0}, 2", f"s_sub_u32 s{sT0}, s{sT0}, 8",
            f"v_mov_b32 v7, s{sT2}", f"v_mov_b32 v8, s{sT0}", f"v_cmp_gt_u32 vcc, 8, v{vL}", "v_cndmask_b32 v7, v8, v7, vcc",
            f"v_add_u32 v7, v7, v{vL}", f"v_lshl_add_u32 v7, v7, 8, s{sT1}", "v_lshl_add_u32 v36, v4, 28, v7",
            f"s_lshl2_add_u32 s{sT2}, s{sGL}, s{sW}", f"s_lshl_b32 s{sT2}, s{sT2}, 8", f"s_add_u32 s{sT1}, s{sT1}, s{sT2}",
            f"v_lshl_add_u32 v7, v2, 2, s{sT1}", f"v_lshl_add_u32 v{vFL}, v3, 30, v7", f"v_lshl_add_u32 v{vFP}, v3, 7, v7")
        f.e(f"s_lshl4_add_u32 s{sT0}, s{sC}, s{sG}", f"s_lshl1_add_u32 s{sT0}, s{sT0}, s{sWN}", f"s_lshl_b32 s{sT0}, s{sT0}, 9", f"s_add_u32 s{sT0}, s{sT0}, {WS_CS}",
            f"v_lshl_add_u32 v7, v{vL}, 3, s{sT0}", f"v_xor_b32 v{vGC}, 0x4000, v7", f"s_lshl_b32 s{sT2}, s{sWM}, 30", f"v_add_u32 v{vCSS}, s{sT2}, v7")
        f.e(f"s_lshl_b32 s{sT0}, s{sWN}, 8", f"v_lshl_add_u32 v8, v6, 4, s{sT0}",
            f"s_lshl1_add_u32 s{sNV}, s{sC}, s{sWM}", f"s_sub_u32 s{sT0}, 31, s{sNV}", f"s_lshl_b32 s{sT0}, s{sT0}, 9",
            f"s_lshl_b32 s{sT1}, s{sG}, 14", f"s_add_u32 s{sT1}, s{sT1}, {WS_AGG}", f"s_add_u32 s{sT1}, s{sT1}, s{sT0}",
            f"v_add_u32 v7, s{sT1}, v8", f"v_lshl_add_u32 v{vAGS}, v4, 28, v7",
            f"s_add_u32 s{sT0}, s{sT0}, 512", "v_sub_u32 v7, 3, v4", "v_lshl_add_u32 v7, v7, 12, v8", f"v_add_u32 v{vLBK}, s{sT0}, v7",
            f"s_lshl_b32 s{sNV}, s{sNV}, 4")
        f.e("v_cmp_eq_u32 vcc, 0, v4", f"v_cndmask_b32 v{vFP}, v{vFP}, v{vAGS}, vcc",
            "v_mul_u32_u24 v7, 24, v6", f"v_add3_u32 v7, v7, v{vCSS}, -16", "v_subrev_u32 v7, 240, v7",
            "v_cmp_eq_u32 vcc, 2, v4", f"v_cndmask_b32 v{vFP}, v{vFP}, v7, vcc")

    def consts_w2(self, f):
        f.e(f"s_lshl_b32 s{sHS}, s{sW}, 14", f"s_add_u32 s{sHS}, s{sHS}, {56*2048}")
        f.e(f"s_and_b32 s{sT2}, s{sC}, 1", f"s_lshl2_add_u32 s{sT0}, s{sW}, s{sT2}", f"s_add_u32 s{sT1}, s{sT0}, 2",
            f"s_min_u32 s{sT0}, s{sT0}, 12", f"s_min_u32 s{sT1}, s{sT1}, 13", f"s_lshl_b32 s{UO[0]}, s{sT0}, 13", f"s_lshl_b32 s{UO[1]}, s{sT1}, 13",
            f"s_xor_b32 s{sT2}, s{sT2}, 1", f"s_mul_i32 s{sT0}, s{sWM}, 6", f"s_add_u32 s{sT0}, s{sT0}, s{sT2}",
            f"s_lshl2_add_u32 s{sT1}, s{sWN}, s{sT0}", f"s_lshl_b32 s{UO[2]}, s{sT1}, 13",
            f"s_add_u32 s{sT0}, s{sT0}, 2", f"s_lshl1_add_u32 s{sT0}, s{sT0}, s{sWN}", f"s_lshl_b32 s{UO[5]}, s{sT0}, 12")
        if self.c.hrot:
            f.e(f"s_and_b32 s{sT0}, s{sGL}, 1", f"s_sub_u32 s{sT0}, 0, s{sT0}", f"s_xor_b32 s{sT1}, s{UO[0]}, s{UO[1]}", f"s_and_b32 s{sT1}, s{sT1}, s{sT0}",
                f"s_xor_b32 s{UO[0]}, s{UO[0]}, s{sT1}", f"s_xor_b32 s{UO[1]}, s{UO[1]}, s{sT1}",
                f"s_and_b32 s{sT0}, s{sT0}, 8192", f"s_xor_b32 s{sHS}, s{sHS}, s{sT0}",
                f"s_and_b32 s{sT0}, s{sGL}, 2", f"s_lshl_b32 s{sT1}, s{sT0}, 11", f"s_lshl_b32 s{sT0}, s{sT0}, 5", f"v_xor_b32 v{vC2}, s{sT0}, v{vC2}")
            for r in (UO[0], UO[1], UO[2], sHS): f.e(f"s_xor_b32 s{r}, s{r}, s{sT1}")
        f.e(f"s_mul_i32 s{sLE}, s{sW}, {SPW}", f"s_add_u32 s{sLE}, s{sLE}, {L_SP}",
            f"s_mul_i32 s{sW2O}, s{sXB}, {896*1024}", f"s_lshl_b32 s{sT1}, s{sGL}, 7", f"s_add_u32 s{sW2O}, s{sW2O}, s{sT1}",
            f"s_lshl2_add_u32 s{sCO}, s{sXB}, s{sW}", f"s_lshl_b32 s{sCO}, s{sCO}, 7", f"s_lshl_b32 s{sT0}, s{sGL}, 16", f"s_add_u32 s{sCO}, s{sCO}, s{sT0}")
        f.e(f"v_xor_b32 v{vC2+1}, 64, v{vC2}", f"v_add_u32 v{vC2+1}, 7168, v{vC2+1}", f"v_add_u32 v{vC2+2}, 14336, v{vC2}", f"v_add_u32 v{vC2+3}, 14336, v{vC2+1}")
        for j in range(1, 4): f.e(f"v_add_u32 v{vW2+j}, {7168*j}, v{vW2}")

    def consts_late(self, f):
        f.e(f"v_and_b32 v7, 4, v{vL}", f"v_and_b32 v8, 35, v{vL}", "v_lshl_add_u32 v7, v7, 2, v8", f"v_and_b32 v8, 24, v{vL}", "v_lshrrev_b32 v8, 1, v8",
            "v_add_u32 v37, v7, v8")
        f.e(f"s_lshl1_add_u32 s{sT1}, s{sC}, s{sWM}", f"s_lshl_b32 s{sT1}, s{sT1}, 10", f"s_add_u32 s{sT1}, s{sT1}, {WS_STAT}",
            f"v_lshl_add_u32 v{vGS}, v37, 4, s{sT1}", "v_and_b32 v7, 3, v6", "v_lshl_add_u32 v7, v9, 3, v7", "v_lshl_add_u32 v7, v3, 2, v7", "v_and_b32 v8, 16, v2", "v_lshl_add_u32 v7, v8, 1, v7",
            f"v_lshlrev_b32 v{vGR}, 2, v7")
        f.e(f"v_lshl_add_u32 v{vGC+2}, v{vL}, 3, s{sLB}", f"v_xor_b32 v{vGC+1}, {2*WBLK}, v{vGC+2}")
        f.e(f"s_lshl1_add_u32 s{sT0}, s{sC}, s{sXB}", f"s_lshl1_add_u32 s{sT1}, s{sT0}, s{sWM}", f"s_mul_i32 s{sT1}, s{sT1}, {HBLK}", f"s_add_u32 s{sT1}, s{sT1}, {WS_H}",
            f"s_lshl1_add_u32 s{sT0}, s{sT0}, s{sXB}", f"s_mul_i32 s{sB1}, s{sT0}, {HBLK}", f"s_xor_b32 s{sT0}, s{sT0}, 1", f"s_mul_i32 s{sB0}, s{sT0}, {HBLK}",
            f"s_add_u32 s{sB0}, s{sB0}, {WS_H}", f"s_add_u32 s{sB1}, s{sB1}, {WS_H}")
        f.e(f"s_lshl_b32 s{sT0}, s{sWN}, 12", f"s_add_u32 s{sT0}, s{sT0}, s{sT1}", f"s_lshl_b32 s{sT2}, s{sU0}, 13", f"s_add_u32 s{sT2}, s{sT2}, s{sT0}",
            f"v_add_u32 v{vHF1}, s{sT2}, v33", f"s_lshl_b32 s{sT2}, s{sU1}, 13", f"s_add_u32 s{sT2}, s{sT2}, s{sT0}",
            f"s_min_u32 s{sT0}, s{R_W1B+2}, 1", f"s_sub_u32 s{sT0}, 1, s{sT0}", f"s_lshl_b32 s{sT0}, s{sT0}, 30", f"s_add_u32 s{sT2}, s{sT2}, s{sT0}",
            f"v_add_u32 v{vHF2}, s{sT2}, v33")
        f.e(f"s_lshr_b32 s{sT0}, s{sGL}, 1", f"s_and_b32 s{sT2}, s{sGL}, 1", f"s_lshl2_add_u32 s{sT0}, s{sT0}, s{sT2}", f"s_lshl1_add_u32 s{sT0}, s{sT0}, s{sWN}",
            f"s_add_u32 s{sT0}, s{sT0}, 56", f"s_lshl_b32 s{sT0}, s{sT0}, 11", f"s_add_u32 s{sT0}, s{sT0}, s{sT1}", f"v_add_u32 v{vHS}, s{sT0}, v33")
        f.e(f"s_lshl1_add_u32 s{sT0}, s{sC}, s{sXB}", f"s_lshl2_add_u32 s{sT0}, s{sT0}, s{sW}", f"s_lshl_b32 s{sT0}, s{sT0}, 4", f"v_add_u32 v7, s{sT0}, v4",
            "v_and_b32 v8, 3, v6", "v_lshl_add_u32 v34, v8, 2, v7", "v_lshlrev_b32 v34, 4, v34", f"v_add_u32 v34, {WS_STAT}, v34", "v_lshl_add_u32 v18, v7, 10, v35", "v_lshlrev_b32 v19, 1, v18")
        f.e(f"s_lshl4_add_u32 s{sT0}, s{sC}, s{sG}", f"s_lshl2_add_u32 s{sT0}, s{sT0}, s{sW}", f"s_lshl_b32 s{sT0}, s{sT0}, 12", f"s_add_u32 s{sT0}, s{sT0}, {WS_XCH}",
            f"v_add_u32 v{vXS}, s{sT0}, v33", f"v_xor_b32 v{vXR}, 0x20000, v{vXS}")
        f.e("v_and_b32 v7, 7, v2", "v_xor_b32 v7, v7, v3", "v_lshlrev_b32 v7, 4, v7", "v_and_b32 v8, 31, v37", "v_lshl_add_u32 v7, v8, 8, v7",
            f"v_add_u32 v{vRW}, s{sLE}, v7")
        for g4 in range(1, 4): f.e(f"v_xor_b32 v{vRW+g4}, {32*g4}, v{vRW}")
        f.e("v_xor_b32 v7, v6, v4", "v_lshlrev_b32 v7, 4, v7", "v_lshl_add_u32 v7, v4, 8, v7", f"s_lshl_b32 s{sT0}, s{sW}, 12", f"s_lshl_b32 s{sT1}, s{sWN}, 6",
            f"s_or_b32 s{sT0}, s{sT0}, s{sT1}", f"s_add_u32 s{sT0}, s{sT0}, {L_SP}", f"v_xor_b32 v{vRR}, s{sT0}, v7")
        f.e("v_and_b32 v7, 2, v6", "v_and_b32 v8, 1, v6", "v_lshl_add_u32 v7, v7, 1, v8", "v_and_b32 v8, 4, v6", "v_lshrrev_b32 v8, 1, v8", "v_or_b32 v7, v7, v8",
            "v_lshlrev_b32 v8, 1, v32", "v_xor_b32 v7, v7, v8", "v_lshlrev_b32 v7, 4, v7", "v_lshl_add_u32 v7, v6, 7, v7",
            f"s_add_u32 s{sT0}, s{sLB}, {2*SLOT + 4096}", f"v_add_u32 v{vTW}, s{sT0}, v7", f"v_xor_b32 v{vTW+1}, 16, v{vTW}")
        f.e("v_and_b32 v5, 1, v6", "v_and_b32 v8, 16, v2", "v_lshl_add_u32 v5, v5, 5, v8", "v_and_b32 v8, 2, v6", "v_lshl_add_u32 v5, v8, 2, v5")
        f.e("v_and_b32 v7, 2, v9", "v_and_b32 v8, 1, v9", "v_lshl_add_u32 v7, v7, 1, v8", "v_lshlrev_b32 v7, 4, v7", "v_xor_b32 v7, v7, v5",
            "v_lshl_add_u32 v8, v3, 3, v9", "v_lshl_add_u32 v7, v8, 7, v7", f"v_add_u32 v{vTD}, s{sT0}, v7")

    def ssm_consts(self, q):
        q.wvm(self.small)
        q.e("v_lshlrev_b32 v14, 16, v14", "v_lshlrev_b32 v12, 16, v12", f"v_mul_f32 v14, {fh(1.4426950408889634)}, v14", "v_lshlrev_b32 v13, 16, v13",
            "v_exp_f32 v14, v14", "v_lshlrev_b32 v3, 4, v32", "v_cvt_pk_bf16_f32 v14, v14, v14", "v_lshlrev_b32 v14, 16, v14",
            "v_mul_f32 v17, v14, v12", "v_mul_f32 v15, v14, v13",
            f"v_mul_f32 v17, {fh(1.4426950408889634)}, v17", f"v_mul_f32 v15, {fh(0.15915494309189535)}, v15",
            "v_cvt_f32_u32 v3, v3", "v_sub_u32 v4, 3, v4", "v_lshlrev_b32 v4, 9, v4", "v_cvt_f32_u32 v4, v4")
        def cexp(d, n):
            q.e(f"v_mul_f32 v6, {n}, v15", f"v_mul_f32 v5, {n}, v17", "v_fract_f32 v6, v6", "v_exp_f32 v5, v5", f"v_cos_f32 v{d}, v6", f"v_sin_f32 v{d+1}, v6",
                f"v_mul_f32 v{d}, v{d}, v5", f"v_mul_f32 v{d+1}, v{d+1}, v5")
        cexp(20, "1.0"); cexp(22, fh(16.0)); cexp(24, fh(64.0)); cexp(26, "v3"); cexp(28, "v4")
        q.e("v_mul_f32 v6, v12, v12", "v_fmac_f32 v6, v13, v13", "v_rcp_f32 v6, v6", "v_add_f32 v5, -1.0, v20",
            "v_mul_f32 v30, v5, v12", "v_fmac_f32 v30, v21, v13", "v_mul_f32 v31, v21, v12", "v_fma_f32 v31, -v5, v13, v31",
            "v_add_f32 v6, v6, v6", "v_mul_f32 v30, v30, v6", "v_mul_f32 v31, v31, v6")

    def check(self, name, loads, test):
        q = Seq()
        q.wvm(loads[-1])
        q.e(*test)
        q.e(f"s_cbranch_scc1 L_{name}_slow")
        q.label(f"L_{name}_ok")
        o = self.ool
        o.label(f"L_{name}_slow")
        o.e(f"s_mov_b32 s{sPOLL}, 0x40000")
        o.label(f"L_{name}_loop")
        o.e(f"s_sleep {self.c.poll_sleep}")
        for l in loads: o.append(I(l.t, "o"))
        o.e("s_waitcnt vmcnt(0)", f"s_sub_u32 s{sPOLL}, s{sPOLL}, 1", f"s_cbranch_scc1 L_{name}_ok")
        o.e(*test)
        o.e(f"s_cbranch_scc1 L_{name}_loop", f"s_branch L_{name}_ok")
        return list(q)
    def tags(self, regs, lo=False):
        if len(regs) == 1: return [f"v_cmp_ne_u32 vcc, s{sTAG}, v{regs[0]}", f"s_and_b32 s{sM}, vcc_lo, {lo}" if lo else "s_cmp_lg_u64 vcc, 0"]
        t = [f"v_cmp_ne_u32 s[{sM}:{sM+1}], s{sTAG}, v{regs[0]}"]
        for r in regs[1:]: t += [f"v_cmp_ne_u32 vcc, s{sTAG}, v{r}", f"s_or_b64 s[{sM}:{sM+1}], s[{sM}:{sM+1}], vcc"]
        return t

    def cmul_acc(self, q, d, a, b, c, c2=None):
        c2 = c + 1 if c2 is None else c2
        q.e(f"v_fma_f32 v{d}, v{a}, v{b}, v{c}", f"v_fma_f32 v{d+1}, v{a}, v{b+1}, v{c2}",
            f"v_fma_f32 v{d}, -v{a+1}, v{b+1}, v{d}", f"v_fma_f32 v{d+1}, v{a+1}, v{b}, v{d+1}")
    def cmul(self, q, d, a, b):
        q.e(f"v_mul_f32 v{d}, v{a}, v{b}", f"v_mul_f32 v{d+1}, v{a}, v{b+1}",
            f"v_fma_f32 v{d}, -v{a+1}, v{b+1}, v{d}", f"v_fma_f32 v{d+1}, v{a+1}, v{b}, v{d+1}")

    def w2_area(self, pc):
        return {0: (sLE, 0), 1: (sLE, 8192), 2: (sLB, SLOT), 5: (sLB, 2*SLOT), 3: (sLE, 0), 4: (sLE, 8192)}[pc]
    def w2_dma(self, pc, run=4):
        sb, ao = self.w2_area(pc)
        G = []
        for k in range(4 if pc == 5 else 8):
            g = []; j = k % run
            if pc in UO:
                if j == 0:
                    g.append(I(f"s_add_u32 m0, s{sb}, {ao + 1024*k}"))
                    if k: g += [I(f"s_xor_b32 s{sKX}, s{UO[pc]}, {k*1024}"), I(f"s_lshl3_add_u32 s{sKX}, s{sKX}, s{sW2O}")]
                    else: g.append(I(f"s_lshl3_add_u32 s{sKX}, s{UO[pc]}, s{sW2O}"))
                g.append(I(f"buffer_load_dwordx4 v{vW2+j}, {srd(R_W2)}, s{sKX} offen offset:{1024*j} lds", "vm"))
            else:
                if j == 0: g += [I(f"s_add_u32 m0, s{sb}, {ao + 1024*k}"), I(f"s_add_u32 s{sKX}, s{sCO}, {8*k*1024}")]
                g.append(I(f"buffer_load_dwordx4 v{vC2+j}, {srd(R_CRE if pc == 3 else R_CIM)}, s{sKX} offen offset:{1024*j} lds", "vm"))
            G.append(g)
        self.w2_last[pc] = G[-1][-1]
        return G
    def w2_reads(self, pc):
        sb, ao = self.w2_area(pc)
        L = Seq()
        if pc in UO:
            L.e(f"v_add_u32 v{vTA}, s{sb}, v{vTR}")
            if ao >= 2 * SLOT: L.e(f"v_add_u32 v{vTA}, {ao}, v{vTA}"); ao = 0
            L.e(f"v_xor_b32 v{vTA+1}, 64, v{vTA}")
            L.wvm(self.w2_last[pc])
            j0 = {0: 0, 1: 4, 2: 8, 5: 12}[pc]
            for k in range(2 if pc == 5 else 4):
                for nu in range(2):
                    for e in range(2):
                        a = 8 * (j0 + k) + 4 * nu + 2 * e
                        r = L.e(f"ds_read_b64_tr_b16 {ar(a,2)}, v{vTA+nu} offset:{ao + 2048*k + 1024*e}")
        else:
            L.e(f"v_add_u32 v{vTA}, s{sb}, v{vCR}")
            for k in range(1, 4): L.e(f"v_xor_b32 v{vTA+k}, {32*k}, v{vTA}")
            L.wvm(self.w2_last[pc])
            j0 = 14 if pc == 3 else 18
            for k in range(4):
                for nu in range(2):
                    r = L.e(f"ds_read_b128 {ar(8*(j0+k)+4*nu)}, v{vTA+k} offset:{ao + 4096*nu}")
        self.w2_rd[pc] = r
        return groups(L)
    def after_reads(self, pc, G):
        w = Seq(); w.wds(self.w2_rd[pc])
        return [list(w) + G[0]] + G[1:]

    def ffn_epi(self, a, voff):
        f = Seq()
        for t in range(2):
            b = a + 16 * t
            for j in range(8): f.e(f"v_pk_mul_f32 {vr(b+2*j,2)}, {vr(b+2*j,2)}, {vr(42,2)} op_sel:[0,{t}] op_sel_hi:[1,{t}]")
            for j in range(8): f.e(f"v_cvt_pk_bf16_f32 v{b+j}, v{b+2*j}, v{b+2*j+1}")
            for j in range(8): f.e(f"v_pk_max_i16 v{b+j}, v{b+j}, 0")
        st = [I(f"buffer_store_dwordx4 {vr(a+16*t+4*al)}, v{voff}, {srd(R_SY)}, 0 offen offset:{2048*al + 1024*t} {self.c.hs}", "vm") for t in range(2) for al in range(2)]
        return f, st

    def split3(self, s, src, d):
        s.e(f"v_and_b32 v240, 0xffff0000, v{src}", f"v_sub_f32 v240, v{src}, v240",
            f"v_perm_b32 v{d}, v240, v{src}, s{sONES}", "v_and_b32 v241, 0xffff0000, v240", "v_sub_f32 v241, v240, v241",
            f"v_cvt_pk_bf16_f32 v{d+1}, v241, 0")

    def flag_store(self, kind, after):
        q = Seq(); q.wvm(after)
        q.e(f"buffer_store_dword v251, v{vFL}, {srd(R_SY)}, 0 offen offset:{128*kind} {self.c.hs}")
        return list(q)

    def phase1(self, q, last):
        c = self.c
        RE, IM = ACC_S, ACC_S + 16
        MF8 = "v_mfma_f32_32x32x8_bf16"; MF = "v_mfma_f32_32x32x16_bf16"
        MFR = 200
        q.wvm(last[0]); q.e("s_barrier"); self.stamp(q)
        D = 2; D2 = 3
        RD = {}
        for n in range(D): RD[n] = self.frag_reads(n); q.e(*RD[n])
        G, l = self.stage_dma(2); last.append(l)
        dma = Stream(G, every=1)
        s = Seq()
        s.e(f"v_readfirstlane_b32 s{sTAG}, v16", "v_permlane32_swap_b32 v48, v49", "v_permlane32_swap_b32 v50, v51", f"s_add_u32 s{sTAG}, s{sTAG}, {hex(TAGK)}",
            "v_add_f32 v48, v48, v49", "v_add_f32 v50, v50, v51", f"s_or_b32 s{sTAG}, s{sTAG}, 1", f"v_mov_b32 v54, s{sTAG}",
            "v_permlane16_swap_b32 v48, v50", "v_add_f32 v48, v48, v50", f"v_mov_b32 v251, s{sTAG}")
        for k in (8, 4, 2, 1): s.e(f"v_add_f32_dpp v48, v48, v48 row_ror:{k} row_mask:0xf bank_mask:0xf")
        s.e("v_mov_b32 v49, v48", "v_permlane16_swap_b32 v48, v49",
            f"v_mul_f32 v48, {fh(1/512)}, v48", f"v_mul_f32 v49, {fh(1/512)}, v49", "v_fma_f32 v49, -v48, v48, v49", "v_max_f32 v49, 0, v49",
            "v_cvt_pk_bf16_f32 v49, v49, v49", "v_lshlrev_b32 v49, 16, v49", f"v_add_f32 v49, {fh(1e-5)}, v49",
            "v_cvt_pk_bf16_f32 v49, v49, v49", "v_lshlrev_b32 v49, 16, v49", "v_sqrt_f32 v49, v49",
            "v_cvt_pk_bf16_f32 v53, -v48, -v48",
            "v_cvt_pk_bf16_f32 v49, v49, v49", "v_lshlrev_b32 v49, 16, v49", "v_rcp_f32 v52, v49")
        s.e(f"buffer_store_dwordx4 {vr(52)}, v{vSTS}, {srd(R_SY)}, 0 offen sc1")
        sA = Stream(groups(s), start=4 * (c.stat_at + 1), dl=4 * c.stat_at + 28)
        s = Seq()
        if not (c.boot and c.boot_late): self.consts_late(s)
        self.ssm_consts(s)
        sC_ = Stream(groups(s), dl=c.gather_at - 1)
        gl_ = [I(f"buffer_load_dwordx3 {vr(40,3)}, v{vGS}, {srd(R_SY)}, 0 offen sc1", "vm")]
        A = [gl_, ("nb", c.check_at), self.check("ga", gl_, self.tags([42]))]
        s = Seq()
        s.e(f"ds_bpermute_b32 v44, v{vGR}, v40")
        s.e(f"v_mov_b32 v{MFR}, v41", f"v_mov_b32 v{MFR+2}, v41", "v_mov_b32 v42, v40", "v_mov_b32 v43, v40",
            f"s_lshl_b32 s{sT0}, s{sG}, 14", f"s_add_u32 s{sT0}, s{sT0}, {WS_AGG}",
            f"v_permlane32_swap_b32 v{MFR}, v{MFR+2}", "v_permlane32_swap_b32 v42, v43", f"v_mov_b32 v{MFR+1}, v{MFR}", f"v_mov_b32 v{MFR+3}, v{MFR+2}")
        A += groups(s)
        A.append([I(f"s_add_u32 s{R_AG}, s{R_SY}, s{sT0}"), I(f"s_addc_u32 s{R_AG+1}, s{R_SY+1}, 0"), I(f"s_movk_i32 s{R_AG+2}, 16384")])
        assert c.check_at >= 92
        sG_ = Stream(A, start=c.gather_at, dl=119)
        early = self.w2_dma(0, 2) + self.w2_dma(1, 2)
        self.xl = []; X = []
        for ii in range(4):
            self.xl.append(I(f"buffer_load_dwordx2 {vr(2+4*ii,2)}, v18, {srd(R_X)}, s{sK4} offen", "vm"))
            X.append([I(f"s_movk_i32 s{sK4}, {4096*ii}"), self.xl[-1]])
        X.append(("nb", 120))
        self.xl.append(I(f"buffer_load_dwordx2 {vr(34,2)}, v34, {srd(R_SY)}, 0 offen sc1", "vm")); X.append([self.xl[-1]])
        assert c.check_at < 116
        sX_ = Stream(X, start=c.x_at, dl=127, every=c.x_every)
        for n in range(32):
            p = n & 3
            b = self.fb(n); rd = RD[n]
            if (n + D) % 4 == 0:
                i = (n + D) // 4 - 1
                flush(q, [dma])
                q.wds_all()
                if i < 7: q.wvm(last[i + 1])
                q.e("s_barrier")
                if i in c.ts_stages: self.stamp(q)
                if i < 6:
                    G, l = self.stage_dma(i + 3); last.append(l)
                    if c.early_from <= i:
                        G = G + early[:c.early_n]; early = early[c.early_n:]
                    dma = Stream(G, every=2)
                if i == 6:
                    dma = Stream(early[:c.early_last], every=2); early = early[c.early_last:]
                if i == 7: csr = q.e(f"ds_read_b64 {vr(62,2)}, v{vGC+2}")
            if n >= c.pf_from and (n - c.pf_from) % c.pf_step == 0 and (n - c.pf_from) // c.pf_step * c.pf_n < 28:
                q.e(f"global_load_dword v10, v{vPF}, s[70:71] offset:{(n - c.pf_from) // c.pf_step * c.pf_n * 128}")
            if n == c.l2pf_at:
                q.e(f"s_lshr_b32 s{sT0}, s2, 3", f"s_lshl2_add_u32 s{sT1}, s{sT0}, s{sW}", f"s_mul_i32 s{sT1}, s{sT1}, {56*128}", f"s_mul_i32 s{sT2}, s{sXB}, {896*1024}",
                    f"s_add_u32 s{sT1}, s{sT1}, s{sT2}", f"v_min_u32 v240, 55, v{vL}", "v_lshlrev_b32 v240, 7, v240")
                if not c.l2c_only: q.e(f"buffer_load_dword v219, v240, {srd(R_W2)}, s{sT1} offen")
                q.e(f"s_lshl2_add_u32 s{sT1}, s{sT0}, s{sW}", f"s_lshl_b32 s{sT1}, s{sT1}, 12", f"s_lshl_b32 s{sT2}, s{sXB}, 9", f"s_add_u32 s{sT1}, s{sT1}, s{sT2}",
                    f"v_and_b32 v240, 3, v{vL}", f"v_bfe_u32 v241, v{vL}, 2, 2", "v_lshlrev_b32 v240, 7, v240", "v_lshl_add_u32 v240, v241, 10, v240")
                q.e(f"buffer_load_dword v219, v240, {srd(R_CRE)}, s{sT1} offen", f"buffer_load_dword v219, v240, {srd(R_CIM)}, s{sT1} offen")
            for kind, at in c.prest.items():
                if at == n:
                    if kind == "S":
                        q.e(f"s_movk_i32 s{sK4}, 8192")
                        for part in range(2):
                            for mu in range(2): q.e(f"buffer_store_dwordx4 {vr(160)}, v{vHS}, {srd(R_SY)}, {('0', f's{sK4}')[part]} offen offset:{1024*mu} sc1")
                    else:
                        for k in range(4): q.e(f"buffer_store_dwordx4 {vr(160)}, v{vHF1 if kind == 'F1' else vHF2}, {srd(R_SY)}, 0 offen offset:{1024*k} sc1")
            if n == c.pt_at:
                q.e(f"buffer_load_dword v219, v{vFP}, {srd(R_SY)}, 0 offen")
            if n == c.strow_at: q.e(*self.strows)
            nxt = []
            if n + D < 32: nxt = RD[n + D] = self.frag_reads(n + D)
            z = lambda a: ("0" if n == 0 else vr(a, 16))
            M = [f"{MF} {vr(ACC_F1,16)}, {vr(b+4)}, {ar(8*n)}, {z(ACC_F1)}", f"{MF} {vr(ACC_F1+16,16)}, {vr(b+4)}, {ar(8*n+4)}, {z(ACC_F1+16)}",
                 f"{MF} {vr(RE,16)}, {ar(8*n)}, {vr(b)}, {z(RE)}", f"{MF} {vr(IM,16)}, {ar(8*n+4)}, {vr(b)}, {z(IM)}"]
            sched = [2, 1, 1, 2]
            k = 0
            if c.s_first: M = M[2:] + M[:2]
            for j, m in enumerate(M):
                q.wds(rd[4]); q.e(m)
                mine = nxt[k:k + sched[j]]; k += sched[j]
                q.e(*mine)
                fill_gap(q, 4 * n + j, len(mine), c.cap1, [dma, sA, sG_, sC_, sX_])
                if n == 30 and j == 2:
                    q.e(f"s_mov_b32 s{sONES}, 0x07060302"); q.wds(csr)
                    q.e(f"v_add_f32 v{CS+1}, v{CS+1}, v63", f"v_add_f32 v{CS}, v{CS}, v62")
                corrF = [f"{MF8} {vr(ACC_F1+16*t,16)}, {vr(222,2)}, {vr(MFR+2*t,2)}, {vr(ACC_F1+16*t,16)}" for t in range(2)]
                corrS = [f"{MF8} {vr(RE+16*t,16)}, {vr(MFR+2*t,2)}, {vr(204,2)}, {vr(RE+16*t,16)}" for t in range(2)]
                if n == 30 and j == 3: self.split3(q, *((CS, 204) if c.s_first else (CS + 1, 222)))
                if n == 31 and j == 0: self.split3(q, *((CS + 1, 222) if c.s_first else (CS, 204)))
                if n == 31 and j == 1:
                    flush(q, [sG_])
                    q.e(*(corrS if c.s_first else corrF))
            if n == c.stat_at:
                q.wvm(self.small0, self.strows[1])
                for r in range(4):
                    q.e(f"v_dot2c_f32_bf16 v48, s{sONES}, v{40+r}", f"v_dot2c_f32_bf16 v49, s{sONES}, v{44+r}",
                        f"v_dot2c_f32_bf16 v50, v{40+r}, v{40+r}", f"v_dot2c_f32_bf16 v51, v{44+r}, v{44+r}")
            if p == 1:
                if dma.it: q.e(*dma.it.pop(0))
                for e in (n - 1, n + 1):
                    q.wds(RD[e][4]); be = self.fb(e)
                    for r in range(4):
                        q.e(f"v_dot2c_f32_bf16 v{CS}, s{sONES}, v{be+r}", f"v_dot2c_f32_bf16 v{CS+1}, s{sONES}, v{be+4+r}")
            if n == 29: q.e(f"ds_write_b64 v{vGC+1}, {vr(CS,2)}")
        q.e(*(corrF if c.s_first else corrS))
        self.stamp(q)
        G9, l = self.stage_dma(9); last.append(l)
        f, st = self.ffn_epi(ACC_F1, vHF1)
        q.e(f"v_mov_b32 v{CS}, s{sTAG}")
        st = [I(f"buffer_store_dwordx2 {vr(CS,2)}, v{vCSS}, {srd(R_SY)}, 0 offen sc1", "vm")] + st
        if not c.s_first: q.extend(merge(f, G9[:c.g9_pre]))
        s = Seq()
        for i in range(16): s.e(f"v_permlane16_swap_b32 v{RE+i}, v{IM+i}")
        cr, ci = RE, IM
        def scale(i): s.e(f"v_mul_f32_dpp v{RE+i}, v44, v{RE+i} row_newbcast:{i} row_mask:0xf bank_mask:0xf", f"v_mul_f32_dpp v{IM+i}, v44, v{IM+i} row_newbcast:{i} row_mask:0xf bank_mask:0xf")
        scale(0); scale(1)
        for i in range(1, 16):
            d = 48 if i & 1 else 46
            s.e(f"v_fma_f32 v{d}, v20, v{cr}, v{RE+i}", f"v_fma_f32 v{d+1}, v20, v{ci}, v{IM+i}")
            if i < 15: scale(i + 1)
            s.e(f"v_fma_f32 v{d}, -v21, v{ci}, v{d}", f"v_fma_f32 v{d+1}, v21, v{cr}, v{d+1}")
            cr, ci = d, d + 1
        q.extend(merge(s, G9 if c.s_first else [[x] for x in st] + G9[c.g9_pre:]))
        s = Seq()
        s.e("v_mov_b32 v50, v48", "v_mov_b32 v51, v49", f"v_mov_b32 v62, s{sTAG}", "v_mov_b32 v40, 0",
            "v_permlane32_swap_b32 v48, v50", "v_permlane32_swap_b32 v49, v51",
            "v_mov_b32 v52, v48", "v_mov_b32 v54, v50", "v_mov_b32 v53, v49", "v_mov_b32 v55, v51",
            "v_permlane16_swap_b32 v48, v52", "v_permlane16_swap_b32 v50, v54", "v_permlane16_swap_b32 v49, v53", "v_permlane16_swap_b32 v51, v55", "v_mov_b32 v41, 0")
        self.cmul_acc(s, 50, 22, 48, 50); self.cmul_acc(s, 52, 22, 50, 52); self.cmul_acc(s, 60, 22, 52, 54)
        s.e(f"buffer_store_dwordx4 {vr(60)}, v{vAGS}, {srd(R_SY)}, 0 offen sc1")
        q.extend(s)
        self.stamp(q)
        q.wvm(last[8]); q.e("s_barrier")
        for e in range(32, 32 + D2):
            RD[e] = self.frag_reads(e); q.e(*RD[e])
        if c.s_first:
            q.e(st[0]); q.extend(f[:24]); q.e(st[1]); q.extend(f[24:36]); q.e(st[2]); q.extend(f[36:]); q.e(st[3])
        cl_ = I(f"buffer_load_dwordx2 {vr(CS,2)}, v{vGC}, {srd(R_SY)}, 0 offen sc1", "vm")
        S1 = []
        for j in range(1, 4):
            S1.append([I(f"v_cmp_eq_u32 vcc, {j}, v32"), I(f"v_cndmask_b32 v40, v40, v{46+2*j}, vcc"), I(f"v_cndmask_b32 v41, v41, v{47+2*j}, vcc")])
        s = Seq()
        for i in range(16):
            s.e(f"v_mul_f32 v46, v31, v{IM+i}", f"v_mul_f32 v{IM+i}, v30, v{IM+i}", f"v_fmac_f32 v{IM+i}, v31, v{RE+i}", f"v_fma_f32 v{RE+i}, v30, v{RE+i}, -v46")
        sS1 = Stream(S1 + groups(s))
        self.fa = I(f"buffer_load_dword v{vFP}, v36, {srd(R_SY)}, 0 offen sc1", "vm")
        for g in S1[:3]: q.e(*g)
        sS1.it = sS1.it[3:]
        self.lb = [I(f"buffer_load_dwordx3 {vr(LBR+4*t,3)}, v{vLBK}, {srd(R_AG)}, 0 offen offset:{512*t} sc1", "vm") for t in range(8)]
        assert len(early) % 2 == 0 and len(early) <= 8
        sR0 = Stream(self.w2_reads(0) + [("nb", 18)] + self.w2_reads(1), start=c.r0_at, dl=c.lb_at - 1)
        W = early + self.w2_dma(2, 2)
        if c.s_first: q.e(st[4])
        W2_ = self.after_reads(0, self.w2_dma(3)) + self.w2_dma(5) + self.after_reads(1, self.w2_dma(4))
        lbg = [self.lb[k:k + c.lb_grp] for k in range(0, 8, c.lb_grp)]
        fA = [[cl_] + self.flag_store(0, st[-1])]
        if c.fa_late:
            W = W[:c.w2_first] + [("nb", c.lb_at)] + lbg + fA + W[c.w2_first:] + W2_[:c.w2_n2] + [("nb", c.w2_at3)] + W2_[c.w2_n2:]
            sLB_ = Stream([])
        else:
            sR0.dl = c.w2_at2
            W = W[:c.w2_first] + [("nb", c.w2_at2)] + fA + W[c.w2_first:] + W2_[:c.w2_n2] + [("nb", c.w2_at3)] + W2_[c.w2_n2:]
            sLB_ = Stream(lbg, start=c.lb_at, every=2)
        sW2 = Stream(W, every=2)
        _, B, self.ssm_last = self.ssm_part2()
        if c.b_at < 64: sS1.dl = c.b_at - 1
        sB2 = Stream(B[:-1], start=c.b_at); self.hst = B[-1]
        sBase = Stream(self.base_stream(), start=64)
        K9 = 16 - D2
        for n in range(32, 64):
            k = n - 32
            b = self.fb(n)
            if k == K9:
                q.wds_all(); q.wvm(last[9]); q.e("s_barrier")
            nxt = RD[n + D2] = self.frag_reads(n + D2)
            for t in range(2):
                d = ACC_F2 + 16 * t
                q.wds(RD[n][-1])
                q.e(f"{MF} {vr(d,16)}, {vr(b+4)}, {ar(8*k+4*t)}, {'0' if k == 0 else vr(d,16)}")
                q.e(*nxt[t:t+1])
                fill_gap(q, 2 * k + t, 1.25, c.cap2, [sLB_, sW2, sR0, sS1, sB2, sBase])
                if k == 30 and t == 0: q.extend(self.check("c2", [cl_], self.tags([CS])))
                if k == 30 and t == 1: self.split3(q, CS + 1, 222)
        for t in range(2): q.e(f"{MF8} {vr(ACC_F2+16*t,16)}, {vr(222,2)}, {vr(MFR+2*t,2)}, {vr(ACC_F2+16*t,16)}")
        self.stamp(q)
        self.left = (sW2.rest(), sS1.rest(), sR0.rest(), sLB_.rest(), sB2.rest())
        self.base_left = sBase.rest()

    def ssm_part2(self):
        RE, IM = ACC_S, ACC_S + 16
        LB = LBR
        lb = self.lb
        pr_ = [48, 50, 56, 58, 60, 62, 70, sM]
        test = [f"v_cmp_eq_u32 s[{pr_[t]}:{pr_[t]+1}], s{sTAG}, v{LB+4*t+2}" for t in range(8)]
        test += [f"s_bcnt1_i32_b64 s{pr_[t]}, s[{pr_[t]}:{pr_[t]+1}]" for t in range(8)]
        test += [f"s_add_u32 s{pr_[0]}, s{pr_[0]}, s{pr_[t]}" for t in range(1, 8)]
        test.append(f"s_cmp_lg_u32 s{pr_[0]}, s{sNV}")
        B = [self.check("lb", lb, test)]
        q = Seq()
        self.stamp(q)
        for t in range(6, -1, -1): self.cmul_acc(q, LB + 4 * t, 24, LB + 4 * (t + 1), LB + 4 * t)
        self.cmul(q, 62, 28, LB)
        for sw in ("16", "32"):
            q.e("v_mov_b32 v60, v62", "v_mov_b32 v61, v63", f"v_permlane{sw}_swap_b32 v60, v62", f"v_permlane{sw}_swap_b32 v61, v63",
                "v_add_f32 v62, v60, v62", "v_add_f32 v63, v61, v63")
        self.cmul_acc(q, 60, 26, 62, 40)
        self.cmul(q, 62, 30, 60)
        self.nB1 = len(groups(q)) + 1
        pr, pi_ = 62, 63
        for i in range(16):
            q.e(f"v_fma_f32 v{RE+i}, v20, v{pr}, v{RE+i}", f"v_fma_f32 v{IM+i}, v20, v{pi_}, v{IM+i}",
                f"v_fma_f32 v{RE+i}, -v21, v{pi_}, v{RE+i}", f"v_fma_f32 v{IM+i}, v21, v{pr}, v{IM+i}")
            pr, pi_ = RE + i, IM + i
            if i & 1:
                j = i >> 1
                q.e(f"v_cvt_pk_bf16_f32 v{44+j}, v{RE+2*j}, v{RE+2*j+1}", f"v_cvt_pk_bf16_f32 v{52+j}, -v{IM+2*j}, -v{IM+2*j+1}")
            if i == 7:
                q.e(f"ds_write_b128 v{vTW}, {vr(44)}", f"ds_write_b128 v{vTW}, {vr(52)} offset:2048")
        q.e(f"ds_write_b128 v{vTW+1}, {vr(48)}", f"ds_write_b128 v{vTW+1}, {vr(56)} offset:2048")
        q.e(f"v_xor_b32 v61, {512|32}, v{vTD}", f"v_xor_b32 v62, 64, v{vTD}", "v_xor_b32 v63, 64, v61", f"s_movk_i32 s{sT1}, 8192")
        ad = {(0, 0): vTD, (0, 1): 61, (1, 0): 62, (1, 1): 63}
        for part in range(2):
            for mu in range(2):
                for e in range(2):
                    tr = q.e(f"ds_read_b64_tr_b16 {vr(64 + 8*part + 4*mu + 2*e,2)}, v{ad[mu, e]} offset:{2048*part}")
        B += groups(q)
        st = [I(f"buffer_store_dwordx4 {vr(64+8*part+4*mu)}, v{vHS}, {srd(R_SY)}, {('0', f's{sT1}')[part]} offen offset:{1024*mu} {self.c.hs}", "vm") for part in range(2) for mu in range(2)]
        w = Seq(); w.wds(tr)
        B.append(list(w) + st)
        return lb, B, st[-1]

    def base_stream(self):
        f = Seq()
        T = 88; D = 20; r = 24
        f.wvm(self.xl[-1])
        f.e("v_lshlrev_b32 v35, 16, v35", f"v_lshlrev_b32 v{D}, 16, v38", f"v_and_b32 v{D+1}, 0xffff0000, v38", f"v_lshlrev_b32 v{D+2}, 16, v39", f"v_and_b32 v{D+3}, 0xffff0000, v39")
        for ii in range(4):
            b = BASE + 4 * ii
            f.e(f"v_mov_b32_dpp v{r}, v34 row_newbcast:{ii} row_mask:0xf bank_mask:0xf", f"v_mov_b32_dpp v{r+1}, v35 row_newbcast:{ii} row_mask:0xf bank_mask:0xf",
                f"v_lshlrev_b32 v{b+2}, 16, v{b+1}", f"v_and_b32 v{b+3}, 0xffff0000, v{b+1}", f"v_and_b32 v{b+1}, 0xffff0000, v{b}", f"v_lshlrev_b32 v{b}, 16, v{b}")
            for e in range(4): f.e(f"v_add_f32 v{T+e}, v{b+e}, v{r+1}")
            def rnd():
                f.e(f"v_cvt_pk_bf16_f32 v{T+4}, v{T}, v{T+1}", f"v_cvt_pk_bf16_f32 v{T+5}, v{T+2}, v{T+3}",
                    f"v_lshlrev_b32 v{T}, 16, v{T+4}", f"v_and_b32 v{T+1}, 0xffff0000, v{T+4}", f"v_lshlrev_b32 v{T+2}, 16, v{T+5}", f"v_and_b32 v{T+3}, 0xffff0000, v{T+5}")
            rnd()
            for e in range(4): f.e(f"v_mul_f32 v{T+e}, v{T+e}, v{r}")
            rnd()
            for e in range(4): f.e(f"v_mul_f32 v{T+e}, v{T+e}, v{D+e}")
            rnd()
            for e in range(4): f.e(f"v_add_f32 v{b+e}, v{b+e}, v{T+e}")
        return groups(f)

    def phase2(self, q):
        c = self.c
        NR = c.nring; ak = c.akept; NT = c.ntail; LEAD = c.lead
        assert ak % 2 == 0 and ak <= 8 and NR >= LEAD + NT - 1 and NR <= 10
        wl, sl, rl, ll, B = self.left
        ssm_last = self.ssm_last
        for g in sl + rl: q.e(*g)
        f, st2 = self.ffn_epi(ACC_F2, vHF2)
        q.extend(merge(f, [[self.fa]] + ll + wl[:c.left_pre], start=0))
        wl = wl[c.left_pre:]
        k = c.b_mid
        q.e(st2[0])
        if any(x.kind == "label" for x in B[0]):
            q.e(st2[1]); st2 = st2[1:]; q.e(*B.pop(0))
        f = Seq()
        for g in B[:k]: f.e(*g)
        q.extend(merge(f, [[x] for x in st2[1:]], end=min(len(f), 40)))
        B = B[k:] + [self.hst]
        if len(B) == 1: q.e(*B.pop())
        self.stamp(q)
        q.extend(self.check("fa", [self.fa], self.tags([vFP], 0xff)))
        self.stamp(q)
        ACC = (96, 160)
        steps = [(0, j) for j in range(8)] + [(1, j) for j in range(ak)] + [(0, j) for j in range(8, 22)] + [(1, j) for j in range(ak, 22)]
        firstB = 8 + ak; sent_done = firstB + 13
        ld = {}
        def issue(n):
            ps, j = steps[n]
            a = 176 + 8 * (n % NR)
            blk = (sB0, sB1)[ps]
            g = []
            if j % 2 == 0:
                if j < 14:
                    pc = (0, 1, 2, 5)[j // 4]
                    if j % 4 == 2 and steps[n-1] == (ps, j - 1): g.append(I(f"s_xor_b32 s{sKW}, s{sKW}, 4096"))
                    else:
                        g.append(I(f"s_add_u32 s{sKW}, s{blk}, s{UO[pc]}"))
                        if j % 4: g.append(I(f"s_xor_b32 s{sKW}, s{sKW}, 4096"))
                elif j == 14: g.append(I(f"s_add_u32 s{sKW}, s{blk}, s{sHS}"))
                elif j == 18: g += [I(f"s_xor_b32 s{sKW}, s{sHS}, 8192"), I(f"s_add_u32 s{sKW}, s{sKW}, s{blk}")]
                else: g.append(I(f"s_xor_b32 s{sKW}, s{sKW}, 4096"))
            o = 2048 * (j % 2)
            ld[n, 0] = I(f"buffer_load_dwordx4 {ar(a)}, v33, {srd(R_SY)}, s{sKW} offen offset:{o} sc1", "vm")
            ld[n, 1] = I(f"buffer_load_dwordx4 {ar(a+4)}, v33, {srd(R_SY)}, s{sKW} offen offset:{o+1024} sc1", "vm")
            return [g + [ld[n, 0]], [ld[n, 1]]]
        order = []
        n = 0
        while n < 44:
            if n in (sent_done + 1 - NT, 44 - NT):
                for k in range(4): order += [(m, k) for m in range(n, n + NT)]
                n += NT
            else:
                order += [(n, k) for k in range(4)]; n += 1
        pos = {e: i for i, e in enumerate(order)}
        L0 = c.lead0
        f = Seq()
        for g in B[:-1]: f.e(*g)
        q.extend(merge(f, [g for n in range(L0) for g in issue(n)]))
        if B: q.e(*B[-1])
        if c.flagB_at < 0: q.extend(self.flag_store(1, ssm_last))
        fs = I(f"buffer_load_dword v{vFP}, v36, {srd(R_SY)}, 0 offen offset:128 sc1", "vm")
        st = Seq(); self.stamp(st)
        gate = 4 * firstB - c.gate_lead
        L = []
        for n in range(L0, 44):
            nb = max(4 * (n - LEAD), 0)
            nb = min(nb, max(4 * (n - c.lead2), c.fast_from))
            if n >= NR: nb = max(nb, max(pos[n - NR, k] for k in range(4)))
            if n >= firstB: nb = max(nb, gate)
            if firstB < n < firstB + c.burst:
                assert nb <= gate
                L[-1] += [x for g in issue(n) for x in g]; continue
            L.append(("nb", nb))
            if n == firstB: L.append(self.check("fs", [fs], self.tags([vFP], 0xffff)) + list(st) + [x for g in issue(n) for x in g])
            else: L += issue(n)
        sL = Stream(L, every=2)
        P = ([("nb", c.flagB_at)] + [self.flag_store(1, ssm_last)] if c.flagB_at >= 0 else []) + [("nb", gate - c.fs_lead), [fs]]
        sP = Stream(P, dl=gate - 1)
        Wc = self.w2_reads(2) + [("nb", c.flagB_at + 1)] + wl + self.w2_reads(5) + [("nb", c.rc_at)]
        Wc += self.w2_reads(3) + self.w2_reads(4)
        d_c = 4 * (firstB + 3)
        sWc = Stream(Wc, start=1, dl=d_c, every=c.wc_every)
        sB = Stream(self.base_left)
        XV = 64; TB = 80
        s = Seq()
        if c.xbf:
            for k in range(3): s.e(f"v_mov_b32 v{XV+4*k+3}, s{sTAG}")
        else:
            s.e(f"v_mov_b32 v{TB}, s{sTAG}")
            for k in range(1, 4): s.e(f"v_lshrrev_b32 v{TB+k}, {8*k}, v{TB}")
        s.e(f"s_movk_i32 s{sT2}, 0xff")
        R0 = [("nb", d_c + 6)] + groups(s)
        def tile(k): return (k & 1, k >> 1)
        def red_write(ps, lastn):
            out = []
            for k in range(4):
                nu, mu = tile(k)
                out.append(("nb", pos[lastn, k] + 2))
                for g4 in range(4):
                    out.append([I(f"ds_write_b128 v{vRW+g4}, {vr(ACC[ps] + 32*nu + 16*mu + 4*g4)} offset:{128*nu + 8192*mu}", "ds")])
            return out
        def red_read(s, dst):
            return [s.e(f"ds_read_b128 {vr(dst + 16*ii + 4*src)}, v{vRR} offset:{1024*ii + 16384*src}") for ii in range(4) for src in range(4)]
        s = Seq()
        s.wds_all(); s.e("s_barrier")
        R = red_read(s, 96)
        for g4 in range(4): s.e(f"v_subrev_u32 v{vRW+g4}, {L_SP}, v{vRW+g4}")
        Ga = groups(s); s = Seq()
        NS = 3 if c.xbf else 4
        if c.red_bare:
            for ii in range(4):
                s.wds(R[4 * ii + 3])
                s0 = 96 + 16 * ii; d = XV + 4 * ii
                for e in range(2):
                    s.e(f"v_pk_add_f32 {vr(s0+2*e,2)}, {vr(s0+2*e,2)}, {vr(s0+4+2*e,2)}", f"v_pk_add_f32 {vr(s0+8+2*e,2)}, {vr(s0+8+2*e,2)}, {vr(s0+12+2*e,2)}")
                for e in range(2): s.e(f"v_pk_add_f32 {vr(s0+2*e,2)}, {vr(s0+2*e,2)}, {vr(s0+8+2*e,2)}")
                if c.xbf:
                    for e in range(2):
                        k = 2 * ii + e
                        s.e(f"v_cvt_pk_bf16_f32 v{XV + (k // 3) * 4 + k % 3}, v{s0+2*e}, v{s0+2*e+1}")
                    if ii: s.e(f"buffer_store_dwordx4 {vr(XV+4*(ii-1))}, v{vXS}, {srd(R_SY)}, 0 offen offset:{1024*(ii-1)} sc1")
                else:
                    for e in range(4): s.e(f"v_bfi_b32 v{d+e}, s{sT2}, v{TB+e}, v{s0+e}")
                    s.e(f"buffer_store_dwordx4 {vr(d)}, v{vXS}, {srd(R_SY)}, 0 offen offset:{1024*ii} sc1")
            s.e(f"v_subrev_u32 v{vRR}, {L_SP}, v{vRR}")
            Gb = []
        else:
            for ii in range(4):
                s.wds(R[4 * ii + 3])
                for e in range(4):
                    d = XV + 4 * ii + e; s0 = 96 + 16 * ii + e
                    s.e(f"v_add_f32 v{s0}, v{s0}, v{s0+4}", f"v_add_f32 v{d}, v{s0+8}, v{s0+12}", f"v_add_f32 v{d}, v{d}, v{s0}",
                        f"v_bfi_b32 v{d}, s{sT2}, v{TB+e}, v{d}")
            s.e(f"v_subrev_u32 v{vRR}, {L_SP}, v{vRR}")
            Gb = groups(s)
            s = Seq()
            for k in range(4): s.e(f"buffer_store_dwordx4 {vr(XV+4*k)}, v{vXS}, {srd(R_SY)}, 0 offen offset:{1024*k} sc1")
        self.stamp(s)
        e0 = 4 * (sent_done + 1)
        XR = 40
        xl = [I(f"buffer_load_dwordx4 {vr(XR+4*k)}, v{vXR}, {srd(R_SY)}, 0 offen offset:{1024*k} sc1", "vm") for k in range(NS)]
        sR = Stream(R0 + red_write(0, sent_done) + [("nb", e0 + c.bar_lag)] + Ga + [("nb", e0 + c.bar_lag + c.add_lag)] + Gb + [("nb", 4 * c.send_at)] + [list(s)]
                    + red_write(1, 43), wev=c.wev)
        sX = Stream([[x] for x in xl], start=c.xl_at, every=2)
        q.wds(self.w2_rd[1])
        emitted = set(id(x) for x in q)
        for gi, (n, k) in enumerate(order):
            ps, j = steps[n]; nu, mu = tile(k)
            a = 176 + 8 * (n % NR); d = ACC[ps] + 32 * nu + 16 * mu
            while not any(ld[n, mu] is x for x in q[-400:]):
                g = sL.it.pop(0)
                if not isinstance(g, tuple): q.e(*g)
            q.wvm(ld[n, mu])
            if n == firstB: q.wds(self.w2_rd[2])
            if n == firstB + 4: q.wds(self.w2_rd[5])
            if n == firstB + 6: q.wds(self.w2_rd[4])
            if k == 0 and n in c.p2stamps: self.stamp(q)
            q.e(f"v_mfma_f32_32x32x16_bf16 {vr(d,16)}, {ar(8*j+4*nu)}, {ar(a+4*mu)}, {'0' if j == 0 else vr(d,16)}")
            sL.every = 1.5 if c.fast_from <= gi < c.fast_to else 2
            fill_gap(q, gi, 0.5, c.cap4 if gi >= e0 else c.cap3, [sP, sL, sWc, sR, sX, sB])
        self.stamp(q)
        flush(q, [sR, sX, sB])
        pre = [f"s_mov_b32 s{sT0}, 0x0c0c0400", f"s_mov_b32 s{sT1}, 0x05040100"]
        for k in range(4):
            r = XR + 4 * k
            pre += [f"v_perm_b32 v60, v{r+1}, v{r}, s{sT0}", f"v_perm_b32 v61, v{r+3}, v{r+2}, s{sT0}", f"v_perm_b32 v{56+k}, v61, v60, s{sT1}"]
        def recv():
            if c.xbf:
                q.extend(self.check("xc", xl, self.tags([XR + 4 * k + 3 for k in range(3)])))
                self.stamp(q)
                for k in range(8):
                    r = XR + (k // 3) * 4 + k % 3
                    q.e(f"v_lshlrev_b32 v{64+2*k}, 16, v{r}", f"v_and_b32 v{65+2*k}, 0xffff0000, v{r}")
                for e in range(8): q.e(f"v_pk_add_f32 {vr(BASE+2*e,2)}, {vr(BASE+2*e,2)}, {vr(64+2*e,2)}")
                return
            q.extend(self.check("xc", xl, pre + self.tags([56 + k for k in range(4)])))
            self.stamp(q)
            for e in range(16): q.e(f"v_and_b32 v{XR+e}, 0xffffff00, v{XR+e}")
            for e in range(8): q.e(f"v_pk_add_f32 {vr(BASE+2*e,2)}, {vr(BASE+2*e,2)}, {vr(XR+2*e,2)}")
        if c.recv_early: recv()
        q.wds_all(); q.e("s_barrier")
        R = red_read(q, 96)
        if not c.recv_early: recv()
        for ii in range(4):
            s0 = 96 + 16 * ii
            q.wds(R[4 * ii + 1])
            for e in range(2): q.e(f"v_pk_add_f32 {vr(s0+2*e,2)}, {vr(s0+2*e,2)}, {vr(BASE+4*ii+2*e,2)}")
            for e in range(2): q.e(f"v_pk_add_f32 {vr(s0+2*e,2)}, {vr(s0+2*e,2)}, {vr(s0+4+2*e,2)}")
            q.wds(R[4 * ii + 3])
            for e in range(2): q.e(f"v_pk_add_f32 {vr(s0+8+2*e,2)}, {vr(s0+8+2*e,2)}, {vr(s0+12+2*e,2)}")
            q.e(f"s_movk_i32 s{sT0}, {8192*ii}")
            for e in range(2): q.e(f"v_pk_add_f32 {vr(s0+2*e,2)}, {vr(s0+2*e,2)}, {vr(s0+8+2*e,2)}")
            q.e(f"buffer_store_dwordx4 {vr(s0)}, v19, {srd(R_OUT)}, s{sT0} offen {c.ost}")
        q.e(f"s_lshl_b32 s{sT0}, s{sG}, 2", f"s_or_b32 s{sT0}, s{sT0}, s{sW}", f"s_lshl_b32 s{sT0}, s{sT0}, 4", f"s_or_b32 s{sT0}, s{sT0}, s{sC}",
            f"s_cmp_eq_u32 s{sT0}, 15", "s_cbranch_scc0 L_nobump", "v_mov_b32 v57, 0", "s_mov_b64 exec, 1")
        q.e(f"buffer_store_dword v251, v57, {srd(R_SY)}, 0 offen sc1")
        q.e("s_mov_b64 exec, -1")
        q.label("L_nobump")

    def write_ts(self, q):
        if not self.c.ts: return
        q.wds_all(); q.wvm_all()
        q.e("s_memtime s[46:47]", "s_memrealtime s[92:93]"); q.wds_all()
        q.e(f"s_lshl_b32 s{sT0}, s2, 2", f"s_add_u32 s{sT0}, s{sT0}, s{sW}", f"s_lshl_b32 s{sT0}, s{sT0}, 6", f"s_add_u32 s{sT0}, s{sT0}, {WS_TS}", "v_mov_b32 v2, 0")
        q.e("s_mov_b64 exec, 1")
        def put(k): q.e(f"buffer_store_dword v3, v2, {srd(R_SY)}, s{sT0} offen offset:{4*k}")
        for k in range(self.nts + 2):
            if k == 0: q.e("v_mov_b32 v3, v255")
            elif k == self.nts + 1: q.e("s_sub_u32 s46, s46, s42", "v_mov_b32 v3, s46")
            else:
                r = TSREG[k - 1]; q.e(f"s_sub_u32 s{r}, s{r}, s42", f"v_mov_b32 v3, s{r}")
            put(k)
        q.e("v_mov_b32 v3, s92"); put(15)
        q.wvm_all()

    def add_prof(self, q):
        lo, step = self.c.prof
        out = Seq(); unsafe = False; started = False; acc = 0; n = 0; idx = 0; nm = 0
        NP = len(TSREG)
        self.prof_pts = []
        for ins in q:
            t = ins.t
            if started and not unsafe and n < 64 and idx >= lo and acc >= step and ins.kind not in WAITK and not t.startswith(("s_cbranch", "s_branch", "s_cselect", "s_addc")) and ins.kind != "label":
                r = TSREG[n % NP]
                if n >= NP: out.e(f"v_writelane_b32 v0, s{r}, {n - NP}")
                out.e(f"s_memtime s[{r}:{r+1}]"); self.prof_pts.append((idx, nm, t[:50])); n += 1; acc = 0
            out.append(ins)
            if t == "s_barrier": started = True
            if started and ins.kind != "label":
                idx += 1; acc += 1
                if t.startswith("v_mfma"): nm += 1
            if t.startswith("s_cbranch"): unsafe = started
            if ins.kind == "label" and (t.endswith("_ok:") or t.startswith("L_nobump")): unsafe = False
        out.wds_all()
        for k in range(max(0, n - NP), n): out.e(f"v_writelane_b32 v0, s{TSREG[k % NP]}, {k}")
        out.e(f"s_lshl_b32 s{sT0}, s2, 2", f"s_add_u32 s{sT0}, s{sT0}, s{sW}", f"s_lshl_b32 s{sT0}, s{sT0}, 8", f"s_add_u32 s{sT0}, s{sT0}, {WS_TS + 65536}",
              "v_subrev_u32 v0, s42, v0", f"v_lshlrev_b32 v2, 2, v{vL}")
        out.e(f"buffer_store_dword v0, v2, {srd(R_SY)}, s{sT0} offen")
        return out

    def build(self):
        q = Seq()
        q.label("L_start")
        last = self.prologue(q)
        self.phase1(q, last)
        self.phase2(q)
        if self.c.prof: q = self.add_prof(q)
        self.write_ts(q)
        if self.c.spin_to:
            q.e("s_waitcnt lgkmcnt(0)")
            if self.c.spin_x >= 0: q.e("s_and_b32 s46, s2, 7", f"s_cmp_eq_u32 s46, {self.c.spin_x}", "s_cbranch_scc0 L_end")
            if self.c.probe: q.e("s_sub_u32 s68, s68, s42", f"s_add_u32 s68, s68, {self.c.spin_to}")
            else: q.e(f"s_mov_b32 s68, {self.c.spin_to}")
            q.label("L_spin")
            q.e("s_memrealtime s[46:47]", "s_waitcnt lgkmcnt(0)", "s_sub_u32 s46, s46, s42", "s_cmp_lt_u32 s46, s68", "s_cbranch_scc1 L_spin")
        q.label("L_end")
        q.e("s_endpgm")
        q.extend(self.ool)
        q.label("L_fin")
        return finalize(q)

HDR = """; @launch grid=(256,1,1) block=(256,1,1) lds=163840
.amdgcn_target "amdgcn-amd-amdhsa--gfx950"
.text
.globl {n}_kernel
.p2align 8
.type {n}_kernel,@function
{n}_kernel:
"""
TAIL = """
.section .rodata,"a"
.p2align 6
.amdhsa_kernel {n}_kernel
  .amdhsa_next_free_vgpr 512
  .amdhsa_next_free_sgpr 102
  .amdhsa_accum_offset 256
  .amdhsa_group_segment_fixed_size 0
  .amdhsa_kernarg_size 120
  .amdhsa_user_sgpr_count 2
  .amdhsa_user_sgpr_kernarg_segment_ptr 1
  .amdhsa_system_sgpr_workgroup_id_x 1
.end_amdhsa_kernel
"""
def generate(cfg):
    g = Gen(cfg)
    body = g.build()
    return HDR.format(n=NAME) + "\n".join(("" if l.endswith(":") else "    ") + l for l in body) + TAIL.format(n=NAME), g

if __name__ == "__main__":
    cfg = Cfg()
    for a in sys.argv[2:]:
        k, v = a.split("=", 1); assert hasattr(cfg, k), k; setattr(cfg, k, eval(v))
    txt, g = generate(cfg)
    open(sys.argv[1], "w").write(txt)
```

```python
import sys, struct
from asmlib import *

NAME = "parallel_sum__ssm_conv_s5__dense_activation_relu__prompt"
def f2u(x): return struct.unpack("<I", struct.pack("<f", x))[0]
def fh(x): return hex(f2u(x))

WS_CS   = 262144
WS_FLAG = 524288
WS_STAT = 786432
WS_AGG  = 1 << 20
WS_XCH  = 2 << 20
WS_TS   = (7 << 20) + (1 << 19)
WS_H    = 8 << 20
HBLK = 88 * 2048
WS_END = WS_H + 64 * HBLK
TAGK = 0x9E3779B9
OOB = 0x40000000

sCO, sW, sWM, sWN, sC, sG, sGL, sU0, sORD, sXB, sT0, sT1, sT2 = 3, 4, 5, 6, 7, 8, 9, 10, 11, 12, 13, 14, 15
P_X, P_LRE, P_LIM, P_BRE, P_BIM, P_CRE, P_CIM, P_LDT = 16, 18, 20, 22, 24, 26, 28, 30
P_DSK, P_W1, P_W2, P_OUT, P_WS = 32, 36, 38, 40, 44
sU1, sK4 = 34, 35
sM = 46
R_X, R_BS, R_W1A, R_W1B, R_W2, R_CRE, R_CIM, R_OUT, R_SY = 48, 52, 56, 60, 72, 76, 80, 84, 88
R_AG = R_BS
sB0, sB1, sHS, sNV = 64, 65, 66, 67
sUO = 32
UO = {0: 32, 1: 33, 2: 100, 5: 101}
sKX, sKW, sLB, sONES, sTAG, sPOLL, sLE, sW2O = 92, 93, 94, 95, 96, 97, 98, 99
TSREG = [16, 18, 20, 22, 24, 26, 28, 30, 36, 38, 40, 68]
def srd(r): return f"s[{r}:{r+3}]"

vL = 1
BASE = 2
ACC_S, ACC_F1, ACC_F2 = 64, 96, 128
FR = 160
RA, RS, RF = 176, 180, 184
vX, vB, vW = 200, 204, 206
vSTS, vCSS, vGS, vGC, vPF, vAGS, vHF1, vHF2, vGR = 208, 209, 210, 211, 214, 215, 216, 217, 218
CS = 220
vW2, vC2, vTR, vCR, vTA, vLBK, vFP, vHS, vFL, vXS, vXR, vRW, vRR, vTW, vTD = 224, 228, 232, 233, 234, 238, 239, 242, 243, 244, 245, 246, 250, 252, 254
def vr(a, n=4): return f"v[{a}:{a+n-1}]"
def ar(a, n=4): return f"a[{a}:{a+n-1}]"

LBR = 96
SLOT = 32768; WBLK = 8192
L_SP = 98304; SPW = 16384
L_CS = 0

class Cfg:
    ts = False; ts_stages = (); ts_max = 12; ts_min = 0; prof = None; p2stamps = ()
    order = "xa"
    pf_from = 2; pf_n = 28; pf_step = 12
    early_from = 1; early_n = 2; early_last = 6
    cap1 = 5.5; cap2 = 5.5; cap3 = 5
    stat_at = 2; gather_at = 86; check_at = 108
    w2_first = 8; w2_at2 = 24; w2_n2 = 12; w2_at3 = 64; fa_late = False; lb_at = 50; lb_grp = 2; left_pre = 0; g9_pre = 4; r0_at = 10; b_at = 64; b_mid = 60; lb_every = 1; rc_at = 40
    akept = 6; nring = 10; lead = 6; ntail = 4
    lead0 = 4; flagB_at = 15; fs_lead = 4; gate_lead = 20; wc_every = 2; burst = 1
    bar_lag = 7; send_at = 0; xl_at = 177; wev = 1
    poll_sleep = 1
    probe = 0
    x_e1 = False
    x_at = 106; x_every = 2; l2c_only = False
    hs = 'sc1'; prest = {}
    lead2 = 10; fast_from = 96; fast_to = 140; recv_early = False; red_bare = True; xbf = False
    s_first = False
    boot = 0; boot_late = True; boot_bar = True
    spin_x = -1
    add_lag = 4; cap4 = 8
    l2pf_at = 99; pt_at = 2
    hrot = True
    nt_upto = 0; nt_srd = (48, 52, 56, 60)
    strow_at = -2
    spin_to = 0
    ost = 'nt'

def mk_srd(q, r, p, size):
    q.e(f"s_mov_b32 s{r}, s{p}", f"s_and_b32 s{r+1}, s{p+1}, 0xffff", f"s_mov_b32 s{r+2}, {size}", f"s_mov_b32 s{r+3}, 0x20000")

WAITK = ("wvm", "wds", "wvm0", "wds0")
def groups(seq):
    G = []; cur = []
    for ins in seq:
        cur.append(ins)
        if ins.kind not in WAITK and not ins.t.startswith(("v_cmp", "s_cmp")):
            G.append(cur); cur = []
    if cur: G.append(cur)
    return G
def cost(g):
    c = 0
    for i in g:
        if i.kind == "label": continue
        if i.kind in WAITK: c += 0.5
        elif i.t.startswith(TRANS): c += 2
        elif i.t.startswith("ds_write_b128"): c += 3
        else: c += 1
    return c

class Stream:
    def __init__(self, items, start=0, dl=None, every=1, wev=1):
        self.it = list(items); self.nb = start; self.dl = dl; self.every = every; self.wev = wev
    def ready(self, gap):
        while self.it and isinstance(self.it[0], tuple):
            self.nb = max(self.nb, self.it.pop(0)[1])
        return bool(self.it) and gap >= self.nb
    def pop(self, gap):
        g = self.it.pop(0)
        if self.every > 1 and any(i.kind == "vm" for i in g): self.nb = gap + int(self.every)
        if any(i.t.startswith("ds_write_b128") for i in g): self.nb = gap + self.wev
        return g
    def rest(self):
        r = [g for g in self.it if not isinstance(g, tuple)]; self.it = []; return r

def fill_gap(q, gap, used, cap, streams):
    for s in streams:
        if s.dl is not None and gap >= s.dl:
            for g in s.rest(): q.e(*g); used += cost(g)
    for s in streams:
        while s.ready(gap) and (used + cost(s.it[0]) <= cap or (used <= cap - 2 and cost(s.it[0]) > 3)):
            g = s.pop(gap); q.e(*g); used += cost(g)
def flush(q, streams):
    for s in streams:
        for g in s.rest(): q.e(*g)

def pack_order(o): return sum(v << (4 * k) for k, v in enumerate(o))
def hyb(xa):
    first = [0, (1 + 2 * xa), (2 + 2 * xa) & 7 or 1]
    rest = [v for v in [(3 + 2 * xa + k) & 7 for k in range(8)] if v not in first]
    return first + rest
ORDERS = {"xa": [[(i + 2 * xa) & 7 for i in range(8)] for xa in range(4)],
          "none": [list(range(8))] * 4,
          "two": [[(i + 4 * (xa & 1)) & 7 for i in range(8)] for xa in range(4)],
          "hyb": [hyb(xa) for xa in range(4)]}

class Gen:
    def __init__(self, cfg):
        self.c = cfg; self.nts = 0; self.nreq = 0; self.w2_last = {}; self.w2_rd = {}; self.ool = Seq()
    def stamp(self, q):
        self.nreq += 1
        if self.c.probe == self.nreq: q.e("s_memrealtime s[68:69]")
        if self.c.ts and self.nts < self.c.ts_max and self.nreq > self.c.ts_min:
            r = TSREG[self.nts]
            q.e(f"s_memtime s[{r}:{r+1}]"); self.nts += 1

    def stage_dma(self, i):
        base = (i % 3) * SLOT
        def ld(v, r, so, off):
            fl = " nt" if (i < self.c.nt_upto and r in self.c.nt_srd) else ""
            return I(f"buffer_load_dwordx4 v{v}, {srd(r)}, s{so} offen offset:{off}{fl} lds", "vm")
        def m0(o): return I(f"s_add_u32 m0, s{sLB}, {base + o}")
        def st(k): return I(f"s_bfe_u32 s{sKW}, s{sORD}, {(3 << 16) | (4 * k)}")
        mul = lambda: I(f"s_mul_i32 s{sKW}, s{sKW}, {64*3584}")
        G = []
        if i < 8:
            G.append([m0(0), st(i), I(f"s_lshl_b32 s{sKX}, s{sKW}, 7"), ld(vX, R_X, sKX, 0)])
            for j in range(1, 4): G.append([ld(vX + j, R_X, sKX, 1024 * j)])
            G.append([m0(4096), mul(), ld(vB, R_BS, sKX, 0)]); G.append([ld(vB + 1, R_BS, sKX, 1024)])
            G.append([m0(6144), ld(vW, R_W1A, sKW, 0)]); G.append([ld(vW + 1, R_W1A, sKW, 1024)])
        else:
            for t in range(4):
                G.append([m0(2048 * t), st(4 * (i - 8) + t), mul(), ld(vW, R_W1B, sKW, 0)])
                G.append([ld(vW + 1, R_W1B, sKW, 1024)])
        return G, G[-1][-1]

    def fb(self, n): return ACC_F2 + 8 * (n & 3) if n < 32 else FR - 4 + 4 * (n & 3)
    def frag_reads(self, n):
        b = self.fb(n)
        if n < 32:
            i, p = divmod(n, 4); slot = i % 3
            hi = 12 if slot == 2 else 0; o = SLOT if slot == 1 else 0
            S = I(f"ds_read_b128 {vr(b)}, v{RS+hi+p} offset:{o}", "ds")
            A0 = I(f"ds_read_b128 {ar(8*n)}, v{RA+hi+p} offset:{o}", "ds")
            A1 = I(f"ds_read_b128 {ar(8*n+4)}, v{RA+hi+p} offset:{o+WBLK}", "ds")
            F = [I(f"ds_read_b64_tr_b16 {vr(b+4+2*k, 2)}, v{RF+hi+p} offset:{o + 6144 + k*512}", "ds") for k in range(2)]
            return [S, A0, A1] + F
        if n >= 64: return []
        i, p = divmod(n - 32, 4)
        hi = 12 if i < 4 else 0
        return [I(f"ds_read_b64_tr_b16 {vr(b+4+2*k, 2)}, v{RF+hi+p} offset:{2048*(i&3) + k*512}", "ds") for k in range(2)]

    def prologue(self, q):
        c = self.c
        q.e("s_cmp_ge_u32 s2, 256", "s_cbranch_scc1 L_end")
        q.e("s_load_dwordx16 s[16:31], s[0:1], 0", "s_load_dwordx4 s[36:39], s[0:1], 80", "s_load_dwordx2 s[44:45], s[0:1], 112",
            "s_load_dwordx2 s[32:33], s[0:1], 64", "s_load_dwordx2 s[40:41], s[0:1], 96")
        q.e("s_getpc_b64 s[64:65]", "L_pc:", "s_and_b32 s3, s2, 0xf8", "s_lshl_b32 s3, s3, 7", "v_lshlrev_b32 v9, 2, v0", "v_add_u32 v9, s3, v9",
            "v_min_u32 v9, L_fin-L_pc-4, v9")
        q.e("global_load_dword v10, v9, s[64:65]")
        if c.ts: q.e("s_memtime s[42:43]", "s_memrealtime s[46:47]")
        if c.spin_to: q.e("s_memrealtime s[42:43]")
        q.e(f"v_and_b32 v{vL}, 63, v0", "v_lshrrev_b32 v2, 6, v0", f"v_readfirstlane_b32 s{sW}, v2")
        O = [pack_order(o) for o in ORDERS[c.order]]
        q.e("s_bitcmp1_b32 s2, 1", f"s_mov_b32 s{sT0}, {O[0]:#x}", f"s_cmov_b32 s{sT0}, {O[1]:#x}", f"s_mov_b32 s{sORD}, {O[2]:#x}", f"s_cmov_b32 s{sORD}, {O[3]:#x}",
            "s_bitcmp0_b32 s2, 2", f"s_cmov_b32 s{sORD}, s{sT0}")
        q.e(f"s_and_b32 s{sXB}, s2, 1", f"s_and_b32 s{sT0}, s2, 6", f"s_lshr_b32 s{sT2}, s2, 6",
            f"s_lshl1_add_u32 s{sC}, s{sT0}, s{sT2}", f"s_bfe_u32 s{sGL}, s2, 0x30003", f"s_lshl3_add_u32 s{sG}, s{sXB}, s{sGL}")
        q.e(f"s_and_b32 s{sT2}, s{sT2}, 1", f"s_lshl1_add_u32 s{sT0}, s{sGL}, s{sT2}", f"s_add_u32 s{sT1}, s{sGL}, 6",
            f"s_cmp_lt_u32 s{sGL}, 6", f"s_cselect_b32 s{sU0}, s{sT0}, s{sT1}", f"s_cselect_b32 s{R_W1B+2}, {512*3584}, 0", f"s_xor_b32 s{sU1}, s{sU0}, 1",
            f"s_lshr_b32 s{sWM}, s{sW}, 1", f"s_and_b32 s{sWN}, s{sW}, 1", f"s_lshl_b32 s{sLB}, s{sW}, 13")
        q.e(f"v_lshrrev_b32 v2, 3, v{vL}", f"v_and_b32 v3, 7, v{vL}", f"v_lshrrev_b32 v4, 4, v{vL}")
        q.e("v_xor_b32 v5, v3, v4", "v_lshlrev_b32 v5, 4, v5")
        q.e(f"v_lshrrev_b32 v7, 5, v{vL}", "v_and_b32 v8, 3, v2", "v_lshl_add_u32 v7, v7, 4, v8",
            f"s_lshl2_add_u32 s{sT0}, s{sC}, s{sW}", f"s_lshl_b32 s{sT0}, s{sT0}, 5",
            f"v_add_u32 v7, s{sT0}, v7", f"v_lshl_add_u32 v{vX}, v7, 10, v5",
            f"v_xor_b32 v{vX+1}, 64, v{vX}", f"v_add_u32 v{vX+1}, {3072}, v{vX+1}",
            f"v_add_u32 v{vX+2}, {6144}, v{vX}", f"v_add_u32 v{vX+3}, {6144}, v{vX+1}")
        q.e(f"s_lshl1_add_u32 s{sK4}, s{sG}, s{sWN}", f"s_lshl_b32 s{sK4}, s{sK4}, 4",
            f"v_add_u32 v7, s{sK4}, v2", f"v_lshl_add_u32 v{vB}, v7, 10, v5",
            f"v_xor_b32 v{vB+1}, 64, v{vB}", f"v_add_u32 v{vB+1}, {7168}, v{vB+1}")
        q.e(f"s_lshl_b32 s{sT0}, s{sW}, 4", f"v_add_u32 v7, s{sT0}, v2", "v_mul_u32_u24 v7, 3584, v7",
            "v_and_b32 v8, 1, v4", "v_lshlrev_b32 v8, 2, v8", "v_xor_b32 v8, v8, v3", f"v_lshl_add_u32 v{vW}, v8, 4, v7",
            f"v_add_u32 v{vW+1}, {8*3584-1024}, v{vW}",
            f"s_mul_i32 s{sT0}, s{sXB}, 14", f"s_add_u32 s{sT1}, s{sT0}, s{sU1}", f"s_add_u32 s{sT0}, s{sT0}, s{sU0}",
            f"s_lshl_b32 s{R_W1A}, s{sT0}, 7", f"s_lshl_b32 s{R_W1B}, s{sT1}, 7",
            f"s_sub_u32 s{R_W1A+2}, {512*3584}, s{R_W1A}", f"s_max_u32 s{R_W1B+2}, s{R_W1B+2}, s{R_W1B}", f"s_sub_u32 s{R_W1B+2}, s{R_W1B+2}, s{R_W1B}")
        for r, size in ((R_X, 2048*1024), (R_BS, 512*1024)): q.e(f"s_mov_b32 s{r+2}, {size}")
        for r in (R_X, R_BS, R_W1A, R_W1B): q.e(f"s_mov_b32 s{r+3}, 0x20000")
        q.e(f"v_lshl_add_u32 v{vC2}, v2, 10, v5", "v_lshlrev_b32 v7, 10, v2", f"v_lshl_add_u32 v{vW2}, v8, 4, v7")
        q.e(f"v_lshlrev_b32 v33, 4, v{vL}", f"v_and_b32 v6, 15, v{vL}", f"v_add_lshl_u32 v11, v6, s{sK4}, 1", "v_mov_b32 v15, 0")
        q.e(f"s_lshl1_add_u32 s{sT2}, s{sC}, s{sWM}", f"s_lshl4_add_u32 s{sT2}, s{sT2}, s{sG}", f"s_lshl1_add_u32 s{sT2}, s{sT2}, s{sWN}",
            f"s_lshl_b32 s{sPOLL}, s{sT2}, 11")
        G0, l0 = self.stage_dma(0)
        q.e(*G0[0][:-1])
        q.wds_all()
        if c.ts: q.e("v_mov_b32 v255, s46")
        if c.boot:
            b = c.boot
            q.e(f"v_lshlrev_b32 v17, 7, v{vL}", f"s_cmp_eq_u32 s{sW}, 2", "s_cbranch_scc1 L_b2")
            q.e(f"s_cmp_eq_u32 s{sW}, 0", f"s_cselect_b64 s[46:47], s[{P_X}:{P_X+1}], s[{P_W1}:{P_W1+1}]", "s_cselect_b32 s70, 64, 56",
                f"s_cmp_eq_u32 s{sW}, 3", f"s_cselect_b64 s[46:47], s[{(P_W2 if b == 1 else P_W1)}:{(P_W2 if b == 1 else P_W1)+1}], s[46:47]",
                "s_lshl_b32 s70, s70, 7", "s_sub_u32 s71, s70, 128", "s_mul_i32 s70, s70, s2", "v_min_u32 v17, s71, v17", "v_add_u32 v17, s70, v17")
            q.append(I("global_load_dword v10, v17, s[46:47]", "o"))
            q.e("s_branch L_b3")
            q.label("L_b2")
            q.e("v_and_b32 v17, 0x780, v17", "s_lshl_b32 s70, s2, 11", "v_add_u32 v17, s70, v17")
            for p in (P_BRE, P_BIM) + ((P_CRE, P_CIM) if b == 1 else ()): q.append(I(f"global_load_dword v10, v17, s[{p}:{p+1}]", "o"))
            q.label("L_b3")
            self.bootq = q; q = self.postq = Seq()
        q.e(f"s_mov_b32 s{R_X}, s{P_X}", f"s_and_b32 s{R_X+1}, s{P_X+1}, 0xffff")
        q.e(G0[0][-1]); [q.e(*g) for g in G0[1:4]]
        q.e(f"s_cmp_eq_u32 s{sWM}, 0", f"s_cselect_b32 s{R_BS}, s{P_BRE}, s{P_BIM}", f"s_cselect_b32 s{R_BS+1}, s{P_BRE+1}, s{P_BIM+1}", f"s_and_b32 s{R_BS+1}, s{R_BS+1}, 0xffff")
        [q.e(*g) for g in G0[4:6]]
        q.e(f"s_and_b32 s{P_W1+1}, s{P_W1+1}, 0xffff", f"s_add_u32 s{R_W1A}, s{P_W1}, s{R_W1A}", f"s_addc_u32 s{R_W1A+1}, s{P_W1+1}, 0")
        [q.e(*g) for g in G0[6:8]]
        q.e(f"s_add_u32 s{R_W1B}, s{P_W1}, s{R_W1B}", f"s_addc_u32 s{R_W1B+1}, s{P_W1+1}, 0")
        last = [l0]
        if c.boot: q = self.bootq
        self.strows = [I(f"buffer_load_dwordx4 {vr(40)}, v33, {srd(R_X)}, s{sPOLL} offen", "vm"), I(f"buffer_load_dwordx4 {vr(44)}, v33, {srd(R_X)}, s{sPOLL} offen offset:1024", "vm")]
        if c.strow_at == -2: q.e(*self.strows)
        self.small0 = q.e(f"global_load_dword v16, v15, s[{P_WS}:{P_WS+1}] sc1")
        q.e(f"global_load_ushort v12, v11, s[{P_LRE}:{P_LRE+1}]", f"global_load_ushort v13, v11, s[{P_LIM}:{P_LIM+1}]")
        self.small = q.e(f"global_load_ushort v14, v11, s[{P_LDT}:{P_LDT+1}]")
        q.e(f"s_lshl_b32 s{sT1}, s{sGL}, 7", f"v_lshl_add_u32 v35, v6, 3, s{sT1}")
        self.dsk = q.e(f"global_load_dwordx2 {vr(38,2)}, v35, s[{P_DSK}:{P_DSK+1}]")
        f = Seq()
        f.e(f"v_and_b32 v2, 31, v{vL}", f"v_lshrrev_b32 v3, 5, v{vL}")
        f.e("v_bfe_u32 v7, v2, 1, 3", "v_xor_b32 v7, v7, v3", "v_lshlrev_b32 v7, 4, v7",
            f"v_lshl_add_u32 v{vCR}, v2, 7, v7",
            f"s_lshl_b32 s{sT1}, s{sWM}, 5", f"v_xor_b32 v7, s{sT1}, v7", f"v_xor_b32 v5, s{sT1}, v{vCR}",
            f"s_lshl_b32 s{sT1}, s{sWM}, 14", f"v_add_u32 v{RA}, s{sT1}, v5")
        f.e("v_lshl_add_u32 v7, v6, 7, v7", "v_and_b32 v8, 16, v2", "v_lshl_add_u32 v7, v8, 10, v7",
            f"s_lshl_b32 s{sT1}, s{sWN}, 13", f"s_add_u32 s{sT1}, s{sT1}, 4096", f"v_add_u32 v{RS}, s{sT1}, v7")
        for p in range(1, 4): f.e(f"v_xor_b32 v{RA+p}, {32*p}, v{RA}", f"v_xor_b32 v{RS+p}, {32*p}, v{RS}")
        f.e("v_lshrrev_b32 v9, 2, v6", "v_lshlrev_b32 v5, 7, v9", "v_and_b32 v7, 3, v6", "v_lshl_add_u32 v5, v7, 3, v5", "v_lshl_add_u32 v5, v8, 1, v5",
            "v_and_b32 v7, 8, v6", "v_lshl_add_u32 v5, v7, 3, v5",
            f"v_lshl_add_u32 v{vTR}, v3, 9, v5",
            "v_lshl_add_u32 v5, v3, 10, v5", f"s_lshl_b32 s{sT1}, s{sWN}, 6", f"s_lshl_b32 s{sT0}, s{sWM}, 13", f"s_or_b32 s{sT1}, s{sT1}, s{sT0}",
            f"v_xor_b32 v{RF}, s{sT1}, v5")
        for p in range(1, 4): f.e(f"v_xor_b32 v{RF+p}, {WBLK*p}, v{RF}")
        f.e(f"s_mov_b32 s{sONES}, 0x3f803f80", f"v_mov_b32 v{CS}, 0", f"v_mov_b32 v{CS+1}, 0")
        for k in range(4): f.e(f"v_mov_b32 v{48+k}, 0")
        for k in range(12): f.e(f"v_add_u32 v{RA+12+k}, {2*SLOT}, v{RA+k}")
        mk_srd(f, R_SY, P_WS, WS_END); mk_srd(f, R_W2, P_W2, 1792*1024); mk_srd(f, R_OUT, P_OUT, 2048*2048)
        f.e(f"s_and_b32 s{P_CRE+1}, s{P_CRE+1}, 0xffff", f"s_and_b32 s{P_CIM+1}, s{P_CIM+1}, 0xffff",
            f"s_bitcmp1_b32 s{sGL}, {0 if c.hrot else 5}", f"s_cselect_b64 s[{R_CRE}:{R_CRE+1}], s[{P_CIM}:{P_CIM+1}], s[{P_CRE}:{P_CRE+1}]",
            f"s_cselect_b64 s[{R_CIM}:{R_CIM+1}], s[{P_CRE}:{P_CRE+1}], s[{P_CIM}:{P_CIM+1}]")
        for r in (R_CRE, R_CIM): f.e(f"s_mov_b32 s{r+2}, {512*1024}", f"s_mov_b32 s{r+3}, 0x20000")
        q.extend(f)
        q.e(f"s_mul_i32 s{sT0}, s2, 56", f"s_mul_i32 s{sT1}, s{sWN}, 28", f"s_add_u32 s{sT0}, s{sT0}, s{sT1}", f"s_lshl_b32 s{sT1}, s2, 4", f"s_min_u32 s{sT1}, s{sT1}, {4096-28}",
            f"s_cmp_eq_u32 s{sWN}, 0", f"s_cselect_b32 s70, s{P_CRE}, s{P_CIM}", f"s_cselect_b32 s71, s{P_CRE+1}, s{P_CIM+1}",
            f"s_cmp_eq_u32 s{sWM}, 0", f"s_cselect_b32 s{sT0}, s{sT0}, s{sT1}",
            f"s_cselect_b32 s70, s{P_W2}, s70", f"s_cselect_b32 s71, s{P_W2+1}, s71",
            f"v_min_u32 v7, {c.pf_n - 1}, v{vL}", f"v_add_lshl_u32 v{vPF}, v7, s{sT0}, 7")
        f = Seq(); self.consts_early(f); self.consts_w2(f)
        G, l = self.stage_dma(1); last.append(l)
        if c.boot:
            q.extend(f)
            if c.boot_late:
                f = Seq(); self.consts_late(f); q.extend(f)
            for kind, at in c.prest.items():
                if at == -1:
                    if kind == "S":
                        q.e(f"s_movk_i32 s{sK4}, 8192")
                        for part in range(2):
                            for mu in range(2): q.e(f"buffer_store_dwordx4 {vr(160)}, v{vHS}, {srd(R_SY)}, {('0', f's{sK4}')[part]} offen offset:{1024*mu} sc1")
                    else:
                        for k in range(4): q.e(f"buffer_store_dwordx4 {vr(160)}, v{vHF1 if kind == 'F1' else vHF2}, {srd(R_SY)}, 0 offen offset:{1024*k} sc1")
            q.wvm_all()
            if c.boot_bar: q.e("s_barrier")
            q.extend(self.postq)
            for g in G: q.e(*g)
        else: q.extend(merge(f, G))
        if c.strow_at == -1: q.e(*self.strows)
        return last

    def consts_early(self, f):
        f.e("v_and_b32 v5, 1, v4", "v_lshl_add_u32 v32, v5, 1, v3")
        f.e(f"s_lshl_b32 s{sT2}, s{sT2}, 5", f"s_add_u32 s{sT2}, s{sT2}, {WS_STAT}", f"v_lshl_add_u32 v7, v3, 4, s{sT2}", f"v_lshl_add_u32 v{vSTS}, v2, 25, v7")
        f.e(f"s_lshl1_add_u32 s{sT0}, s{sC}, s{sXB}", f"s_lshl_b32 s{sT1}, s{sT0}, 13", f"s_add_u32 s{sT1}, s{sT1}, {WS_FLAG}",
            f"s_lshl_b32 s{sT2}, s{sW}, 3", f"s_mul_i32 s{sT0}, s{sWM}, 3", f"s_add_u32 s{sT0}, s{sT0}, s{sWN}", f"s_lshl_b32 s{sT0}, s{sT0}, 2", f"s_sub_u32 s{sT0}, s{sT0}, 8",
            f"v_mov_b32 v7, s{sT2}", f"v_mov_b32 v8, s{sT0}", f"v_cmp_gt_u32 vcc, 8, v{vL}", "v_cndmask_b32 v7, v8, v7, vcc",
            f"v_add_u32 v7, v7, v{vL}", f"v_lshl_add_u32 v7, v7, 8, s{sT1}", "v_lshl_add_u32 v36, v4, 28, v7",
            f"s_lshl2_add_u32 s{sT2}, s{sGL}, s{sW}", f"s_lshl_b32 s{sT2}, s{sT2}, 8", f"s_add_u32 s{sT1}, s{sT1}, s{sT2}",
            f"v_lshl_add_u32 v7, v2, 2, s{sT1}", f"v_lshl_add_u32 v{vFL}, v3, 30, v7", f"v_lshl_add_u32 v{vFP}, v3, 7, v7")
        f.e(f"s_lshl4_add_u32 s{sT0}, s{sC}, s{sG}", f"s_lshl1_add_u32 s{sT0}, s{sT0}, s{sWN}", f"s_lshl_b32 s{sT0}, s{sT0}, 9", f"s_add_u32 s{sT0}, s{sT0}, {WS_CS}",
            f"v_lshl_add_u32 v7, v{vL}, 3, s{sT0}", f"v_xor_b32 v{vGC}, 0x4000, v7", f"s_lshl_b32 s{sT2}, s{sWM}, 30", f"v_add_u32 v{vCSS}, s{sT2}, v7")
        f.e(f"s_lshl_b32 s{sT0}, s{sWN}, 8", f"v_lshl_add_u32 v8, v6, 4, s{sT0}",
            f"s_lshl1_add_u32 s{sNV}, s{sC}, s{sWM}", f"s_sub_u32 s{sT0}, 31, s{sNV}", f"s_lshl_b32 s{sT0}, s{sT0}, 9",
            f"s_lshl_b32 s{sT1}, s{sG}, 14", f"s_add_u32 s{sT1}, s{sT1}, {WS_AGG}", f"s_add_u32 s{sT1}, s{sT1}, s{sT0}",
            f"v_add_u32 v7, s{sT1}, v8", f"v_lshl_add_u32 v{vAGS}, v4, 28, v7",
            f"s_add_u32 s{sT0}, s{sT0}, 512", "v_sub_u32 v7, 3, v4", "v_lshl_add_u32 v7, v7, 12, v8", f"v_add_u32 v{vLBK}, s{sT0}, v7",
            f"s_lshl_b32 s{sNV}, s{sNV}, 4")
        f.e("v_cmp_eq_u32 vcc, 0, v4", f"v_cndmask_b32 v{vFP}, v{vFP}, v{vAGS}, vcc",
            "v_mul_u32_u24 v7, 24, v6", f"v_add3_u32 v7, v7, v{vCSS}, -16", "v_subrev_u32 v7, 240, v7",
            "v_cmp_eq_u32 vcc, 2, v4", f"v_cndmask_b32 v{vFP}, v{vFP}, v7, vcc")

    def consts_w2(self, f):
        f.e(f"s_lshl_b32 s{sHS}, s{sW}, 14", f"s_add_u32 s{sHS}, s{sHS}, {56*2048}")
        f.e(f"s_and_b32 s{sT2}, s{sC}, 1", f"s_lshl2_add_u32 s{sT0}, s{sW}, s{sT2}", f"s_add_u32 s{sT1}, s{sT0}, 2",
            f"s_min_u32 s{sT0}, s{sT0}, 12", f"s_min_u32 s{sT1}, s{sT1}, 13", f"s_lshl_b32 s{UO[0]}, s{sT0}, 13", f"s_lshl_b32 s{UO[1]}, s{sT1}, 13",
            f"s_xor_b32 s{sT2}, s{sT2}, 1", f"s_mul_i32 s{sT0}, s{sWM}, 6", f"s_add_u32 s{sT0}, s{sT0}, s{sT2}",
            f"s_lshl2_add_u32 s{sT1}, s{sWN}, s{sT0}", f"s_lshl_b32 s{UO[2]}, s{sT1}, 13",
            f"s_add_u32 s{sT0}, s{sT0}, 2", f"s_lshl1_add_u32 s{sT0}, s{sT0}, s{sWN}", f"s_lshl_b32 s{UO[5]}, s{sT0}, 12")
        if self.c.hrot:
            f.e(f"s_and_b32 s{sT0}, s{sGL}, 1", f"s_sub_u32 s{sT0}, 0, s{sT0}", f"s_xor_b32 s{sT1}, s{UO[0]}, s{UO[1]}", f"s_and_b32 s{sT1}, s{sT1}, s{sT0}",
                f"s_xor_b32 s{UO[0]}, s{UO[0]}, s{sT1}", f"s_xor_b32 s{UO[1]}, s{UO[1]}, s{sT1}",
                f"s_and_b32 s{sT0}, s{sT0}, 8192", f"s_xor_b32 s{sHS}, s{sHS}, s{sT0}",
                f"s_and_b32 s{sT0}, s{sGL}, 2", f"s_lshl_b32 s{sT1}, s{sT0}, 11", f"s_lshl_b32 s{sT0}, s{sT0}, 5", f"v_xor_b32 v{vC2}, s{sT0}, v{vC2}")
            for r in (UO[0], UO[1], UO[2], sHS): f.e(f"s_xor_b32 s{r}, s{r}, s{sT1}")
        f.e(f"s_mul_i32 s{sLE}, s{sW}, {SPW}", f"s_add_u32 s{sLE}, s{sLE}, {L_SP}",
            f"s_mul_i32 s{sW2O}, s{sXB}, {896*1024}", f"s_lshl_b32 s{sT1}, s{sGL}, 7", f"s_add_u32 s{sW2O}, s{sW2O}, s{sT1}",
            f"s_lshl2_add_u32 s{sCO}, s{sXB}, s{sW}", f"s_lshl_b32 s{sCO}, s{sCO}, 7", f"s_lshl_b32 s{sT0}, s{sGL}, 16", f"s_add_u32 s{sCO}, s{sCO}, s{sT0}")
        f.e(f"v_xor_b32 v{vC2+1}, 64, v{vC2}", f"v_add_u32 v{vC2+1}, 7168, v{vC2+1}", f"v_add_u32 v{vC2+2}, 14336, v{vC2}", f"v_add_u32 v{vC2+3}, 14336, v{vC2+1}")
        for j in range(1, 4): f.e(f"v_add_u32 v{vW2+j}, {7168*j}, v{vW2}")

    def consts_late(self, f):
        f.e(f"v_and_b32 v7, 4, v{vL}", f"v_and_b32 v8, 35, v{vL}", "v_lshl_add_u32 v7, v7, 2, v8", f"v_and_b32 v8, 24, v{vL}", "v_lshrrev_b32 v8, 1, v8",
            "v_add_u32 v37, v7, v8")
        f.e(f"s_lshl1_add_u32 s{sT1}, s{sC}, s{sWM}", f"s_lshl_b32 s{sT1}, s{sT1}, 10", f"s_add_u32 s{sT1}, s{sT1}, {WS_STAT}",
            f"v_lshl_add_u32 v{vGS}, v37, 4, s{sT1}", "v_and_b32 v7, 3, v6", "v_lshl_add_u32 v7, v9, 3, v7", "v_lshl_add_u32 v7, v3, 2, v7", "v_and_b32 v8, 16, v2", "v_lshl_add_u32 v7, v8, 1, v7",
            f"v_lshlrev_b32 v{vGR}, 2, v7")
        f.e(f"v_lshl_add_u32 v{vGC+2}, v{vL}, 3, s{sLB}", f"v_xor_b32 v{vGC+1}, {2*WBLK}, v{vGC+2}")
        f.e(f"s_lshl1_add_u32 s{sT0}, s{sC}, s{sXB}", f"s_lshl1_add_u32 s{sT1}, s{sT0}, s{sWM}", f"s_mul_i32 s{sT1}, s{sT1}, {HBLK}", f"s_add_u32 s{sT1}, s{sT1}, {WS_H}",
            f"s_lshl1_add_u32 s{sT0}, s{sT0}, s{sXB}", f"s_mul_i32 s{sB1}, s{sT0}, {HBLK}", f"s_xor_b32 s{sT0}, s{sT0}, 1", f"s_mul_i32 s{sB0}, s{sT0}, {HBLK}",
            f"s_add_u32 s{sB0}, s{sB0}, {WS_H}", f"s_add_u32 s{sB1}, s{sB1}, {WS_H}")
        f.e(f"s_lshl_b32 s{sT0}, s{sWN}, 12", f"s_add_u32 s{sT0}, s{sT0}, s{sT1}", f"s_lshl_b32 s{sT2}, s{sU0}, 13", f"s_add_u32 s{sT2}, s{sT2}, s{sT0}",
            f"v_add_u32 v{vHF1}, s{sT2}, v33", f"s_lshl_b32 s{sT2}, s{sU1}, 13", f"s_add_u32 s{sT2}, s{sT2}, s{sT0}",
            f"s_min_u32 s{sT0}, s{R_W1B+2}, 1", f"s_sub_u32 s{sT0}, 1, s{sT0}", f"s_lshl_b32 s{sT0}, s{sT0}, 30", f"s_add_u32 s{sT2}, s{sT2}, s{sT0}",
            f"v_add_u32 v{vHF2}, s{sT2}, v33")
        f.e(f"s_lshr_b32 s{sT0}, s{sGL}, 1", f"s_and_b32 s{sT2}, s{sGL}, 1", f"s_lshl2_add_u32 s{sT0}, s{sT0}, s{sT2}", f"s_lshl1_add_u32 s{sT0}, s{sT0}, s{sWN}",
            f"s_add_u32 s{sT0}, s{sT0}, 56", f"s_lshl_b32 s{sT0}, s{sT0}, 11", f"s_add_u32 s{sT0}, s{sT0}, s{sT1}", f"v_add_u32 v{vHS}, s{sT0}, v33")
        f.e(f"s_lshl1_add_u32 s{sT0}, s{sC}, s{sXB}", f"s_lshl2_add_u32 s{sT0}, s{sT0}, s{sW}", f"s_lshl_b32 s{sT0}, s{sT0}, 4", f"v_add_u32 v7, s{sT0}, v4",
            "v_and_b32 v8, 3, v6", "v_lshl_add_u32 v34, v8, 2, v7", "v_lshlrev_b32 v34, 4, v34", f"v_add_u32 v34, {WS_STAT}, v34", "v_lshl_add_u32 v18, v7, 10, v35", "v_lshlrev_b32 v19, 1, v18")
        f.e(f"s_lshl4_add_u32 s{sT0}, s{sC}, s{sG}", f"s_lshl2_add_u32 s{sT0}, s{sT0}, s{sW}", f"s_lshl_b32 s{sT0}, s{sT0}, 12", f"s_add_u32 s{sT0}, s{sT0}, {WS_XCH}",
            f"v_add_u32 v{vXS}, s{sT0}, v33", f"v_xor_b32 v{vXR}, 0x20000, v{vXS}")
        f.e("v_and_b32 v7, 7, v2", "v_xor_b32 v7, v7, v3", "v_lshlrev_b32 v7, 4, v7", "v_and_b32 v8, 31, v37", "v_lshl_add_u32 v7, v8, 8, v7",
            f"v_add_u32 v{vRW}, s{sLE}, v7")
        for g4 in range(1, 4): f.e(f"v_xor_b32 v{vRW+g4}, {32*g4}, v{vRW}")
        f.e("v_xor_b32 v7, v6, v4", "v_lshlrev_b32 v7, 4, v7", "v_lshl_add_u32 v7, v4, 8, v7", f"s_lshl_b32 s{sT0}, s{sW}, 12", f"s_lshl_b32 s{sT1}, s{sWN}, 6",
            f"s_or_b32 s{sT0}, s{sT0}, s{sT1}", f"s_add_u32 s{sT0}, s{sT0}, {L_SP}", f"v_xor_b32 v{vRR}, s{sT0}, v7")
        f.e("v_and_b32 v7, 2, v6", "v_and_b32 v8, 1, v6", "v_lshl_add_u32 v7, v7, 1, v8", "v_and_b32 v8, 4, v6", "v_lshrrev_b32 v8, 1, v8", "v_or_b32 v7, v7, v8",
            "v_lshlrev_b32 v8, 1, v32", "v_xor_b32 v7, v7, v8", "v_lshlrev_b32 v7, 4, v7", "v_lshl_add_u32 v7, v6, 7, v7",
            f"s_add_u32 s{sT0}, s{sLB}, {2*SLOT + 4096}", f"v_add_u32 v{vTW}, s{sT0}, v7", f"v_xor_b32 v{vTW+1}, 16, v{vTW}")
        f.e("v_and_b32 v5, 1, v6", "v_and_b32 v8, 16, v2", "v_lshl_add_u32 v5, v5, 5, v8", "v_and_b32 v8, 2, v6", "v_lshl_add_u32 v5, v8, 2, v5")
        f.e("v_and_b32 v7, 2, v9", "v_and_b32 v8, 1, v9", "v_lshl_add_u32 v7, v7, 1, v8", "v_lshlrev_b32 v7, 4, v7", "v_xor_b32 v7, v7, v5",
            "v_lshl_add_u32 v8, v3, 3, v9", "v_lshl_add_u32 v7, v8, 7, v7", f"v_add_u32 v{vTD}, s{sT0}, v7")

    def ssm_consts(self, q):
        q.wvm(self.small)
        q.e("v_lshlrev_b32 v14, 16, v14", "v_lshlrev_b32 v12, 16, v12", f"v_mul_f32 v14, {fh(1.4426950408889634)}, v14", "v_lshlrev_b32 v13, 16, v13",
            "v_exp_f32 v14, v14", "v_lshlrev_b32 v3, 4, v32", "v_cvt_pk_bf16_f32 v14, v14, v14", "v_lshlrev_b32 v14, 16, v14",
            "v_mul_f32 v17, v14, v12", "v_mul_f32 v15, v14, v13",
            f"v_mul_f32 v17, {fh(1.4426950408889634)}, v17", f"v_mul_f32 v15, {fh(0.15915494309189535)}, v15",
            "v_cvt_f32_u32 v3, v3", "v_sub_u32 v4, 3, v4", "v_lshlrev_b32 v4, 9, v4", "v_cvt_f32_u32 v4, v4")
        def cexp(d, n):
            q.e(f"v_mul_f32 v6, {n}, v15", f"v_mul_f32 v5, {n}, v17", "v_fract_f32 v6, v6", "v_exp_f32 v5, v5", f"v_cos_f32 v{d}, v6", f"v_sin_f32 v{d+1}, v6",
                f"v_mul_f32 v{d}, v{d}, v5", f"v_mul_f32 v{d+1}, v{d+1}, v5")
        cexp(20, "1.0"); cexp(22, fh(16.0)); cexp(24, fh(64.0)); cexp(26, "v3"); cexp(28, "v4")
        q.e("v_mul_f32 v6, v12, v12", "v_fmac_f32 v6, v13, v13", "v_rcp_f32 v6, v6", "v_add_f32 v5, -1.0, v20",
            "v_mul_f32 v30, v5, v12", "v_fmac_f32 v30, v21, v13", "v_mul_f32 v31, v21, v12", "v_fma_f32 v31, -v5, v13, v31",
            "v_add_f32 v6, v6, v6", "v_mul_f32 v30, v30, v6", "v_mul_f32 v31, v31, v6")

    def check(self, name, loads, test):
        q = Seq()
        q.wvm(loads[-1])
        q.e(*test)
        q.e(f"s_cbranch_scc1 L_{name}_slow")
        q.label(f"L_{name}_ok")
        o = self.ool
        o.label(f"L_{name}_slow")
        o.e(f"s_mov_b32 s{sPOLL}, 0x40000")
        o.label(f"L_{name}_loop")
        o.e(f"s_sleep {self.c.poll_sleep}")
        for l in loads: o.append(I(l.t, "o"))
        o.e("s_waitcnt vmcnt(0)", f"s_sub_u32 s{sPOLL}, s{sPOLL}, 1", f"s_cbranch_scc1 L_{name}_ok")
        o.e(*test)
        o.e(f"s_cbranch_scc1 L_{name}_loop", f"s_branch L_{name}_ok")
        return list(q)
    def tags(self, regs, lo=False):
        if len(regs) == 1: return [f"v_cmp_ne_u32 vcc, s{sTAG}, v{regs[0]}", f"s_and_b32 s{sM}, vcc_lo, {lo}" if lo else "s_cmp_lg_u64 vcc, 0"]
        t = [f"v_cmp_ne_u32 s[{sM}:{sM+1}], s{sTAG}, v{regs[0]}"]
        for r in regs[1:]: t += [f"v_cmp_ne_u32 vcc, s{sTAG}, v{r}", f"s_or_b64 s[{sM}:{sM+1}], s[{sM}:{sM+1}], vcc"]
        return t

    def cmul_acc(self, q, d, a, b, c, c2=None):
        c2 = c + 1 if c2 is None else c2
        q.e(f"v_fma_f32 v{d}, v{a}, v{b}, v{c}", f"v_fma_f32 v{d+1}, v{a}, v{b+1}, v{c2}",
            f"v_fma_f32 v{d}, -v{a+1}, v{b+1}, v{d}", f"v_fma_f32 v{d+1}, v{a+1}, v{b}, v{d+1}")
    def cmul(self, q, d, a, b):
        q.e(f"v_mul_f32 v{d}, v{a}, v{b}", f"v_mul_f32 v{d+1}, v{a}, v{b+1}",
            f"v_fma_f32 v{d}, -v{a+1}, v{b+1}, v{d}", f"v_fma_f32 v{d+1}, v{a+1}, v{b}, v{d+1}")

    def w2_area(self, pc):
        return {0: (sLE, 0), 1: (sLE, 8192), 2: (sLB, SLOT), 5: (sLB, 2*SLOT), 3: (sLE, 0), 4: (sLE, 8192)}[pc]
    def w2_dma(self, pc, run=4):
        sb, ao = self.w2_area(pc)
        G = []
        for k in range(4 if pc == 5 else 8):
            g = []; j = k % run
            if pc in UO:
                if j == 0:
                    g.append(I(f"s_add_u32 m0, s{sb}, {ao + 1024*k}"))
                    if k: g += [I(f"s_xor_b32 s{sKX}, s{UO[pc]}, {k*1024}"), I(f"s_lshl3_add_u32 s{sKX}, s{sKX}, s{sW2O}")]
                    else: g.append(I(f"s_lshl3_add_u32 s{sKX}, s{UO[pc]}, s{sW2O}"))
                g.append(I(f"buffer_load_dwordx4 v{vW2+j}, {srd(R_W2)}, s{sKX} offen offset:{1024*j} lds", "vm"))
            else:
                if j == 0: g += [I(f"s_add_u32 m0, s{sb}, {ao + 1024*k}"), I(f"s_add_u32 s{sKX}, s{sCO}, {8*k*1024}")]
                g.append(I(f"buffer_load_dwordx4 v{vC2+j}, {srd(R_CRE if pc == 3 else R_CIM)}, s{sKX} offen offset:{1024*j} lds", "vm"))
            G.append(g)
        self.w2_last[pc] = G[-1][-1]
        return G
    def w2_reads(self, pc):
        sb, ao = self.w2_area(pc)
        L = Seq()
        if pc in UO:
            L.e(f"v_add_u32 v{vTA}, s{sb}, v{vTR}")
            if ao >= 2 * SLOT: L.e(f"v_add_u32 v{vTA}, {ao}, v{vTA}"); ao = 0
            L.e(f"v_xor_b32 v{vTA+1}, 64, v{vTA}")
            L.wvm(self.w2_last[pc])
            j0 = {0: 0, 1: 4, 2: 8, 5: 12}[pc]
            for k in range(2 if pc == 5 else 4):
                for nu in range(2):
                    for e in range(2):
                        a = 8 * (j0 + k) + 4 * nu + 2 * e
                        r = L.e(f"ds_read_b64_tr_b16 {ar(a,2)}, v{vTA+nu} offset:{ao + 2048*k + 1024*e}")
        else:
            L.e(f"v_add_u32 v{vTA}, s{sb}, v{vCR}")
            for k in range(1, 4): L.e(f"v_xor_b32 v{vTA+k}, {32*k}, v{vTA}")
            L.wvm(self.w2_last[pc])
            j0 = 14 if pc == 3 else 18
            for k in range(4):
                for nu in range(2):
                    r = L.e(f"ds_read_b128 {ar(8*(j0+k)+4*nu)}, v{vTA+k} offset:{ao + 4096*nu}")
        self.w2_rd[pc] = r
        return groups(L)
    def after_reads(self, pc, G):
        w = Seq(); w.wds(self.w2_rd[pc])
        return [list(w) + G[0]] + G[1:]

    def ffn_epi(self, a, voff):
        f = Seq()
        for t in range(2):
            b = a + 16 * t
            for j in range(8): f.e(f"v_pk_mul_f32 {vr(b+2*j,2)}, {vr(b+2*j,2)}, {vr(42,2)} op_sel:[0,{t}] op_sel_hi:[1,{t}]")
            for j in range(8): f.e(f"v_cvt_pk_bf16_f32 v{b+j}, v{b+2*j}, v{b+2*j+1}")
            for j in range(8): f.e(f"v_pk_max_i16 v{b+j}, v{b+j}, 0")
        st = [I(f"buffer_store_dwordx4 {vr(a+16*t+4*al)}, v{voff}, {srd(R_SY)}, 0 offen offset:{2048*al + 1024*t} {self.c.hs}", "vm") for t in range(2) for al in range(2)]
        return f, st

    def split3(self, s, src, d):
        s.e(f"v_and_b32 v240, 0xffff0000, v{src}", f"v_sub_f32 v240, v{src}, v240",
            f"v_perm_b32 v{d}, v240, v{src}, s{sONES}", "v_and_b32 v241, 0xffff0000, v240", "v_sub_f32 v241, v240, v241",
            f"v_cvt_pk_bf16_f32 v{d+1}, v241, 0")

    def flag_store(self, kind, after):
        q = Seq(); q.wvm(after)
        q.e(f"buffer_store_dword v251, v{vFL}, {srd(R_SY)}, 0 offen offset:{128*kind} {self.c.hs}")
        return list(q)

    def phase1(self, q, last):
        c = self.c
        RE, IM = ACC_S, ACC_S + 16
        MF8 = "v_mfma_f32_32x32x8_bf16"; MF = "v_mfma_f32_32x32x16_bf16"
        MFR = 200
        q.wvm(last[0]); q.e("s_barrier"); self.stamp(q)
        D = 2; D2 = 3
        RD = {}
        for n in range(D): RD[n] = self.frag_reads(n); q.e(*RD[n])
        G, l = self.stage_dma(2); last.append(l)
        dma = Stream(G, every=1)
        s = Seq()
        s.e(f"v_readfirstlane_b32 s{sTAG}, v16", "v_permlane32_swap_b32 v48, v49", "v_permlane32_swap_b32 v50, v51", f"s_add_u32 s{sTAG}, s{sTAG}, {hex(TAGK)}",
            "v_add_f32 v48, v48, v49", "v_add_f32 v50, v50, v51", f"s_or_b32 s{sTAG}, s{sTAG}, 1", f"v_mov_b32 v54, s{sTAG}",
            "v_permlane16_swap_b32 v48, v50", "v_add_f32 v48, v48, v50", f"v_mov_b32 v251, s{sTAG}")
        for k in (8, 4, 2, 1): s.e(f"v_add_f32_dpp v48, v48, v48 row_ror:{k} row_mask:0xf bank_mask:0xf")
        s.e("v_mov_b32 v49, v48", "v_permlane16_swap_b32 v48, v49",
            f"v_mul_f32 v48, {fh(1/512)}, v48", f"v_mul_f32 v49, {fh(1/512)}, v49", "v_fma_f32 v49, -v48, v48, v49", "v_max_f32 v49, 0, v49",
            "v_cvt_pk_bf16_f32 v49, v49, v49", "v_lshlrev_b32 v49, 16, v49", f"v_add_f32 v49, {fh(1e-5)}, v49",
            "v_cvt_pk_bf16_f32 v49, v49, v49", "v_lshlrev_b32 v49, 16, v49", "v_sqrt_f32 v49, v49",
            "v_cvt_pk_bf16_f32 v53, -v48, -v48",
            "v_cvt_pk_bf16_f32 v49, v49, v49", "v_lshlrev_b32 v49, 16, v49", "v_rcp_f32 v52, v49")
        s.e(f"buffer_store_dwordx4 {vr(52)}, v{vSTS}, {srd(R_SY)}, 0 offen sc1")
        sA = Stream(groups(s), start=4 * (c.stat_at + 1), dl=4 * c.stat_at + 28)
        s = Seq()
        if not (c.boot and c.boot_late): self.consts_late(s)
        self.ssm_consts(s)
        sC_ = Stream(groups(s), dl=c.gather_at - 1)
        gl_ = [I(f"buffer_load_dwordx3 {vr(40,3)}, v{vGS}, {srd(R_SY)}, 0 offen sc1", "vm")]
        A = [gl_, ("nb", c.check_at), self.check("ga", gl_, self.tags([42]))]
        s = Seq()
        s.e(f"ds_bpermute_b32 v44, v{vGR}, v40")
        s.e(f"v_mov_b32 v{MFR}, v41", f"v_mov_b32 v{MFR+2}, v41", "v_mov_b32 v42, v40", "v_mov_b32 v43, v40",
            f"s_lshl_b32 s{sT0}, s{sG}, 14", f"s_add_u32 s{sT0}, s{sT0}, {WS_AGG}",
            f"v_permlane32_swap_b32 v{MFR}, v{MFR+2}", "v_permlane32_swap_b32 v42, v43", f"v_mov_b32 v{MFR+1}, v{MFR}", f"v_mov_b32 v{MFR+3}, v{MFR+2}")
        A += groups(s)
        A.append([I(f"s_add_u32 s{R_AG}, s{R_SY}, s{sT0}"), I(f"s_addc_u32 s{R_AG+1}, s{R_SY+1}, 0"), I(f"s_movk_i32 s{R_AG+2}, 16384")])
        assert c.check_at >= 92
        sG_ = Stream(A, start=c.gather_at, dl=119)
        early = self.w2_dma(0, 2) + self.w2_dma(1, 2)
        self.xl = []; X = []
        for ii in range(4):
            self.xl.append(I(f"buffer_load_dwordx2 {vr(2+4*ii,2)}, v18, {srd(R_X)}, s{sK4} offen", "vm"))
            X.append([I(f"s_movk_i32 s{sK4}, {4096*ii}"), self.xl[-1]])
        X.append(("nb", 120))
        self.xl.append(I(f"buffer_load_dwordx2 {vr(34,2)}, v34, {srd(R_SY)}, 0 offen sc1", "vm")); X.append([self.xl[-1]])
        assert c.check_at < 116
        sX_ = Stream(X, start=c.x_at, dl=127, every=c.x_every)
        for n in range(32):
            p = n & 3
            b = self.fb(n); rd = RD[n]
            if (n + D) % 4 == 0:
                i = (n + D) // 4 - 1
                flush(q, [dma])
                q.wds_all()
                if i < 7: q.wvm(last[i + 1])
                q.e("s_barrier")
                if i in c.ts_stages: self.stamp(q)
                if i < 6:
                    G, l = self.stage_dma(i + 3); last.append(l)
                    if c.early_from <= i:
                        G = G + early[:c.early_n]; early = early[c.early_n:]
                    dma = Stream(G, every=2)
                if i == 6:
                    dma = Stream(early[:c.early_last], every=2); early = early[c.early_last:]
                if i == 7: csr = q.e(f"ds_read_b64 {vr(62,2)}, v{vGC+2}")
            if n >= c.pf_from and (n - c.pf_from) % c.pf_step == 0 and (n - c.pf_from) // c.pf_step * c.pf_n < 28:
                q.e(f"global_load_dword v10, v{vPF}, s[70:71] offset:{(n - c.pf_from) // c.pf_step * c.pf_n * 128}")
            if n == c.l2pf_at:
                q.e(f"s_lshr_b32 s{sT0}, s2, 3", f"s_lshl2_add_u32 s{sT1}, s{sT0}, s{sW}", f"s_mul_i32 s{sT1}, s{sT1}, {56*128}", f"s_mul_i32 s{sT2}, s{sXB}, {896*1024}",
                    f"s_add_u32 s{sT1}, s{sT1}, s{sT2}", f"v_min_u32 v240, 55, v{vL}", "v_lshlrev_b32 v240, 7, v240")
                if not c.l2c_only: q.e(f"buffer_load_dword v219, v240, {srd(R_W2)}, s{sT1} offen")
                q.e(f"s_lshl2_add_u32 s{sT1}, s{sT0}, s{sW}", f"s_lshl_b32 s{sT1}, s{sT1}, 12", f"s_lshl_b32 s{sT2}, s{sXB}, 9", f"s_add_u32 s{sT1}, s{sT1}, s{sT2}",
                    f"v_and_b32 v240, 3, v{vL}", f"v_bfe_u32 v241, v{vL}, 2, 2", "v_lshlrev_b32 v240, 7, v240", "v_lshl_add_u32 v240, v241, 10, v240")
                q.e(f"buffer_load_dword v219, v240, {srd(R_CRE)}, s{sT1} offen", f"buffer_load_dword v219, v240, {srd(R_CIM)}, s{sT1} offen")
            for kind, at in c.prest.items():
                if at == n:
                    if kind == "S":
                        q.e(f"s_movk_i32 s{sK4}, 8192")
                        for part in range(2):
                            for mu in range(2): q.e(f"buffer_store_dwordx4 {vr(160)}, v{vHS}, {srd(R_SY)}, {('0', f's{sK4}')[part]} offen offset:{1024*mu} sc1")
                    elif kind == "X":
                        for k in range(4): q.e(f"buffer_store_dwordx4 {vr(vRW)}, v{vXS}, {srd(R_SY)}, 0 offen offset:{1024*k} sc1")
                    else:
                        for k in range(4): q.e(f"buffer_store_dwordx4 {vr(160)}, v{vHF1 if kind == 'F1' else vHF2}, {srd(R_SY)}, 0 offen offset:{1024*k} sc1")
            if n == c.pt_at:
                q.e(f"buffer_load_dword v219, v{vFP}, {srd(R_SY)}, 0 offen")
            if n == c.strow_at: q.e(*self.strows)
            nxt = []
            if n + D < 32: nxt = RD[n + D] = self.frag_reads(n + D)
            z = lambda a: ("0" if n == 0 else vr(a, 16))
            M = [f"{MF} {vr(ACC_F1,16)}, {vr(b+4)}, {ar(8*n)}, {z(ACC_F1)}", f"{MF} {vr(ACC_F1+16,16)}, {vr(b+4)}, {ar(8*n+4)}, {z(ACC_F1+16)}",
                 f"{MF} {vr(RE,16)}, {ar(8*n)}, {vr(b)}, {z(RE)}", f"{MF} {vr(IM,16)}, {ar(8*n+4)}, {vr(b)}, {z(IM)}"]
            sched = [2, 1, 1, 2]
            k = 0
            if c.s_first: M = M[2:] + M[:2]
            for j, m in enumerate(M):
                q.wds(rd[4]); q.e(m)
                mine = nxt[k:k + sched[j]]; k += sched[j]
                q.e(*mine)
                fill_gap(q, 4 * n + j, len(mine), c.cap1, [dma, sA, sG_, sC_, sX_])
                if n == 30 and j == 2:
                    q.e(f"s_mov_b32 s{sONES}, 0x07060302"); q.wds(csr)
                    q.e(f"v_add_f32 v{CS+1}, v{CS+1}, v63", f"v_add_f32 v{CS}, v{CS}, v62")
                corrF = [f"{MF8} {vr(ACC_F1+16*t,16)}, {vr(222,2)}, {vr(MFR+2*t,2)}, {vr(ACC_F1+16*t,16)}" for t in range(2)]
                corrS = [f"{MF8} {vr(RE+16*t,16)}, {vr(MFR+2*t,2)}, {vr(204,2)}, {vr(RE+16*t,16)}" for t in range(2)]
                if n == 30 and j == 3: self.split3(q, *((CS, 204) if c.s_first else (CS + 1, 222)))
                if n == 31 and j == 0: self.split3(q, *((CS + 1, 222) if c.s_first else (CS, 204)))
                if n == 31 and j == 1:
                    flush(q, [sG_])
                    q.e(*(corrS if c.s_first else corrF))
            if n == c.stat_at:
                q.wvm(self.small0, self.strows[1])
                for r in range(4):
                    q.e(f"v_dot2c_f32_bf16 v48, s{sONES}, v{40+r}", f"v_dot2c_f32_bf16 v49, s{sONES}, v{44+r}",
                        f"v_dot2c_f32_bf16 v50, v{40+r}, v{40+r}", f"v_dot2c_f32_bf16 v51, v{44+r}, v{44+r}")
            if p == 1:
                if dma.it: q.e(*dma.it.pop(0))
                for e in (n - 1, n + 1):
                    q.wds(RD[e][4]); be = self.fb(e)
                    for r in range(4):
                        q.e(f"v_dot2c_f32_bf16 v{CS}, s{sONES}, v{be+r}", f"v_dot2c_f32_bf16 v{CS+1}, s{sONES}, v{be+4+r}")
            if n == 29: q.e(f"ds_write_b64 v{vGC+1}, {vr(CS,2)}")
        q.e(*(corrF if c.s_first else corrS))
        self.stamp(q)
        G9, l = self.stage_dma(9); last.append(l)
        f, st = self.ffn_epi(ACC_F1, vHF1)
        q.e(f"v_mov_b32 v{CS}, s{sTAG}")
        st = [I(f"buffer_store_dwordx2 {vr(CS,2)}, v{vCSS}, {srd(R_SY)}, 0 offen sc1", "vm")] + st
        xs = [[I(f"buffer_store_dwordx4 {vr(vRW)}, v{vXS}, {srd(R_SY)}, 0 offen offset:{1024*k} sc1", "vm")] for k in range(4)] if c.x_e1 else []
        if not c.s_first: q.extend(merge(f, G9[:c.g9_pre]))
        s = Seq()
        for i in range(16): s.e(f"v_permlane16_swap_b32 v{RE+i}, v{IM+i}")
        cr, ci = RE, IM
        def scale(i): s.e(f"v_mul_f32_dpp v{RE+i}, v44, v{RE+i} row_newbcast:{i} row_mask:0xf bank_mask:0xf", f"v_mul_f32_dpp v{IM+i}, v44, v{IM+i} row_newbcast:{i} row_mask:0xf bank_mask:0xf")
        scale(0); scale(1)
        for i in range(1, 16):
            d = 48 if i & 1 else 46
            s.e(f"v_fma_f32 v{d}, v20, v{cr}, v{RE+i}", f"v_fma_f32 v{d+1}, v20, v{ci}, v{IM+i}")
            if i < 15: scale(i + 1)
            s.e(f"v_fma_f32 v{d}, -v21, v{ci}, v{d}", f"v_fma_f32 v{d+1}, v21, v{cr}, v{d+1}")
            cr, ci = d, d + 1
        q.extend(merge(s, G9 if c.s_first else [[x] for x in st] + G9[c.g9_pre:] + xs))
        s = Seq()
        s.e("v_mov_b32 v50, v48", "v_mov_b32 v51, v49", f"v_mov_b32 v62, s{sTAG}", "v_mov_b32 v40, 0",
            "v_permlane32_swap_b32 v48, v50", "v_permlane32_swap_b32 v49, v51",
            "v_mov_b32 v52, v48", "v_mov_b32 v54, v50", "v_mov_b32 v53, v49", "v_mov_b32 v55, v51",
            "v_permlane16_swap_b32 v48, v52", "v_permlane16_swap_b32 v50, v54", "v_permlane16_swap_b32 v49, v53", "v_permlane16_swap_b32 v51, v55", "v_mov_b32 v41, 0")
        self.cmul_acc(s, 50, 22, 48, 50); self.cmul_acc(s, 52, 22, 50, 52); self.cmul_acc(s, 60, 22, 52, 54)
        s.e(f"buffer_store_dwordx4 {vr(60)}, v{vAGS}, {srd(R_SY)}, 0 offen sc1")
        q.extend(s)
        self.stamp(q)
        q.wvm(last[8]); q.e("s_barrier")
        for e in range(32, 32 + D2):
            RD[e] = self.frag_reads(e); q.e(*RD[e])
        if c.s_first:
            q.e(st[0]); q.extend(f[:24]); q.e(st[1]); q.extend(f[24:36]); q.e(st[2]); q.extend(f[36:]); q.e(st[3])
        cl_ = I(f"buffer_load_dwordx2 {vr(CS,2)}, v{vGC}, {srd(R_SY)}, 0 offen sc1", "vm")
        S1 = []
        for j in range(1, 4):
            S1.append([I(f"v_cmp_eq_u32 vcc, {j}, v32"), I(f"v_cndmask_b32 v40, v40, v{46+2*j}, vcc"), I(f"v_cndmask_b32 v41, v41, v{47+2*j}, vcc")])
        s = Seq()
        for i in range(16):
            s.e(f"v_mul_f32 v46, v31, v{IM+i}", f"v_mul_f32 v{IM+i}, v30, v{IM+i}", f"v_fmac_f32 v{IM+i}, v31, v{RE+i}", f"v_fma_f32 v{RE+i}, v30, v{RE+i}, -v46")
        sS1 = Stream(S1 + groups(s))
        self.fa = I(f"buffer_load_dword v{vFP}, v36, {srd(R_SY)}, 0 offen sc1", "vm")
        for g in S1[:3]: q.e(*g)
        sS1.it = sS1.it[3:]
        self.lb = [I(f"buffer_load_dwordx3 {vr(LBR+4*t,3)}, v{vLBK}, {srd(R_AG)}, 0 offen offset:{512*t} sc1", "vm") for t in range(8)]
        assert len(early) % 2 == 0 and len(early) <= 8
        sR0 = Stream(self.w2_reads(0) + [("nb", 18)] + self.w2_reads(1), start=c.r0_at, dl=c.lb_at - 1)
        W = early + self.w2_dma(2, 2)
        if c.s_first: q.e(st[4])
        W2_ = self.after_reads(0, self.w2_dma(3)) + self.w2_dma(5) + self.after_reads(1, self.w2_dma(4))
        lbg = [self.lb[k:k + c.lb_grp] for k in range(0, 8, c.lb_grp)]
        fA = [[cl_] + self.flag_store(0, st[-1])]
        if c.fa_late:
            W = W[:c.w2_first] + [("nb", c.lb_at)] + lbg + fA + W[c.w2_first:] + W2_[:c.w2_n2] + [("nb", c.w2_at3)] + W2_[c.w2_n2:]
            sLB_ = Stream([])
        else:
            sR0.dl = c.w2_at2
            W = W[:c.w2_first] + [("nb", c.w2_at2)] + fA + W[c.w2_first:] + W2_[:c.w2_n2] + [("nb", c.w2_at3)] + W2_[c.w2_n2:]
            sLB_ = Stream(lbg, start=c.lb_at, every=2)
        sW2 = Stream(W, every=2)
        _, B, self.ssm_last = self.ssm_part2()
        if c.b_at < 64: sS1.dl = c.b_at - 1
        sB2 = Stream(B[:-1], start=c.b_at); self.hst = B[-1]
        sBase = Stream(self.base_stream(), start=64)
        K9 = 16 - D2
        for n in range(32, 64):
            k = n - 32
            b = self.fb(n)
            if k == K9:
                q.wds_all(); q.wvm(last[9]); q.e("s_barrier")
            nxt = RD[n + D2] = self.frag_reads(n + D2)
            for t in range(2):
                d = ACC_F2 + 16 * t
                q.wds(RD[n][-1])
                q.e(f"{MF} {vr(d,16)}, {vr(b+4)}, {ar(8*k+4*t)}, {'0' if k == 0 else vr(d,16)}")
                q.e(*nxt[t:t+1])
                fill_gap(q, 2 * k + t, 1.25, c.cap2, [sLB_, sW2, sR0, sS1, sB2, sBase])
                if k == 30 and t == 0: q.extend(self.check("c2", [cl_], self.tags([CS])))
                if k == 30 and t == 1: self.split3(q, CS + 1, 222)
        for t in range(2): q.e(f"{MF8} {vr(ACC_F2+16*t,16)}, {vr(222,2)}, {vr(MFR+2*t,2)}, {vr(ACC_F2+16*t,16)}")
        self.stamp(q)
        self.left = (sW2.rest(), sS1.rest(), sR0.rest(), sLB_.rest(), sB2.rest())
        self.base_left = sBase.rest()

    def ssm_part2(self):
        RE, IM = ACC_S, ACC_S + 16
        LB = LBR
        lb = self.lb
        pr_ = [48, 50, 56, 58, 60, 62, 70, sM]
        test = [f"v_cmp_eq_u32 s[{pr_[t]}:{pr_[t]+1}], s{sTAG}, v{LB+4*t+2}" for t in range(8)]
        test += [f"s_bcnt1_i32_b64 s{pr_[t]}, s[{pr_[t]}:{pr_[t]+1}]" for t in range(8)]
        test += [f"s_add_u32 s{pr_[0]}, s{pr_[0]}, s{pr_[t]}" for t in range(1, 8)]
        test.append(f"s_cmp_lg_u32 s{pr_[0]}, s{sNV}")
        B = [self.check("lb", lb, test)]
        q = Seq()
        self.stamp(q)
        for t in range(6, -1, -1): self.cmul_acc(q, LB + 4 * t, 24, LB + 4 * (t + 1), LB + 4 * t)
        self.cmul(q, 62, 28, LB)
        for sw in ("16", "32"):
            q.e("v_mov_b32 v60, v62", "v_mov_b32 v61, v63", f"v_permlane{sw}_swap_b32 v60, v62", f"v_permlane{sw}_swap_b32 v61, v63",
                "v_add_f32 v62, v60, v62", "v_add_f32 v63, v61, v63")
        self.cmul_acc(q, 60, 26, 62, 40)
        self.cmul(q, 62, 30, 60)
        self.nB1 = len(groups(q)) + 1
        pr, pi_ = 62, 63
        for i in range(16):
            q.e(f"v_fma_f32 v{RE+i}, v20, v{pr}, v{RE+i}", f"v_fma_f32 v{IM+i}, v20, v{pi_}, v{IM+i}",
                f"v_fma_f32 v{RE+i}, -v21, v{pi_}, v{RE+i}", f"v_fma_f32 v{IM+i}, v21, v{pr}, v{IM+i}")
            pr, pi_ = RE + i, IM + i
            if i & 1:
                j = i >> 1
                q.e(f"v_cvt_pk_bf16_f32 v{44+j}, v{RE+2*j}, v{RE+2*j+1}", f"v_cvt_pk_bf16_f32 v{52+j}, -v{IM+2*j}, -v{IM+2*j+1}")
            if i == 7:
                q.e(f"ds_write_b128 v{vTW}, {vr(44)}", f"ds_write_b128 v{vTW}, {vr(52)} offset:2048")
        q.e(f"ds_write_b128 v{vTW+1}, {vr(48)}", f"ds_write_b128 v{vTW+1}, {vr(56)} offset:2048")
        q.e(f"v_xor_b32 v61, {512|32}, v{vTD}", f"v_xor_b32 v62, 64, v{vTD}", "v_xor_b32 v63, 64, v61", f"s_movk_i32 s{sT1}, 8192")
        ad = {(0, 0): vTD, (0, 1): 61, (1, 0): 62, (1, 1): 63}
        for part in range(2):
            for mu in range(2):
                for e in range(2):
                    tr = q.e(f"ds_read_b64_tr_b16 {vr(64 + 8*part + 4*mu + 2*e,2)}, v{ad[mu, e]} offset:{2048*part}")
        B += groups(q)
        st = [I(f"buffer_store_dwordx4 {vr(64+8*part+4*mu)}, v{vHS}, {srd(R_SY)}, {('0', f's{sT1}')[part]} offen offset:{1024*mu} {self.c.hs}", "vm") for part in range(2) for mu in range(2)]
        w = Seq(); w.wds(tr)
        B.append(list(w) + st)
        return lb, B, st[-1]

    def base_stream(self):
        f = Seq()
        T = 88; D = 20; r = 24
        f.wvm(self.xl[-1])
        f.e("v_lshlrev_b32 v35, 16, v35", f"v_lshlrev_b32 v{D}, 16, v38", f"v_and_b32 v{D+1}, 0xffff0000, v38", f"v_lshlrev_b32 v{D+2}, 16, v39", f"v_and_b32 v{D+3}, 0xffff0000, v39")
        for ii in range(4):
            b = BASE + 4 * ii
            f.e(f"v_mov_b32_dpp v{r}, v34 row_newbcast:{ii} row_mask:0xf bank_mask:0xf", f"v_mov_b32_dpp v{r+1}, v35 row_newbcast:{ii} row_mask:0xf bank_mask:0xf",
                f"v_lshlrev_b32 v{b+2}, 16, v{b+1}", f"v_and_b32 v{b+3}, 0xffff0000, v{b+1}", f"v_and_b32 v{b+1}, 0xffff0000, v{b}", f"v_lshlrev_b32 v{b}, 16, v{b}")
            for e in range(4): f.e(f"v_add_f32 v{T+e}, v{b+e}, v{r+1}")
            def rnd():
                f.e(f"v_cvt_pk_bf16_f32 v{T+4}, v{T}, v{T+1}", f"v_cvt_pk_bf16_f32 v{T+5}, v{T+2}, v{T+3}",
                    f"v_lshlrev_b32 v{T}, 16, v{T+4}", f"v_and_b32 v{T+1}, 0xffff0000, v{T+4}", f"v_lshlrev_b32 v{T+2}, 16, v{T+5}", f"v_and_b32 v{T+3}, 0xffff0000, v{T+5}")
            rnd()
            for e in range(4): f.e(f"v_mul_f32 v{T+e}, v{T+e}, v{r}")
            rnd()
            for e in range(4): f.e(f"v_mul_f32 v{T+e}, v{T+e}, v{D+e}")
            rnd()
            for e in range(4): f.e(f"v_add_f32 v{b+e}, v{b+e}, v{T+e}")
        return groups(f)

    def phase2(self, q):
        c = self.c
        NR = c.nring; ak = c.akept; NT = c.ntail; LEAD = c.lead
        assert ak % 2 == 0 and ak <= 8 and NR >= LEAD + NT - 1 and NR <= 10
        wl, sl, rl, ll, B = self.left
        ssm_last = self.ssm_last
        for g in sl + rl: q.e(*g)
        f, st2 = self.ffn_epi(ACC_F2, vHF2)
        q.extend(merge(f, [[self.fa]] + ll + wl[:c.left_pre], start=0))
        wl = wl[c.left_pre:]
        k = c.b_mid
        q.e(st2[0])
        if any(x.kind == "label" for x in B[0]):
            q.e(st2[1]); st2 = st2[1:]; q.e(*B.pop(0))
        f = Seq()
        for g in B[:k]: f.e(*g)
        q.extend(merge(f, [[x] for x in st2[1:]], end=min(len(f), 40)))
        B = B[k:] + [self.hst]
        if len(B) == 1: q.e(*B.pop())
        self.stamp(q)
        q.extend(self.check("fa", [self.fa], self.tags([vFP], 0xff)))
        self.stamp(q)
        ACC = (96, 160)
        steps = [(0, j) for j in range(8)] + [(1, j) for j in range(ak)] + [(0, j) for j in range(8, 22)] + [(1, j) for j in range(ak, 22)]
        firstB = 8 + ak; sent_done = firstB + 13
        ld = {}
        def issue(n):
            ps, j = steps[n]
            a = 176 + 8 * (n % NR)
            blk = (sB0, sB1)[ps]
            g = []
            if j % 2 == 0:
                if j < 14:
                    pc = (0, 1, 2, 5)[j // 4]
                    if j % 4 == 2 and steps[n-1] == (ps, j - 1): g.append(I(f"s_xor_b32 s{sKW}, s{sKW}, 4096"))
                    else:
                        g.append(I(f"s_add_u32 s{sKW}, s{blk}, s{UO[pc]}"))
                        if j % 4: g.append(I(f"s_xor_b32 s{sKW}, s{sKW}, 4096"))
                elif j == 14: g.append(I(f"s_add_u32 s{sKW}, s{blk}, s{sHS}"))
                elif j == 18: g += [I(f"s_xor_b32 s{sKW}, s{sHS}, 8192"), I(f"s_add_u32 s{sKW}, s{sKW}, s{blk}")]
                else: g.append(I(f"s_xor_b32 s{sKW}, s{sKW}, 4096"))
            o = 2048 * (j % 2)
            ld[n, 0] = I(f"buffer_load_dwordx4 {ar(a)}, v33, {srd(R_SY)}, s{sKW} offen offset:{o} sc1", "vm")
            ld[n, 1] = I(f"buffer_load_dwordx4 {ar(a+4)}, v33, {srd(R_SY)}, s{sKW} offen offset:{o+1024} sc1", "vm")
            return [g + [ld[n, 0]], [ld[n, 1]]]
        order = []
        n = 0
        while n < 44:
            if n in (sent_done + 1 - NT, 44 - NT):
                for k in range(4): order += [(m, k) for m in range(n, n + NT)]
                n += NT
            else:
                order += [(n, k) for k in range(4)]; n += 1
        pos = {e: i for i, e in enumerate(order)}
        L0 = c.lead0
        f = Seq()
        for g in B[:-1]: f.e(*g)
        q.extend(merge(f, [g for n in range(L0) for g in issue(n)]))
        if B: q.e(*B[-1])
        if c.flagB_at < 0: q.extend(self.flag_store(1, ssm_last))
        fs = I(f"buffer_load_dword v{vFP}, v36, {srd(R_SY)}, 0 offen offset:128 sc1", "vm")
        st = Seq(); self.stamp(st)
        gate = 4 * firstB - c.gate_lead
        L = []
        for n in range(L0, 44):
            nb = max(4 * (n - LEAD), 0)
            nb = min(nb, max(4 * (n - c.lead2), c.fast_from))
            if n >= NR: nb = max(nb, max(pos[n - NR, k] for k in range(4)))
            if n >= firstB: nb = max(nb, gate)
            if firstB < n < firstB + c.burst:
                assert nb <= gate
                L[-1] += [x for g in issue(n) for x in g]; continue
            L.append(("nb", nb))
            if n == firstB: L.append(self.check("fs", [fs], self.tags([vFP], 0xffff)) + list(st) + [x for g in issue(n) for x in g])
            else: L += issue(n)
        sL = Stream(L, every=2)
        P = ([("nb", c.flagB_at)] + [self.flag_store(1, ssm_last)] if c.flagB_at >= 0 else []) + [("nb", gate - c.fs_lead), [fs]]
        sP = Stream(P, dl=gate - 1)
        Wc = self.w2_reads(2) + [("nb", c.flagB_at + 1)] + wl + self.w2_reads(5) + [("nb", c.rc_at)]
        Wc += self.w2_reads(3) + self.w2_reads(4)
        d_c = 4 * (firstB + 3)
        sWc = Stream(Wc, start=1, dl=d_c, every=c.wc_every)
        sB = Stream(self.base_left)
        XV = 64; TB = 80
        s = Seq()
        if c.xbf:
            for k in range(3): s.e(f"v_mov_b32 v{XV+4*k+3}, s{sTAG}")
        else:
            s.e(f"v_mov_b32 v{TB}, s{sTAG}")
            for k in range(1, 4): s.e(f"v_lshrrev_b32 v{TB+k}, {8*k}, v{TB}")
        s.e(f"s_movk_i32 s{sT2}, 0xff")
        R0 = [("nb", d_c + 6)] + groups(s)
        def tile(k): return (k & 1, k >> 1)
        def red_write(ps, lastn):
            out = []
            for k in range(4):
                nu, mu = tile(k)
                out.append(("nb", pos[lastn, k] + 2))
                for g4 in range(4):
                    out.append([I(f"ds_write_b128 v{vRW+g4}, {vr(ACC[ps] + 32*nu + 16*mu + 4*g4)} offset:{128*nu + 8192*mu}", "ds")])
            return out
        def red_read(s, dst):
            return [s.e(f"ds_read_b128 {vr(dst + 16*ii + 4*src)}, v{vRR} offset:{1024*ii + 16384*src}") for ii in range(4) for src in range(4)]
        s = Seq()
        s.wds_all(); s.e("s_barrier")
        R = red_read(s, 96)
        for g4 in range(4): s.e(f"v_subrev_u32 v{vRW+g4}, {L_SP}, v{vRW+g4}")
        Ga = groups(s); s = Seq()
        NS = 3 if c.xbf else 4
        if c.red_bare:
            for ii in range(4):
                s.wds(R[4 * ii + 3])
                s0 = 96 + 16 * ii; d = XV + 4 * ii
                for e in range(2):
                    s.e(f"v_pk_add_f32 {vr(s0+2*e,2)}, {vr(s0+2*e,2)}, {vr(s0+4+2*e,2)}", f"v_pk_add_f32 {vr(s0+8+2*e,2)}, {vr(s0+8+2*e,2)}, {vr(s0+12+2*e,2)}")
                for e in range(2): s.e(f"v_pk_add_f32 {vr(s0+2*e,2)}, {vr(s0+2*e,2)}, {vr(s0+8+2*e,2)}")
                if c.xbf:
                    for e in range(2):
                        k = 2 * ii + e
                        s.e(f"v_cvt_pk_bf16_f32 v{XV + (k // 3) * 4 + k % 3}, v{s0+2*e}, v{s0+2*e+1}")
                    if ii: s.e(f"buffer_store_dwordx4 {vr(XV+4*(ii-1))}, v{vXS}, {srd(R_SY)}, 0 offen offset:{1024*(ii-1)} sc1")
                else:
                    for e in range(4): s.e(f"v_bfi_b32 v{d+e}, s{sT2}, v{TB+e}, v{s0+e}")
                    s.e(f"buffer_store_dwordx4 {vr(d)}, v{vXS}, {srd(R_SY)}, 0 offen offset:{1024*ii} sc1")
            s.e(f"v_subrev_u32 v{vRR}, {L_SP}, v{vRR}")
            Gb = []
        else:
            for ii in range(4):
                s.wds(R[4 * ii + 3])
                for e in range(4):
                    d = XV + 4 * ii + e; s0 = 96 + 16 * ii + e
                    s.e(f"v_add_f32 v{s0}, v{s0}, v{s0+4}", f"v_add_f32 v{d}, v{s0+8}, v{s0+12}", f"v_add_f32 v{d}, v{d}, v{s0}",
                        f"v_bfi_b32 v{d}, s{sT2}, v{TB+e}, v{d}")
            s.e(f"v_subrev_u32 v{vRR}, {L_SP}, v{vRR}")
            Gb = groups(s)
            s = Seq()
            for k in range(4): s.e(f"buffer_store_dwordx4 {vr(XV+4*k)}, v{vXS}, {srd(R_SY)}, 0 offen offset:{1024*k} sc1")
        self.stamp(s)
        e0 = 4 * (sent_done + 1)
        XR = 40
        xl = [I(f"buffer_load_dwordx4 {vr(XR+4*k)}, v{vXR}, {srd(R_SY)}, 0 offen offset:{1024*k} sc1", "vm") for k in range(NS)]
        sR = Stream(R0 + red_write(0, sent_done) + [("nb", e0 + c.bar_lag)] + Ga + [("nb", e0 + c.bar_lag + c.add_lag)] + Gb + [("nb", 4 * c.send_at)] + [list(s)]
                    + red_write(1, 43), wev=c.wev)
        sX = Stream([[x] for x in xl], start=c.xl_at, every=2)
        q.wds(self.w2_rd[1])
        emitted = set(id(x) for x in q)
        for gi, (n, k) in enumerate(order):
            ps, j = steps[n]; nu, mu = tile(k)
            a = 176 + 8 * (n % NR); d = ACC[ps] + 32 * nu + 16 * mu
            while not any(ld[n, mu] is x for x in q[-400:]):
                g = sL.it.pop(0)
                if not isinstance(g, tuple): q.e(*g)
            q.wvm(ld[n, mu])
            if n == firstB: q.wds(self.w2_rd[2])
            if n == firstB + 4: q.wds(self.w2_rd[5])
            if n == firstB + 6: q.wds(self.w2_rd[4])
            if k == 0 and n in c.p2stamps: self.stamp(q)
            q.e(f"v_mfma_f32_32x32x16_bf16 {vr(d,16)}, {ar(8*j+4*nu)}, {ar(a+4*mu)}, {'0' if j == 0 else vr(d,16)}")
            sL.every = 1.5 if c.fast_from <= gi < c.fast_to else 2
            fill_gap(q, gi, 0.5, c.cap4 if gi >= e0 else c.cap3, [sP, sL, sWc, sR, sX, sB])
        self.stamp(q)
        flush(q, [sR, sB])
        if c.xl_at <= 176: flush(q, [sX])
        pre = [f"s_mov_b32 s{sT0}, 0x0c0c0400", f"s_mov_b32 s{sT1}, 0x05040100"]
        for k in range(4):
            r = XR + 4 * k
            pre += [f"v_perm_b32 v60, v{r+1}, v{r}, s{sT0}", f"v_perm_b32 v61, v{r+3}, v{r+2}, s{sT0}", f"v_perm_b32 v{56+k}, v61, v60, s{sT1}"]
        q.wds_all(); q.e("s_barrier")
        if c.xl_at == 177: flush(q, [sX])
        R = red_read(q, 96)
        if c.xl_at == 178: flush(q, [sX])
        for ii in range(4):
            s0 = 96 + 16 * ii
            q.wds(R[4 * ii + 1])
            for e in range(2): q.e(f"v_pk_add_f32 {vr(s0+2*e,2)}, {vr(s0+2*e,2)}, {vr(BASE+4*ii+2*e,2)}")
            for e in range(2): q.e(f"v_pk_add_f32 {vr(s0+2*e,2)}, {vr(s0+2*e,2)}, {vr(s0+4+2*e,2)}")
            q.wds(R[4 * ii + 3])
            for e in range(2): q.e(f"v_pk_add_f32 {vr(s0+8+2*e,2)}, {vr(s0+8+2*e,2)}, {vr(s0+12+2*e,2)}")
            for e in range(2): q.e(f"v_pk_add_f32 {vr(s0+2*e,2)}, {vr(s0+2*e,2)}, {vr(s0+8+2*e,2)}")
        flush(q, [sX])
        q.extend(self.check("xc", xl, pre + self.tags([56 + k for k in range(4)])))
        self.stamp(q)
        for ii in range(4):
            s0 = 96 + 16 * ii; r = XR + 4 * ii
            for e in range(4): q.e(f"v_and_b32 v{r+e}, 0xffffff00, v{r+e}")
            q.e(f"s_movk_i32 s{sT0}, {8192*ii}")
            for e in range(2): q.e(f"v_pk_add_f32 {vr(s0+2*e,2)}, {vr(s0+2*e,2)}, {vr(r+2*e,2)}")
            q.e(f"buffer_store_dwordx4 {vr(s0)}, v19, {srd(R_OUT)}, s{sT0} offen {c.ost}")
        q.e(f"s_lshl_b32 s{sT0}, s{sG}, 2", f"s_or_b32 s{sT0}, s{sT0}, s{sW}", f"s_lshl_b32 s{sT0}, s{sT0}, 4", f"s_or_b32 s{sT0}, s{sT0}, s{sC}",
            f"s_cmp_eq_u32 s{sT0}, 15", "s_cbranch_scc0 L_nobump", "v_mov_b32 v57, 0", "s_mov_b64 exec, 1")
        q.e(f"buffer_store_dword v251, v57, {srd(R_SY)}, 0 offen sc1")
        q.e("s_mov_b64 exec, -1")
        q.label("L_nobump")

    def write_ts(self, q):
        if not self.c.ts: return
        q.wds_all(); q.wvm_all()
        q.e("s_memtime s[46:47]", "s_memrealtime s[92:93]"); q.wds_all()
        q.e(f"s_lshl_b32 s{sT0}, s2, 2", f"s_add_u32 s{sT0}, s{sT0}, s{sW}", f"s_lshl_b32 s{sT0}, s{sT0}, 6", f"s_add_u32 s{sT0}, s{sT0}, {WS_TS}", "v_mov_b32 v2, 0")
        q.e("s_mov_b64 exec, 1")
        def put(k): q.e(f"buffer_store_dword v3, v2, {srd(R_SY)}, s{sT0} offen offset:{4*k}")
        for k in range(self.nts + 2):
            if k == 0: q.e("v_mov_b32 v3, v255")
            elif k == self.nts + 1: q.e("s_sub_u32 s46, s46, s42", "v_mov_b32 v3, s46")
            else:
                r = TSREG[k - 1]; q.e(f"s_sub_u32 s{r}, s{r}, s42", f"v_mov_b32 v3, s{r}")
            put(k)
        q.e("v_mov_b32 v3, s92"); put(15)
        q.wvm_all()

    def add_prof(self, q):
        lo, step = self.c.prof
        out = Seq(); unsafe = False; started = False; acc = 0; n = 0; idx = 0; nm = 0
        NP = len(TSREG)
        self.prof_pts = []
        for ins in q:
            t = ins.t
            if started and not unsafe and n < 64 and idx >= lo and acc >= step and ins.kind not in WAITK and not t.startswith(("s_cbranch", "s_branch", "s_cselect", "s_addc")) and ins.kind != "label":
                r = TSREG[n % NP]
                if n >= NP: out.e(f"v_writelane_b32 v0, s{r}, {n - NP}")
                out.e(f"s_memtime s[{r}:{r+1}]"); self.prof_pts.append((idx, nm, t[:50])); n += 1; acc = 0
            out.append(ins)
            if t == "s_barrier": started = True
            if started and ins.kind != "label":
                idx += 1; acc += 1
                if t.startswith("v_mfma"): nm += 1
            if t.startswith("s_cbranch"): unsafe = started
            if ins.kind == "label" and (t.endswith("_ok:") or t.startswith("L_nobump")): unsafe = False
        out.wds_all()
        for k in range(max(0, n - NP), n): out.e(f"v_writelane_b32 v0, s{TSREG[k % NP]}, {k}")
        out.e(f"s_lshl_b32 s{sT0}, s2, 2", f"s_add_u32 s{sT0}, s{sT0}, s{sW}", f"s_lshl_b32 s{sT0}, s{sT0}, 8", f"s_add_u32 s{sT0}, s{sT0}, {WS_TS + 65536}",
              "v_subrev_u32 v0, s42, v0", f"v_lshlrev_b32 v2, 2, v{vL}")
        out.e(f"buffer_store_dword v0, v2, {srd(R_SY)}, s{sT0} offen")
        return out

    def build(self):
        q = Seq()
        q.label("L_start")
        last = self.prologue(q)
        self.phase1(q, last)
        self.phase2(q)
        if self.c.prof: q = self.add_prof(q)
        self.write_ts(q)
        if self.c.spin_to:
            q.e("s_waitcnt lgkmcnt(0)")
            if self.c.spin_x >= 0: q.e("s_and_b32 s46, s2, 7", f"s_cmp_eq_u32 s46, {self.c.spin_x}", "s_cbranch_scc0 L_end")
            if self.c.probe: q.e("s_sub_u32 s68, s68, s42", f"s_add_u32 s68, s68, {self.c.spin_to}")
            else: q.e(f"s_mov_b32 s68, {self.c.spin_to}")
            q.label("L_spin")
            q.e("s_memrealtime s[46:47]", "s_waitcnt lgkmcnt(0)", "s_sub_u32 s46, s46, s42", "s_cmp_lt_u32 s46, s68", "s_cbranch_scc1 L_spin")
        q.label("L_end")
        q.e("s_endpgm")
        q.extend(self.ool)
        q.label("L_fin")
        return finalize(q)

HDR = """; Fused LayerNorm + S5 state-space branch + ReLU feed-forward branch, one persistent launch (generated by gen/gen.py).
; @launch grid=(256,1,1) block=(256,1,1) lds=163840
.amdgcn_target "amdgcn-amd-amdhsa--gfx950"
.text
.globl {n}_kernel
.p2align 8
.type {n}_kernel,@function
{n}_kernel:
"""
TAIL = """
.section .rodata,"a"
.p2align 6
.amdhsa_kernel {n}_kernel
  .amdhsa_next_free_vgpr 512
  .amdhsa_next_free_sgpr 102
  .amdhsa_accum_offset 256
  .amdhsa_group_segment_fixed_size 0
  .amdhsa_kernarg_size 120
  .amdhsa_user_sgpr_count 2
  .amdhsa_user_sgpr_kernarg_segment_ptr 1
  .amdhsa_system_sgpr_workgroup_id_x 1
.end_amdhsa_kernel
"""
def generate(cfg):
    g = Gen(cfg)
    body = g.build()
    return HDR.format(n=NAME) + "\n".join(("" if l.endswith(":") else "    ") + l for l in body) + TAIL.format(n=NAME), g

if __name__ == "__main__":
    cfg = Cfg()
    for a in sys.argv[2:]:
        k, v = a.split("=", 1); assert hasattr(cfg, k), k; setattr(cfg, k, eval(v))
    txt, g = generate(cfg)
    open(sys.argv[1], "w").write(txt)
```

```python
import sys, struct
from asmlib import *

NAME = "parallel_sum__ssm_conv_s5__dense_activation_relu__prompt"
def f2u(x): return struct.unpack("<I", struct.pack("<f", x))[0]
def fh(x): return hex(f2u(x))

WS_CS   = 262144
WS_FLAG = 524288
WS_STAT = 786432
WS_AGG  = 1 << 20
WS_XCH  = 2 << 20
WS_TS   = (7 << 20) + (1 << 19)
WS_H    = 8 << 20
HBLK = 88 * 2048
WS_END = WS_H + 64 * HBLK
TAGK = 0x9E3779B9
OOB = 0x40000000

sCO, sW, sWM, sWN, sC, sG, sGL, sU0, sORD, sXB, sT0, sT1, sT2 = 3, 4, 5, 6, 7, 8, 9, 10, 11, 12, 13, 14, 15
P_X, P_LRE, P_LIM, P_BRE, P_BIM, P_CRE, P_CIM, P_LDT = 16, 18, 20, 22, 24, 26, 28, 30
P_DSK, P_W1, P_W2, P_OUT, P_WS = 32, 36, 38, 40, 44
sU1, sK4 = 34, 35
sM = 46
R_X, R_BS, R_W1A, R_W1B, R_W2, R_CRE, R_CIM, R_OUT, R_SY = 48, 52, 56, 60, 72, 76, 80, 84, 88
R_AG = R_BS
sB0, sB1, sHS, sNV = 64, 65, 66, 67
sUO = 32
UO = {0: 32, 1: 33, 2: 100, 5: 101}
sKX, sKW, sLB, sONES, sTAG, sPOLL, sLE, sW2O = 92, 93, 94, 95, 96, 97, 98, 99
TSREG = [16, 18, 20, 22, 24, 26, 28, 30, 36, 38, 40, 68]
def srd(r): return f"s[{r}:{r+3}]"

vL = 1
BASE = 2
ACC_S, ACC_F1, ACC_F2 = 64, 96, 128
FR = 160
RA, RS, RF = 176, 180, 184
vX, vB, vW = 200, 204, 206
vSTS, vCSS, vGS, vGC, vPF, vAGS, vHF1, vHF2, vGR = 208, 209, 210, 211, 214, 215, 216, 217, 218
CS = 220
vW2, vC2, vTR, vCR, vTA, vLBK, vFP, vHS, vFL, vXS, vXR, vRW, vRR, vTW, vTD = 224, 228, 232, 233, 234, 238, 239, 242, 243, 244, 245, 246, 250, 252, 254
def vr(a, n=4): return f"v[{a}:{a+n-1}]"
def ar(a, n=4): return f"a[{a}:{a+n-1}]"

LBR = 96
SLOT = 32768; WBLK = 8192
L_SP = 98304; SPW = 16384
L_CS = 0

class Cfg:
    ts = False; ts_stages = (); ts_max = 12; ts_min = 0; prof = None; p2stamps = ()
    order = "xa"
    pf_from = 2; pf_n = 28; pf_step = 12
    early_from = 1; early_n = 2; early_last = 6
    cap1 = 5.5; cap2 = 5.5; cap3 = 5
    stat_at = 2; gather_at = 86; check_at = 108
    w2_first = 8; w2_at2 = 24; w2_n2 = 12; w2_at3 = 64; fa_late = False; lb_at = 50; lb_grp = 2; left_pre = 0; g9_pre = 4; r0_at = 10; b_at = 64; b_mid = 60; lb_every = 1; rc_at = 40
    akept = 6; nring = 10; lead = 6; ntail = 4
    lead0 = 4; flagB_at = 15; fs_lead = 4; gate_lead = 20; wc_every = 2; burst = 1
    bar_lag = 7; send_at = 0; xl_at = 177; wev = 1
    poll_sleep = 1
    probe = 0
    prots = False
    g9_loop = 0; g9_every = 2; p2_pre = 0
    x_e1 = False
    x_at = 106; x_every = 2; l2c_only = False
    hs = 'sc1'; prest = {}
    lead2 = 10; fast_from = 96; fast_to = 140; recv_early = False; red_bare = True; xbf = False
    s_first = False
    boot = 0; boot_late = True; boot_bar = True
    spin_x = -1
    add_lag = 4; cap4 = 8
    l2pf_at = 99; pt_at = 2
    hrot = True
    nt_upto = 0; nt_srd = (48, 52, 56, 60)
    strow_at = -2
    spin_to = 0
    ost = 'nt'

def mk_srd(q, r, p, size):
    q.e(f"s_mov_b32 s{r}, s{p}", f"s_and_b32 s{r+1}, s{p+1}, 0xffff", f"s_mov_b32 s{r+2}, {size}", f"s_mov_b32 s{r+3}, 0x20000")

WAITK = ("wvm", "wds", "wvm0", "wds0")
def groups(seq):
    G = []; cur = []
    for ins in seq:
        cur.append(ins)
        if ins.kind not in WAITK and not ins.t.startswith(("v_cmp", "s_cmp")):
            G.append(cur); cur = []
    if cur: G.append(cur)
    return G
def cost(g):
    c = 0
    for i in g:
        if i.kind == "label": continue
        if i.kind in WAITK: c += 0.5
        elif i.t.startswith(TRANS): c += 2
        elif i.t.startswith("ds_write_b128"): c += 3
        else: c += 1
    return c

class Stream:
    def __init__(self, items, start=0, dl=None, every=1, wev=1):
        self.it = list(items); self.nb = start; self.dl = dl; self.every = every; self.wev = wev
    def ready(self, gap):
        while self.it and isinstance(self.it[0], tuple):
            self.nb = max(self.nb, self.it.pop(0)[1])
        return bool(self.it) and gap >= self.nb
    def pop(self, gap):
        g = self.it.pop(0)
        if self.every > 1 and any(i.kind == "vm" for i in g): self.nb = gap + int(self.every)
        if any(i.t.startswith("ds_write_b128") for i in g): self.nb = gap + self.wev
        return g
    def rest(self):
        r = [g for g in self.it if not isinstance(g, tuple)]; self.it = []; return r

def fill_gap(q, gap, used, cap, streams):
    for s in streams:
        if s.dl is not None and gap >= s.dl:
            for g in s.rest(): q.e(*g); used += cost(g)
    for s in streams:
        while s.ready(gap) and (used + cost(s.it[0]) <= cap or (used <= cap - 2 and cost(s.it[0]) > 3)):
            g = s.pop(gap); q.e(*g); used += cost(g)
def flush(q, streams):
    for s in streams:
        for g in s.rest(): q.e(*g)

def pack_order(o): return sum(v << (4 * k) for k, v in enumerate(o))
def hyb(xa):
    first = [0, (1 + 2 * xa), (2 + 2 * xa) & 7 or 1]
    rest = [v for v in [(3 + 2 * xa + k) & 7 for k in range(8)] if v not in first]
    return first + rest
ORDERS = {"xa": [[(i + 2 * xa) & 7 for i in range(8)] for xa in range(4)],
          "none": [list(range(8))] * 4,
          "two": [[(i + 4 * (xa & 1)) & 7 for i in range(8)] for xa in range(4)],
          "hyb": [hyb(xa) for xa in range(4)]}

class Gen:
    def __init__(self, cfg):
        self.c = cfg; self.nts = 0; self.nreq = 0; self.w2_last = {}; self.w2_rd = {}; self.ool = Seq()
    def stamp(self, q):
        self.nreq += 1
        if self.c.probe == self.nreq: q.e("s_memrealtime s[68:69]")
        if self.c.ts and self.nts < self.c.ts_max and self.nreq > self.c.ts_min:
            r = TSREG[self.nts]
            q.e(f"s_memtime s[{r}:{r+1}]"); self.nts += 1

    def stage_dma(self, i):
        base = (i % 3) * SLOT
        def ld(v, r, so, off):
            fl = " nt" if (i < self.c.nt_upto and r in self.c.nt_srd) else ""
            return I(f"buffer_load_dwordx4 v{v}, {srd(r)}, s{so} offen offset:{off}{fl} lds", "vm")
        def m0(o): return I(f"s_add_u32 m0, s{sLB}, {base + o}")
        def st(k): return I(f"s_bfe_u32 s{sKW}, s{sORD}, {(3 << 16) | (4 * k)}")
        mul = lambda: I(f"s_mul_i32 s{sKW}, s{sKW}, {64*3584}")
        G = []
        if i < 8:
            G.append([m0(0), st(i), I(f"s_lshl_b32 s{sKX}, s{sKW}, 7"), ld(vX, R_X, sKX, 0)])
            for j in range(1, 4): G.append([ld(vX + j, R_X, sKX, 1024 * j)])
            G.append([m0(4096), mul(), ld(vB, R_BS, sKX, 0)]); G.append([ld(vB + 1, R_BS, sKX, 1024)])
            G.append([m0(6144), ld(vW, R_W1A, sKW, 0)]); G.append([ld(vW + 1, R_W1A, sKW, 1024)])
        else:
            for t in range(4):
                G.append([m0(2048 * t), st(4 * (i - 8) + t), mul(), ld(vW, R_W1B, sKW, 0)])
                G.append([ld(vW + 1, R_W1B, sKW, 1024)])
        return G, G[-1][-1]

    def fb(self, n): return ACC_F2 + 8 * (n & 3) if n < 32 else FR - 4 + 4 * (n & 3)
    def frag_reads(self, n):
        b = self.fb(n)
        if n < 32:
            i, p = divmod(n, 4); slot = i % 3
            hi = 12 if slot == 2 else 0; o = SLOT if slot == 1 else 0
            S = I(f"ds_read_b128 {vr(b)}, v{RS+hi+p} offset:{o}", "ds")
            A0 = I(f"ds_read_b128 {ar(8*n)}, v{RA+hi+p} offset:{o}", "ds")
            A1 = I(f"ds_read_b128 {ar(8*n+4)}, v{RA+hi+p} offset:{o+WBLK}", "ds")
            F = [I(f"ds_read_b64_tr_b16 {vr(b+4+2*k, 2)}, v{RF+hi+p} offset:{o + 6144 + k*512}", "ds") for k in range(2)]
            return [S, A0, A1] + F
        if n >= 64: return []
        i, p = divmod(n - 32, 4)
        hi = 12 if i < 4 else 0
        return [I(f"ds_read_b64_tr_b16 {vr(b+4+2*k, 2)}, v{RF+hi+p} offset:{2048*(i&3) + k*512}", "ds") for k in range(2)]

    def prologue(self, q):
        c = self.c
        q.e("s_load_dwordx16 s[16:31], s[0:1], 0", "s_load_dwordx4 s[36:39], s[0:1], 80")
        if c.ts: q.e("s_memtime s[42:43]", "s_memrealtime s[46:47]")
        if c.spin_to: q.e("s_memrealtime s[42:43]")
        q.e(f"s_lshr_b32 s{sT2}, s2, 6", f"s_cmp_ge_u32 s{sT2}, 4", "s_cbranch_scc1 L_end")
        q.e(f"s_and_b32 s{sXB}, s2, 1", f"s_and_b32 s{sT0}, s2, 6", f"s_lshl1_add_u32 s{sC}, s{sT0}, s{sT2}", f"s_lshr_b32 s{sGL}, s2, 3", f"s_and_b32 s{sGL}, s{sGL}, 7",
            f"s_lshl3_add_u32 s{sG}, s{sXB}, s{sGL}", f"s_lshl4_add_u32 s{sPOLL}, s{sC}, s{sG}", f"s_lshl_b32 s3, s{sPOLL}, 13")
        q.e("s_getpc_b64 s[64:65]", "L_pc:", f"s_lshr_b32 s{sT1}, s2, 3", f"s_lshl_b32 s{sT1}, s{sT1}, 10", f"v_lshl_add_u32 v9, v0, 2, s{sT1}", "v_min_u32 v9, L_fin-L_pc-4, v9")
        q.e("global_load_dword v10, v9, s[64:65]")
        q.e(f"v_and_b32 v{vL}, 63, v0", "v_lshrrev_b32 v9, 6, v0", f"v_lshrrev_b32 v2, 3, v{vL}", f"v_readfirstlane_b32 s{sW}, v9")
        G0, l0 = self.stage_dma(0)
        assert c.order == "xa"
        q.e(f"v_and_b32 v3, 7, v{vL}", f"v_lshrrev_b32 v4, 4, v{vL}", "v_xor_b32 v5, v3, v4", "v_lshlrev_b32 v5, 4, v5",
            f"v_lshrrev_b32 v7, 5, v{vL}", "v_and_b32 v8, 3, v2", "v_lshl_add_u32 v7, v7, 4, v8",
            f"s_lshl2_add_u32 s{sT1}, s{sC}, s{sW}", f"s_lshl_b32 s{sT1}, s{sT1}, 5",
            f"v_add_u32 v7, s{sT1}, v7", f"v_lshl_add_u32 v{vX}, v7, 10, v5")
        q.e(f"s_lshl_b32 s{sLB}, s{sW}, 13", f"s_mov_b32 m0, s{sLB}", f"s_lshl_b32 s{sKX}, s{sT0}, 7", f"s_lshl_b32 s{R_X+2}, 1, 21", f"s_mov_b32 s{R_X+3}, 0x20000")
        q.wds_all()
        if c.prots: q.e("s_memtime s[68:69]")
        q.e(f"s_mov_b32 s{R_X}, s{P_X}", f"s_and_b32 s{R_X+1}, s{P_X+1}, 0xffff")
        q.e(G0[0][-1])
        q.e(f"v_xor_b32 v{vX+1}, 64, v{vX}", f"v_add_u32 v{vX+1}, {3072}, v{vX+1}", G0[1][0],
            f"v_add_u32 v{vX+2}, {6144}, v{vX}", G0[2][0], f"v_add_u32 v{vX+3}, {6144}, v{vX+1}", G0[3][0])
        q.e(f"s_lshr_b32 s{sWM}, s{sW}, 1", f"s_and_b32 s{sWN}, s{sW}, 1",
            f"s_lshl1_add_u32 s{sK4}, s{sG}, s{sWN}", f"s_lshl_b32 s{sK4}, s{sK4}, 4",
            f"v_add_u32 v7, s{sK4}, v2", f"v_lshl_add_u32 v{vB}, v7, 10, v5",
            f"s_cmp_eq_u32 s{sWM}, 0", f"s_cselect_b64 s[{R_BS}:{R_BS+1}], s[{P_BRE}:{P_BRE+1}], s[{P_BIM}:{P_BIM+1}]", f"s_and_b32 s{R_BS+1}, s{R_BS+1}, 0xffff",
            f"s_lshl_b32 s{R_BS+2}, 1, 19", f"s_mov_b32 s{R_BS+3}, s{R_X+3}", f"s_mov_b32 s{sKW}, s{sT0}")
        q.e(*G0[4])
        q.e(f"v_xor_b32 v{vB+1}, 64, v{vB}", f"v_add_u32 v{vB+1}, {7168}, v{vB+1}", *G0[5])
        q.e(f"s_and_b32 s{sT2}, s{sT2}, 1", f"s_lshl1_add_u32 s{sU0}, s{sGL}, s{sT2}", f"s_add_u32 s{sT1}, s{sGL}, 6",
            f"s_cmp_lt_u32 s{sGL}, 6", f"s_cselect_b32 s{sU0}, s{sU0}, s{sT1}", f"s_cselect_b32 s{R_W1B+2}, {512*3584}, 0",
            f"s_lshl_b32 s{sT1}, s{sW}, 4", f"v_add_u32 v7, s{sT1}, v2", "v_mul_u32_u24 v7, 3584, v7",
            "v_and_b32 v8, 1, v4", "v_lshlrev_b32 v8, 2, v8", "v_xor_b32 v8, v8, v3", f"v_lshl_add_u32 v{vW}, v8, 4, v7",
            f"s_mul_i32 s{sT2}, s{sXB}, 14", f"s_add_u32 s{sT1}, s{sT2}, s{sU0}", f"s_lshl_b32 s{sT1}, s{sT1}, 7",
            f"s_sub_u32 s{R_W1A+2}, {512*3584}, s{sT1}", f"s_and_b32 s{P_W1+1}, s{P_W1+1}, 0xffff",
            f"s_add_u32 s{R_W1A}, s{P_W1}, s{sT1}", f"s_addc_u32 s{R_W1A+1}, s{P_W1+1}, 0", f"s_mov_b32 s{R_W1A+3}, s{R_X+3}")
        q.e(*G0[6])
        q.e(f"v_add_u32 v{vW+1}, {8*3584-1024}, v{vW}", *G0[7])
        last = [l0]
        q.e(f"v_lshlrev_b32 v33, 4, v{vL}", "v_lshlrev_b32 v9, 11, v9", "v_add3_u32 v9, v9, v33, s3")
        self.strows = [q.e(f"global_load_dwordx4 {vr(40)}, v9, s[{P_X}:{P_X+1}]"), q.e(f"global_load_dwordx4 {vr(44)}, v9, s[{P_X}:{P_X+1}] offset:1024")]
        if c.ts: q.e("v_mov_b32 v255, s46")
        q.e("s_load_dwordx2 s[44:45], s[0:1], 112", "s_load_dwordx2 s[32:33], s[0:1], 64", "s_load_dwordx2 s[40:41], s[0:1], 96")
        q.e(f"s_xor_b32 s{sU1}, s{sU0}, 1", f"s_add_u32 s{sT1}, s{sT2}, s{sU1}", f"s_lshl_b32 s{sT1}, s{sT1}, 7",
            f"s_max_u32 s{R_W1B+2}, s{R_W1B+2}, s{sT1}", f"s_sub_u32 s{R_W1B+2}, s{R_W1B+2}, s{sT1}",
            f"s_add_u32 s{R_W1B}, s{P_W1}, s{sT1}", f"s_addc_u32 s{R_W1B+1}, s{P_W1+1}, 0", f"s_mov_b32 s{R_W1B+3}, s{R_X+3}")
        q.e("s_mov_b32 s70, 0x76543210", "s_mov_b32 s71, s70", f"s_lshl_b32 s{sT0}, s{sT0}, 2", f"s_lshr_b64 s[70:71], s[70:71], s{sT0}", f"s_mov_b32 s{sORD}, s70")
        q.e(f"v_lshl_add_u32 v{vC2}, v2, 10, v5", "v_lshlrev_b32 v7, 10, v2", f"v_lshl_add_u32 v{vW2}, v8, 4, v7")
        q.e(f"v_and_b32 v6, 15, v{vL}", f"v_add_lshl_u32 v11, v6, s{sK4}, 1", "v_mov_b32 v15, 0")
        q.e(f"s_lshl2_add_u32 s{sT2}, s{sPOLL}, s{sW}")
        q.wds_all()
        self.small0 = q.e(f"global_load_dword v16, v15, s[{P_WS}:{P_WS+1}] sc1")
        q.e(f"global_load_ushort v12, v11, s[{P_LRE}:{P_LRE+1}]", f"global_load_ushort v13, v11, s[{P_LIM}:{P_LIM+1}]")
        self.small = q.e(f"global_load_ushort v14, v11, s[{P_LDT}:{P_LDT+1}]")
        q.e(f"s_lshl_b32 s{sT1}, s{sGL}, 7", f"v_lshl_add_u32 v35, v6, 3, s{sT1}")
        self.dsk = q.e(f"global_load_dwordx2 {vr(38,2)}, v35, s[{P_DSK}:{P_DSK+1}]")
        if c.prots: q.e("s_memtime s[0:1]")
        f = Seq()
        f.e(f"v_and_b32 v2, 31, v{vL}", f"v_lshrrev_b32 v3, 5, v{vL}")
        f.e("v_bfe_u32 v7, v2, 1, 3", "v_xor_b32 v7, v7, v3", "v_lshlrev_b32 v7, 4, v7",
            f"v_lshl_add_u32 v{vCR}, v2, 7, v7",
            f"s_lshl_b32 s{sT1}, s{sWM}, 5", f"v_xor_b32 v7, s{sT1}, v7", f"v_xor_b32 v5, s{sT1}, v{vCR}",
            f"s_lshl_b32 s{sT1}, s{sWM}, 14", f"v_add_u32 v{RA}, s{sT1}, v5")
        f.e("v_lshl_add_u32 v7, v6, 7, v7", "v_and_b32 v8, 16, v2", "v_lshl_add_u32 v7, v8, 10, v7",
            f"s_lshl_b32 s{sT1}, s{sWN}, 13", f"s_add_u32 s{sT1}, s{sT1}, 4096", f"v_add_u32 v{RS}, s{sT1}, v7")
        for p in range(1, 4): f.e(f"v_xor_b32 v{RA+p}, {32*p}, v{RA}", f"v_xor_b32 v{RS+p}, {32*p}, v{RS}")
        f.e("v_lshrrev_b32 v9, 2, v6", "v_lshlrev_b32 v5, 7, v9", "v_and_b32 v7, 3, v6", "v_lshl_add_u32 v5, v7, 3, v5", "v_lshl_add_u32 v5, v8, 1, v5",
            "v_and_b32 v7, 8, v6", "v_lshl_add_u32 v5, v7, 3, v5",
            f"v_lshl_add_u32 v{vTR}, v3, 9, v5",
            "v_lshl_add_u32 v5, v3, 10, v5", f"s_lshl_b32 s{sT1}, s{sWN}, 6", f"s_lshl_b32 s{sT0}, s{sWM}, 13", f"s_or_b32 s{sT1}, s{sT1}, s{sT0}",
            f"v_xor_b32 v{RF}, s{sT1}, v5")
        for p in range(1, 4): f.e(f"v_xor_b32 v{RF+p}, {WBLK*p}, v{RF}")
        f.e(f"s_mov_b32 s{sONES}, 0x3f803f80", f"v_mov_b32 v{CS}, 0", f"v_mov_b32 v{CS+1}, 0")
        for k in range(4): f.e(f"v_mov_b32 v{48+k}, 0")
        for k in range(12): f.e(f"v_add_u32 v{RA+12+k}, {2*SLOT}, v{RA+k}")
        mk_srd(f, R_SY, P_WS, WS_END); mk_srd(f, R_W2, P_W2, 1792*1024); mk_srd(f, R_OUT, P_OUT, 2048*2048)
        f.e(f"s_and_b32 s{P_CRE+1}, s{P_CRE+1}, 0xffff", f"s_and_b32 s{P_CIM+1}, s{P_CIM+1}, 0xffff",
            f"s_bitcmp1_b32 s{sGL}, {0 if c.hrot else 5}", f"s_cselect_b64 s[{R_CRE}:{R_CRE+1}], s[{P_CIM}:{P_CIM+1}], s[{P_CRE}:{P_CRE+1}]",
            f"s_cselect_b64 s[{R_CIM}:{R_CIM+1}], s[{P_CRE}:{P_CRE+1}], s[{P_CIM}:{P_CIM+1}]")
        for r in (R_CRE, R_CIM): f.e(f"s_mov_b32 s{r+2}, {512*1024}", f"s_mov_b32 s{r+3}, 0x20000")
        q.extend(f)
        q.e(f"s_mul_i32 s{sT0}, s2, 56", f"s_mul_i32 s{sT1}, s{sWN}, 28", f"s_add_u32 s{sT0}, s{sT0}, s{sT1}", f"s_lshl_b32 s{sT1}, s2, 4", f"s_min_u32 s{sT1}, s{sT1}, {4096-28}",
            f"s_cmp_eq_u32 s{sWN}, 0", f"s_cselect_b32 s70, s{P_CRE}, s{P_CIM}", f"s_cselect_b32 s71, s{P_CRE+1}, s{P_CIM+1}",
            f"s_cmp_eq_u32 s{sWM}, 0", f"s_cselect_b32 s{sT0}, s{sT0}, s{sT1}",
            f"s_cselect_b32 s70, s{P_W2}, s70", f"s_cselect_b32 s71, s{P_W2+1}, s71",
            f"v_min_u32 v7, {c.pf_n - 1}, v{vL}", f"v_add_lshl_u32 v{vPF}, v7, s{sT0}, 7")
        if c.prots: q.e("s_memtime s[18:19]")
        f = Seq(); self.consts_early(f); self.consts_w2(f)
        G, l = self.stage_dma(1); last.append(l)
        if c.boot:
            q.extend(f)
            if c.boot_late:
                f = Seq(); self.consts_late(f); q.extend(f)
            for kind, at in c.prest.items():
                if at == -1:
                    if kind == "S":
                        q.e(f"s_movk_i32 s{sK4}, 8192")
                        for part in range(2):
                            for mu in range(2): q.e(f"buffer_store_dwordx4 {vr(160)}, v{vHS}, {srd(R_SY)}, {('0', f's{sK4}')[part]} offen offset:{1024*mu} sc1")
                    else:
                        for k in range(4): q.e(f"buffer_store_dwordx4 {vr(160)}, v{vHF1 if kind == 'F1' else vHF2}, {srd(R_SY)}, 0 offen offset:{1024*k} sc1")
            q.wvm_all()
            if c.boot_bar: q.e("s_barrier")
            q.extend(self.postq)
            for g in G: q.e(*g)
        else: q.extend(merge(f, G))
        if c.strow_at == -1: q.e(*self.strows)
        return last

    def consts_early(self, f):
        f.e("v_and_b32 v5, 1, v4", "v_lshl_add_u32 v32, v5, 1, v3")
        f.e(f"s_lshl_b32 s{sT2}, s{sT2}, 5", f"s_add_u32 s{sT2}, s{sT2}, {WS_STAT}", f"v_lshl_add_u32 v7, v3, 4, s{sT2}", f"v_lshl_add_u32 v{vSTS}, v2, 25, v7")
        f.e(f"s_lshl1_add_u32 s{sT0}, s{sC}, s{sXB}", f"s_lshl_b32 s{sT1}, s{sT0}, 13", f"s_add_u32 s{sT1}, s{sT1}, {WS_FLAG}",
            f"s_lshl_b32 s{sT2}, s{sW}, 3", f"s_mul_i32 s{sT0}, s{sWM}, 3", f"s_add_u32 s{sT0}, s{sT0}, s{sWN}", f"s_lshl_b32 s{sT0}, s{sT0}, 2", f"s_sub_u32 s{sT0}, s{sT0}, 8",
            f"v_mov_b32 v7, s{sT2}", f"v_mov_b32 v8, s{sT0}", f"v_cmp_gt_u32 vcc, 8, v{vL}", "v_cndmask_b32 v7, v8, v7, vcc",
            f"v_add_u32 v7, v7, v{vL}", f"v_lshl_add_u32 v7, v7, 8, s{sT1}", "v_lshl_add_u32 v36, v4, 28, v7",
            f"s_lshl2_add_u32 s{sT2}, s{sGL}, s{sW}", f"s_lshl_b32 s{sT2}, s{sT2}, 8", f"s_add_u32 s{sT1}, s{sT1}, s{sT2}",
            f"v_lshl_add_u32 v7, v2, 2, s{sT1}", f"v_lshl_add_u32 v{vFL}, v3, 30, v7", f"v_lshl_add_u32 v{vFP}, v3, 7, v7")
        f.e(f"s_lshl4_add_u32 s{sT0}, s{sC}, s{sG}", f"s_lshl1_add_u32 s{sT0}, s{sT0}, s{sWN}", f"s_lshl_b32 s{sT0}, s{sT0}, 9", f"s_add_u32 s{sT0}, s{sT0}, {WS_CS}",
            f"v_lshl_add_u32 v7, v{vL}, 3, s{sT0}", f"v_xor_b32 v{vGC}, 0x4000, v7", f"s_lshl_b32 s{sT2}, s{sWM}, 30", f"v_add_u32 v{vCSS}, s{sT2}, v7")
        f.e(f"s_lshl_b32 s{sT0}, s{sWN}, 8", f"v_lshl_add_u32 v8, v6, 4, s{sT0}",
            f"s_lshl1_add_u32 s{sNV}, s{sC}, s{sWM}", f"s_sub_u32 s{sT0}, 31, s{sNV}", f"s_lshl_b32 s{sT0}, s{sT0}, 9",
            f"s_lshl_b32 s{sT1}, s{sG}, 14", f"s_add_u32 s{sT1}, s{sT1}, {WS_AGG}", f"s_add_u32 s{sT1}, s{sT1}, s{sT0}",
            f"v_add_u32 v7, s{sT1}, v8", f"v_lshl_add_u32 v{vAGS}, v4, 28, v7",
            f"s_add_u32 s{sT0}, s{sT0}, 512", "v_sub_u32 v7, 3, v4", "v_lshl_add_u32 v7, v7, 12, v8", f"v_add_u32 v{vLBK}, s{sT0}, v7",
            f"s_lshl_b32 s{sNV}, s{sNV}, 4")
        f.e("v_cmp_eq_u32 vcc, 0, v4", f"v_cndmask_b32 v{vFP}, v{vFP}, v{vAGS}, vcc",
            "v_mul_u32_u24 v7, 24, v6", f"v_add3_u32 v7, v7, v{vCSS}, -16", "v_subrev_u32 v7, 240, v7",
            "v_cmp_eq_u32 vcc, 2, v4", f"v_cndmask_b32 v{vFP}, v{vFP}, v7, vcc")

    def consts_w2(self, f):
        f.e(f"s_lshl_b32 s{sHS}, s{sW}, 14", f"s_add_u32 s{sHS}, s{sHS}, {56*2048}")
        f.e(f"s_and_b32 s{sT2}, s{sC}, 1", f"s_lshl2_add_u32 s{sT0}, s{sW}, s{sT2}", f"s_add_u32 s{sT1}, s{sT0}, 2",
            f"s_min_u32 s{sT0}, s{sT0}, 12", f"s_min_u32 s{sT1}, s{sT1}, 13", f"s_lshl_b32 s{UO[0]}, s{sT0}, 13", f"s_lshl_b32 s{UO[1]}, s{sT1}, 13",
            f"s_xor_b32 s{sT2}, s{sT2}, 1", f"s_mul_i32 s{sT0}, s{sWM}, 6", f"s_add_u32 s{sT0}, s{sT0}, s{sT2}",
            f"s_lshl2_add_u32 s{sT1}, s{sWN}, s{sT0}", f"s_lshl_b32 s{UO[2]}, s{sT1}, 13",
            f"s_add_u32 s{sT0}, s{sT0}, 2", f"s_lshl1_add_u32 s{sT0}, s{sT0}, s{sWN}", f"s_lshl_b32 s{UO[5]}, s{sT0}, 12")
        if self.c.hrot:
            f.e(f"s_and_b32 s{sT0}, s{sGL}, 1", f"s_sub_u32 s{sT0}, 0, s{sT0}", f"s_xor_b32 s{sT1}, s{UO[0]}, s{UO[1]}", f"s_and_b32 s{sT1}, s{sT1}, s{sT0}",
                f"s_xor_b32 s{UO[0]}, s{UO[0]}, s{sT1}", f"s_xor_b32 s{UO[1]}, s{UO[1]}, s{sT1}",
                f"s_and_b32 s{sT0}, s{sT0}, 8192", f"s_xor_b32 s{sHS}, s{sHS}, s{sT0}",
                f"s_and_b32 s{sT0}, s{sGL}, 2", f"s_lshl_b32 s{sT1}, s{sT0}, 11", f"s_lshl_b32 s{sT0}, s{sT0}, 5", f"v_xor_b32 v{vC2}, s{sT0}, v{vC2}")
            for r in (UO[0], UO[1], UO[2], sHS): f.e(f"s_xor_b32 s{r}, s{r}, s{sT1}")
        f.e(f"s_mul_i32 s{sLE}, s{sW}, {SPW}", f"s_add_u32 s{sLE}, s{sLE}, {L_SP}",
            f"s_mul_i32 s{sW2O}, s{sXB}, {896*1024}", f"s_lshl_b32 s{sT1}, s{sGL}, 7", f"s_add_u32 s{sW2O}, s{sW2O}, s{sT1}",
            f"s_lshl2_add_u32 s{sCO}, s{sXB}, s{sW}", f"s_lshl_b32 s{sCO}, s{sCO}, 7", f"s_lshl_b32 s{sT0}, s{sGL}, 16", f"s_add_u32 s{sCO}, s{sCO}, s{sT0}")
        f.e(f"v_xor_b32 v{vC2+1}, 64, v{vC2}", f"v_add_u32 v{vC2+1}, 7168, v{vC2+1}", f"v_add_u32 v{vC2+2}, 14336, v{vC2}", f"v_add_u32 v{vC2+3}, 14336, v{vC2+1}")
        for j in range(1, 4): f.e(f"v_add_u32 v{vW2+j}, {7168*j}, v{vW2}")

    def consts_late(self, f):
        f.e(f"v_and_b32 v7, 4, v{vL}", f"v_and_b32 v8, 35, v{vL}", "v_lshl_add_u32 v7, v7, 2, v8", f"v_and_b32 v8, 24, v{vL}", "v_lshrrev_b32 v8, 1, v8",
            "v_add_u32 v37, v7, v8")
        f.e(f"s_lshl1_add_u32 s{sT1}, s{sC}, s{sWM}", f"s_lshl_b32 s{sT1}, s{sT1}, 10", f"s_add_u32 s{sT1}, s{sT1}, {WS_STAT}",
            f"v_lshl_add_u32 v{vGS}, v37, 4, s{sT1}", "v_and_b32 v7, 3, v6", "v_lshl_add_u32 v7, v9, 3, v7", "v_lshl_add_u32 v7, v3, 2, v7", "v_and_b32 v8, 16, v2", "v_lshl_add_u32 v7, v8, 1, v7",
            f"v_lshlrev_b32 v{vGR}, 2, v7")
        f.e(f"v_lshl_add_u32 v{vGC+2}, v{vL}, 3, s{sLB}", f"v_xor_b32 v{vGC+1}, {2*WBLK}, v{vGC+2}")
        f.e(f"s_lshl1_add_u32 s{sT0}, s{sC}, s{sXB}", f"s_lshl1_add_u32 s{sT1}, s{sT0}, s{sWM}", f"s_mul_i32 s{sT1}, s{sT1}, {HBLK}", f"s_add_u32 s{sT1}, s{sT1}, {WS_H}",
            f"s_lshl1_add_u32 s{sT0}, s{sT0}, s{sXB}", f"s_mul_i32 s{sB1}, s{sT0}, {HBLK}", f"s_xor_b32 s{sT0}, s{sT0}, 1", f"s_mul_i32 s{sB0}, s{sT0}, {HBLK}",
            f"s_add_u32 s{sB0}, s{sB0}, {WS_H}", f"s_add_u32 s{sB1}, s{sB1}, {WS_H}")
        f.e(f"s_lshl_b32 s{sT0}, s{sWN}, 12", f"s_add_u32 s{sT0}, s{sT0}, s{sT1}", f"s_lshl_b32 s{sT2}, s{sU0}, 13", f"s_add_u32 s{sT2}, s{sT2}, s{sT0}",
            f"v_add_u32 v{vHF1}, s{sT2}, v33", f"s_lshl_b32 s{sT2}, s{sU1}, 13", f"s_add_u32 s{sT2}, s{sT2}, s{sT0}",
            f"s_min_u32 s{sT0}, s{R_W1B+2}, 1", f"s_sub_u32 s{sT0}, 1, s{sT0}", f"s_lshl_b32 s{sT0}, s{sT0}, 30", f"s_add_u32 s{sT2}, s{sT2}, s{sT0}",
            f"v_add_u32 v{vHF2}, s{sT2}, v33")
        f.e(f"s_lshr_b32 s{sT0}, s{sGL}, 1", f"s_and_b32 s{sT2}, s{sGL}, 1", f"s_lshl2_add_u32 s{sT0}, s{sT0}, s{sT2}", f"s_lshl1_add_u32 s{sT0}, s{sT0}, s{sWN}",
            f"s_add_u32 s{sT0}, s{sT0}, 56", f"s_lshl_b32 s{sT0}, s{sT0}, 11", f"s_add_u32 s{sT0}, s{sT0}, s{sT1}", f"v_add_u32 v{vHS}, s{sT0}, v33")
        f.e(f"s_lshl1_add_u32 s{sT0}, s{sC}, s{sXB}", f"s_lshl2_add_u32 s{sT0}, s{sT0}, s{sW}", f"s_lshl_b32 s{sT0}, s{sT0}, 4", f"v_add_u32 v7, s{sT0}, v4",
            "v_and_b32 v8, 3, v6", "v_lshl_add_u32 v34, v8, 2, v7", "v_lshlrev_b32 v34, 4, v34", f"v_add_u32 v34, {WS_STAT}, v34", "v_lshl_add_u32 v18, v7, 10, v35", "v_lshlrev_b32 v19, 1, v18")
        f.e(f"s_lshl4_add_u32 s{sT0}, s{sC}, s{sG}", f"s_lshl2_add_u32 s{sT0}, s{sT0}, s{sW}", f"s_lshl_b32 s{sT0}, s{sT0}, 12", f"s_add_u32 s{sT0}, s{sT0}, {WS_XCH}",
            f"v_add_u32 v{vXS}, s{sT0}, v33", f"v_xor_b32 v{vXR}, 0x20000, v{vXS}")
        f.e("v_and_b32 v7, 7, v2", "v_xor_b32 v7, v7, v3", "v_lshlrev_b32 v7, 4, v7", "v_and_b32 v8, 31, v37", "v_lshl_add_u32 v7, v8, 8, v7",
            f"v_add_u32 v{vRW}, s{sLE}, v7")
        for g4 in range(1, 4): f.e(f"v_xor_b32 v{vRW+g4}, {32*g4}, v{vRW}")
        f.e("v_xor_b32 v7, v6, v4", "v_lshlrev_b32 v7, 4, v7", "v_lshl_add_u32 v7, v4, 8, v7", f"s_lshl_b32 s{sT0}, s{sW}, 12", f"s_lshl_b32 s{sT1}, s{sWN}, 6",
            f"s_or_b32 s{sT0}, s{sT0}, s{sT1}", f"s_add_u32 s{sT0}, s{sT0}, {L_SP}", f"v_xor_b32 v{vRR}, s{sT0}, v7")
        f.e("v_and_b32 v7, 2, v6", "v_and_b32 v8, 1, v6", "v_lshl_add_u32 v7, v7, 1, v8", "v_and_b32 v8, 4, v6", "v_lshrrev_b32 v8, 1, v8", "v_or_b32 v7, v7, v8",
            "v_lshlrev_b32 v8, 1, v32", "v_xor_b32 v7, v7, v8", "v_lshlrev_b32 v7, 4, v7", "v_lshl_add_u32 v7, v6, 7, v7",
            f"s_add_u32 s{sT0}, s{sLB}, {2*SLOT + 4096}", f"v_add_u32 v{vTW}, s{sT0}, v7", f"v_xor_b32 v{vTW+1}, 16, v{vTW}")
        f.e("v_and_b32 v5, 1, v6", "v_and_b32 v8, 16, v2", "v_lshl_add_u32 v5, v5, 5, v8", "v_and_b32 v8, 2, v6", "v_lshl_add_u32 v5, v8, 2, v5")
        f.e("v_and_b32 v7, 2, v9", "v_and_b32 v8, 1, v9", "v_lshl_add_u32 v7, v7, 1, v8", "v_lshlrev_b32 v7, 4, v7", "v_xor_b32 v7, v7, v5",
            "v_lshl_add_u32 v8, v3, 3, v9", "v_lshl_add_u32 v7, v8, 7, v7", f"v_add_u32 v{vTD}, s{sT0}, v7")

    def ssm_consts(self, q):
        q.wvm(self.small)
        q.e("v_lshlrev_b32 v14, 16, v14", "v_lshlrev_b32 v12, 16, v12", f"v_mul_f32 v14, {fh(1.4426950408889634)}, v14", "v_lshlrev_b32 v13, 16, v13",
            "v_exp_f32 v14, v14", "v_lshlrev_b32 v3, 4, v32", "v_cvt_pk_bf16_f32 v14, v14, v14", "v_lshlrev_b32 v14, 16, v14",
            "v_mul_f32 v17, v14, v12", "v_mul_f32 v15, v14, v13",
            f"v_mul_f32 v17, {fh(1.4426950408889634)}, v17", f"v_mul_f32 v15, {fh(0.15915494309189535)}, v15",
            "v_cvt_f32_u32 v3, v3", "v_sub_u32 v4, 3, v4", "v_lshlrev_b32 v4, 9, v4", "v_cvt_f32_u32 v4, v4")
        def cexp(d, n):
            q.e(f"v_mul_f32 v6, {n}, v15", f"v_mul_f32 v5, {n}, v17", "v_fract_f32 v6, v6", "v_exp_f32 v5, v5", f"v_cos_f32 v{d}, v6", f"v_sin_f32 v{d+1}, v6",
                f"v_mul_f32 v{d}, v{d}, v5", f"v_mul_f32 v{d+1}, v{d+1}, v5")
        cexp(20, "1.0"); cexp(22, fh(16.0)); cexp(24, fh(64.0)); cexp(26, "v3"); cexp(28, "v4")
        q.e("v_mul_f32 v6, v12, v12", "v_fmac_f32 v6, v13, v13", "v_rcp_f32 v6, v6", "v_add_f32 v5, -1.0, v20",
            "v_mul_f32 v30, v5, v12", "v_fmac_f32 v30, v21, v13", "v_mul_f32 v31, v21, v12", "v_fma_f32 v31, -v5, v13, v31",
            "v_add_f32 v6, v6, v6", "v_mul_f32 v30, v30, v6", "v_mul_f32 v31, v31, v6")

    def check(self, name, loads, test):
        q = Seq()
        q.wvm(loads[-1])
        q.e(*test)
        q.e(f"s_cbranch_scc1 L_{name}_slow")
        q.label(f"L_{name}_ok")
        o = self.ool
        o.label(f"L_{name}_slow")
        o.e(f"s_mov_b32 s{sPOLL}, 0x40000")
        o.label(f"L_{name}_loop")
        o.e(f"s_sleep {self.c.poll_sleep}")
        for l in loads: o.append(I(l.t, "o"))
        o.e("s_waitcnt vmcnt(0)", f"s_sub_u32 s{sPOLL}, s{sPOLL}, 1", f"s_cbranch_scc1 L_{name}_ok")
        o.e(*test)
        o.e(f"s_cbranch_scc1 L_{name}_loop", f"s_branch L_{name}_ok")
        return list(q)
    def tags(self, regs, lo=False):
        if len(regs) == 1: return [f"v_cmp_ne_u32 vcc, s{sTAG}, v{regs[0]}", f"s_and_b32 s{sM}, vcc_lo, {lo}" if lo else "s_cmp_lg_u64 vcc, 0"]
        t = [f"v_cmp_ne_u32 s[{sM}:{sM+1}], s{sTAG}, v{regs[0]}"]
        for r in regs[1:]: t += [f"v_cmp_ne_u32 vcc, s{sTAG}, v{r}", f"s_or_b64 s[{sM}:{sM+1}], s[{sM}:{sM+1}], vcc"]
        return t

    def cmul_acc(self, q, d, a, b, c, c2=None):
        c2 = c + 1 if c2 is None else c2
        q.e(f"v_fma_f32 v{d}, v{a}, v{b}, v{c}", f"v_fma_f32 v{d+1}, v{a}, v{b+1}, v{c2}",
            f"v_fma_f32 v{d}, -v{a+1}, v{b+1}, v{d}", f"v_fma_f32 v{d+1}, v{a+1}, v{b}, v{d+1}")
    def cmul(self, q, d, a, b):
        q.e(f"v_mul_f32 v{d}, v{a}, v{b}", f"v_mul_f32 v{d+1}, v{a}, v{b+1}",
            f"v_fma_f32 v{d}, -v{a+1}, v{b+1}, v{d}", f"v_fma_f32 v{d+1}, v{a+1}, v{b}, v{d+1}")

    def w2_area(self, pc):
        return {0: (sLE, 0), 1: (sLE, 8192), 2: (sLB, SLOT), 5: (sLB, 2*SLOT), 3: (sLE, 0), 4: (sLE, 8192)}[pc]
    def w2_dma(self, pc, run=4):
        sb, ao = self.w2_area(pc)
        G = []
        for k in range(4 if pc == 5 else 8):
            g = []; j = k % run
            if pc in UO:
                if j == 0:
                    g.append(I(f"s_add_u32 m0, s{sb}, {ao + 1024*k}"))
                    if k: g += [I(f"s_xor_b32 s{sKX}, s{UO[pc]}, {k*1024}"), I(f"s_lshl3_add_u32 s{sKX}, s{sKX}, s{sW2O}")]
                    else: g.append(I(f"s_lshl3_add_u32 s{sKX}, s{UO[pc]}, s{sW2O}"))
                g.append(I(f"buffer_load_dwordx4 v{vW2+j}, {srd(R_W2)}, s{sKX} offen offset:{1024*j} lds", "vm"))
            else:
                if j == 0: g += [I(f"s_add_u32 m0, s{sb}, {ao + 1024*k}"), I(f"s_add_u32 s{sKX}, s{sCO}, {8*k*1024}")]
                g.append(I(f"buffer_load_dwordx4 v{vC2+j}, {srd(R_CRE if pc == 3 else R_CIM)}, s{sKX} offen offset:{1024*j} lds", "vm"))
            G.append(g)
        self.w2_last[pc] = G[-1][-1]
        return G
    def w2_reads(self, pc):
        sb, ao = self.w2_area(pc)
        L = Seq()
        if pc in UO:
            L.e(f"v_add_u32 v{vTA}, s{sb}, v{vTR}")
            if ao >= 2 * SLOT: L.e(f"v_add_u32 v{vTA}, {ao}, v{vTA}"); ao = 0
            L.e(f"v_xor_b32 v{vTA+1}, 64, v{vTA}")
            L.wvm(self.w2_last[pc])
            j0 = {0: 0, 1: 4, 2: 8, 5: 12}[pc]
            for k in range(2 if pc == 5 else 4):
                for nu in range(2):
                    for e in range(2):
                        a = 8 * (j0 + k) + 4 * nu + 2 * e
                        r = L.e(f"ds_read_b64_tr_b16 {ar(a,2)}, v{vTA+nu} offset:{ao + 2048*k + 1024*e}")
        else:
            L.e(f"v_add_u32 v{vTA}, s{sb}, v{vCR}")
            for k in range(1, 4): L.e(f"v_xor_b32 v{vTA+k}, {32*k}, v{vTA}")
            L.wvm(self.w2_last[pc])
            j0 = 14 if pc == 3 else 18
            for k in range(4):
                for nu in range(2):
                    r = L.e(f"ds_read_b128 {ar(8*(j0+k)+4*nu)}, v{vTA+k} offset:{ao + 4096*nu}")
        self.w2_rd[pc] = r
        return groups(L)
    def after_reads(self, pc, G):
        w = Seq(); w.wds(self.w2_rd[pc])
        return [list(w) + G[0]] + G[1:]

    def ffn_epi(self, a, voff):
        f = Seq()
        for t in range(2):
            b = a + 16 * t
            for j in range(8): f.e(f"v_pk_mul_f32 {vr(b+2*j,2)}, {vr(b+2*j,2)}, {vr(42,2)} op_sel:[0,{t}] op_sel_hi:[1,{t}]")
            for j in range(8): f.e(f"v_cvt_pk_bf16_f32 v{b+j}, v{b+2*j}, v{b+2*j+1}")
            for j in range(8): f.e(f"v_pk_max_i16 v{b+j}, v{b+j}, 0")
        st = [I(f"buffer_store_dwordx4 {vr(a+16*t+4*al)}, v{voff}, {srd(R_SY)}, 0 offen offset:{2048*al + 1024*t} {self.c.hs}", "vm") for t in range(2) for al in range(2)]
        return f, st

    def split3(self, s, src, d):
        s.e(f"v_and_b32 v240, 0xffff0000, v{src}", f"v_sub_f32 v240, v{src}, v240",
            f"v_perm_b32 v{d}, v240, v{src}, s{sONES}", "v_and_b32 v241, 0xffff0000, v240", "v_sub_f32 v241, v240, v241",
            f"v_cvt_pk_bf16_f32 v{d+1}, v241, 0")

    def flag_store(self, kind, after):
        q = Seq(); q.wvm(after)
        q.e(f"buffer_store_dword v251, v{vFL}, {srd(R_SY)}, 0 offen offset:{128*kind} {self.c.hs}")
        return list(q)

    def phase1(self, q, last):
        c = self.c
        RE, IM = ACC_S, ACC_S + 16
        MF8 = "v_mfma_f32_32x32x8_bf16"; MF = "v_mfma_f32_32x32x16_bf16"
        MFR = 200
        if c.prots:
            q.e("s_memtime s[20:21]", "s_waitcnt lgkmcnt(0)", "s_mov_b64 s[22:23], s[0:1]", "s_mov_b64 s[16:17], s[68:69]"); self.nts = 4
        q.wvm(last[0]); q.e("s_barrier"); self.stamp(q)
        D = 2; D2 = 3
        RD = {}
        for n in range(D): RD[n] = self.frag_reads(n); q.e(*RD[n])
        G, l = self.stage_dma(2); last.append(l)
        dma = Stream(G, every=1)
        s = Seq()
        s.e(f"v_readfirstlane_b32 s{sTAG}, v16", "v_permlane32_swap_b32 v48, v49", "v_permlane32_swap_b32 v50, v51", f"s_add_u32 s{sTAG}, s{sTAG}, {hex(TAGK)}",
            "v_add_f32 v48, v48, v49", "v_add_f32 v50, v50, v51", f"s_or_b32 s{sTAG}, s{sTAG}, 1", f"v_mov_b32 v54, s{sTAG}",
            "v_permlane16_swap_b32 v48, v50", "v_add_f32 v48, v48, v50", f"v_mov_b32 v251, s{sTAG}")
        for k in (8, 4, 2, 1): s.e(f"v_add_f32_dpp v48, v48, v48 row_ror:{k} row_mask:0xf bank_mask:0xf")
        s.e("v_mov_b32 v49, v48", "v_permlane16_swap_b32 v48, v49",
            f"v_mul_f32 v48, {fh(1/512)}, v48", f"v_mul_f32 v49, {fh(1/512)}, v49", "v_fma_f32 v49, -v48, v48, v49", "v_max_f32 v49, 0, v49",
            "v_cvt_pk_bf16_f32 v49, v49, v49", "v_lshlrev_b32 v49, 16, v49", f"v_add_f32 v49, {fh(1e-5)}, v49",
            "v_cvt_pk_bf16_f32 v49, v49, v49", "v_lshlrev_b32 v49, 16, v49", "v_sqrt_f32 v49, v49",
            "v_cvt_pk_bf16_f32 v53, -v48, -v48",
            "v_cvt_pk_bf16_f32 v49, v49, v49", "v_lshlrev_b32 v49, 16, v49", "v_rcp_f32 v52, v49")
        s.e(f"buffer_store_dwordx4 {vr(52)}, v{vSTS}, {srd(R_SY)}, 0 offen sc1")
        sA = Stream(groups(s), start=4 * (c.stat_at + 1), dl=4 * c.stat_at + 28)
        s = Seq()
        if not (c.boot and c.boot_late): self.consts_late(s)
        self.ssm_consts(s)
        sC_ = Stream(groups(s), dl=c.gather_at - 1)
        gl_ = [I(f"buffer_load_dwordx3 {vr(40,3)}, v{vGS}, {srd(R_SY)}, 0 offen sc1", "vm")]
        A = [gl_, ("nb", c.check_at), self.check("ga", gl_, self.tags([42]))]
        s = Seq()
        s.e(f"ds_bpermute_b32 v44, v{vGR}, v40")
        s.e(f"v_mov_b32 v{MFR}, v41", f"v_mov_b32 v{MFR+2}, v41", "v_mov_b32 v42, v40", "v_mov_b32 v43, v40",
            f"s_lshl_b32 s{sT0}, s{sG}, 14", f"s_add_u32 s{sT0}, s{sT0}, {WS_AGG}",
            f"v_permlane32_swap_b32 v{MFR}, v{MFR+2}", "v_permlane32_swap_b32 v42, v43", f"v_mov_b32 v{MFR+1}, v{MFR}", f"v_mov_b32 v{MFR+3}, v{MFR+2}")
        A += groups(s)
        A.append([I(f"s_add_u32 s{R_AG}, s{R_SY}, s{sT0}"), I(f"s_addc_u32 s{R_AG+1}, s{R_SY+1}, 0"), I(f"s_movk_i32 s{R_AG+2}, 16384")])
        assert c.check_at >= 92
        sG_ = Stream(A, start=c.gather_at, dl=119)
        early = self.w2_dma(0, 2) + self.w2_dma(1, 2)
        self.xl = []; X = []
        for ii in range(4):
            self.xl.append(I(f"buffer_load_dwordx2 {vr(2+4*ii,2)}, v18, {srd(R_X)}, s{sK4} offen", "vm"))
            X.append([I(f"s_movk_i32 s{sK4}, {4096*ii}"), self.xl[-1]])
        X.append(("nb", 120))
        self.xl.append(I(f"buffer_load_dwordx2 {vr(34,2)}, v34, {srd(R_SY)}, 0 offen sc1", "vm")); X.append([self.xl[-1]])
        assert c.check_at < 116
        sX_ = Stream(X, start=c.x_at, dl=127, every=c.x_every)
        for n in range(32):
            p = n & 3
            b = self.fb(n); rd = RD[n]
            if (n + D) % 4 == 0:
                i = (n + D) // 4 - 1
                flush(q, [dma])
                q.wds_all()
                if i < 7: q.wvm(last[i + 1])
                q.e("s_barrier")
                if i in c.ts_stages: self.stamp(q)
                if i < 6:
                    G, l = self.stage_dma(i + 3); last.append(l)
                    if c.early_from <= i:
                        G = G + early[:c.early_n]; early = early[c.early_n:]
                    dma = Stream(G, every=2)
                if i == 6:
                    dma = Stream(early[:c.early_last], every=2); early = early[c.early_last:]
                if i == 7:
                    csr = q.e(f"ds_read_b64 {vr(62,2)}, v{vGC+2}")
                    G9, l = self.stage_dma(9); last.append(l)
                    dma = Stream(G9[:c.g9_loop], start=123, every=c.g9_every); G9 = G9[c.g9_loop:]
            if n >= c.pf_from and (n - c.pf_from) % c.pf_step == 0 and (n - c.pf_from) // c.pf_step * c.pf_n < 28:
                q.e(f"global_load_dword v10, v{vPF}, s[70:71] offset:{(n - c.pf_from) // c.pf_step * c.pf_n * 128}")
            if n == c.l2pf_at:
                q.e(f"s_lshr_b32 s{sT0}, s2, 3", f"s_lshl2_add_u32 s{sT1}, s{sT0}, s{sW}", f"s_mul_i32 s{sT1}, s{sT1}, {56*128}", f"s_mul_i32 s{sT2}, s{sXB}, {896*1024}",
                    f"s_add_u32 s{sT1}, s{sT1}, s{sT2}", f"v_min_u32 v240, 55, v{vL}", "v_lshlrev_b32 v240, 7, v240")
                if not c.l2c_only: q.e(f"buffer_load_dword v219, v240, {srd(R_W2)}, s{sT1} offen")
                q.e(f"s_lshl2_add_u32 s{sT1}, s{sT0}, s{sW}", f"s_lshl_b32 s{sT1}, s{sT1}, 12", f"s_lshl_b32 s{sT2}, s{sXB}, 9", f"s_add_u32 s{sT1}, s{sT1}, s{sT2}",
                    f"v_and_b32 v240, 3, v{vL}", f"v_bfe_u32 v241, v{vL}, 2, 2", "v_lshlrev_b32 v240, 7, v240", "v_lshl_add_u32 v240, v241, 10, v240")
                q.e(f"buffer_load_dword v219, v240, {srd(R_CRE)}, s{sT1} offen", f"buffer_load_dword v219, v240, {srd(R_CIM)}, s{sT1} offen")
            for kind, at in c.prest.items():
                if at == n:
                    if kind == "S":
                        q.e(f"s_movk_i32 s{sK4}, 8192")
                        for part in range(2):
                            for mu in range(2): q.e(f"buffer_store_dwordx4 {vr(160)}, v{vHS}, {srd(R_SY)}, {('0', f's{sK4}')[part]} offen offset:{1024*mu} sc1")
                    elif kind == "X":
                        for k in range(4): q.e(f"buffer_store_dwordx4 {vr(vRW)}, v{vXS}, {srd(R_SY)}, 0 offen offset:{1024*k} sc1")
                    else:
                        for k in range(4): q.e(f"buffer_store_dwordx4 {vr(160)}, v{vHF1 if kind == 'F1' else vHF2}, {srd(R_SY)}, 0 offen offset:{1024*k} sc1")
            if n == c.pt_at:
                q.e(f"buffer_load_dword v219, v{vFP}, {srd(R_SY)}, 0 offen")
            if n == c.strow_at: q.e(*self.strows)
            nxt = []
            if n + D < 32: nxt = RD[n + D] = self.frag_reads(n + D)
            z = lambda a: ("0" if n == 0 else vr(a, 16))
            M = [f"{MF} {vr(ACC_F1,16)}, {vr(b+4)}, {ar(8*n)}, {z(ACC_F1)}", f"{MF} {vr(ACC_F1+16,16)}, {vr(b+4)}, {ar(8*n+4)}, {z(ACC_F1+16)}",
                 f"{MF} {vr(RE,16)}, {ar(8*n)}, {vr(b)}, {z(RE)}", f"{MF} {vr(IM,16)}, {ar(8*n+4)}, {vr(b)}, {z(IM)}"]
            sched = [2, 1, 1, 2]
            k = 0
            if c.s_first: M = M[2:] + M[:2]
            for j, m in enumerate(M):
                q.wds(rd[4]); q.e(m)
                mine = nxt[k:k + sched[j]]; k += sched[j]
                q.e(*mine)
                fill_gap(q, 4 * n + j, len(mine), c.cap1, [dma, sA, sG_, sC_, sX_])
                if n == 30 and j == 2:
                    q.e(f"s_mov_b32 s{sONES}, 0x07060302"); q.wds(csr)
                    q.e(f"v_add_f32 v{CS+1}, v{CS+1}, v63", f"v_add_f32 v{CS}, v{CS}, v62")
                corrF = [f"{MF8} {vr(ACC_F1+16*t,16)}, {vr(222,2)}, {vr(MFR+2*t,2)}, {vr(ACC_F1+16*t,16)}" for t in range(2)]
                corrS = [f"{MF8} {vr(RE+16*t,16)}, {vr(MFR+2*t,2)}, {vr(204,2)}, {vr(RE+16*t,16)}" for t in range(2)]
                if n == 30 and j == 3: self.split3(q, *((CS, 204) if c.s_first else (CS + 1, 222)))
                if n == 31 and j == 0: self.split3(q, *((CS + 1, 222) if c.s_first else (CS, 204)))
                if n == 31 and j == 1:
                    flush(q, [sG_])
                    q.e(*(corrS if c.s_first else corrF))
            if n == c.stat_at:
                q.wvm(self.small0, self.strows[1])
                for r in range(4):
                    q.e(f"v_dot2c_f32_bf16 v48, s{sONES}, v{40+r}", f"v_dot2c_f32_bf16 v49, s{sONES}, v{44+r}",
                        f"v_dot2c_f32_bf16 v50, v{40+r}, v{40+r}", f"v_dot2c_f32_bf16 v51, v{44+r}, v{44+r}")
            if p == 1:
                if dma.it: q.e(*dma.it.pop(0))
                for e in (n - 1, n + 1):
                    q.wds(RD[e][4]); be = self.fb(e)
                    for r in range(4):
                        q.e(f"v_dot2c_f32_bf16 v{CS}, s{sONES}, v{be+r}", f"v_dot2c_f32_bf16 v{CS+1}, s{sONES}, v{be+4+r}")
            if n == 29: q.e(f"ds_write_b64 v{vGC+1}, {vr(CS,2)}")
        q.e(*(corrF if c.s_first else corrS))
        self.stamp(q)
        G9 = dma.rest() + G9
        f, st = self.ffn_epi(ACC_F1, vHF1)
        q.e(f"v_mov_b32 v{CS}, s{sTAG}")
        st = [I(f"buffer_store_dwordx2 {vr(CS,2)}, v{vCSS}, {srd(R_SY)}, 0 offen sc1", "vm")] + st
        xs = [[I(f"buffer_store_dwordx4 {vr(vRW)}, v{vXS}, {srd(R_SY)}, 0 offen offset:{1024*k} sc1", "vm")] for k in range(4)] if c.x_e1 else []
        if not c.s_first: q.extend(merge(f, G9[:c.g9_pre]))
        s = Seq()
        for i in range(16): s.e(f"v_permlane16_swap_b32 v{RE+i}, v{IM+i}")
        cr, ci = RE, IM
        def scale(i): s.e(f"v_mul_f32_dpp v{RE+i}, v44, v{RE+i} row_newbcast:{i} row_mask:0xf bank_mask:0xf", f"v_mul_f32_dpp v{IM+i}, v44, v{IM+i} row_newbcast:{i} row_mask:0xf bank_mask:0xf")
        scale(0); scale(1)
        for i in range(1, 16):
            d = 48 if i & 1 else 46
            s.e(f"v_fma_f32 v{d}, v20, v{cr}, v{RE+i}", f"v_fma_f32 v{d+1}, v20, v{ci}, v{IM+i}")
            if i < 15: scale(i + 1)
            s.e(f"v_fma_f32 v{d}, -v21, v{ci}, v{d}", f"v_fma_f32 v{d+1}, v21, v{cr}, v{d+1}")
            cr, ci = d, d + 1
        P2 = self.w2_dma(2, 2)
        q.extend(merge(s, G9 if c.s_first else [[x] for x in st] + G9[c.g9_pre:] + xs + P2[:c.p2_pre]))
        s = Seq()
        s.e("v_mov_b32 v50, v48", "v_mov_b32 v51, v49", f"v_mov_b32 v62, s{sTAG}", "v_mov_b32 v40, 0",
            "v_permlane32_swap_b32 v48, v50", "v_permlane32_swap_b32 v49, v51",
            "v_mov_b32 v52, v48", "v_mov_b32 v54, v50", "v_mov_b32 v53, v49", "v_mov_b32 v55, v51",
            "v_permlane16_swap_b32 v48, v52", "v_permlane16_swap_b32 v50, v54", "v_permlane16_swap_b32 v49, v53", "v_permlane16_swap_b32 v51, v55", "v_mov_b32 v41, 0")
        self.cmul_acc(s, 50, 22, 48, 50); self.cmul_acc(s, 52, 22, 50, 52); self.cmul_acc(s, 60, 22, 52, 54)
        s.e(f"buffer_store_dwordx4 {vr(60)}, v{vAGS}, {srd(R_SY)}, 0 offen sc1")
        q.extend(s)
        self.stamp(q)
        q.wvm(last[8]); q.e("s_barrier")
        for e in range(32, 32 + D2):
            RD[e] = self.frag_reads(e); q.e(*RD[e])
        if c.s_first:
            q.e(st[0]); q.extend(f[:24]); q.e(st[1]); q.extend(f[24:36]); q.e(st[2]); q.extend(f[36:]); q.e(st[3])
        cl_ = I(f"buffer_load_dwordx2 {vr(CS,2)}, v{vGC}, {srd(R_SY)}, 0 offen sc1", "vm")
        S1 = []
        for j in range(1, 4):
            S1.append([I(f"v_cmp_eq_u32 vcc, {j}, v32"), I(f"v_cndmask_b32 v40, v40, v{46+2*j}, vcc"), I(f"v_cndmask_b32 v41, v41, v{47+2*j}, vcc")])
        s = Seq()
        for i in range(16):
            s.e(f"v_mul_f32 v46, v31, v{IM+i}", f"v_mul_f32 v{IM+i}, v30, v{IM+i}", f"v_fmac_f32 v{IM+i}, v31, v{RE+i}", f"v_fma_f32 v{RE+i}, v30, v{RE+i}, -v46")
        sS1 = Stream(S1 + groups(s))
        self.fa = I(f"buffer_load_dword v{vFP}, v36, {srd(R_SY)}, 0 offen sc1", "vm")
        for g in S1[:3]: q.e(*g)
        sS1.it = sS1.it[3:]
        self.lb = [I(f"buffer_load_dwordx3 {vr(LBR+4*t,3)}, v{vLBK}, {srd(R_AG)}, 0 offen offset:{512*t} sc1", "vm") for t in range(8)]
        assert len(early) % 2 == 0 and len(early) <= 8
        sR0 = Stream(self.w2_reads(0) + [("nb", 18)] + self.w2_reads(1), start=c.r0_at, dl=c.lb_at - 1)
        W = early + P2[c.p2_pre:]
        if c.s_first: q.e(st[4])
        W2_ = self.after_reads(0, self.w2_dma(3)) + self.w2_dma(5) + self.after_reads(1, self.w2_dma(4))
        lbg = [self.lb[k:k + c.lb_grp] for k in range(0, 8, c.lb_grp)]
        fA = [[cl_] + self.flag_store(0, st[-1])]
        if c.fa_late:
            W = W[:c.w2_first] + [("nb", c.lb_at)] + lbg + fA + W[c.w2_first:] + W2_[:c.w2_n2] + [("nb", c.w2_at3)] + W2_[c.w2_n2:]
            sLB_ = Stream([])
        else:
            sR0.dl = c.w2_at2
            W = W[:c.w2_first] + [("nb", c.w2_at2)] + fA + W[c.w2_first:] + W2_[:c.w2_n2] + [("nb", c.w2_at3)] + W2_[c.w2_n2:]
            sLB_ = Stream(lbg, start=c.lb_at, every=2)
        sW2 = Stream(W, every=2)
        _, B, self.ssm_last = self.ssm_part2()
        if c.b_at < 64: sS1.dl = c.b_at - 1
        sB2 = Stream(B[:-1], start=c.b_at); self.hst = B[-1]
        sBase = Stream(self.base_stream(), start=64)
        K9 = 16 - D2
        for n in range(32, 64):
            k = n - 32
            b = self.fb(n)
            if k == K9:
                q.wds_all(); q.wvm(last[9]); q.e("s_barrier")
            nxt = RD[n + D2] = self.frag_reads(n + D2)
            for t in range(2):
                d = ACC_F2 + 16 * t
                q.wds(RD[n][-1])
                q.e(f"{MF} {vr(d,16)}, {vr(b+4)}, {ar(8*k+4*t)}, {'0' if k == 0 else vr(d,16)}")
                q.e(*nxt[t:t+1])
                fill_gap(q, 2 * k + t, 1.25, c.cap2, [sLB_, sW2, sR0, sS1, sB2, sBase])
                if k == 30 and t == 0: q.extend(self.check("c2", [cl_], self.tags([CS])))
                if k == 30 and t == 1: self.split3(q, CS + 1, 222)
        for t in range(2): q.e(f"{MF8} {vr(ACC_F2+16*t,16)}, {vr(222,2)}, {vr(MFR+2*t,2)}, {vr(ACC_F2+16*t,16)}")
        self.stamp(q)
        self.left = (sW2.rest(), sS1.rest(), sR0.rest(), sLB_.rest(), sB2.rest())
        self.base_left = sBase.rest()

    def ssm_part2(self):
        RE, IM = ACC_S, ACC_S + 16
        LB = LBR
        lb = self.lb
        pr_ = [48, 50, 56, 58, 60, 62, 70, sM]
        test = [f"v_cmp_eq_u32 s[{pr_[t]}:{pr_[t]+1}], s{sTAG}, v{LB+4*t+2}" for t in range(8)]
        test += [f"s_bcnt1_i32_b64 s{pr_[t]}, s[{pr_[t]}:{pr_[t]+1}]" for t in range(8)]
        test += [f"s_add_u32 s{pr_[0]}, s{pr_[0]}, s{pr_[t]}" for t in range(1, 8)]
        test.append(f"s_cmp_lg_u32 s{pr_[0]}, s{sNV}")
        B = [self.check("lb", lb, test)]
        q = Seq()
        self.stamp(q)
        for t in range(6, -1, -1): self.cmul_acc(q, LB + 4 * t, 24, LB + 4 * (t + 1), LB + 4 * t)
        self.cmul(q, 62, 28, LB)
        for sw in ("16", "32"):
            q.e("v_mov_b32 v60, v62", "v_mov_b32 v61, v63", f"v_permlane{sw}_swap_b32 v60, v62", f"v_permlane{sw}_swap_b32 v61, v63",
                "v_add_f32 v62, v60, v62", "v_add_f32 v63, v61, v63")
        self.cmul_acc(q, 60, 26, 62, 40)
        self.cmul(q, 62, 30, 60)
        self.nB1 = len(groups(q)) + 1
        pr, pi_ = 62, 63
        for i in range(16):
            q.e(f"v_fma_f32 v{RE+i}, v20, v{pr}, v{RE+i}", f"v_fma_f32 v{IM+i}, v20, v{pi_}, v{IM+i}",
                f"v_fma_f32 v{RE+i}, -v21, v{pi_}, v{RE+i}", f"v_fma_f32 v{IM+i}, v21, v{pr}, v{IM+i}")
            pr, pi_ = RE + i, IM + i
            if i & 1:
                j = i >> 1
                q.e(f"v_cvt_pk_bf16_f32 v{44+j}, v{RE+2*j}, v{RE+2*j+1}", f"v_cvt_pk_bf16_f32 v{52+j}, -v{IM+2*j}, -v{IM+2*j+1}")
            if i == 7:
                q.e(f"ds_write_b128 v{vTW}, {vr(44)}", f"ds_write_b128 v{vTW}, {vr(52)} offset:2048")
        q.e(f"ds_write_b128 v{vTW+1}, {vr(48)}", f"ds_write_b128 v{vTW+1}, {vr(56)} offset:2048")
        q.e(f"v_xor_b32 v61, {512|32}, v{vTD}", f"v_xor_b32 v62, 64, v{vTD}", "v_xor_b32 v63, 64, v61", f"s_movk_i32 s{sT1}, 8192")
        ad = {(0, 0): vTD, (0, 1): 61, (1, 0): 62, (1, 1): 63}
        for part in range(2):
            for mu in range(2):
                for e in range(2):
                    tr = q.e(f"ds_read_b64_tr_b16 {vr(64 + 8*part + 4*mu + 2*e,2)}, v{ad[mu, e]} offset:{2048*part}")
        B += groups(q)
        st = [I(f"buffer_store_dwordx4 {vr(64+8*part+4*mu)}, v{vHS}, {srd(R_SY)}, {('0', f's{sT1}')[part]} offen offset:{1024*mu} {self.c.hs}", "vm") for part in range(2) for mu in range(2)]
        w = Seq(); w.wds(tr)
        B.append(list(w) + st)
        return lb, B, st[-1]

    def base_stream(self):
        f = Seq()
        T = 88; D = 20; r = 24
        f.wvm(self.xl[-1])
        f.e("v_lshlrev_b32 v35, 16, v35", f"v_lshlrev_b32 v{D}, 16, v38", f"v_and_b32 v{D+1}, 0xffff0000, v38", f"v_lshlrev_b32 v{D+2}, 16, v39", f"v_and_b32 v{D+3}, 0xffff0000, v39")
        for ii in range(4):
            b = BASE + 4 * ii
            f.e(f"v_mov_b32_dpp v{r}, v34 row_newbcast:{ii} row_mask:0xf bank_mask:0xf", f"v_mov_b32_dpp v{r+1}, v35 row_newbcast:{ii} row_mask:0xf bank_mask:0xf",
                f"v_lshlrev_b32 v{b+2}, 16, v{b+1}", f"v_and_b32 v{b+3}, 0xffff0000, v{b+1}", f"v_and_b32 v{b+1}, 0xffff0000, v{b}", f"v_lshlrev_b32 v{b}, 16, v{b}")
            for e in range(4): f.e(f"v_add_f32 v{T+e}, v{b+e}, v{r+1}")
            def rnd():
                f.e(f"v_cvt_pk_bf16_f32 v{T+4}, v{T}, v{T+1}", f"v_cvt_pk_bf16_f32 v{T+5}, v{T+2}, v{T+3}",
                    f"v_lshlrev_b32 v{T}, 16, v{T+4}", f"v_and_b32 v{T+1}, 0xffff0000, v{T+4}", f"v_lshlrev_b32 v{T+2}, 16, v{T+5}", f"v_and_b32 v{T+3}, 0xffff0000, v{T+5}")
            rnd()
            for e in range(4): f.e(f"v_mul_f32 v{T+e}, v{T+e}, v{r}")
            rnd()
            for e in range(4): f.e(f"v_mul_f32 v{T+e}, v{T+e}, v{D+e}")
            rnd()
            for e in range(4): f.e(f"v_add_f32 v{b+e}, v{b+e}, v{T+e}")
        return groups(f)

    def phase2(self, q):
        c = self.c
        NR = c.nring; ak = c.akept; NT = c.ntail; LEAD = c.lead
        assert ak % 2 == 0 and ak <= 8 and NR >= LEAD + NT - 1 and NR <= 10
        wl, sl, rl, ll, B = self.left
        ssm_last = self.ssm_last
        for g in sl + rl: q.e(*g)
        f, st2 = self.ffn_epi(ACC_F2, vHF2)
        q.extend(merge(f, [[self.fa]] + ll + wl[:c.left_pre], start=0))
        wl = wl[c.left_pre:]
        k = c.b_mid
        q.e(st2[0])
        if any(x.kind == "label" for x in B[0]):
            q.e(st2[1]); st2 = st2[1:]; q.e(*B.pop(0))
        f = Seq()
        for g in B[:k]: f.e(*g)
        q.extend(merge(f, [[x] for x in st2[1:]], end=min(len(f), 40)))
        B = B[k:] + [self.hst]
        if len(B) == 1: q.e(*B.pop())
        self.stamp(q)
        q.extend(self.check("fa", [self.fa], self.tags([vFP], 0xff)))
        self.stamp(q)
        ACC = (96, 160)
        steps = [(0, j) for j in range(8)] + [(1, j) for j in range(ak)] + [(0, j) for j in range(8, 22)] + [(1, j) for j in range(ak, 22)]
        firstB = 8 + ak; sent_done = firstB + 13
        ld = {}
        def issue(n):
            ps, j = steps[n]
            a = 176 + 8 * (n % NR)
            blk = (sB0, sB1)[ps]
            g = []
            if j % 2 == 0:
                if j < 14:
                    pc = (0, 1, 2, 5)[j // 4]
                    if j % 4 == 2 and steps[n-1] == (ps, j - 1): g.append(I(f"s_xor_b32 s{sKW}, s{sKW}, 4096"))
                    else:
                        g.append(I(f"s_add_u32 s{sKW}, s{blk}, s{UO[pc]}"))
                        if j % 4: g.append(I(f"s_xor_b32 s{sKW}, s{sKW}, 4096"))
                elif j == 14: g.append(I(f"s_add_u32 s{sKW}, s{blk}, s{sHS}"))
                elif j == 18: g += [I(f"s_xor_b32 s{sKW}, s{sHS}, 8192"), I(f"s_add_u32 s{sKW}, s{sKW}, s{blk}")]
                else: g.append(I(f"s_xor_b32 s{sKW}, s{sKW}, 4096"))
            o = 2048 * (j % 2)
            ld[n, 0] = I(f"buffer_load_dwordx4 {ar(a)}, v33, {srd(R_SY)}, s{sKW} offen offset:{o} sc1", "vm")
            ld[n, 1] = I(f"buffer_load_dwordx4 {ar(a+4)}, v33, {srd(R_SY)}, s{sKW} offen offset:{o+1024} sc1", "vm")
            return [g + [ld[n, 0]], [ld[n, 1]]]
        order = []
        n = 0
        while n < 44:
            if n in (sent_done + 1 - NT, 44 - NT):
                for k in range(4): order += [(m, k) for m in range(n, n + NT)]
                n += NT
            else:
                order += [(n, k) for k in range(4)]; n += 1
        pos = {e: i for i, e in enumerate(order)}
        L0 = c.lead0
        f = Seq()
        for g in B[:-1]: f.e(*g)
        q.extend(merge(f, [g for n in range(L0) for g in issue(n)]))
        if B: q.e(*B[-1])
        if c.flagB_at < 0: q.extend(self.flag_store(1, ssm_last))
        fs = I(f"buffer_load_dword v{vFP}, v36, {srd(R_SY)}, 0 offen offset:128 sc1", "vm")
        st = Seq(); self.stamp(st)
        gate = 4 * firstB - c.gate_lead
        L = []
        for n in range(L0, 44):
            nb = max(4 * (n - LEAD), 0)
            nb = min(nb, max(4 * (n - c.lead2), c.fast_from))
            if n >= NR: nb = max(nb, max(pos[n - NR, k] for k in range(4)))
            if n >= firstB: nb = max(nb, gate)
            if firstB < n < firstB + c.burst:
                assert nb <= gate
                L[-1] += [x for g in issue(n) for x in g]; continue
            L.append(("nb", nb))
            if n == firstB: L.append(self.check("fs", [fs], self.tags([vFP], 0xffff)) + list(st) + [x for g in issue(n) for x in g])
            else: L += issue(n)
        sL = Stream(L, every=2)
        P = ([("nb", c.flagB_at)] + [self.flag_store(1, ssm_last)] if c.flagB_at >= 0 else []) + [("nb", gate - c.fs_lead), [fs]]
        sP = Stream(P, dl=gate - 1)
        Wc = self.w2_reads(2) + [("nb", c.flagB_at + 1)] + wl + self.w2_reads(5) + [("nb", c.rc_at)]
        Wc += self.w2_reads(3) + self.w2_reads(4)
        d_c = 4 * (firstB + 3)
        sWc = Stream(Wc, start=1, dl=d_c, every=c.wc_every)
        sB = Stream(self.base_left)
        XV = 64; TB = 80
        s = Seq()
        if c.xbf:
            for k in range(3): s.e(f"v_mov_b32 v{XV+4*k+3}, s{sTAG}")
        else:
            s.e(f"v_mov_b32 v{TB}, s{sTAG}")
            for k in range(1, 4): s.e(f"v_lshrrev_b32 v{TB+k}, {8*k}, v{TB}")
        s.e(f"s_movk_i32 s{sT2}, 0xff")
        R0 = [("nb", d_c + 6)] + groups(s)
        def tile(k): return (k & 1, k >> 1)
        def red_write(ps, lastn):
            out = []
            for k in range(4):
                nu, mu = tile(k)
                out.append(("nb", pos[lastn, k] + 2))
                for g4 in range(4):
                    out.append([I(f"ds_write_b128 v{vRW+g4}, {vr(ACC[ps] + 32*nu + 16*mu + 4*g4)} offset:{128*nu + 8192*mu}", "ds")])
            return out
        def red_read(s, dst):
            return [s.e(f"ds_read_b128 {vr(dst + 16*ii + 4*src)}, v{vRR} offset:{1024*ii + 16384*src}") for ii in range(4) for src in range(4)]
        s = Seq()
        s.wds_all(); s.e("s_barrier")
        R = red_read(s, 96)
        for g4 in range(4): s.e(f"v_subrev_u32 v{vRW+g4}, {L_SP}, v{vRW+g4}")
        Ga = groups(s); s = Seq()
        NS = 3 if c.xbf else 4
        if c.red_bare:
            for ii in range(4):
                s.wds(R[4 * ii + 3])
                s0 = 96 + 16 * ii; d = XV + 4 * ii
                for e in range(2):
                    s.e(f"v_pk_add_f32 {vr(s0+2*e,2)}, {vr(s0+2*e,2)}, {vr(s0+4+2*e,2)}", f"v_pk_add_f32 {vr(s0+8+2*e,2)}, {vr(s0+8+2*e,2)}, {vr(s0+12+2*e,2)}")
                for e in range(2): s.e(f"v_pk_add_f32 {vr(s0+2*e,2)}, {vr(s0+2*e,2)}, {vr(s0+8+2*e,2)}")
                if c.xbf:
                    for e in range(2):
                        k = 2 * ii + e
                        s.e(f"v_cvt_pk_bf16_f32 v{XV + (k // 3) * 4 + k % 3}, v{s0+2*e}, v{s0+2*e+1}")
                    if ii: s.e(f"buffer_store_dwordx4 {vr(XV+4*(ii-1))}, v{vXS}, {srd(R_SY)}, 0 offen offset:{1024*(ii-1)} sc1")
                else:
                    for e in range(4): s.e(f"v_bfi_b32 v{d+e}, s{sT2}, v{TB+e}, v{s0+e}")
                    s.e(f"buffer_store_dwordx4 {vr(d)}, v{vXS}, {srd(R_SY)}, 0 offen offset:{1024*ii} sc1")
            s.e(f"v_subrev_u32 v{vRR}, {L_SP}, v{vRR}")
            Gb = []
        else:
            for ii in range(4):
                s.wds(R[4 * ii + 3])
                for e in range(4):
                    d = XV + 4 * ii + e; s0 = 96 + 16 * ii + e
                    s.e(f"v_add_f32 v{s0}, v{s0}, v{s0+4}", f"v_add_f32 v{d}, v{s0+8}, v{s0+12}", f"v_add_f32 v{d}, v{d}, v{s0}",
                        f"v_bfi_b32 v{d}, s{sT2}, v{TB+e}, v{d}")
            s.e(f"v_subrev_u32 v{vRR}, {L_SP}, v{vRR}")
            Gb = groups(s)
            s = Seq()
            for k in range(4): s.e(f"buffer_store_dwordx4 {vr(XV+4*k)}, v{vXS}, {srd(R_SY)}, 0 offen offset:{1024*k} sc1")
        self.stamp(s)
        e0 = 4 * (sent_done + 1)
        XR = 40
        xl = [I(f"buffer_load_dwordx4 {vr(XR+4*k)}, v{vXR}, {srd(R_SY)}, 0 offen offset:{1024*k} sc1", "vm") for k in range(NS)]
        sR = Stream(R0 + red_write(0, sent_done) + [("nb", e0 + c.bar_lag)] + Ga + [("nb", e0 + c.bar_lag + c.add_lag)] + Gb + [("nb", 4 * c.send_at)] + [list(s)]
                    + red_write(1, 43), wev=c.wev)
        sX = Stream([[x] for x in xl], start=c.xl_at, every=2)
        q.wds(self.w2_rd[1])
        emitted = set(id(x) for x in q)
        for gi, (n, k) in enumerate(order):
            ps, j = steps[n]; nu, mu = tile(k)
            a = 176 + 8 * (n % NR); d = ACC[ps] + 32 * nu + 16 * mu
            while not any(ld[n, mu] is x for x in q[-400:]):
                g = sL.it.pop(0)
                if not isinstance(g, tuple): q.e(*g)
            q.wvm(ld[n, mu])
            if n == firstB: q.wds(self.w2_rd[2])
            if n == firstB + 4: q.wds(self.w2_rd[5])
            if n == firstB + 6: q.wds(self.w2_rd[4])
            if k == 0 and n in c.p2stamps: self.stamp(q)
            q.e(f"v_mfma_f32_32x32x16_bf16 {vr(d,16)}, {ar(8*j+4*nu)}, {ar(a+4*mu)}, {'0' if j == 0 else vr(d,16)}")
            sL.every = 1.5 if c.fast_from <= gi < c.fast_to else 2
            fill_gap(q, gi, 0.5, c.cap4 if gi >= e0 else c.cap3, [sP, sL, sWc, sR, sX, sB])
        self.stamp(q)
        flush(q, [sR, sB])
        if c.xl_at <= 176: flush(q, [sX])
        pre = [f"s_mov_b32 s{sT0}, 0x0c0c0400", f"s_mov_b32 s{sT1}, 0x05040100"]
        for k in range(4):
            r = XR + 4 * k
            pre += [f"v_perm_b32 v60, v{r+1}, v{r}, s{sT0}", f"v_perm_b32 v61, v{r+3}, v{r+2}, s{sT0}", f"v_perm_b32 v{56+k}, v61, v60, s{sT1}"]
        q.wds_all(); q.e("s_barrier")
        if c.xl_at == 177: flush(q, [sX])
        R = red_read(q, 96)
        if c.xl_at == 178: flush(q, [sX])
        for ii in range(4):
            s0 = 96 + 16 * ii
            q.wds(R[4 * ii + 1])
            for e in range(2): q.e(f"v_pk_add_f32 {vr(s0+2*e,2)}, {vr(s0+2*e,2)}, {vr(BASE+4*ii+2*e,2)}")
            for e in range(2): q.e(f"v_pk_add_f32 {vr(s0+2*e,2)}, {vr(s0+2*e,2)}, {vr(s0+4+2*e,2)}")
            q.wds(R[4 * ii + 3])
            for e in range(2): q.e(f"v_pk_add_f32 {vr(s0+8+2*e,2)}, {vr(s0+8+2*e,2)}, {vr(s0+12+2*e,2)}")
            for e in range(2): q.e(f"v_pk_add_f32 {vr(s0+2*e,2)}, {vr(s0+2*e,2)}, {vr(s0+8+2*e,2)}")
        flush(q, [sX])
        q.extend(self.check("xc", xl, pre + self.tags([56 + k for k in range(4)])))
        self.stamp(q)
        for ii in range(4):
            s0 = 96 + 16 * ii; r = XR + 4 * ii
            for e in range(4): q.e(f"v_and_b32 v{r+e}, 0xffffff00, v{r+e}")
            q.e(f"s_movk_i32 s{sT0}, {8192*ii}")
            for e in range(2): q.e(f"v_pk_add_f32 {vr(s0+2*e,2)}, {vr(s0+2*e,2)}, {vr(r+2*e,2)}")
            q.e(f"buffer_store_dwordx4 {vr(s0)}, v19, {srd(R_OUT)}, s{sT0} offen {c.ost}")
        q.e(f"s_lshl_b32 s{sT0}, s{sG}, 2", f"s_or_b32 s{sT0}, s{sT0}, s{sW}", f"s_lshl_b32 s{sT0}, s{sT0}, 4", f"s_or_b32 s{sT0}, s{sT0}, s{sC}",
            f"s_cmp_eq_u32 s{sT0}, 15", "s_cbranch_scc0 L_nobump", "v_mov_b32 v57, 0", "s_mov_b64 exec, 1")
        q.e(f"buffer_store_dword v251, v57, {srd(R_SY)}, 0 offen sc1")
        q.e("s_mov_b64 exec, -1")
        q.label("L_nobump")

    def write_ts(self, q):
        if not self.c.ts: return
        q.wds_all(); q.wvm_all()
        q.e("s_memtime s[46:47]", "s_memrealtime s[92:93]"); q.wds_all()
        q.e(f"s_lshl_b32 s{sT0}, s2, 2", f"s_add_u32 s{sT0}, s{sT0}, s{sW}", f"s_lshl_b32 s{sT0}, s{sT0}, 6", f"s_add_u32 s{sT0}, s{sT0}, {WS_TS}", "v_mov_b32 v2, 0")
        q.e("s_mov_b64 exec, 1")
        def put(k): q.e(f"buffer_store_dword v3, v2, {srd(R_SY)}, s{sT0} offen offset:{4*k}")
        for k in range(self.nts + 2):
            if k == 0: q.e("v_mov_b32 v3, v255")
            elif k == self.nts + 1: q.e("s_sub_u32 s46, s46, s42", "v_mov_b32 v3, s46")
            else:
                r = TSREG[k - 1]; q.e(f"s_sub_u32 s{r}, s{r}, s42", f"v_mov_b32 v3, s{r}")
            put(k)
        q.e("v_mov_b32 v3, s92"); put(15)
        q.wvm_all()

    def add_prof(self, q):
        lo, step = self.c.prof
        out = Seq(); unsafe = False; started = False; acc = 0; n = 0; idx = 0; nm = 0
        NP = len(TSREG)
        self.prof_pts = []
        for ins in q:
            t = ins.t
            if started and not unsafe and n < 64 and idx >= lo and acc >= step and ins.kind not in WAITK and not t.startswith(("s_cbranch", "s_branch", "s_cselect", "s_addc")) and ins.kind != "label":
                r = TSREG[n % NP]
                if n >= NP: out.e(f"v_writelane_b32 v0, s{r}, {n - NP}")
                out.e(f"s_memtime s[{r}:{r+1}]"); self.prof_pts.append((idx, nm, t[:50])); n += 1; acc = 0
            out.append(ins)
            if t == "s_barrier": started = True
            if started and ins.kind != "label":
                idx += 1; acc += 1
                if t.startswith("v_mfma"): nm += 1
            if t.startswith("s_cbranch"): unsafe = started
            if ins.kind == "label" and (t.endswith("_ok:") or t.startswith("L_nobump")): unsafe = False
        out.wds_all()
        for k in range(max(0, n - NP), n): out.e(f"v_writelane_b32 v0, s{TSREG[k % NP]}, {k}")
        out.e(f"s_lshl_b32 s{sT0}, s2, 2", f"s_add_u32 s{sT0}, s{sT0}, s{sW}", f"s_lshl_b32 s{sT0}, s{sT0}, 8", f"s_add_u32 s{sT0}, s{sT0}, {WS_TS + 65536}",
              "v_subrev_u32 v0, s42, v0", f"v_lshlrev_b32 v2, 2, v{vL}")
        out.e(f"buffer_store_dword v0, v2, {srd(R_SY)}, s{sT0} offen")
        return out

    def build(self):
        q = Seq()
        q.label("L_start")
        last = self.prologue(q)
        self.phase1(q, last)
        self.phase2(q)
        if self.c.prof: q = self.add_prof(q)
        self.write_ts(q)
        if self.c.spin_to:
            q.e("s_waitcnt lgkmcnt(0)")
            if self.c.spin_x >= 0: q.e("s_and_b32 s46, s2, 7", f"s_cmp_eq_u32 s46, {self.c.spin_x}", "s_cbranch_scc0 L_end")
            if self.c.probe: q.e("s_sub_u32 s68, s68, s42", f"s_add_u32 s68, s68, {self.c.spin_to}")
            else: q.e(f"s_mov_b32 s68, {self.c.spin_to}")
            q.label("L_spin")
            q.e("s_memrealtime s[46:47]", "s_waitcnt lgkmcnt(0)", "s_sub_u32 s46, s46, s42", "s_cmp_lt_u32 s46, s68", "s_cbranch_scc1 L_spin")
        q.label("L_end")
        q.e("s_endpgm")
        q.extend(self.ool)
        q.label("L_fin")
        return finalize(q)

HDR = """; Fused LayerNorm + S5 state-space branch + ReLU feed-forward branch, one persistent launch (generated by gen/gen.py).
;           exact chunked scan with look-back over all earlier chunks, H written to the workspace as MFMA fragments
; @launch grid=(256,1,1) block=(256,1,1) lds=163840
.amdgcn_target "amdgcn-amd-amdhsa--gfx950"
.text
.globl {n}_kernel
.p2align 8
.type {n}_kernel,@function
{n}_kernel:
"""
TAIL = """
.section .rodata,"a"
.p2align 6
.amdhsa_kernel {n}_kernel
  .amdhsa_next_free_vgpr 512
  .amdhsa_next_free_sgpr 102
  .amdhsa_accum_offset 256
  .amdhsa_group_segment_fixed_size 0
  .amdhsa_kernarg_size 120
  .amdhsa_user_sgpr_count 2
  .amdhsa_user_sgpr_kernarg_segment_ptr 1
  .amdhsa_system_sgpr_workgroup_id_x 1
.end_amdhsa_kernel
"""
def generate(cfg):
    g = Gen(cfg)
    body = g.build()
    return HDR.format(n=NAME) + "\n".join(("" if l.endswith(":") else "    ") + l for l in body) + TAIL.format(n=NAME), g

if __name__ == "__main__":
    cfg = Cfg()
    for a in sys.argv[2:]:
        k, v = a.split("=", 1); assert hasattr(cfg, k), k; setattr(cfg, k, eval(v))
    txt, g = generate(cfg)
    open(sys.argv[1], "w").write(txt)
```
